```python
import torch

def _softmax(x, axis=-1):
    return torch.softmax(x, dim=axis)
def _gelu(x):
    return torch.nn.functional.gelu(x, approximate="tanh")
def _silu(x):
    return torch.nn.functional.silu(x)
def _sigmoid(x):
    return torch.sigmoid(x)
def _layernorm(x, axis=-1, eps=1e-5):
    m = x.mean(dim=axis, keepdim=True)
    v = x.var(dim=axis, keepdim=True, unbiased=False)
    return (x - m) / torch.sqrt(v + eps)
def _scatter_add(tgt, idx, src, axis=0):
    return tgt.clone().index_add_(axis, idx, src)
def _segment_sum(src, seg, n):
    out = torch.zeros((n,) + src.shape[1:], dtype=src.dtype)
    return out.index_add_(0, seg, src)
def _pad(x, pw):
    flat = tuple(v for pair in reversed(pw) for v in pair)
    return torch.nn.functional.pad(x, flat)

kernel_name = 'gated_mix__ssm_conv_s4d__dense_activation_mish__prompt'

def setup_inputs():

    _w = (lambda a: (lambda t: t.to(torch.bfloat16) if t.is_floating_point() else t)(torch.as_tensor(a)))
    def _A_setup():
        Bsz, L, D, N = 1, 2048, 576, 128
        return {
            "u": _w((lambda *s: torch.randn(*s, dtype=torch.bfloat16) * 0.05)(Bsz, L, D)),
            "log_A_real": _w((lambda *s: torch.randn(*s, dtype=torch.bfloat16) * 6.4)(D, N) * 0.5),
            "A_imag": _w((lambda *s: torch.randn(*s, dtype=torch.bfloat16) * 0.05)(D, N) * 3.14),
            "C_real": _w((lambda *s: torch.randn(*s, dtype=torch.bfloat16) * 0.1)(D, N) / N ** 0.5),
            "C_imag": _w((lambda *s: torch.randn(*s, dtype=torch.bfloat16) * 0.1)(D, N) / N ** 0.5),
            "log_dt": _w((lambda *s: torch.randn(*s, dtype=torch.bfloat16) * 0.05)(D) * 0.5 - 4.0),
            "D_skip": _w((lambda *s: torch.randn(*s, dtype=torch.bfloat16) * 0.05)(D)),
        }
    _A_in = _A_setup()

    def _B_setup():
        B, S, D, F = 1, 2048, 576, 4608
        return {
            "x": _w((lambda *s: torch.randn(*s, dtype=torch.bfloat16) * 0.05)(B, S, D)),
            "w1": _w((lambda *s: torch.randn(*s, dtype=torch.bfloat16) * 6.4)(D, F) * (D ** -0.5)),
            "b1": _w((lambda *s: torch.randn(*s, dtype=torch.bfloat16) * 0.05)(F)),
            "w2": _w((lambda *s: torch.randn(*s, dtype=torch.bfloat16) * 0.05)(F, D) * (F ** -0.5)),
        }
    _B_in = _B_setup()

    return {
        "A_u": _A_in["u"],
        "A_log_A_real": _A_in["log_A_real"],
        "A_A_imag": _A_in["A_imag"],
        "A_C_real": _A_in["C_real"],
        "A_C_imag": _A_in["C_imag"],
        "A_log_dt": _A_in["log_dt"],
        "A_D_skip": _A_in["D_skip"],
        "B_x": _B_in["x"],
        "B_w1": _B_in["w1"],
        "B_b1": _B_in["b1"],
        "B_w2": _B_in["w2"],
        "gate_w": _w((lambda *s: torch.randn(*s, dtype=torch.bfloat16) * 0.05)(576) * 16.0),
    }

def reference(A_u, A_log_A_real, A_A_imag, A_C_real, A_C_imag, A_log_dt, A_D_skip, B_x, B_w1, B_b1, B_w2, gate_w):
    def _A_ref(u, log_A_real, A_imag, C_real, C_imag, log_dt, D_skip):
        L = u.shape[1]
        dt = torch.exp(log_dt)
        A = -torch.exp(log_A_real) + 1j * A_imag
        C = (C_real + 1j * C_imag) * dt[:, None]
        pos = (lambda x, dt: x.to(dt))(torch.arange(L), log_dt.dtype)
        P = torch.exp((A * dt[:, None])[:, :, None] * pos[None, None, :])
        K = 2.0 * torch.einsum("dn,dnl->dl", C, P).real
        L2 = 2 * L
        u_t = (lambda x, *d: x.permute(*d))(u, 0, 2, 1)
        Kf = (lambda x, *a, **k: torch.fft.rfft(x.float(), *a, **k))(K, L2)
        Uf = (lambda x, *a, **k: torch.fft.rfft(x.float(), *a, **k))(u_t, L2)
        y = (lambda x, *a, **k: torch.fft.irfft(x, *a, **k).to(torch.bfloat16))(Uf * Kf[None, :, :], L2)[:, :, :L]
        y = (lambda x, *d: x.permute(*d))(y, 0, 2, 1)
        return y + u * D_skip[None, None, :]

    def _B_ref(x, w1, b1, w2):
        h = torch.einsum("bsd,df->bsf", x, w1) + b1
        sp = torch.log1p(torch.exp(-torch.abs(h))) + torch.where(h > 0, h, torch.zeros_like(h))
        act = h * torch.tanh(sp)
        return torch.einsum("bsf,fd->bsd", act, w2)

    x = A_u
    g = _sigmoid((x * gate_w).sum(-1, keepdims=True))
    a = _A_ref(x, A_log_A_real, A_A_imag, A_C_real, A_C_imag, A_log_dt, A_D_skip)
    b = _B_ref(x, B_w1, B_b1, B_w2)
    return g * a + (1 - g) * b
```

```python
import struct
def f2u(x): return struct.unpack('<I', struct.pack('<f', x))[0]
def fhex(x): return hex(f2u(x))

class Op:
    __slots__ = ("txt", "cost", "trans", "deps", "kind", "pos", "tag")
    def __init__(self, txt, cost=4, trans=False, deps=(), kind="valu", tag=None):
        self.txt, self.cost, self.trans, self.deps, self.kind, self.tag = txt, cost, trans, list(deps), kind, tag
        self.pos = None

class Asm:
    def __init__(self):
        self.L = []
        self.n = 0
        self.vm = []
        self.lg = []
        self.lbl = 0
    def raw(self, s): self.L.append(s)
    def c(self, s): self.L.append("; " + s)
    def e(self, s):
        self.L.append("    " + s); self.n += 1
    def es(self, lst):
        for s in lst: self.e(s)
    def label(self, name): self.L.append(name + ":")
    def newlabel(self, p="L"):
        self.lbl += 1; return f"{p}_{self.lbl}"
    def vmem(self, s, tag):
        self.e(s); self.vm.append(tag)
    def ds(self, s, tag):
        self.e(s); self.lg.append(tag)
    def _cnt(self, q, tags):
        if isinstance(tags, str): tags = [tags]
        last = -1
        for i, t in enumerate(q):
            if t in tags: last = i
        return last
    def wait_vm(self, tags, force=False):
        last = self._cnt(self.vm, tags)
        if last < 0: return
        n = len(self.vm) - 1 - last
        n = min(n, 63)
        self.e(f"s_waitcnt vmcnt({n})")
        self.vm = self.vm[len(self.vm) - n:] if n else []
    def wait_lg(self, tags):
        last = self._cnt(self.lg, tags)
        if last < 0: return
        n = len(self.lg) - 1 - last
        n = min(n, 15)
        self.e(f"s_waitcnt lgkmcnt({n})")
        self.lg = self.lg[len(self.lg) - n:] if n else []
    def wait_all(self, vm=True, lg=True):
        s = []
        if vm: s.append("vmcnt(0)"); self.vm = []
        if lg: s.append("lgkmcnt(0)"); self.lg = []
        self.e("s_waitcnt " + " ".join(s))
    def nop(self, k):
        while k > 0:
            m = min(k, 16); self.e(f"s_nop {m-1}"); self.n += m - 1; k -= m
    def srd(self, d, lo, hi, nbytes):
        self.e(f"s_mov_b32 s{d}, s{lo}")
        self.e(f"s_and_b32 s{d+1}, s{hi}, 0xffff")
        self.e(f"s_mov_b32 s{d+2}, {hex(nbytes)}")
        self.e(f"s_mov_b32 s{d+3}, 0x00020000")
    def text(self): return "\n".join(self.L) + "\n"

class Filler:
    def __init__(self, A):
        self.A = A; self.q = []
    def add(self, ops): self.q += ops
    def total(self): return sum(o.cost for o in self.q)
    def ready(self, o):
        for (d, dist) in o.deps:
            if isinstance(d, Op):
                if d.pos is None or self.A.n - d.pos < dist: return False
            else:
                p = d()
                if p is None or self.A.n - p < dist: return False
        return True
    def emit(self, o):
        o.pos = self.A.n
        if o.kind == "vmem": self.A.vmem(o.txt, o.tag)
        elif o.kind == "ds": self.A.ds(o.txt, o.tag)
        else: self.A.e(o.txt)
    def fill(self, budget, allow_trans=True, window=10):
        used = 0
        while self.q:
            pick = None
            for i, o in enumerate(self.q[:window]):
                if o.trans and not allow_trans: continue
                if used + o.cost > budget: continue
                if not self.ready(o): continue
                pick = i; break
            if pick is None: break
            o = self.q.pop(pick); self.emit(o); used += o.cost
        return used
    def drain(self):
        while self.q:
            for i, o in enumerate(self.q[:16]):
                if self.ready(o):
                    self.q.pop(i); self.emit(o); break
            else:
                self.A.e("s_nop 0")

KD = """.amdhsa_kernel {name}
  .amdhsa_next_free_vgpr {vgpr}
  .amdhsa_next_free_sgpr 102
  .amdhsa_accum_offset {accum}
  .amdhsa_group_segment_fixed_size 0
  .amdhsa_kernarg_size 120
  .amdhsa_user_sgpr_count 2
  .amdhsa_user_sgpr_kernarg_segment_ptr 1
  .amdhsa_system_sgpr_workgroup_id_x 1
.end_amdhsa_kernel
"""
def kernel_head(name):
    return f".globl {name}\n.p2align 8\n.type {name},@function\n{name}:\n"
```

```python
from asmlib import *
NAME = "gated_mix__ssm_conv_s4d__dense_activation_mish__prompt"
L_, D_, F_ = 2048, 576, 4608
KA = dict(u=0, loga=8, aim=16, cre=24, cim=32, logdt=40, dskip=48, bx=56, w1=64, b1=72, w2=80, gw=88, out=96, dbg=104, ws=112)
WS_H    = 0x0000000
WS_UT   = 0x1200000
UT_PITCH = 4224
WS_G    = 0x1480000
WS_Y    = 0x1700000
WS_P    = 0x1A00000
WS_GATE = 0x2400000
WS_BYTES = 0x10000000
SLOT = 24576
XRING = 3*SLOT
MISC = 3*SLOT + 81920
LDS_BYTES = 163840
LOG2E = 1.4426950408889634

sX, sW1, sWS, sB1, sW2, sT0, sT1 = 16, 20, 24, 28, 32, 36, 40
s_w, s_m, s_kq, s_r, s_f0, s_wl, s_so, s_hb, s_log2e, s_t0, s_t1, s_t2, s_t3, s_line = 44, 45, 46, 47, 48, 49, 50, 51, 52, 53, 54, 55, 56, 57

def decode_ids(A):
    A.e("s_and_b32 s3, s2, 7")
    A.e(f"s_lshr_b32 s{s_kq}, s3, 1")
    A.e("s_and_b32 s3, s3, 1")
    A.e("s_lshl_b32 s3, s3, 3")
    A.e(f"s_lshr_b32 s{s_m}, s2, 5")
    A.e(f"s_add_u32 s{s_m}, s{s_m}, s3")
    A.e(f"s_lshr_b32 s{s_r}, s2, 3")
    A.e(f"s_and_b32 s{s_r}, s{s_r}, 3")
    A.e("v_lshrrev_b32 v2, 6, v0")
    A.e("v_and_b32 v1, 63, v0")
    A.e(f"v_readfirstlane_b32 s{s_w}, v2")
def ids(b):
    xcd = b & 7; j = b >> 3
    return dict(kq=xcd >> 1, m=(xcd & 1)*8 + (j >> 2), r=j & 3)
```

```python
from common import *
from p1 import emit_now, vL16, vT
SU, SR = 4640, 4480
WREG = 4*SU + 2*2*SR
s_ch, s_rd, s_lb, s_yo, s_q = 60, 61, 62, 63, 64
sU, sG = 68, 72
s_wsl, s_wsh = 10, 11
vUD, vRD, vB, vA, vYW, vYR, vBl = 4, 5, 6, 7, 8, 9, 10
CACC, CA, CBm8, CP = 32, 64, 96, 100

def breg(rho):
    if rho == -8: return f"v[{CBm8}:{CBm8+3}]"
    k = rho + 7
    return f"a[{4*k}:{4*k+3}]"

def set_srds(A):
    A.e(f"s_mul_i32 s{s_t0}, s{s_ch}, {UT_PITCH}")
    for srd, off, n in ((sU, WS_UT + 112 - 384, 4496), (sG, WS_G + 112, 4128)):
        A.e(f"s_add_u32 s{s_t1}, s{s_t0}, {off}")
        A.e(f"s_add_u32 s{srd}, s{s_wsl}, s{s_t1}")
        A.e(f"s_addc_u32 s{srd+1}, s{s_wsh}, 0")
        A.e(f"s_and_b32 s{srd+1}, s{srd+1}, 0xffff")
        A.e(f"s_mov_b32 s{srd+2}, {n}")
        A.e(f"s_mov_b32 s{srd+3}, 0x00020000")

def u_dma_ops(flag=""):
    o = []
    for a0 in range(4):
        m = Op(f"s_add_u32 m0, s{s_lb}, {a0*SU}", kind="salu")
        so = Op(f"s_mov_b32 s{s_so}, {4*a0}", kind="salu")
        o += [m, so]
        for i in range(4):
            o.append(Op(f"buffer_load_dwordx4 v{vUD if i == 0 else vL16}, s[{sU}:{sU+3}], s{s_so} offen offset:{i*1024} lds{flag}", kind="vmem", tag="u", deps=[(m, 2)]))
    o.append(Op("s_mov_b32 exec_hi, 0", kind="salu"))
    for a0 in range(4):
        m = Op(f"s_add_u32 m0, s{s_lb}, {a0*SU + 4096}", kind="salu")
        so = Op(f"s_mov_b32 s{s_so}, {4*a0 + 4096}", kind="salu")
        o += [m, so, Op(f"buffer_load_dwordx4 v{vL16}, s[{sU}:{sU+3}], s{s_so} offen lds{flag}", kind="vmem", tag="u", deps=[(m, 2)])]
    o.append(Op("s_mov_b64 exec, -1", kind="salu"))
    return o
def r_dma_ops(flag=""):
    o = []
    for b0 in range(2):
        m = Op(f"s_add_u32 m0, s{s_rd}, {b0*SR}", kind="salu")
        so = Op(f"s_mov_b32 s{s_so}, {14 - 2*b0}", kind="salu")
        o += [m, so]
        for i in range(4):
            o.append(Op(f"buffer_load_dwordx4 v{vL16}, s[{sG}:{sG+3}], s{s_so} offen offset:{i*1024} lds{flag}", kind="vmem", tag="r", deps=[(m, 2)]))
    o.append(Op("s_mov_b64 exec, 0xffff", kind="salu"))
    for b0 in range(2):
        m = Op(f"s_add_u32 m0, s{s_rd}, {b0*SR + 4096}", kind="salu")
        so = Op(f"s_mov_b32 s{s_so}, {14 - 2*b0 + 4096}", kind="salu")
        o += [m, so, Op(f"buffer_load_dwordx4 v{vL16}, s[{sG}:{sG+3}], s{s_so} offen lds{flag}", kind="vmem", tag="r", deps=[(m, 2)])]
    o.append(Op("s_mov_b64 exec, -1", kind="salu"))
    return o

def conv_setup(A):
    A.c("---- conv setup")
    T = vT
    A.e(f"s_lshl_b32 s{s_ch}, s{s_m}, 2")
    A.e(f"s_add_u32 s{s_ch}, s{s_ch}, s{s_kq}")
    A.e(f"s_mul_i32 s{s_ch}, s{s_ch}, 9")
    A.e(f"s_add_u32 s{s_ch}, s{s_ch}, s{s_w}")
    A.e(f"s_mul_i32 s{s_lb}, s{s_w}, {WREG}")
    A.e(f"s_add_u32 s{s_rd}, s{s_lb}, {4*SU}")
    A.e(f"v_lshlrev_b32 v{vL16}, 4, v1")
    A.e(f"v_bfrev_b32 v{vUD}, 1")
    A.e("v_cmp_le_u32 vcc, 24, v1")
    A.nop(2)
    A.e(f"v_cndmask_b32 v{vUD}, v{vUD}, v{vL16}, vcc")
    A.e(f"v_lshrrev_b32 v{T}, 4, v1")
    A.e(f"v_and_b32 v{T+1}, 3, v1")
    A.e(f"v_lshrrev_b32 v{T+2}, 2, v1")
    A.e(f"v_and_b32 v{T+2}, 3, v{T+2}")
    A.e(f"v_mul_u32_u24 v{vB}, {SU}, v{T+1}")
    A.e(f"v_lshl_add_u32 v{vB}, v{T+2}, 7, v{vB}")
    A.e(f"v_lshl_add_u32 v{vB}, v{T}, 4, v{vB}")
    A.e(f"v_add_u32 v{vB}, s{s_lb}, v{vB}")
    A.e(f"v_lshlrev_b32 v{vYW}, 5, v{T}")
    A.e(f"v_lshl_add_u32 v{vYW}, v{T+1}, 2, v{vYW}")
    A.e(f"v_lshl_add_u32 v{vYW}, v{T+2}, 7, v{vYW}")
    A.e(f"v_add_u32 v{vYW}, s{s_rd}, v{vYW}")
    A.e(f"v_add_u32 v{vYR}, s{s_rd}, v{vL16}")
    A.e(f"v_and_b32 v{T+1}, 1, v1")
    A.e(f"v_lshrrev_b32 v{T+2}, 1, v1")
    A.e(f"v_and_b32 v{T+2}, 7, v{T+2}")
    A.e(f"v_mul_u32_u24 v{vA}, {SR}, v{T+1}")
    A.e(f"v_sub_u32 v{T}, v{T}, v{T+2}")
    A.e(f"v_lshl_add_u32 v{vA}, v{T}, 4, v{vA}")
    A.e(f"s_add_u32 s{s_t0}, s{s_rd}, 112")
    A.e(f"v_add_u32 v{vA}, s{s_t0}, v{vA}")

def y_out(A, tiles, nacc, flag=""):
    pass

def conv_round(A, ldflag="", stflag=""):
    memq = Filler(A)
    def rdA(q): A.ds(f"ds_read_b128 v[{CA+4*(q%8)}:{CA+4*(q%8)+3}], v{vA} offset:{4096-64*q}", f"A{q}")
    def rdB(rho): A.ds(f"ds_read_b128 {breg(rho)}, v{vB} offset:{64*(rho+8)}", f"B{rho}")
    seq = [(q, j) for q in range(65) for j in range(max(0, -((8-q)//8)), 8)]
    assert len(seq) == 296
    reads = []
    seenB = set();
    for (q, j) in seq:
        if ("A", q) not in seenB: reads.append(("A", q)); seenB.add(("A", q))
        if ("B", 8*j-q) not in seenB: reads.append(("B", 8*j-q)); seenB.add(("B", 8*j-q))
    first_use = {}
    for i, (q, j) in enumerate(seq):
        first_use.setdefault(("A", q), i); first_use.setdefault(("B", 8*j-q), i)
    last_useA = {}
    for i, (q, j) in enumerate(seq): last_useA[q] = i
    ri = 0
    def issue(upto_use, cur, maxn):
        nonlocal ri
        n = 0
        while ri < len(reads) and n < maxn and first_use[reads[ri]] <= upto_use:
            k, x = reads[ri]
            if k == "A" and x >= 8 and last_useA[x-8] >= cur: break
            (rdA if k == "A" else rdB)(x); ri += 1; n += 1
        return n
    issue(9, 0, 12)
    started = set()
    u_free = False
    for i, (q, j) in enumerate(seq):
        need = [f"A{q}", f"B{8*j-q}"]
        if A._cnt(A.lg, need) >= 0:
            ahead = [f"A{seq[k][0]}" for k in range(i, min(i+3, 296))] + [f"B{8*seq[k][1]-seq[k][0]}" for k in range(i, min(i+3, 296))]
            A.wait_lg(ahead)
        assert ("A", q) not in reads[ri:] and ("B", 8*j-q) not in reads[ri:]
        acc = CACC + 4*j
        cin = f"v[{acc}:{acc+3}]" if j in started else "0"
        started.add(j)
        A.e(f"v_mfma_f32_16x16x32_bf16 v[{acc}:{acc+3}], v[{CA+4*(q%8)}:{CA+4*(q%8)+3}], {breg(8*j-q)}, {cin}")
        n = issue(i + 12, i + 1, 2)
        if not u_free and all(("B", r) not in reads[ri:] for r in range(-8, 57)) and A._cnt(A.lg, [f"B{r}" for r in range(-8, 57)]) < 0:
            u_free = True
            memq.add(NEXT(A, ldflag))
        if n < 2 and u_free:
            if memq.q and memq.q[0].txt.startswith(("s_mov_b64 exec, 0x", "s_mov_b32 exec_hi")):
                while True:
                    o = memq.q.pop(0)
                    while not memq.ready(o): A.e("s_nop 0")
                    memq.emit(o)
                    if o.txt == "s_mov_b64 exec, -1": break
                A.nop(1)
            else:
                k = 0
                while memq.q and k < 2 - n and not memq.q[0].txt.startswith(("s_mov_b64 exec, 0x", "s_mov_b32 exec_hi")) and memq.ready(memq.q[0]):
                    memq.emit(memq.q.pop(0)); k += 1
    assert not memq.q
    A.c("---- y out")
    A.nop(8)
    for j in range(8):
        for e in range(2):
            r = CP + (2*j + e)
            A.e(f"v_cvt_pk_bf16_f32 v{r}, v{CACC+4*j+2*e}, v{CACC+4*j+2*e+1}")
            A.ds(f"ds_write_b32 v{vYW}, v{r} offset:{512*j+16*e}", "yw")
    A.wait_lg("yw")
    for k in range(4): A.ds(f"ds_read_b128 v[{CP+4*k}:{CP+4*k+3}], v{vYR} offset:{1024*k}", f"yr{k}")
    for k in range(4):
        A.wait_lg(f"yr{k}")
        A.vmem(f"buffer_store_dwordx4 v[{CP+4*k}:{CP+4*k+3}], v{vL16}, s[{sWS}:{sWS+3}], s{s_yo} offen offset:{1024*k}{stflag}", "yst")

def NEXT(A, ldflag):
    o = []
    o.append(Op(f"s_add_u32 s{s_ch}, s{s_ch}, s{s_q}", kind="salu"))
    class X:
        def __init__(s): s.l = []
        def e(s, t): s.l.append(t)
    x = X(); set_srds(x)
    o += [Op(t, kind="salu") for t in x.l]
    o.append(Op(f"s_xor_b32 s{s_rd}, s{s_rd}, s{s_t3}", kind="salu"))
    return o + u_dma_ops(ldflag) + r_dma_ops(ldflag)

def conv_all(A, ldflag="", stflag=""):
    conv_setup(A)
    set_srds(A)
    emit_now(A, u_dma_ops(ldflag)); emit_now(A, r_dma_ops(ldflag))
    A.e(f"s_add_u32 s{s_t3}, s{s_rd}, {2*SR}")
    A.e(f"s_xor_b32 s{s_t3}, s{s_t3}, s{s_rd}")
    A.e(f"s_mov_b32 s{s_q}, 4")
    A.e(f"s_mov_b32 s65, {2*SR}")
    A.e(f"s_mov_b32 s66, 0")
    A.label("L_cv_round")
    A.e(f"s_lshl_b32 s{s_yo}, s{s_ch}, 12")
    A.e(f"s_add_u32 s{s_yo}, s{s_yo}, {WS_Y}")
    A.e("s_waitcnt vmcnt(0)"); A.vm = []; A.lg = []
    conv_round(A, ldflag, stflag)
    for r in (vA, vYW, vYR): A.e(f"v_add_u32 v{r}, s65, v{r}")
    A.e("s_sub_u32 s65, 0, s65")
    A.e(f"s_sub_u32 s{s_q}, 4, s{s_w}")
    A.e("s_add_u32 s66, s66, 1")
    A.e("s_cmp_lt_u32 s66, 2")
    A.e("s_cbranch_scc1 L_cv_round")
    A.c("---- 9th channel: tiles jl=w, jh=7-w")
    A.e(f"s_lshl_b32 s{s_yo}, s{s_ch}, 12")
    A.e(f"s_add_u32 s{s_yo}, s{s_yo}, {WS_Y}")
    A.e(f"v_add_u32 v{vA}, {4096 - 448}, v{vA}")
    A.e(f"s_lshl_b32 s{s_t0}, s{s_w}, 9")
    A.e(f"s_add_u32 s{s_t1}, s{s_t0}, 64")
    A.e(f"v_add_u32 v{vBl}, s{s_t1}, v{vB}")
    A.e(f"s_sub_u32 s{s_t1}, {7*512 + 64}, s{s_t0}")
    A.e(f"v_add_u32 v11, s{s_t1}, v{vB}")
    A.e(f"v_subrev_u32 v12, s{s_t0}, v{vA}")
    A.e(f"v_add_u32 v12, {hex((-64) & 0xffffffff)}, v12")
    A.e(f"v_add_u32 v13, s{s_t0}, v{vA}")
    A.e(f"v_add_u32 v13, {hex((-64 - 7*512) & 0xffffffff)}, v13")
    A.e("s_waitcnt vmcnt(0)"); A.vm = []; A.lg = []
    AL, AH = CACC, CACC + 4
    A.e(f"ds_read_b128 v[{CBm8}:{CBm8+3}], v{vB}")
    A.e(f"ds_read_b128 v[{CA}:{CA+3}], v12")
    A.e(f"ds_read_b128 v[{CA+4}:{CA+7}], v13")
    A.e("s_waitcnt lgkmcnt(0)")
    A.e(f"v_mfma_f32_16x16x32_bf16 v[{AL}:{AL+3}], v[{CA}:{CA+3}], v[{CBm8}:{CBm8+3}], 0")
    A.e(f"v_mfma_f32_16x16x32_bf16 v[{AH}:{AH+3}], v[{CA+4}:{CA+7}], v[{CBm8}:{CBm8+3}], 0")
    A.e(f"s_mov_b32 s66, 0")
    for both in (True, False):
        lab = "L_cv9a" if both else "L_cv9b"
        A.label(lab)
        per = 3 if both else 2
        for qq in range(8):
            A.e(f"ds_read_b128 v[{CA+4*qq}:{CA+4*qq+3}], v{vA} offset:{64*(7-qq)}")
            A.e(f"ds_read_b128 a[{4*qq}:{4*qq+3}], v11 offset:{64*(7-qq)}")
            if both: A.e(f"ds_read_b128 a[{32+4*qq}:{35+4*qq}], v{vBl} offset:{64*(7-qq)}")
        for qq in range(8):
            A.e(f"s_waitcnt lgkmcnt({min(15, per*(7-qq))})")
            A.e(f"v_mfma_f32_16x16x32_bf16 v[{AH}:{AH+3}], v[{CA+4*qq}:{CA+4*qq+3}], a[{4*qq}:{4*qq+3}], v[{AH}:{AH+3}]")
            if both: A.e(f"v_mfma_f32_16x16x32_bf16 v[{AL}:{AL+3}], v[{CA+4*qq}:{CA+4*qq+3}], a[{32+4*qq}:{35+4*qq}], v[{AL}:{AL+3}]")
        for r in ([vA, 11, vBl] if both else [vA, 11]): A.e(f"v_add_u32 v{r}, {hex((-512) & 0xffffffff)}, v{r}")
        A.e("s_add_u32 s66, s66, 1")
        if both:
            A.e(f"s_cmp_le_u32 s66, s{s_w}")
        else:
            A.e(f"s_sub_u32 s{s_t1}, 7, s{s_w}")
            A.e(f"s_cmp_le_u32 s66, s{s_t1}")
        A.e(f"s_cbranch_scc1 {lab}")
    A.nop(8)
    for ti, acc in enumerate((AL, AH)):
        for e in range(2):
            r = CP + 2*ti + e
            A.e(f"v_cvt_pk_bf16_f32 v{r}, v{acc+2*e}, v{acc+2*e+1}")
            A.e(f"ds_write_b32 v{vYW}, v{r} offset:{512*ti+16*e}")
    A.e("s_waitcnt lgkmcnt(0)")
    A.e(f"ds_read_b128 v[{CP+4}:{CP+7}], v{vYR}")
    A.e(f"s_lshl_b32 s{s_t0}, s{s_w}, 9")
    A.e(f"s_sub_u32 s{s_t1}, {6*512}, s{s_t0}")
    A.e(f"v_mov_b32 v12, s{s_t0}")
    A.e(f"v_mov_b32 v13, s{s_t1}")
    A.e("v_cmp_gt_u32 vcc, 32, v1")
    A.nop(2)
    A.e("v_cndmask_b32 v12, v13, v12, vcc")
    A.e(f"v_add_u32 v12, v12, v{vL16}")
    A.e("s_waitcnt lgkmcnt(0)")
    A.vmem(f"buffer_store_dwordx4 v[{CP+4}:{CP+7}], v12, s[{sWS}:{sWS+3}], s{s_yo} offen{stflag}", "yst")
```

```python
from common import *
import math
ROWP = 528
KT = 33792
TOG = 0x10000
L2E_HI = struct.unpack('<f', struct.pack('<f', LOG2E))[0]
L2E_LO = LOG2E - L2E_HI
LN2 = math.log(2.0)
s_ch, s_i, s_dt, s_dsk, s_cA, s_cB, s_cC, s_go = 60, 61, 62, 63, 64, 65, 66, 67
sP = [68, 72, 76, 80]
sDT, sDS = 84, 88
vWr, vRA, vRB, vSc, vGa, vDt, vDk, vPo, vN, vC16 = 32, 33, 34, 36, 40, 48, 49, 50, 52, 56
vP = 58
vZ = 64
vE = 70
vFA, vFB, vD = 160, 192, 224

def a_table():
    t = []
    for row in range(16): t.append((row & 7) + 128*(row >> 3))
    for row in range(16):
        t.append(256 + 128*(row >> 2) + 2*(row & 3) if row < 8 else 512 + 128*((row-8) >> 1) + 4*(row & 1))
    for row in range(16): t.append(1024 + 128*row if row <= 8 else 2176)
    for row in range(16): t.append(2176)
    return t

def exp_bf16(A, dst, x, t0, t1):
    A.e(f"v_mul_f32 v{t0}, s{s_cA}, v{x}")
    A.e(f"v_fma_f32 v{t1}, v{x}, s{s_cA}, -v{t0}")
    A.e(f"v_fma_f32 v{t1}, v{x}, s{s_cB}, v{t1}")
    A.e(f"v_exp_f32 v{t0}, v{t0}")
    A.e(f"v_mul_f32 v{t1}, s{s_cC}, v{t1}")
    A.e(f"v_fma_f32 v{t0}, v{t0}, v{t1}, v{t0}")
    A.e(f"v_cvt_pk_bf16_f32 v{t0}, v{t0}, v{t0}")
    A.e(f"v_lshlrev_b32 v{dst}, 16, v{t0}")

def direct(A, dsts, Ps, tmp):
    for k, P in enumerate(Ps):
        t = tmp + 2*k
        if P == 1:
            A.e(f"v_mov_b32 v{t}, v{vZ}"); A.e(f"v_fract_f32 v{t+1}, v{vZ+1}")
        else:
            A.e(f"v_mul_f32 v{t}, {fhex(float(P))}, v{vZ}")
            A.e(f"v_mul_f32 v{t+1}, {fhex(float(P))}, v{vZ+1}")
            A.e(f"v_fract_f32 v{t+1}, v{t+1}")
    for k, P in enumerate(Ps):
        t = tmp + 2*k
        A.e(f"v_exp_f32 v{t}, v{t}")
        A.e(f"v_cos_f32 v{dsts[k]}, v{t+1}")
        A.e(f"v_sin_f32 v{dsts[k]+1}, v{t+1}")
    A.e("s_nop 0")
    for k, P in enumerate(Ps):
        t = tmp + 2*k
        A.e(f"v_pk_mul_f32 v[{dsts[k]}:{dsts[k]+1}], v[{dsts[k]}:{dsts[k]+1}], v[{t}:{t+1}] op_sel_hi:[1,0]")

def cmul(A, d, x, m):
    assert d != x and d != m
    A.e(f"v_pk_mul_f32 v[{d}:{d+1}], v[{x}:{x+1}], v[{m}:{m+1}] op_sel_hi:[1,0]")
    return lambda: A.e(f"v_pk_fma_f32 v[{d}:{d+1}], v[{x}:{x+1}], v[{m}:{m+1}], v[{d}:{d+1}] op_sel:[1,1,0] op_sel_hi:[0,1,1] neg_lo:[1,0,0]")
def cmuls(A, lst):
    fs = [cmul(A, *t) for t in lst]
    for f in fs: f()
def put(A, row, reg, neg=False, tmp=None, idx=[0]):
    t = vC16 + (idx[0] % 2); idx[0] += 1
    A.e(f"v_cvt_pk_bf16_f32 v{t}, v{reg}, {'-' if neg else ''}v{reg+1}")
    A.ds(f"ds_write_b32 v{vWr}, v{t} offset:{row*ROWP}", "kw")

def load_params(A):
    for k in range(4):
        A.vmem(f"buffer_load_ushort v{vN+k}, v{vPo}, s[{sP[k]}:{sP[k]+3}], s{s_go} offen", "kp")

def kgen(A, store_flag=""):
    A.c("======== K-gen")
    names = ["loga", "aim", "cre", "cim", "logdt", "dskip"]
    for i, n in enumerate(names):
        A.e(f"s_load_dwordx2 s[{4+2*i}:{5+2*i}], s[0:1], {KA[n]}")
    A.e(f"s_lshl_b32 s{s_ch}, s{s_m}, 2")
    A.e(f"s_add_u32 s{s_ch}, s{s_ch}, s{s_kq}")
    A.e(f"s_mul_i32 s{s_ch}, s{s_ch}, 9")
    A.e(f"s_mov_b32 s{s_cA}, {fhex(L2E_HI)}")
    A.e(f"s_mov_b32 s{s_cB}, {fhex(L2E_LO)}")
    A.e(f"s_mov_b32 s{s_cC}, {fhex(LN2)}")
    A.e(f"v_and_b32 v{vPo}, 127, v0")
    A.e(f"v_lshlrev_b32 v{vWr}, 2, v{vPo}")
    A.e(f"v_lshlrev_b32 v{vPo}, 1, v{vPo}")
    A.e(f"s_lshl_b32 s{s_go}, s{s_ch}, 8")
    A.e("s_waitcnt lgkmcnt(0)")
    for k in range(4): A.srd(sP[k], 4+2*k, 5+2*k, D_*128*2)
    A.srd(sDT, 12, 13, D_*2); A.srd(sDS, 14, 15, D_*2)
    load_params(A)
    A.e(f"v_min_u32 v{vE}, 8, v1")
    A.e(f"v_add_u32 v{vE}, s{s_ch}, v{vE}")
    A.e(f"v_lshlrev_b32 v{vE}, 1, v{vE}")
    A.vmem(f"buffer_load_ushort v{vDt}, v{vE}, s[{sDT}:{sDT+3}], 0 offen", "dt")
    A.vmem(f"buffer_load_ushort v{vDk}, v{vE}, s[{sDS}:{sDS+3}], 0 offen", "dt")
    A.e(f"s_getpc_b64 s[4:5]")
    A.label("L_kg_pc")
    A.e(f"s_add_u32 s4, s4, L_atab-L_kg_pc")
    A.e(f"s_addc_u32 s5, s5, 0")
    A.e(f"v_lshrrev_b32 v{vE}, 4, v0")
    A.e(f"v_lshlrev_b32 v{vE}, 4, v{vE}")
    A.vmem(f"global_load_dwordx4 v[{vSc}:{vSc+3}], v{vE}, s[4:5]", "tab")
    A.e(f"v_and_b32 v{vE}, 15, v1")
    A.e(f"v_lshrrev_b32 v{vE+1}, 4, v1")
    A.e(f"v_mul_u32_u24 v{vRB}, {ROWP}, v{vE}")
    A.e(f"v_lshl_add_u32 v{vRB}, v{vE+1}, 4, v{vRB}")
    A.e(f"s_mul_i32 s{s_t0}, s{s_w}, {16*ROWP}")
    A.e(f"v_add_u32 v{vRA}, s{s_t0}, v{vRB}")
    A.e(f"v_add_u32 v{vRB}, {48*ROWP}, v{vRB}")
    A.e(f"v_lshlrev_b32 v{vE+2}, 3, v0")
    A.e(f"v_sub_u32 v{vE+2}, 2047, v{vE+2}")
    for e in range(8):
        g = vGa + e
        A.e(f"v_subrev_u32 v{g}, {e}, v{vE+2}")
        A.e(f"v_cvt_f32_u32 v{g}, v{g}")
        A.e(f"v_cvt_pk_bf16_f32 v{g}, v{g}, v{g}")
        A.e(f"v_lshlrev_b32 v{g}, 16, v{g}")
        A.e(f"v_cvt_u32_f32 v{g}, v{g}")
        A.e(f"v_lshrrev_b32 v{vE+3}, 5, v{g}")
        A.e(f"v_add_u32 v{g}, v{g}, v{vE+3}")
        A.e(f"v_lshlrev_b32 v{g}, 2, v{g}")
        A.e(f"v_add_u32 v{g}, {KT + TOG}, v{g}")
    A.wait_vm("tab")
    A.e(f"v_lshlrev_b32 v{vE}, 3, v{vE}")
    for k in range(4):
        g = vSc + k
        A.e(f"v_add_u32 v{g}, v{g}, v{vE}")
        A.e(f"v_lshrrev_b32 v{vE+3}, 5, v{g}")
        A.e(f"v_add_u32 v{g}, v{g}, v{vE+3}")
        A.e(f"v_lshlrev_b32 v{g}, 2, v{g}")
        A.e(f"v_add_u32 v{g}, {KT}, v{g}")
    A.e(f"v_lshlrev_b32 v{vDt}, 16, v{vDt}")
    A.e(f"v_lshlrev_b32 v{vDk}, 16, v{vDk}")
    exp_bf16(A, vDt, vDt, vE, vE+1)
    A.e(f"v_mul_u32_u24 v{vE}, {UT_PITCH}, v0")
    A.e(f"s_mul_i32 s{s_t0}, s{s_ch}, {UT_PITCH}")
    A.e(f"s_add_u32 s{s_t0}, s{s_t0}, {WS_G + 112}")
    for k in range(4): A.e(f"v_mov_b32 v{vE+4+k}, 0")
    A.e("v_cmp_gt_u32 vcc, 9, v0")
    A.e("s_and_saveexec_b64 s[4:5], vcc")
    A.e("s_cbranch_execz L_kg_nz")
    A.e(f"buffer_store_dwordx4 v[{vE+4}:{vE+7}], v{vE}, s[{sWS}:{sWS+3}], s{s_t0} offen{store_flag}")
    A.e(f"s_add_u32 s{s_t1}, s{s_t0}, 4112")
    A.e(f"buffer_store_dwordx4 v[{vE+4}:{vE+7}], v{vE}, s[{sWS}:{sWS+3}], s{s_t1} offen{store_flag}")
    A.label("L_kg_nz")
    A.e("s_mov_b64 exec, s[4:5]")
    A.e(f"v_lshlrev_b32 v{vE+16}, 4, v0")
    A.e(f"v_mov_b32 v51, v{vE+16}")
    A.e(f"s_add_u32 s{s_t2}, s{s_t0}, {16 - UT_PITCH}")
    A.e(f"s_mov_b32 s{s_i}, 0")
    A.e("s_waitcnt vmcnt(0)")
    A.label("L_kg_loop")
    A.vm = ["kp"]*4; A.lg = []
    A.e(f"s_cmp_ge_u32 s{s_i}, 9")
    A.e("s_cbranch_scc1 L_kg_bar")
    for k in range(4): A.e(f"v_lshlrev_b32 v{vP+k}, 16, v{vN+k}")
    A.e(f"s_add_u32 s{s_go}, s{s_go}, 256")
    load_params(A)
    A.e(f"v_readlane_b32 s{s_dt}, v{vDt}, s{s_i}")
    A.e(f"v_readlane_b32 s{s_dsk}, v{vDk}, s{s_i}")
    exp_bf16(A, vP, vP, vE, vE+1)
    A.e(f"v_mul_f32 v{vZ}, s{s_dt}, v{vP}")
    A.e(f"v_mul_f32 v{vZ+1}, s{s_dt}, v{vP+1}")
    A.e(f"v_mul_f32 v{vZ}, {fhex(-LOG2E)}, v{vZ}")
    A.e(f"v_mul_f32 v{vZ+1}, 0.15915494, v{vZ+1}")
    A.e(f"s_cmp_ge_u32 s{s_w}, 2")
    A.e("s_cbranch_scc1 L_kg_p1")
    E8, E128, E1024, B0, B1, T0, T1 = vE, vE+2, vE+4, vE+6, vE+8, vE+10, vE+12
    A.e(f"v_mul_f32 v{B0}, s{s_dt}, v{vP+2}")
    A.e(f"v_mul_f32 v{B0+1}, s{s_dt}, v{vP+3}")
    A.e(f"v_add_f32 v{B0}, v{B0}, v{B0}")
    A.e(f"v_add_f32 v{B0+1}, v{B0+1}, v{B0+1}")
    direct(A, [E8, E128, E1024], [8, 128, 1024], vE+16)
    put(A, 48, B0, neg=True)
    put(A, 32, E1024)
    b, bn = B0, B1
    t, tn = E1024, T0
    for j in range(1, 16):
        lst = [(bn, b, E8)]
        if j <= 8: lst.append((tn, t, E128))
        cmuls(A, lst)
        put(A, 48 + j, bn, neg=True)
        if j <= 8:
            put(A, 32 + j, tn)
            t, tn = tn, (T1 if tn == T0 else T0)
        b, bn = bn, b
    A.e("s_branch L_kg_bar")
    A.label("L_kg_p1")
    A.lg = []
    Er = {r: vE + 2*r for r in range(1, 8)}
    E128 = vE + 16
    Bs = {k: vE + 18 + 2*i for i, k in enumerate([256, 384, 512, 640, 768, 896])}
    U = [vE + 30 + 2*i for i in range(8)]
    direct(A, [Er[1], E128], [1, 128], vE + 46)
    A.e(f"v_mov_b32 v{vC16}, 0x3f80")
    A.ds(f"ds_write_b32 v{vWr}, v{vC16} offset:0", "kw")
    A.e("s_nop 0")
    cmuls(A, [(Er[2], Er[1], Er[1]), (Bs[256], E128, E128)])
    put(A, 1, Er[1]); put(A, 8, E128)
    cmuls(A, [(Er[3], Er[2], Er[1]), (Er[4], Er[2], Er[2]), (Bs[384], Bs[256], E128), (Bs[512], Bs[256], Bs[256])])
    put(A, 2, Er[2]); put(A, 16, Bs[256])
    cmuls(A, [(Er[5], Er[4], Er[1]), (Er[6], Er[4], Er[2]), (Er[7], Er[4], Er[3]), (Bs[640], Bs[512], E128), (Bs[768], Bs[512], Bs[256]), (Bs[896], Bs[512], Bs[384])])
    for r in (3, 4, 5, 6, 7): put(A, r, Er[r])
    put(A, 20, Bs[384])
    for i, k in enumerate([512, 640, 768, 896]): put(A, 24 + 2*i, Bs[k])
    cmuls(A, [(U[r], E128, Er[r]) for r in range(1, 8)])
    for r in range(1, 8): put(A, 8 + r, U[r])
    cmuls(A, [(U[r], Bs[256], Er[2*r]) for r in range(1, 4)] + [(U[4+r], Bs[384], Er[2*r]) for r in range(1, 4)])
    for r in range(1, 4): put(A, 16 + r, U[r]); put(A, 20 + r, U[4+r])
    cmuls(A, [(U[i], Bs[k], Er[4]) for i, k in enumerate([512, 640, 768, 896])])
    for i in range(4): put(A, 25 + 2*i, U[i])
    A.label("L_kg_bar")
    A.e("s_waitcnt vmcnt(0) lgkmcnt(0)"); A.lg = []; A.vm = []
    A.e("s_barrier")
    A.e(f"s_cmp_eq_u32 s{s_i}, 0")
    A.e("s_cbranch_scc1 L_kg_noc")
    for e in range(8): A.e(f"ds_read_b32 v{vE+e}, v{vGa+e}")
    A.e("s_waitcnt lgkmcnt(0)")
    for e in range(4): A.e(f"v_cvt_pk_bf16_f32 v{vE+8+e}, v{vE+2*e}, v{vE+2*e+1}")
    A.e(f"buffer_store_dwordx4 v[{vE+8}:{vE+11}], v51, s[{sWS}:{sWS+3}], s{s_t2} offen{store_flag}")
    A.label("L_kg_noc")
    A.e(f"s_cmp_ge_u32 s{s_i}, 9")
    A.e("s_cbranch_scc1 L_kg_done")
    A.e(f"s_cmp_eq_u32 s{s_w}, 3")
    A.e("s_cbranch_scc1 L_kg_nob")
    for ks in range(8):
        A.e(f"ds_read_b128 v[{vFA+4*ks}:{vFA+4*ks+3}], v{vRA} offset:{ks*64}")
        A.e(f"ds_read_b128 v[{vFB+4*ks}:{vFB+4*ks+3}], v{vRB} offset:{ks*64}")
    for ks in range(8):
        A.e(f"s_waitcnt lgkmcnt({min(15, 14-2*ks)})")
        A.e(f"v_mfma_f32_16x16x32_bf16 v[{vD}:{vD+3}], v[{vFA+4*ks}:{vFA+4*ks+3}], v[{vFB+4*ks}:{vFB+4*ks+3}], {'0' if ks == 0 else f'v[{vD}:{vD+3}]'}")
    A.e(f"s_cmp_eq_u32 s{s_w}, 0")
    A.e(f"s_cselect_b32 s{s_dsk}, s{s_dsk}, 0")
    A.e(f"v_mov_b32 v{vE+12}, 0")
    A.e(f"v_writelane_b32 v{vE+12}, s{s_dsk}, 0")
    A.nop(6)
    A.e(f"v_add_f32 v{vD}, v{vD}, v{vE+12}")
    for k in range(4): A.e(f"ds_write_b32 v{vSc+k}, v{vD+k}")
    A.label("L_kg_nob")
    for r in [vWr, vRA, vRB] + [vSc+k for k in range(4)] + [vGa+e for e in range(8)]:
        A.e(f"v_xor_b32 v{r}, {TOG}, v{r}")
    A.e(f"s_add_u32 s{s_t2}, s{s_t2}, {UT_PITCH}")
    A.e(f"s_add_u32 s{s_i}, s{s_i}, 1")
    A.e("s_branch L_kg_loop")
    A.label("L_kg_done")
    A.e("s_waitcnt vmcnt(0) lgkmcnt(0)"); A.vm = []; A.lg = []
    A.e("s_barrier")

def tables(A):
    A.raw(".p2align 4")
    A.label("L_atab")
    A.raw(".long " + ", ".join(str(x) for x in a_table()))
```

```python
from common import *
vXD, vXR, vWD, vAR, vBI, vL16, vT = 4, 8, 12, 18, 24, 25, 26
ACC, TMP, BIAS, MT, HS = 32, 64, 96, 128, 144
aX, aA = 0, 144

def p1_setup(A):
    A.c("---- P1 setup")
    A.e(f"s_mul_i32 s{s_f0}, s{s_kq}, 2304")
    A.e(f"s_mul_i32 s{s_t0}, s{s_r}, 640")
    A.e(f"s_add_u32 s{s_f0}, s{s_f0}, s{s_t0}")
    A.e(f"s_mul_i32 s{s_wl}, s{s_w}, 6144")
    A.e(f"s_mov_b32 s{s_log2e}, {fhex(LOG2E)}")
    A.e(f"v_lshrrev_b32 v{vT}, 3, v1")
    A.e(f"v_and_b32 v{vT+1}, 7, v1")
    A.e(f"s_lshl_b32 s{s_t0}, s{s_m}, 7")
    A.e(f"s_lshl_b32 s{s_t1}, s{s_w}, 5")
    A.e(f"s_add_u32 s{s_t0}, s{s_t0}, s{s_t1}")
    A.e(f"v_add_u32 v{vT+2}, s{s_t0}, v{vT}")
    A.e(f"v_mul_u32_u24 v{vT+2}, 1152, v{vT+2}")
    A.e(f"v_lshrrev_b32 v{vT+3}, 1, v{vT}")
    A.e(f"v_xor_b32 v{vT+3}, v{vT+3}, v{vT+1}")
    A.e(f"v_xor_b32 v{vT+4}, 4, v{vT+3}")
    for i in range(4):
        src = vT+3 if i % 2 == 0 else vT+4
        A.e(f"v_lshl_add_u32 v{vXD+i}, v{src}, 4, v{vT+2}")
        if i: A.e(f"v_add_u32 v{vXD+i}, {hex(i*(8*1152-1024))}, v{vXD+i}")
    A.e(f"s_mul_i32 s{s_t0}, s{s_w}, 48")
    A.e(f"v_add_u32 v{vT+2}, s{s_t0}, v{vT}")
    A.e(f"v_mul_u32_u24 v{vT+2}, 9216, v{vT+2}")
    A.e(f"v_lshlrev_b32 v{vT+3}, 1, v{vT}")
    A.e(f"v_and_b32 v{vT+3}, 4, v{vT+3}")
    A.e(f"v_xor_b32 v{vT+3}, v{vT+3}, v{vT+1}")
    A.e(f"v_lshl_add_u32 v{vWD}, v{vT+3}, 4, v{vT+2}")
    for i in range(1, 6):
        A.e(f"v_add_u32 v{vWD+i}, {hex(i*8*9216 - (i&3)*1024)}, v{vWD}")
    A.e(f"v_and_b32 v{vT}, 31, v1")
    A.e(f"v_lshrrev_b32 v{vT+1}, 5, v1")
    A.e(f"v_lshrrev_b32 v{vT+2}, 1, v{vT}")
    A.e(f"v_and_b32 v{vT+2}, 7, v{vT+2}")
    A.e(f"v_xor_b32 v{vT+2}, v{vT+2}, v{vT+1}")
    A.e(f"s_mul_i32 s{s_t0}, s{s_w}, 20480")
    A.e(f"s_add_u32 s{s_t0}, s{s_t0}, {XRING}")
    A.e(f"v_lshlrev_b32 v{vT+3}, 7, v{vT}")
    A.e(f"v_add_u32 v{vT+3}, s{s_t0}, v{vT+3}")
    for ks in range(4):
        A.e(f"v_xor_b32 v{vT+4}, {2*ks}, v{vT+2}")
        A.e(f"v_lshl_add_u32 v{vXR+ks}, v{vT+4}, 4, v{vT+3}")
    A.e(f"v_lshlrev_b32 v{vBI}, 4, v{vT+1}")
    A.e(f"v_add_u32 v{vBI}, {MISC}, v{vBI}")
    A.e(f"v_lshlrev_b32 v{vL16}, 4, v1")
    A.e(f"v_lshrrev_b32 v{vT}, 2, v1")
    A.e(f"v_and_b32 v{vT}, 3, v{vT}")
    A.e(f"v_lshl_add_u32 v{vT+2}, v{vT+1}, 3, v{vT}")
    A.e(f"v_lshlrev_b32 v{vT+2}, 7, v{vT+2}")
    A.e(f"v_lshrrev_b32 v{vT}, 1, v{vT}")
    A.e(f"v_lshl_add_u32 v{vT+2}, v{vT}, 6, v{vT+2}")
    A.e(f"v_lshrrev_b32 v{vT}, 4, v1")
    A.e(f"v_and_b32 v{vT}, 1, v{vT}")
    A.e(f"v_lshl_add_u32 v{vT+2}, v{vT}, 5, v{vT+2}")
    A.e(f"v_and_b32 v{vT}, 3, v1")
    A.e(f"v_lshl_add_u32 v{vAR}, v{vT}, 3, v{vT+2}")
    A.e(f"v_xor_b32 v{vAR+1}, 64, v{vAR}")
    for j in (1, 2):
        A.e(f"v_add_u32 v{vAR+2*j}, {j*2*SLOT}, v{vAR}")
        A.e(f"v_add_u32 v{vAR+2*j+1}, {j*2*SLOT}, v{vAR+1}")
    A.e(f"s_lshl_b32 s{s_hb}, s{s_m}, 2")
    A.e(f"s_add_u32 s{s_hb}, s{s_hb}, s{s_kq}")
    A.e(f"s_lshl_b32 s{s_hb}, s{s_hb}, 2")
    A.e(f"s_add_u32 s{s_hb}, s{s_hb}, s{s_w}")
    A.e(f"s_mul_i32 s{s_hb}, s{s_hb}, 73728")
    A.e(f"s_mul_i32 s{s_t0}, s{s_r}, 20480")
    A.e(f"s_add_u32 s{s_hb}, s{s_hb}, s{s_t0}")

def x_dma(A, kl):
    slot = kl % 5
    A.e(f"s_mul_i32 s{s_t0}, s{s_w}, 20480")
    A.e(f"s_add_u32 m0, s{s_t0}, {XRING + slot*4096}")
    A.e(f"s_mov_b32 s{s_so}, {kl*128}")
    for i in range(4):
        A.vmem(f"buffer_load_dwordx4 v{vXD+i}, s[{sX}:{sX+3}], s{s_so} offen offset:{i*1024} lds", f"x{kl}")

def x_read(A, kl):
    slot = kl % 5
    for ks in range(4):
        st = 4*kl + ks
        A.ds(f"ds_read_b128 a[{aX+4*st}:{aX+4*st+3}], v{vXR+ks} offset:{slot*4096}", f"xr{kl}")

def w1_dma_ops(st):
    pair, kb, slot = st // 3, st % 3, st % 6
    tag = f"st{st}"
    o = []
    m0a = Op(f"s_add_u32 m0, s{s_wl}, {slot*SLOT}", kind="salu")
    so = Op(f"s_add_u32 s{s_so}, s{s_f0}, {kb*192*9216 + pair*128}", kind="salu")
    o += [m0a, so]
    for i in range(4):
        o.append(Op(f"buffer_load_dwordx4 v{vWD+i}, s[{sW1}:{sW1+3}], s{s_so} offen offset:{i*1024} lds", kind="vmem", tag=tag, deps=[(m0a, 2)]))
    m0b = Op(f"s_add_u32 m0, s{s_wl}, {slot*SLOT + 4096}", kind="salu")
    o.append(m0b)
    for i in range(4, 6):
        o.append(Op(f"buffer_load_dwordx4 v{vWD+i}, s[{sW1}:{sW1+3}], s{s_so} offen offset:{(i&3)*1024} lds", kind="vmem", tag=tag, deps=[(m0b, 2)]))
    return o

def emit_now(A, ops):
    F = Filler(A);
    for o in ops:
        while not F.ready(o): A.e("s_nop 0")
        F.emit(o)

def mish_ops(pair, done_pos, hs_base, store_flag, keep):
    ops = []; stores = []
    cv = {}
    for grp in range(8):
        t2 = grp // 4
        es = [4*grp + i for i in range(4)]
        tb = MT + (grp % 2)*8
        m = [Op(f"v_mul_f32 v{tb+2*i}, s{s_log2e}, v{TMP+e}", deps=[(done_pos[t2], 13)]) for i, e in enumerate(es)]
        x = [Op(f"v_exp_f32 v{tb+2*i}, v{tb+2*i}", cost=8, trans=True, deps=[(m[i], 1)]) for i in range(4)]
        p = [Op(f"v_fma_f32 v{tb+2*i+1}, v{tb+2*i}, -0.5, -1.0", deps=[(x[i], 2)]) for i in range(4)]
        d = [Op(f"v_fma_f32 v{tb+2*i+1}, v{tb+2*i}, v{tb+2*i+1}, -1.0", deps=[(p[i], 1)]) for i in range(4)]
        r = [Op(f"v_rcp_f32 v{tb+2*i+1}, v{tb+2*i+1}", cost=8, trans=True, deps=[(d[i], 1)]) for i in range(4)]
        y = [Op(f"v_fma_f32 v{TMP+e}, v{TMP+e}, v{tb+2*i+1}, v{TMP+e}", deps=[(r[i], 2)]) for i, e in enumerate(es)]
        hb = hs_base + 2*grp
        c = [Op(f"v_cvt_pk_bf16_f32 v{hb+j}, v{TMP+es[2*j]}, v{TMP+es[2*j+1]}", deps=[(y[2*j], 1), (y[2*j+1], 1)]) for j in range(2)]
        if grp >= 2:
            for i in range(4): m[i].deps.append((cv[grp-2][2][i], 1))
        cv[grp] = (c, m, y)
        ops += m + x + p + d + r + y + c
        if grp % 2 == 1:
            q = grp // 2
            stores.append(Op(f"buffer_store_dwordx4 v[{hs_base+4*q}:{hs_base+4*q+3}], v{vL16}, s[{sWS}:{sWS+3}], s{s_hb} offen offset:{q*1024}{store_flag}",
                             kind="vmem", tag=f"h{pair}", deps=[(c[1], 1), (c[0], 1), (cv[grp-1][0][0], 1), (cv[grp-1][0][1], 1)]))
    stores.append(Op(f"s_add_u32 s{s_hb}, s{s_hb}, 4096", kind="salu", deps=[(stores[-1], 1)]))
    return ops, stores

def ut_export(A, store_flag):
    T = vT
    A.e(f"v_lshrrev_b32 v{T}, 4, v1")
    A.e(f"v_lshrrev_b32 v{T+1}, 2, v1")
    A.e(f"v_and_b32 v{T+1}, 3, v{T+1}")
    A.e(f"v_lshl_add_u32 v{T+1}, v{T}, 3, v{T+1}")
    A.e(f"s_mul_i32 s{s_t0}, s{s_w}, 20480")
    A.e(f"s_add_u32 s{s_t0}, s{s_t0}, s{s_t3}")
    A.e(f"v_and_b32 v{T+2}, 1, v1")
    A.e(f"v_lshlrev_b32 v{T+2}, 3, v{T+2}")
    A.e(f"v_lshl_add_u32 v{T+2}, v{T+1}, 7, v{T+2}")
    A.e(f"v_add_u32 v{T+2}, s{s_t0}, v{T+2}")
    A.e(f"v_lshrrev_b32 v{T+3}, 1, v1")
    A.e(f"v_and_b32 v{T+3}, 1, v{T+3}")
    A.e(f"v_lshrrev_b32 v{T+1}, 1, v{T+1}")
    A.e(f"v_and_b32 v{T+1}, 7, v{T+1}")
    A.e(f"v_xor_b32 v{T+3}, v{T+3}, v{T+1}")
    for cb in range(4):
        for rd in range(2):
            A.e(f"v_xor_b32 v{T+4}, {(2*cb) ^ (2*rd)}, v{T+3}")
            A.e(f"v_lshl_add_u32 v{T+4}, v{T+4}, 4, v{T+2}")
            A.ds(f"ds_read_b64_tr_b16 v[{TMP+4*cb+2*rd}:{TMP+4*cb+2*rd+1}], v{T+4} offset:{rd*512}", "ut")
    A.e(f"v_and_b32 v{T+1}, 15, v1")
    A.e(f"v_mul_u32_u24 v{T+1}, {UT_PITCH}, v{T+1}")
    A.e(f"v_lshl_add_u32 v{T+1}, v{T}, 4, v{T+1}")
    A.e(f"s_mul_i32 s{s_t0}, s{s_line}, {64*UT_PITCH}")
    A.e(f"s_lshl_b32 s{s_t1}, s{s_m}, 8")
    A.e(f"s_add_u32 s{s_t0}, s{s_t0}, s{s_t1}")
    A.e(f"s_lshl_b32 s{s_t1}, s{s_w}, 6")
    A.e(f"s_add_u32 s{s_t0}, s{s_t0}, s{s_t1}")
    A.e(f"s_add_u32 s{s_t0}, s{s_t0}, {WS_UT + 128}")
    A.e("s_waitcnt lgkmcnt(0)"); A.lg = []
    for cb in range(4):
        A.e(f"buffer_store_dwordx4 v[{TMP+4*cb}:{TMP+4*cb+3}], v{T+1}, s[{sWS}:{sWS+3}], s{s_t0} offen{store_flag}")
        A.e(f"s_add_u32 s{s_t0}, s{s_t0}, {16*UT_PITCH}")
    lab = A.newlabel("L_utz")
    A.e(f"s_or_b32 s{s_t1}, s{s_m}, s{s_w}")
    A.e(f"s_cmp_lg_u32 s{s_t1}, 0")
    A.e(f"s_cbranch_scc1 {lab}")
    A.e(f"v_mul_u32_u24 v{T+1}, {UT_PITCH}, v1")
    A.e(f"s_mul_i32 s{s_t0}, s{s_line}, {64*UT_PITCH}")
    A.e(f"s_add_u32 s{s_t0}, s{s_t0}, {WS_UT + 112}")
    for i in range(4): A.e(f"v_mov_b32 v{TMP+16+i}, 0")
    A.e(f"buffer_store_dwordx4 v[{TMP+16}:{TMP+19}], v{T+1}, s[{sWS}:{sWS+3}], s{s_t0} offen{store_flag}")
    A.label(lab)
    A.nop(2)

def ut_site(A, lo, hi, store_flag):
    lab = A.newlabel("L_ut")
    if lo > 0:
        A.e(f"s_cmp_lt_u32 s{s_line}, {lo}")
        A.e(f"s_cbranch_scc1 {lab}")
    A.e(f"s_cmp_ge_u32 s{s_line}, {hi}")
    A.e(f"s_cbranch_scc1 {lab}")
    A.e(f"s_cmp_ge_u32 s{s_line}, 5")
    A.e(f"s_cselect_b32 s{s_t3}, 5, 0")
    A.e(f"s_sub_u32 s{s_t3}, s{s_line}, s{s_t3}")
    A.e(f"s_lshl_b32 s{s_t3}, s{s_t3}, 12")
    A.e(f"s_add_u32 s{s_t3}, s{s_t3}, {XRING}")
    saved = list(A.lg)
    ut_export(A, store_flag)
    A.label(lab)
    A.lg = saved

def bias_read(A, pair):
    for t2 in range(2):
        for g in range(4):
            A.ds(f"ds_read_b128 v[{BIAS+16*t2+4*g}:{BIAS+16*t2+4*g+3}], v{vBI} offset:{(64*pair+32*t2+8*g)*4}", f"bias{pair}")

def a_reads(A, gs):
    st, ks = gs // 12, gs % 12
    slot = st % 6
    buf = aA + 8*(gs % 6)
    for t2 in range(2):
        for rd in range(2):
            A.ds(f"ds_read_b64_tr_b16 a[{buf+4*t2+2*rd}:{buf+4*t2+2*rd+1}], v{vAR+2*(slot//2)+t2} offset:{(slot%2)*SLOT + (16*ks+4*rd)*128}", f"a{gs}")

def p1_prologue_loads(A, npairs):
    nb = npairs*64
    A.e(f"v_lshlrev_b32 v{vT}, 1, v0")
    A.vmem(f"buffer_load_ushort v{MT}, v{vT}, s[{sB1}:{sB1+3}], s{s_f0} offen", "b1")
    A.vmem(f"buffer_load_ushort v{MT+1}, v{vT}, s[{sB1}:{sB1+3}], s{s_f0} offen offset:512", "b1")
    for kl in range(3): x_dma(A, kl)
    emit_now(A, w1_dma_ops(0))
    for kl in range(3, 5): x_dma(A, kl)
    emit_now(A, w1_dma_ops(1))
    emit_now(A, w1_dma_ops(2))

def p1_main(A, npairs, store_flag="", do_ut=True, keep=False):
    nst = 3*npairs
    nsteps = 36*npairs
    A.c("---- bias to LDS (fp32)")
    A.wait_vm("b1")
    A.e(f"v_lshlrev_b32 v{MT}, 16, v{MT}")
    A.e(f"v_lshlrev_b32 v{MT+1}, 16, v{MT+1}")
    A.e(f"v_lshlrev_b32 v{vT}, 2, v0")
    A.e(f"v_add_u32 v{vT}, {MISC}, v{vT}")
    A.ds(f"ds_write_b32 v{vT}, v{MT}", "bw")
    A.ds(f"ds_write_b32 v{vT}, v{MT+1} offset:1024", "bw")
    A.c("---- x lines 0..4")
    A.wait_vm("x2")
    for kl in range(3): x_read(A, kl)
    A.wait_vm("x4")
    for kl in range(3, 5): x_read(A, kl)
    if do_ut: ut_site(A, 0, 4, store_flag)
    A.wait_all(vm=False)
    for kl in range(5, 9): x_dma(A, kl)
    A.wait_vm("st0")
    A.e("s_barrier")
    bias_read(A, 0)
    for gs in range(4): a_reads(A, gs)
    memq = Filler(A); valq = Filler(A); stq = Filler(A)
    done = {}
    dma_next = 3
    for gs in range(nsteps):
        pair, s = gs // 36, gs % 36
        st, ks = gs // 12, gs % 12
        if s == 0 and pair > 0:
            pp = pair - 1
            hs = HS + (16*pp if keep else 16*(pp % 2))
            ops, stores = mish_ops(pp, [lambda p=pp: done.get((p, 0)), lambda p=pp: done.get((p, 1))], hs, store_flag, keep)
            valq.add(ops); stq.add(stores)
        if gs == 12:
            A.c("---- x lines 5..8")
            A.wait_vm("x8")
            for kl in range(5, 9): x_read(A, kl)
            if do_ut: ut_site(A, 4, 9, store_flag)
            A.wait_all(vm=False)
        for t2 in range(2):
            if s == 0 and t2 == 0: A.wait_lg([f"bias{pair}", f"a{gs}"])
            acc = ACC + 16*t2
            cin = (BIAS + 16*t2) if s == 0 else acc
            dst = (TMP + 16*t2) if s == 35 else acc
            if s == 35:
                assert not valq.q, "mish not drained before tmp overwrite"
            buf = aA + 8*(gs % 6) + 4*t2
            A.e(f"v_mfma_f32_32x32x16_bf16 v[{dst}:{dst+15}], a[{buf}:{buf+3}], a[{aX+4*s}:{aX+4*s+3}], v[{cin}:{cin+15}]")
            if s == 35: done[(pair, t2)] = A.n - 1
            rem_gaps = 34 - s
            if t2 == 0:
                used = 0
                if ks == 8 and st + 1 < nst:
                    A.wait_vm(f"st{st+1}"); A.e("s_barrier"); used += 8
                    lim = st + 5 if st >= 1 else 2
                    while dma_next <= lim and dma_next < nst:
                        memq.add(w1_dma_ops(dma_next)); dma_next += 1
                if gs % 2 == 0:
                    n0 = A.n; A.wait_lg([f"a{gs+1}", f"a{gs+2}"]); used += 4*(A.n - n0)
                if gs + 4 < nsteps: a_reads(A, gs + 4)
                if s == 20 and pair + 1 < npairs: bias_read(A, pair + 1); used += 32
                bud = max(0, 8 - used)
                u = stq.fill(bud, window=1)
                u += memq.fill((bud if len(memq.q) < 12 else bud + 8) - u, window=1)
                valq.fill(max(0, bud - u), allow_trans=False)
            else:
                work = valq.total() + memq.total() + stq.total()
                cap = rem_gaps*32
                bud = 24
                if s >= 1:
                    while work - bud > cap and bud < 48: bud += 4
                if s == 34: bud = 10000
                valq.fill(bud)
                if s == 34: valq.drain(); stq.drain()
    A.c("---- last pair mish")
    pp = npairs - 1
    hs = HS + (16*pp if keep else 16*(pp % 2))
    ops, stores = mish_ops(pp, [lambda p=pp: done.get((p, 0)), lambda p=pp: done.get((p, 1))], hs, store_flag, keep)
    return valq, memq, ops, stores
```

```python
from common import *
import p1
from p1 import emit_now, HS, vL16, vT
vW2D, vA2 = 4, 10
ACC2 = 32
PK = 128
aH, aR = 0, 208
s_sl, s_hs, s_pb = 60, 64, 68

def p2_setup(A):
    A.c("---- P2 setup")
    A.e(f"s_mul_i32 s{s_wl}, s{s_w}, 6144")
    A.e(f"s_lshl_b32 s{s_t0}, s{s_m}, 2")
    A.e(f"s_add_u32 s{s_t0}, s{s_t0}, s{s_kq}")
    A.e(f"s_lshl_b32 s{s_t0}, s{s_t0}, 2")
    A.e(f"s_add_u32 s{s_t0}, s{s_t0}, s{s_w}")
    A.e(f"s_mul_i32 s{s_t0}, s{s_t0}, 73728")
    A.e(f"s_mul_i32 s{s_t1}, s{s_kq}, {1152*1152}")
    A.e(f"s_mul_i32 s{s_t2}, s{s_r}, 384")
    A.e(f"s_add_u32 s{s_t1}, s{s_t1}, s{s_t2}")
    for idx in range(4):
        if idx < 3:
            A.e(f"s_add_u32 s{s_t2}, s{s_r}, {idx}")
            A.e(f"s_cmp_ge_u32 s{s_t2}, 3")
            A.e(f"s_cselect_b32 s{s_t3}, 3, 0")
            A.e(f"s_sub_u32 s{s_t2}, s{s_t2}, s{s_t3}")
        else:
            A.e(f"s_mov_b32 s{s_t2}, 3")
        A.e(f"s_mul_i32 s{s_t3}, s{s_t2}, {320*1152}")
        A.e(f"s_add_u32 s{s_sl+idx}, s{s_t1}, s{s_t3}")
        A.e(f"s_mul_i32 s{s_t3}, s{s_t2}, 20480")
        A.e(f"s_add_u32 s{s_hs+idx}, s{s_t0}, s{s_t3}")
    A.e(f"s_mul_i32 s{s_pb}, s{s_m}, 3")
    A.e(f"s_add_u32 s{s_pb}, s{s_pb}, s{s_r}")
    A.e(f"s_lshl_b32 s{s_pb}, s{s_pb}, 2")
    A.e(f"s_add_u32 s{s_pb}, s{s_pb}, s{s_w}")
    A.e(f"s_lshl_b32 s{s_pb}, s{s_pb}, 2")
    A.e(f"s_add_u32 s{s_pb}, s{s_pb}, s{s_kq}")
    A.e(f"s_mul_i32 s{s_pb}, s{s_pb}, 12288")
    A.e(f"s_add_u32 s{s_pb}, s{s_pb}, {WS_P}")
    T = vT
    A.e(f"v_lshlrev_b32 v{vL16}, 4, v1")
    A.e(f"s_mul_i32 s{s_t0}, s{s_w}, {16*1152}")
    for i3 in range(3):
        A.e(f"v_add_u32 v{T}, {64*i3}, v1")
        A.e(f"v_mul_u32_u24 v{T+1}, 2731, v{T}")
        A.e(f"v_lshrrev_b32 v{T+1}, 16, v{T+1}")
        A.e(f"v_mul_u32_u24 v{T+2}, 24, v{T+1}")
        A.e(f"v_sub_u32 v{T+2}, v{T}, v{T+2}")
        A.e(f"v_lshlrev_b32 v{T+3}, 1, v{T+1}")
        A.e(f"v_and_b32 v{T+3}, 4, v{T+3}")
        A.e(f"v_xor_b32 v{T+2}, v{T+2}, v{T+3}")
        A.e(f"v_mul_u32_u24 v{T+1}, 1152, v{T+1}")
        A.e(f"v_lshl_add_u32 v{T+1}, v{T+2}, 4, v{T+1}")
        A.e(f"v_add_u32 v{T+1}, s{s_t0}, v{T+1}")
        for g in range(2):
            i = 3*g + i3
            A.e(f"v_add_u32 v{vW2D+i}, {hex((g*8*1152 - (i&3)*1024) & 0xffffffff)}, v{T+1}")
    A.e(f"v_lshrrev_b32 v{T}, 2, v1")
    A.e(f"v_and_b32 v{T}, 3, v{T}")
    A.e(f"v_lshrrev_b32 v{T+1}, 5, v1")
    A.e(f"v_lshl_add_u32 v{T+1}, v{T+1}, 2, v{T}")
    A.e(f"v_mul_u32_u24 v{T+1}, 384, v{T+1}")
    A.e(f"v_lshrrev_b32 v{T+2}, 4, v1")
    A.e(f"v_and_b32 v{T+2}, 1, v{T+2}")
    A.e(f"v_lshl_add_u32 v{T+1}, v{T+2}, 5, v{T+1}")
    A.e(f"v_and_b32 v{T+2}, 3, v1")
    A.e(f"v_lshl_add_u32 v{T+1}, v{T+2}, 3, v{T+1}")
    A.e(f"v_lshrrev_b32 v{T}, 1, v{T}")
    A.e(f"v_lshlrev_b32 v{T}, 6, v{T}")
    A.e(f"v_add_u32 v{vA2}, v{T+1}, v{T}")
    A.e(f"v_sub_u32 v{vA2+1}, v{T+1}, v{T}")
    for j in (1, 2):
        A.e(f"v_add_u32 v{vA2+2*j}, {j*2*SLOT}, v{vA2}")
        A.e(f"v_add_u32 v{vA2+2*j+1}, {j*2*SLOT}, v{vA2+1}")

def hreg(step):
    if step < 20: return f"v[{HS+4*step}:{HS+4*step+3}]"
    k = step - 20
    return f"a[{aH+4*k}:{aH+4*k+3}]"

def st_slice(st): return (st // 5, st % 5) if st < 15 else (3, st - 15)

def w2_dma_ops(st, slot0=0):
    idx, k = st_slice(st)
    slot = (st + slot0) % 6
    tag = f"w2_{st}"
    m0a = Op(f"s_add_u32 m0, s{s_wl}, {slot*SLOT}", kind="salu")
    so = Op(f"s_add_u32 s{s_so}, s{s_sl+idx}, {k*64*1152}", kind="salu")
    o = [m0a, so]
    for i in range(4):
        o.append(Op(f"buffer_load_dwordx4 v{vW2D+i}, s[{sW2}:{sW2+3}], s{s_so} offen offset:{i*1024} lds", kind="vmem", tag=tag, deps=[(m0a, 2)]))
    m0b = Op(f"s_add_u32 m0, s{s_wl}, {slot*SLOT + 4096}", kind="salu")
    o.append(m0b)
    for i in range(4, 6):
        o.append(Op(f"buffer_load_dwordx4 v{vW2D+i}, s[{sW2}:{sW2+3}], s{s_so} offen offset:{(i&3)*1024} lds", kind="vmem", tag=tag, deps=[(m0b, 2)]))
    return o
def h_load_ops(st, flag=""):
    idx, k = st_slice(st)
    so = Op(f"s_add_u32 s{s_t1}, s{s_hs+idx}, {k*4096}", kind="salu")
    o = [so]
    for j in range(4):
        o.append(Op(f"buffer_load_dwordx4 {hreg(4*st+j)}, v{vL16}, s[{sWS}:{sWS+3}], s{s_t1} offen offset:{j*1024}{flag}", kind="vmem", tag=f"w2_{st}"))
    return o

def a2_read(A, j, slot0=0):
    step, t = j // 6, j % 6
    st, ks = step // 4, step % 4
    slot = (st + slot0) % 6
    buf = aR + 4*(j % 12)
    for rd in range(2):
        A.ds(f"ds_read_b64_tr_b16 a[{buf+2*rd}:{buf+2*rd+1}], v{vA2+2*(slot//2)+(t&1)} offset:{(slot%2)*SLOT + (16*ks+8*rd)*384 + t*64}", f"f{j}")

def p2_main(A, own_in_regs, slot0=0, first_dma=5, memq=None, hflag=""):
    LEAD = 7
    N = 432
    if memq is None: memq = Filler(A)
    A.wait_vm("w2_0"); A.e("s_barrier")
    for j in range(LEAD): a2_read(A, j, slot0)
    dma_next = first_dma
    A.wait_lg("f0")
    for j in range(N):
        step, t = j // 6, j % 6
        st = step // 4
        acc = ACC2 + 16*t
        buf = aR + 4*(j % 12)
        cin = "0" if step == 0 else f"v[{acc}:{acc+15}]"
        A.e(f"v_mfma_f32_32x32x16_bf16 v[{acc}:{acc+15}], a[{buf}:{buf+3}], {hreg(step)}, {cin}")
        used = 0
        if (j + LEAD) % 24 == 0 and st + 1 < 18:
            A.wait_vm(f"w2_{st+1}"); A.e("s_barrier"); used += 8
            while dma_next <= st + 5 and dma_next < 18:
                memq.add(w2_dma_ops(dma_next, slot0))
                if not (own_in_regs and dma_next < 5): memq.add(h_load_ops(dma_next, hflag))
                dma_next += 1
        if j % 3 == 0:
            n0 = A.n; A.wait_lg([f"f{j+1}", f"f{j+2}", f"f{j+3}"]); used += 4*(A.n - n0)
        if j + LEAD < N: a2_read(A, j + LEAD, slot0)
        memq.fill(max(0, 16 - used), window=1)
    memq.drain()

def p2_export(A, flag=""):
    A.c("---- partial export")
    A.nop(12)
    for t in range(6):
        for kk in range(2):
            R = PK + 4*((2*t + kk) % 4)
            a = ACC2 + 16*t + 8*kk
            for d in range(4):
                A.e(f"v_cvt_pk_bf16_f32 v{R+d}, v{a+2*d}, v{a+2*d+1}")
            A.nop(2)
            A.e(f"v_permlane32_swap_b32 v{R}, v{R+2}")
            A.e(f"v_permlane32_swap_b32 v{R+1}, v{R+3}")
            p = 2*t + kk
            if p % 4 == 0 and p: A.e(f"s_add_u32 s{s_pb}, s{s_pb}, 4096")
            A.vmem(f"buffer_store_dwordx4 v[{R}:{R+3}], v{vL16}, s[{sWS}:{sWS+3}], s{s_pb} offen offset:{(p%4)*1024}{flag}", "pst")
```

```python
import sys
from common import *
import p1
from p1 import *

def load_ptrs(A, names, base):
    regs = {}
    for i, n in enumerate(names):
        A.e(f"s_load_dwordx2 s[{base+2*i}:{base+2*i+1}], s[0:1], {KA[n]}")
        regs[n] = base + 2*i
    return regs

def k1(only_gemm=False):
    A = Asm()
    A.raw(kernel_head("k1_kernel"))
    A.e("s_cmp_ge_u32 s2, 256")
    A.e("s_cbranch_scc1 L_k1_end")
    P = load_ptrs(A, ["u", "w1", "b1", "ws"], 4)
    decode_ids(A)
    A.e("s_waitcnt lgkmcnt(0)")
    A.srd(sX, P["u"], P["u"]+1, L_*D_*2)
    A.srd(sW1, P["w1"], P["w1"]+1, D_*F_*2)
    A.srd(sB1, P["b1"], P["b1"]+1, F_*2)
    A.srd(sWS, P["ws"], P["ws"]+1, WS_BYTES)
    p1_setup(A)
    A.e(f"s_mul_i32 s{s_line}, s{s_kq}, 3")
    A.e(f"s_add_u32 s{s_line}, s{s_line}, s{s_r}")
    A.e(f"s_cmp_eq_u32 s{s_r}, 3")
    A.e("s_cbranch_scc1 L_k1_conv")
    for role, npairs in (("big", 5), ("conv", 3)):
        A.vm = []; A.lg = []
        if role == "conv":
            A.label("L_k1_conv")
            if not only_gemm:
                import kgen
                kgen.kgen(A)
        p1_prologue_loads(A, npairs)
        valq, memq, ops, stores = p1_main(A, npairs, do_ut=(role == "big"))
        memq.drain()
        valq.add(ops + stores); valq.drain()
        A.wait_all()
        A.e("s_endpgm")
    A.label("L_k1_end")
    A.e("s_endpgm")
    if not only_gemm: kgen.tables(A)
    return A.text(), KD.format(name="k1_kernel", vgpr=512, accum=256)

def k2():
    import p2, conv
    A = Asm()
    A.raw(kernel_head("k2_kernel"))
    A.e("s_cmp_ge_u32 s2, 256")
    A.e("s_cbranch_scc1 L_k2_end")
    P = load_ptrs(A, ["w2", "u", "b1", "ws"], 4)
    decode_ids(A)
    A.e("s_waitcnt lgkmcnt(0)")
    A.srd(sW2, P["w2"], P["w2"]+1, D_*F_*2)
    A.srd(sWS, P["ws"], P["ws"]+1, WS_BYTES)
    A.e(f"s_cmp_eq_u32 s{s_r}, 3")
    A.e("s_cbranch_scc1 L_k2_conv")
    p2.p2_setup(A)
    for st in range(5):
        emit_now(A, p2.w2_dma_ops(st)); emit_now(A, p2.h_load_ops(st))
    p2.p2_main(A, own_in_regs=False)
    p2.p2_export(A)
    A.wait_all()
    A.e("s_endpgm")
    A.label("L_k2_conv")
    A.vm = []; A.lg = []
    conv.conv_all(A)
    A.wait_all()
    A.label("L_k2_end")
    A.e("s_endpgm")
    return A.text(), KD.format(name="k2_kernel", vgpr=512, accum=256)

def k3():
    A = Asm()
    A.raw(kernel_head("k3_kernel"))
    A.e("s_cmp_ge_u32 s2, 192")
    A.e("s_cbranch_scc1 L_k3_end")
    P = load_ptrs(A, ["u", "gw", "out", "ws"], 4)
    A.e("s_and_b32 s44, s2, 3")
    A.e("s_lshr_b32 s45, s2, 2")
    A.e("s_mul_i32 s46, s45, 21846")
    A.e("s_lshr_b32 s46, s46, 16")
    A.e("s_mul_i32 s47, s46, 3")
    A.e("s_sub_u32 s47, s45, s47")
    A.e("s_lshl_b32 s48, s46, 7")
    A.e("s_lshl_b32 s49, s44, 5")
    A.e("s_add_u32 s48, s48, s49")
    A.e("v_lshrrev_b32 v2, 6, v0")
    A.e("v_and_b32 v1, 63, v0")
    A.e("v_readfirstlane_b32 s50, v2")
    A.e("s_waitcnt lgkmcnt(0)")
    A.srd(sX, P["u"], P["u"]+1, L_*D_*2)
    A.srd(sW1, P["gw"], P["gw"]+1, D_*2)
    A.srd(sB1, P["out"], P["out"]+1, L_*D_*2)
    A.srd(sWS, P["ws"], P["ws"]+1, WS_BYTES)
    A.e("v_lshrrev_b32 v3, 3, v0")
    A.e("v_and_b32 v4, 7, v0")
    A.e("v_lshlrev_b32 v4, 4, v4")
    A.e("v_mul_u32_u24 v5, 1152, v3")
    A.e("v_add_u32 v5, v5, v4")
    A.e("s_mul_i32 s51, s48, 1152")
    for k in range(9):
        A.vmem(f"buffer_load_dwordx4 v[{32+4*k}:{35+4*k}], v5, s[{sX}:{sX+3}], s51 offen offset:{128*k}", "gx")
        A.vmem(f"buffer_load_dwordx4 v[{68+4*k}:{71+4*k}], v4, s[{sW1}:{sW1+3}], 0 offen offset:{128*k}", "gx")
    A.e("v_lshlrev_b32 v6, 4, v1")
    A.e("s_mul_i32 s52, s2, 49152")
    A.e("s_mul_i32 s53, s50, 3072")
    A.e("s_add_u32 s52, s52, s53")
    A.e(f"s_add_u32 s52, s52, {WS_P}")
    for pr in range(4):
        for i in range(3):
            A.vmem(f"buffer_load_dwordx4 v[{104+12*pr+4*i}:{107+12*pr+4*i}], v6, s[{sWS}:{sWS+3}], s52 offen offset:{1024*i}", "pp")
        A.e("s_add_u32 s52, s52, 12288")
    A.e("v_and_b32 v7, 31, v1")
    A.e("v_lshrrev_b32 v8, 5, v1")
    A.e("v_lshlrev_b32 v9, 15, v8")
    A.e("v_lshl_add_u32 v9, v7, 1, v9")
    A.e("s_mul_i32 s53, s47, 192")
    A.e("s_mul_i32 s54, s50, 48")
    A.e("s_add_u32 s53, s53, s54")
    A.e("s_lshl_b32 s54, s53, 12")
    A.e("s_lshl_b32 s55, s48, 1")
    A.e("s_add_u32 s54, s54, s55")
    A.e(f"s_add_u32 s54, s54, {WS_Y}")
    for i in range(3):
        for e in range(8):
            A.vmem(f"buffer_load_ushort v{160+8*i+e}, v9, s[{sWS}:{sWS+3}], s54 offen", "ya")
            A.e(f"s_add_u32 s54, s54, {4096 if e < 7 else 9*4096}")
    A.wait_vm("gx")
    A.e("v_mov_b32 v10, 0")
    for k in range(36): A.e(f"v_dot2c_f32_bf16 v10, v{32+k}, v{68+k}")
    A.nop(3)
    A.e("v_add_f32_dpp v10, v10, v10 quad_perm:[1,0,3,2] row_mask:0xf bank_mask:0xf"); A.nop(2)
    A.e("v_add_f32_dpp v10, v10, v10 quad_perm:[2,3,0,1] row_mask:0xf bank_mask:0xf"); A.nop(2)
    A.e("v_add_f32_dpp v10, v10, v10 row_half_mirror row_mask:0xf bank_mask:0xf")
    A.e(f"v_mul_f32 v10, {fhex(-LOG2E)}, v10")
    A.e("v_exp_f32 v10, v10"); A.nop(1)
    A.e("v_add_f32 v10, 1.0, v10")
    A.e("v_rcp_f32 v10, v10")
    A.e("v_lshlrev_b32 v11, 2, v3")
    A.e("ds_write_b32 v11, v10")
    A.e("s_waitcnt lgkmcnt(0)")
    A.e("s_barrier")
    A.e("v_lshlrev_b32 v11, 2, v7")
    A.e("ds_read_b32 v10, v11")
    A.e("v_mul_u32_u24 v12, 1152, v7")
    A.e("v_lshl_add_u32 v12, v8, 4, v12")
    A.e("s_lshl_b32 s53, s53, 1")
    A.e("s_add_u32 s53, s53, s51")
    A.wait_all()
    for i in range(3):
        for d in range(4):
            for hf in range(2):
                acc = 32 + 2*d + hf
                for pr in range(4):
                    src = 104 + 12*pr + 4*i + d
                    t = acc if pr == 0 else 48
                    if hf == 0: A.e(f"v_lshlrev_b32 v{t}, 16, v{src}")
                    else: A.e(f"v_and_b32 v{t}, 0xffff0000, v{src}")
                    if pr: A.e(f"v_add_f32 v{acc}, v{acc}, v48")
                y = 160 + 8*i + 2*d + hf
                A.e(f"v_lshlrev_b32 v{y}, 16, v{y}")
                A.e(f"v_sub_f32 v{y}, v{y}, v{acc}")
                A.e(f"v_fma_f32 v{acc}, v10, v{y}, v{acc}")
            A.e(f"v_cvt_pk_bf16_f32 v{52+4*i+d}, v{32+2*d}, v{33+2*d}")
        A.vmem(f"buffer_store_dwordx4 v[{52+4*i}:{55+4*i}], v12, s[{sB1}:{sB1+3}], s53 offen offset:{32*i}", "o")
    A.wait_all()
    A.label("L_k3_end")
    A.e("s_endpgm")
    return A.text(), KD.format(name="k3_kernel", vgpr=256, accum=256)

HDR = open("cdna_kernels/" + NAME + ".s.ref").read().split("; Override launch")[0]
def build(kernels, launches):
    s = HDR
    for (k, g, lds) in launches:
        s += f"; @launch kernel={k} grid=({g},1,1) block=(256,1,1) lds={lds}\n"
    s += '.amdgcn_target "amdgcn-amd-amdhsa--gfx950"\n.text\n'
    for t, kd in kernels: s += t
    s += '.section .rodata,"a"\n'
    for t, kd in kernels: s += ".p2align 6\n" + kd
    return s
if __name__ == "__main__":
    which = sys.argv[1]
    if which == "k1":
        open("k1.s", "w").write(build([k1(False)], [("k1_kernel", 256, LDS_BYTES)]))
    if which == "v1":
        open("v1.s", "w").write(build([k1(False), k2(), k3()], [("k1_kernel", 256, LDS_BYTES), ("k2_kernel", 256, LDS_BYTES), ("k3_kernel", 192, 1024)]))
    if which == "k1g":
        open("k1g.s", "w").write(build([k1(True)], [("k1_kernel", 256, LDS_BYTES)]))
```

```python
import struct
def f2u(x): return struct.unpack('<I', struct.pack('<f', x))[0]
def fhex(x): return hex(f2u(x))

class Op:
    __slots__ = ("txt", "cost", "trans", "deps", "kind", "pos", "tag")
    def __init__(self, txt, cost=4, trans=False, deps=(), kind="valu", tag=None):
        self.txt, self.cost, self.trans, self.deps, self.kind, self.tag = txt, cost, trans, list(deps), kind, tag
        self.pos = None

class Asm:
    def __init__(self):
        self.L = []
        self.n = 0
        self.vm = []
        self.lg = []
        self.lbl = 0
    def raw(self, s): self.L.append(s)
    def c(self, s): self.L.append("; " + s)
    def e(self, s):
        self.L.append("    " + s.replace(" lds sc1", " sc1 lds")); self.n += 1
    def es(self, lst):
        for s in lst: self.e(s)
    def label(self, name): self.L.append(name + ":")
    def newlabel(self, p="L"):
        self.lbl += 1; return f"{p}_{self.lbl}"
    def vmem(self, s, tag):
        self.e(s); self.vm.append(tag)
    def ds(self, s, tag):
        self.e(s); self.lg.append(tag)
    def _cnt(self, q, tags):
        if isinstance(tags, str): tags = [tags]
        last = -1
        for i, t in enumerate(q):
            if t in tags: last = i
        return last
    def wait_vm(self, tags, force=False):
        last = self._cnt(self.vm, tags)
        if last < 0: return
        n = len(self.vm) - 1 - last
        n = min(n, 63)
        self.e(f"s_waitcnt vmcnt({n})")
        self.vm = self.vm[len(self.vm) - n:] if n else []
    def wait_lg(self, tags):
        last = self._cnt(self.lg, tags)
        if last < 0: return
        n = len(self.lg) - 1 - last
        n = min(n, 15)
        self.e(f"s_waitcnt lgkmcnt({n})")
        self.lg = self.lg[len(self.lg) - n:] if n else []
    def wait_all(self, vm=True, lg=True):
        s = []
        if vm: s.append("vmcnt(0)"); self.vm = []
        if lg: s.append("lgkmcnt(0)"); self.lg = []
        self.e("s_waitcnt " + " ".join(s))
    def nop(self, k):
        while k > 0:
            m = min(k, 16); self.e(f"s_nop {m-1}"); self.n += m - 1; k -= m
    def srd(self, d, lo, hi, nbytes):
        self.e(f"s_mov_b32 s{d}, s{lo}")
        self.e(f"s_and_b32 s{d+1}, s{hi}, 0xffff")
        self.e(f"s_mov_b32 s{d+2}, {hex(nbytes)}")
        self.e(f"s_mov_b32 s{d+3}, 0x00020000")
    def text(self): return "\n".join(self.L) + "\n"

class Filler:
    def __init__(self, A):
        self.A = A; self.q = []
    def add(self, ops): self.q += ops
    def total(self): return sum(o.cost for o in self.q)
    def ready(self, o):
        for (d, dist) in o.deps:
            if isinstance(d, Op):
                if d.pos is None or self.A.n - d.pos < dist: return False
            else:
                p = d()
                if p is None or self.A.n - p < dist: return False
        return True
    def emit(self, o):
        o.pos = self.A.n
        if o.kind == "vmem": self.A.vmem(o.txt, o.tag)
        elif o.kind == "ds": self.A.ds(o.txt, o.tag)
        else: self.A.e(o.txt)
    def fill(self, budget, allow_trans=True, window=10):
        used = 0
        while self.q:
            pick = None
            for i, o in enumerate(self.q[:window]):
                if o.trans and not allow_trans: continue
                if used + o.cost > budget: continue
                if not self.ready(o): continue
                pick = i; break
            if pick is None: break
            o = self.q.pop(pick); self.emit(o); used += o.cost
        return used
    def drain(self):
        while self.q:
            for i, o in enumerate(self.q[:16]):
                if self.ready(o):
                    self.q.pop(i); self.emit(o); break
            else:
                self.A.e("s_nop 0")

KD = """.amdhsa_kernel {name}
  .amdhsa_next_free_vgpr {vgpr}
  .amdhsa_next_free_sgpr 102
  .amdhsa_accum_offset {accum}
  .amdhsa_group_segment_fixed_size 0
  .amdhsa_kernarg_size 120
  .amdhsa_user_sgpr_count 2
  .amdhsa_user_sgpr_kernarg_segment_ptr 1
  .amdhsa_system_sgpr_workgroup_id_x 1
.end_amdhsa_kernel
"""
def kernel_head(name):
    return f".globl {name}\n.p2align 8\n.type {name},@function\n{name}:\n"

def fill_odd(F, budget, window=40):
    used = 0
    A = F.A
    while True:
        pick = None
        cands = [(i, o) for i, o in enumerate(F.q[:window]) if F.ready(o) and used + o.cost <= budget]
        if not cands: break
        tr = [c for c in cands if c[1].trans]
        pl = [c for c in cands if not c[1].trans]
        ntr_fit = min(len(tr), (budget - used)//8, 2)
        if pl and used + pl[0][1].cost + 8*ntr_fit <= budget: pick = pl[0][0]
        elif tr: pick = tr[0][0]
        elif pl: pick = pl[0][0]
        o = F.q.pop(pick); F.emit(o); used += o.cost
    return used
```

```python
import os
from asmlib import *
NAME = "gated_mix__ssm_conv_s4d__dense_activation_mish__prompt"
L_, D_, F_ = 2048, 576, 4608
KA = dict(u=0, loga=8, aim=16, cre=24, cim=32, logdt=40, dskip=48, bx=56, w1=64, b1=72, w2=80, gw=88, out=96, dbg=104, ws=112)
WS_H    = 0x0000000
WS_UT   = 0x1200000
UT_PITCH = 4224
WS_G    = 0x1480000
WS_Y    = 0x1700000
WS_P    = 0x1A00000
WS_F    = 0x2400000
WS_TS   = 0x2600000
WS_BYTES = 0x10000000
SLOT = 24576
XRING = 3*SLOT
MISC = 3*SLOT + 81920
M_BIAS, M_GW, M_FL = MISC, MISC + 2048, MISC + 4096
WS_GT = 0x2410000
LDS_BYTES = 163840
LOG2E = 1.4426950408889634
EXP = set(os.environ.get('EXP', '').split(','))
STAMPS = os.environ.get('STAMPS', '')
SC = " sc1"

sX, sW1, sWS, sW2, sT0, sT1, sDBG = 4, 8, 12, 16, 20, 24, 28
p_w1, p_ws = 32, 34
s_w, s_m, s_kq, s_r, s_m7, s_rho, s_fi = 36, 37, 38, 39, 40, 41, 42
s_t0, s_t1, s_t2, s_t3, s_so, s_hb, s_log2e, s_pc, s_wl, s_upos, s_line = 43, 44, 45, 46, 47, 48, 49, 50, 51, 52, 53
s_ret = 54
s_rw = 56
s_loc = 66
vXD, vXR, vWD, vAR, vBI, vL16, vW2D, vA2, vGW, vS = 2, 4, 8, 10, 16, 17, 18, 24, 30, 31
ACC, TMP, BIAS, MT, HS, ACC3 = 32, 64, 96, 128, 144, 224

def ids(b):
    xcd = b & 7; j = b >> 3
    return dict(kq=xcd >> 1, m=(xcd & 1)*8 + (j >> 2), r=j & 3)
def stamp(A, i):
    if STAMPS: A.e(f"{'s_memtime' if STAMPS == 'c' else 's_memrealtime'} s[{86+2*i}:{87+2*i}]")
def stamp_flush(A, n=8):
    if not STAMPS: return
    A.e("s_waitcnt lgkmcnt(0)")
    A.e(f"s_lshl_b32 s3, s2, 8")
    A.e(f"s_lshl_b32 s{s_t0}, s{s_w}, 6")
    A.e(f"s_add_u32 s3, s3, s{s_t0}")
    A.e(f"s_add_u32 s3, s3, {WS_TS}")
    A.e("v_mov_b32 v2, 0")
    for i in range(n):
        A.e(f"v_mov_b32 v3, s{86+2*i}")
        A.e(f"buffer_store_dword v3, v2, s[{sWS}:{sWS+3}], s3 offen offset:{4*i}")
    A.e("s_waitcnt vmcnt(0)")
def emit_now(A, ops):
    F = Filler(A)
    for o in ops:
        while not F.ready(o): A.e("s_nop 0")
        F.emit(o)
def mod_small(A, dst, src, n):
    A.e(f"s_cmp_ge_u32 s{src}, {n}")
    A.e(f"s_cselect_b32 s{s_t3}, {n}, 0")
    A.e(f"s_sub_u32 s{dst}, s{src}, s{s_t3}")
M_G = MISC + 7168
NP = 6
FDONE = 7
def flag_store_ops(val, after=None):
    mv = Op(f"v_mov_b32 v{vS}, {val}", kind="valu")
    st = Op(f"buffer_store_dword v{vS}, off, s[{sWS}:{sWS+3}], s{s_fi}{SC}", kind="vmem", tag="flag", deps=[(mv, 1)])
    return [mv, st]

ROT = 'rot' in EXP
```

```python
from common import *
vT = 20
SU, SR = 4640, 4480
WREG = 4*SU + 2*2*SR
s_ch, s_rd, s_lb, s_yo, s_q = 60, 61, 62, 63, 64
sU, sG = 68, 72
s_wsl, s_wsh = p_ws, p_ws + 1
vUD, vRD, vB, vA, vYW, vYR, vBl = 4, 5, 6, 7, 8, 9, 10
CACC, CA, CBm8, CP = 32, 64, 96, 100

def breg(rho):
    if rho == -8: return f"v[{CBm8}:{CBm8+3}]"
    k = rho + 7
    return f"a[{4*k}:{4*k+3}]"

def set_srds(A):
    A.e(f"s_mul_i32 s{s_t0}, s{s_ch}, {UT_PITCH}")
    for srd, off, n in ((sU, WS_UT + 112 - 384, 4496), (sG, WS_G + 112, 4128)):
        A.e(f"s_add_u32 s{s_t1}, s{s_t0}, {off}")
        A.e(f"s_add_u32 s{srd}, s{s_wsl}, s{s_t1}")
        A.e(f"s_addc_u32 s{srd+1}, s{s_wsh}, 0")
        A.e(f"s_and_b32 s{srd+1}, s{srd+1}, 0xffff")
        A.e(f"s_mov_b32 s{srd+2}, {n}")
        A.e(f"s_mov_b32 s{srd+3}, 0x00020000")

def u_dma_ops(flag=""):
    o = []
    for a0 in range(4):
        m = Op(f"s_add_u32 m0, s{s_lb}, {a0*SU}", kind="salu")
        so = Op(f"s_mov_b32 s{s_so}, {4*a0}", kind="salu")
        o += [m, so]
        for i in range(4):
            o.append(Op(f"buffer_load_dwordx4 v{vUD if i == 0 else vL16}, s[{sU}:{sU+3}], s{s_so} offen offset:{i*1024} lds{flag}", kind="vmem", tag="u", deps=[(m, 2)]))
    o.append(Op("s_mov_b32 exec_hi, 0", kind="salu"))
    for a0 in range(4):
        m = Op(f"s_add_u32 m0, s{s_lb}, {a0*SU + 4096}", kind="salu")
        so = Op(f"s_mov_b32 s{s_so}, {4*a0 + 4096}", kind="salu")
        o += [m, so, Op(f"buffer_load_dwordx4 v{vL16}, s[{sU}:{sU+3}], s{s_so} offen lds{flag}", kind="vmem", tag="u", deps=[(m, 2)])]
    o.append(Op("s_mov_b64 exec, -1", kind="salu"))
    return o
def r_dma_ops(flag=""):
    o = []
    for b0 in range(2):
        m = Op(f"s_add_u32 m0, s{s_rd}, {b0*SR}", kind="salu")
        so = Op(f"s_mov_b32 s{s_so}, {14 - 2*b0}", kind="salu")
        o += [m, so]
        for i in range(4):
            o.append(Op(f"buffer_load_dwordx4 v{vL16}, s[{sG}:{sG+3}], s{s_so} offen offset:{i*1024} lds{flag}", kind="vmem", tag="r", deps=[(m, 2)]))
    o.append(Op("s_mov_b64 exec, 0xffff", kind="salu"))
    for b0 in range(2):
        m = Op(f"s_add_u32 m0, s{s_rd}, {b0*SR + 4096}", kind="salu")
        so = Op(f"s_mov_b32 s{s_so}, {14 - 2*b0 + 4096}", kind="salu")
        o += [m, so, Op(f"buffer_load_dwordx4 v{vL16}, s[{sG}:{sG+3}], s{s_so} offen lds{flag}", kind="vmem", tag="r", deps=[(m, 2)])]
    o.append(Op("s_mov_b64 exec, -1", kind="salu"))
    return o

def conv_setup(A):
    A.c("---- conv setup")
    T = vT
    A.e(f"s_lshl_b32 s{s_ch}, s{s_m}, 2")
    A.e(f"s_add_u32 s{s_ch}, s{s_ch}, s{s_kq}")
    A.e(f"s_mul_i32 s{s_ch}, s{s_ch}, 9")
    A.e(f"s_add_u32 s{s_ch}, s{s_ch}, s{s_w}")
    A.e(f"s_mul_i32 s{s_lb}, s{s_w}, {WREG}")
    A.e(f"s_add_u32 s{s_rd}, s{s_lb}, {4*SU}")
    A.e(f"v_lshlrev_b32 v{vL16}, 4, v1")
    A.e(f"v_bfrev_b32 v{vUD}, 1")
    A.e("v_cmp_le_u32 vcc, 24, v1")
    A.nop(2)
    A.e(f"v_cndmask_b32 v{vUD}, v{vUD}, v{vL16}, vcc")
    A.e(f"v_lshrrev_b32 v{T}, 4, v1")
    A.e(f"v_and_b32 v{T+1}, 3, v1")
    A.e(f"v_lshrrev_b32 v{T+2}, 2, v1")
    A.e(f"v_and_b32 v{T+2}, 3, v{T+2}")
    A.e(f"v_mul_u32_u24 v{vB}, {SU}, v{T+1}")
    A.e(f"v_lshl_add_u32 v{vB}, v{T+2}, 7, v{vB}")
    A.e(f"v_lshl_add_u32 v{vB}, v{T}, 4, v{vB}")
    A.e(f"v_add_u32 v{vB}, s{s_lb}, v{vB}")
    A.e(f"v_lshlrev_b32 v{vYW}, 5, v{T}")
    A.e(f"v_lshl_add_u32 v{vYW}, v{T+1}, 2, v{vYW}")
    A.e(f"v_lshl_add_u32 v{vYW}, v{T+2}, 7, v{vYW}")
    A.e(f"v_add_u32 v{vYW}, s{s_rd}, v{vYW}")
    A.e(f"v_add_u32 v{vYR}, s{s_rd}, v{vL16}")
    A.e(f"v_and_b32 v{T+1}, 1, v1")
    A.e(f"v_lshrrev_b32 v{T+2}, 1, v1")
    A.e(f"v_and_b32 v{T+2}, 7, v{T+2}")
    A.e(f"v_mul_u32_u24 v{vA}, {SR}, v{T+1}")
    A.e(f"v_sub_u32 v{T}, v{T}, v{T+2}")
    A.e(f"v_lshl_add_u32 v{vA}, v{T}, 4, v{vA}")
    A.e(f"s_add_u32 s{s_t0}, s{s_rd}, 112")
    A.e(f"v_add_u32 v{vA}, s{s_t0}, v{vA}")

def y_out(A, tiles, nacc, flag=""):
    pass

def conv_round(A, ldflag="", stflag=""):
    memq = Filler(A)
    def rdA(q): A.ds(f"ds_read_b128 v[{CA+4*(q%8)}:{CA+4*(q%8)+3}], v{vA} offset:{4096-64*q}", f"A{q}")
    def rdB(rho): A.ds(f"ds_read_b128 {breg(rho)}, v{vB} offset:{64*(rho+8)}", f"B{rho}")
    seq = [(q, j) for q in range(65) for j in range(max(0, -((8-q)//8)), 8)]
    assert len(seq) == 296
    reads = []
    seenB = set();
    for (q, j) in seq:
        if ("A", q) not in seenB: reads.append(("A", q)); seenB.add(("A", q))
        if ("B", 8*j-q) not in seenB: reads.append(("B", 8*j-q)); seenB.add(("B", 8*j-q))
    first_use = {}
    for i, (q, j) in enumerate(seq):
        first_use.setdefault(("A", q), i); first_use.setdefault(("B", 8*j-q), i)
    last_useA = {}
    for i, (q, j) in enumerate(seq): last_useA[q] = i
    ri = 0
    def issue(upto_use, cur, maxn):
        nonlocal ri
        n = 0
        while ri < len(reads) and n < maxn and first_use[reads[ri]] <= upto_use:
            k, x = reads[ri]
            if k == "A" and x >= 8 and last_useA[x-8] >= cur: break
            (rdA if k == "A" else rdB)(x); ri += 1; n += 1
        return n
    issue(9, 0, 12)
    started = set()
    u_free = False
    for i, (q, j) in enumerate(seq):
        need = [f"A{q}", f"B{8*j-q}"]
        if A._cnt(A.lg, need) >= 0:
            ahead = [f"A{seq[k][0]}" for k in range(i, min(i+3, 296))] + [f"B{8*seq[k][1]-seq[k][0]}" for k in range(i, min(i+3, 296))]
            A.wait_lg(ahead)
        assert ("A", q) not in reads[ri:] and ("B", 8*j-q) not in reads[ri:]
        acc = CACC + 4*j
        cin = f"v[{acc}:{acc+3}]" if j in started else "0"
        started.add(j)
        A.e(f"v_mfma_f32_16x16x32_bf16 v[{acc}:{acc+3}], v[{CA+4*(q%8)}:{CA+4*(q%8)+3}], {breg(8*j-q)}, {cin}")
        n = issue(i + 12, i + 1, 2)
        if not u_free and all(("B", r) not in reads[ri:] for r in range(-8, 57)) and A._cnt(A.lg, [f"B{r}" for r in range(-8, 57)]) < 0:
            u_free = True
            memq.add(NEXT(A, ldflag))
        if n < 2 and u_free:
            if memq.q and memq.q[0].txt.startswith(("s_mov_b64 exec, 0x", "s_mov_b32 exec_hi")):
                while True:
                    o = memq.q.pop(0)
                    while not memq.ready(o): A.e("s_nop 0")
                    memq.emit(o)
                    if o.txt == "s_mov_b64 exec, -1": break
                A.nop(1)
            else:
                k = 0
                while memq.q and k < 2 - n and not memq.q[0].txt.startswith(("s_mov_b64 exec, 0x", "s_mov_b32 exec_hi")) and memq.ready(memq.q[0]):
                    memq.emit(memq.q.pop(0)); k += 1
    assert not memq.q
    A.c("---- y out")
    A.nop(8)
    for j in range(8):
        for e in range(2):
            r = CP + (2*j + e)
            A.e(f"v_cvt_pk_bf16_f32 v{r}, v{CACC+4*j+2*e}, v{CACC+4*j+2*e+1}")
            A.ds(f"ds_write_b32 v{vYW}, v{r} offset:{512*j+16*e}", "yw")
    A.wait_lg("yw")
    for k in range(4): A.ds(f"ds_read_b128 v[{CP+4*k}:{CP+4*k+3}], v{vYR} offset:{1024*k}", f"yr{k}")
    for k in range(4):
        A.wait_lg(f"yr{k}")
        A.vmem(f"buffer_store_dwordx4 v[{CP+4*k}:{CP+4*k+3}], v{vL16}, s[{sWS}:{sWS+3}], s{s_yo} offen offset:{1024*k}{stflag}", "yst")

def NEXT(A, ldflag):
    o = []
    o.append(Op(f"s_add_u32 s{s_ch}, s{s_ch}, s{s_q}", kind="salu"))
    class X:
        def __init__(s): s.l = []
        def e(s, t): s.l.append(t)
    x = X(); set_srds(x)
    o += [Op(t, kind="salu") for t in x.l]
    o.append(Op(f"s_xor_b32 s{s_rd}, s{s_rd}, s{s_t3}", kind="salu"))
    return o + u_dma_ops(ldflag) + r_dma_ops("")

def conv_all(A, ldflag="", stflag=""):
    conv_setup(A)
    set_srds(A)
    emit_now(A, r_dma_ops(""))
    ut_poll(A)
    emit_now(A, u_dma_ops(ldflag))
    A.e(f"s_add_u32 s{s_t3}, s{s_rd}, {2*SR}")
    A.e(f"s_xor_b32 s{s_t3}, s{s_t3}, s{s_rd}")
    A.e(f"s_mov_b32 s{s_q}, 4")
    A.e(f"s_mov_b32 s65, {2*SR}")
    A.e(f"s_mov_b32 s66, 0")
    stamp(A, 2)
    A.label("L_cv_round")
    A.e(f"s_lshl_b32 s{s_yo}, s{s_ch}, 12")
    A.e(f"s_add_u32 s{s_yo}, s{s_yo}, {WS_Y}")
    A.e("s_waitcnt vmcnt(0)"); A.vm = []; A.lg = []
    stamp(A, 4)
    conv_round(A, ldflag, stflag)
    stamp(A, 5)
    for r in (vA, vYW, vYR): A.e(f"v_add_u32 v{r}, s65, v{r}")
    A.e("s_sub_u32 s65, 0, s65")
    A.e(f"s_sub_u32 s{s_q}, 4, s{s_w}")
    A.e("s_add_u32 s66, s66, 1")
    A.e("s_cmp_lt_u32 s66, 2")
    A.e("s_cbranch_scc1 L_cv_round")
    A.c("---- 9th channel: tiles jl=w, jh=7-w")
    stamp(A, 6)
    A.e(f"s_lshl_b32 s{s_yo}, s{s_ch}, 12")
    A.e(f"s_add_u32 s{s_yo}, s{s_yo}, {WS_Y}")
    A.e(f"v_add_u32 v{vA}, {4096 - 448}, v{vA}")
    A.e(f"s_lshl_b32 s{s_t0}, s{s_w}, 9")
    A.e(f"s_add_u32 s{s_t1}, s{s_t0}, 64")
    A.e(f"v_add_u32 v{vBl}, s{s_t1}, v{vB}")
    A.e(f"s_sub_u32 s{s_t1}, {7*512 + 64}, s{s_t0}")
    A.e(f"v_add_u32 v11, s{s_t1}, v{vB}")
    A.e(f"v_subrev_u32 v12, s{s_t0}, v{vA}")
    A.e(f"v_add_u32 v12, {hex((-64) & 0xffffffff)}, v12")
    A.e(f"v_add_u32 v13, s{s_t0}, v{vA}")
    A.e(f"v_add_u32 v13, {hex((-64 - 7*512) & 0xffffffff)}, v13")
    A.e("s_waitcnt vmcnt(0)"); A.vm = []; A.lg = []
    AL, AH = CACC, CACC + 4
    A.e(f"ds_read_b128 v[{CBm8}:{CBm8+3}], v{vB}")
    A.e(f"ds_read_b128 v[{CA}:{CA+3}], v12")
    A.e(f"ds_read_b128 v[{CA+4}:{CA+7}], v13")
    A.e("s_waitcnt lgkmcnt(0)")
    A.e(f"v_mfma_f32_16x16x32_bf16 v[{AL}:{AL+3}], v[{CA}:{CA+3}], v[{CBm8}:{CBm8+3}], 0")
    A.e(f"v_mfma_f32_16x16x32_bf16 v[{AH}:{AH+3}], v[{CA+4}:{CA+7}], v[{CBm8}:{CBm8+3}], 0")
    A.e(f"s_mov_b32 s66, 0")
    for both in (True, False):
        lab = "L_cv9a" if both else "L_cv9b"
        A.label(lab)
        per = 3 if both else 2
        for qq in range(8):
            A.e(f"ds_read_b128 v[{CA+4*qq}:{CA+4*qq+3}], v{vA} offset:{64*(7-qq)}")
            A.e(f"ds_read_b128 a[{4*qq}:{4*qq+3}], v11 offset:{64*(7-qq)}")
            if both: A.e(f"ds_read_b128 a[{32+4*qq}:{35+4*qq}], v{vBl} offset:{64*(7-qq)}")
        for qq in range(8):
            A.e(f"s_waitcnt lgkmcnt({min(15, per*(7-qq))})")
            A.e(f"v_mfma_f32_16x16x32_bf16 v[{AH}:{AH+3}], v[{CA+4*qq}:{CA+4*qq+3}], a[{4*qq}:{4*qq+3}], v[{AH}:{AH+3}]")
            if both: A.e(f"v_mfma_f32_16x16x32_bf16 v[{AL}:{AL+3}], v[{CA+4*qq}:{CA+4*qq+3}], a[{32+4*qq}:{35+4*qq}], v[{AL}:{AL+3}]")
        for r in ([vA, 11, vBl] if both else [vA, 11]): A.e(f"v_add_u32 v{r}, {hex((-512) & 0xffffffff)}, v{r}")
        A.e("s_add_u32 s66, s66, 1")
        if both:
            A.e(f"s_cmp_le_u32 s66, s{s_w}")
        else:
            A.e(f"s_sub_u32 s{s_t1}, 7, s{s_w}")
            A.e(f"s_cmp_le_u32 s66, s{s_t1}")
        A.e(f"s_cbranch_scc1 {lab}")
    A.nop(8)
    for ti, acc in enumerate((AL, AH)):
        for e in range(2):
            r = CP + 2*ti + e
            A.e(f"v_cvt_pk_bf16_f32 v{r}, v{acc+2*e}, v{acc+2*e+1}")
            A.e(f"ds_write_b32 v{vYW}, v{r} offset:{512*ti+16*e}")
    A.e("s_waitcnt lgkmcnt(0)")
    A.e(f"ds_read_b128 v[{CP+4}:{CP+7}], v{vYR}")
    A.e(f"s_lshl_b32 s{s_t0}, s{s_w}, 9")
    A.e(f"s_sub_u32 s{s_t1}, {6*512}, s{s_t0}")
    A.e(f"v_mov_b32 v12, s{s_t0}")
    A.e(f"v_mov_b32 v13, s{s_t1}")
    A.e("v_cmp_gt_u32 vcc, 32, v1")
    A.nop(2)
    A.e("v_cndmask_b32 v12, v13, v12, vcc")
    A.e(f"v_add_u32 v12, v12, v{vL16}")
    A.e("s_waitcnt lgkmcnt(0)")
    A.vmem(f"buffer_store_dwordx4 v[{CP+4}:{CP+7}], v12, s[{sWS}:{sWS+3}], s{s_yo} offen{stflag}", "yst")

def ut_poll(A):
    A.e(f"s_call_b64 s[{s_ret}:{s_ret+1}], L_pollc")
    A.e("v_lshrrev_b32 v26, 2, v1")
    A.e("v_lshlrev_b32 v26, 8, v26")
    A.e("v_and_b32 v27, 3, v1")
    A.e("v_lshl_add_u32 v26, v27, 2, v26")
    A.e(f"s_sub_u32 s{s_t2}, s{s_ch}, s{s_w}")
    for k, add in enumerate((0, 8)):
        A.e(f"s_add_u32 s{s_t0}, s{s_t2}, {add}")
        A.e(f"s_lshr_b32 s{s_t0}, s{s_t0}, 6")
        A.e(f"s_mul_i32 s{s_t1}, s{s_t0}, 43")
        A.e(f"s_lshr_b32 s{s_t1}, s{s_t1}, 7")
        A.e(f"s_add_u32 s{s_t0}, s{s_t0}, s{s_t1}")
        A.e(f"s_lshl_b32 s{s_t0}, s{s_t0}, 4")
        A.e(f"s_add_u32 s{76+k}, s{s_t0}, {WS_F}")
    A.e(f"s_mov_b32 s{s_t0}, 0x20000")
    A.label("L_pu")
    A.e(f"buffer_load_dword v27, v26, s[{sWS}:{sWS+3}], s76 offen{SC}")
    A.e(f"buffer_load_dword v28, v26, s[{sWS}:{sWS+3}], s77 offen{SC}")
    A.e("s_waitcnt vmcnt(0)")
    A.e("v_min_u32 v27, v27, v28")
    A.e("v_cmp_gt_u32 vcc, 1, v27")
    A.e(f"s_sub_u32 s{s_t0}, s{s_t0}, 1")
    A.e("s_cbranch_scc1 L_pu_out")
    A.e("s_cbranch_vccnz L_pu")
    A.label("L_pu_out")
    A.vm = []
```

```python
from common import *
import math, p1f
L2E_HI = struct.unpack('<f', struct.pack('<f', LOG2E))[0]
L2E_LO = LOG2E - L2E_HI
LN2 = math.log(2.0)
SB = 32768
KT = 65536
TS = 9216
PP = KT + 2*TS
s_ch, s_i, s_dt, s_dsk, s_cA, s_cB, s_cC, s_go, s_Pa, s_Pc, s_u, s_gs = 56, 57, 58, 59, 60, 61, 62, 63, 64, 65, 66, 67
sP0, sP1, sDT, sDS, sW1f = 68, 72, sT0, sT1, sW1
vW, vRA, vRB, vSc, vGa = 32, 48, 52, 56, 60
vDt, vDk, vT16, vPa, vPn, vZ, vPF1, vPF2 = 68, 69, 70, 71, 72, 74, 76, 77
vCp = 78
vE = 80
vCV = 144
vFA, vFB, vD, vG = 176, 208, 240, 244

def a_table():
    t = []
    for row in range(16): t.append((row & 7) + 128*(row >> 3))
    for row in range(16):
        t.append(256 + 128*(row >> 2) + 2*(row & 3) if row < 8 else 512 + 128*((row-8) >> 1) + 4*(row & 1))
    for row in range(16): t.append(1024 + 128*row if row <= 8 else 2176)
    for row in range(16): t.append(2176)
    return t
def exp_bf16(A, dst, x, t0, t1):
    A.e(f"v_mul_f32 v{t0}, s{s_cA}, v{x}")
    A.e(f"v_fma_f32 v{t1}, v{x}, s{s_cA}, -v{t0}")
    A.e(f"v_fma_f32 v{t1}, v{x}, s{s_cB}, v{t1}")
    A.e(f"v_exp_f32 v{t0}, v{t0}")
    A.e(f"v_mul_f32 v{t1}, s{s_cC}, v{t1}")
    A.e(f"v_fma_f32 v{t0}, v{t0}, v{t1}, v{t0}")
    A.e(f"v_cvt_pk_bf16_f32 v{t0}, v{t0}, v{t0}")
    A.e(f"v_lshlrev_b32 v{dst}, 16, v{t0}")
def cmuls(A, lst):
    for d, x, m in lst:
        assert d != x and d != m
        A.e(f"v_pk_mul_f32 v[{d}:{d+1}], v[{x}:{x+1}], v[{m}:{m+1}] op_sel_hi:[1,0]")
    for d, x, m in lst:
        A.e(f"v_pk_fma_f32 v[{d}:{d+1}], v[{x}:{x+1}], v[{m}:{m+1}], v[{d}:{d+1}] op_sel:[1,1,0] op_sel_hi:[0,1,1] neg_lo:[1,0,0]")
def cvt(A, slot, reg, neg=False):
    A.e(f"v_cvt_pk_bf16_f32 v{vCV+slot}, v{reg}, {'-' if neg else ''}v{reg+1}")

def prefetch_unit(A, dst):
    l1, l2 = A.newlabel("L_pf"), A.newlabel("L_pfe")
    A.e(f"s_cmp_ge_u32 s{s_u}, 135")
    A.e(f"s_cbranch_scc1 {l1}")
    A.e(f"s_mul_i32 s{s_t0}, s{s_u}, 7282")
    A.e(f"s_lshr_b32 s{s_t0}, s{s_t0}, 16")
    A.e(f"s_mul_i32 s{s_t1}, s{s_t0}, 9")
    A.e(f"s_sub_u32 s{s_t1}, s{s_u}, s{s_t1}")
    A.e(f"s_mul_i32 s{s_t1}, s{s_t1}, {64*9216}")
    A.e(f"s_mul_i32 s{s_t2}, s{s_t0}, 43")
    A.e(f"s_lshr_b32 s{s_t2}, s{s_t2}, 7")
    A.e(f"s_mul_i32 s{s_t0}, s{s_t0}, 768")
    A.e(f"s_add_u32 s{s_t1}, s{s_t1}, s{s_t0}")
    A.e(f"s_mul_i32 s{s_t2}, s{s_t2}, {2304 - 128}")
    A.e(f"s_sub_u32 s{s_t1}, s{s_t1}, s{s_t2}")
    A.e(f"s_add_u32 s{s_t1}, s{s_t1}, 128")
    A.e(f"buffer_load_dword a{dst}, v{vPF1}, s[{sW1f}:{sW1f+3}], s{s_t1} offen")
    A.e(f"s_branch {l2}")
    A.label(l1)
    A.e(f"s_sub_u32 s{s_t0}, s{s_u}, 135")
    A.e(f"s_lshl_b32 s{s_t0}, s{s_t0}, 13")
    A.e(f"s_cmp_ge_u32 s{s_t0}, {1152*1152}")
    A.e(f"s_cbranch_scc1 {l2}")
    A.e(f"s_mul_i32 s{s_t1}, s{s_kq}, {1152*1152}")
    A.e(f"s_add_u32 s{s_t0}, s{s_t0}, s{s_t1}")
    A.e(f"buffer_load_dword a{dst}, v{vPF2}, s[{sW2}:{sW2+3}], s{s_t0} offen")
    A.label(l2)
    A.e(f"s_add_u32 s{s_u}, s{s_u}, 32")

def kst(A, b, k):
    if 'kgst' in EXP and b == 0:
        l = A.newlabel("L_ks")
        A.e(f"s_cmp_lg_u32 s{s_i}, 4"); A.e(f"s_cbranch_scc1 {l}"); stamp(A, k); A.label(l)
def kgen(A):
    A.c("======== K-gen v2")
    A.e(f"s_lshr_b32 s{s_t0}, s{s_w}, 1")
    A.e(f"s_lshl_b32 s{s_t0}, s{s_t0}, 4")
    A.e(f"s_add_u32 s{s_ret}, s0, s{s_t0}")
    A.e(f"s_addc_u32 s{s_ret+1}, s1, 0")
    A.e(f"s_load_dwordx2 s[{sP0}:{sP0+1}], s[{s_ret}:{s_ret+1}], {KA['loga']}")
    A.e(f"s_load_dwordx2 s[{sP1}:{sP1+1}], s[{s_ret}:{s_ret+1}], {KA['aim']}")
    A.e(f"s_load_dwordx2 s[{sDT}:{sDT+1}], s[0:1], {KA['logdt']}")
    A.e(f"s_load_dwordx2 s[{sDS}:{sDS+1}], s[0:1], {KA['dskip']}")
    A.e(f"s_lshl_b32 s{s_ch}, s{s_m}, 2")
    A.e(f"s_add_u32 s{s_ch}, s{s_ch}, s{s_kq}")
    A.e(f"s_mul_i32 s{s_ch}, s{s_ch}, 9")
    A.e(f"s_lshl_b32 s{s_go}, s{s_ch}, 8")
    A.e(f"v_and_b32 v{vE}, 127, v0")
    A.e(f"v_lshlrev_b32 v{vE+1}, 1, v{vE}")
    for r, n in ((sP0, D_*256), (sP1, D_*256), (sDT, D_*2), (sDS, D_*2)):
        A.e(f"s_mov_b32 s{r+2}, {n}"); A.e(f"s_mov_b32 s{r+3}, 0x00020000")
    A.e(f"v_min_u32 v{vE+2}, 8, v1")
    A.e(f"v_add_u32 v{vE+2}, s{s_ch}, v{vE+2}")
    A.e(f"v_lshlrev_b32 v{vE+2}, 1, v{vE+2}")
    A.e("s_waitcnt lgkmcnt(0)")
    for c in range(9):
        A.vmem(f"buffer_load_ushort v{vFA+c}, v{vE+1}, s[{sP0}:{sP0+3}], s{s_go} offen offset:{256*c}", "kp")
        A.vmem(f"buffer_load_ushort v{vFB+c}, v{vE+1}, s[{sP1}:{sP1+3}], s{s_go} offen offset:{256*c}", "kp")
    A.vmem(f"buffer_load_ushort v{vDt}, v{vE+2}, s[{sDT}:{sDT+3}], 0 offen", "kp")
    A.vmem(f"buffer_load_ushort v{vDk}, v{vE+2}, s[{sDS}:{sDS+3}], 0 offen", "kp")
    A.e(f"s_getpc_b64 s[{s_ret}:{s_ret+1}]")
    A.label("L_kg_pc")
    A.e(f"s_add_u32 s{s_ret}, s{s_ret}, L_atab-L_kg_pc")
    A.e(f"s_addc_u32 s{s_ret+1}, s{s_ret+1}, 0")
    A.e(f"v_lshrrev_b32 v{vE+3}, 4, v0")
    A.e(f"v_lshlrev_b32 v{vE+3}, 4, v{vE+3}")
    A.vmem(f"global_load_dwordx4 v[{vSc}:{vSc+3}], v{vE+3}, s[{s_ret}:{s_ret+1}]", "kp")
    A.e(f"s_mul_i32 s{s_t0}, s{s_kq}, 2304")
    A.e(f"s_add_u32 s{sW1f}, s{p_w1}, s{s_t0}")
    A.e(f"s_addc_u32 s{sW1f+1}, s{p_w1+1}, 0")
    A.e(f"s_mov_b32 s{sW1f+2}, {575*9216 + 2304}")
    A.e(f"s_mov_b32 s{sW1f+3}, 0x00020000")
    A.e(f"v_mul_u32_u24 v{vPF1}, 9216, v1")
    A.e(f"v_lshlrev_b32 v{vPF2}, 7, v1")
    A.e(f"s_lshl_b32 s{s_u}, s{s_m7}, 2")
    A.e(f"s_add_u32 s{s_u}, s{s_u}, s{s_w}")
    if 'nopf' not in EXP:
        prefetch_unit(A, 0); A.vm.append("pf")
    A.e(f"s_mov_b32 s{s_cA}, {fhex(L2E_HI)}")
    A.e(f"s_mov_b32 s{s_cB}, {fhex(L2E_LO)}")
    A.e(f"s_mov_b32 s{s_cC}, {fhex(LN2)}")
    A.e(f"s_cmp_ge_u32 s{s_w}, 2")
    A.e(f"s_cselect_b32 s{s_Pa}, 1.0, {fhex(8.0)}")
    A.e(f"s_mov_b32 s{s_t0}, {fhex(512.0)}")
    A.e(f"s_cselect_b32 s{s_Pc}, s{s_t0}, {fhex(1024.0)}")
    A.e(f"s_cselect_b32 s{s_t0}, 0, 16384")
    A.e(f"v_lshrrev_b32 v{vE+4}, 2, v{vE}")
    A.e(f"v_and_b32 v{vE+5}, 3, v{vE}")
    A.e(f"v_lshlrev_b32 v{vE+5}, 2, v{vE+5}")
    A.e(f"v_add_u32 v{vE+5}, s{s_t0}, v{vE+5}")
    for i in range(16):
        A.e(f"v_xor_b32 v{vW+i}, {i + 32*i}, v{vE+4}")
        A.e(f"v_lshl_add_u32 v{vW+i}, v{vW+i}, 4, v{vE+5}")
    A.e(f"v_and_b32 v{vE+6}, 15, v1")
    A.e(f"v_lshrrev_b32 v{vE+7}, 4, v1")
    A.e(f"v_xor_b32 v{vE+7}, v{vE+7}, v{vE+6}")
    A.e(f"v_lshlrev_b32 v{vE+8}, 9, v{vE+6}")
    A.e(f"s_lshl_b32 s{s_t0}, s{s_w}, 13")
    for k in range(4):
        A.e(f"v_xor_b32 v{vRB+k}, {4*k}, v{vE+7}")
        A.e(f"v_lshl_add_u32 v{vRB+k}, v{vRB+k}, 4, v{vE+8}")
        A.e(f"v_add_u32 v{vRA+k}, s{s_t0}, v{vRB+k}")
    A.e(f"v_lshlrev_b32 v{vE+9}, 3, v0")
    A.e(f"v_sub_u32 v{vE+9}, 2047, v{vE+9}")
    for e in range(8):
        g = vGa + e
        A.e(f"v_subrev_u32 v{g}, {e}, v{vE+9}")
        A.e(f"v_cvt_f32_u32 v{g}, v{g}")
    for e in range(0, 8, 2):
        A.e(f"v_cvt_pk_bf16_f32 v{vE+10}, v{vGa+e}, v{vGa+e+1}")
        A.e(f"v_lshlrev_b32 v{vGa+e}, 16, v{vE+10}")
        A.e(f"v_and_b32 v{vGa+e+1}, 0xffff0000, v{vE+10}")
    for e in range(8):
        g = vGa + e
        A.e(f"v_cvt_u32_f32 v{g}, v{g}")
        A.e(f"v_lshrrev_b32 v{vE+10}, 5, v{g}")
        A.e(f"v_add_u32 v{g}, v{g}, v{vE+10}")
        A.e(f"v_lshlrev_b32 v{g}, 2, v{g}")
        A.e(f"v_add_u32 v{g}, {KT}, v{g}")
    A.e(f"v_lshlrev_b32 v{vT16}, 4, v0")
    A.e(f"v_lshlrev_b32 v{vPa}, 2, v{vE}")
    A.e(f"v_add_u32 v{vPa}, {PP}, v{vPa}")
    A.e(f"v_lshlrev_b32 v{vE+11}, 2, v0")
    A.e(f"v_add_u32 v{vE+11}, {PP}, v{vE+11}")
    A.e(f"v_mul_u32_u24 v{vE+12}, {UT_PITCH}, v0")
    A.e(f"s_mul_i32 s{s_gs}, s{s_ch}, {UT_PITCH}")
    A.e(f"s_add_u32 s{s_gs}, s{s_gs}, {WS_G + 112}")
    for k in range(4): A.e(f"v_mov_b32 v{vE+16+k}, 0")
    A.wait_vm("kp")
    for c in range(9):
        A.e(f"v_lshl_or_b32 v{vFA+c}, v{vFA+c}, 16, v{vFB+c}")
    for c in range(9):
        A.e(f"ds_write_b32 v{vE+11}, v{vFA+c} offset:{1024*c}")
    A.e(f"v_lshlrev_b32 v{vE+6}, 3, v{vE+6}")
    for k in range(4):
        g = vSc + k
        A.e(f"v_add_u32 v{g}, v{g}, v{vE+6}")
        A.e(f"v_lshrrev_b32 v{vE+10}, 5, v{g}")
        A.e(f"v_add_u32 v{g}, v{g}, v{vE+10}")
        A.e(f"v_lshlrev_b32 v{g}, 2, v{g}")
        A.e(f"v_add_u32 v{g}, {KT}, v{g}")
    A.e(f"v_lshlrev_b32 v{vDt}, 16, v{vDt}")
    A.e(f"v_lshlrev_b32 v{vDk}, 16, v{vDk}")
    exp_bf16(A, vDt, vDt, vE+13, vE+14)
    A.e("v_cmp_gt_u32 vcc, 9, v0")
    A.e(f"s_and_saveexec_b64 s[{s_ret}:{s_ret+1}], vcc")
    A.e("s_cbranch_execz L_kg_nz")
    A.e(f"buffer_store_dwordx4 v[{vE+16}:{vE+19}], v{vE+12}, s[{sWS}:{sWS+3}], s{s_gs} offen")
    A.e(f"s_add_u32 s{s_t1}, s{s_gs}, 4112")
    A.e(f"buffer_store_dwordx4 v[{vE+16}:{vE+19}], v{vE+12}, s[{sWS}:{sWS+3}], s{s_t1} offen")
    A.label("L_kg_nz")
    A.e(f"s_mov_b64 exec, s[{s_ret}:{s_ret+1}]")
    A.e(f"s_add_u32 s{s_gs}, s{s_gs}, 16")
    A.e(f"s_mov_b32 s{s_i}, 0")
    A.e("s_waitcnt lgkmcnt(0)")
    A.e("s_barrier")
    p1f.counter_arrive(A)
    A.e(f"ds_read2st64_b32 v[{vPn}:{vPn+1}], v{vPa} offset0:0 offset1:2")
    A.e("s_waitcnt lgkmcnt(0)")
    if 'kgst' in EXP: stamp(A, 1)
    A.label("L_kg_loop")
    for b in range(2):
        L = lambda s: f"L_kg{b}_{s}"
        A.c(f"-- epoch, buffer {b}")
        kst(A, b, 2)
        A.e(f"s_cmp_lt_u32 s{s_i}, 2")
        A.e(f"s_cbranch_scc1 {L('noc')}")
        for e in range(8): A.e(f"ds_read_b32 v{vG+e}, v{vGa+e} offset:{b*TS}")
        A.label(L('noc'))
        A.e(f"s_sub_u32 s{s_t3}, s{s_i}, 1")
        A.e(f"s_cmp_eq_u32 s{s_w}, 3")
        A.e(f"s_cselect_b32 s{s_t3}, 99, s{s_t3}")
        A.e(f"s_cmp_ge_u32 s{s_t3}, 9")
        A.e(f"s_cbranch_scc1 {L('nob')}")
        for ks in range(8):
            o = (b ^ 1)*SB + (ks >> 2)*256
            A.e(f"ds_read_b128 v[{vFA+4*ks}:{vFA+4*ks+3}], v{vRA+(ks&3)} offset:{o}")
            A.e(f"ds_read_b128 v[{vFB+4*ks}:{vFB+4*ks+3}], v{vRB+(ks&3)} offset:{o + 48*512}")
        A.label(L('nob'))
        if 'nopf' not in EXP: prefetch_unit(A, 1 + b)
        A.e(f"s_cmp_ge_u32 s{s_i}, 9")
        A.e(f"s_cbranch_scc1 {L('noa')}")
        A.e(f"v_readlane_b32 s{s_dt}, v{vDt}, s{s_i}")
        A.e(f"v_and_b32 v{vE}, 0xffff0000, v{vPn}")
        A.e(f"v_lshlrev_b32 v{vZ+1}, 16, v{vPn}")
        exp_bf16(A, vZ, vE, vE+1, vE+2)
        A.e(f"v_and_b32 v{vCp}, 0xffff0000, v{vPn+1}")
        A.e(f"v_lshlrev_b32 v{vCp+1}, 16, v{vPn+1}")
        A.e(f"v_mul_f32 v{vZ}, s{s_dt}, v{vZ}")
        A.e(f"v_mul_f32 v{vZ+1}, s{s_dt}, v{vZ+1}")
        A.e(f"v_mul_f32 v{vZ}, {fhex(-LOG2E)}, v{vZ}")
        A.e(f"v_mul_f32 v{vZ+1}, 0.15915494, v{vZ+1}")
        Ea, E128, Ec, TT = vE + 2, vE + 16, vE + 22, vE + 56
        for k, P in enumerate((f"s{s_Pa}", fhex(128.0), f"s{s_Pc}")):
            A.e(f"v_mul_f32 v{TT+2*k}, {P}, v{vZ}")
            A.e(f"v_mul_f32 v{TT+2*k+1}, {P}, v{vZ+1}")
        for k in range(3): A.e(f"v_fract_f32 v{TT+2*k+1}, v{TT+2*k+1}")
        for k, d in enumerate((Ea, E128, Ec)):
            A.e(f"v_exp_f32 v{TT+2*k}, v{TT+2*k}")
            A.e(f"v_cos_f32 v{d}, v{TT+2*k+1}")
            A.e(f"v_sin_f32 v{d+1}, v{TT+2*k+1}")
        A.e(f"v_mul_f32 v{vCp}, s{s_dt}, v{vCp}")
        A.e(f"v_mul_f32 v{vCp+1}, s{s_dt}, v{vCp+1}")
        for k, d in enumerate((Ea, E128, Ec)):
            A.e(f"v_mul_f32 v{d}, v{d}, v{TT+2*k}")
            A.e(f"v_mul_f32 v{d+1}, v{d+1}, v{TT+2*k}")
        A.label(L('noa'))
        kst(A, b, 3)
        A.e("s_waitcnt lgkmcnt(0)")
        A.e(f"s_cmp_ge_u32 s{s_t3}, 9")
        A.e(f"s_cbranch_scc1 {L('nob2')}")
        for ks in range(8):
            A.e(f"v_mfma_f32_16x16x32_bf16 v[{vD}:{vD+3}], v[{vFA+4*ks}:{vFA+4*ks+3}], v[{vFB+4*ks}:{vFB+4*ks+3}], {'0' if ks == 0 else f'v[{vD}:{vD+3}]'}")
        A.label(L('nob2'))
        A.e(f"s_cmp_lt_u32 s{s_i}, 2")
        A.e(f"s_cbranch_scc1 {L('noc2')}")
        for e in range(4): A.e(f"v_cvt_pk_bf16_f32 v{vG+8+e}, v{vG+2*e}, v{vG+2*e+1}")
        A.e(f"buffer_store_dwordx4 v[{vG+8}:{vG+11}], v{vT16}, s[{sWS}:{sWS+3}], s{s_gs} offen")
        A.e(f"s_add_u32 s{s_gs}, s{s_gs}, {UT_PITCH}")
        A.label(L('noc2'))
        kst(A, b, 4)
        A.e(f"s_cmp_ge_u32 s{s_i}, 9")
        A.e(f"s_cbranch_scc1 {L('late')}")
        A.e(f"s_cmp_ge_u32 s{s_w}, 2")
        A.e(f"s_cbranch_scc1 {L('p1')}")
        Bq = [vE + 24 + 2*k for k in range(4)]; Tq = [vE + 32 + 2*k for k in range(4)]; E16, E256 = vE + 40, vE + 42
        A.e(f"v_pk_add_f32 v[{Bq[0]}:{Bq[0]+1}], v[{vCp}:{vCp+1}], v[{vCp}:{vCp+1}]")
        cmuls(A, [(E16, Ea, Ea), (E256, E128, E128), (Bq[1], Bq[0], Ea), (Tq[1], Ec, E128)])
        cvt(A, 0, Ec); cvt(A, 16, Bq[0], True)
        bcur = {0: Bq[0], 1: Bq[1]}; tcur = {0: Ec, 1: Tq[1]}
        bfree = [Bq[2], Bq[3]]; tfree = [Tq[2], Tq[3], Tq[0]]
        done_b, done_t = [1], [1]
        for j in range(2, 16, 2):
            lst = []
            nb = [bfree.pop(0), bfree.pop(0)]
            lst += [(nb[0], bcur[0], E16), (nb[1], bcur[1], E16)]
            nt = []
            for par in range(2):
                if j + par <= 8:
                    r = tfree.pop(0); nt.append((par, r)); lst.append((r, tcur[par], E256))
            for k in range(len(lst)):
                d, x, m = lst[k]
                A.e(f"v_pk_mul_f32 v[{d}:{d+1}], v[{x}:{x+1}], v[{m}:{m+1}] op_sel_hi:[1,0]")
            for q in done_b: cvt(A, 16 + q, bcur[1], True)
            for q in done_t: cvt(A, q, tcur[1])
            for k in range(len(lst)):
                d, x, m = lst[k]
                A.e(f"v_pk_fma_f32 v[{d}:{d+1}], v[{x}:{x+1}], v[{m}:{m+1}], v[{d}:{d+1}] op_sel:[1,1,0] op_sel_hi:[0,1,1] neg_lo:[1,0,0]")
            bfree += [bcur[0], bcur[1]]
            bcur = {0: nb[0], 1: nb[1]}
            done_t = []
            for par, r in nt:
                if tcur[par] != Ec: tfree.append(tcur[par])
                tcur[par] = r
                if par == 1: done_t = [j + 1]
            cvt(A, 16 + j, bcur[0], True)
            if nt: cvt(A, j, tcur[0])
            done_b = [j + 1]
        cvt(A, 31, bcur[1], True)
        A.e(f"s_branch {L('wr')}")
        A.label(L('p1'))
        Er = {r: vE + 2*r for r in range(1, 8)}
        Bs = {256: vE + 18, 384: vE + 20, 512: vE + 22, 640: vE + 24, 768: vE + 26, 896: vE + 28}
        U = [vE + 30 + 2*i for i in range(12)]
        cmuls(A, [(Er[2], Er[1], Er[1]), (Bs[256], E128, E128), (Bs[640], Bs[512], E128), (U[1], E128, Er[1])])
        A.e(f"v_mov_b32 v{vCV}, 0x3f80")
        cvt(A, 1, Er[1]); cvt(A, 8, E128); cvt(A, 24, Bs[512])
        cmuls(A, [(Er[3], Er[2], Er[1]), (Er[4], Er[2], Er[2]), (Bs[384], Bs[256], E128), (Bs[768], Bs[512], Bs[256]), (U[2], E128, Er[2]), (U[8], Bs[256], Er[2])])
        cvt(A, 2, Er[2]); cvt(A, 16, Bs[256]); cvt(A, 26, Bs[640]); cvt(A, 9, U[1])
        cmuls(A, [(Er[5], Er[4], Er[1]), (Er[6], Er[4], Er[2]), (Er[7], Er[4], Er[3]), (Bs[896], Bs[512], Bs[384]), (U[3], E128, Er[3]), (U[4], E128, Er[4]),
                  (U[9], Bs[256], Er[4]), (U[10], Bs[384], Er[2]), (U[11], Bs[384], Er[4]), (U[0], Bs[512], Er[4]), (U[1], Bs[640], Er[4])])
        cvt(A, 3, Er[3]); cvt(A, 4, Er[4]); cvt(A, 20, Bs[384]); cvt(A, 28, Bs[768]); cvt(A, 10, U[2]); cvt(A, 17, U[8])
        cmuls(A, [(U[5], E128, Er[5]), (U[6], E128, Er[6]), (U[7], E128, Er[7]), (U[2], Bs[256], Er[6]), (U[8], Bs[384], Er[6]), (TT, Bs[768], Er[4]), (TT+2, Bs[896], Er[4])])
        cvt(A, 5, Er[5]); cvt(A, 6, Er[6]); cvt(A, 7, Er[7]); cvt(A, 30, Bs[896]); cvt(A, 11, U[3]); cvt(A, 12, U[4])
        cvt(A, 18, U[9]); cvt(A, 21, U[10]); cvt(A, 22, U[11]); cvt(A, 25, U[0]); cvt(A, 27, U[1])
        cvt(A, 13, U[5]); cvt(A, 14, U[6]); cvt(A, 15, U[7]); cvt(A, 19, U[2]); cvt(A, 23, U[8]); cvt(A, 29, TT); cvt(A, 31, TT+2)
        A.label(L('wr'))
        kst(A, b, 5)
        A.e(f"v_add_u32 v{vPa}, 1024, v{vPa}")
        for i in range(16):
            A.e(f"ds_write2st64_b32 v{vW+i}, v{vCV+i}, v{vCV+16+i} offset0:{b*128} offset1:{b*128+32}")
        A.e(f"ds_read2st64_b32 v[{vPn}:{vPn+1}], v{vPa} offset0:0 offset1:2")
        A.label(L('late'))
        A.e(f"s_cmp_ge_u32 s{s_t3}, 9")
        A.e(f"s_cbranch_scc1 {L('nosc')}")
        A.e(f"v_readlane_b32 s{s_dsk}, v{vDk}, s{s_t3}")
        A.e(f"v_mov_b32 v{vE}, 0")
        A.e(f"s_cmp_eq_u32 s{s_w}, 0")
        A.e(f"s_cselect_b32 s{s_dsk}, s{s_dsk}, 0")
        A.e(f"v_writelane_b32 v{vE}, s{s_dsk}, 0")
        A.nop(4)
        A.e(f"v_add_f32 v{vD}, v{vD}, v{vE}")
        for k in range(4): A.e(f"ds_write_b32 v{vSc+k}, v{vD+k} offset:{(b^1)*TS}")
        A.label(L('nosc'))
        kst(A, b, 6)
        A.e(f"s_add_u32 s{s_i}, s{s_i}, 1")
        A.e(f"s_cmp_ge_u32 s{s_i}, 11")
        A.e("s_cbranch_scc1 L_kg_done")
        A.e("s_waitcnt lgkmcnt(0)")
        A.e("s_barrier")
    A.e("s_branch L_kg_loop")
    A.label("L_kg_done")
    A.vm = []; A.lg = []
    A.e("s_waitcnt vmcnt(0)")
    A.e("s_barrier")

def tables(A):
    A.raw(".p2align 4")
    A.label("L_atab")
    A.raw(".long " + ", ".join(str(x) for x in a_table()))
```

```python
from common import *
aX, aA = 0, 144
s_loc_bp = 65
GA = MT + 8

def setup_common(A):
    A.c("---- ids")
    A.e("s_and_b32 s3, s2, 7")
    A.e(f"s_lshr_b32 s{s_kq}, s3, 1")
    A.e("s_and_b32 s3, s3, 1")
    A.e("s_lshl_b32 s3, s3, 3")
    A.e(f"s_lshr_b32 s{s_m7}, s2, 5")
    A.e(f"s_add_u32 s{s_m}, s{s_m7}, s3")
    A.e(f"s_lshr_b32 s{s_r}, s2, 3")
    A.e(f"s_and_b32 s{s_r}, s{s_r}, 3")
    A.e("v_lshrrev_b32 v2, 6, v0")
    A.e("v_and_b32 v1, 63, v0")
    A.e(f"v_readfirstlane_b32 s{s_w}, v2")
    A.e(f"v_lshlrev_b32 v{vL16}, 4, v1")
    A.e(f"s_lshl_b32 s{s_fi}, s{s_m}, 2")
    A.e(f"s_add_u32 s{s_fi}, s{s_fi}, s{s_kq}")
    A.e(f"s_lshl_b32 s{s_hb}, s{s_fi}, 2")
    A.e(f"s_add_u32 s{s_fi}, s{s_hb}, s{s_r}")
    A.e(f"s_lshl_b32 s{s_fi}, s{s_fi}, 2")
    A.e(f"s_add_u32 s{s_fi}, s{s_fi}, s{s_w}")
    A.e(f"s_lshl_b32 s{s_fi}, s{s_fi}, 2")
    A.e(f"s_add_u32 s{s_fi}, s{s_fi}, {WS_F}")
    A.e(f"s_add_u32 s{s_hb}, s{s_hb}, s{s_w}")
    A.e(f"s_mul_i32 s{s_hb}, s{s_hb}, 73728")
    A.e(f"s_mul_i32 s{s_t0}, s{s_r}, 24576")
    A.e(f"s_add_u32 s{s_hb}, s{s_hb}, s{s_t0}")

def p1_setup(A, np_):
    A.c("---- P1 setup")
    T = MT
    A.e(f"s_mul_i32 s{s_rho}, s{s_r}, 3")
    A.e(f"s_add_u32 s{s_rho}, s{s_rho}, s{s_m7}")
    mod_small(A, s_rho, s_rho, 9)
    if ROT:
        A.e(f"s_mov_b32 s{s_pc}, s{s_m7}")
        for _ in range((7 // np_)): mod_small(A, s_pc, s_pc, np_)
        A.e(f"s_lshl_b32 s{s_pc}, s{s_pc}, 7")
    else:
        A.e(f"s_mov_b32 s{s_pc}, 0")
    A.e(f"s_mul_i32 s{s_t0}, s{s_kq}, 2304")
    A.e(f"s_mul_i32 s{s_t1}, s{s_r}, 768")
    A.e(f"s_add_u32 s{s_t0}, s{s_t0}, s{s_t1}")
    A.e(f"s_add_u32 s{p_w1}, s{p_w1}, s{s_t0}")
    A.e(f"s_addc_u32 s{p_w1+1}, s{p_w1+1}, 0")
    A.e(f"s_add_u32 s{sW1}, s{p_w1}, s{s_pc}")
    A.e(f"s_addc_u32 s{sW1+1}, s{p_w1+1}, 0")
    A.e(f"s_mov_b32 s{sW1+2}, {575*9216 + 128}")
    A.e(f"s_mov_b32 s{sW1+3}, 0x00020000")
    A.e(f"s_mov_b32 s{s_so}, s{s_t0}")
    A.e(f"s_mov_b32 s{s_t0}, s{s_rho}")
    for kl in range(9):
        A.e(f"s_mul_i32 s{s_rw+kl}, s{s_t0}, {64*9216}")
        if kl < 8:
            A.e(f"s_add_u32 s{s_t0}, s{s_t0}, 1")
            A.e(f"s_cmp_eq_u32 s{s_t0}, 9")
            A.e(f"s_cselect_b32 s{s_t0}, 0, s{s_t0}")
    A.e(f"s_lshl_b32 s{s_wl}, s{s_w}, 11")
    A.e(f"s_mov_b32 s{s_log2e}, {fhex(LOG2E)}")
    A.e(f"v_lshrrev_b32 v{T}, 3, v1")
    A.e(f"v_and_b32 v{T+1}, 7, v1")
    A.e(f"s_lshl_b32 s{s_t0}, s{s_m}, 7")
    A.e(f"s_lshl_b32 s{s_t1}, s{s_w}, 5")
    A.e(f"s_add_u32 s{s_t0}, s{s_t0}, s{s_t1}")
    A.e(f"v_add_u32 v{T+2}, s{s_t0}, v{T}")
    A.e(f"v_mul_u32_u24 v{T+2}, 1152, v{T+2}")
    A.e(f"v_lshrrev_b32 v{T+3}, 1, v{T}")
    A.e(f"v_xor_b32 v{T+3}, v{T+3}, v{T+1}")
    A.e(f"v_lshl_add_u32 v{vXD}, v{T+3}, 4, v{T+2}")
    A.e(f"v_xor_b32 v{vXD+1}, 64, v{vXD}")
    A.e(f"v_add_u32 v{vXD+1}, 8192, v{vXD+1}")
    A.e(f"s_lshl_b32 s{s_t0}, s{s_w}, 4")
    A.e(f"v_add_u32 v{T+2}, s{s_t0}, v{T}")
    A.e(f"v_mul_u32_u24 v{T+2}, 9216, v{T+2}")
    A.e(f"v_lshlrev_b32 v{T+3}, 1, v{T}")
    A.e(f"v_and_b32 v{T+3}, 4, v{T+3}")
    A.e(f"v_xor_b32 v{T+3}, v{T+3}, v{T+1}")
    A.e(f"v_lshl_add_u32 v{vWD}, v{T+3}, 4, v{T+2}")
    A.e(f"v_add_u32 v{vWD+1}, {8*9216 - 1024}, v{vWD}")

def p1_setup2(A):
    T = MT + 4
    A.e(f"v_and_b32 v{T}, 31, v1")
    A.e(f"v_lshrrev_b32 v{T+1}, 5, v1")
    A.e(f"v_lshrrev_b32 v{T+2}, 1, v{T}")
    A.e(f"v_and_b32 v{T+2}, 7, v{T+2}")
    A.e(f"v_xor_b32 v{T+2}, v{T+2}, v{T+1}")
    A.e(f"s_mul_i32 s{s_t0}, s{s_w}, 20480")
    A.e(f"s_add_u32 s{s_t0}, s{s_t0}, {XRING}")
    A.e(f"v_lshlrev_b32 v{T+3}, 7, v{T}")
    A.e(f"v_add_u32 v{T+3}, s{s_t0}, v{T+3}")
    for ks in range(4):
        A.e(f"v_xor_b32 v{T+4}, {2*ks}, v{T+2}")
        A.e(f"v_lshl_add_u32 v{vXR+ks}, v{T+4}, 4, v{T+3}")
    A.e(f"v_lshlrev_b32 v{vBI}, 4, v{T+1}")
    A.e(f"v_add_u32 v{vGW}, {M_GW}, v{vBI}")
    A.e(f"s_lshr_b32 s{s_loc_bp}, s{s_pc}, 7")
    A.e(f"s_lshl_b32 s{s_t0}, s{s_pc}, 1")
    A.e(f"s_add_u32 s{s_t0}, s{s_t0}, {M_BIAS}")
    A.e(f"v_add_u32 v{vBI}, s{s_t0}, v{vBI}")
    A.e(f"v_lshrrev_b32 v{T}, 2, v1")
    A.e(f"v_and_b32 v{T}, 3, v{T}")
    A.e(f"v_lshl_add_u32 v{T+2}, v{T+1}, 3, v{T}")
    A.e(f"v_lshlrev_b32 v{T+2}, 7, v{T+2}")
    A.e(f"v_lshrrev_b32 v{T}, 1, v{T}")
    A.e(f"v_lshl_add_u32 v{T+2}, v{T}, 6, v{T+2}")
    A.e(f"v_lshrrev_b32 v{T}, 4, v1")
    A.e(f"v_and_b32 v{T}, 1, v{T}")
    A.e(f"v_lshl_add_u32 v{T+2}, v{T}, 5, v{T+2}")
    A.e(f"v_and_b32 v{T}, 3, v1")
    A.e(f"v_lshl_add_u32 v{vAR}, v{T}, 3, v{T+2}")
    A.e(f"v_xor_b32 v{vAR+1}, 64, v{vAR}")
    for j in (1, 2):
        A.e(f"v_add_u32 v{vAR+2*j}, {j*2*SLOT}, v{vAR}")
        A.e(f"v_add_u32 v{vAR+2*j+1}, {j*2*SLOT}, v{vAR+1}")

def x_dma_ops(kl):
    slot = kl % 5
    o = []
    a = Op(f"s_mul_i32 s{s_t2}, s{s_w}, 20480", kind="salu")
    m = Op(f"s_add_u32 m0, s{s_t2}, {XRING + slot*4096}", kind="salu")
    s1 = Op(f"s_mul_hi_u32 s{s_so}, s{s_rw+kl}, {-(-(1 << 32)//4608)}", kind="salu")
    o += [a, m, s1]
    for i in range(4):
        if i == 2: o.append(Op(f"s_add_u32 s{s_so}, s{s_so}, 16384", kind="salu"))
        o.append(Op(f"buffer_load_dwordx4 v{vXD+(i&1)}, s[{sX}:{sX+3}], s{s_so} offen offset:{i*1024} lds", kind="vmem", tag=f"x{kl}", deps=[(m, 2)]))
    return o

def x_read(A, kl):
    slot = kl % 5
    for ks in range(4):
        st = 4*kl + ks
        A.ds(f"ds_read_b128 a[{aX+4*st}:{aX+4*st+3}], v{vXR+ks} offset:{slot*4096}", f"xr{kl}")

def w1_line_ops(st, j, slot):
    kl = 3*(st % 3) + j
    m = Op(f"s_add_u32 m0, s{s_wl}, {slot*SLOT + j*8192}", kind="salu")
    o = [m]
    for i in range(2):
        o.append(Op(f"buffer_load_dwordx4 v{vWD+i}, s[{sW1}:{sW1+3}], s{s_rw+kl} offen offset:{i*1024} lds", kind="vmem", tag=(f"W{kl}" if st < 3 else f"st{st}"), deps=[(m, 2)]))
    return o
def w1_dma_ops(st, slot, np_):
    o = []
    if st % 3 == 0 and st > 0:
        o += [Op(f"s_add_u32 s{s_pc}, s{s_pc}, 128", kind="salu"),
              Op(f"s_cmp_eq_u32 s{s_pc}, {128*np_}\n    s_cselect_b32 s{s_pc}, 0, s{s_pc}", kind="salu", cost=8),
              Op(f"s_add_u32 s{sW1}, s{p_w1}, s{s_pc}\n    s_addc_u32 s{sW1+1}, s{p_w1+1}, 0", kind="salu", cost=8)]
    for j in range(3): o += w1_line_ops(st, j, slot)
    return o

def mish_ops(pi, done_pos, hs_base):
    ops = []; stores = []
    cv = {}
    for grp in range(8):
        t2 = grp // 4
        es = [4*grp + i for i in range(4)]
        tb = MT + (grp % 2)*8
        m = [Op(f"v_mul_f32 v{tb+2*i}, s{s_log2e}, v{TMP+e}", deps=[(done_pos[t2], 13)]) for i, e in enumerate(es)]
        x = [Op(f"v_exp_f32 v{tb+2*i}, v{tb+2*i}", cost=8, trans=True, deps=[(m[i], 1)]) for i in range(4)]
        p = [Op(f"v_fma_f32 v{tb+2*i+1}, v{tb+2*i}, -0.5, -1.0", deps=[(x[i], 2)]) for i in range(4)]
        d = [Op(f"v_fma_f32 v{tb+2*i+1}, v{tb+2*i}, v{tb+2*i+1}, -1.0", deps=[(p[i], 1)]) for i in range(4)]
        r = [Op(f"v_rcp_f32 v{tb+2*i+1}, v{tb+2*i+1}", cost=8, trans=True, deps=[(d[i], 1)]) for i in range(4)]
        y = [Op(f"v_fma_f32 v{TMP+e}, v{TMP+e}, v{tb+2*i+1}, v{TMP+e}", deps=[(r[i], 2)]) for i, e in enumerate(es)]
        hb = hs_base + 2*grp
        c = [Op(f"v_cvt_pk_bf16_f32 v{hb+j}, v{TMP+es[2*j]}, v{TMP+es[2*j+1]}", deps=[(y[2*j], 1), (y[2*j+1], 1)]) for j in range(2)]
        if grp >= 2:
            for i in range(4):
                m[i].deps.append((cv[grp-2][3][i], 1))
                p[i].deps.append((cv[grp-2][2][i], 1))
        cv[grp] = (c, m, y, d)
        ops += m + x + p + d + r + y + c
        if grp % 2 == 1:
            q = grp // 2
            stores.append(Op(f"buffer_store_dwordx4 v[{hs_base+4*q}:{hs_base+4*q+3}], v{vL16}, s[{sWS}:{sWS+3}], s{s_hb} offen offset:{q*1024}{SC}",
                             kind="vmem", tag=f"h{pi}", deps=[(c[1], 1), (c[0], 1), (cv[grp-1][0][0], 1), (cv[grp-1][0][1], 1)]))
    stores.append(Op(f"s_add_u32 s{s_hb}, s{s_hb}, 4096", kind="salu", deps=[(stores[-1], 1)]))
    return ops, stores

def ut_sub(A):
    A.label("L_utsub")
    T = TMP + 20
    A.e(f"v_lshrrev_b32 v{T}, 4, v1")
    A.e(f"v_lshrrev_b32 v{T+1}, 2, v1")
    A.e(f"v_and_b32 v{T+1}, 3, v{T+1}")
    A.e(f"v_lshl_add_u32 v{T+1}, v{T}, 3, v{T+1}")
    A.e(f"s_mul_i32 s{s_t0}, s{s_w}, 20480")
    A.e(f"s_add_u32 s{s_t0}, s{s_t0}, s{s_t3}")
    A.e(f"v_and_b32 v{T+2}, 1, v1")
    A.e(f"v_lshlrev_b32 v{T+2}, 3, v{T+2}")
    A.e(f"v_lshl_add_u32 v{T+2}, v{T+1}, 7, v{T+2}")
    A.e(f"v_add_u32 v{T+2}, s{s_t0}, v{T+2}")
    A.e(f"v_lshrrev_b32 v{T+3}, 1, v1")
    A.e(f"v_and_b32 v{T+3}, 1, v{T+3}")
    A.e(f"v_lshrrev_b32 v{T+1}, 1, v{T+1}")
    A.e(f"v_and_b32 v{T+1}, 7, v{T+1}")
    A.e(f"v_xor_b32 v{T+3}, v{T+3}, v{T+1}")
    for cb in range(4):
        for rd in range(2):
            A.e(f"v_xor_b32 v{T+4+rd}, {(2*cb) ^ (2*rd)}, v{T+3}")
            A.e(f"v_lshl_add_u32 v{T+4+rd}, v{T+4+rd}, 4, v{T+2}")
            A.e(f"ds_read_b64_tr_b16 v[{TMP+4*cb+2*rd}:{TMP+4*cb+2*rd+1}], v{T+4+rd} offset:{rd*512}")
    A.e(f"v_and_b32 v{T+1}, 15, v1")
    A.e(f"v_mul_u32_u24 v{T+1}, {UT_PITCH}, v{T+1}")
    A.e(f"v_lshl_add_u32 v{T+1}, v{T}, 4, v{T+1}")
    A.e(f"s_mul_i32 s{s_t0}, s{s_line}, {64*UT_PITCH}")
    A.e(f"s_lshl_b32 s{s_t1}, s{s_m}, 8")
    A.e(f"s_add_u32 s{s_t0}, s{s_t0}, s{s_t1}")
    A.e(f"s_lshl_b32 s{s_t1}, s{s_w}, 6")
    A.e(f"s_add_u32 s{s_t0}, s{s_t0}, s{s_t1}")
    A.e(f"s_add_u32 s{s_t0}, s{s_t0}, {WS_UT + 128}")
    A.e("s_waitcnt lgkmcnt(0)")
    for cb in range(4):
        A.e(f"buffer_store_dwordx4 v[{TMP+4*cb}:{TMP+4*cb+3}], v{T+1}, s[{sWS}:{sWS+3}], s{s_t0} offen{SC}")
        A.e(f"s_add_u32 s{s_t0}, s{s_t0}, {16*UT_PITCH}")
    A.e(f"s_or_b32 s{s_t1}, s{s_m}, s{s_w}")
    A.e(f"s_cmp_lg_u32 s{s_t1}, 0")
    A.e(f"s_cbranch_scc1 L_utz")
    A.e(f"v_mul_u32_u24 v{T+1}, {UT_PITCH}, v1")
    A.e(f"s_mul_i32 s{s_t0}, s{s_line}, {64*UT_PITCH}")
    A.e(f"s_add_u32 s{s_t0}, s{s_t0}, {WS_UT + 112}")
    for i in range(4): A.e(f"v_mov_b32 v{TMP+16+i}, 0")
    A.e(f"buffer_store_dwordx4 v[{TMP+16}:{TMP+19}], v{T+1}, s[{sWS}:{sWS+3}], s{s_t0} offen{SC}")
    A.label("L_utz")
    A.e(f"s_setpc_b64 s[{s_ret}:{s_ret+1}]")

def ut_check(A, kl):
    lab = A.newlabel("L_utc")
    A.e(f"s_cmp_lg_u32 s{s_upos}, {kl}")
    A.e(f"s_cbranch_scc1 {lab}")
    A.e(f"s_mov_b32 s{s_t3}, {XRING + (kl % 5)*4096}")
    A.e(f"s_call_b64 s[{s_ret}:{s_ret+1}], L_utsub")
    A.label(lab)

def bias_read(A, pi):
    for t2 in range(2):
        for g in range(4):
            A.ds(f"ds_read_b128 v[{BIAS+16*t2+4*g}:{BIAS+16*t2+4*g+3}], v{vBI} offset:{(32*t2+8*g)*4}", f"bias{pi}")

class Ring:
    def __init__(self): self.slot = {0: 0, 1: 1, 2: 2}; self.free = []; self.freed = set(); self.next = 3
    def release(self, st):
        if st >= 0 and st not in self.freed and st in self.slot:
            self.freed.add(st); self.free.append(self.slot[st])
    def alloc(self, nst):
        out = []
        while self.free and self.next < nst:
            self.slot[self.next] = self.free.pop(0); out.append(self.next); self.next += 1
        return out

def a_reads(A, gs, ring):
    st, ks = gs // 12, gs % 12
    slot = ring.slot[st]
    buf = aA + 8*(gs % 6)
    for t2 in range(2):
        for rd in range(2):
            A.ds(f"ds_read_b64_tr_b16 a[{buf+4*t2+2*rd}:{buf+4*t2+2*rd+1}], v{vAR+2*(slot//2)+t2} offset:{(slot%2)*SLOT + (16*ks+4*rd)*128}", f"a{gs}")

def p1_first_loads(A, gate):
    A.e(f"v_lshlrev_b32 v{MT+2}, 1, v0")
    A.vmem(f"buffer_load_ushort v{MT}, v{MT+2}, s[{sT0}:{sT0+3}], s{s_so} offen", "b1")
    A.vmem(f"buffer_load_ushort v{MT+1}, v{MT+2}, s[{sT0}:{sT0+3}], s{s_so} offen offset:512", "b1")
    if gate:
        T = MT + 4
        A.e(f"v_and_b32 v{T}, 127, v0")
        A.e(f"v_lshrrev_b32 v{T+1}, 3, v{T}")
        A.e(f"v_add_u32 v{T+1}, s{s_rho}, v{T+1}")
        A.e(f"v_subrev_u32 v{T+2}, 9, v{T+1}")
        A.e(f"v_min_u32 v{T+1}, v{T+1}, v{T+2}")
        A.e(f"v_and_b32 v{T+2}, 7, v{T}")
        A.e(f"v_lshlrev_b32 v{T+2}, 4, v{T+2}")
        A.e(f"v_lshl_add_u32 v{T+1}, v{T+1}, 7, v{T+2}")
        A.e(f"s_and_b32 s{s_t0}, s{s_w}, 1")
        A.e(f"s_lshl_b32 s{s_t0}, s{s_t0}, 10")
        A.e(f"s_add_u32 m0, s{s_t0}, {M_GW}")
        A.e("s_nop 0")
        A.vmem(f"buffer_load_dwordx4 v{T+1}, s[{sT1}:{sT1+3}], 0 offen lds", "gw")
    for k in FIRST[:NFIRST]: emit_now(A, first_ops(k))
FIRST = ("x0", "W0", "x1", "W1", "x2", "W2", "x3", "W3", "x4", "W4", "W5", "W6", "W7", "W8")
NFIRST = 6
def first_ops(k):
    n = int(k[1])
    return x_dma_ops(n) if k[0] == "x" else w1_line_ops(n // 3, n % 3, n // 3)
def counter_arrive(A):
    lab = A.newlabel("L_cnt")
    A.e(f"s_cmp_lg_u32 s{s_w}, 0")
    A.e(f"s_cbranch_scc1 {lab}")
    A.e(f"v_mov_b32 v{vS}, 1")
    A.e("s_mov_b64 exec, 1")
    A.e(f"buffer_atomic_add v{vS}, off, s[{sDBG}:{sDBG+3}], 0 sc1")
    A.e("s_mov_b64 exec, -1")
    A.label(lab)

def p1_main(A, np_, keep, do_ut, gate, nst_total, other_dma, tail_hook=None, pre=None, counter=True):
    nst = 3*np_; nsteps = 36*np_
    ring = Ring()
    A.c("---- bias to LDS (fp32)")
    A.wait_vm("b1")
    A.e(f"v_lshlrev_b32 v{MT}, 16, v{MT}")
    A.e(f"v_lshlrev_b32 v{MT+1}, 16, v{MT+1}")
    A.e(f"v_lshlrev_b32 v{MT+2}, 2, v0")
    A.e(f"v_add_u32 v{MT+2}, {M_BIAS}, v{MT+2}")
    A.ds(f"ds_write_b32 v{MT+2}, v{MT}", "bw")
    A.ds(f"ds_write_b32 v{MT+2}, v{MT+1} offset:1024", "bw")
    A.wait_vm(["x0", "W0"])
    x_read(A, 0)
    A.wait_lg("bw")
    A.e("s_barrier")
    stamp(A, 2)
    if counter: counter_arrive(A)
    if do_ut: ut_check(A, 0)
    bias_read(A, 0)
    def gw_read(gs): A.ds(f"ds_read_b128 v[{HS+4*(gs%8)}:{HS+4*(gs%8)+3}], v{vGW} offset:{32*gs}", f"a{gs}")
    for gs in range(4):
        if gate: gw_read(gs)
        a_reads(A, gs, ring)
    memq = Filler(A); valq = Filler(A); stq = Filler(A)
    done = {}
    for k in FIRST[NFIRST:10]: memq.add(first_ops(k))
    xsched = {0: ([1], [1]), 4: ([2], [2]), 8: ([3], [3]), 12: ([4], [4]), 16: ([5], [5]), 20: ([6, 7], [6]), 24: ([8], [7]), 28: ([], [8])}
    xdma = {5: ["x5", "W5", "x6", "W6"], 9: ["x7", "W7"], 12: ["x8", "W8"]}
    def dma_ops(st):
        return w1_dma_ops(st, ring.slot[st], np_) if st < nst else other_dma(st, ring.slot[st])
    for gs in range(nsteps):
        pair, s = gs // 36, gs % 36
        st, ks = gs // 12, gs % 12
        if gs == 36: stamp(A, 3)
        if s == 0 and pair > 0:
            pp = pair - 1
            hs = ACC3 if pp == 0 else HS + 16*(pp - 1)
            ops, stores = mish_ops(pp, [lambda p=pp: done.get((p, 0)), lambda p=pp: done.get((p, 1))], hs)
            if pair == 1 and gate:
                g0 = A.n
                go = [Op(f"v_add_f32 v{HS}, v{GA}, v{GA+4}", deps=[(lambda: g0, 8)])]
                go.append(Op(f"v_mov_b32 v{HS+1}, v{HS}", deps=[(go[0], 1)]))
                go.append(Op(f"v_permlane32_swap_b32 v{HS}, v{HS+1}", deps=[(go[1], 3)]))
                go.append(Op(f"v_add_f32 v{HS}, v{HS}, v{HS+1}", deps=[(go[2], 1)]))
                go.append(Op(f"v_mul_f32 v{HS}, s{s_log2e}, v{HS}", deps=[(go[3], 1)]))
                go.append(Op(f"v_exp_f32 v{HS}, -v{HS}", cost=8, trans=True, deps=[(go[4], 1)]))
                go.append(Op(f"v_add_f32 v{HS}, 1.0, v{HS}", deps=[(go[5], 2)]))
                go.append(Op(f"v_rcp_f32 v{HS}, v{HS}", cost=8, trans=True, deps=[(go[6], 1)]))
                go.append(Op(f"v_and_b32 v{HS+1}, 31, v1", deps=[(go[3], 1)]))
                go.append(Op(f"v_lshlrev_b32 v{HS+1}, 2, v{HS+1}", deps=[(go[8], 1)]))
                for o in ops[:12]: o.deps.append((go[0], 1))
                for o in ops[26:30]: o.deps.append((go[0], 1))
                valq.add(go)
                go2 = Op(f"s_lshl_b32 s{s_t1}, s{s_w}, 7\n    s_add_u32 s{s_t1}, s{s_t1}, {M_G}\n    v_add_u32 v{HS+1}, s{s_t1}, v{HS+1}\n    ds_write_b32 v{HS+1}, v{HS}", kind="ds", tag="gatew", cost=16, deps=[(go[7], 2), (go[9], 1)])
                valq.add([go2])
            if pre and pair == np_ - 1: valq.add(pre.pre_p2_ops())
            valq.add(ops); stq.add(stores)
        for t2 in range(2):
            if s == 0 and t2 == 0: A.wait_lg([f"bias{pair}", f"a{gs}", "xr0"])
            acc = ACC + 16*t2
            cin = (BIAS + 16*t2) if s == 0 else acc
            dst = (TMP + 16*t2) if s == 35 else acc
            if s == 35: assert not valq.q
            buf = aA + 8*(gs % 6) + 4*t2
            A.e(f"v_mfma_f32_32x32x16_bf16 v[{dst}:{dst+15}], a[{buf}:{buf+3}], a[{aX+4*s}:{aX+4*s+3}], v[{cin}:{cin+15}]")
            if s == 35: done[(pair, t2)] = A.n - 1
            if t2 == 0:
                n0 = A.n
                bar = False
                if gs in xdma:
                    for k in xdma[gs]: memq.add(first_ops(k))
                if gs in xsched:
                    xs, ws = xsched[gs]
                    tg = [f"x{k}" for k in xs] + [f"W{k}" for k in ws]
                    while any(o.tag in tg for o in memq.q):
                        o = memq.q.pop(0)
                        while not memq.ready(o): A.e("s_nop 0")
                        memq.emit(o)
                    A.wait_vm(tg)
                    if gs == 28: A.wait_lg("xr8")
                    A.e("s_barrier"); bar = True
                elif ks == 8 and st + 1 < nst_total:
                    tags = [f"st{st+1}"]
                    fl = None
                    if st % 3 == 1 and pair >= 2: tags.append(f"h{pair-2}"); fl = pair - 1
                    A.wait_vm(tags); A.e("s_barrier"); bar = True
                    if fl: stq.q = flag_store_ops(fl) + stq.q
                if bar:
                    for k in range(st + 1):
                        if 12*k + 11 < gs: ring.release(k)
                    if gs == 28: ring.free += [3, 4, 5]
                    for k in ring.alloc(nst_total): memq.add(dma_ops(k))
                if gs % 2 == 0:
                    A.wait_lg([f"a{gs+1}", f"a{gs+2}"] + ([f"xr{(gs+1)//4}", f"xr{(gs+2)//4}"] if pair == 0 else []))
                if gs in xsched:
                    for k in xsched[gs][0]: x_read(A, k)
                if gs + 4 < nsteps:
                    if gate and gs + 4 < 36: gw_read(gs + 4)
                    a_reads(A, gs + 4, ring)
                elif tail_hook: tail_hook(A, gs, ring)
                if gs in xsched and do_ut:
                    for k in xsched[gs][0]: ut_check(A, k)
                if s == 20 and pair + 1 < np_:
                    A.e(f"s_add_u32 s{s_loc_bp}, s{s_loc_bp}, 1")
                    A.e(f"s_cmp_eq_u32 s{s_loc_bp}, {np_}")
                    A.e(f"s_cselect_b32 s{s_t0}, {hex((-256*np_) & 0xffffffff)}, 0")
                    A.e(f"s_cselect_b32 s{s_loc_bp}, 0, s{s_loc_bp}")
                    A.e(f"s_add_u32 s{s_t0}, s{s_t0}, 256")
                    A.e(f"v_add_u32 v{vBI}, s{s_t0}, v{vBI}")
                    bias_read(A, pair + 1)
                used = 4*(A.n - n0) - 16
                bud = max(0, 8 - used)
                if pair == 0: bud = max(bud, 8) + 8
                u = stq.fill(bud, window=1)
                nv = 0
                while memq.q and (u < bud or (len(memq.q) > 14 and u < bud + 8)) and memq.ready(memq.q[0]):
                    o = memq.q[0]
                    if o.kind == "vmem":
                        if nv >= (1 if len(memq.q) <= 14 else 2): break
                        nv += 1
                    memq.q.pop(0); memq.emit(o); u += o.cost
                valq.fill(max(0, bud - u), allow_trans=False, window=40)
            else:
                if gate and pair == 0:
                    g = HS + 4*(gs % 8)
                    for hh in range(2):
                        c = "0" if gs == 0 else f"v[{GA+4*hh}:{GA+4*hh+3}]"
                        A.e(f"v_mfma_f32_4x4x4_16b_bf16 v[{GA+4*hh}:{GA+4*hh+3}], v[{g+2*hh}:{g+2*hh+1}], a[{aX+4*s+2*hh}:{aX+4*s+2*hh+1}], {c}")
                if pair == 0:
                    u = 0
                    nv = 0
                    while memq.q and u < 20 and memq.ready(memq.q[0]):
                        o = memq.q.pop(0); memq.emit(o); u += o.cost
                        if o.kind == "vmem":
                            nv += 1
                            if nv == 2: break
                rem = 33 - s
                work = valq.total() + stq.total() + min(memq.total(), 8*max(rem, 0))
                bud = 24
                while work - bud > max(rem, 0)*32 and bud < 40: bud += 4
                fill_odd(valq, bud)
                if s == 34: valq.drain(); stq.drain()
    pp = np_ - 1
    hs = ACC3 if pp == 0 else HS + 16*(pp - 1)
    ops, stores = mish_ops(pp, [lambda p=pp: done.get((p, 0)), lambda p=pp: done.get((p, 1))], hs)
    valq.add(ops); stq.add(stores)
    return ring, memq, valq, stq
```

```python
from common import *
from p1f import Ring
aH, aR = 0, 208
s_sl, s_hs, s_r5, s_rr, s_pb, s_need, s_lane, s_val, s_w2l = 66, 70, 74, 79, 82, 83, 84, 85, 3
s_r3 = 56
vFL, vFA = vXD, vXD + 1
SEQ = [(0, k) for k in range(1, 6)] + [(0, 0)] + [(1, k) for k in range(5)] + [(2, k) for k in range(5)] + [(1, 5), (2, 5)]
G0 = 18
def acc2(t): return [32, 48, 96, 112, 224, 240][t]

def p2_setup(A):
    A.c("---- P2 setup")
    T = MT + 4
    A.e(f"s_mul_i32 s{s_w2l}, s{s_w}, 6144")
    A.e(f"s_mul_i32 s{s_t0}, s{s_r}, 24576")
    A.e(f"s_sub_u32 s{s_t0}, s{s_hb}, s{s_t0}")
    A.e(f"s_mul_i32 s{s_t1}, s{s_kq}, {1152*1152}")
    A.e(f"s_mul_i32 s{s_t2}, s{s_r}, 384")
    A.e(f"s_add_u32 s{s_t1}, s{s_t1}, s{s_t2}")
    for idx in range(3):
        A.e(f"s_add_u32 s{s_t2}, s{s_r}, {idx}")
        mod_small(A, s_t2, s_t2, 3)
        if idx: A.e(f"s_mov_b32 s{s_rr+idx-1}, s{s_t2}")
        A.e(f"s_mul_i32 s{s_t3}, s{s_t2}, {384*1152}")
        A.e(f"s_add_u32 s{s_sl+idx}, s{s_t1}, s{s_t3}")
        A.e(f"s_mul_i32 s{s_t3}, s{s_t2}, 24576")
        A.e(f"s_add_u32 s{s_hs+idx}, s{s_t0}, s{s_t3}")
    A.e(f"s_mul_i32 s{s_t0}, s{s_w}, {16*1152}")
    for i3 in range(3):
        A.e(f"v_add_u32 v{T}, {64*i3}, v1")
        A.e(f"v_mul_u32_u24 v{T+1}, 2731, v{T}")
        A.e(f"v_lshrrev_b32 v{T+1}, 16, v{T+1}")
        A.e(f"v_mul_u32_u24 v{T+2}, 24, v{T+1}")
        A.e(f"v_sub_u32 v{T+2}, v{T}, v{T+2}")
        A.e(f"v_lshlrev_b32 v{T+3}, 1, v{T+1}")
        A.e(f"v_and_b32 v{T+3}, 4, v{T+3}")
        A.e(f"v_xor_b32 v{T+2}, v{T+2}, v{T+3}")
        A.e(f"v_mul_u32_u24 v{T+1}, 1152, v{T+1}")
        A.e(f"v_lshl_add_u32 v{T+1}, v{T+2}, 4, v{T+1}")
        A.e(f"v_add_u32 v{T+1}, s{s_t0}, v{T+1}")
        for g in range(2):
            i = 3*g + i3
            A.e(f"v_add_u32 v{vW2D+i}, {hex((g*8*1152 - (i&3)*1024) & 0xffffffff)}, v{T+1}")
    A.e(f"v_lshrrev_b32 v{T}, 2, v1")
    A.e(f"v_and_b32 v{T}, 3, v{T}")
    A.e(f"v_lshrrev_b32 v{T+1}, 5, v1")
    A.e(f"v_lshl_add_u32 v{T+1}, v{T+1}, 2, v{T}")
    A.e(f"v_mul_u32_u24 v{T+1}, 384, v{T+1}")
    A.e(f"v_lshrrev_b32 v{T+2}, 4, v1")
    A.e(f"v_and_b32 v{T+2}, 1, v{T+2}")
    A.e(f"v_lshl_add_u32 v{T+1}, v{T+2}, 5, v{T+1}")
    A.e(f"v_and_b32 v{T+2}, 3, v1")
    A.e(f"v_lshl_add_u32 v{T+1}, v{T+2}, 3, v{T+1}")
    A.e(f"v_lshrrev_b32 v{T}, 1, v{T}")
    A.e(f"v_lshlrev_b32 v{T}, 6, v{T}")
    A.e(f"v_add_u32 v{vA2}, v{T+1}, v{T}")
    A.e(f"v_sub_u32 v{vA2+1}, v{T+1}, v{T}")
    for j in (1, 2):
        A.e(f"v_add_u32 v{vA2+2*j}, {j*2*SLOT}, v{vA2}")
        A.e(f"v_add_u32 v{vA2+2*j+1}, {j*2*SLOT}, v{vA2+1}")

def hreg(step):
    if step < 20: return f"v[{HS+4*step}:{HS+4*step+3}]"
    k = step - 20
    return f"a[{aH+4*k}:{aH+4*k+3}]"

def w2_dma_ops(gst, slot):
    k = gst - G0
    idx, pi = SEQ[k]
    tag = f"st{gst}"
    m0a = Op(f"s_add_u32 m0, s{s_w2l}, {slot*SLOT}", kind="salu")
    so = Op(f"s_add_u32 s{s_so}, s{s_sl+idx}, {pi*64*1152}", kind="salu")
    o = [m0a, so]
    for i in range(4):
        o.append(Op(f"buffer_load_dwordx4 v{vW2D+i}, s[{sW2}:{sW2+3}], s{s_so} offen offset:{i*1024} lds", kind="vmem", tag=tag, deps=[(m0a, 2)]))
    m0b = Op(f"s_add_u32 m0, s{s_w2l}, {slot*SLOT + 4096}", kind="salu")
    o.append(m0b)
    for i in range(4, 6):
        o.append(Op(f"buffer_load_dwordx4 v{vW2D+i}, s[{sW2}:{sW2+3}], s{s_so} offen offset:{(i&3)*1024} lds", kind="vmem", tag=tag, deps=[(m0b, 2)]))
    return o
def h_load_ops(k):
    idx, pi = SEQ[k]
    so = Op(f"s_add_u32 s{s_t2}, s{s_hs+idx}, {pi*4096}", kind="salu")
    o = [so]
    for j in range(4):
        o.append(Op(f"buffer_load_dwordx4 {hreg(4*k+j)}, v{vL16}, s[{sWS}:{sWS+3}], s{s_t2} offen offset:{j*1024}{SC}", kind="vmem", tag=f"st{G0+k}"))
    return o
def flagcopy_ops(counter=False):
    m = Op(f"s_mul_i32 s{s_val}, s{s_w}, 768\n    s_add_u32 m0, s{s_val}, {M_FL}\n    s_and_b32 s{s_val}, s{s_fi}, 0xffffffc0", kind="salu", cost=12)
    o = [m, Op(f"buffer_load_dword v{vFL}, s[{sWS}:{sWS+3}], s{s_val} offen lds{SC}", kind="vmem", tag="fc", deps=[(m, 1)])]
    if counter:
        m2 = Op(f"s_mul_i32 s{s_val}, s{s_w}, 772\n    s_add_u32 m0, s{s_val}, {M_FL + 256}\n    s_nop 0", kind="salu", cost=12)
        o += [m2, Op(f"buffer_load_dword v{vFL}, s[{sDBG}:{sDBG+3}], 0 offen lds{SC}", kind="vmem", tag="fc", deps=[(m2, 1)])]
    return o

def poll_sub(A):
    A.label("L_poll")
    A.e(f"s_mov_b32 s{s_t0}, 0x20000")
    A.e(f"v_and_b32 v{TMP2}, 3, v1")
    A.e(f"v_lshlrev_b32 v{TMP2}, 4, v{TMP2}")
    A.label("L_poll_loop")
    A.e("s_sleep 4")
    A.e(f"s_and_b32 s{s_val}, s{s_fi}, 0xffffffcf")
    A.e(f"buffer_load_dword v{TMP2+1}, v{TMP2}, s[{sWS}:{sWS+3}], s{s_val} offen{SC}")
    A.e("s_waitcnt vmcnt(0)")
    A.e(f"v_readlane_b32 s{s_val}, v{TMP2+1}, s{s_lane}")
    A.e(f"s_sub_u32 s{s_t0}, s{s_t0}, 1")
    A.e("s_cbranch_scc1 L_poll_out")
    A.e(f"s_cmp_lt_u32 s{s_val}, s{s_need}")
    A.e("s_cbranch_scc1 L_poll_loop")
    A.label("L_poll_out")
    A.e(f"s_setpc_b64 s[{s_ret}:{s_ret+1}]")
    A.label("L_pollc")
    A.e(f"s_mov_b32 s{s_t0}, 0x20000")
    A.label("L_pollc_loop")
    A.e("s_sleep 2")
    A.e(f"buffer_load_dword v{TMP2+1}, off, s[{sDBG}:{sDBG+3}], 0{SC}")
    A.e("s_waitcnt vmcnt(0)")
    A.e(f"v_readfirstlane_b32 s{s_val}, v{TMP2+1}")
    A.e(f"s_sub_u32 s{s_t0}, s{s_t0}, 1")
    A.e("s_cbranch_scc1 L_pollc_out")
    A.e(f"s_cmp_lt_u32 s{s_val}, 256")
    A.e("s_cbranch_scc1 L_pollc_loop")
    A.label("L_pollc_out")
    A.e(f"s_setpc_b64 s[{s_ret}:{s_ret+1}]")
TMP2 = vXR
vFC = vXR + 2

def check(A, lane_sgpr, need):
    lab = A.newlabel("L_chk")
    A.e(f"v_readlane_b32 s{s_val}, v{vFC}, s{lane_sgpr}")
    A.e(f"s_movk_i32 s{s_need}, {need}")
    A.e(f"s_mov_b32 s{s_lane}, s{lane_sgpr}")
    A.e(f"s_cmp_ge_u32 s{s_val}, {need}")
    A.e(f"s_cbranch_scc1 {lab}")
    A.e(f"s_call_b64 s[{s_ret}:{s_ret+1}], L_poll")
    A.label(lab)
def check_counter(A):
    lab = A.newlabel("L_chk")
    A.e(f"v_readfirstlane_b32 s{s_val}, v{vFC+1}")
    A.e("s_nop 0")
    A.e(f"s_cmp_ge_u32 s{s_val}, 256")
    A.e(f"s_cbranch_scc1 {lab}")
    A.e(f"s_call_b64 s[{s_ret}:{s_ret+1}], L_pollc")
    A.label(lab)

def a2_read(A, j, ring):
    step, t = j // 6, j % 6
    k, ks = step // 4, step % 4
    slot = ring.slot[G0 + k]
    buf = aR + 4*(j % 12)
    for rd in range(2):
        A.ds(f"ds_read_b64_tr_b16 a[{buf+2*rd}:{buf+2*rd+1}], v{vA2+2*(slot//2)+(t&1)} offset:{(slot%2)*SLOT + (16*ks+8*rd)*384 + t*64}", f"f{j}")

LEAD = 7
def tail_hook(A, gs, ring):
    k = gs - (36*NP - 4)
    for j in (2*k, 2*k + 1):
        if j < LEAD: a2_read(A, j, ring)

def pre_p2_ops():
    o = [Op(f"v_lshlrev_b32 v{vFL}, 2, v1"),
         Op(f"v_and_b32 v{vFA}, 3, v1"),
         Op(f"v_lshlrev_b32 v{vFA}, 4, v{vFA}"),
         Op(f"s_mul_i32 s{s_val}, s{s_w}, 772\n    s_add_u32 s{s_val}, s{s_val}, {M_FL}\n    v_add_u32 v{vFA}, s{s_val}, v{vFA}", cost=12)]
    for i in range(1, 4): o[i].deps.append((o[i-1], 1))
    o.append(Op(f"v_mov_b32 v{vFC}, 0"))
    o.append(Op(f"s_mul_i32 s{s_val}, s{s_w}, 768\n    s_add_u32 s{s_val}, s{s_val}, {M_FL}\n    v_add_u32 v{vFC+1}, s{s_val}, v{vFL}\n    ds_write2st64_b32 v{vFC+1}, v{vFC}, v{vFC} offset0:0 offset1:1", cost=16, kind="ds", tag="fz", deps=[(o[0], 1), (o[4], 1)]))
    return o

def p2_main(A, ring, memq, valq, stq):
    N = 432
    checks = {41: [("c",), (s_rr, 4)], 137: [(s_rr, 5)], 161: [(s_rr+1, 5)], 281: [(s_rr, 6), (s_rr+1, 6)]}
    flags = {41: ("h4", 5), 113: ("h5", 6)}
    hnext = 5
    A.wait_lg("f0")
    for j in range(N):
        if j == 0: stamp(A, 4)
        if j == 120: stamp(A, 5)
        step, t = j // 6, j % 6
        k = step // 4
        acc = acc2(t)
        buf = aR + 4*(j % 12)
        cin = "0" if step == 0 else f"v[{acc}:{acc+15}]"
        if step == 16 and t == 0: assert not valq.q, "mish(4) not finished"
        A.e(f"v_mfma_f32_32x32x16_bf16 v[{acc}:{acc+15}], a[{buf}:{buf+3}], {hreg(step)}, {cin}")
        n0 = A.n
        if (j + LEAD) % 24 == 0 and k + 1 < 18:
            tags = [f"st{G0+k+1}"]
            if j in flags: tags.append(flags[j][0])
            A.wait_vm(tags); A.e("s_barrier")
            if j in flags: stq.q = flag_store_ops(flags[j][1]) + stq.q
            ring.release(G0 + k - 1)
            for c in checks.get(j, []):
                assert not any(o.tag == "fc" for o in memq.q)
                A.wait_lg("fcr")
                if c[0] == "c": check_counter(A)
                else: check(A, *c)
            if j + 24 in checks:
                assert not memq.q
                memq.add(flagcopy_ops(counter=(j + 24 == 41)))
            for g in ring.alloc(G0 + 18): memq.add(w2_dma_ops(g, ring.slot[g]))
            while hnext <= k + 5 and hnext < 18:
                memq.add(h_load_ops(hnext)); hnext += 1
        if j % 3 == 0:
            A.wait_lg([f"f{j+1}", f"f{j+2}", f"f{j+3}"])
        if j + LEAD < N: a2_read(A, j + LEAD, ring)
        if j + 4 in checks:
            A.ds(f"ds_read_b32 v{vFC}, v{vFA}", "fcr")
            if j + 4 == 41: A.ds(f"ds_read_b32 v{vFC+1}, v{vFA} offset:256", "fcr")
        used = 4*(A.n - n0)
        bud = max(0, 24 - used)
        u = stq.fill(min(bud, 8), window=1)
        if u == 0:
            while memq.q and u < bud and memq.ready(memq.q[0]):
                o = memq.q[0]
                if o.kind == "vmem" and j % 2 == 1 and len(memq.q) < 20: break
                memq.q.pop(0); memq.emit(o); u += o.cost
                if o.kind == "vmem": break
        if valq.q:
            b2 = max(0, bud - u)
            if valq.total() > 11*(92 - j): b2 += 4
            if j >= 92: b2 = 1000
            fill_odd(valq, b2)
    assert not memq.q and not stq.q and not valq.q

PKR = [TMP + 4*i for i in range(8)] + [MT + 4*i for i in range(4)]
def tail(A, ring):
    OWN = ring.slot[G0 + 15]*SLOT; YT = OWN + 12288
    A.c("---- tail: export partials")
    stamp(A, 6)
    A.e(f"s_mul_i32 s{s_pb}, s{s_m}, 3")
    A.e(f"s_add_u32 s{s_pb}, s{s_pb}, s{s_r}")
    A.e(f"s_lshl_b32 s{s_pb}, s{s_pb}, 2")
    A.e(f"s_add_u32 s{s_t0}, s{s_pb}, s{s_w}")
    A.e(f"s_lshl_b32 s{s_t0}, s{s_t0}, 2")
    A.e(f"s_add_u32 s{s_t0}, s{s_t0}, s{s_kq}")
    A.e(f"s_mul_i32 s{s_t0}, s{s_t0}, 12288")
    A.e(f"s_add_u32 s{s_t0}, s{s_t0}, {WS_P}")
    A.e(f"s_add_u32 s{s_pb}, s{s_pb}, s{s_kq}")
    A.e(f"s_mul_i32 s{s_pb}, s{s_pb}, 49152")
    A.e(f"s_mul_i32 s{s_t1}, s{s_w}, 3072")
    A.e(f"s_add_u32 s{s_pb}, s{s_pb}, s{s_t1}")
    A.e(f"s_add_u32 s{s_pb}, s{s_pb}, {WS_P}")
    for p in range(12):
        t, kk = p // 2, p % 2
        R = PKR[p]; a = acc2(t) + 8*kk
        for d in range(4): A.e(f"v_cvt_pk_bf16_f32 v{R+d}, v{a+2*d}, v{a+2*d+1}")
        if p:
            Q = PKR[p-1]
            A.e(f"v_permlane32_swap_b32 v{Q}, v{Q+2}"); A.e(f"v_permlane32_swap_b32 v{Q+1}, v{Q+3}")
    A.nop(2)
    Q = PKR[11]
    A.e(f"v_permlane32_swap_b32 v{Q}, v{Q+2}"); A.e(f"v_permlane32_swap_b32 v{Q+1}, v{Q+3}")
    A.e(f"s_cmp_eq_u32 s{s_w}, s{s_kq}")
    A.e("s_cbranch_scc1 L_own")
    for p in range(12):
        if p % 4 == 0 and p: A.e(f"s_add_u32 s{s_t0}, s{s_t0}, 4096")
        A.e(f"buffer_store_dwordx4 v[{PKR[p]}:{PKR[p]+3}], v{vL16}, s[{sWS}:{sWS+3}], s{s_t0} offen offset:{(p%4)*1024}{SC}")
    A.e(f"v_mov_b32 v{vS}, {FDONE}")
    A.e("s_waitcnt vmcnt(0)")
    A.e(f"buffer_store_dword v{vS}, off, s[{sWS}:{sWS+3}], s{s_fi}{SC}")
    A.e("s_branch L_own_done")
    A.label("L_own")
    A.e(f"v_add_u32 v{vS}, {OWN}, v{vL16}")
    for p in range(12):
        A.e(f"ds_write_b128 v{vS}, v[{PKR[p]}:{PKR[p]+3}] offset:{p*1024}")
    A.e("s_waitcnt lgkmcnt(0)")
    A.label("L_own_done")
    A.vm = []; A.lg = []
    A.c("---- poll y flags (22 conv WGs x 4 waves), then a^T DMA")
    V = 32
    A.e(f"v_min_u32 v{V}, 21, v1")
    A.e(f"v_lshlrev_b32 v{V}, 6, v{V}")
    A.e(f"s_mul_i32 s{s_t1}, s{s_r}, {21*64}")
    A.e(f"s_add_u32 s{s_t1}, s{s_t1}, {WS_F + 48}")
    A.e(f"s_mov_b32 s{s_t0}, 0x20000")
    A.e(f"v_and_b32 v{V+8}, 31, v1")
    A.label("L_py")
    A.e(f"buffer_load_dwordx4 v[{V+4}:{V+7}], v{V}, s[{sWS}:{sWS+3}], s{s_t1} offen{SC}")
    A.e("s_waitcnt vmcnt(0)")
    A.e(f"v_min_u32 v{V+4}, v{V+4}, v{V+5}")
    A.e(f"v_min3_u32 v{V+4}, v{V+4}, v{V+6}, v{V+7}")
    A.e(f"v_cmp_gt_u32 vcc, {FDONE}, v{V+4}")
    A.e(f"s_sub_u32 s{s_t0}, s{s_t0}, 1")
    A.e("s_cbranch_scc1 L_py_out")
    A.e("s_sleep 2")
    A.e("s_cbranch_vccnz L_py")
    A.label("L_py_out")
    A.e(f"v_lshrrev_b32 v{V+1}, 2, v1")
    A.e(f"v_lshlrev_b32 v{V+1}, 12, v{V+1}")
    A.e(f"v_and_b32 v{V+2}, 3, v1")
    A.e(f"v_lshl_add_u32 v{V+1}, v{V+2}, 4, v{V+1}")
    A.e(f"s_mul_i32 s{s_t1}, s{s_r}, 192")
    A.e(f"s_mul_i32 s{s_t2}, s{s_w}, 48")
    A.e(f"s_add_u32 s{s_line}, s{s_t1}, s{s_t2}")
    A.e(f"s_lshl_b32 s{s_t1}, s{s_line}, 12")
    A.e(f"s_lshl_b32 s{s_upos}, s{s_m}, 7")
    A.e(f"s_lshl_b32 s{s_t2}, s{s_kq}, 5")
    A.e(f"s_add_u32 s{s_upos}, s{s_upos}, s{s_t2}")
    A.e(f"s_lshl_b32 s{s_t2}, s{s_upos}, 1")
    A.e(f"s_add_u32 s{s_t1}, s{s_t1}, s{s_t2}")
    A.e(f"s_add_u32 s{s_t1}, s{s_t1}, {WS_Y}")
    A.e(f"s_mul_i32 s{s_t2}, s{s_w}, 3072")
    for i in range(3):
        A.e(f"s_add_u32 m0, s{s_t2}, {YT + 1024*i}")
        A.e("s_nop 0")
        A.e(f"buffer_load_dwordx4 v{V+1}, s[{sWS}:{sWS+3}], s{s_t1} offen lds{SC}")
        if i < 2: A.e(f"s_add_u32 s{s_t1}, s{s_t1}, 65536")
    A.c("---- poll partial flags: producers (m,kq',nq) wave kq")
    A.e(f"v_and_b32 v{V}, 3, v1")
    A.e(f"v_cmp_eq_u32 s[{s_ret}:{s_ret+1}], s{s_kq}, v{V}")
    A.e(f"v_lshlrev_b32 v{V}, 6, v{V}")
    A.e(f"s_lshl_b32 s{s_t1}, s{s_m}, 8")
    A.e(f"s_lshl_b32 s{s_t0}, s{s_r}, 4")
    A.e(f"s_add_u32 s{s_t1}, s{s_t1}, s{s_t0}")
    A.e(f"s_lshl_b32 s{s_t0}, s{s_kq}, 2")
    A.e(f"s_add_u32 s{s_t1}, s{s_t1}, s{s_t0}")
    A.e(f"s_add_u32 s{s_t1}, s{s_t1}, {WS_F}")
    A.e(f"s_mov_b32 s{s_t0}, 0x20000")
    A.label("L_pp")
    A.e(f"buffer_load_dword v{V+4}, v{V}, s[{sWS}:{sWS+3}], s{s_t1} offen{SC}")
    A.e("s_waitcnt vmcnt(0)")
    A.e(f"v_cmp_gt_u32 vcc, {FDONE}, v{V+4}")
    A.e(f"s_sub_u32 s{s_t0}, s{s_t0}, 1")
    A.e("s_cbranch_scc1 L_pp_out")
    A.e(f"s_andn2_b64 vcc, vcc, s[{s_ret}:{s_ret+1}]")
    A.e("s_sleep 1")
    A.e("s_cbranch_vccnz L_pp")
    A.label("L_pp_out")
    PB = 48
    for q in range(3):
        A.e(f"s_cmp_le_u32 s{s_kq}, {q}")
        A.e(f"s_cselect_b32 s{s_t1}, 12288, 0")
        A.e(f"s_add_u32 s{s_t1}, s{s_t1}, s{s_pb}")
        if q < 2: A.e(f"s_add_u32 s{s_pb}, s{s_pb}, 12288")
        for i in range(3):
            A.vmem(f"buffer_load_dwordx4 v[{PB+12*q+4*i}:{PB+12*q+4*i+3}], v{vL16}, s[{sWS}:{sWS+3}], s{s_t1} offen offset:{1024*i}{SC}", "imp")
    A.e("s_barrier")
    OW, YA = 96, 112
    A.e(f"s_add_u32 s{s_t2}, s{s_t2}, {OWN}")
    A.e(f"v_add_u32 v{V+2}, s{s_t2}, v{vL16}")
    A.e(f"v_lshlrev_b32 v{V+9}, 2, v{V+8}")
    A.e(f"s_lshl_b32 s{s_t0}, s{s_kq}, 7")
    A.e(f"s_add_u32 s{s_t0}, s{s_t0}, {M_G}")
    A.e(f"v_add_u32 v{V+9}, s{s_t0}, v{V+9}")
    for i in range(3): A.ds(f"ds_read_b128 v[{OW+4*i}:{OW+4*i+3}], v{V+2} offset:{1024*i}", "own")
    A.ds(f"ds_read_b32 v{V+10}, v{V+9}", "own")
    A.e(f"v_lshrrev_b32 v{V+3}, 2, v1")
    A.e(f"v_and_b32 v{V+3}, 3, v{V+3}")
    A.e(f"v_lshrrev_b32 v{V+4}, 5, v1")
    A.e(f"v_lshl_add_u32 v{V+3}, v{V+4}, 3, v{V+3}")
    A.e(f"v_lshlrev_b32 v{V+3}, 6, v{V+3}")
    A.e(f"v_and_b32 v{V+5}, 16, v1")
    A.e(f"v_lshl_add_u32 v{V+3}, v{V+5}, 1, v{V+3}")
    A.e(f"v_and_b32 v{V+5}, 3, v1")
    A.e(f"v_lshl_add_u32 v{V+3}, v{V+5}, 3, v{V+3}")
    A.e(f"v_add_u32 v{V+3}, s{s_t2}, v{V+3}")
    for i in range(3):
        for rd in range(2):
            A.ds(f"ds_read_b64_tr_b16 v[{YA+4*i+2*rd}:{YA+4*i+2*rd+1}], v{V+3} offset:{12288 + 1024*i + 256*rd}", "ya")
    A.e(f"v_mul_u32_u24 v{V+8}, 1152, v{V+8}")
    A.e(f"v_lshl_add_u32 v{V+8}, v{V+4}, 4, v{V+8}")
    A.e(f"s_mul_i32 s{s_t1}, s{s_upos}, 1152")
    A.e(f"s_lshl_b32 s{s_t0}, s{s_line}, 1")
    A.e(f"s_add_u32 s{s_t1}, s{s_t1}, s{s_t0}")
    A.wait_all()
    S = 128
    for i in range(3):
        for d in range(4):
            srcs = [OW + 4*i + d] + [PB + 12*q + 4*i + d for q in range(3)]
            y = YA + 4*i + d
            lo, hi = S + 2*d, S + 2*d + 1
            A.e(f"v_lshlrev_b32 v{lo}, 16, v{srcs[0]}")
            A.e(f"v_and_b32 v{hi}, 0xffff0000, v{srcs[0]}")
            for sreg in srcs[1:]:
                A.e(f"v_lshlrev_b32 v{S+8}, 16, v{sreg}")
                A.e(f"v_and_b32 v{S+9}, 0xffff0000, v{sreg}")
                A.e(f"v_pk_add_f32 v[{lo}:{hi}], v[{lo}:{hi}], v[{S+8}:{S+9}]")
            A.e(f"v_lshlrev_b32 v{S+8}, 16, v{y}")
            A.e(f"v_and_b32 v{S+9}, 0xffff0000, v{y}")
            A.e(f"v_pk_add_f32 v[{S+8}:{S+9}], v[{S+8}:{S+9}], v[{lo}:{hi}] neg_lo:[0,1] neg_hi:[0,1]")
            A.e(f"v_pk_fma_f32 v[{lo}:{hi}], v[{S+8}:{S+9}], v[{V+10}:{V+11}], v[{lo}:{hi}] op_sel_hi:[1,0,1]")
            A.e(f"v_cvt_pk_bf16_f32 v{S+12+4*i+d}, v{lo}, v{hi}")
        A.vmem(f"buffer_store_dwordx4 v[{S+12+4*i}:{S+15+4*i}], v{V+8}, s[{sT0}:{sT0+3}], s{s_t1} offen offset:{32*i}", "o")
```

```python
import os
from asmlib import *
NAME = "gated_mix__ssm_conv_s4d__dense_activation_mish__prompt"
L_, D_, F_ = 2048, 576, 4608
KA = dict(u=0, loga=8, aim=16, cre=24, cim=32, logdt=40, dskip=48, bx=56, w1=64, b1=72, w2=80, gw=88, out=96, dbg=104, ws=112)
WS_H    = 0x0000000
WS_UT   = 0x1200000
UT_PITCH = 4224
WS_G    = 0x1480000
WS_Y    = 0x1700000
WS_P    = 0x1A00000
WS_GATE = 0x2400000
WS_BYTES = 0x10000000
SLOT = 24576
XRING = 3*SLOT
MISC = 3*SLOT + 81920
LDS_BYTES = 163840
LOG2E = 1.4426950408889634

sX, sW1, sWS, sB1, sW2, sT0, sT1 = 16, 20, 24, 28, 32, 36, 40
s_w, s_m, s_kq, s_r, s_f0, s_wl, s_so, s_hb, s_log2e, s_t0, s_t1, s_t2, s_t3, s_line = 44, 45, 46, 47, 48, 49, 50, 51, 52, 53, 54, 55, 56, 57

def decode_ids(A):
    A.e("s_and_b32 s3, s2, 7")
    A.e(f"s_lshr_b32 s{s_kq}, s3, 1")
    A.e("s_and_b32 s3, s3, 1")
    A.e("s_lshl_b32 s3, s3, 3")
    A.e(f"s_lshr_b32 s{s_m}, s2, 5")
    A.e(f"s_add_u32 s{s_m}, s{s_m}, s3")
    A.e(f"s_lshr_b32 s{s_r}, s2, 3")
    A.e(f"s_and_b32 s{s_r}, s{s_r}, 3")
    A.e("v_lshrrev_b32 v2, 6, v0")
    A.e("v_and_b32 v1, 63, v0")
    A.e(f"v_readfirstlane_b32 s{s_w}, v2")
def ids(b):
    xcd = b & 7; j = b >> 3
    return dict(kq=xcd >> 1, m=(xcd & 1)*8 + (j >> 2), r=j & 3)

WS_TS = 0x2600000
STAMPS = False
def stamp(A, i):
    if STAMPS: A.e(f"{'s_memtime' if STAMPS == 'c' else 's_memrealtime'} s[{86+2*i}:{87+2*i}]")
def stamp_flush(A, kidx, n):
    if not STAMPS: return
    A.e("s_waitcnt lgkmcnt(0)")
    A.e("v_lshrrev_b32 v2, 6, v0")
    A.e("v_lshlrev_b32 v2, 6, v2")
    A.e(f"s_lshl_b32 s3, s2, 8")
    A.e(f"s_add_u32 s3, s3, {WS_TS + kidx*65536}")
    for i in range(n):
        A.e(f"v_mov_b32 v3, s{86+2*i}")
        A.e(f"buffer_store_dword v3, v2, s[{sWS}:{sWS+3}], s3 offen offset:{4*i}")
    A.e("s_waitcnt vmcnt(0)")

EXP = set(os.environ.get('EXP', '').split(','))
```

```python
import sys, os
from common import *
import p1f, p2f, convf
import kgen2 as kgenf
from p1f import *

def fused():
    A = Asm()
    K = NAME + "_kernel"
    A.raw(kernel_head(K))
    stamp(A, 0)
    A.e("s_cmp_ge_u32 s2, 256")
    A.e("s_cbranch_scc1 L_end")
    for r, n in ((sX, "u"), (p_w1, "w1"), (sWS, "ws"), (sW2, "w2"), (sDBG, "dbg")):
        A.e(f"s_load_dwordx2 s[{r}:{r+1}], s[0:1], {KA[n]}")
    setup_common(A)
    A.e(f"v_mov_b32 v{vS}, 0")
    A.e("s_waitcnt lgkmcnt(0)")
    for r, n in ((sX, L_*D_*2), (sWS, WS_BYTES), (sW2, D_*F_*2), (sDBG, 256)):
        A.e(f"s_mov_b32 s{r+2}, {hex(n)}"); A.e(f"s_mov_b32 s{r+3}, 0x00020000")
    A.e(f"s_mov_b32 s{p_ws}, s{sWS}"); A.e(f"s_mov_b32 s{p_ws+1}, s{sWS+1}")
    A.vmem(f"buffer_store_dword v{vS}, off, s[{sWS}:{sWS+3}], s{s_fi}{SC}", "fz")
    A.e(f"s_cmp_eq_u32 s{s_r}, 3")
    A.e("s_cbranch_scc1 L_conv")
    if 'kgst' in EXP: A.e("s_endpgm")
    A.e(f"s_load_dwordx2 s[{sT0}:{sT0+1}], s[0:1], {KA['b1']}")
    A.e(f"s_load_dwordx2 s[{sT1}:{sT1+1}], s[0:1], {KA['gw']}")
    A.e(f"s_load_dwordx2 s[74:75], s[0:1], {KA['out']}")
    p1_setup(A, NP)
    A.e(f"s_mov_b32 s{sT0+2}, {F_*2}"); A.e(f"s_mov_b32 s{sT0+3}, 0x00020000")
    A.e(f"s_mov_b32 s{sT1+2}, {D_*2}"); A.e(f"s_mov_b32 s{sT1+3}, 0x00020000")
    A.e("s_waitcnt lgkmcnt(0)")
    stamp(A, 1)
    p1_first_loads(A, gate=True)
    A.e(f"s_mov_b32 s{sT0}, s74"); A.e(f"s_mov_b32 s{sT0+1}, s75"); A.e(f"s_mov_b32 s{sT0+2}, {L_*D_*2}")
    p1_setup2(A)
    p2f.p2_setup(A)
    A.e(f"s_mul_i32 s{s_line}, s{s_kq}, 3")
    A.e(f"s_add_u32 s{s_line}, s{s_line}, s{s_r}")
    A.e(f"s_add_u32 s{s_upos}, s{s_line}, 9")
    A.e(f"s_sub_u32 s{s_upos}, s{s_upos}, s{s_rho}")
    mod_small(A, s_upos, s_upos, 9)
    A.e(f"s_cmp_lt_u32 s{s_line}, 9")
    A.e(f"s_cselect_b32 s{s_upos}, s{s_upos}, 99")
    def hook(A_, gs, ring): p2f.tail_hook(A_, gs, ring)
    ring, memq, valq, stq = p1_main(A, NP, True, True, True, 36, p2f.w2_dma_ops, hook, pre=p2f)
    p2f.p2_main(A, ring, memq, valq, stq)
    p2f.tail(A, ring)
    A.wait_all()
    stamp(A, 7)
    stamp_flush(A)
    A.e("s_endpgm")
    A.label("L_conv")
    A.vm = ["fz"]; A.lg = []
    kgenf.kgen(A)
    if 'kgst' in EXP:
        stamp(A, 7); stamp_flush(A); A.e("s_endpgm")
    stamp(A, 1)
    convf.conv_all(A, ldflag=SC, stflag=SC)
    A.e(f"v_mov_b32 v{vS}, {FDONE}")
    A.e("s_waitcnt vmcnt(0)")
    A.e(f"buffer_store_dword v{vS}, off, s[{sWS}:{sWS+3}], s{s_fi}{SC}")
    A.wait_all()
    stamp(A, 7)
    stamp_flush(A)
    A.label("L_end")
    A.e("s_endpgm")
    ut_sub(A)
    p2f.poll_sub(A)
    kgenf.tables(A)
    return A.text(), KD.format(name=K, vgpr=512, accum=256)

HDR = open("cdna_kernels/" + NAME + ".s.ref").read().split("; Override launch")[0]
if __name__ == "__main__":
    t, kd = fused()
    s = HDR + f"; @launch grid=(256,1,1) block=(256,1,1) lds={LDS_BYTES}\n" + '.amdgcn_target "amdgcn-amd-amdhsa--gfx950"\n.text\n' + t + '.section .rodata,"a"\n.p2align 6\n' + kd
    open(sys.argv[1], "w").write(s)
```

```python
import os
from asmlib import *
NAME = "gated_mix__ssm_conv_s4d__dense_activation_mish__prompt"
L_, D_, F_ = 2048, 576, 4608
KA = dict(u=0, loga=8, aim=16, cre=24, cim=32, logdt=40, dskip=48, bx=56, w1=64, b1=72, w2=80, gw=88, out=96, dbg=104, ws=112)
WS_H    = 0x0000000
WS_UT   = 0x1200000
UT_PITCH = 4224
WS_G    = 0x2800000
WS_Y    = 0x1700000
WS_P    = 0x1A00000
WS_F    = 0x2400000
WS_TS   = 0x2600000
WS_BYTES = 0x10000000
SLOT = 24576
XRING = 3*SLOT
MISC = 3*SLOT + 81920
M_BIAS, M_GW, M_FL = MISC, MISC + 2048, MISC + 4096
WS_GT = 0x2420000
LDS_BYTES = 163840
LOG2E = 1.4426950408889634
EXP = set(os.environ.get('EXP', '').split(','))
STAMPS = os.environ.get('STAMPS', '')
SC = " sc1"

sX, sW1, sWS, sW2, sT0, sT1, sDBG = 4, 8, 12, 16, 20, 24, 28
p_w1, p_ws = 32, 34
s_w, s_m, s_kq, s_r, s_m7, s_rho, s_fi = 36, 37, 38, 39, 40, 41, 42
s_t0, s_t1, s_t2, s_t3, s_so, s_hb, s_log2e, s_pc, s_wl, s_upos, s_line = 43, 44, 45, 46, 47, 48, 49, 50, 51, 52, 53
s_ret = 54
s_rw = 56
s_loc = 66
vXD, vXR, vWD, vAR, vBI, vL16, vW2D, vA2, vGW, vS = 2, 4, 8, 10, 16, 17, 18, 24, 30, 31
ACC, TMP, BIAS, MT, HS, ACC3 = 32, 64, 96, 128, 144, 224

def ids(b):
    xcd = b & 7; j = b >> 3
    return dict(kq=xcd >> 1, m=(xcd & 1)*8 + (j >> 2), r=j & 3)
def stamp(A, i):
    if STAMPS: A.e(f"{'s_memtime' if STAMPS == 'c' else 's_memrealtime'} s[{86+2*i}:{87+2*i}]")
def stamp_flush(A, n=8):
    if not STAMPS: return
    A.e("s_waitcnt lgkmcnt(0)")
    A.e(f"s_lshl_b32 s3, s2, 8")
    A.e(f"s_lshl_b32 s{s_t0}, s{s_w}, 6")
    A.e(f"s_add_u32 s3, s3, s{s_t0}")
    A.e(f"s_add_u32 s3, s3, {WS_TS}")
    A.e("v_mov_b32 v2, 0")
    for i in range(n):
        A.e(f"v_mov_b32 v3, s{86+2*i}")
        A.e(f"buffer_store_dword v3, v2, s[{sWS}:{sWS+3}], s3 offen offset:{4*i}")
    A.e("s_waitcnt vmcnt(0)")
def emit_now(A, ops):
    F = Filler(A)
    for o in ops:
        while not F.ready(o): A.e("s_nop 0")
        F.emit(o)
def mod_small(A, dst, src, n):
    A.e(f"s_cmp_ge_u32 s{src}, {n}")
    A.e(f"s_cselect_b32 s{s_t3}, {n}, 0")
    A.e(f"s_sub_u32 s{dst}, s{src}, s{s_t3}")
M_G = MISC + 7168
NP = 6
F_P, F_U, F_Y = WS_F + 0x8000, WS_F + 0x10000, WS_F + 0x11000
def flag_store_ops(ev):
    mv = Op(f"v_mov_b32 v{vS}, {ev+1}", kind="valu")
    st = Op(f"s_add_u32 s{s_t1}, s{s_fi}, {ev*8192}\n    buffer_store_dword v{vS}, off, s[{sWS}:{sWS+3}], s{s_t1}{SC}", kind="vmem", tag="flag", cost=8, deps=[(mv, 1)])
    return [mv, st]

ROT = 'rot' in EXP
```

```python
from common import *
import kc4
from kc4 import SU, SR, WREG, RA_OFF, RB_OFF, U_OFF, WS_R9, s_ch0, s_lb, sU
vT = 27
s_ch, s_rd, s_yo, s_q = 60, 61, 63, 64
s_wsl, s_wsh = p_ws, p_ws + 1
vUD, vRD, vB, vA, vYW, vYR, vBl = 4, 5, 6, 7, 8, 9, 10
CACC, CA, CBm8, CP = 32, 64, 96, 100

def breg(rho):
    if rho == -8: return f"v[{CBm8}:{CBm8+3}]"
    k = rho + 7
    return f"a[{4*k}:{4*k+3}]"

def set_srds(A):
    for srd, pitch, off, n in ((sU, UT_PITCH, WS_UT + 128 - 416, 4512),):
        A.e(f"s_mul_i32 s{s_t1}, s{s_ch}, {pitch}")
        A.e(f"s_add_u32 s{s_t1}, s{s_t1}, {off}")
        A.e(f"s_add_u32 s{srd}, s{s_wsl}, s{s_t1}")
        A.e(f"s_addc_u32 s{srd+1}, s{s_wsh}, 0")
        A.e(f"s_and_b32 s{srd+1}, s{srd+1}, 0xffff")
        A.e(f"s_mov_b32 s{srd+2}, {n}")
        A.e(f"s_mov_b32 s{srd+3}, 0x00020000")

def u_dma_ops(flag=""):
    o = []
    for a0 in range(4):
        m = Op(f"s_add_u32 m0, s{s_lb}, {U_OFF + a0*SU}", kind="salu")
        so = Op(f"s_mov_b32 s{s_so}, {4*a0 + 4}", kind="salu")
        o += [m, so]
        for i in range(4):
            o.append(Op(f"buffer_load_dwordx4 v{vUD if i == 0 else vL16}, s[{sU}:{sU+3}], s{s_so} offen offset:{i*1024} lds{flag}", kind="vmem", tag="u", deps=[(m, 2)]))
    o.append(Op("s_mov_b32 exec_hi, 0", kind="salu"))
    for a0 in range(4):
        m = Op(f"s_add_u32 m0, s{s_lb}, {U_OFF + a0*SU + 4096}", kind="salu")
        so = Op(f"s_mov_b32 s{s_so}, {4*a0 + 4 + 4096}", kind="salu")
        o += [m, so, Op(f"buffer_load_dwordx4 v{vL16}, s[{sU}:{sU+3}], s{s_so} offen lds{flag}", kind="vmem", tag="u", deps=[(m, 2)])]
    o.append(Op("s_mov_b64 exec, -1", kind="salu"))
    return o
def r9_op():
    t = ["s_cmp_eq_u32 s66, 0", "s_cbranch_scc1 L_r9skip", f"s_mul_i32 s{s_so}, s{s_ch0}, 1024", f"s_add_u32 s{s_so}, s{s_so}, {WS_R9}"]
    for k in range(9):
        if k % 4 == 0:
            t.append(f"s_add_u32 m0, s{s_lb}, {RA_OFF + 1024*k}")
            t.append(f"s_add_u32 s{s_so}, s{s_so}, {4096 if k else 0}")
        if k == 8: t.append("s_mov_b32 exec_hi, 0xffff")
        t.append(f"buffer_load_dwordx4 v{vL16}, s[{sWS}:{sWS+3}], s{s_so} offen offset:{1024*(k%4)} lds")
    t += ["s_mov_b64 exec, -1", "L_r9skip:", "s_nop 0"]
    return Op("\n    ".join(t), kind="salu")

def conv_setup(A):
    A.c("---- conv setup")
    T = vT
    A.e(f"s_add_u32 s{s_ch}, s{s_ch0}, s{s_w}")
    A.e(f"s_add_u32 s{s_rd}, s{s_lb}, {RA_OFF}")
    A.e(f"v_bfrev_b32 v{vUD}, 1")
    A.e("v_cmp_le_u32 vcc, 25, v1")
    A.nop(2)
    A.e(f"v_cndmask_b32 v{vUD}, v{vUD}, v{vL16}, vcc")
    A.e(f"v_lshrrev_b32 v{T}, 4, v1")
    A.e(f"v_and_b32 v{T+1}, 3, v1")
    A.e(f"v_lshrrev_b32 v{T+2}, 2, v1")
    A.e(f"v_and_b32 v{T+2}, 3, v{T+2}")
    A.e(f"v_mul_u32_u24 v{vB}, {SU}, v{T+1}")
    A.e(f"v_lshl_add_u32 v{vB}, v{T+2}, 7, v{vB}")
    A.e(f"v_lshl_add_u32 v{vB}, v{T}, 4, v{vB}")
    A.e(f"s_add_u32 s{s_t0}, s{s_lb}, {U_OFF}")
    A.e(f"v_add_u32 v{vB}, s{s_t0}, v{vB}")
    A.e(f"v_lshlrev_b32 v{vYW}, 5, v{T}")
    A.e(f"v_lshl_add_u32 v{vYW}, v{T+1}, 2, v{vYW}")
    A.e(f"v_lshl_add_u32 v{vYW}, v{T+2}, 7, v{vYW}")
    A.e(f"v_add_u32 v{vYW}, s{s_rd}, v{vYW}")
    A.e(f"v_add_u32 v{vYR}, s{s_rd}, v{vL16}")
    A.e(f"v_and_b32 v{T+1}, 1, v1")
    A.e(f"v_lshrrev_b32 v{T+2}, 1, v1")
    A.e(f"v_and_b32 v{T+2}, 7, v{T+2}")
    A.e(f"v_mul_u32_u24 v{vA}, {SR}, v{T+1}")
    A.e(f"v_sub_u32 v{T}, v{T}, v{T+2}")
    A.e(f"v_lshl_add_u32 v{vA}, v{T}, 4, v{vA}")
    A.e(f"s_add_u32 s{s_t0}, s{s_rd}, 112")
    A.e(f"v_add_u32 v{vA}, s{s_t0}, v{vA}")

def y_out(A, tiles, nacc, flag=""):
    pass

def conv_round(A, ldflag="", stflag=""):
    memq = Filler(A)
    def rdA(q): A.ds(f"ds_read_b128 v[{CA+4*(q%8)}:{CA+4*(q%8)+3}], v{vA} offset:{4096-64*q}", f"A{q}")
    def rdB(rho): A.ds(f"ds_read_b128 {breg(rho)}, v{vB} offset:{64*(rho+8)}", f"B{rho}")
    seq = [(q, j) for q in range(65) for j in range(max(0, -((8-q)//8)), 8)]
    assert len(seq) == 296
    reads = []
    seenB = set();
    for (q, j) in seq:
        if ("A", q) not in seenB: reads.append(("A", q)); seenB.add(("A", q))
        if ("B", 8*j-q) not in seenB: reads.append(("B", 8*j-q)); seenB.add(("B", 8*j-q))
    first_use = {}
    for i, (q, j) in enumerate(seq):
        first_use.setdefault(("A", q), i); first_use.setdefault(("B", 8*j-q), i)
    last_useA = {}
    for i, (q, j) in enumerate(seq): last_useA[q] = i
    ri = 0
    def issue(upto_use, cur, maxn):
        nonlocal ri
        n = 0
        while ri < len(reads) and n < maxn and first_use[reads[ri]] <= upto_use:
            k, x = reads[ri]
            if k == "A" and x >= 8 and last_useA[x-8] >= cur: break
            (rdA if k == "A" else rdB)(x); ri += 1; n += 1
        return n
    issue(9, 0, 12)
    started = set()
    u_free = False
    for i, (q, j) in enumerate(seq):
        need = [f"A{q}", f"B{8*j-q}"]
        if A._cnt(A.lg, need) >= 0:
            ahead = [f"A{seq[k][0]}" for k in range(i, min(i+3, 296))] + [f"B{8*seq[k][1]-seq[k][0]}" for k in range(i, min(i+3, 296))]
            A.wait_lg(ahead)
        assert ("A", q) not in reads[ri:] and ("B", 8*j-q) not in reads[ri:]
        acc = CACC + 4*j
        cin = f"v[{acc}:{acc+3}]" if j in started else "0"
        started.add(j)
        A.e(f"v_mfma_f32_16x16x32_bf16 v[{acc}:{acc+3}], v[{CA+4*(q%8)}:{CA+4*(q%8)+3}], {breg(8*j-q)}, {cin}")
        n = issue(i + 12, i + 1, 2)
        if not u_free and all(("B", r) not in reads[ri:] for r in range(-8, 57)) and A._cnt(A.lg, [f"B{r}" for r in range(-8, 57)]) < 0:
            u_free = True
            memq.add(NEXT(A, ldflag))
        if n < 2 and u_free:
            if memq.q and memq.q[0].txt.startswith(("s_mov_b64 exec, 0x", "s_mov_b32 exec_hi")):
                while True:
                    o = memq.q.pop(0)
                    while not memq.ready(o): A.e("s_nop 0")
                    memq.emit(o)
                    if o.txt == "s_mov_b64 exec, -1": break
                A.nop(1)
            else:
                k = 0
                while memq.q and k < 2 - n and not memq.q[0].txt.startswith(("s_mov_b64 exec, 0x", "s_mov_b32 exec_hi")) and memq.ready(memq.q[0]):
                    memq.emit(memq.q.pop(0)); k += 1
    assert not memq.q
    A.c("---- y out")
    A.nop(8)
    for j in range(8):
        for e in range(2):
            r = CP + (2*j + e)
            A.e(f"v_cvt_pk_bf16_f32 v{r}, v{CACC+4*j+2*e}, v{CACC+4*j+2*e+1}")
            A.ds(f"ds_write_b32 v{vYW}, v{r} offset:{512*j+16*e}", "yw")
    A.wait_lg("yw")
    for k in range(4): A.ds(f"ds_read_b128 v[{CP+4*k}:{CP+4*k+3}], v{vYR} offset:{1024*k}", f"yr{k}")
    for k in range(4):
        A.wait_lg(f"yr{k}")
        A.vmem(f"buffer_store_dwordx4 v[{CP+4*k}:{CP+4*k+3}], v{vL16}, s[{sWS}:{sWS+3}], s{s_yo} offen offset:{1024*k}{stflag}", "yst")

def NEXT(A, ldflag):
    o = []
    o.append(Op(f"s_add_u32 s{s_ch}, s{s_ch}, s{s_q}", kind="salu"))
    class X:
        def __init__(s): s.l = []
        def e(s, t): s.l.append(t)
    x = X(); set_srds(x)
    o += [Op(t, kind="salu") for t in x.l]
    return o + u_dma_ops(ldflag) + [r9_op()]

def conv_all(A, ldflag="", stflag=""):
    conv_setup(A)
    set_srds(A)
    kc4.utchk(A)
    emit_now(A, u_dma_ops(ldflag))
    A.e("s_barrier")
    A.e(f"s_mov_b32 s{s_q}, 4")
    A.e(f"s_mov_b32 s65, {2*SR}")
    A.e(f"s_mov_b32 s66, 0")
    A.label("L_cv_round")
    A.e(f"s_lshl_b32 s{s_yo}, s{s_ch}, 12")
    A.e(f"s_add_u32 s{s_yo}, s{s_yo}, {WS_Y}")
    A.e("s_waitcnt vmcnt(0)"); A.vm = []; A.lg = []
    stamp(A, 4)
    conv_round(A, ldflag, stflag)
    stamp(A, 5)
    for r in (vA, vYW, vYR): A.e(f"v_add_u32 v{r}, s65, v{r}")
    A.e("s_sub_u32 s65, 0, s65")
    A.e(f"s_sub_u32 s{s_q}, 4, s{s_w}")
    A.e("s_add_u32 s66, s66, 1")
    A.e("s_cmp_lt_u32 s66, 2")
    A.e("s_cbranch_scc1 L_cv_round")
    A.c("---- 9th channel: tiles jl=w, jh=7-w")
    stamp(A, 6)
    A.e(f"s_lshl_b32 s{s_yo}, s{s_ch}, 12")
    A.e(f"s_add_u32 s{s_yo}, s{s_yo}, {WS_Y}")
    A.e(f"s_lshl_b32 s{s_t0}, s{s_w}, 6")
    A.e(f"v_subrev_u32 v11, s{s_t0}, v{vA}")
    A.e(f"v_subrev_u32 v12, s{s_t0}, v{vB}")
    A.e("s_waitcnt vmcnt(0)"); A.vm = []; A.lg = []
    def rA(h, Q): A.ds(f"ds_read_b128 a[{64*h+32+4*Q}:{64*h+35+4*Q}], v11 offset:{4096 - 512*Q - 256*h}", f"A{h}{Q}")
    def rB(h, i): A.ds(f"ds_read_b128 a[{64*h+4*i}:{64*h+3+4*i}], v12 offset:{512*i + 512 - 256*h}", f"B{h}{i}")
    pend = []
    for h in range(2):
        pend += [(rA, h, 0)] + [(rB, h, i) for i in range(8)] + [(rA, h, Q) for Q in range(1, 8)]
    for f, h, x in pend[:12]: f(h, x)
    pend = pend[12:]
    for h in range(2):
        for Q in range(8):
            for j in range(Q, 8):
                A.wait_lg([f"A{h}{Q}", f"B{h}{j-Q}"])
                acc = CACC + 4*j
                cin = "0" if (h == 0 and Q == 0) else f"v[{acc}:{acc+3}]"
                A.e(f"v_mfma_f32_16x16x32_bf16 v[{acc}:{acc+3}], a[{64*h+32+4*Q}:{64*h+35+4*Q}], a[{64*h+4*(j-Q)}:{64*h+3+4*(j-Q)}], {cin}")
                if pend:
                    f, hh, x = pend.pop(0); f(hh, x)
    A.e(f"s_cmp_lg_u32 s{s_w}, 0")
    A.e("s_cbranch_scc1 L_cv9x")
    A.e(f"ds_read_b128 a[128:131], v{vA} offset:0")
    A.e(f"ds_read_b128 v[{CBm8}:{CBm8+3}], v{vB} offset:0")
    A.e("s_waitcnt lgkmcnt(0)")
    for j in range(8):
        a = f"a[{32+4*(j+1)}:{35+4*(j+1)}]" if j < 7 else "a[128:131]"
        A.e(f"v_mfma_f32_16x16x32_bf16 v[{CACC+4*j}:{CACC+4*j+3}], {a}, v[{CBm8}:{CBm8+3}], v[{CACC+4*j}:{CACC+4*j+3}]")
    A.label("L_cv9x")
    A.e(f"s_add_u32 s{s_t0}, s{s_lb}, {U_OFF}")
    A.e(f"v_add_u32 v13, s{s_t0}, v{vL16}")
    A.e(f"s_lshl_b32 s{s_t0}, s{s_w}, 11")
    A.e(f"s_add_u32 s{s_t0}, s{s_t0}, {U_OFF}")
    A.e(f"v_add_u32 v14, s{s_t0}, v{vL16}")
    A.e(f"v_add_u32 v15, {2*WREG}, v14")
    A.nop(6)
    for j in range(8): A.e(f"ds_write_b128 v13, v[{CACC+4*j}:{CACC+4*j+3}] offset:{1024*j}")
    A.e("s_waitcnt lgkmcnt(0)")
    A.e("s_barrier")
    for ww in range(4):
        for t in range(2):
            A.e(f"ds_read_b128 v[{CA+8*ww+4*t}:{CA+8*ww+4*t+3}], v{14 + ww//2} offset:{(ww%2)*WREG + 1024*t}")
    A.e("s_waitcnt lgkmcnt(0)")
    for r in range(0, 8, 2):
        A.e(f"v_pk_add_f32 v[{CA+r}:{CA+r+1}], v[{CA+r}:{CA+r+1}], v[{CA+8+r}:{CA+9+r}]")
        A.e(f"v_pk_add_f32 v[{CA+16+r}:{CA+17+r}], v[{CA+16+r}:{CA+17+r}], v[{CA+24+r}:{CA+25+r}]")
    for r in range(0, 8, 2):
        A.e(f"v_pk_add_f32 v[{CA+r}:{CA+r+1}], v[{CA+r}:{CA+r+1}], v[{CA+16+r}:{CA+17+r}]")
    for t in range(2):
        for e in range(2):
            r = CP + 2*t + e
            A.e(f"v_cvt_pk_bf16_f32 v{r}, v{CA+4*t+2*e}, v{CA+4*t+2*e+1}")
    for t in range(2):
        for e in range(2):
            A.e(f"ds_write_b32 v{vYW}, v{CP+2*t+e} offset:{512*t+16*e}")
    A.e("s_waitcnt lgkmcnt(0)")
    A.e(f"ds_read_b128 v[{CP+4}:{CP+7}], v{vYR}")
    A.e(f"s_lshl_b32 s{s_t0}, s{s_w}, 10")
    A.e(f"s_add_u32 s{s_yo}, s{s_yo}, s{s_t0}")
    A.e("s_waitcnt lgkmcnt(0)")
    A.vmem(f"buffer_store_dwordx4 v[{CP+4}:{CP+7}], v{vL16}, s[{sWS}:{sWS+3}], s{s_yo} offen{stflag}", "yst")
```

```python
from common import *
import math, p1f
L2E_HI = struct.unpack('<f', struct.pack('<f', LOG2E))[0]
L2E_LO = LOG2E - L2E_HI
LN2 = math.log(2.0)
WREG = 40960
SU, SR = 4640, 4480
RA_OFF, RB_OFF, U_OFF = 0, 8960, 17920
SCR = 8960
T_OFF = 17920
TS_ENT = 2304
ZIDX = 2300
WS_R9 = WS_G
s_ch0, s_lb, s_dt, s_dsk, s_cA, s_cB, s_cC, s_ci, s_rdst, s_yo, s_rnd, s_dl = 56, 57, 58, 59, 60, 61, 62, 63, 64, 65, 66, 67
sP0, sP1, sU, sPF = 68, 72, 68, 72
sP2, sP3 = sT0, sT1
s_pf = 76
s_ret2 = 54
vW, vRD, vSc, vGa = 32, 48, 52, 64
vDt, vDk, vPF, vRW, vZW, vPL = 4, 5, 6, 7, 8, 20
vPar = 100
vCur = 112
vZ = 116
POOL = (124, 180)
vCV = 236
vD = 10
def a_table():
    t = []
    for row in range(16): t.append((row & 7) + 128*(row >> 3))
    for row in range(16):
        t.append(256 + 128*(row >> 2) + 2*(row & 3) if row < 8 else 512 + 128*((row-8) >> 1) + 4*(row & 1))
    for row in range(16): t.append(1024 + 128*row if row <= 8 else 2100)
    return t

def exp_bf16_multi(A, items):
    for d, x, a, b in items: A.e(f"v_mul_f32 v{a}, s{s_cA}, v{x}")
    for d, x, a, b in items: A.e(f"v_fma_f32 v{b}, v{x}, s{s_cA}, -v{a}")
    for d, x, a, b in items: A.e(f"v_exp_f32 v{a}, v{a}")
    for d, x, a, b in items: A.e(f"v_fma_f32 v{b}, v{x}, s{s_cB}, v{b}")
    for d, x, a, b in items: A.e(f"v_mul_f32 v{b}, s{s_cC}, v{b}")
    for d, x, a, b in items: A.e(f"v_fma_f32 v{a}, v{a}, v{b}, v{a}")
    for d, x, a, b in items: A.e(f"v_cvt_pk_bf16_f32 v{a}, v{a}, v{a}")
    for d, x, a, b in items: A.e(f"v_lshlrev_b32 v{d}, 16, v{a}")

def pf_hook(A, k):
    if 'nopf' not in EXP:
        A.e(f"buffer_load_dword a{200+k}, v{vPF}, s[{sPF}:{sPF+3}], s{s_pf+k} offen")

class Ch:
    def __init__(self, A):
        self.A = A; self.reg = {}; self.free = list(range(0, 56, 2)); self.cvn = 0; self.pend = []
    def alloc(self, name):
        self.reg[name] = self.free.pop(0); return self.reg[name]
    def rel(self, *names):
        for n in names: self.free.append(self.reg.pop(n))
    def r(self, name, m): return POOL[m] + self.reg[name]
    def muls(self, lst):
        for d, x, y in lst: self.alloc(d)
        for d, x, y in lst:
            for m in range(2):
                D, X, M = self.r(d, m), self.r(x, m), self.r(y, m)
                self.A.e(f"v_pk_mul_f32 v[{D}:{D+1}], v[{X}:{X+1}], v[{M}:{M+1}] op_sel_hi:[1,0]")
        for d, x, y in lst:
            for m in range(2):
                D, X, M = self.r(d, m), self.r(x, m), self.r(y, m)
                self.A.e(f"v_pk_fma_f32 v[{D}:{D+1}], v[{X}:{X+1}], v[{M}:{M+1}], v[{D}:{D+1}] op_sel:[1,1,0] op_sel_hi:[0,1,1] neg_lo:[1,0,0]")
    def put(self, items):
        A = self.A; slot = 0; w = []
        for i, oa, na, ob, nb in items:
            regs = []
            for o, n in ((oa, na), (ob, nb)):
                if n is None: continue
                c = vCV + 2*slot; slot += 1
                assert slot <= 10
                for m in range(2):
                    if n == "one": A.e(f"v_mov_b32 v{c+m}, 0x3f80")
                    else:
                        X = self.r(n, m)
                        A.e(f"v_cvt_pk_bf16_f32 v{c+m}, v{X}, {'-' if o == 41 else ''}v{X+1}")
                regs.append((o, c))
            w.append((i, regs))
        for i, regs in w:
            if len(regs) == 2:
                A.e(f"ds_write2st64_b64 v{vW+i}, v[{regs[0][1]}:{regs[0][1]+1}], v[{regs[1][1]}:{regs[1][1]+1}] offset0:{regs[0][0]} offset1:{regs[1][0]}")
            else:
                A.e(f"ds_write_b64 v{vW+i}, v[{regs[0][1]}:{regs[0][1]+1}] offset:{regs[0][0]*512}")

def kchan_sub(A):
    A.label("L_kchan")
    C = Ch(A)
    A.e(f"v_readlane_b32 s{s_dt}, v{vDt}, s{s_ci}")
    A.e(f"v_readlane_b32 s{s_dsk}, v{vDk}, s{s_ci}")
    T = vCV
    A.e(f"v_lshlrev_b32 v{T}, 16, v{vCur}")
    A.e(f"v_and_b32 v{T+1}, 0xffff0000, v{vCur}")
    A.e(f"v_lshlrev_b32 v{vZ+1}, 16, v{vCur+1}")
    A.e(f"v_and_b32 v{vZ+5}, 0xffff0000, v{vCur+1}")
    exp_bf16_multi(A, [(vZ, T, T+2, T+3), (vZ+4, T+1, T+4, T+5)])
    A.e(f"v_lshlrev_b32 v{vZ+2}, 16, v{vCur+2}")
    A.e(f"v_and_b32 v{vZ+6}, 0xffff0000, v{vCur+2}")
    A.e(f"v_lshlrev_b32 v{vZ+3}, 16, v{vCur+3}")
    A.e(f"v_and_b32 v{vZ+7}, 0xffff0000, v{vCur+3}")
    for k in range(8): A.e(f"v_mul_f32 v{vZ+k}, s{s_dt}, v{vZ+k}")
    for m in range(2):
        A.e(f"v_mul_f32 v{vZ+4*m}, {fhex(-LOG2E)}, v{vZ+4*m}")
        A.e(f"v_mul_f32 v{vZ+4*m+1}, 0.15915494, v{vZ+4*m+1}")
    pf_hook(A, 0)
    Ps = [1, 8, 128, 512, 1024]
    for P in Ps: C.alloc(f"E{P}")
    C.alloc("B0")
    for m in range(2):
        b = C.r("B0", m)
        A.e(f"v_add_f32 v{b}, v{vZ+4*m+2}, v{vZ+4*m+2}")
        A.e(f"v_add_f32 v{b+1}, v{vZ+4*m+3}, v{vZ+4*m+3}")
    tt = lambda k, m: T + 4*k + 2*m
    for k, P in enumerate(Ps):
        for m in range(2):
            if P == 1:
                A.e(f"v_mov_b32 v{tt(k,m)}, v{vZ+4*m}"); A.e(f"v_fract_f32 v{tt(k,m)+1}, v{vZ+4*m+1}")
            else:
                A.e(f"v_mul_f32 v{tt(k,m)}, {fhex(float(P))}, v{vZ+4*m}")
                A.e(f"v_mul_f32 v{tt(k,m)+1}, {fhex(float(P))}, v{vZ+4*m+1}")
    for k, P in enumerate(Ps):
        if P == 1: continue
        for m in range(2): A.e(f"v_fract_f32 v{tt(k,m)+1}, v{tt(k,m)+1}")
    for k, P in enumerate(Ps):
        for m in range(2):
            d = C.r(f"E{P}", m)
            A.e(f"v_exp_f32 v{tt(k,m)}, v{tt(k,m)}")
            A.e(f"v_cos_f32 v{d}, v{tt(k,m)+1}")
            A.e(f"v_sin_f32 v{d+1}, v{tt(k,m)+1}")
    A.e("s_nop 0")
    for k, P in enumerate(Ps):
        for m in range(2):
            d = C.r(f"E{P}", m)
            A.e(f"v_pk_mul_f32 v[{d}:{d+1}], v[{d}:{d+1}], v[{tt(k,m)}:{tt(k,m)+1}] op_sel_hi:[1,0]")
    C.muls([("E2", "E1", "E1"), ("E256", "E128", "E128"), ("E640", "E512", "E128"), ("E129", "E128", "E1"), ("E16", "E8", "E8"), ("B1", "B0", "E8"), ("T1", "E1024", "E128")])
    C.put([(0, 0, "one", 16, "E256"), (8, 0, "E128", 16, "E512"), (0, 32, "E1024", 41, "B0"), (1, 32, "T1", 41, "B1")])
    C.rel("E8")
    C.muls([("E3", "E2", "E1"), ("E4", "E2", "E2"), ("E384", "E256", "E128"), ("E768", "E512", "E256"), ("E130", "E128", "E2"), ("E258", "E256", "E2"),
            ("B2", "B0", "E16"), ("B3", "B1", "E16"), ("T2", "E1024", "E256"), ("T3", "T1", "E256")])
    C.rel("B0", "B1", "T1", "E1024")
    C.put([(10, 0, "E130", 16, "E640"), (1, 0, "E1", 16, "E258"), (4, 0, "E4", 16, "E384"), (2, 32, "T2", 41, "B2"), (3, 32, "T3", 41, "B3")])
    C.rel("E130", "E258")
    C.muls([("E260", "E256", "E4"), ("E516", "E512", "E4"), ("E132", "E128", "E4"), ("E131", "E128", "E3"), ("E644", "E640", "E4"),
            ("B4", "B2", "E16"), ("B5", "B3", "E16"), ("T4", "T2", "E256"), ("T5", "T3", "E256")])
    C.rel("B2", "B3", "T2", "T3", "E640")
    C.put([(2, 0, "E2", 16, "E260"), (9, 0, "E129", 16, "E516"), (12, 0, "E132", 16, "E768"), (11, 0, "E131", 16, "E644"), (4, 32, "T4", 41, "B4")])
    C.rel("E260", "E129", "E516", "E132", "E131", "E644")
    pf_hook(A, 1)
    C.muls([("E5", "E4", "E1"), ("E6", "E4", "E2"), ("E7", "E4", "E3"), ("E896", "E512", "E384"), ("E386", "E384", "E2"), ("E388", "E384", "E4"), ("E772", "E768", "E4"),
            ("B6", "B4", "E16"), ("B7", "B5", "E16"), ("T6", "T4", "E256"), ("T7", "T5", "E256")])
    C.put([(5, 32, "T5", 41, "B5"), (5, 0, "E5", 16, "E386"), (6, 0, "E6", 16, "E388"), (6, 32, "T6", 41, "B6"), (7, 32, "T7", 41, "B7")])
    C.rel("B4", "B5", "T4", "T5", "E386", "E388", "E1", "E2", "E512", "E768", "T7")
    C.muls([("E262", "E256", "E6"), ("E390", "E384", "E6"), ("E133", "E128", "E5"), ("E134", "E128", "E6"), ("E135", "E128", "E7"), ("E900", "E896", "E4"),
            ("B8", "B6", "E16"), ("B9", "B7", "E16"), ("T8", "T6", "E256")])
    C.put([(3, 0, "E3", 16, "E262"), (7, 0, "E7", 16, "E390"), (13, 0, "E133", 16, "E772"), (14, 0, "E134", 16, "E896"), (15, 0, "E135", 16, "E900")])
    C.rel("B6", "B7", "T6", "E262", "E390", "E133", "E134", "E135", "E900")
    C.muls([("B10", "B8", "E16"), ("B11", "B9", "E16")])
    C.put([(8, 32, "T8", 41, "B8"), (9, 41, "B9", 0, None)])
    C.muls([("B12", "B10", "E16"), ("B13", "B11", "E16")])
    C.put([(10, 41, "B10", 0, None), (11, 41, "B11", 0, None)])
    C.muls([("B14", "B12", "E16"), ("B15", "B13", "E16")])
    C.put([(12, 41, "B12", 0, None), (13, 41, "B13", 0, None), (14, 41, "B14", 0, None), (15, 41, "B15", 0, None)])
    A.e(f"s_mov_b32 s{s_t0}, {F_U}")
    A.e(f"s_waitcnt vmcnt({0 if 'nopf' in EXP else 2})")
    if 'nopoll' not in EXP: A.e(f"buffer_load_dwordx4 v[{vPL}:{vPL+3}], v{vPL+5}, s[{sWS}:{sWS+3}], s{s_t0} offen{SC}")
    A.lg = []
    A.e("s_waitcnt lgkmcnt(0)")
    D = POOL[0]
    for ks in range(8):
        A.ds(f"ds_read_b128 a[{4*ks}:{4*ks+3}], v{vRD+(ks&3)} offset:{41*512 + (ks>>2)*256}", f"kb{ks}")
        for t in range(3):
            A.ds(f"ds_read_b128 a[{32+32*t+4*ks}:{35+32*t+4*ks}], v{vRD+(ks&3)} offset:{t*8192 + (ks>>2)*256}", f"ka{ks}{t}")
        if ks >= 2:
            for t in range(3):
                k2 = ks - 2
                A.wait_lg([f"ka{k2}{t}"])
                A.e(f"v_mfma_f32_16x16x32_bf16 v[{D+4*t}:{D+4*t+3}], a[{32+32*t+4*k2}:{35+32*t+4*k2}], a[{4*k2}:{4*k2+3}], {'0' if k2 == 0 else f'v[{D+4*t}:{D+4*t+3}]'}")
    for k2 in (6, 7):
        for t in range(3):
            A.wait_lg([f"ka{k2}{t}"])
            A.e(f"v_mfma_f32_16x16x32_bf16 v[{D+4*t}:{D+4*t+3}], a[{32+32*t+4*k2}:{35+32*t+4*k2}], a[{4*k2}:{4*k2+3}], v[{D+4*t}:{D+4*t+3}]")
    A.e("s_nop 0")
    A.e(f"v_mov_b32 v{T}, 0")
    A.e(f"v_writelane_b32 v{T}, s{s_dsk}, 0")
    for k in range(4): A.e(f"v_mov_b32 v{T+4+k}, 0")
    A.e(f"v_add_u32 v{T+2}, s{s_rdst}, v{vRW}")
    A.e(f"v_add_u32 v{T+3}, s{s_rdst}, v{vZW}")
    A.e(f"v_add_f32 v{D}, v{D}, v{T}")
    for k in range(12): A.e(f"ds_write_b32 v{vSc+k}, v{D+k}")
    A.e(f"ds_write_b32 v{9}, v{T+4}")
    A.e(f"ds_write_b128 v{T+3}, v[{T+4}:{T+7}]")
    A.e("s_waitcnt lgkmcnt(0)")
    G = POOL[0] + 12
    for k in range(4):
        for e in range(9): A.ds(f"ds_read_b32 v{G+9*k+e}, v{vGa+9*k+e}", f"g{k}")
    O = POOL[1]
    for k in range(4):
        A.wait_lg(f"g{k}")
        g = G + 9*k
        for e in range(4): A.e(f"v_cvt_pk_bf16_f32 v{O+8*k+e}, v{g+2*e+1}, v{g+2*e+2}")
        for e in range(4): A.e(f"v_cvt_pk_bf16_f32 v{O+8*k+4+e}, v{g+2*e}, v{g+2*e+1}")
    for k in range(4):
        A.e(f"ds_write_b128 v{T+2}, v[{O+8*k}:{O+8*k+3}] offset:{1024*k}")
        A.e(f"ds_write_b128 v{T+2}, v[{O+8*k+4}:{O+8*k+7}] offset:{SR + 1024*k}")
    A.e("s_waitcnt lgkmcnt(0)")
    A.lg = []
    A.e(f"s_setpc_b64 s[{s_ret}:{s_ret+1}]")

vGX, vGG = POOL[0], POOL[1]
def kc_setup(A):
    A.c("======== conv role setup")
    for r, n in ((sP0, 'loga'), (sP1, 'aim'), (sP2, 'cre'), (sP3, 'cim'), (76, 'logdt'), (80, 'dskip'), (84, 'gw')):
        A.e(f"s_load_dwordx2 s[{r}:{r+1}], s[0:1], {KA[n]}")
    A.e(f"s_lshl_b32 s{s_ch0}, s{s_m}, 2")
    A.e(f"s_add_u32 s{s_ch0}, s{s_ch0}, s{s_kq}")
    A.e(f"s_mul_i32 s{s_ch0}, s{s_ch0}, 9")
    A.e(f"s_mul_i32 s{s_lb}, s{s_w}, {WREG}")
    for r, n in ((sP0, D_*256), (sP1, D_*256), (sP2, D_*256), (sP3, D_*256), (76, D_*2), (80, D_*2)):
        A.e(f"s_mov_b32 s{r+2}, {n}"); A.e(f"s_mov_b32 s{r+3}, 0x00020000")
    T = vCV
    A.e(f"v_lshlrev_b32 v{T}, 2, v1")
    A.e(f"v_min_u32 v{T+1}, 8, v1")
    A.e(f"v_add_u32 v{T+1}, s{s_ch0}, v{T+1}")
    A.e(f"v_lshlrev_b32 v{T+1}, 1, v{T+1}")
    A.e(f"s_add_u32 s{s_t0}, s{s_ch0}, s{s_w}")
    A.e(f"s_lshl_b32 s{s_t0}, s{s_t0}, 8")
    A.e(f"s_add_u32 s{s_t1}, s{s_ch0}, 8")
    A.e(f"s_lshl_b32 s{s_t1}, s{s_t1}, 8")
    A.e(f"s_lshl_b32 s{s_upos}, s{s_m}, 7")
    A.e(f"s_lshl_b32 s{s_t2}, s{s_kq}, 5")
    A.e(f"s_add_u32 s{s_upos}, s{s_upos}, s{s_t2}")
    A.e(f"v_lshrrev_b32 v{T+4}, 3, v1")
    A.e(f"v_and_b32 v{T+5}, 7, v1")
    A.e(f"v_add_u32 v{T+6}, s{s_upos}, v{T+4}")
    A.e(f"v_mul_u32_u24 v{T+6}, 1152, v{T+6}")
    A.e(f"v_lshrrev_b32 v{T+7}, 1, v{T+4}")
    A.e(f"v_xor_b32 v{T+7}, v{T+7}, v{T+5}")
    A.e(f"v_lshl_add_u32 v{vXD}, v{T+7}, 4, v{T+6}")
    A.e(f"v_xor_b32 v{vXD+1}, 64, v{vXD}")
    A.e(f"v_add_u32 v{vXD+1}, 8192, v{vXD+1}")
    A.e(f"s_lshl_b32 s{s_upos}, s{s_upos}, 1")
    A.e("s_waitcnt lgkmcnt(0)")
    for slot, (so, off) in enumerate(((s_t1, 0), (s_t0, 0), (s_t0, 1024))):
        for k, srd in enumerate((sP0, sP1, sP2, sP3)):
            A.vmem(f"buffer_load_dword v{vPar+4*slot+k}, v{T}, s[{srd}:{srd+3}], s{so} offen offset:{off}", "kp")
    A.vmem(f"buffer_load_ushort v{vDt}, v{T+1}, s[76:79], 0 offen", "kp")
    A.vmem(f"buffer_load_ushort v{vDk}, v{T+1}, s[80:83], 0 offen", "kp")
    A.e(f"s_getpc_b64 s[{s_ret}:{s_ret+1}]")
    A.label("L_kg_pc")
    A.e(f"s_add_u32 s{s_ret}, s{s_ret}, L_atab-L_kg_pc")
    A.e(f"s_addc_u32 s{s_ret+1}, s{s_ret+1}, 0")
    A.e(f"v_and_b32 v{T+2}, 48, v1")
    for t in range(3):
        A.vmem(f"global_load_dwordx4 v[{vSc+4*t}:{vSc+4*t+3}], v{T+2}, s[{s_ret}:{s_ret+1}] offset:{64*t}", "kp")
    A.e(f"s_cmp_eq_u32 s{s_w}, 0")
    A.e("s_cbranch_scc1 L_xp_skip")
    A.e(f"s_mov_b32 s80, s84"); A.e("s_mov_b32 s81, s85")
    A.e(f"s_mul_i32 s{s_line}, s{s_w}, 3")
    A.e(f"s_sub_u32 s{s_line}, s{s_line}, 3")
    for q in range(3):
        A.e(f"s_add_u32 m0, s{s_lb}, {SCR + 4096*q}")
        A.e(f"s_add_u32 s{s_so}, s{s_line}, {q}")
        A.e(f"s_lshl_b32 s{s_so}, s{s_so}, 7")
        for i in range(4):
            if i == 2: A.e(f"s_add_u32 s{s_so}, s{s_so}, 16384")
            A.e(f"buffer_load_dwordx4 v{vXD+(i&1)}, s[{sX}:{sX+3}], s{s_so} offen offset:{i*1024} lds")
    A.e(f"v_and_b32 v{T+3}, 1, v1")
    A.e(f"v_lshlrev_b32 v{T+3}, 6, v{T+3}")
    A.e(f"s_lshl_b32 s{s_so}, s{s_line}, 7")
    for q in range(3):
        for c in range(4):
            A.e(f"buffer_load_dwordx4 v[{vGG+16*q+4*c}:{vGG+16*q+4*c+3}], v{T+3}, s[80:83], s{s_so} offen offset:{128*q+16*c}")
    A.label("L_xp_skip")
    A.e(f"s_mul_i32 s{s_t0}, s{s_kq}, 2304")
    A.e(f"s_add_u32 s{sW1}, s{p_w1}, s{s_t0}")
    A.e(f"s_addc_u32 s{sW1+1}, s{p_w1+1}, 0")
    A.e(f"s_mov_b32 s{sW1+2}, {575*9216 + 2304}")
    A.e(f"s_mov_b32 s{sW1+3}, 0x00020000")
    for k in range(4): A.e(f"s_mov_b32 s{sPF+k}, s{sW1+k}") if k < 3 else A.e(f"s_mov_b32 s{sPF+3}, 0x00020000")
    A.e(f"v_mul_u32_u24 v{vPF}, 9216, v1")
    A.e(f"s_lshl_b32 s{s_t3}, s{s_m7}, 2")
    A.e(f"s_add_u32 s{s_t3}, s{s_t3}, s{s_w}")
    for k in range(5):
        u = s_pf + k
        A.e(f"s_add_u32 s{s_t2}, s{s_t3}, {32*k}")
        A.e(f"s_mul_i32 s{s_t0}, s{s_t2}, 7282")
        A.e(f"s_lshr_b32 s{s_t0}, s{s_t0}, 16")
        A.e(f"s_mul_i32 s{s_t1}, s{s_t0}, 9")
        A.e(f"s_sub_u32 s{s_t1}, s{s_t2}, s{s_t1}")
        A.e(f"s_mul_i32 s{u}, s{s_t1}, {64*9216}")
        A.e(f"s_mul_i32 s{s_t1}, s{s_t0}, 43")
        A.e(f"s_lshr_b32 s{s_t1}, s{s_t1}, 7")
        A.e(f"s_mul_i32 s{s_t0}, s{s_t0}, 768")
        A.e(f"s_add_u32 s{u}, s{u}, s{s_t0}")
        A.e(f"s_mul_i32 s{s_t1}, s{s_t1}, {2304 - 128}")
        A.e(f"s_sub_u32 s{u}, s{u}, s{s_t1}")
        A.e(f"s_add_u32 s{u}, s{u}, 128")
        if k == 4:
            A.e(f"s_cmp_lt_u32 s{s_t2}, 135")
            A.e(f"s_cselect_b32 s{u}, s{u}, 0x40000000")
        if k <= 1 and 'nopf' not in EXP:
            A.e(f"buffer_load_dword a{198+k}, v{vPF}, s[{sPF}:{sPF+3}], s{u} offen")
    A.e(f"s_mov_b32 s{s_cA}, {fhex(L2E_HI)}")
    A.e(f"s_mov_b32 s{s_cB}, {fhex(L2E_LO)}")
    A.e(f"s_mov_b32 s{s_cC}, {fhex(LN2)}")
    A.e(f"s_add_u32 s{s_t0}, s{s_lb}, {SCR}")
    A.e(f"v_lshrrev_b32 v{T+4}, 1, v1")
    A.e(f"v_and_b32 v{T+5}, 1, v1")
    A.e(f"v_lshlrev_b32 v{T+5}, 3, v{T+5}")
    A.e(f"v_add_u32 v{T+5}, s{s_t0}, v{T+5}")
    for i in range(16):
        A.e(f"v_xor_b32 v{vW+i}, {33*i}, v{T+4}")
        A.e(f"v_lshl_add_u32 v{vW+i}, v{vW+i}, 4, v{T+5}")
    A.e(f"v_and_b32 v{T+6}, 15, v1")
    A.e(f"v_lshrrev_b32 v{T+7}, 4, v1")
    A.e(f"v_xor_b32 v{T+7}, v{T+7}, v{T+6}")
    A.e(f"v_lshlrev_b32 v{T+8}, 9, v{T+6}")
    A.e(f"v_add_u32 v{T+8}, s{s_t0}, v{T+8}")
    for k in range(4):
        A.e(f"v_xor_b32 v{vRD+k}, {4*k}, v{T+7}")
        A.e(f"v_lshl_add_u32 v{vRD+k}, v{vRD+k}, 4, v{T+8}")
    A.e(f"s_add_u32 s{s_t1}, s{s_lb}, {T_OFF}")
    A.e(f"v_lshlrev_b32 v{T+9}, 3, v1")
    A.e(f"v_sub_u32 v{T+9}, 2047, v{T+9}")
    for k in range(4):
        for e in range(9):
            g = vGa + 9*k + e
            A.e(f"v_subrev_u32 v{g}, {512*k + e}, v{T+9}")
        if k == 3: A.e(f"v_max_i32 v{vGa+35}, 0, v{vGa+35}")
        for e in range(9): A.e(f"v_cvt_f32_u32 v{vGa+9*k+e}, v{vGa+9*k+e}")
    for g in range(vGa, vGa + 36, 2):
        A.e(f"v_cvt_pk_bf16_f32 v{g+1}, v{g}, v{g+1}")
    for g in range(vGa, vGa + 36, 2):
        A.e(f"v_lshlrev_b32 v{g}, 16, v{g+1}")
        A.e(f"v_and_b32 v{g+1}, 0xffff0000, v{g+1}")
    for g in range(vGa, vGa + 36): A.e(f"v_cvt_u32_f32 v{g}, v{g}")
    for g in range(vGa, vGa + 36):
        A.e(f"v_lshrrev_b32 v{T+10+(g&1)}, 5, v{g}")
        A.e(f"v_add_lshl_u32 v{g}, v{g}, v{T+10+(g&1)}, 2")
    for g in range(vGa, vGa + 36): A.e(f"v_add_u32 v{g}, s{s_t1}, v{g}")
    A.e(f"s_add_u32 s{s_t2}, s{s_t1}, {4*2296}")
    A.e(f"v_mov_b32 v9, s{s_t2}")
    A.e("v_cmp_eq_u32 vcc, 63, v1")
    A.e(f"v_add_u32 v{vRW}, 16, v{vL16}")
    A.e(f"v_mov_b32 v{vPL+6}, 256")
    A.e(f"v_cndmask_b32 v{vGa+35}, v{vGa+35}, v9, vcc")
    A.e(f"v_add_u32 v{T+10}, 256, v{T+6}")
    A.e(f"v_cmp_eq_u32 vcc, 0, v{T+6}")
    A.e(f"v_mov_b32 v{vPL+5}, v{vL16}")
    A.e(f"v_and_b32 v{T+11}, 16, v1")
    A.e(f"v_cndmask_b32 v{T+10}, v{T+10}, v{T+6}, vcc")
    A.e(f"v_lshlrev_b32 v{T+10}, 4, v{T+10}")
    A.e(f"v_mul_u32_u24 v{T+11}, {SR//16}, v{T+11}")
    A.e(f"v_add_u32 v{vZW}, v{T+10}, v{T+11}")
    A.e(f"s_waitcnt vmcnt({0 if 'nopf' in EXP else 2})"); A.vm = []
    A.e(f"v_lshlrev_b32 v{T+6}, 3, v{T+6}")
    for k in range(12): A.e(f"v_add_u32 v{vSc+k}, v{vSc+k}, v{T+6}")
    for k in range(12):
        A.e(f"v_lshrrev_b32 v{T+10+(k&1)}, 5, v{vSc+k}")
        A.e(f"v_add_lshl_u32 v{vSc+k}, v{vSc+k}, v{T+10+(k&1)}, 2")
    for k in range(12): A.e(f"v_add_u32 v{vSc+k}, s{s_t1}, v{vSc+k}")
    A.e(f"v_lshlrev_b32 v{vDt}, 16, v{vDt}")
    A.e(f"v_lshlrev_b32 v{vDk}, 16, v{vDk}")
    exp_bf16_multi(A, [(vDt, vDt, T+12, T+13)])

def call_kchan(A, slot, ci_expr, rdst_off):
    for k in range(4): A.e(f"v_mov_b32 v{vCur+k}, v{vPar+4*slot+k}")
    A.e(ci_expr)
    A.e(f"s_add_u32 s{s_rdst}, s{s_lb}, {rdst_off}")
    if 'nokc' not in EXP: A.e(f"s_call_b64 s[{s_ret}:{s_ret+1}], L_kchan")

GSUM = 3*WREG + WREG - 512
def kgen_all(A):
    kc_setup(A)
    A.e("s_barrier")
    p1f.counter_arrive(A)
    stamp(A, 1)
    pf_hook(A, 2)
    A.e(f"s_mov_b32 s{s_pf}, 0x40000000"); A.e(f"s_mov_b32 s{s_pf+1}, 0x40000000")
    A.e(f"s_cmp_lg_u32 s{s_w}, 0")
    A.e("s_cbranch_scc1 L_xw")
    A.c("-- wave 0: 9th channel, image exported")
    call_kchan(A, 0, f"s_mov_b32 s{s_ci}, 8", RB_OFF)
    A.e(f"s_add_u32 s{s_t0}, s{s_lb}, {RB_OFF}")
    A.e(f"v_add_u32 v{vCV}, s{s_t0}, v{vL16}")
    for k in range(9): A.e(f"ds_read_b128 v[{POOL[0]+4*k}:{POOL[0]+4*k+3}], v{vCV} offset:{1024*k}")
    A.e(f"s_mul_i32 s{s_t0}, s{s_ch0}, 1024")
    A.e(f"s_add_u32 s{s_t0}, s{s_t0}, {WS_R9}")
    A.e("s_waitcnt lgkmcnt(0)")
    for k in range(9):
        if k % 4 == 0 and k: A.e(f"s_add_u32 s{s_t0}, s{s_t0}, 4096")
        A.e(f"buffer_store_dwordx4 v[{POOL[0]+4*k}:{POOL[0]+4*k+3}], v{vL16}, s[{sWS}:{sWS+3}], s{s_t0} offen offset:{1024*(k%4)}")
    A.e("s_branch L_xw_done")
    A.label("L_xw")
    A.c("-- waves 1..3: u^T export and partial gate logits")
    T = vCV
    A.e(f"v_lshrrev_b32 v{T}, 1, v1")
    A.e(f"v_lshrrev_b32 v{T+1}, 1, v{T}")
    A.e(f"v_and_b32 v{T+1}, 7, v{T+1}")
    A.e(f"v_and_b32 v{T+2}, 1, v1")
    A.e(f"v_lshlrev_b32 v{T+2}, 2, v{T+2}")
    A.e(f"v_xor_b32 v{T+1}, v{T+1}, v{T+2}")
    A.e(f"s_add_u32 s{s_t3}, s{s_lb}, {SCR}")
    A.e(f"v_lshlrev_b32 v{T+3}, 7, v{T}")
    A.e(f"v_add_u32 v{T+3}, s{s_t3}, v{T+3}")
    for c in range(4):
        A.e(f"v_xor_b32 v{T+4}, {c}, v{T+1}")
        A.e(f"v_lshl_add_u32 v{T+4}, v{T+4}, 4, v{T+3}")
        for q in range(3): A.e(f"ds_read_b128 v[{vGX+16*q+4*c}:{vGX+16*q+4*c+3}], v{T+4} offset:{4096*q}")
    A.e("s_waitcnt lgkmcnt(0)")
    A.e(f"v_mov_b32 v{T+4}, 0"); A.e(f"v_mov_b32 v{T+5}, 0")
    for k in range(48): A.e(f"v_dot2c_f32_bf16 v{T+4+(k&1)}, v{vGX+k}, v{vGG+k}")
    A.e(f"s_lshl_b32 s{s_t0}, s{s_w}, 7")
    A.e(f"s_add_u32 s{s_t0}, s{s_t0}, {GSUM - 128}")
    A.e(f"v_lshlrev_b32 v{T}, 2, v{T}")
    A.e(f"v_add_f32 v{T+4}, v{T+4}, v{T+5}")
    A.e(f"v_add_u32 v{T}, s{s_t0}, v{T}")
    A.e("s_nop 0")
    A.e(f"v_add_f32_dpp v{T+4}, v{T+4}, v{T+4} quad_perm:[1,0,3,2] row_mask:0xf bank_mask:0xf")
    A.e(f"ds_write_b32 v{T}, v{T+4}")
    for q in range(0 if 'nout' in EXP else 3):
        A.e(f"s_call_b64 s[{s_ret}:{s_ret+1}], L_utsub")
        if q < 2:
            A.e(f"s_add_u32 s{s_line}, s{s_line}, 1")
            A.e(f"s_add_u32 s{s_t3}, s{s_t3}, 4096")
    A.label("L_xw_done")
    A.e(f"s_mov_b32 s{s_pf}, s{s_pf+3}"); A.e(f"s_mov_b32 s{s_pf+1}, s{s_pf+4}")
    stamp(A, 2)
    call_kchan(A, 1, f"s_mov_b32 s{s_ci}, s{s_w}", RA_OFF)
    A.c("-- gate finish (wave 1), flag 1, W2 warm-up tables, counter poll")
    A.e("s_barrier")
    A.e(f"s_cmp_lg_u32 s{s_w}, 1")
    A.e("s_cbranch_scc1 L_gt_skip")
    A.e(f"v_and_b32 v{T}, 31, v1")
    A.e(f"v_lshlrev_b32 v{T}, 2, v{T}")
    A.e(f"v_add_u32 v{T+1}, {GSUM}, v{T}")
    A.e(f"ds_read2_b32 v[{T+2}:{T+3}], v{T+1} offset0:0 offset1:32")
    A.e(f"ds_read_b32 v{T+4}, v{T+1} offset:256")
    A.e(f"s_lshl_b32 s{s_t0}, s{s_upos}, 1")
    A.e(f"s_add_u32 s{s_t0}, s{s_t0}, {WS_GT}")
    A.e("s_waitcnt lgkmcnt(0)")
    A.e(f"v_add_f32 v{T+2}, v{T+2}, v{T+3}")
    A.e(f"v_add_f32 v{T+2}, v{T+2}, v{T+4}")
    A.e(f"v_mul_f32 v{T+2}, {fhex(-LOG2E)}, v{T+2}")
    A.e(f"v_exp_f32 v{T+2}, v{T+2}")
    A.e("s_nop 0")
    A.e(f"v_add_f32 v{T+2}, 1.0, v{T+2}")
    A.e(f"v_rcp_f32 v{T+2}, v{T+2}")
    A.e("s_nop 0")
    A.e(f"buffer_store_dword v{T+2}, v{T}, s[{sWS}:{sWS+3}], s{s_t0} offen{SC}")
    A.label("L_gt_skip")
    A.e(f"v_mov_b32 v{vS}, 1")
    A.e(f"s_waitcnt vmcnt(1)")
    A.e(f"buffer_store_dword v{vS}, off, s[{sWS}:{sWS+3}], s{s_fi}{SC}")
    A.e(f"buffer_load_dword v{vPL+4}, off, s[{sDBG}:{sDBG+3}], 0{SC}")
    A.e(f"s_mov_b32 s{s_pf}, 0x40000000"); A.e(f"s_mov_b32 s{s_pf+1}, 0x40000000")
    call_kchan(A, 2, f"s_add_u32 s{s_ci}, s{s_w}, 4", RB_OFF)
    stamp(A, 3)

def utchk(A):
    A.e(f"s_mov_b32 s{s_t0}, 0x20000")
    A.e(f"s_mov_b32 s{s_t1}, {F_U}")
    A.e("s_waitcnt vmcnt(0)")
    A.label("L_uc1")
    A.e(f"v_min_u32 v{vPL}, v{vPL}, v{vPL+1}")
    A.e(f"v_min3_u32 v{vPL}, v{vPL}, v{vPL+2}, v{vPL+3}")
    A.e(f"v_cmp_gt_u32 vcc, 1, v{vPL}")
    A.e(f"v_cmp_gt_u32 s[76:77], v{vPL+6}, v{vPL+4}")
    A.e("s_or_b64 vcc, vcc, s[76:77]")
    A.e("s_cbranch_scc0 L_uc3")
    A.e(f"s_sub_u32 s{s_t0}, s{s_t0}, 1")
    A.e("s_cbranch_scc1 L_uc3")
    A.e(f"buffer_load_dword v{vPL+4}, off, s[{sDBG}:{sDBG+3}], 0{SC}")
    A.e("s_waitcnt vmcnt(0)")
    A.e(f"buffer_load_dwordx4 v[{vPL}:{vPL+3}], v{vPL+5}, s[{sWS}:{sWS+3}], s{s_t1} offen{SC}")
    A.e("s_waitcnt vmcnt(0)")
    A.e("s_branch L_uc1")
    A.label("L_uc3")

def tables(A):
    A.raw(".p2align 4")
    A.label("L_atab")
    A.raw(".long " + ", ".join(str(x) for x in a_table()))
```

```python
from common import *
aX, aA = 0, 144
E64 = '_e64' if 'e64' in EXP else ''
s_loc_bp = 65
GA = MT + 8

def setup_common(A):
    A.c("---- ids")
    A.e("s_and_b32 s3, s2, 7")
    A.e(f"s_lshr_b32 s{s_kq}, s3, 1")
    A.e("s_and_b32 s3, s3, 1")
    A.e("s_lshl_b32 s3, s3, 3")
    A.e(f"s_lshr_b32 s{s_m7}, s2, 5")
    A.e(f"s_add_u32 s{s_m}, s{s_m7}, s3")
    A.e(f"s_lshr_b32 s{s_r}, s2, 3")
    A.e(f"s_and_b32 s{s_r}, s{s_r}, 3")
    A.e("v_lshrrev_b32 v2, 6, v0")
    A.e("v_and_b32 v1, 63, v0")
    A.e(f"v_readfirstlane_b32 s{s_w}, v2")
    A.e(f"v_lshlrev_b32 v{vL16}, 4, v1")
    A.e(f"s_lshl_b32 s{s_t0}, s{s_m}, 2")
    A.e(f"s_add_u32 s{s_t0}, s{s_t0}, s{s_kq}")
    A.e(f"s_lshl_b32 s{s_hb}, s{s_t0}, 2")
    A.e(f"s_lshl_b32 s{s_fi}, s{s_t0}, 3")
    A.e(f"s_add_u32 s{s_fi}, s{s_fi}, s{s_r}")
    A.e(f"s_lshl_b32 s{s_fi}, s{s_fi}, 2")
    A.e(f"s_add_u32 s{s_fi}, s{s_fi}, s{s_w}")
    A.e(f"s_lshl_b32 s{s_fi}, s{s_fi}, 2")
    A.e(f"s_add_u32 s{s_fi}, s{s_fi}, {WS_F}")
    A.e(f"s_add_u32 s{s_hb}, s{s_hb}, s{s_w}")
    A.e(f"s_mul_i32 s{s_hb}, s{s_hb}, 73728")
    A.e(f"s_mul_i32 s{s_t0}, s{s_r}, 24576")
    A.e(f"s_add_u32 s{s_hb}, s{s_hb}, s{s_t0}")

def p1_setup(A, np_):
    A.c("---- P1 setup")
    T = MT
    A.e(f"s_mul_i32 s{s_rho}, s{s_r}, 3")
    A.e(f"s_add_u32 s{s_rho}, s{s_rho}, s{s_m7}")
    mod_small(A, s_rho, s_rho, 9)
    if 'rho0' in EXP: A.e(f"s_mov_b32 s{s_rho}, 0")
    if 'rho3r' in EXP: A.e(f"s_mul_i32 s{s_rho}, s{s_r}, 3")
    if ROT:
        A.e(f"s_mov_b32 s{s_pc}, s{s_m7}")
        for _ in range((7 // np_)): mod_small(A, s_pc, s_pc, np_)
        A.e(f"s_lshl_b32 s{s_pc}, s{s_pc}, 7")
    else:
        A.e(f"s_mov_b32 s{s_pc}, 0")
    A.e(f"s_mul_i32 s{s_t0}, s{s_kq}, 2304")
    A.e(f"s_mul_i32 s{s_t1}, s{s_r}, 768")
    A.e(f"s_add_u32 s{s_t0}, s{s_t0}, s{s_t1}")
    A.e(f"s_add_u32 s{p_w1}, s{p_w1}, s{s_t0}")
    A.e(f"s_addc_u32 s{p_w1+1}, s{p_w1+1}, 0")
    A.e(f"s_add_u32 s{sW1}, s{p_w1}, s{s_pc}")
    A.e(f"s_addc_u32 s{sW1+1}, s{p_w1+1}, 0")
    A.e(f"s_mov_b32 s{sW1+2}, {575*9216 + 128}")
    A.e(f"s_mov_b32 s{sW1+3}, 0x00020000")
    A.e(f"s_mov_b32 s{s_so}, s{s_t0}")
    A.e(f"s_mov_b32 s{s_t0}, s{s_rho}")
    for kl in range(9):
        A.e(f"s_mul_i32 s{s_rw+kl}, s{s_t0}, {64*9216}")
        if kl < 8:
            A.e(f"s_add_u32 s{s_t0}, s{s_t0}, 1")
            A.e(f"s_cmp_eq_u32 s{s_t0}, 9")
            A.e(f"s_cselect_b32 s{s_t0}, 0, s{s_t0}")
    A.e(f"s_lshl_b32 s{s_wl}, s{s_w}, 11")
    A.e(f"s_mov_b32 s{s_log2e}, {fhex(LOG2E)}")
    A.e(f"v_lshrrev_b32 v{T}, 3, v1")
    A.e(f"v_and_b32 v{T+1}, 7, v1")
    A.e(f"s_lshl_b32 s{s_t0}, s{s_m}, 7")
    A.e(f"s_lshl_b32 s{s_t1}, s{s_w}, 5")
    A.e(f"s_add_u32 s{s_t0}, s{s_t0}, s{s_t1}")
    A.e(f"v_add_u32 v{T+2}, s{s_t0}, v{T}")
    A.e(f"v_mul_u32_u24 v{T+2}, 1152, v{T+2}")
    A.e(f"v_lshrrev_b32 v{T+3}, 1, v{T}")
    A.e(f"v_xor_b32 v{T+3}, v{T+3}, v{T+1}")
    A.e(f"v_lshl_add_u32 v{vXD}, v{T+3}, 4, v{T+2}")
    A.e(f"v_xor_b32 v{vXD+1}, 64, v{vXD}")
    A.e(f"v_add_u32 v{vXD+1}, 8192, v{vXD+1}")
    A.e(f"s_lshl_b32 s{s_t0}, s{s_w}, 4")
    A.e(f"v_add_u32 v{T+2}, s{s_t0}, v{T}")
    A.e(f"v_mul_u32_u24 v{T+2}, 9216, v{T+2}")
    A.e(f"v_lshlrev_b32 v{T+3}, 1, v{T}")
    A.e(f"v_and_b32 v{T+3}, 4, v{T+3}")
    A.e(f"v_xor_b32 v{T+3}, v{T+3}, v{T+1}")
    A.e(f"v_lshl_add_u32 v{vWD}, v{T+3}, 4, v{T+2}")
    A.e(f"v_add_u32 v{vWD+1}, {8*9216 - 1024}, v{vWD}")

def p1_setup2(A):
    T = MT + 4
    A.e(f"v_and_b32 v{T}, 31, v1")
    A.e(f"v_lshrrev_b32 v{T+1}, 5, v1")
    A.e(f"v_lshrrev_b32 v{T+2}, 1, v{T}")
    A.e(f"v_and_b32 v{T+2}, 7, v{T+2}")
    A.e(f"v_xor_b32 v{T+2}, v{T+2}, v{T+1}")
    A.e(f"s_mul_i32 s{s_t0}, s{s_w}, 20480")
    A.e(f"s_add_u32 s{s_t0}, s{s_t0}, {XRING}")
    A.e(f"v_lshlrev_b32 v{T+3}, 7, v{T}")
    A.e(f"v_add_u32 v{T+3}, s{s_t0}, v{T+3}")
    for ks in range(4):
        A.e(f"v_xor_b32 v{T+4}, {2*ks}, v{T+2}")
        A.e(f"v_lshl_add_u32 v{vXR+ks}, v{T+4}, 4, v{T+3}")
    A.e(f"v_lshlrev_b32 v{vBI}, 4, v{T+1}")
    A.e(f"v_add_u32 v{vGW}, {M_GW}, v{vBI}")
    A.e(f"s_lshr_b32 s{s_loc_bp}, s{s_pc}, 7")
    A.e(f"s_lshl_b32 s{s_t0}, s{s_pc}, 1")
    A.e(f"s_add_u32 s{s_t0}, s{s_t0}, {M_BIAS}")
    A.e(f"v_add_u32 v{vBI}, s{s_t0}, v{vBI}")
    A.e(f"v_lshrrev_b32 v{T}, 2, v1")
    A.e(f"v_and_b32 v{T}, 3, v{T}")
    A.e(f"v_lshl_add_u32 v{T+2}, v{T+1}, 3, v{T}")
    A.e(f"v_lshlrev_b32 v{T+2}, 7, v{T+2}")
    A.e(f"v_lshrrev_b32 v{T}, 1, v{T}")
    A.e(f"v_lshl_add_u32 v{T+2}, v{T}, 6, v{T+2}")
    A.e(f"v_lshrrev_b32 v{T}, 4, v1")
    A.e(f"v_and_b32 v{T}, 1, v{T}")
    A.e(f"v_lshl_add_u32 v{T+2}, v{T}, 5, v{T+2}")
    A.e(f"v_and_b32 v{T}, 3, v1")
    A.e(f"v_lshl_add_u32 v{vAR}, v{T}, 3, v{T+2}")
    A.e(f"v_xor_b32 v{vAR+1}, 64, v{vAR}")
    for j in (1, 2):
        A.e(f"v_add_u32 v{vAR+2*j}, {j*2*SLOT}, v{vAR}")
        A.e(f"v_add_u32 v{vAR+2*j+1}, {j*2*SLOT}, v{vAR+1}")

def x_dma_ops(kl):
    slot = kl % 5
    o = []
    a = Op(f"s_mul_i32 s{s_t2}, s{s_w}, 20480", kind="salu")
    m = Op(f"s_add_u32 m0, s{s_t2}, {XRING + slot*4096}", kind="salu")
    s1 = Op(f"s_mul_hi_u32 s{s_so}, s{s_rw+kl}, {-(-(1 << 32)//4608)}", kind="salu")
    o += [a, m, s1]
    for i in range(4):
        if i == 2: o.append(Op(f"s_add_u32 s{s_so}, s{s_so}, 16384", kind="salu"))
        o.append(Op(f"buffer_load_dwordx4 v{vXD+(i&1)}, s[{sX}:{sX+3}], s{s_so} offen offset:{i*1024} lds", kind="vmem", tag=f"x{kl}", deps=[(m, 2)]))
    return o

def x_read(A, kl):
    slot = kl % 5
    for ks in range(4):
        st = 4*kl + ks
        A.ds(f"ds_read_b128 a[{aX+4*st}:{aX+4*st+3}], v{vXR+ks} offset:{slot*4096}", f"xr{kl}")

def w1_line_ops(st, j, slot):
    kl = 3*(st % 3) + j
    m = Op(f"s_add_u32 m0, s{s_wl}, {slot*SLOT + j*8192}", kind="salu")
    o = [m]
    for i in range(2):
        o.append(Op(f"buffer_load_dwordx4 v{vWD+i}, s[{sW1}:{sW1+3}], s{s_rw+kl} offen offset:{i*1024} lds", kind="vmem", tag=(f"W{kl}" if st < 3 else f"st{st}"), deps=[(m, 2)]))
    return o
def w1_dma_ops(st, slot, np_):
    o = []
    if st % 3 == 0 and st > 0:
        o += [Op(f"s_add_u32 s{s_pc}, s{s_pc}, 128", kind="salu"),
              Op(f"s_cmp_eq_u32 s{s_pc}, {128*np_}\n    s_cselect_b32 s{s_pc}, 0, s{s_pc}", kind="salu", cost=8),
              Op(f"s_add_u32 s{sW1}, s{p_w1}, s{s_pc}\n    s_addc_u32 s{sW1+1}, s{p_w1+1}, 0", kind="salu", cost=8)]
    for j in range(3): o += w1_line_ops(st, j, slot)
    return o

def mish_ops(pi, done_pos, hs_base):
    ops = []; stores = []
    cv = {}
    for grp in range(8):
        t2 = grp // 4
        es = [4*grp + i for i in range(4)]
        tb = MT + (grp % 2)*8
        m = [Op(f"v_mul_f32{E64} v{tb+2*i}, s{s_log2e}, v{TMP+e}", deps=[(done_pos[t2], 13)]) for i, e in enumerate(es)]
        x = [Op(f"v_exp_f32{E64} v{tb+2*i}, v{tb+2*i}", cost=8, trans=True, deps=[(m[i], 1)]) for i in range(4)]
        p = [Op(f"v_fma_f32 v{tb+2*i+1}, v{tb+2*i}, -0.5, -1.0", deps=[(x[i], 2)]) for i in range(4)]
        d = [Op(f"v_fma_f32 v{tb+2*i+1}, v{tb+2*i}, v{tb+2*i+1}, -1.0", deps=[(p[i], 1)]) for i in range(4)]
        r = [Op(f"v_rcp_f32{E64} v{tb+2*i+1}, v{tb+2*i+1}", cost=8, trans=True, deps=[(d[i], 1)]) for i in range(4)]
        y = [Op(f"v_fmac_f32{E64} v{TMP+e}, v{TMP+e}, v{tb+2*i+1}", deps=[(r[i], 2)]) for i, e in enumerate(es)]
        hb = hs_base + 2*grp
        c = [Op(f"v_cvt_pk_bf16_f32 v{hb+j}, v{TMP+es[2*j]}, v{TMP+es[2*j+1]}", deps=[(y[2*j], 1), (y[2*j+1], 1)]) for j in range(2)]
        if grp >= 2:
            for i in range(4):
                m[i].deps.append((cv[grp-2][3][i], 1))
                p[i].deps.append((cv[grp-2][2][i], 1))
        cv[grp] = (c, m, y, d)
        ops += m + x + p + d + r + y + c
        if grp % 2 == 1:
            q = grp // 2
            stores.append(Op(f"buffer_store_dwordx4 v[{hs_base+4*q}:{hs_base+4*q+3}], v{vL16}, s[{sWS}:{sWS+3}], s{s_hb} offen offset:{q*1024}{SC}",
                             kind="vmem", tag=f"h{pi}", deps=[(c[1], 1), (c[0], 1), (cv[grp-1][0][0], 1), (cv[grp-1][0][1], 1)]))
    stores.append(Op(f"s_add_u32 s{s_hb}, s{s_hb}, 4096", kind="salu", deps=[(stores[-1], 1)]))
    return ops, stores

def ut_sub(A, TMP):
    A.label("L_utsub")
    T = TMP + 20
    A.e(f"v_lshrrev_b32 v{T}, 4, v1")
    A.e(f"v_lshrrev_b32 v{T+1}, 2, v1")
    A.e(f"v_and_b32 v{T+1}, 3, v{T+1}")
    A.e(f"v_lshl_add_u32 v{T+1}, v{T}, 3, v{T+1}")
    A.e(f"v_and_b32 v{T+2}, 1, v1")
    A.e(f"v_lshlrev_b32 v{T+2}, 3, v{T+2}")
    A.e(f"v_lshl_add_u32 v{T+2}, v{T+1}, 7, v{T+2}")
    A.e(f"v_add_u32 v{T+2}, s{s_t3}, v{T+2}")
    A.e(f"v_lshrrev_b32 v{T+3}, 1, v1")
    A.e(f"v_and_b32 v{T+3}, 1, v{T+3}")
    A.e(f"v_lshrrev_b32 v{T+1}, 1, v{T+1}")
    A.e(f"v_and_b32 v{T+1}, 7, v{T+1}")
    A.e(f"v_xor_b32 v{T+3}, v{T+3}, v{T+1}")
    for cb in range(4):
        for rd in range(2):
            A.e(f"v_xor_b32 v{T+4+rd}, {(2*cb) ^ (2*rd)}, v{T+3}")
            A.e(f"v_lshl_add_u32 v{T+4+rd}, v{T+4+rd}, 4, v{T+2}")
            A.e(f"ds_read_b64_tr_b16 v[{TMP+4*cb+2*rd}:{TMP+4*cb+2*rd+1}], v{T+4+rd} offset:{rd*512}")
    A.e(f"v_and_b32 v{T+1}, 15, v1")
    A.e(f"v_mul_u32_u24 v{T+1}, {UT_PITCH}, v{T+1}")
    A.e(f"v_lshl_add_u32 v{T+1}, v{T}, 4, v{T+1}")
    A.e(f"s_mul_i32 s{s_t0}, s{s_line}, {64*UT_PITCH}")
    A.e(f"s_add_u32 s{s_t0}, s{s_t0}, s{s_upos}")
    A.e(f"s_add_u32 s{s_t0}, s{s_t0}, {WS_UT + 128}")
    A.e("s_waitcnt lgkmcnt(0)")
    for cb in range(4):
        A.e(f"buffer_store_dwordx4 v[{TMP+4*cb}:{TMP+4*cb+3}], v{T+1}, s[{sWS}:{sWS+3}], s{s_t0} offen{SC}")
        A.e(f"s_add_u32 s{s_t0}, s{s_t0}, {16*UT_PITCH}")
    A.e(f"s_cmp_lg_u32 s{s_upos}, 0")
    A.e(f"s_cbranch_scc1 L_utz")
    A.e(f"v_mul_u32_u24 v{T+1}, {UT_PITCH}, v1")
    A.e(f"s_mul_i32 s{s_t0}, s{s_line}, {64*UT_PITCH}")
    A.e(f"s_add_u32 s{s_t0}, s{s_t0}, {WS_UT + 112}")
    for i in range(4): A.e(f"v_mov_b32 v{TMP+16+i}, 0")
    A.e(f"buffer_store_dwordx4 v[{TMP+16}:{TMP+19}], v{T+1}, s[{sWS}:{sWS+3}], s{s_t0} offen{SC}")
    A.label("L_utz")
    A.e(f"s_setpc_b64 s[{s_ret}:{s_ret+1}]")

def ut_check(A, kl):
    lab = A.newlabel("L_utc")
    A.e(f"s_cmp_lg_u32 s{s_upos}, {kl}")
    A.e(f"s_cbranch_scc1 {lab}")
    A.e(f"s_mov_b32 s{s_t3}, {XRING + (kl % 5)*4096}")
    A.e(f"s_call_b64 s[{s_ret}:{s_ret+1}], L_utsub")
    A.label(lab)

def bias_read(A, pi):
    for t2 in range(2):
        for g in range(4):
            A.ds(f"ds_read_b128 v[{BIAS+16*t2+4*g}:{BIAS+16*t2+4*g+3}], v{vBI} offset:{(32*t2+8*g)*4}", f"bias{pi}")

class Ring:
    def __init__(self): self.slot = {0: 0, 1: 1, 2: 2}; self.free = []; self.freed = set(); self.next = 3
    def release(self, st):
        if st >= 0 and st not in self.freed and st in self.slot:
            self.freed.add(st); self.free.append(self.slot[st])
    def alloc(self, nst):
        out = []
        while self.free and self.next < nst:
            self.slot[self.next] = self.free.pop(0); out.append(self.next); self.next += 1
        return out

def a_reads(A, gs, ring):
    st, ks = gs // 12, gs % 12
    slot = ring.slot[st]
    buf = aA + 8*(gs % 6)
    for t2 in range(1 if ('halfread' in EXP and gs >= 40) else 2):
        for rd in range(2):
            A.ds(f"ds_read_b64_tr_b16 a[{buf+4*t2+2*rd}:{buf+4*t2+2*rd+1}], v{vAR+2*(slot//2)+t2} offset:{(slot%2)*SLOT + (16*ks+4*rd)*128}", f"a{gs}")

def p1_first_loads(A, gate):
    A.e(f"v_lshlrev_b32 v{MT+2}, 1, v0")
    A.vmem(f"buffer_load_ushort v{MT}, v{MT+2}, s[{sT0}:{sT0+3}], s{s_so} offen", "b1")
    A.vmem(f"buffer_load_ushort v{MT+1}, v{MT+2}, s[{sT0}:{sT0+3}], s{s_so} offen offset:512", "b1")
    if gate:
        T = MT + 4
        A.e(f"v_and_b32 v{T}, 127, v0")
        A.e(f"v_lshrrev_b32 v{T+1}, 3, v{T}")
        A.e(f"v_add_u32 v{T+1}, s{s_rho}, v{T+1}")
        A.e(f"v_subrev_u32 v{T+2}, 9, v{T+1}")
        A.e(f"v_min_u32 v{T+1}, v{T+1}, v{T+2}")
        A.e(f"v_and_b32 v{T+2}, 7, v{T}")
        A.e(f"v_lshlrev_b32 v{T+2}, 4, v{T+2}")
        A.e(f"v_lshl_add_u32 v{T+1}, v{T+1}, 7, v{T+2}")
        A.e(f"s_and_b32 s{s_t0}, s{s_w}, 1")
        A.e(f"s_lshl_b32 s{s_t0}, s{s_t0}, 10")
        A.e(f"s_add_u32 m0, s{s_t0}, {M_GW}")
        A.e("s_nop 0")
        A.vmem(f"buffer_load_dwordx4 v{T+1}, s[{sT1}:{sT1+3}], 0 offen lds", "gw")
    for k in FIRST[:NFIRST]: emit_now(A, first_ops(k))
    if 'dry' in EXP:
        for k in ("x5", "W5", "x6", "W6", "x7", "W7", "x8", "W8"): emit_now(A, first_ops(k))
        A.e("s_waitcnt vmcnt(0)")
FIRST = ("x0", "W0", "x1", "W1", "x2", "W2", "x3", "W3", "x4", "W4", "W5", "W6", "W7", "W8")
NFIRST = 4
N2 = int(os.environ.get('N2', 6))
P0V = int(os.environ.get('P0V', 1))
def p1_second_loads(A):
    for k in FIRST[NFIRST:N2]: emit_now(A, first_ops(k))
def first_ops(k):
    n = int(k[1])
    return x_dma_ops(n) if k[0] == "x" else w1_line_ops(n // 3, n % 3, n // 3)
def counter_arrive(A):
    lab = A.newlabel("L_cnt")
    A.e(f"s_cmp_lg_u32 s{s_w}, 0")
    A.e(f"s_cbranch_scc1 {lab}")
    A.e(f"v_mov_b32 v{vS}, 1")
    A.e("s_mov_b64 exec, 1")
    A.e(f"buffer_atomic_add v{vS}, off, s[{sDBG}:{sDBG+3}], 0 sc1")
    A.e("s_mov_b64 exec, -1")
    A.label(lab)

def p1_main(A, np_, keep, do_ut, gate, nst_total, other_dma, tail_hook=None, pre=None, counter=True):
    nst = 3*np_; nsteps = 36*np_
    ring = Ring()
    A.c("---- bias to LDS (fp32)")
    A.wait_vm("b1")
    A.e(f"v_lshlrev_b32 v{MT}, 16, v{MT}")
    A.e(f"v_lshlrev_b32 v{MT+1}, 16, v{MT+1}")
    A.e(f"v_lshlrev_b32 v{MT+2}, 2, v0")
    A.e(f"v_add_u32 v{MT+2}, {M_BIAS}, v{MT+2}")
    A.ds(f"ds_write_b32 v{MT+2}, v{MT}", "bw")
    A.ds(f"ds_write_b32 v{MT+2}, v{MT+1} offset:1024", "bw")
    A.wait_vm(["x0", "W0"])
    x_read(A, 0)
    A.wait_lg("bw")
    A.e("s_barrier")
    stamp(A, 2)
    if counter: counter_arrive(A)
    if do_ut: ut_check(A, 0)
    bias_read(A, 0)
    def gw_read(gs): A.ds(f"ds_read_b128 v[{HS+4*(gs%8)}:{HS+4*(gs%8)+3}], v{vGW} offset:{32*gs}", f"a{gs}")
    for gs in range(4):
        if gate: gw_read(gs)
        a_reads(A, gs, ring)
    memq = Filler(A); valq = Filler(A); stq = Filler(A)
    done = {}
    xsched = {0: ([1], [1]), 4: ([2], [2]), 8: ([3], [3]), 12: ([4], [4]), 16: ([5], [5]), 20: ([6], [6]), 24: ([7, 8], [7, 8]), 28: ([], [])}
    xdma = {0: ["x5", "W5"], 4: ["x6", "W6"], 8: ["x7", "W7"], 12: ["x8", "W8"]}
    for k in FIRST[N2:10]: memq.add(first_ops(k))
    def dma_ops(st):
        return w1_dma_ops(st, ring.slot[st], np_) if st < nst else other_dma(st, ring.slot[st])
    for gs in range(nsteps):
        pair, s = gs // 36, gs % 36
        st, ks = gs // 12, gs % 12
        if gs == 36: stamp(A, 3)
        if s == 0 and pair > 0:
            pp = pair - 1
            hs = ACC3 if pp == 0 else HS + 16*(pp - 1)
            ops, stores = mish_ops(pp, [lambda p=pp: done.get((p, 0)), lambda p=pp: done.get((p, 1))], hs)
            if pair == 1 and gate:
                g0 = A.n
                go = [Op(f"v_add_f32 v{HS}, v{GA}, v{GA+4}", deps=[(lambda: g0, 8)])]
                go.append(Op(f"v_mov_b32 v{HS+1}, v{HS}", deps=[(go[0], 1)]))
                go.append(Op(f"v_permlane32_swap_b32 v{HS}, v{HS+1}", deps=[(go[1], 3)]))
                go.append(Op(f"v_add_f32 v{HS}, v{HS}, v{HS+1}", deps=[(go[2], 1)]))
                go.append(Op(f"v_mul_f32 v{HS}, s{s_log2e}, v{HS}", deps=[(go[3], 1)]))
                go.append(Op(f"v_exp_f32 v{HS}, -v{HS}", cost=8, trans=True, deps=[(go[4], 1)]))
                go.append(Op(f"v_add_f32 v{HS}, 1.0, v{HS}", deps=[(go[5], 2)]))
                go.append(Op(f"v_rcp_f32 v{HS}, v{HS}", cost=8, trans=True, deps=[(go[6], 1)]))
                go.append(Op(f"v_and_b32 v{HS+1}, 31, v1", deps=[(go[3], 1)]))
                go.append(Op(f"v_lshlrev_b32 v{HS+1}, 2, v{HS+1}", deps=[(go[8], 1)]))
                for o in ops[:12]: o.deps.append((go[0], 1))
                for o in ops[26:30]: o.deps.append((go[0], 1))
                valq.add(go)
                go2 = Op(f"s_lshl_b32 s{s_t1}, s{s_w}, 7\n    s_add_u32 s{s_t1}, s{s_t1}, {M_G}\n    v_add_u32 v{HS+1}, s{s_t1}, v{HS+1}\n    ds_write_b32 v{HS+1}, v{HS}", kind="ds", tag="gatew", cost=16, deps=[(go[7], 2), (go[9], 1)])
                valq.add([go2])
            if pre and pair == np_ - 1: valq.add(pre.pre_p2_ops())
            if 'nomish' not in EXP: valq.add(ops)
            if 'nomish' not in EXP and 'nost' not in EXP: stq.add(stores)
        if pre and gs >= 40 and (gs - 40) % 18 == 0 and gs < 40 + 8*18 and 'nopf' not in EXP and 'w2pfbig' in EXP: memq.add(pre.w2_warm_ops((gs - 40)//72, ((gs - 40)//18) % 4))
        if pre and gs == nsteps - 14: memq.add(pre.flagcopy_ops(counter=True))
        for t2 in range(2):
            if s == 0 and t2 == 0: A.wait_lg([f"bias{pair}", f"a{gs}", "xr0"])
            acc = ACC + 16*t2
            cin = (BIAS + 16*t2) if s == 0 else acc
            dst = (TMP + 16*t2) if s == 35 else acc
            if s == 35: assert not valq.q
            buf = aA + 8*(gs % 6) + 4*t2
            A.e(f"v_mfma_f32_32x32x16_bf16 v[{dst}:{dst+15}], a[{buf}:{buf+3}], a[{aX+4*s}:{aX+4*s+3}], v[{cin}:{cin+15}]")
            if s == 35: done[(pair, t2)] = A.n - 1
            if t2 == 0:
                n0 = A.n
                bar = False
                if gs in xdma and 'dry' not in EXP:
                    for k in xdma[gs]: memq.add(first_ops(k))
                if gs in xsched:
                    xs, ws = xsched[gs]
                    tg = [f"x{k}" for k in xs] + [f"W{k}" for k in ws]
                    while any(o.tag in tg for o in memq.q):
                        o = memq.q.pop(0)
                        while not memq.ready(o): A.e("s_nop 0")
                        memq.emit(o)
                    A.wait_vm(tg)
                    if gs == 28: A.wait_lg("xr8")
                    A.e("s_barrier"); bar = True
                elif ks == 8 and st + 1 < nst_total:
                    tags = [f"st{st+1}"]
                    fl = None
                    if st % 3 == 1 and pair == np_ - 1: tags.append(f"h{pair-2}"); fl = 1
                    A.wait_vm(tags); A.e("s_barrier"); bar = True
                    if fl and 'noflag' not in EXP: stq.q = flag_store_ops(0) + stq.q
                if bar:
                    for k in range(st + 1):
                        if 12*k + 11 < gs: ring.release(k)
                    if gs == 28: ring.free += [3, 4, 5]
                    for k in ring.alloc(nst_total):
                        if not ('now1' in EXP and k >= 3): memq.add(dma_ops(k))
                if gs % 2 == 0:
                    A.wait_lg([f"a{gs+1}", f"a{gs+2}"] + ([f"xr{(gs+1)//4}", f"xr{(gs+2)//4}"] if pair == 0 else []))
                if gs in xsched:
                    for k in xsched[gs][0]: x_read(A, k)
                if gs + 4 < nsteps:
                    if gate and gs + 4 < 36: gw_read(gs + 4)
                    a_reads(A, gs + 4, ring)
                elif tail_hook: tail_hook(A, gs, ring)
                if gs in xsched and do_ut and 'nout' not in EXP:
                    for k in xsched[gs][0]: ut_check(A, k)
                if s == 20 and pair + 1 < np_:
                    A.e(f"s_add_u32 s{s_loc_bp}, s{s_loc_bp}, 1")
                    A.e(f"s_cmp_eq_u32 s{s_loc_bp}, {np_}")
                    A.e(f"s_cselect_b32 s{s_t0}, {hex((-256*np_) & 0xffffffff)}, 0")
                    A.e(f"s_cselect_b32 s{s_loc_bp}, 0, s{s_loc_bp}")
                    A.e(f"s_add_u32 s{s_t0}, s{s_t0}, 256")
                    A.e(f"v_add_u32 v{vBI}, s{s_t0}, v{vBI}")
                    bias_read(A, pair + 1)
                used = 4*(A.n - n0) - (8 if ('halfread' in EXP) else 16)
                bud = max(0, (16 if 'halfread' in EXP else 8) - used)
                if pair == 0: bud = max(bud, 8) + 8
                u = stq.fill(bud, window=1)
                nv = 0
                while memq.q and (u < bud or memq.q[0].cost > 16 or (len(memq.q) > 14 and u < bud + 8)) and memq.ready(memq.q[0]):
                    o = memq.q[0]
                    if o.kind == "vmem":
                        if nv >= (P0V if pair == 0 else (1 if len(memq.q) <= 14 else 2)): break
                        nv += 1
                    memq.q.pop(0); memq.emit(o); u += o.cost
                valq.fill(max(0, bud - u), allow_trans=False, window=40)
            else:
                if gate and pair == 0 and 'nogate' not in EXP:
                    g = HS + 4*(gs % 8)
                    for hh in range(2):
                        c = "0" if gs == 0 else f"v[{GA+4*hh}:{GA+4*hh+3}]"
                        A.e(f"v_mfma_f32_4x4x4_16b_bf16 v[{GA+4*hh}:{GA+4*hh+3}], v[{g+2*hh}:{g+2*hh+1}], a[{aX+4*s+2*hh}:{aX+4*s+2*hh+1}], {c}")
                if pair == 0:
                    u = 0
                    nv = 0
                    while memq.q and u < 20 and memq.ready(memq.q[0]):
                        o = memq.q.pop(0); memq.emit(o); u += o.cost
                        if o.kind == "vmem":
                            nv += 1
                            if nv == P0V: break
                rem = 33 - s
                work = valq.total() + stq.total() + min(memq.total(), 8*max(rem, 0))
                bud = 24
                while work - bud > max(rem, 0)*(40 if 'halfread' in EXP else 32) and bud < 40: bud += 4
                fill_odd(valq, bud)
                if s == 34: valq.drain(); stq.drain()
    pp = np_ - 1
    hs = ACC3 if pp == 0 else HS + 16*(pp - 1)
    ops, stores = mish_ops(pp, [lambda p=pp: done.get((p, 0)), lambda p=pp: done.get((p, 1))], hs)
    valq.add(ops); stq.add(stores)
    return ring, memq, valq, stq
```

```python
from common import *
from p1f import Ring
aH, aR = 0, 208
s_sl, s_hs, s_r5, s_rr, s_pb, s_need, s_lane, s_val, s_w2l = 66, 70, 74, 79, 82, 83, 84, 85, 3
s_fp, s_ev = 74, 75
s_r3 = 56
vFL, vFA = vXD, vXD + 1
SEQ = [(0, k) for k in range(1, 6)] + [(0, 0)] + [(1, k) for k in range(5)] + [(2, k) for k in range(5)] + [(1, 5), (2, 5)]
G0 = 18
def acc2(t): return [32, 48, 96, 112, 224, 240][t]

def p2_setup(A):
    A.c("---- P2 setup")
    T = MT + 4
    A.e(f"s_mul_i32 s{s_w2l}, s{s_w}, 6144")
    A.e(f"s_mul_i32 s{s_t0}, s{s_r}, 24576")
    A.e(f"s_sub_u32 s{s_t0}, s{s_hb}, s{s_t0}")
    A.e(f"s_mul_i32 s{s_t1}, s{s_kq}, {1152*1152}")
    A.e(f"s_mul_i32 s{s_t2}, s{s_r}, 384")
    A.e(f"s_add_u32 s{s_t1}, s{s_t1}, s{s_t2}")
    for idx in range(3):
        A.e(f"s_add_u32 s{s_t2}, s{s_r}, {idx}")
        mod_small(A, s_t2, s_t2, 3)
        if idx: A.e(f"s_mov_b32 s{s_rr+idx-1}, s{s_t2}")
        A.e(f"s_mul_i32 s{s_t3}, s{s_t2}, {384*1152}")
        A.e(f"s_add_u32 s{s_sl+idx}, s{s_t1}, s{s_t3}")
        A.e(f"s_mul_i32 s{s_t3}, s{s_t2}, 24576")
        A.e(f"s_add_u32 s{s_hs+idx}, s{s_t0}, s{s_t3}")
    A.e(f"s_mul_i32 s{s_t0}, s{s_w}, {16*1152}")
    for i3 in range(3):
        A.e(f"v_add_u32 v{T}, {64*i3}, v1")
        A.e(f"v_mul_u32_u24 v{T+1}, 2731, v{T}")
        A.e(f"v_lshrrev_b32 v{T+1}, 16, v{T+1}")
        A.e(f"v_mul_u32_u24 v{T+2}, 24, v{T+1}")
        A.e(f"v_sub_u32 v{T+2}, v{T}, v{T+2}")
        A.e(f"v_lshlrev_b32 v{T+3}, 1, v{T+1}")
        A.e(f"v_and_b32 v{T+3}, 4, v{T+3}")
        A.e(f"v_xor_b32 v{T+2}, v{T+2}, v{T+3}")
        A.e(f"v_mul_u32_u24 v{T+1}, 1152, v{T+1}")
        A.e(f"v_lshl_add_u32 v{T+1}, v{T+2}, 4, v{T+1}")
        A.e(f"v_add_u32 v{T+1}, s{s_t0}, v{T+1}")
        for g in range(2):
            i = 3*g + i3
            A.e(f"v_add_u32 v{vW2D+i}, {hex((g*8*1152 - (i&3)*1024) & 0xffffffff)}, v{T+1}")
    A.e(f"v_lshrrev_b32 v{T}, 2, v1")
    A.e(f"v_and_b32 v{T}, 3, v{T}")
    A.e(f"v_lshrrev_b32 v{T+1}, 5, v1")
    A.e(f"v_lshl_add_u32 v{T+1}, v{T+1}, 2, v{T}")
    A.e(f"v_mul_u32_u24 v{T+1}, 384, v{T+1}")
    A.e(f"v_lshrrev_b32 v{T+2}, 4, v1")
    A.e(f"v_and_b32 v{T+2}, 1, v{T+2}")
    A.e(f"v_lshl_add_u32 v{T+1}, v{T+2}, 5, v{T+1}")
    A.e(f"v_and_b32 v{T+2}, 3, v1")
    A.e(f"v_lshl_add_u32 v{T+1}, v{T+2}, 3, v{T+1}")
    A.e(f"v_lshrrev_b32 v{T}, 1, v{T}")
    A.e(f"v_lshlrev_b32 v{T}, 6, v{T}")
    A.e(f"v_add_u32 v{vA2}, v{T+1}, v{T}")
    A.e(f"v_sub_u32 v{vA2+1}, v{T+1}, v{T}")
    for j in (1, 2):
        A.e(f"v_add_u32 v{vA2+2*j}, {j*2*SLOT}, v{vA2}")
        A.e(f"v_add_u32 v{vA2+2*j+1}, {j*2*SLOT}, v{vA2+1}")

def hreg(step):
    if step < 20: return f"v[{HS+4*step}:{HS+4*step+3}]"
    k = step - 20
    return f"a[{aH+4*k}:{aH+4*k+3}]"

def w2_dma_ops(gst, slot):
    k = gst - G0
    idx, pi = SEQ[k]
    tag = f"st{gst}"
    m0a = Op(f"s_add_u32 m0, s{s_w2l}, {slot*SLOT}", kind="salu")
    so = Op(f"s_add_u32 s{s_so}, s{s_sl+idx}, {pi*64*1152}", kind="salu")
    o = [m0a, so]
    for i in range(4):
        o.append(Op(f"buffer_load_dwordx4 v{vW2D+i}, s[{sW2}:{sW2+3}], s{s_so} offen offset:{i*1024} lds", kind="vmem", tag=tag, deps=[(m0a, 2)]))
    m0b = Op(f"s_add_u32 m0, s{s_w2l}, {slot*SLOT + 4096}", kind="salu")
    o.append(m0b)
    for i in range(4, 6):
        o.append(Op(f"buffer_load_dwordx4 v{vW2D+i}, s[{sW2}:{sW2+3}], s{s_so} offen offset:{(i&3)*1024} lds", kind="vmem", tag=tag, deps=[(m0b, 2)]))
    return o
def h_load_ops(k):
    idx, pi = SEQ[k]
    so = Op(f"s_add_u32 s{s_t2}, s{s_hs+idx}, {pi*4096}", kind="salu")
    o = [so]
    for j in range(4):
        o.append(Op(f"buffer_load_dwordx4 {hreg(4*k+j)}, v{vL16}, s[{sWS}:{sWS+3}], s{s_t2} offen offset:{j*1024}{SC}", kind="vmem", tag=f"st{G0+k}"))
    return o
def flagcopy_ops(counter=False, ev=0):
    if counter:
        m2 = Op(f"s_mul_i32 s{s_val}, s{s_w}, 772\n    s_add_u32 m0, s{s_val}, {M_FL + 256}\n    s_nop 0", kind="salu", cost=12)
        return [m2, Op(f"buffer_load_dword v{vFL}, s[{sDBG}:{sDBG+3}], 0 offen lds{SC}", kind="vmem", tag="cc", deps=[(m2, 1)])]
    m = Op(f"s_mul_i32 s{s_val}, s{s_w}, 768\n    s_add_u32 m0, s{s_val}, {M_FL}\n    s_and_b32 s{s_val}, s{s_fi}, 0xffffff80\n    s_add_u32 s{s_val}, s{s_val}, {ev*8192}", kind="salu", cost=16)
    o = [m, Op(f"buffer_load_dword v{vFL}, s[{sWS}:{sWS+3}], s{s_val} offen lds{SC}", kind="vmem", tag="fc", deps=[(m, 1)])]
    return o

def poll_sub(A):
    A.label("L_poll")
    A.e(f"s_mov_b32 s{s_t0}, 0x20000")
    A.e(f"v_and_b32 v{TMP2}, 3, v1")
    A.e(f"v_lshlrev_b32 v{TMP2}, 4, v{TMP2}")
    A.label("L_poll_loop")
    A.e("s_sleep 4")
    A.e(f"s_and_b32 s{s_val}, s{s_fi}, 0xffffffcf")
    A.e(f"s_add_u32 s{s_val}, s{s_val}, s{s_need}")
    A.e(f"buffer_load_dword v{TMP2+1}, v{TMP2}, s[{sWS}:{sWS+3}], s{s_val} offen{SC}")
    A.e("s_waitcnt vmcnt(0)")
    A.e(f"v_readlane_b32 s{s_val}, v{TMP2+1}, s{s_lane}")
    A.e(f"s_sub_u32 s{s_t0}, s{s_t0}, 1")
    A.e("s_cbranch_scc1 L_poll_out")
    A.e(f"s_cmp_eq_u32 s{s_val}, 0")
    A.e("s_cbranch_scc1 L_poll_loop")
    A.label("L_poll_out")
    A.e(f"s_setpc_b64 s[{s_ret}:{s_ret+1}]")
    A.label("L_pollc")
    A.e(f"s_mov_b32 s{s_t0}, 0x20000")
    A.label("L_pollc_loop")
    A.e("s_sleep 2")
    A.e(f"buffer_load_dword v{TMP2+1}, off, s[{sDBG}:{sDBG+3}], 0{SC}")
    A.e("s_waitcnt vmcnt(0)")
    A.e(f"v_readfirstlane_b32 s{s_val}, v{TMP2+1}")
    A.e(f"s_sub_u32 s{s_t0}, s{s_t0}, 1")
    A.e("s_cbranch_scc1 L_pollc_out")
    A.e(f"s_cmp_lt_u32 s{s_val}, 256")
    A.e("s_cbranch_scc1 L_pollc_loop")
    A.label("L_pollc_out")
    A.e(f"s_setpc_b64 s[{s_ret}:{s_ret+1}]")
TMP2 = vXR
vFC = vXR + 2

def check(A, lane_sgpr, need):
    lab = A.newlabel("L_chk")
    A.e(f"v_readlane_b32 s{s_val}, v{vFC}, s{lane_sgpr}")
    A.e(f"s_movk_i32 s{s_need}, {need*8192}")
    A.e(f"s_mov_b32 s{s_lane}, s{lane_sgpr}")
    A.e(f"s_cmp_ge_u32 s{s_val}, {need+1}")
    A.e(f"s_cbranch_scc1 {lab}")
    A.e(f"s_call_b64 s[{s_ret}:{s_ret+1}], L_poll")
    A.label(lab)
def check_counter(A):
    lab = A.newlabel("L_chk")
    A.e(f"v_readfirstlane_b32 s{s_val}, v{vFC+1}")
    A.e("s_nop 0")
    A.e(f"s_cmp_ge_u32 s{s_val}, 256")
    A.e(f"s_cbranch_scc1 {lab}")
    A.e(f"s_call_b64 s[{s_ret}:{s_ret+1}], L_pollc")
    A.label(lab)

def a2_read(A, j, ring):
    step, t = j // 6, j % 6
    k, ks = step // 4, step % 4
    slot = ring.slot[G0 + k]
    buf = aR + 4*(j % 12)
    for rd in range(2):
        A.ds(f"ds_read_b64_tr_b16 a[{buf+2*rd}:{buf+2*rd+1}], v{vA2+2*(slot//2)+(t&1)} offset:{(slot%2)*SLOT + (16*ks+8*rd)*384 + t*64}", f"f{j}")

LEAD = 7
def tail_hook(A, gs, ring):
    k = gs - (36*NP - 4)
    for j in (2*k, 2*k + 1):
        if j < LEAD: a2_read(A, j, ring)

def w2_warm_ops(k):
    t = [f"s_mul_i32 s{s_val}, s{s_m7}, 3", f"s_add_u32 s{s_val}, s{s_val}, s{s_r}", f"s_lshl_b32 s{s_val}, s{s_val}, 2", f"s_add_u32 s{s_val}, s{s_val}, s{s_w}",
         f"s_add_u32 s{s_val}, s{s_val}, {96*k}", f"s_cmp_lt_u32 s{s_val}, 162", f"s_cselect_b32 s{s_val}, s{s_val}, 0x8000", f"s_lshl_b32 s{s_val}, s{s_val}, 13",
         f"s_mul_i32 s{s_need}, s{s_kq}, {1152*1152}", f"s_add_u32 s{s_val}, s{s_val}, s{s_need}", f"v_lshlrev_b32 v{vXR}, 7, v1",
         f"buffer_load_dword a{192+k}, v{vXR}, s[{sW2}:{sW2+3}], s{s_val} offen"]
    return [Op("\n    ".join(t), kind="vmem", tag="w2pf", cost=56)]

def pre_p2_ops():
    o = [Op(f"v_and_b32 v{vFL}, 31, v1\n    v_lshlrev_b32 v{vFL}, 2, v{vFL}", cost=8),
         Op(f"v_and_b32 v{vFA}, 3, v1"),
         Op(f"v_lshlrev_b32 v{vFA}, 4, v{vFA}"),
         Op(f"s_mul_i32 s{s_val}, s{s_w}, 772\n    s_add_u32 s{s_val}, s{s_val}, {M_FL}\n    v_add_u32 v{vFA}, s{s_val}, v{vFA}", cost=12)]
    for i in range(1, 4): o[i].deps.append((o[i-1], 1))
    o.append(Op(f"v_mov_b32 v{vFC}, 0"))
    o.append(Op(f"s_mul_i32 s{s_val}, s{s_w}, 768\n    s_add_u32 s{s_val}, s{s_val}, {M_FL}\n    v_lshl_add_u32 v{vFC+1}, v1, 2, s{s_val}\n    ds_write2st64_b32 v{vFC+1}, v{vFC}, v{vFC} offset0:0 offset1:1", cost=16, kind="ds", tag="fz", deps=[(o[0], 1), (o[4], 1)]))
    return o

def p2_main(A, ring, memq, valq, stq):
    N = 432
    checks = {41: [("c",), (s_rr, 0)], 137: [(s_rr, 1), (s_rr+1, 1)], 281: [(s_rr, 2), (s_rr+1, 2)]}
    flags = {41: ("h4", 1), 113: ("h5", 2)}
    hnext = 5
    A.wait_lg("f0")
    for j in range(N):
        if j == 0: stamp(A, 4)
        if j == 120: stamp(A, 5)
        step, t = j // 6, j % 6
        k = step // 4
        acc = acc2(t)
        buf = aR + 4*(j % 12)
        cin = "0" if step == 0 else f"v[{acc}:{acc+15}]"
        if step == 16 and t == 0: assert not valq.q, "mish(4) not finished"
        A.e(f"v_mfma_f32_32x32x16_bf16 v[{acc}:{acc+15}], a[{buf}:{buf+3}], {hreg(step)}, {cin}")
        n0 = A.n
        if (j + LEAD) % 24 == 0 and k + 1 < 18:
            tags = [f"st{G0+k+1}"]
            if j in flags: tags.append(flags[j][0])
            if j == 17: tags.append("cc")
            A.wait_vm(tags); A.e("s_barrier")
            if j in flags: stq.q = flag_store_ops(flags[j][1]) + stq.q
            ring.release(G0 + k - 1)
            for c in checks.get(j, []):
                assert not any(o.tag == "fc" for o in memq.q)
                A.wait_lg("fcr")
                if c[0] == "c": check_counter(A)
                else: check(A, *c)
            if j + 24 in checks:
                assert not memq.q
                memq.add(flagcopy_ops(ev=checks[j + 24][-1][1]))
            for g in ring.alloc(G0 + 18):
                if 'now2' not in EXP: memq.add(w2_dma_ops(g, ring.slot[g]))
            while hnext <= k + 5 and hnext < 18:
                if 'noh' not in EXP: memq.add(h_load_ops(hnext))
                hnext += 1
        if j % 3 == 0:
            A.wait_lg([f"f{j+1}", f"f{j+2}", f"f{j+3}"])
        if j + LEAD < N: a2_read(A, j + LEAD, ring)
        if j + 4 in checks:
            A.ds(f"ds_read_b32 v{vFC}, v{vFA}", "fcr")
            if j + 4 == 41: A.ds(f"ds_read_b32 v{vFC+1}, v{vFA} offset:256", "fcr")
        used = 4*(A.n - n0)
        bud = max(0, 24 - used)
        u = stq.fill(min(bud, 8), window=1)
        if u == 0:
            while memq.q and u < bud and memq.ready(memq.q[0]):
                o = memq.q[0]
                if o.kind == "vmem" and j % 2 == 1 and len(memq.q) < 20: break
                memq.q.pop(0); memq.emit(o); u += o.cost
                if o.kind == "vmem": break
        if valq.q:
            b2 = max(0, bud - u)
            if valq.total() > 11*(92 - j): b2 += 4
            if j >= 92: b2 = 1000
            fill_odd(valq, b2)
    assert not memq.q and not stq.q and not valq.q

PKR = [TMP + 4*i for i in range(8)] + [MT + 4*i for i in range(4)]
def tail(A, ring):
    OWN = ring.slot[G0 + 15]*SLOT; YT = OWN + 12288
    A.c("---- tail: export partials")
    stamp(A, 6)
    A.e(f"s_mul_i32 s{s_pb}, s{s_m}, 3")
    A.e(f"s_add_u32 s{s_pb}, s{s_pb}, s{s_r}")
    A.e(f"s_lshl_b32 s{s_pb}, s{s_pb}, 2")
    A.e(f"s_add_u32 s{s_t0}, s{s_pb}, s{s_w}")
    A.e(f"s_lshl_b32 s{s_t0}, s{s_t0}, 2")
    A.e(f"s_add_u32 s{s_t0}, s{s_t0}, s{s_kq}")
    A.e(f"s_mul_i32 s{s_t0}, s{s_t0}, 12288")
    A.e(f"s_add_u32 s{s_t0}, s{s_t0}, {WS_P}")
    A.e(f"s_add_u32 s{s_pb}, s{s_pb}, s{s_kq}")
    A.e(f"s_mul_i32 s{s_pb}, s{s_pb}, 49152")
    A.e(f"s_mul_i32 s{s_t1}, s{s_w}, 3072")
    A.e(f"s_add_u32 s{s_pb}, s{s_pb}, s{s_t1}")
    A.e(f"s_add_u32 s{s_pb}, s{s_pb}, {WS_P}")
    for p in range(12):
        t, kk = p // 2, p % 2
        R = PKR[p]; a = acc2(t) + 8*kk
        for d in range(4): A.e(f"v_cvt_pk_bf16_f32 v{R+d}, v{a+2*d}, v{a+2*d+1}")
        if p:
            Q = PKR[p-1]
            A.e(f"v_permlane32_swap_b32 v{Q}, v{Q+2}"); A.e(f"v_permlane32_swap_b32 v{Q+1}, v{Q+3}")
    A.nop(2)
    Q = PKR[11]
    A.e(f"v_permlane32_swap_b32 v{Q}, v{Q+2}"); A.e(f"v_permlane32_swap_b32 v{Q+1}, v{Q+3}")
    A.e(f"s_cmp_eq_u32 s{s_w}, s{s_kq}")
    A.e("s_cbranch_scc1 L_own")
    for p in range(12):
        if p % 4 == 0 and p: A.e(f"s_add_u32 s{s_t0}, s{s_t0}, 4096")
        A.e(f"buffer_store_dwordx4 v[{PKR[p]}:{PKR[p]+3}], v{vL16}, s[{sWS}:{sWS+3}], s{s_t0} offen offset:{(p%4)*1024}{SC}")
    A.e(f"v_mov_b32 v{vS}, 1")
    A.e("s_waitcnt vmcnt(0)")
    A.e(f"buffer_store_dword v{vS}, off, s[{sWS}:{sWS+3}], s{s_fp}{SC}")
    A.e("s_branch L_own_done")
    A.label("L_own")
    A.e(f"v_add_u32 v{vS}, {OWN}, v{vL16}")
    for p in range(12):
        A.e(f"ds_write_b128 v{vS}, v[{PKR[p]}:{PKR[p]+3}] offset:{p*1024}")
    A.e("s_waitcnt lgkmcnt(0)")
    A.label("L_own_done")
    A.vm = []; A.lg = []
    A.c("---- poll y flags (22 conv WGs x 4 waves), then a^T DMA")
    V = 32
    A.e(f"s_mul_i32 s{s_t1}, s{s_r}, 21")
    A.e(f"v_add_u32 v{V}, s{s_t1}, v1")
    A.e(f"s_lshl_b32 s{s_t2}, s{s_m}, 2")
    A.e(f"s_add_u32 s{s_t2}, s{s_t2}, s{s_kq}")
    A.e(f"v_mov_b32 v{V+1}, s{s_t2}")
    A.e("v_cmp_lt_u32 vcc, 21, v1")
    A.e(f"s_lshl_b32 s{s_need}, s{s_t2}, 7")
    A.e(f"s_add_u32 s{s_need}, s{s_need}, {WS_GT}")
    A.e(f"v_cndmask_b32 v{V}, v{V}, v{V+1}, vcc")
    A.e(f"v_lshlrev_b32 v{V}, 4, v{V}")
    A.e(f"s_mov_b32 s{s_t1}, {F_Y}")
    A.e(f"s_mov_b32 s{s_t0}, 0x20000")
    A.e(f"v_and_b32 v{V+8}, 31, v1")
    A.label("L_py")
    A.e(f"buffer_load_dwordx4 v[{V+4}:{V+7}], v{V}, s[{sWS}:{sWS+3}], s{s_t1} offen{SC}")
    A.e("s_waitcnt vmcnt(0)")
    A.e(f"v_min_u32 v{V+4}, v{V+4}, v{V+5}")
    A.e(f"v_min3_u32 v{V+4}, v{V+4}, v{V+6}, v{V+7}")
    A.e(f"v_cmp_gt_u32 vcc, 1, v{V+4}")
    A.e(f"s_sub_u32 s{s_t0}, s{s_t0}, 1")
    A.e("s_cbranch_scc1 L_py_out")
    A.e("s_sleep 2")
    A.e("s_cbranch_vccnz L_py")
    A.label("L_py_out")
    A.e(f"v_lshlrev_b32 v{V+9}, 2, v{V+8}")
    A.e(f"buffer_load_dword v{V+10}, v{V+9}, s[{sWS}:{sWS+3}], s{s_need} offen{SC}")
    A.e(f"v_lshrrev_b32 v{V+1}, 2, v1")
    A.e(f"v_lshlrev_b32 v{V+1}, 12, v{V+1}")
    A.e(f"v_and_b32 v{V+2}, 3, v1")
    A.e(f"v_lshl_add_u32 v{V+1}, v{V+2}, 4, v{V+1}")
    A.e(f"s_mul_i32 s{s_t1}, s{s_r}, 192")
    A.e(f"s_mul_i32 s{s_t2}, s{s_w}, 48")
    A.e(f"s_add_u32 s{s_line}, s{s_t1}, s{s_t2}")
    A.e(f"s_lshl_b32 s{s_t1}, s{s_line}, 12")
    A.e(f"s_lshl_b32 s{s_upos}, s{s_m}, 7")
    A.e(f"s_lshl_b32 s{s_t2}, s{s_kq}, 5")
    A.e(f"s_add_u32 s{s_upos}, s{s_upos}, s{s_t2}")
    A.e(f"s_lshl_b32 s{s_t2}, s{s_upos}, 1")
    A.e(f"s_add_u32 s{s_t1}, s{s_t1}, s{s_t2}")
    A.e(f"s_add_u32 s{s_t1}, s{s_t1}, {WS_Y}")
    A.e(f"s_mul_i32 s{s_t2}, s{s_w}, 3072")
    for i in range(3):
        A.e(f"s_add_u32 m0, s{s_t2}, {YT + 1024*i}")
        A.e("s_nop 0")
        A.e(f"buffer_load_dwordx4 v{V+1}, s[{sWS}:{sWS+3}], s{s_t1} offen lds{SC}")
        if i < 2: A.e(f"s_add_u32 s{s_t1}, s{s_t1}, 65536")
    A.c("---- poll partial flags: producers (m,kq',nq) wave kq")
    A.e(f"v_and_b32 v{V}, 3, v1")
    A.e(f"v_cmp_eq_u32 s[{s_ret}:{s_ret+1}], s{s_kq}, v{V}")
    A.e(f"v_lshlrev_b32 v{V}, 2, v{V}")
    A.e(f"s_and_b32 s{s_t1}, s{s_fp}, 0xfffffe00")
    A.e(f"s_lshl_b32 s{s_t0}, s{s_kq}, 7")
    A.e(f"s_add_u32 s{s_t1}, s{s_t1}, s{s_t0}")
    A.e(f"s_mov_b32 s{s_t0}, 0x20000")
    A.label("L_pp")
    A.e(f"buffer_load_dword v{V+4}, v{V}, s[{sWS}:{sWS+3}], s{s_t1} offen{SC}")
    A.e("s_waitcnt vmcnt(0)")
    A.e(f"v_cmp_gt_u32 vcc, 1, v{V+4}")
    A.e(f"s_sub_u32 s{s_t0}, s{s_t0}, 1")
    A.e("s_cbranch_scc1 L_pp_out")
    A.e(f"s_andn2_b64 vcc, vcc, s[{s_ret}:{s_ret+1}]")
    A.e("s_sleep 1")
    A.e("s_cbranch_vccnz L_pp")
    A.label("L_pp_out")
    PB = 48
    for q in range(3):
        A.e(f"s_cmp_le_u32 s{s_kq}, {q}")
        A.e(f"s_cselect_b32 s{s_t1}, 12288, 0")
        A.e(f"s_add_u32 s{s_t1}, s{s_t1}, s{s_pb}")
        if q < 2: A.e(f"s_add_u32 s{s_pb}, s{s_pb}, 12288")
        for i in range(3):
            A.vmem(f"buffer_load_dwordx4 v[{PB+12*q+4*i}:{PB+12*q+4*i+3}], v{vL16}, s[{sWS}:{sWS+3}], s{s_t1} offen offset:{1024*i}{SC}", "imp")
    A.e("s_barrier")
    OW, YA = 96, 112
    A.e(f"s_add_u32 s{s_t2}, s{s_t2}, {OWN}")
    A.e(f"v_add_u32 v{V+2}, s{s_t2}, v{vL16}")
    for i in range(3): A.ds(f"ds_read_b128 v[{OW+4*i}:{OW+4*i+3}], v{V+2} offset:{1024*i}", "own")
    A.e(f"v_lshrrev_b32 v{V+3}, 2, v1")
    A.e(f"v_and_b32 v{V+3}, 3, v{V+3}")
    A.e(f"v_lshrrev_b32 v{V+4}, 5, v1")
    A.e(f"v_lshl_add_u32 v{V+3}, v{V+4}, 3, v{V+3}")
    A.e(f"v_lshlrev_b32 v{V+3}, 6, v{V+3}")
    A.e(f"v_and_b32 v{V+5}, 16, v1")
    A.e(f"v_lshl_add_u32 v{V+3}, v{V+5}, 1, v{V+3}")
    A.e(f"v_and_b32 v{V+5}, 3, v1")
    A.e(f"v_lshl_add_u32 v{V+3}, v{V+5}, 3, v{V+3}")
    A.e(f"v_add_u32 v{V+3}, s{s_t2}, v{V+3}")
    for i in range(3):
        for rd in range(2):
            A.ds(f"ds_read_b64_tr_b16 v[{YA+4*i+2*rd}:{YA+4*i+2*rd+1}], v{V+3} offset:{12288 + 1024*i + 256*rd}", "ya")
    A.e(f"v_mul_u32_u24 v{V+8}, 1152, v{V+8}")
    A.e(f"v_lshl_add_u32 v{V+8}, v{V+4}, 4, v{V+8}")
    A.e(f"s_mul_i32 s{s_t1}, s{s_upos}, 1152")
    A.e(f"s_lshl_b32 s{s_t0}, s{s_line}, 1")
    A.e(f"s_add_u32 s{s_t1}, s{s_t1}, s{s_t0}")
    A.wait_all()
    S = 128
    for i in range(3):
        for d in range(4):
            srcs = [OW + 4*i + d] + [PB + 12*q + 4*i + d for q in range(3)]
            y = YA + 4*i + d
            lo, hi = S + 2*d, S + 2*d + 1
            A.e(f"v_lshlrev_b32 v{lo}, 16, v{srcs[0]}")
            A.e(f"v_and_b32 v{hi}, 0xffff0000, v{srcs[0]}")
            for sreg in srcs[1:]:
                A.e(f"v_lshlrev_b32 v{S+8}, 16, v{sreg}")
                A.e(f"v_and_b32 v{S+9}, 0xffff0000, v{sreg}")
                A.e(f"v_pk_add_f32 v[{lo}:{hi}], v[{lo}:{hi}], v[{S+8}:{S+9}]")
            A.e(f"v_lshlrev_b32 v{S+8}, 16, v{y}")
            A.e(f"v_and_b32 v{S+9}, 0xffff0000, v{y}")
            A.e(f"v_pk_add_f32 v[{S+8}:{S+9}], v[{S+8}:{S+9}], v[{lo}:{hi}] neg_lo:[0,1] neg_hi:[0,1]")
            A.e(f"v_pk_fma_f32 v[{lo}:{hi}], v[{S+8}:{S+9}], v[{V+10}:{V+11}], v[{lo}:{hi}] op_sel_hi:[1,0,1]")
            A.e(f"v_cvt_pk_bf16_f32 v{S+12+4*i+d}, v{lo}, v{hi}")
        A.vmem(f"buffer_store_dwordx4 v[{S+12+4*i}:{S+15+4*i}], v{V+8}, s[{sT1}:{sT1+3}], s{s_t1} offen offset:{32*i}", "o")
```

```python
import sys, os
from common import *
import p1f, p2f
import conv4 as convf
import kc4
from p1f import *
s_fp = p2f.s_fp

def fused():
    A = Asm()
    K = NAME + "_kernel"
    A.raw(kernel_head(K))
    stamp(A, 0)
    A.e("s_cmp_ge_u32 s2, 256")
    A.e("s_cbranch_scc1 L_end")
    for r, n in ((sX, "u"), (p_w1, "w1"), (sWS, "ws"), (sW2, "w2"), (sDBG, "dbg")):
        A.e(f"s_load_dwordx2 s[{r}:{r+1}], s[0:1], {KA[n]}")
    if 'nocpf' not in EXP:
        A.e(f"s_getpc_b64 s[{s_ret}:{s_ret+1}]")
        A.label("L_cpf_pc")
        A.e("v_lshrrev_b32 v2, 6, v0")
        A.e("s_lshr_b32 s3, s2, 3")
        A.e("s_lshl_b32 s3, s3, 2")
        A.e("v_add_u32 v2, s3, v2")
        A.e("v_and_b32 v2, 7, v2")
        A.e("v_lshlrev_b32 v2, 13, v2")
        A.e("v_and_b32 v3, 63, v0")
        A.e("v_lshl_add_u32 v2, v3, 7, v2")
        A.e("v_min_u32 v2, L_codeend-L_cpf_pc-4, v2")
        A.e("v_and_b32 v2, -4, v2")
        A.vmem(f"global_load_dword a255, v2, s[{s_ret}:{s_ret+1}]", "cpf")
    setup_common(A)
    A.e(f"v_mov_b32 v{vS}, 0")
    A.e("s_waitcnt lgkmcnt(0)")
    for r, n in ((sX, L_*D_*2), (sWS, WS_BYTES), (sW2, D_*F_*2), (sDBG, 256)):
        A.e(f"s_mov_b32 s{r+2}, {hex(n)}"); A.e(f"s_mov_b32 s{r+3}, 0x00020000")
    if 'wsend' in EXP:
        A.e(f"s_add_u32 s{sWS}, s{sWS}, {WS_BYTES - 0x2A00000}"); A.e(f"s_addc_u32 s{sWS+1}, s{sWS+1}, 0"); A.e(f"s_mov_b32 s{sWS+2}, 0x2A00000")
    A.e(f"s_mov_b32 s{p_ws}, s{sWS}"); A.e(f"s_mov_b32 s{p_ws+1}, s{sWS+1}")
    A.e(f"s_cmp_eq_u32 s{s_r}, 3")
    A.e("s_cbranch_scc1 L_conv")
    A.e(f"s_mul_i32 s{s_fp}, s{s_m}, 3")
    A.e(f"s_add_u32 s{s_fp}, s{s_fp}, s{s_r}")
    A.e(f"s_lshl_b32 s{s_fp}, s{s_fp}, 2")
    A.e(f"s_add_u32 s{s_fp}, s{s_fp}, s{s_w}")
    A.e(f"s_lshl_b32 s{s_fp}, s{s_fp}, 5")
    A.e(f"s_add_u32 s{s_fp}, s{s_fp}, s{s_kq}")
    A.e(f"s_lshl_b32 s{s_fp}, s{s_fp}, 2")
    A.e(f"s_add_u32 s{s_fp}, s{s_fp}, {F_P}")
    A.e("v_lshlrev_b32 v2, 13, v1")
    A.e(f"v_add_u32 v2, s{s_fi}, v2")
    A.e("v_cmp_gt_u32 vcc, 3, v1")
    A.e(f"v_mov_b32 v3, s{s_fp}")
    A.e("s_nop 0")
    A.e("v_cndmask_b32 v2, v3, v2, vcc")
    A.vmem(f"buffer_store_dword v{vS}, v2, s[{sWS}:{sWS+3}], 0 offen{SC}", "fz")
    if 'kgst' in EXP: A.e("s_endpgm")
    A.e(f"s_load_dwordx2 s[{sT0}:{sT0+1}], s[0:1], {KA['b1']}")
    A.e(f"s_load_dwordx2 s[{sT1}:{sT1+1}], s[0:1], {KA['out']}")
    p1_setup(A, NP)
    A.e(f"s_mov_b32 s{sT0+2}, {F_*2}"); A.e(f"s_mov_b32 s{sT0+3}, 0x00020000")
    A.e(f"s_mov_b32 s{sT1+2}, {L_*D_*2}"); A.e(f"s_mov_b32 s{sT1+3}, 0x00020000")
    A.e("s_waitcnt lgkmcnt(0)")
    stamp(A, 1)
    if 'ramp' in EXP:
        for n in range(9):
            emit_now(A, first_ops(f"x{n}")); emit_now(A, first_ops(f"W{n}"))
        stamp(A, 2)
        for i, n in enumerate((0, 2, 4, 6, 8)):
            A.wait_vm([f"W{n}"]); stamp(A, 3 + i)
        stamp_flush(A); A.e("s_endpgm")
    p1_first_loads(A, gate=False)
    p1_setup2(A)
    p2f.p2_setup(A)
    p1_second_loads(A)
    def hook(A_, gs, ring): p2f.tail_hook(A_, gs, ring)
    ring, memq, valq, stq = p1_main(A, NP, True, False, False, 36, p2f.w2_dma_ops, hook, pre=p2f)
    p2f.p2_main(A, ring, memq, valq, stq)
    p2f.tail(A, ring)
    A.wait_all()
    stamp(A, 7)
    stamp_flush(A)
    A.e("s_endpgm")
    A.label("L_conv")
    A.vm = ["cpf"]; A.lg = []
    A.e(f"s_lshr_b32 s{s_fi}, s{s_fi}, 7")
    A.e(f"s_and_b32 s{s_fi}, s{s_fi}, 63")
    A.e(f"s_lshl_b32 s{s_fi}, s{s_fi}, 2")
    A.e(f"s_add_u32 s{s_fi}, s{s_fi}, s{s_w}")
    A.e(f"s_lshl_b32 s{s_fi}, s{s_fi}, 2")
    A.e(f"s_add_u32 s{s_fi}, s{s_fi}, {F_U}")
    A.e("v_and_b32 v2, 1, v1")
    A.e("v_lshlrev_b32 v2, 12, v2")
    A.vmem(f"buffer_store_dword v{vS}, v2, s[{sWS}:{sWS+3}], s{s_fi} offen{SC}", "fz")
    if 'noconv' in EXP: A.e("s_endpgm")
    kc4.kgen_all(A)
    if 'kgonly' in EXP:
        stamp(A, 7); stamp_flush(A); A.e("s_endpgm")
    if 'ramp' in EXP: A.e("s_endpgm")
    if 'kgst' in EXP:
        stamp(A, 7); stamp_flush(A); A.e("s_endpgm")
    convf.conv_all(A, ldflag=SC, stflag=SC)
    A.e(f"v_mov_b32 v{vS}, 1")
    A.e(f"s_add_u32 s{s_fi}, s{s_fi}, 4096")
    A.e("s_waitcnt vmcnt(0)")
    A.e(f"buffer_store_dword v{vS}, off, s[{sWS}:{sWS+3}], s{s_fi}{SC}")
    A.wait_all()
    stamp(A, 7)
    stamp_flush(A)
    A.label("L_end")
    A.e("s_endpgm")
    ut_sub(A, kc4.POOL[0])
    kc4.kchan_sub(A)
    p2f.poll_sub(A)
    kc4.tables(A)
    A.label("L_codeend")
    return A.text(), KD.format(name=K, vgpr=512, accum=256)

HDR = open("cdna_kernels/" + NAME + ".s.ref").read().split("; Override launch")[0]
if __name__ == "__main__":
    t, kd = fused()
    s = HDR + f"; @launch grid=(256,1,1) block=(256,1,1) lds={LDS_BYTES}\n" + '.amdgcn_target "amdgcn-amd-amdhsa--gfx950"\n.text\n' + t + '.section .rodata,"a"\n.p2align 6\n' + kd
    open(sys.argv[1], "w").write(s)
```

```python
from common import *
import math, p1f
L2E_HI = struct.unpack('<f', struct.pack('<f', LOG2E))[0]
L2E_LO = LOG2E - L2E_HI
LN2 = math.log(2.0)
WREG = 40960
SU, SR = 4640, 4480
RA_OFF, RB_OFF, U_OFF = 0, 8960, 17920
SCR = 8960
T_OFF = 17920
TS_ENT = 2304
ZIDX = 2300
WS_R9 = WS_G
s_ch0, s_lb, s_dt, s_dsk, s_cA, s_cB, s_cC, s_ci, s_rdst, s_yo, s_rnd, s_dl = 56, 57, 58, 59, 60, 61, 62, 63, 64, 65, 66, 67
sP0, sP1, sU, sPF = 68, 72, 68, 72
sP2, sP3 = sT0, sT1
s_pf = 76
s_ret2 = 54
vW, vRD, vSc, vGa = 32, 48, 52, 64
vDt, vDk, vPF, vRW, vZW, vPL = 4, 5, 6, 7, 8, 20
vPar = 100
vCur = 112
vZ = 116
POOL = (124, 180)
vCV = 236
vD = 10
def a_table():
    t = []
    for row in range(16): t.append((row & 7) + 128*(row >> 3))
    for row in range(16):
        t.append(256 + 128*(row >> 2) + 2*(row & 3) if row < 8 else 512 + 128*((row-8) >> 1) + 4*(row & 1))
    for row in range(16): t.append(1024 + 128*row if row <= 8 else 2100)
    return t

def exp_bf16_multi(A, items):
    for d, x, a, b in items: A.e(f"v_mul_f32 v{a}, s{s_cA}, v{x}")
    for d, x, a, b in items: A.e(f"v_fma_f32 v{b}, v{x}, s{s_cA}, -v{a}")
    for d, x, a, b in items: A.e(f"v_exp_f32 v{a}, v{a}")
    for d, x, a, b in items: A.e(f"v_fma_f32 v{b}, v{x}, s{s_cB}, v{b}")
    for d, x, a, b in items: A.e(f"v_mul_f32 v{b}, s{s_cC}, v{b}")
    for d, x, a, b in items: A.e(f"v_fma_f32 v{a}, v{a}, v{b}, v{a}")
    for d, x, a, b in items: A.e(f"v_cvt_pk_bf16_f32 v{a}, v{a}, v{a}")
    for d, x, a, b in items: A.e(f"v_lshlrev_b32 v{d}, 16, v{a}")

def pf_hook(A, k):
    if 'nopf' not in EXP:
        A.e(f"buffer_load_dword a{200+k}, v{vPF}, s[{sPF}:{sPF+3}], s{s_pf+k} offen")

class Ch:
    def __init__(self, A):
        self.A = A; self.reg = {}; self.free = list(range(0, 56, 2)); self.cvn = 0; self.pend = []
    def alloc(self, name):
        self.reg[name] = self.free.pop(0); return self.reg[name]
    def rel(self, *names):
        for n in names: self.free.append(self.reg.pop(n))
    def r(self, name, m): return POOL[m] + self.reg[name]
    def muls(self, lst):
        for d, x, y in lst: self.alloc(d)
        for d, x, y in lst:
            for m in range(2):
                D, X, M = self.r(d, m), self.r(x, m), self.r(y, m)
                self.A.e(f"v_pk_mul_f32 v[{D}:{D+1}], v[{X}:{X+1}], v[{M}:{M+1}] op_sel_hi:[1,0]")
        for d, x, y in lst:
            for m in range(2):
                D, X, M = self.r(d, m), self.r(x, m), self.r(y, m)
                self.A.e(f"v_pk_fma_f32 v[{D}:{D+1}], v[{X}:{X+1}], v[{M}:{M+1}], v[{D}:{D+1}] op_sel:[1,1,0] op_sel_hi:[0,1,1] neg_lo:[1,0,0]")
    def put(self, items):
        A = self.A; slot = 0; w = []
        for i, oa, na, ob, nb in items:
            regs = []
            for o, n in ((oa, na), (ob, nb)):
                if n is None: continue
                c = vCV + 2*slot; slot += 1
                assert slot <= 10
                for m in range(2):
                    if n == "one": A.e(f"v_mov_b32 v{c+m}, 0x3f80")
                    else:
                        X = self.r(n, m)
                        A.e(f"v_cvt_pk_bf16_f32 v{c+m}, v{X}, {'-' if o == 41 else ''}v{X+1}")
                regs.append((o, c))
            w.append((i, regs))
        for i, regs in w:
            if len(regs) == 2:
                A.e(f"ds_write2st64_b64 v{vW+i}, v[{regs[0][1]}:{regs[0][1]+1}], v[{regs[1][1]}:{regs[1][1]+1}] offset0:{regs[0][0]} offset1:{regs[1][0]}")
            else:
                A.e(f"ds_write_b64 v{vW+i}, v[{regs[0][1]}:{regs[0][1]+1}] offset:{regs[0][0]*512}")

def kchan_sub(A):
    A.label("L_kchan")
    C = Ch(A)
    A.e(f"v_readlane_b32 s{s_dt}, v{vDt}, s{s_ci}")
    A.e(f"v_readlane_b32 s{s_dsk}, v{vDk}, s{s_ci}")
    T = vCV
    A.e(f"v_lshlrev_b32 v{T}, 16, v{vCur}")
    A.e(f"v_and_b32 v{T+1}, 0xffff0000, v{vCur}")
    A.e(f"v_lshlrev_b32 v{vZ+1}, 16, v{vCur+1}")
    A.e(f"v_and_b32 v{vZ+5}, 0xffff0000, v{vCur+1}")
    exp_bf16_multi(A, [(vZ, T, T+2, T+3), (vZ+4, T+1, T+4, T+5)])
    A.e(f"v_lshlrev_b32 v{vZ+2}, 16, v{vCur+2}")
    A.e(f"v_and_b32 v{vZ+6}, 0xffff0000, v{vCur+2}")
    A.e(f"v_lshlrev_b32 v{vZ+3}, 16, v{vCur+3}")
    A.e(f"v_and_b32 v{vZ+7}, 0xffff0000, v{vCur+3}")
    for k in range(8): A.e(f"v_mul_f32 v{vZ+k}, s{s_dt}, v{vZ+k}")
    for m in range(2):
        A.e(f"v_mul_f32 v{vZ+4*m}, {fhex(-LOG2E)}, v{vZ+4*m}")
        A.e(f"v_mul_f32 v{vZ+4*m+1}, 0.15915494, v{vZ+4*m+1}")
    pf_hook(A, 0)
    Ps = [1, 8, 128, 512, 1024]
    for P in Ps: C.alloc(f"E{P}")
    C.alloc("B0")
    for m in range(2):
        b = C.r("B0", m)
        A.e(f"v_add_f32 v{b}, v{vZ+4*m+2}, v{vZ+4*m+2}")
        A.e(f"v_add_f32 v{b+1}, v{vZ+4*m+3}, v{vZ+4*m+3}")
    tt = lambda k, m: T + 4*k + 2*m
    for k, P in enumerate(Ps):
        for m in range(2):
            if P == 1:
                A.e(f"v_mov_b32 v{tt(k,m)}, v{vZ+4*m}"); A.e(f"v_fract_f32 v{tt(k,m)+1}, v{vZ+4*m+1}")
            else:
                A.e(f"v_mul_f32 v{tt(k,m)}, {fhex(float(P))}, v{vZ+4*m}")
                A.e(f"v_mul_f32 v{tt(k,m)+1}, {fhex(float(P))}, v{vZ+4*m+1}")
    for k, P in enumerate(Ps):
        if P == 1: continue
        for m in range(2): A.e(f"v_fract_f32 v{tt(k,m)+1}, v{tt(k,m)+1}")
    for k, P in enumerate(Ps):
        for m in range(2):
            d = C.r(f"E{P}", m)
            A.e(f"v_exp_f32 v{tt(k,m)}, v{tt(k,m)}")
            A.e(f"v_cos_f32 v{d}, v{tt(k,m)+1}")
            A.e(f"v_sin_f32 v{d+1}, v{tt(k,m)+1}")
    A.e("s_nop 0")
    for k, P in enumerate(Ps):
        for m in range(2):
            d = C.r(f"E{P}", m)
            A.e(f"v_pk_mul_f32 v[{d}:{d+1}], v[{d}:{d+1}], v[{tt(k,m)}:{tt(k,m)+1}] op_sel_hi:[1,0]")
    C.muls([("E2", "E1", "E1"), ("E256", "E128", "E128"), ("E640", "E512", "E128"), ("E129", "E128", "E1"), ("E16", "E8", "E8"), ("B1", "B0", "E8"), ("T1", "E1024", "E128")])
    C.put([(0, 0, "one", 16, "E256"), (8, 0, "E128", 16, "E512"), (0, 32, "E1024", 41, "B0"), (1, 32, "T1", 41, "B1")])
    C.rel("E8")
    C.muls([("E3", "E2", "E1"), ("E4", "E2", "E2"), ("E384", "E256", "E128"), ("E768", "E512", "E256"), ("E130", "E128", "E2"), ("E258", "E256", "E2"),
            ("B2", "B0", "E16"), ("B3", "B1", "E16"), ("T2", "E1024", "E256"), ("T3", "T1", "E256")])
    C.rel("B0", "B1", "T1", "E1024")
    C.put([(10, 0, "E130", 16, "E640"), (1, 0, "E1", 16, "E258"), (4, 0, "E4", 16, "E384"), (2, 32, "T2", 41, "B2"), (3, 32, "T3", 41, "B3")])
    C.rel("E130", "E258")
    pf_hook(A, 1)
    C.muls([("E260", "E256", "E4"), ("E516", "E512", "E4"), ("E132", "E128", "E4"), ("E131", "E128", "E3"), ("E644", "E640", "E4"),
            ("B4", "B2", "E16"), ("B5", "B3", "E16"), ("T4", "T2", "E256"), ("T5", "T3", "E256")])
    C.rel("B2", "B3", "T2", "T3", "E640")
    C.put([(2, 0, "E2", 16, "E260"), (9, 0, "E129", 16, "E516"), (12, 0, "E132", 16, "E768"), (11, 0, "E131", 16, "E644"), (4, 32, "T4", 41, "B4")])
    C.rel("E260", "E129", "E516", "E132", "E131", "E644")
    C.muls([("E5", "E4", "E1"), ("E6", "E4", "E2"), ("E7", "E4", "E3"), ("E896", "E512", "E384"), ("E386", "E384", "E2"), ("E388", "E384", "E4"), ("E772", "E768", "E4"),
            ("B6", "B4", "E16"), ("B7", "B5", "E16"), ("T6", "T4", "E256"), ("T7", "T5", "E256")])
    C.put([(5, 32, "T5", 41, "B5"), (5, 0, "E5", 16, "E386"), (6, 0, "E6", 16, "E388"), (6, 32, "T6", 41, "B6"), (7, 32, "T7", 41, "B7")])
    C.rel("B4", "B5", "T4", "T5", "E386", "E388", "E1", "E2", "E512", "E768", "T7")
    pf_hook(A, 2)
    C.muls([("E262", "E256", "E6"), ("E390", "E384", "E6"), ("E133", "E128", "E5"), ("E134", "E128", "E6"), ("E135", "E128", "E7"), ("E900", "E896", "E4"),
            ("B8", "B6", "E16"), ("B9", "B7", "E16"), ("T8", "T6", "E256")])
    C.put([(3, 0, "E3", 16, "E262"), (7, 0, "E7", 16, "E390"), (13, 0, "E133", 16, "E772"), (14, 0, "E134", 16, "E896"), (15, 0, "E135", 16, "E900")])
    C.rel("B6", "B7", "T6", "E262", "E390", "E133", "E134", "E135", "E900")
    C.muls([("B10", "B8", "E16"), ("B11", "B9", "E16")])
    C.put([(8, 32, "T8", 41, "B8"), (9, 41, "B9", 0, None)])
    C.muls([("B12", "B10", "E16"), ("B13", "B11", "E16")])
    C.put([(10, 41, "B10", 0, None), (11, 41, "B11", 0, None)])
    C.muls([("B14", "B12", "E16"), ("B15", "B13", "E16")])
    C.put([(12, 41, "B12", 0, None), (13, 41, "B13", 0, None), (14, 41, "B14", 0, None), (15, 41, "B15", 0, None)])
    A.e(f"s_mov_b32 s{s_t0}, {F_U}")
    A.e(f"s_waitcnt vmcnt({0 if 'nopf' in EXP else 3})")
    if 'nopoll' not in EXP: A.e(f"buffer_load_dwordx4 v[{vPL}:{vPL+3}], v{vPL+5}, s[{sWS}:{sWS+3}], s{s_t0} offen{SC}")
    A.lg = []
    A.e("s_waitcnt lgkmcnt(0)")
    D = POOL[0]
    for ks in range(8):
        A.ds(f"ds_read_b128 a[{4*ks}:{4*ks+3}], v{vRD+(ks&3)} offset:{41*512 + (ks>>2)*256}", f"kb{ks}")
        for t in range(3):
            A.ds(f"ds_read_b128 a[{32+32*t+4*ks}:{35+32*t+4*ks}], v{vRD+(ks&3)} offset:{t*8192 + (ks>>2)*256}", f"ka{ks}{t}")
        if ks >= 2:
            for t in range(3):
                k2 = ks - 2
                A.wait_lg([f"ka{k2}{t}"])
                A.e(f"v_mfma_f32_16x16x32_bf16 v[{D+4*t}:{D+4*t+3}], a[{32+32*t+4*k2}:{35+32*t+4*k2}], a[{4*k2}:{4*k2+3}], {'0' if k2 == 0 else f'v[{D+4*t}:{D+4*t+3}]'}")
    for k2 in (6, 7):
        for t in range(3):
            A.wait_lg([f"ka{k2}{t}"])
            A.e(f"v_mfma_f32_16x16x32_bf16 v[{D+4*t}:{D+4*t+3}], a[{32+32*t+4*k2}:{35+32*t+4*k2}], a[{4*k2}:{4*k2+3}], v[{D+4*t}:{D+4*t+3}]")
    A.e("s_nop 0")
    A.e(f"v_mov_b32 v{T}, 0")
    A.e(f"v_writelane_b32 v{T}, s{s_dsk}, 0")
    for k in range(4): A.e(f"v_mov_b32 v{T+4+k}, 0")
    A.e(f"v_add_u32 v{T+2}, s{s_rdst}, v{vRW}")
    A.e(f"v_add_u32 v{T+3}, s{s_rdst}, v{vZW}")
    A.e(f"v_add_f32 v{D}, v{D}, v{T}")
    for k in range(12): A.e(f"ds_write_b32 v{vSc+k}, v{D+k}")
    A.e(f"ds_write_b32 v{9}, v{T+4}")
    A.e(f"ds_write_b128 v{T+3}, v[{T+4}:{T+7}]")
    A.e("s_waitcnt lgkmcnt(0)")
    G = POOL[0] + 12
    for k in range(4):
        for e in range(9): A.ds(f"ds_read_b32 v{G+9*k+e}, v{vGa+9*k+e}", f"g{k}")
    O = POOL[1]
    for k in range(4):
        A.wait_lg(f"g{k}")
        g = G + 9*k
        for e in range(4): A.e(f"v_cvt_pk_bf16_f32 v{O+8*k+e}, v{g+2*e+1}, v{g+2*e+2}")
        for e in range(4): A.e(f"v_cvt_pk_bf16_f32 v{O+8*k+4+e}, v{g+2*e}, v{g+2*e+1}")
    for k in range(4):
        A.e(f"ds_write_b128 v{T+2}, v[{O+8*k}:{O+8*k+3}] offset:{1024*k}")
        A.e(f"ds_write_b128 v{T+2}, v[{O+8*k+4}:{O+8*k+7}] offset:{SR + 1024*k}")
    A.e("s_waitcnt lgkmcnt(0)")
    A.lg = []
    A.e(f"s_setpc_b64 s[{s_ret}:{s_ret+1}]")

vGX, vGG = POOL[0], POOL[1]
def kc_setup(A):
    A.c("======== conv role setup")
    for r, n in ((sP0, 'loga'), (sP1, 'aim'), (sP2, 'cre'), (sP3, 'cim'), (76, 'logdt'), (80, 'dskip'), (84, 'gw')):
        A.e(f"s_load_dwordx2 s[{r}:{r+1}], s[0:1], {KA[n]}")
    A.e(f"s_lshl_b32 s{s_ch0}, s{s_m}, 2")
    A.e(f"s_add_u32 s{s_ch0}, s{s_ch0}, s{s_kq}")
    A.e(f"s_mul_i32 s{s_ch0}, s{s_ch0}, 9")
    A.e(f"s_mul_i32 s{s_lb}, s{s_w}, {WREG}")
    for r, n in ((sP0, D_*256), (sP1, D_*256), (sP2, D_*256), (sP3, D_*256), (76, D_*2), (80, D_*2)):
        A.e(f"s_mov_b32 s{r+2}, {n}"); A.e(f"s_mov_b32 s{r+3}, 0x00020000")
    T = vCV
    A.e(f"v_lshlrev_b32 v{T}, 2, v1")
    A.e(f"v_min_u32 v{T+1}, 8, v1")
    A.e(f"v_add_u32 v{T+1}, s{s_ch0}, v{T+1}")
    A.e(f"v_lshlrev_b32 v{T+1}, 1, v{T+1}")
    A.e(f"s_add_u32 s{s_t0}, s{s_ch0}, s{s_w}")
    A.e(f"s_lshl_b32 s{s_t0}, s{s_t0}, 8")
    A.e(f"s_add_u32 s{s_t1}, s{s_ch0}, 8")
    A.e(f"s_lshl_b32 s{s_t1}, s{s_t1}, 8")
    A.e(f"s_lshl_b32 s{s_upos}, s{s_m}, 7")
    A.e(f"s_lshl_b32 s{s_t2}, s{s_kq}, 5")
    A.e(f"s_add_u32 s{s_upos}, s{s_upos}, s{s_t2}")
    A.e(f"v_lshrrev_b32 v{T+4}, 3, v1")
    A.e(f"v_and_b32 v{T+5}, 7, v1")
    A.e(f"v_add_u32 v{T+6}, s{s_upos}, v{T+4}")
    A.e(f"v_mul_u32_u24 v{T+6}, 1152, v{T+6}")
    A.e(f"v_lshrrev_b32 v{T+7}, 1, v{T+4}")
    A.e(f"v_xor_b32 v{T+7}, v{T+7}, v{T+5}")
    A.e(f"v_lshl_add_u32 v{vXD}, v{T+7}, 4, v{T+6}")
    A.e(f"v_xor_b32 v{vXD+1}, 64, v{vXD}")
    A.e(f"v_add_u32 v{vXD+1}, 8192, v{vXD+1}")
    A.e(f"s_lshl_b32 s{s_upos}, s{s_upos}, 1")
    A.e("s_waitcnt lgkmcnt(0)")
    for slot, (so, off) in enumerate(((s_t1, 0), (s_t0, 0), (s_t0, 1024))):
        for k, srd in enumerate((sP0, sP1, sP2, sP3)):
            A.vmem(f"buffer_load_dword v{vPar+4*slot+k}, v{T}, s[{srd}:{srd+3}], s{so} offen offset:{off}", "kp")
    A.vmem(f"buffer_load_ushort v{vDt}, v{T+1}, s[76:79], 0 offen", "kp")
    A.vmem(f"buffer_load_ushort v{vDk}, v{T+1}, s[80:83], 0 offen", "kp")
    A.e(f"s_getpc_b64 s[{s_ret}:{s_ret+1}]")
    A.label("L_kg_pc")
    A.e(f"s_add_u32 s{s_ret}, s{s_ret}, L_atab-L_kg_pc")
    A.e(f"s_addc_u32 s{s_ret+1}, s{s_ret+1}, 0")
    A.e(f"v_and_b32 v{T+2}, 48, v1")
    for t in range(3):
        A.vmem(f"global_load_dwordx4 v[{vSc+4*t}:{vSc+4*t+3}], v{T+2}, s[{s_ret}:{s_ret+1}] offset:{64*t}", "kp")
    A.e(f"s_cmp_eq_u32 s{s_w}, 0")
    A.e("s_cbranch_scc1 L_xp_skip")
    A.e(f"s_mov_b32 s80, s84"); A.e("s_mov_b32 s81, s85")
    A.e(f"s_mul_i32 s{s_line}, s{s_w}, 3")
    A.e(f"s_sub_u32 s{s_line}, s{s_line}, 3")
    for q in range(3):
        A.e(f"s_add_u32 m0, s{s_lb}, {SCR + 4096*q}")
        A.e(f"s_add_u32 s{s_so}, s{s_line}, {q}")
        A.e(f"s_lshl_b32 s{s_so}, s{s_so}, 7")
        for i in range(4):
            if i == 2: A.e(f"s_add_u32 s{s_so}, s{s_so}, 16384")
            A.e(f"buffer_load_dwordx4 v{vXD+(i&1)}, s[{sX}:{sX+3}], s{s_so} offen offset:{i*1024} lds")
    A.e(f"v_and_b32 v{T+3}, 1, v1")
    A.e(f"v_lshlrev_b32 v{T+3}, 6, v{T+3}")
    A.e(f"s_lshl_b32 s{s_so}, s{s_line}, 7")
    for q in range(3):
        for c in range(4):
            A.e(f"buffer_load_dwordx4 v[{vGG+16*q+4*c}:{vGG+16*q+4*c+3}], v{T+3}, s[80:83], s{s_so} offen offset:{128*q+16*c}")
    A.label("L_xp_skip")
    A.e(f"s_mul_i32 s{s_t0}, s{s_kq}, 2304")
    A.e(f"s_add_u32 s{sW1}, s{p_w1}, s{s_t0}")
    A.e(f"s_addc_u32 s{sW1+1}, s{p_w1+1}, 0")
    A.e(f"s_mov_b32 s{sW1+2}, {575*9216 + 2304}")
    A.e(f"s_mov_b32 s{sW1+3}, 0x00020000")
    for k in range(4): A.e(f"s_mov_b32 s{sPF+k}, s{sW1+k}") if k < 3 else A.e(f"s_mov_b32 s{sPF+3}, 0x00020000")
    A.e(f"v_mul_u32_u24 v{vPF}, 9216, v1")
    A.e(f"s_lshl_b32 s{s_t3}, s{s_m7}, 2")
    A.e(f"s_add_u32 s{s_t3}, s{s_t3}, s{s_w}")
    for k in range(5):
        u = s_pf + k
        A.e(f"s_add_u32 s{s_t2}, s{s_t3}, {32*k}")
        A.e(f"s_mul_i32 s{s_t0}, s{s_t2}, 7282")
        A.e(f"s_lshr_b32 s{s_t0}, s{s_t0}, 16")
        A.e(f"s_mul_i32 s{s_t1}, s{s_t0}, 9")
        A.e(f"s_sub_u32 s{s_t1}, s{s_t2}, s{s_t1}")
        A.e(f"s_mul_i32 s{u}, s{s_t1}, {64*9216}")
        A.e(f"s_mul_i32 s{s_t1}, s{s_t0}, 43")
        A.e(f"s_lshr_b32 s{s_t1}, s{s_t1}, 7")
        A.e(f"s_mul_i32 s{s_t0}, s{s_t0}, 768")
        A.e(f"s_add_u32 s{u}, s{u}, s{s_t0}")
        A.e(f"s_mul_i32 s{s_t1}, s{s_t1}, {2304 - 128}")
        A.e(f"s_sub_u32 s{u}, s{u}, s{s_t1}")
        A.e(f"s_add_u32 s{u}, s{u}, 128")
        if k == 4:
            A.e(f"s_cmp_lt_u32 s{s_t2}, 135")
            A.e(f"s_cselect_b32 s{u}, s{u}, 0x40000000")
        if k <= 1 and 'nopf' not in EXP:
            A.e(f"buffer_load_dword a{198+k}, v{vPF}, s[{sPF}:{sPF+3}], s{u} offen")
    A.e(f"s_mov_b32 s{s_cA}, {fhex(L2E_HI)}")
    A.e(f"s_mov_b32 s{s_cB}, {fhex(L2E_LO)}")
    A.e(f"s_mov_b32 s{s_cC}, {fhex(LN2)}")
    A.e(f"s_add_u32 s{s_t0}, s{s_lb}, {SCR}")
    A.e(f"v_lshrrev_b32 v{T+4}, 1, v1")
    A.e(f"v_and_b32 v{T+5}, 1, v1")
    A.e(f"v_lshlrev_b32 v{T+5}, 3, v{T+5}")
    A.e(f"v_add_u32 v{T+5}, s{s_t0}, v{T+5}")
    for i in range(16):
        A.e(f"v_xor_b32 v{vW+i}, {33*i}, v{T+4}")
        A.e(f"v_lshl_add_u32 v{vW+i}, v{vW+i}, 4, v{T+5}")
    A.e(f"v_and_b32 v{T+6}, 15, v1")
    A.e(f"v_lshrrev_b32 v{T+7}, 4, v1")
    A.e(f"v_xor_b32 v{T+7}, v{T+7}, v{T+6}")
    A.e(f"v_lshlrev_b32 v{T+8}, 9, v{T+6}")
    A.e(f"v_add_u32 v{T+8}, s{s_t0}, v{T+8}")
    for k in range(4):
        A.e(f"v_xor_b32 v{vRD+k}, {4*k}, v{T+7}")
        A.e(f"v_lshl_add_u32 v{vRD+k}, v{vRD+k}, 4, v{T+8}")
    A.e(f"s_add_u32 s{s_t1}, s{s_lb}, {T_OFF}")
    A.e(f"v_lshlrev_b32 v{T+9}, 3, v1")
    A.e(f"v_sub_u32 v{T+9}, 2047, v{T+9}")
    for k in range(4):
        for e in range(9):
            g = vGa + 9*k + e
            A.e(f"v_subrev_u32 v{g}, {512*k + e}, v{T+9}")
        if k == 3: A.e(f"v_max_i32 v{vGa+35}, 0, v{vGa+35}")
        for e in range(9): A.e(f"v_cvt_f32_u32 v{vGa+9*k+e}, v{vGa+9*k+e}")
    for g in range(vGa, vGa + 36, 2):
        A.e(f"v_cvt_pk_bf16_f32 v{g+1}, v{g}, v{g+1}")
    for g in range(vGa, vGa + 36, 2):
        A.e(f"v_lshlrev_b32 v{g}, 16, v{g+1}")
        A.e(f"v_and_b32 v{g+1}, 0xffff0000, v{g+1}")
    for g in range(vGa, vGa + 36): A.e(f"v_cvt_u32_f32 v{g}, v{g}")
    for g in range(vGa, vGa + 36):
        A.e(f"v_lshrrev_b32 v{T+10+(g&1)}, 5, v{g}")
        A.e(f"v_add_lshl_u32 v{g}, v{g}, v{T+10+(g&1)}, 2")
    for g in range(vGa, vGa + 36): A.e(f"v_add_u32 v{g}, s{s_t1}, v{g}")
    pf_hook(A, 2)
    A.e(f"s_add_u32 s{s_t2}, s{s_t1}, {4*2296}")
    A.e(f"v_mov_b32 v9, s{s_t2}")
    A.e("v_cmp_eq_u32 vcc, 63, v1")
    A.e(f"v_add_u32 v{vRW}, 16, v{vL16}")
    A.e(f"v_mov_b32 v{vPL+6}, 256")
    A.e(f"v_cndmask_b32 v{vGa+35}, v{vGa+35}, v9, vcc")
    A.e(f"v_add_u32 v{T+10}, 256, v{T+6}")
    A.e(f"v_cmp_eq_u32 vcc, 0, v{T+6}")
    A.e(f"v_mov_b32 v{vPL+5}, v{vL16}")
    A.e(f"v_and_b32 v{T+11}, 16, v1")
    A.e(f"v_cndmask_b32 v{T+10}, v{T+10}, v{T+6}, vcc")
    A.e(f"v_lshlrev_b32 v{T+10}, 4, v{T+10}")
    A.e(f"v_mul_u32_u24 v{T+11}, {SR//16}, v{T+11}")
    A.e(f"v_add_u32 v{vZW}, v{T+10}, v{T+11}")
    A.e(f"s_waitcnt vmcnt({0 if 'nopf' in EXP else 3})"); A.vm = []
    A.e(f"v_lshlrev_b32 v{T+6}, 3, v{T+6}")
    for k in range(12): A.e(f"v_add_u32 v{vSc+k}, v{vSc+k}, v{T+6}")
    for k in range(12):
        A.e(f"v_lshrrev_b32 v{T+10+(k&1)}, 5, v{vSc+k}")
        A.e(f"v_add_lshl_u32 v{vSc+k}, v{vSc+k}, v{T+10+(k&1)}, 2")
    for k in range(12): A.e(f"v_add_u32 v{vSc+k}, s{s_t1}, v{vSc+k}")
    A.e(f"v_lshlrev_b32 v{vDt}, 16, v{vDt}")
    A.e(f"v_lshlrev_b32 v{vDk}, 16, v{vDk}")
    exp_bf16_multi(A, [(vDt, vDt, T+12, T+13)])

def call_kchan(A, slot, ci_expr, rdst_off):
    for k in range(4): A.e(f"v_mov_b32 v{vCur+k}, v{vPar+4*slot+k}")
    A.e(ci_expr)
    A.e(f"s_add_u32 s{s_rdst}, s{s_lb}, {rdst_off}")
    if 'nokc' not in EXP: A.e(f"s_call_b64 s[{s_ret}:{s_ret+1}], L_kchan")

GSUM = 3*WREG + WREG - 512
def kgen_all(A):
    kc_setup(A)
    A.e("s_barrier")
    p1f.counter_arrive(A)
    stamp(A, 1)
    pf_hook(A, 3)
    for q in range(3): A.e(f"s_mov_b32 s{s_pf+q}, 0x40000000")
    A.e(f"s_cmp_lg_u32 s{s_w}, 0")
    A.e("s_cbranch_scc1 L_xw")
    A.c("-- wave 0: 9th channel, image exported")
    call_kchan(A, 0, f"s_mov_b32 s{s_ci}, 8", RB_OFF)
    A.e(f"s_add_u32 s{s_t0}, s{s_lb}, {RB_OFF}")
    A.e(f"v_add_u32 v{vCV}, s{s_t0}, v{vL16}")
    for k in range(9): A.e(f"ds_read_b128 v[{POOL[0]+4*k}:{POOL[0]+4*k+3}], v{vCV} offset:{1024*k}")
    A.e(f"s_mul_i32 s{s_t0}, s{s_ch0}, 1024")
    A.e(f"s_add_u32 s{s_t0}, s{s_t0}, {WS_R9}")
    A.e("s_waitcnt lgkmcnt(0)")
    for k in range(9):
        if k % 4 == 0 and k: A.e(f"s_add_u32 s{s_t0}, s{s_t0}, 4096")
        A.e(f"buffer_store_dwordx4 v[{POOL[0]+4*k}:{POOL[0]+4*k+3}], v{vL16}, s[{sWS}:{sWS+3}], s{s_t0} offen offset:{1024*(k%4)}")
    A.e("s_branch L_xw_done")
    A.label("L_xw")
    A.c("-- waves 1..3: u^T export and partial gate logits")
    T = vCV
    A.e(f"v_lshrrev_b32 v{T}, 1, v1")
    A.e(f"v_lshrrev_b32 v{T+1}, 1, v{T}")
    A.e(f"v_and_b32 v{T+1}, 7, v{T+1}")
    A.e(f"v_and_b32 v{T+2}, 1, v1")
    A.e(f"v_lshlrev_b32 v{T+2}, 2, v{T+2}")
    A.e(f"v_xor_b32 v{T+1}, v{T+1}, v{T+2}")
    A.e(f"s_add_u32 s{s_t3}, s{s_lb}, {SCR}")
    A.e(f"v_lshlrev_b32 v{T+3}, 7, v{T}")
    A.e(f"v_add_u32 v{T+3}, s{s_t3}, v{T+3}")
    for c in range(4):
        A.e(f"v_xor_b32 v{T+4}, {c}, v{T+1}")
        A.e(f"v_lshl_add_u32 v{T+4}, v{T+4}, 4, v{T+3}")
        for q in range(3): A.e(f"ds_read_b128 v[{vGX+16*q+4*c}:{vGX+16*q+4*c+3}], v{T+4} offset:{4096*q}")
    A.e("s_waitcnt lgkmcnt(0)")
    A.e(f"v_mov_b32 v{T+4}, 0"); A.e(f"v_mov_b32 v{T+5}, 0")
    for k in range(48): A.e(f"v_dot2c_f32_bf16 v{T+4+(k&1)}, v{vGX+k}, v{vGG+k}")
    A.e(f"s_lshl_b32 s{s_t0}, s{s_w}, 7")
    A.e(f"s_add_u32 s{s_t0}, s{s_t0}, {GSUM - 128}")
    A.e(f"v_lshlrev_b32 v{T}, 2, v{T}")
    A.e(f"v_add_f32 v{T+4}, v{T+4}, v{T+5}")
    A.e(f"v_add_u32 v{T}, s{s_t0}, v{T}")
    A.e("s_nop 0")
    A.e(f"v_add_f32_dpp v{T+4}, v{T+4}, v{T+4} quad_perm:[1,0,3,2] row_mask:0xf bank_mask:0xf")
    A.e(f"ds_write_b32 v{T}, v{T+4}")
    for q in range(0 if 'nout' in EXP else 3):
        A.e(f"s_call_b64 s[{s_ret}:{s_ret+1}], L_utsub")
        if q < 2:
            A.e(f"s_add_u32 s{s_line}, s{s_line}, 1")
            A.e(f"s_add_u32 s{s_t3}, s{s_t3}, 4096")
    A.label("L_xw_done")
    pf_hook(A, 4)
    A.e(f"s_mul_i32 s{s_t0}, s{s_kq}, {1152*1152}")
    A.e(f"s_add_u32 s{sPF}, s{sW2}, s{s_t0}")
    A.e(f"s_addc_u32 s{sPF+1}, s{sW2+1}, 0")
    A.e(f"s_mov_b32 s{sPF+2}, {1152*1152}")
    A.e(f"v_lshlrev_b32 v{vPF}, 7, v1")
    A.e(f"s_lshl_b32 s{s_t3}, s{s_m7}, 2")
    A.e(f"s_add_u32 s{s_t3}, s{s_t3}, s{s_w}")
    A.e(f"s_mul_i32 s{s_t0}, s{s_t3}, 57")
    A.e(f"s_lshr_b32 s{s_t0}, s{s_t0}, 9")
    A.e(f"s_mul_i32 s{s_t0}, s{s_t0}, {384*1152 - 9*8192}")
    A.e(f"s_lshl_b32 s{s_t1}, s{s_t3}, 13")
    A.e(f"s_add_u32 s{s_pf+5}, s{s_t0}, s{s_t1}")
    if 'now2c' in EXP: A.e(f"s_mov_b32 s{s_pf+5}, 0x40000000")
    for q in range(3): A.e(f"s_add_u32 s{s_pf+q}, s{s_pf+5}, {(q+1)*64*1152}")
    stamp(A, 2)
    call_kchan(A, 1, f"s_mov_b32 s{s_ci}, s{s_w}", RA_OFF)
    A.c("-- gate finish (wave 1), flag 1, W2 warm-up tables, counter poll")
    A.e("s_barrier")
    A.e(f"s_cmp_lg_u32 s{s_w}, 1")
    A.e("s_cbranch_scc1 L_gt_skip")
    A.e(f"v_and_b32 v{T}, 31, v1")
    A.e(f"v_lshlrev_b32 v{T}, 2, v{T}")
    A.e(f"v_add_u32 v{T+1}, {GSUM}, v{T}")
    A.e(f"ds_read2_b32 v[{T+2}:{T+3}], v{T+1} offset0:0 offset1:32")
    A.e(f"ds_read_b32 v{T+4}, v{T+1} offset:256")
    A.e(f"s_lshl_b32 s{s_t0}, s{s_upos}, 1")
    A.e(f"s_add_u32 s{s_t0}, s{s_t0}, {WS_GT}")
    A.e("s_waitcnt lgkmcnt(0)")
    A.e(f"v_add_f32 v{T+2}, v{T+2}, v{T+3}")
    A.e(f"v_add_f32 v{T+2}, v{T+2}, v{T+4}")
    A.e(f"v_mul_f32 v{T+2}, {fhex(-LOG2E)}, v{T+2}")
    A.e(f"v_exp_f32 v{T+2}, v{T+2}")
    A.e("s_nop 0")
    A.e(f"v_add_f32 v{T+2}, 1.0, v{T+2}")
    A.e(f"v_rcp_f32 v{T+2}, v{T+2}")
    A.e("s_nop 0")
    A.e(f"buffer_store_dword v{T+2}, v{T}, s[{sWS}:{sWS+3}], s{s_t0} offen{SC}")
    A.label("L_gt_skip")
    A.e(f"v_mov_b32 v{vS}, 1")
    A.e(f"s_waitcnt vmcnt(1)")
    A.e(f"buffer_store_dword v{vS}, off, s[{sWS}:{sWS+3}], s{s_fi}{SC}")
    A.e(f"buffer_load_dword v{vPL+4}, off, s[{sDBG}:{sDBG+3}], 0{SC}")
    for q in range(3): A.e(f"s_add_u32 s{s_pf+q}, s{s_pf+5}, {((q+4) % 6)*64*1152}")
    call_kchan(A, 2, f"s_add_u32 s{s_ci}, s{s_w}, 4", RB_OFF)
    stamp(A, 3)

def utchk(A):
    A.e(f"s_mov_b32 s{s_t0}, 0x20000")
    A.e(f"s_mov_b32 s{s_t1}, {F_U}")
    A.e("s_waitcnt vmcnt(0)")
    A.label("L_uc1")
    A.e(f"v_min_u32 v{vPL}, v{vPL}, v{vPL+1}")
    A.e(f"v_min3_u32 v{vPL}, v{vPL}, v{vPL+2}, v{vPL+3}")
    A.e(f"v_cmp_gt_u32 vcc, 1, v{vPL}")
    A.e(f"v_cmp_gt_u32 s[76:77], v{vPL+6}, v{vPL+4}")
    A.e("s_or_b64 vcc, vcc, s[76:77]")
    A.e("s_cbranch_scc0 L_uc3")
    A.e(f"s_sub_u32 s{s_t0}, s{s_t0}, 1")
    A.e("s_cbranch_scc1 L_uc3")
    A.e(f"buffer_load_dword v{vPL+4}, off, s[{sDBG}:{sDBG+3}], 0{SC}")
    A.e("s_waitcnt vmcnt(0)")
    A.e(f"buffer_load_dwordx4 v[{vPL}:{vPL+3}], v{vPL+5}, s[{sWS}:{sWS+3}], s{s_t1} offen{SC}")
    A.e("s_waitcnt vmcnt(0)")
    A.e("s_branch L_uc1")
    A.label("L_uc3")

def tables(A):
    A.raw(".p2align 4")
    A.label("L_atab")
    A.raw(".long " + ", ".join(str(x) for x in a_table()))
```

```python
from common import *
from p1f import Ring
aH, aR = 0, 208
s_sl, s_hs, s_r5, s_rr, s_pb, s_need, s_lane, s_val, s_w2l = 66, 70, 74, 79, 82, 83, 84, 85, 3
s_fp, s_ev = 74, 75
s_r3 = 56
vFL, vFA = vXD, vXD + 1
SEQ = [(0, k) for k in range(1, 6)] + [(0, 0)] + [(1, k) for k in range(5)] + [(2, k) for k in range(5)] + [(1, 5), (2, 5)]
G0 = 18
def acc2(t): return [32, 48, 96, 112, 224, 240][t]

def p2_setup(A):
    A.c("---- P2 setup")
    T = MT + 4
    A.e(f"s_mul_i32 s{s_w2l}, s{s_w}, 6144")
    A.e(f"s_mul_i32 s{s_t0}, s{s_r}, 24576")
    A.e(f"s_sub_u32 s{s_t0}, s{s_hb}, s{s_t0}")
    A.e(f"s_mul_i32 s{s_t1}, s{s_kq}, {1152*1152}")
    A.e(f"s_mul_i32 s{s_t2}, s{s_r}, 384")
    A.e(f"s_add_u32 s{s_t1}, s{s_t1}, s{s_t2}")
    for idx in range(3):
        A.e(f"s_add_u32 s{s_t2}, s{s_r}, {idx}")
        mod_small(A, s_t2, s_t2, 3)
        if idx: A.e(f"s_mov_b32 s{s_rr+idx-1}, s{s_t2}")
        A.e(f"s_mul_i32 s{s_t3}, s{s_t2}, {384*1152}")
        A.e(f"s_add_u32 s{s_sl+idx}, s{s_t1}, s{s_t3}")
        A.e(f"s_mul_i32 s{s_t3}, s{s_t2}, 24576")
        A.e(f"s_add_u32 s{s_hs+idx}, s{s_t0}, s{s_t3}")
    A.e(f"s_mul_i32 s{s_t0}, s{s_w}, {16*1152}")
    for i3 in range(3):
        A.e(f"v_add_u32 v{T}, {64*i3}, v1")
        A.e(f"v_mul_u32_u24 v{T+1}, 2731, v{T}")
        A.e(f"v_lshrrev_b32 v{T+1}, 16, v{T+1}")
        A.e(f"v_mul_u32_u24 v{T+2}, 24, v{T+1}")
        A.e(f"v_sub_u32 v{T+2}, v{T}, v{T+2}")
        A.e(f"v_lshlrev_b32 v{T+3}, 1, v{T+1}")
        A.e(f"v_and_b32 v{T+3}, 4, v{T+3}")
        A.e(f"v_xor_b32 v{T+2}, v{T+2}, v{T+3}")
        A.e(f"v_mul_u32_u24 v{T+1}, 1152, v{T+1}")
        A.e(f"v_lshl_add_u32 v{T+1}, v{T+2}, 4, v{T+1}")
        A.e(f"v_add_u32 v{T+1}, s{s_t0}, v{T+1}")
        for g in range(2):
            i = 3*g + i3
            A.e(f"v_add_u32 v{vW2D+i}, {hex((g*8*1152 - (i&3)*1024) & 0xffffffff)}, v{T+1}")
    A.e(f"v_lshrrev_b32 v{T}, 2, v1")
    A.e(f"v_and_b32 v{T}, 3, v{T}")
    A.e(f"v_lshrrev_b32 v{T+1}, 5, v1")
    A.e(f"v_lshl_add_u32 v{T+1}, v{T+1}, 2, v{T}")
    A.e(f"v_mul_u32_u24 v{T+1}, 384, v{T+1}")
    A.e(f"v_lshrrev_b32 v{T+2}, 4, v1")
    A.e(f"v_and_b32 v{T+2}, 1, v{T+2}")
    A.e(f"v_lshl_add_u32 v{T+1}, v{T+2}, 5, v{T+1}")
    A.e(f"v_and_b32 v{T+2}, 3, v1")
    A.e(f"v_lshl_add_u32 v{T+1}, v{T+2}, 3, v{T+1}")
    A.e(f"v_lshrrev_b32 v{T}, 1, v{T}")
    A.e(f"v_lshlrev_b32 v{T}, 6, v{T}")
    A.e(f"v_add_u32 v{vA2}, v{T+1}, v{T}")
    A.e(f"v_sub_u32 v{vA2+1}, v{T+1}, v{T}")
    for j in (1, 2):
        A.e(f"v_add_u32 v{vA2+2*j}, {j*2*SLOT}, v{vA2}")
        A.e(f"v_add_u32 v{vA2+2*j+1}, {j*2*SLOT}, v{vA2+1}")

def hreg(step):
    if step < 20: return f"v[{HS+4*step}:{HS+4*step+3}]"
    k = step - 20
    return f"a[{aH+4*k}:{aH+4*k+3}]"

def w2_dma_ops(gst, slot):
    k = gst - G0
    idx, pi = SEQ[k]
    tag = f"st{gst}"
    m0a = Op(f"s_add_u32 m0, s{s_w2l}, {slot*SLOT}", kind="salu")
    so = Op(f"s_add_u32 s{s_so}, s{s_sl+idx}, {pi*64*1152}", kind="salu")
    o = [m0a, so]
    for i in range(4):
        o.append(Op(f"buffer_load_dwordx4 v{vW2D+i}, s[{sW2}:{sW2+3}], s{s_so} offen offset:{i*1024} lds", kind="vmem", tag=tag, deps=[(m0a, 2)]))
    m0b = Op(f"s_add_u32 m0, s{s_w2l}, {slot*SLOT + 4096}", kind="salu")
    o.append(m0b)
    for i in range(4, 6):
        o.append(Op(f"buffer_load_dwordx4 v{vW2D+i}, s[{sW2}:{sW2+3}], s{s_so} offen offset:{(i&3)*1024} lds", kind="vmem", tag=tag, deps=[(m0b, 2)]))
    return o
def h_load_ops(k):
    idx, pi = SEQ[k]
    so = Op(f"s_add_u32 s{s_t2}, s{s_hs+idx}, {pi*4096}", kind="salu")
    o = [so]
    for j in range(4):
        o.append(Op(f"buffer_load_dwordx4 {hreg(4*k+j)}, v{vL16}, s[{sWS}:{sWS+3}], s{s_t2} offen offset:{j*1024}{SC}", kind="vmem", tag=f"st{G0+k}"))
    return o
def flagcopy_ops(counter=False, ev=0):
    if counter:
        m2 = Op(f"s_mul_i32 s{s_val}, s{s_w}, 772\n    s_add_u32 m0, s{s_val}, {M_FL + 256}\n    s_nop 0", kind="salu", cost=12)
        return [m2, Op(f"buffer_load_dword v{vFL}, s[{sDBG}:{sDBG+3}], 0 offen lds{SC}", kind="vmem", tag="cc", deps=[(m2, 1)])]
    m = Op(f"s_mul_i32 s{s_val}, s{s_w}, 768\n    s_add_u32 m0, s{s_val}, {M_FL}\n    s_and_b32 s{s_val}, s{s_fi}, 0xffffff80\n    s_add_u32 s{s_val}, s{s_val}, {ev*8192}", kind="salu", cost=16)
    o = [m, Op(f"buffer_load_dword v{vFL}, s[{sWS}:{sWS+3}], s{s_val} offen lds{SC}", kind="vmem", tag="fc", deps=[(m, 1)])]
    return o

def poll_sub(A):
    A.label("L_poll")
    A.e(f"s_mov_b32 s{s_t0}, 0x20000")
    A.e(f"v_and_b32 v{TMP2}, 3, v1")
    A.e(f"v_lshlrev_b32 v{TMP2}, 4, v{TMP2}")
    A.label("L_poll_loop")
    A.e("s_sleep 4")
    A.e(f"s_and_b32 s{s_val}, s{s_fi}, 0xffffffcf")
    A.e(f"s_add_u32 s{s_val}, s{s_val}, s{s_need}")
    A.e(f"buffer_load_dword v{TMP2+1}, v{TMP2}, s[{sWS}:{sWS+3}], s{s_val} offen{SC}")
    A.e("s_waitcnt vmcnt(0)")
    A.e(f"v_readlane_b32 s{s_val}, v{TMP2+1}, s{s_lane}")
    A.e(f"s_sub_u32 s{s_t0}, s{s_t0}, 1")
    A.e("s_cbranch_scc1 L_poll_out")
    A.e(f"s_cmp_eq_u32 s{s_val}, 0")
    A.e("s_cbranch_scc1 L_poll_loop")
    A.label("L_poll_out")
    A.e(f"s_setpc_b64 s[{s_ret}:{s_ret+1}]")
    A.label("L_pollc")
    A.e(f"s_mov_b32 s{s_t0}, 0x20000")
    A.label("L_pollc_loop")
    A.e("s_sleep 2")
    A.e(f"buffer_load_dword v{TMP2+1}, off, s[{sDBG}:{sDBG+3}], 0{SC}")
    A.e("s_waitcnt vmcnt(0)")
    A.e(f"v_readfirstlane_b32 s{s_val}, v{TMP2+1}")
    A.e(f"s_sub_u32 s{s_t0}, s{s_t0}, 1")
    A.e("s_cbranch_scc1 L_pollc_out")
    A.e(f"s_cmp_lt_u32 s{s_val}, 256")
    A.e("s_cbranch_scc1 L_pollc_loop")
    A.label("L_pollc_out")
    A.e(f"s_setpc_b64 s[{s_ret}:{s_ret+1}]")
TMP2 = vXR
vFC = vXR + 2

def check(A, lane_sgpr, need):
    lab = A.newlabel("L_chk")
    A.e(f"v_readlane_b32 s{s_val}, v{vFC}, s{lane_sgpr}")
    A.e(f"s_movk_i32 s{s_need}, {need*8192}")
    A.e(f"s_mov_b32 s{s_lane}, s{lane_sgpr}")
    A.e(f"s_cmp_ge_u32 s{s_val}, {need+1}")
    A.e(f"s_cbranch_scc1 {lab}")
    A.e(f"s_call_b64 s[{s_ret}:{s_ret+1}], L_poll")
    A.label(lab)
def check_counter(A):
    lab = A.newlabel("L_chk")
    A.e(f"v_readfirstlane_b32 s{s_val}, v{vFC+1}")
    A.e("s_nop 0")
    A.e(f"s_cmp_ge_u32 s{s_val}, 256")
    A.e(f"s_cbranch_scc1 {lab}")
    A.e(f"s_call_b64 s[{s_ret}:{s_ret+1}], L_pollc")
    A.label(lab)

def a2_read(A, j, ring):
    step, t = j // 6, j % 6
    k, ks = step // 4, step % 4
    slot = ring.slot[G0 + k]
    buf = aR + 4*(j % 12)
    for rd in range(2):
        A.ds(f"ds_read_b64_tr_b16 a[{buf+2*rd}:{buf+2*rd+1}], v{vA2+2*(slot//2)+(t&1)} offset:{(slot%2)*SLOT + (16*ks+8*rd)*384 + t*64}", f"f{j}")

LEAD = 7
def tail_hook(A, gs, ring):
    k = gs - (36*NP - 4)
    for j in (2*k, 2*k + 1):
        if j < LEAD: a2_read(A, j, ring)

def w2_warm_ops(k, site):
    t = [f"s_and_b32 s{s_val}, s{s_m7}, 3", f"s_cmp_lg_u32 s{s_val}, {site}", f"s_cbranch_scc1 L_w2pf_{k}_{site}", f"s_mul_i32 s{s_val}, s{s_m7}, 3", f"s_add_u32 s{s_val}, s{s_val}, s{s_r}", f"s_lshl_b32 s{s_val}, s{s_val}, 2", f"s_add_u32 s{s_val}, s{s_val}, s{s_w}",
         f"s_add_u32 s{s_val}, s{s_val}, {96*k}", f"s_cmp_lt_u32 s{s_val}, 162", f"s_cselect_b32 s{s_val}, s{s_val}, 0x8000", f"s_lshl_b32 s{s_val}, s{s_val}, 13",
         f"s_mul_i32 s{s_need}, s{s_kq}, {1152*1152}", f"s_add_u32 s{s_val}, s{s_val}, s{s_need}", f"v_lshlrev_b32 v{vXR}, 7, v1",
         f"buffer_load_dword a{192+k}, v{vXR}, s[{sW2}:{sW2+3}], s{s_val} offen", f"L_w2pf_{k}_{site}:"]
    return [Op("\n    ".join(t), kind="salu", cost=20)]

def pre_p2_ops():
    o = [Op(f"v_and_b32 v{vFL}, 31, v1\n    v_lshlrev_b32 v{vFL}, 2, v{vFL}", cost=8),
         Op(f"v_and_b32 v{vFA}, 3, v1"),
         Op(f"v_lshlrev_b32 v{vFA}, 4, v{vFA}"),
         Op(f"s_mul_i32 s{s_val}, s{s_w}, 772\n    s_add_u32 s{s_val}, s{s_val}, {M_FL}\n    v_add_u32 v{vFA}, s{s_val}, v{vFA}", cost=12)]
    for i in range(1, 4): o[i].deps.append((o[i-1], 1))
    o.append(Op(f"v_mov_b32 v{vFC}, 0"))
    o.append(Op(f"s_mul_i32 s{s_val}, s{s_w}, 768\n    s_add_u32 s{s_val}, s{s_val}, {M_FL}\n    v_lshl_add_u32 v{vFC+1}, v1, 2, s{s_val}\n    ds_write2st64_b32 v{vFC+1}, v{vFC}, v{vFC} offset0:0 offset1:1", cost=16, kind="ds", tag="fz", deps=[(o[0], 1), (o[4], 1)]))
    return o

def p2_main(A, ring, memq, valq, stq):
    N = 432
    checks = {41: [("c",), (s_rr, 0)], 137: [(s_rr, 1), (s_rr+1, 1)], 281: [(s_rr, 2), (s_rr+1, 2)]}
    flags = {41: ("h4", 1), 113: ("h5", 2)}
    hnext = 5
    A.wait_lg("f0")
    for j in range(N):
        if j == 0: stamp(A, 4)
        if j == 120: stamp(A, 5)
        step, t = j // 6, j % 6
        k = step // 4
        acc = acc2(t)
        buf = aR + 4*(j % 12)
        cin = "0" if step == 0 else f"v[{acc}:{acc+15}]"
        if step == 16 and t == 0: assert not valq.q, "mish(4) not finished"
        A.e(f"v_mfma_f32_32x32x16_bf16 v[{acc}:{acc+15}], a[{buf}:{buf+3}], {hreg(step)}, {cin}")
        n0 = A.n
        if (j + LEAD) % 24 == 0 and k + 1 < 18:
            tags = [f"st{G0+k+1}"]
            if j in flags: tags.append(flags[j][0])
            if j == 17: tags.append("cc")
            A.wait_vm(tags); A.e("s_barrier")
            if j in flags: stq.q = flag_store_ops(flags[j][1]) + stq.q
            ring.release(G0 + k - 1)
            for c in checks.get(j, []):
                assert not any(o.tag == "fc" for o in memq.q)
                A.wait_lg("fcr")
                if c[0] == "c": check_counter(A)
                else: check(A, *c)
            if j + 24 in checks:
                assert not memq.q
                memq.add(flagcopy_ops(ev=checks[j + 24][-1][1]))
            for g in ring.alloc(G0 + 18):
                if 'now2' not in EXP: memq.add(w2_dma_ops(g, ring.slot[g]))
            while hnext <= k + 5 and hnext < 18:
                if 'noh' not in EXP: memq.add(h_load_ops(hnext))
                hnext += 1
        if j % 3 == 0:
            A.wait_lg([f"f{j+1}", f"f{j+2}", f"f{j+3}"])
        if j + LEAD < N: a2_read(A, j + LEAD, ring)
        if j + 4 in checks:
            A.ds(f"ds_read_b32 v{vFC}, v{vFA}", "fcr")
            if j + 4 == 41: A.ds(f"ds_read_b32 v{vFC+1}, v{vFA} offset:256", "fcr")
        used = 4*(A.n - n0)
        bud = max(0, 24 - used)
        u = stq.fill(min(bud, 8), window=1)
        if u == 0:
            while memq.q and u < bud and memq.ready(memq.q[0]):
                o = memq.q[0]
                if o.kind == "vmem" and j % 2 == 1 and len(memq.q) < 20: break
                memq.q.pop(0); memq.emit(o); u += o.cost
                if o.kind == "vmem": break
        if valq.q:
            b2 = max(0, bud - u)
            if valq.total() > 11*(92 - j): b2 += 4
            if j >= 92: b2 = 1000
            fill_odd(valq, b2)
    assert not memq.q and not stq.q and not valq.q

PKR = [TMP + 4*i for i in range(8)] + [MT + 4*i for i in range(4)]
def tail(A, ring):
    OWN = ring.slot[G0 + 15]*SLOT; YT = OWN + 12288
    A.c("---- tail: export partials")
    stamp(A, 6)
    A.e(f"s_mul_i32 s{s_pb}, s{s_m}, 3")
    A.e(f"s_add_u32 s{s_pb}, s{s_pb}, s{s_r}")
    A.e(f"s_lshl_b32 s{s_pb}, s{s_pb}, 2")
    A.e(f"s_add_u32 s{s_t0}, s{s_pb}, s{s_w}")
    A.e(f"s_lshl_b32 s{s_t0}, s{s_t0}, 2")
    A.e(f"s_add_u32 s{s_t0}, s{s_t0}, s{s_kq}")
    A.e(f"s_mul_i32 s{s_t0}, s{s_t0}, 12288")
    A.e(f"s_add_u32 s{s_t0}, s{s_t0}, {WS_P}")
    A.e(f"s_add_u32 s{s_pb}, s{s_pb}, s{s_kq}")
    A.e(f"s_mul_i32 s{s_pb}, s{s_pb}, 49152")
    A.e(f"s_mul_i32 s{s_t1}, s{s_w}, 3072")
    A.e(f"s_add_u32 s{s_pb}, s{s_pb}, s{s_t1}")
    A.e(f"s_add_u32 s{s_pb}, s{s_pb}, {WS_P}")
    for p in range(12):
        t, kk = p // 2, p % 2
        R = PKR[p]; a = acc2(t) + 8*kk
        for d in range(4): A.e(f"v_cvt_pk_bf16_f32 v{R+d}, v{a+2*d}, v{a+2*d+1}")
        if p:
            Q = PKR[p-1]
            A.e(f"v_permlane32_swap_b32 v{Q}, v{Q+2}"); A.e(f"v_permlane32_swap_b32 v{Q+1}, v{Q+3}")
    A.nop(2)
    Q = PKR[11]
    A.e(f"v_permlane32_swap_b32 v{Q}, v{Q+2}"); A.e(f"v_permlane32_swap_b32 v{Q+1}, v{Q+3}")
    if 'tst' in EXP: stamp(A, 1)
    A.e(f"s_cmp_eq_u32 s{s_w}, s{s_kq}")
    A.e("s_cbranch_scc1 L_own")
    for p in range(12):
        if p % 4 == 0 and p: A.e(f"s_add_u32 s{s_t0}, s{s_t0}, 4096")
        A.e(f"buffer_store_dwordx4 v[{PKR[p]}:{PKR[p]+3}], v{vL16}, s[{sWS}:{sWS+3}], s{s_t0} offen offset:{(p%4)*1024}{SC}")
    A.e(f"v_mov_b32 v{vS}, 1")
    A.e("s_waitcnt vmcnt(0)")
    A.e(f"buffer_store_dword v{vS}, off, s[{sWS}:{sWS+3}], s{s_fp}{SC}")
    A.e("s_branch L_own_done")
    A.label("L_own")
    A.e(f"v_add_u32 v{vS}, {OWN}, v{vL16}")
    for p in range(12):
        A.e(f"ds_write_b128 v{vS}, v[{PKR[p]}:{PKR[p]+3}] offset:{p*1024}")
    A.e("s_waitcnt lgkmcnt(0)")
    A.label("L_own_done")
    if 'tst' in EXP: stamp(A, 2)
    A.vm = []; A.lg = []
    A.c("---- poll y flags (22 conv WGs x 4 waves), then a^T DMA")
    V = 32
    A.e(f"s_mul_i32 s{s_t1}, s{s_r}, 21")
    A.e(f"v_add_u32 v{V}, s{s_t1}, v1")
    A.e(f"s_lshl_b32 s{s_t2}, s{s_m}, 2")
    A.e(f"s_add_u32 s{s_t2}, s{s_t2}, s{s_kq}")
    A.e(f"v_mov_b32 v{V+1}, s{s_t2}")
    A.e("v_cmp_lt_u32 vcc, 21, v1")
    A.e(f"s_lshl_b32 s{s_need}, s{s_t2}, 7")
    A.e(f"s_add_u32 s{s_need}, s{s_need}, {WS_GT}")
    A.e(f"v_cndmask_b32 v{V}, v{V}, v{V+1}, vcc")
    A.e(f"v_lshlrev_b32 v{V}, 4, v{V}")
    A.e(f"s_mov_b32 s{s_t1}, {F_Y}")
    A.e(f"s_mov_b32 s{s_t0}, 0x20000")
    A.e(f"v_and_b32 v{V+8}, 31, v1")
    A.label("L_py")
    A.e(f"buffer_load_dwordx4 v[{V+4}:{V+7}], v{V}, s[{sWS}:{sWS+3}], s{s_t1} offen{SC}")
    A.e("s_waitcnt vmcnt(0)")
    A.e(f"v_min_u32 v{V+4}, v{V+4}, v{V+5}")
    A.e(f"v_min3_u32 v{V+4}, v{V+4}, v{V+6}, v{V+7}")
    A.e(f"v_cmp_gt_u32 vcc, 1, v{V+4}")
    A.e(f"s_sub_u32 s{s_t0}, s{s_t0}, 1")
    A.e("s_cbranch_scc1 L_py_out")
    A.e("s_sleep 2")
    A.e("s_cbranch_vccnz L_py")
    A.label("L_py_out")
    if 'tst' in EXP: stamp(A, 3)
    A.e(f"v_lshlrev_b32 v{V+9}, 2, v{V+8}")
    A.e(f"buffer_load_dword v{V+10}, v{V+9}, s[{sWS}:{sWS+3}], s{s_need} offen{SC}")
    A.e(f"v_lshrrev_b32 v{V+1}, 2, v1")
    A.e(f"v_lshlrev_b32 v{V+1}, 12, v{V+1}")
    A.e(f"v_and_b32 v{V+2}, 3, v1")
    A.e(f"v_lshl_add_u32 v{V+1}, v{V+2}, 4, v{V+1}")
    A.e(f"s_mul_i32 s{s_t1}, s{s_r}, 192")
    A.e(f"s_mul_i32 s{s_t2}, s{s_w}, 48")
    A.e(f"s_add_u32 s{s_line}, s{s_t1}, s{s_t2}")
    A.e(f"s_lshl_b32 s{s_t1}, s{s_line}, 12")
    A.e(f"s_lshl_b32 s{s_upos}, s{s_m}, 7")
    A.e(f"s_lshl_b32 s{s_t2}, s{s_kq}, 5")
    A.e(f"s_add_u32 s{s_upos}, s{s_upos}, s{s_t2}")
    A.e(f"s_lshl_b32 s{s_t2}, s{s_upos}, 1")
    A.e(f"s_add_u32 s{s_t1}, s{s_t1}, s{s_t2}")
    A.e(f"s_add_u32 s{s_t1}, s{s_t1}, {WS_Y}")
    A.e(f"s_mul_i32 s{s_t2}, s{s_w}, 3072")
    for i in range(3):
        A.e(f"s_add_u32 m0, s{s_t2}, {YT + 1024*i}")
        A.e("s_nop 0")
        A.e(f"buffer_load_dwordx4 v{V+1}, s[{sWS}:{sWS+3}], s{s_t1} offen lds{SC}")
        if i < 2: A.e(f"s_add_u32 s{s_t1}, s{s_t1}, 65536")
    A.c("---- poll partial flags: producers (m,kq',nq) wave kq")
    A.e(f"v_and_b32 v{V}, 3, v1")
    A.e(f"v_cmp_eq_u32 s[{s_ret}:{s_ret+1}], s{s_kq}, v{V}")
    A.e(f"v_lshlrev_b32 v{V}, 2, v{V}")
    A.e(f"s_and_b32 s{s_t1}, s{s_fp}, 0xfffffe00")
    A.e(f"s_lshl_b32 s{s_t0}, s{s_kq}, 7")
    A.e(f"s_add_u32 s{s_t1}, s{s_t1}, s{s_t0}")
    A.e(f"s_mov_b32 s{s_t0}, 0x20000")
    A.label("L_pp")
    A.e(f"buffer_load_dword v{V+4}, v{V}, s[{sWS}:{sWS+3}], s{s_t1} offen{SC}")
    A.e("s_waitcnt vmcnt(0)")
    A.e(f"v_cmp_gt_u32 vcc, 1, v{V+4}")
    A.e(f"s_sub_u32 s{s_t0}, s{s_t0}, 1")
    A.e("s_cbranch_scc1 L_pp_out")
    A.e(f"s_andn2_b64 vcc, vcc, s[{s_ret}:{s_ret+1}]")
    A.e("s_sleep 1")
    A.e("s_cbranch_vccnz L_pp")
    A.label("L_pp_out")
    if 'tst' in EXP: stamp(A, 4)
    PB = 48
    for q in range(3):
        A.e(f"s_cmp_le_u32 s{s_kq}, {q}")
        A.e(f"s_cselect_b32 s{s_t1}, 12288, 0")
        A.e(f"s_add_u32 s{s_t1}, s{s_t1}, s{s_pb}")
        if q < 2: A.e(f"s_add_u32 s{s_pb}, s{s_pb}, 12288")
        for i in range(3):
            A.vmem(f"buffer_load_dwordx4 v[{PB+12*q+4*i}:{PB+12*q+4*i+3}], v{vL16}, s[{sWS}:{sWS+3}], s{s_t1} offen offset:{1024*i}{SC}", "imp")
    A.e("s_barrier")
    OW, YA = 96, 112
    A.e(f"s_add_u32 s{s_t2}, s{s_t2}, {OWN}")
    A.e(f"v_add_u32 v{V+2}, s{s_t2}, v{vL16}")
    for i in range(3): A.ds(f"ds_read_b128 v[{OW+4*i}:{OW+4*i+3}], v{V+2} offset:{1024*i}", "own")
    A.e(f"v_lshrrev_b32 v{V+3}, 2, v1")
    A.e(f"v_and_b32 v{V+3}, 3, v{V+3}")
    A.e(f"v_lshrrev_b32 v{V+4}, 5, v1")
    A.e(f"v_lshl_add_u32 v{V+3}, v{V+4}, 3, v{V+3}")
    A.e(f"v_lshlrev_b32 v{V+3}, 6, v{V+3}")
    A.e(f"v_and_b32 v{V+5}, 16, v1")
    A.e(f"v_lshl_add_u32 v{V+3}, v{V+5}, 1, v{V+3}")
    A.e(f"v_and_b32 v{V+5}, 3, v1")
    A.e(f"v_lshl_add_u32 v{V+3}, v{V+5}, 3, v{V+3}")
    A.e(f"v_add_u32 v{V+3}, s{s_t2}, v{V+3}")
    for i in range(3):
        for rd in range(2):
            A.ds(f"ds_read_b64_tr_b16 v[{YA+4*i+2*rd}:{YA+4*i+2*rd+1}], v{V+3} offset:{12288 + 1024*i + 256*rd}", "ya")
    A.e(f"v_mul_u32_u24 v{V+8}, 1152, v{V+8}")
    A.e(f"v_lshl_add_u32 v{V+8}, v{V+4}, 4, v{V+8}")
    A.e(f"s_mul_i32 s{s_t1}, s{s_upos}, 1152")
    A.e(f"s_lshl_b32 s{s_t0}, s{s_line}, 1")
    A.e(f"s_add_u32 s{s_t1}, s{s_t1}, s{s_t0}")
    A.wait_all()
    if 'tst' in EXP: stamp(A, 5)
    S = 128
    for i in range(3):
        for d in range(4):
            srcs = [OW + 4*i + d] + [PB + 12*q + 4*i + d for q in range(3)]
            y = YA + 4*i + d
            lo, hi = S + 2*d, S + 2*d + 1
            A.e(f"v_lshlrev_b32 v{lo}, 16, v{srcs[0]}")
            A.e(f"v_and_b32 v{hi}, 0xffff0000, v{srcs[0]}")
            for sreg in srcs[1:]:
                A.e(f"v_lshlrev_b32 v{S+8}, 16, v{sreg}")
                A.e(f"v_and_b32 v{S+9}, 0xffff0000, v{sreg}")
                A.e(f"v_pk_add_f32 v[{lo}:{hi}], v[{lo}:{hi}], v[{S+8}:{S+9}]")
            A.e(f"v_lshlrev_b32 v{S+8}, 16, v{y}")
            A.e(f"v_and_b32 v{S+9}, 0xffff0000, v{y}")
            A.e(f"v_pk_add_f32 v[{S+8}:{S+9}], v[{S+8}:{S+9}], v[{lo}:{hi}] neg_lo:[0,1] neg_hi:[0,1]")
            A.e(f"v_pk_fma_f32 v[{lo}:{hi}], v[{S+8}:{S+9}], v[{V+10}:{V+11}], v[{lo}:{hi}] op_sel_hi:[1,0,1]")
            A.e(f"v_cvt_pk_bf16_f32 v{S+12+4*i+d}, v{lo}, v{hi}")
        A.vmem(f"buffer_store_dwordx4 v[{S+12+4*i}:{S+15+4*i}], v{V+8}, s[{sT1}:{sT1+3}], s{s_t1} offen offset:{32*i}", "o")
```

```python
import os
from asmlib import *
NAME = "gated_mix__ssm_conv_s4d__dense_activation_mish__prompt"
L_, D_, F_ = 2048, 576, 4608
KA = dict(u=0, loga=8, aim=16, cre=24, cim=32, logdt=40, dskip=48, bx=56, w1=64, b1=72, w2=80, gw=88, out=96, dbg=104, ws=112)
WS_H    = 0x0000000
WS_UT   = 0x1200000
UT_PITCH = 4224
WS_G    = 0x2800000
WS_Y    = 0x1700000
WS_P    = 0x1A00000
WS_F    = 0x2400000
WS_TS   = 0x2600000
WS_BYTES = 0x10000000
SLOT = 24576
XRING = 3*SLOT
MISC = 3*SLOT + 81920
M_BIAS, M_GW, M_FL = MISC, MISC + 2048, MISC + 4096
WS_GT = 0x2420000
LDS_BYTES = 163840
LOG2E = 1.4426950408889634
EXP = set(os.environ.get('EXP', '').split(','))
STAMPS = os.environ.get('STAMPS', '')
SC = " sc1"

sX, sW1, sWS, sW2, sT0, sT1, sDBG = 4, 8, 12, 16, 20, 24, 28
p_w1, p_ws = 32, 34
s_w, s_m, s_kq, s_r, s_m7, s_rho, s_fi = 36, 37, 38, 39, 40, 41, 42
s_t0, s_t1, s_t2, s_t3, s_so, s_hb, s_log2e, s_pc, s_wl, s_upos, s_line = 43, 44, 45, 46, 47, 48, 49, 50, 51, 52, 53
s_ret = 54
s_rw = 56
s_loc = 66
vXD, vXR, vWD, vAR, vBI, vL16, vW2D, vA2, vGW, vS = 2, 4, 8, 10, 16, 17, 18, 24, 30, 31
ACC, TMP, BIAS, MT, HS, ACC3 = 32, 64, 96, 128, 144, 224

def ids(b):
    xcd = b & 7; j = b >> 3
    return dict(kq=xcd >> 1, m=(xcd & 1)*8 + (j >> 2), r=j & 3)
def stamp(A, i):
    if STAMPS: A.e(f"{'s_memtime' if STAMPS == 'c' else 's_memrealtime'} s[{86+2*i}:{87+2*i}]")
def stamp_flush(A, n=8):
    if not STAMPS: return
    A.e("s_waitcnt lgkmcnt(0)")
    A.e(f"s_lshl_b32 s3, s2, 8")
    A.e(f"s_lshl_b32 s{s_t0}, s{s_w}, 6")
    A.e(f"s_add_u32 s3, s3, s{s_t0}")
    A.e(f"s_add_u32 s3, s3, {WS_TS}")
    A.e("v_mov_b32 v2, 0")
    for i in range(n):
        A.e(f"v_mov_b32 v3, s{86+2*i}")
        A.e(f"buffer_store_dword v3, v2, s[{sWS}:{sWS+3}], s3 offen offset:{4*i}")
    A.e("s_waitcnt vmcnt(0)")
def emit_now(A, ops):
    F = Filler(A)
    for o in ops:
        while not F.ready(o): A.e("s_nop 0")
        F.emit(o)
def mod_small(A, dst, src, n):
    A.e(f"s_cmp_ge_u32 s{src}, {n}")
    A.e(f"s_cselect_b32 s{s_t3}, {n}, 0")
    A.e(f"s_sub_u32 s{dst}, s{src}, s{s_t3}")
M_G = MISC + 7168
NP = 6
PLAINH = 'sc1H' not in EXP
s_same, s_xcc = 76, 77
F_P, F_U, F_Y = WS_F + 0x8000, WS_F + 0x10000, WS_F + 0x11000
def flag_store_ops(ev):
    mv = Op(f"v_mov_b32 v{vS}, {ev+1}", kind="valu")
    wb = ""
    if PLAINH:
        wb = f"s_cmp_lg_u32 s{s_same}, 0\n    s_cbranch_scc1 L_fl{ev}\n    s_call_b64 s[{s_ret}:{s_ret+1}], L_wb\nL_fl{ev}:\n    "
    st = Op(wb + f"s_add_u32 s{s_t1}, s{s_fi}, {ev*8192}\n    buffer_store_dword v{vS}, off, s[{sWS}:{sWS+3}], s{s_t1}{SC}", kind="vmem", tag="flag", cost=8, deps=[(mv, 1)])
    return [mv, st]

ROT = 'rot' in EXP

NTW = ' nt' if 'ntw' in EXP else ''
NTX = ' nt' if 'ntx' in EXP else ''
NTP = ' nt' if 'ntp' in EXP else ''
NCLS = int(os.environ.get('NCLS', 8))
W2G0 = int(os.environ.get('W2G0', 40))
W2GS = int(os.environ.get('W2GS', 9))
OUTF = {'': '', 'sc1': ' sc1', 'nt': ' nt', 'sc1nt': ' sc1 nt'}[os.environ.get('OUTF', '')]
```

```python
from common import *
import math, p1f
L2E_HI = struct.unpack('<f', struct.pack('<f', LOG2E))[0]
L2E_LO = LOG2E - L2E_HI
LN2 = math.log(2.0)
WREG = 40960
SU, SR = 4640, 4480
RA_OFF, RB_OFF, U_OFF = 0, 8960, 17920
SCR = 8960
T_OFF = 17920
TS_ENT = 2304
ZIDX = 2300
WS_R9 = WS_G
s_ch0, s_lb, s_dt, s_dsk, s_cA, s_cB, s_cC, s_ci, s_rdst, s_yo, s_rnd, s_dl = 56, 57, 58, 59, 60, 61, 62, 63, 64, 65, 66, 67
sP0, sP1, sU, sPF = 68, 72, 68, 72
sP2, sP3 = sT0, sT1
s_pf = 76
s_ret2 = 54
vW, vRD, vSc, vGa = 32, 48, 52, 64
vDt, vDk, vPF, vRW, vZW, vPL = 4, 5, 6, 7, 8, 20
vPar = 100
vCur = 112
vZ = 116
POOL = (124, 180)
vCV = 236
vD = 10
def a_table():
    t = []
    for row in range(16): t.append((row & 7) + 128*(row >> 3))
    for row in range(16):
        t.append(256 + 128*(row >> 2) + 2*(row & 3) if row < 8 else 512 + 128*((row-8) >> 1) + 4*(row & 1))
    for row in range(16): t.append(1024 + 128*row if row <= 8 else 2100)
    return t

def exp_bf16_multi(A, items):
    for d, x, a, b in items: A.e(f"v_mul_f32 v{a}, s{s_cA}, v{x}")
    for d, x, a, b in items: A.e(f"v_fma_f32 v{b}, v{x}, s{s_cA}, -v{a}")
    for d, x, a, b in items: A.e(f"v_exp_f32 v{a}, v{a}")
    for d, x, a, b in items: A.e(f"v_fma_f32 v{b}, v{x}, s{s_cB}, v{b}")
    for d, x, a, b in items: A.e(f"v_mul_f32 v{b}, s{s_cC}, v{b}")
    for d, x, a, b in items: A.e(f"v_fma_f32 v{a}, v{a}, v{b}, v{a}")
    for d, x, a, b in items: A.e(f"v_cvt_pk_bf16_f32 v{a}, v{a}, v{a}")
    for d, x, a, b in items: A.e(f"v_lshlrev_b32 v{d}, 16, v{a}")

def pf_hook(A, k):
    if 'nopf' not in EXP:
        A.e(f"buffer_load_dword a{200+k}, v{vPF}, s[{sPF}:{sPF+3}], s{s_pf+k} offen{NTP}")

class Ch:
    def __init__(self, A):
        self.A = A; self.reg = {}; self.free = list(range(0, 56, 2)); self.cvn = 0; self.pend = []
    def alloc(self, name):
        self.reg[name] = self.free.pop(0); return self.reg[name]
    def rel(self, *names):
        for n in names: self.free.append(self.reg.pop(n))
    def r(self, name, m): return POOL[m] + self.reg[name]
    def muls(self, lst):
        for d, x, y in lst: self.alloc(d)
        for d, x, y in lst:
            for m in range(2):
                D, X, M = self.r(d, m), self.r(x, m), self.r(y, m)
                self.A.e(f"v_pk_mul_f32 v[{D}:{D+1}], v[{X}:{X+1}], v[{M}:{M+1}] op_sel_hi:[1,0]")
        for d, x, y in lst:
            for m in range(2):
                D, X, M = self.r(d, m), self.r(x, m), self.r(y, m)
                self.A.e(f"v_pk_fma_f32 v[{D}:{D+1}], v[{X}:{X+1}], v[{M}:{M+1}], v[{D}:{D+1}] op_sel:[1,1,0] op_sel_hi:[0,1,1] neg_lo:[1,0,0]")
    def put(self, items):
        A = self.A; slot = 0; w = []
        for i, oa, na, ob, nb in items:
            regs = []
            for o, n in ((oa, na), (ob, nb)):
                if n is None: continue
                c = vCV + 2*slot; slot += 1
                assert slot <= 10
                for m in range(2):
                    if n == "one": A.e(f"v_mov_b32 v{c+m}, 0x3f80")
                    else:
                        X = self.r(n, m)
                        A.e(f"v_cvt_pk_bf16_f32 v{c+m}, v{X}, {'-' if o == 41 else ''}v{X+1}")
                regs.append((o, c))
            w.append((i, regs))
        for i, regs in w:
            if len(regs) == 2:
                A.e(f"ds_write2st64_b64 v{vW+i}, v[{regs[0][1]}:{regs[0][1]+1}], v[{regs[1][1]}:{regs[1][1]+1}] offset0:{regs[0][0]} offset1:{regs[1][0]}")
            else:
                A.e(f"ds_write_b64 v{vW+i}, v[{regs[0][1]}:{regs[0][1]+1}] offset:{regs[0][0]*512}")

def kchan_sub(A):
    A.label("L_kchan")
    C = Ch(A)
    A.e(f"v_readlane_b32 s{s_dt}, v{vDt}, s{s_ci}")
    A.e(f"v_readlane_b32 s{s_dsk}, v{vDk}, s{s_ci}")
    T = vCV
    A.e(f"v_lshlrev_b32 v{T}, 16, v{vCur}")
    A.e(f"v_and_b32 v{T+1}, 0xffff0000, v{vCur}")
    A.e(f"v_lshlrev_b32 v{vZ+1}, 16, v{vCur+1}")
    A.e(f"v_and_b32 v{vZ+5}, 0xffff0000, v{vCur+1}")
    exp_bf16_multi(A, [(vZ, T, T+2, T+3), (vZ+4, T+1, T+4, T+5)])
    A.e(f"v_lshlrev_b32 v{vZ+2}, 16, v{vCur+2}")
    A.e(f"v_and_b32 v{vZ+6}, 0xffff0000, v{vCur+2}")
    A.e(f"v_lshlrev_b32 v{vZ+3}, 16, v{vCur+3}")
    A.e(f"v_and_b32 v{vZ+7}, 0xffff0000, v{vCur+3}")
    for k in range(8): A.e(f"v_mul_f32 v{vZ+k}, s{s_dt}, v{vZ+k}")
    for m in range(2):
        A.e(f"v_mul_f32 v{vZ+4*m}, {fhex(-LOG2E)}, v{vZ+4*m}")
        A.e(f"v_mul_f32 v{vZ+4*m+1}, 0.15915494, v{vZ+4*m+1}")
    Ps = [1, 8, 128, 512, 1024]
    for P in Ps: C.alloc(f"E{P}")
    C.alloc("B0")
    for m in range(2):
        b = C.r("B0", m)
        A.e(f"v_add_f32 v{b}, v{vZ+4*m+2}, v{vZ+4*m+2}")
        A.e(f"v_add_f32 v{b+1}, v{vZ+4*m+3}, v{vZ+4*m+3}")
    tt = lambda k, m: T + 4*k + 2*m
    for k, P in enumerate(Ps):
        for m in range(2):
            if P == 1:
                A.e(f"v_mov_b32 v{tt(k,m)}, v{vZ+4*m}"); A.e(f"v_fract_f32 v{tt(k,m)+1}, v{vZ+4*m+1}")
            else:
                A.e(f"v_mul_f32 v{tt(k,m)}, {fhex(float(P))}, v{vZ+4*m}")
                A.e(f"v_mul_f32 v{tt(k,m)+1}, {fhex(float(P))}, v{vZ+4*m+1}")
    for k, P in enumerate(Ps):
        if P == 1: continue
        for m in range(2): A.e(f"v_fract_f32 v{tt(k,m)+1}, v{tt(k,m)+1}")
    for k, P in enumerate(Ps):
        for m in range(2):
            d = C.r(f"E{P}", m)
            A.e(f"v_exp_f32 v{tt(k,m)}, v{tt(k,m)}")
            A.e(f"v_cos_f32 v{d}, v{tt(k,m)+1}")
            A.e(f"v_sin_f32 v{d+1}, v{tt(k,m)+1}")
    A.e("s_nop 0")
    for k, P in enumerate(Ps):
        for m in range(2):
            d = C.r(f"E{P}", m)
            A.e(f"v_pk_mul_f32 v[{d}:{d+1}], v[{d}:{d+1}], v[{tt(k,m)}:{tt(k,m)+1}] op_sel_hi:[1,0]")
    C.muls([("E2", "E1", "E1"), ("E256", "E128", "E128"), ("E640", "E512", "E128"), ("E129", "E128", "E1"), ("E16", "E8", "E8"), ("B1", "B0", "E8"), ("T1", "E1024", "E128")])
    C.put([(0, 0, "one", 16, "E256"), (8, 0, "E128", 16, "E512"), (0, 32, "E1024", 41, "B0"), (1, 32, "T1", 41, "B1")])
    C.rel("E8")
    C.muls([("E3", "E2", "E1"), ("E4", "E2", "E2"), ("E384", "E256", "E128"), ("E768", "E512", "E256"), ("E130", "E128", "E2"), ("E258", "E256", "E2"),
            ("B2", "B0", "E16"), ("B3", "B1", "E16"), ("T2", "E1024", "E256"), ("T3", "T1", "E256")])
    C.rel("B0", "B1", "T1", "E1024")
    C.put([(10, 0, "E130", 16, "E640"), (1, 0, "E1", 16, "E258"), (4, 0, "E4", 16, "E384"), (2, 32, "T2", 41, "B2"), (3, 32, "T3", 41, "B3")])
    C.rel("E130", "E258")
    C.muls([("E260", "E256", "E4"), ("E516", "E512", "E4"), ("E132", "E128", "E4"), ("E131", "E128", "E3"), ("E644", "E640", "E4"),
            ("B4", "B2", "E16"), ("B5", "B3", "E16"), ("T4", "T2", "E256"), ("T5", "T3", "E256")])
    C.rel("B2", "B3", "T2", "T3", "E640")
    C.put([(2, 0, "E2", 16, "E260"), (9, 0, "E129", 16, "E516"), (12, 0, "E132", 16, "E768"), (11, 0, "E131", 16, "E644"), (4, 32, "T4", 41, "B4")])
    C.rel("E260", "E129", "E516", "E132", "E131", "E644")
    C.muls([("E5", "E4", "E1"), ("E6", "E4", "E2"), ("E7", "E4", "E3"), ("E896", "E512", "E384"), ("E386", "E384", "E2"), ("E388", "E384", "E4"), ("E772", "E768", "E4"),
            ("B6", "B4", "E16"), ("B7", "B5", "E16"), ("T6", "T4", "E256"), ("T7", "T5", "E256")])
    C.put([(5, 32, "T5", 41, "B5"), (5, 0, "E5", 16, "E386"), (6, 0, "E6", 16, "E388"), (6, 32, "T6", 41, "B6"), (7, 32, "T7", 41, "B7")])
    C.rel("B4", "B5", "T4", "T5", "E386", "E388", "E1", "E2", "E512", "E768", "T7")
    C.muls([("E262", "E256", "E6"), ("E390", "E384", "E6"), ("E133", "E128", "E5"), ("E134", "E128", "E6"), ("E135", "E128", "E7"), ("E900", "E896", "E4"),
            ("B8", "B6", "E16"), ("B9", "B7", "E16"), ("T8", "T6", "E256")])
    C.put([(3, 0, "E3", 16, "E262"), (7, 0, "E7", 16, "E390"), (13, 0, "E133", 16, "E772"), (14, 0, "E134", 16, "E896"), (15, 0, "E135", 16, "E900")])
    C.rel("B6", "B7", "T6", "E262", "E390", "E133", "E134", "E135", "E900")
    C.muls([("B10", "B8", "E16"), ("B11", "B9", "E16")])
    C.put([(8, 32, "T8", 41, "B8"), (9, 41, "B9", 0, None)])
    C.muls([("B12", "B10", "E16"), ("B13", "B11", "E16")])
    C.put([(10, 41, "B10", 0, None), (11, 41, "B11", 0, None)])
    C.muls([("B14", "B12", "E16"), ("B15", "B13", "E16")])
    C.put([(12, 41, "B12", 0, None), (13, 41, "B13", 0, None), (14, 41, "B14", 0, None), (15, 41, "B15", 0, None)])
    A.e(f"s_mov_b32 s{s_t0}, {F_U}")
    A.e(f"s_waitcnt vmcnt(0)")
    if 'nopoll' not in EXP: A.e(f"buffer_load_dwordx4 v[{vPL}:{vPL+3}], v{vPL+5}, s[{sWS}:{sWS+3}], s{s_t0} offen{SC}")
    A.lg = []
    A.e("s_waitcnt lgkmcnt(0)")
    D = POOL[0]
    for ks in range(8):
        A.ds(f"ds_read_b128 a[{4*ks}:{4*ks+3}], v{vRD+(ks&3)} offset:{41*512 + (ks>>2)*256}", f"kb{ks}")
        for t in range(3):
            A.ds(f"ds_read_b128 a[{32+32*t+4*ks}:{35+32*t+4*ks}], v{vRD+(ks&3)} offset:{t*8192 + (ks>>2)*256}", f"ka{ks}{t}")
        if ks >= 2:
            for t in range(3):
                k2 = ks - 2
                A.wait_lg([f"ka{k2}{t}"])
                A.e(f"v_mfma_f32_16x16x32_bf16 v[{D+4*t}:{D+4*t+3}], a[{32+32*t+4*k2}:{35+32*t+4*k2}], a[{4*k2}:{4*k2+3}], {'0' if k2 == 0 else f'v[{D+4*t}:{D+4*t+3}]'}")
    for k2 in (6, 7):
        for t in range(3):
            A.wait_lg([f"ka{k2}{t}"])
            A.e(f"v_mfma_f32_16x16x32_bf16 v[{D+4*t}:{D+4*t+3}], a[{32+32*t+4*k2}:{35+32*t+4*k2}], a[{4*k2}:{4*k2+3}], v[{D+4*t}:{D+4*t+3}]")
    A.e("s_nop 0")
    A.e(f"v_mov_b32 v{T}, 0")
    A.e(f"v_writelane_b32 v{T}, s{s_dsk}, 0")
    for k in range(4): A.e(f"v_mov_b32 v{T+4+k}, 0")
    A.e(f"v_add_u32 v{T+2}, s{s_rdst}, v{vRW}")
    A.e(f"v_add_u32 v{T+3}, s{s_rdst}, v{vZW}")
    A.e(f"v_add_f32 v{D}, v{D}, v{T}")
    for k in range(12): A.e(f"ds_write_b32 v{vSc+k}, v{D+k}")
    A.e(f"ds_write_b32 v{9}, v{T+4}")
    A.e(f"ds_write_b128 v{T+3}, v[{T+4}:{T+7}]")
    A.e("s_waitcnt lgkmcnt(0)")
    G = POOL[0] + 12
    for k in range(4):
        for e in range(9): A.ds(f"ds_read_b32 v{G+9*k+e}, v{vGa+9*k+e}", f"g{k}")
    O = POOL[1]
    for k in range(4):
        A.wait_lg(f"g{k}")
        g = G + 9*k
        for e in range(4): A.e(f"v_cvt_pk_bf16_f32 v{O+8*k+e}, v{g+2*e+1}, v{g+2*e+2}")
        for e in range(4): A.e(f"v_cvt_pk_bf16_f32 v{O+8*k+4+e}, v{g+2*e}, v{g+2*e+1}")
    for k in range(4):
        A.e(f"ds_write_b128 v{T+2}, v[{O+8*k}:{O+8*k+3}] offset:{1024*k}")
        A.e(f"ds_write_b128 v{T+2}, v[{O+8*k+4}:{O+8*k+7}] offset:{SR + 1024*k}")
    A.e("s_waitcnt lgkmcnt(0)")
    A.lg = []
    A.e(f"s_setpc_b64 s[{s_ret}:{s_ret+1}]")

vGX, vGG = POOL[0], POOL[1]
def kc_setup(A):
    A.c("======== conv role setup")
    for r, n in ((sP0, 'loga'), (sP1, 'aim'), (sP2, 'cre'), (sP3, 'cim'), (76, 'logdt'), (80, 'dskip'), (84, 'gw')):
        A.e(f"s_load_dwordx2 s[{r}:{r+1}], s[0:1], {KA[n]}")
    A.e(f"s_lshl_b32 s{s_ch0}, s{s_m}, 2")
    A.e(f"s_add_u32 s{s_ch0}, s{s_ch0}, s{s_kq}")
    A.e(f"s_mul_i32 s{s_ch0}, s{s_ch0}, 9")
    A.e(f"s_mul_i32 s{s_lb}, s{s_w}, {WREG}")
    for r, n in ((sP0, D_*256), (sP1, D_*256), (sP2, D_*256), (sP3, D_*256), (76, D_*2), (80, D_*2)):
        A.e(f"s_mov_b32 s{r+2}, {n}"); A.e(f"s_mov_b32 s{r+3}, 0x00020000")
    T = vCV
    A.e(f"v_lshlrev_b32 v{T}, 2, v1")
    A.e(f"v_min_u32 v{T+1}, 8, v1")
    A.e(f"v_add_u32 v{T+1}, s{s_ch0}, v{T+1}")
    A.e(f"v_lshlrev_b32 v{T+1}, 1, v{T+1}")
    A.e(f"s_add_u32 s{s_t0}, s{s_ch0}, s{s_w}")
    A.e(f"s_lshl_b32 s{s_t0}, s{s_t0}, 8")
    A.e(f"s_add_u32 s{s_t1}, s{s_ch0}, 8")
    A.e(f"s_lshl_b32 s{s_t1}, s{s_t1}, 8")
    A.e(f"s_lshl_b32 s{s_upos}, s{s_m}, 7")
    A.e(f"s_lshl_b32 s{s_t2}, s{s_kq}, 5")
    A.e(f"s_add_u32 s{s_upos}, s{s_upos}, s{s_t2}")
    A.e(f"v_lshrrev_b32 v{T+4}, 3, v1")
    A.e(f"v_and_b32 v{T+5}, 7, v1")
    A.e(f"v_add_u32 v{T+6}, s{s_upos}, v{T+4}")
    A.e(f"v_mul_u32_u24 v{T+6}, 1152, v{T+6}")
    A.e(f"v_lshrrev_b32 v{T+7}, 1, v{T+4}")
    A.e(f"v_xor_b32 v{T+7}, v{T+7}, v{T+5}")
    A.e(f"v_lshl_add_u32 v{vXD}, v{T+7}, 4, v{T+6}")
    A.e(f"v_xor_b32 v{vXD+1}, 64, v{vXD}")
    A.e(f"v_add_u32 v{vXD+1}, 8192, v{vXD+1}")
    A.e(f"s_lshl_b32 s{s_upos}, s{s_upos}, 1")
    A.e("s_waitcnt lgkmcnt(0)")
    for slot, (so, off) in enumerate(((s_t1, 0), (s_t0, 0), (s_t0, 1024))):
        for k, srd in enumerate((sP0, sP1, sP2, sP3)):
            A.vmem(f"buffer_load_dword v{vPar+4*slot+k}, v{T}, s[{srd}:{srd+3}], s{so} offen offset:{off}", "kp")
    A.vmem(f"buffer_load_ushort v{vDt}, v{T+1}, s[76:79], 0 offen", "kp")
    A.vmem(f"buffer_load_ushort v{vDk}, v{T+1}, s[80:83], 0 offen", "kp")
    A.e(f"s_getpc_b64 s[{s_ret}:{s_ret+1}]")
    A.label("L_kg_pc")
    A.e(f"s_add_u32 s{s_ret}, s{s_ret}, L_atab-L_kg_pc")
    A.e(f"s_addc_u32 s{s_ret+1}, s{s_ret+1}, 0")
    A.e(f"v_and_b32 v{T+2}, 48, v1")
    for t in range(3):
        A.vmem(f"global_load_dwordx4 v[{vSc+4*t}:{vSc+4*t+3}], v{T+2}, s[{s_ret}:{s_ret+1}] offset:{64*t}", "kp")
    A.e(f"s_cmp_eq_u32 s{s_w}, 0")
    A.e("s_cbranch_scc1 L_xp_skip")
    A.e(f"s_mov_b32 s80, s84"); A.e("s_mov_b32 s81, s85")
    A.e(f"s_mul_i32 s{s_line}, s{s_w}, 3")
    A.e(f"s_sub_u32 s{s_line}, s{s_line}, 3")
    for q in range(3):
        A.e(f"s_add_u32 m0, s{s_lb}, {SCR + 4096*q}")
        A.e(f"s_add_u32 s{s_so}, s{s_line}, {q}")
        A.e(f"s_lshl_b32 s{s_so}, s{s_so}, 7")
        for i in range(4):
            if i == 2: A.e(f"s_add_u32 s{s_so}, s{s_so}, 16384")
            A.e(f"buffer_load_dwordx4 v{vXD+(i&1)}, s[{sX}:{sX+3}], s{s_so} offen offset:{i*1024} lds")
    A.e(f"v_and_b32 v{T+3}, 1, v1")
    A.e(f"v_lshlrev_b32 v{T+3}, 6, v{T+3}")
    A.e(f"s_lshl_b32 s{s_so}, s{s_line}, 7")
    for q in range(3):
        for c in range(4):
            A.e(f"buffer_load_dwordx4 v[{vGG+16*q+4*c}:{vGG+16*q+4*c+3}], v{T+3}, s[80:83], s{s_so} offen offset:{128*q+16*c}")
    A.label("L_xp_skip")
    if 'now1pf' not in EXP and 'nopf' not in EXP:
        A.e(f"s_mul_i32 s{s_t0}, s{s_kq}, 2304")
        A.e(f"s_add_u32 s{sW1}, s{p_w1}, s{s_t0}")
        A.e(f"s_addc_u32 s{sW1+1}, s{p_w1+1}, 0")
        A.e(f"s_mov_b32 s{sW1+2}, {575*9216 + 2304}")
        A.e(f"s_mov_b32 s{sW1+3}, 0x00020000")
        A.e(f"v_mul_u32_u24 v{vPF}, 9216, v1")
        A.e(f"s_lshl_b32 s{s_t3}, s{s_m7}, 2")
        A.e(f"s_add_u32 s{s_t3}, s{s_t3}, s{s_w}")
        A.e(f"s_mul_i32 s{s_t0}, s{s_t3}, 57")
        A.e(f"s_lshr_b32 s{s_t0}, s{s_t0}, 9")
        A.e(f"s_mul_i32 s{s_t1}, s{s_t0}, 9")
        A.e(f"s_sub_u32 s{s_t1}, s{s_t3}, s{s_t1}")
        A.e(f"s_mul_i32 s{s_t1}, s{s_t1}, {64*9216}")
        A.e(f"s_mul_i32 s{s_t0}, s{s_t0}, 768")
        A.e(f"s_add_u32 s{s_t1}, s{s_t1}, s{s_t0}")
        A.e(f"s_add_u32 s{s_t1}, s{s_t1}, 128")
        A.e(f"s_cmp_lt_u32 s{s_t3}, 27")
        A.e(f"s_cselect_b32 s{s_t1}, s{s_t1}, 0x40000000")
        A.e(f"buffer_load_dword a199, v{vPF}, s[{sW1}:{sW1+3}], s{s_t1} offen")
        if 'w1pf2' in EXP:
            A.e(f"buffer_load_dword a198, v{vPF}, s[{sW1}:{sW1+3}], s{s_t1} offen offset:128")
    A.e(f"s_mul_i32 s{s_t0}, s{s_kq}, {1152*1152}")
    A.e(f"s_add_u32 s{sPF}, s{sW2}, s{s_t0}")
    A.e(f"s_addc_u32 s{sPF+1}, s{sW2+1}, 0")
    A.e(f"s_mov_b32 s{sPF+2}, {1152*1152}")
    A.e(f"s_mov_b32 s{sPF+3}, 0x00020000")
    A.e(f"v_lshlrev_b32 v{vPF}, 7, v1")
    A.e(f"s_lshl_b32 s{s_t3}, s{s_m7}, 2")
    A.e(f"s_add_u32 s{s_t3}, s{s_t3}, s{s_w}")
    A.e(f"s_mul_i32 s{s_t0}, s{s_t3}, 57")
    A.e(f"s_lshr_b32 s{s_t0}, s{s_t0}, 9")
    A.e(f"s_mul_i32 s{s_t0}, s{s_t0}, {384*1152 - 9*8192}")
    A.e(f"s_lshl_b32 s{s_t1}, s{s_t3}, 13")
    A.e(f"s_add_u32 s{s_pf+5}, s{s_t0}, s{s_t1}")
    A.e(f"s_lshr_b32 s{s_t0}, s{s_m}, 3")
    A.e(f"s_mul_i32 s{s_t1}, s{s_t0}, {64*1152}")
    A.e(f"s_add_u32 s{s_t1}, s{s_t1}, s{s_pf+5}")
    A.e(f"s_add_u32 s{s_pf}, s{s_t1}, {1*64*1152}")
    A.e(f"s_add_u32 s{s_pf+1}, s{s_t1}, {3*64*1152}")
    A.e(f"s_add_u32 s{s_pf+2}, s{s_pf+5}, {5*64*1152}")
    A.e(f"s_cmp_eq_u32 s{s_t0}, 0")
    A.e(f"s_cselect_b32 s{s_pf+2}, s{s_pf+2}, s{s_pf+5}")
    if 'now2c' in EXP:
        for q in range(3): A.e(f"s_mov_b32 s{s_pf+q}, 0x40000000")
    pf_hook(A, 0); pf_hook(A, 1)
    A.e(f"s_mov_b32 s{s_cA}, {fhex(L2E_HI)}")
    A.e(f"s_mov_b32 s{s_cB}, {fhex(L2E_LO)}")
    A.e(f"s_mov_b32 s{s_cC}, {fhex(LN2)}")
    A.e(f"s_add_u32 s{s_t0}, s{s_lb}, {SCR}")
    A.e(f"v_lshrrev_b32 v{T+4}, 1, v1")
    A.e(f"v_and_b32 v{T+5}, 1, v1")
    A.e(f"v_lshlrev_b32 v{T+5}, 3, v{T+5}")
    A.e(f"v_add_u32 v{T+5}, s{s_t0}, v{T+5}")
    for i in range(16):
        A.e(f"v_xor_b32 v{vW+i}, {33*i}, v{T+4}")
        A.e(f"v_lshl_add_u32 v{vW+i}, v{vW+i}, 4, v{T+5}")
    A.e(f"v_and_b32 v{T+6}, 15, v1")
    A.e(f"v_lshrrev_b32 v{T+7}, 4, v1")
    A.e(f"v_xor_b32 v{T+7}, v{T+7}, v{T+6}")
    A.e(f"v_lshlrev_b32 v{T+8}, 9, v{T+6}")
    A.e(f"v_add_u32 v{T+8}, s{s_t0}, v{T+8}")
    for k in range(4):
        A.e(f"v_xor_b32 v{vRD+k}, {4*k}, v{T+7}")
        A.e(f"v_lshl_add_u32 v{vRD+k}, v{vRD+k}, 4, v{T+8}")
    A.e(f"s_add_u32 s{s_t1}, s{s_lb}, {T_OFF}")
    A.e(f"v_lshlrev_b32 v{T+9}, 3, v1")
    A.e(f"v_sub_u32 v{T+9}, 2047, v{T+9}")
    for k in range(4):
        for e in range(9):
            g = vGa + 9*k + e
            A.e(f"v_subrev_u32 v{g}, {512*k + e}, v{T+9}")
        if k == 3: A.e(f"v_max_i32 v{vGa+35}, 0, v{vGa+35}")
        for e in range(9): A.e(f"v_cvt_f32_u32 v{vGa+9*k+e}, v{vGa+9*k+e}")
    for g in range(vGa, vGa + 36, 2):
        A.e(f"v_cvt_pk_bf16_f32 v{g+1}, v{g}, v{g+1}")
    for g in range(vGa, vGa + 36, 2):
        A.e(f"v_lshlrev_b32 v{g}, 16, v{g+1}")
        A.e(f"v_and_b32 v{g+1}, 0xffff0000, v{g+1}")
    for g in range(vGa, vGa + 36): A.e(f"v_cvt_u32_f32 v{g}, v{g}")
    for g in range(vGa, vGa + 36):
        A.e(f"v_lshrrev_b32 v{T+10+(g&1)}, 5, v{g}")
        A.e(f"v_add_lshl_u32 v{g}, v{g}, v{T+10+(g&1)}, 2")
    for g in range(vGa, vGa + 36): A.e(f"v_add_u32 v{g}, s{s_t1}, v{g}")
    pf_hook(A, 2)
    A.e(f"s_add_u32 s{s_t2}, s{s_t1}, {4*2296}")
    A.e(f"v_mov_b32 v9, s{s_t2}")
    A.e("v_cmp_eq_u32 vcc, 63, v1")
    A.e(f"v_add_u32 v{vRW}, 16, v{vL16}")
    A.e(f"v_mov_b32 v{vPL+6}, 64")
    A.e(f"v_cndmask_b32 v{vGa+35}, v{vGa+35}, v9, vcc")
    A.e(f"v_add_u32 v{T+10}, 256, v{T+6}")
    A.e(f"v_cmp_eq_u32 vcc, 0, v{T+6}")
    A.e(f"v_mov_b32 v{vPL+5}, v{vL16}")
    A.e(f"v_and_b32 v{T+11}, 16, v1")
    A.e(f"v_cndmask_b32 v{T+10}, v{T+10}, v{T+6}, vcc")
    A.e(f"v_lshlrev_b32 v{T+10}, 4, v{T+10}")
    A.e(f"v_mul_u32_u24 v{T+11}, {SR//16}, v{T+11}")
    A.e(f"v_add_u32 v{vZW}, v{T+10}, v{T+11}")
    A.e(f"s_waitcnt vmcnt({0 if 'nopf' in EXP else (3 if 'now1pf' in EXP else (5 if 'w1pf2' in EXP else 4))})"); A.vm = []
    A.e(f"v_lshlrev_b32 v{T+6}, 3, v{T+6}")
    for k in range(12): A.e(f"v_add_u32 v{vSc+k}, v{vSc+k}, v{T+6}")
    for k in range(12):
        A.e(f"v_lshrrev_b32 v{T+10+(k&1)}, 5, v{vSc+k}")
        A.e(f"v_add_lshl_u32 v{vSc+k}, v{vSc+k}, v{T+10+(k&1)}, 2")
    for k in range(12): A.e(f"v_add_u32 v{vSc+k}, s{s_t1}, v{vSc+k}")
    A.e(f"v_lshlrev_b32 v{vDt}, 16, v{vDt}")
    A.e(f"v_lshlrev_b32 v{vDk}, 16, v{vDk}")
    exp_bf16_multi(A, [(vDt, vDt, T+12, T+13)])

def call_kchan(A, slot, ci_expr, rdst_off):
    for k in range(4): A.e(f"v_mov_b32 v{vCur+k}, v{vPar+4*slot+k}")
    A.e(ci_expr)
    A.e(f"s_add_u32 s{s_rdst}, s{s_lb}, {rdst_off}")
    if 'nokc' not in EXP: A.e(f"s_call_b64 s[{s_ret}:{s_ret+1}], L_kchan")

GSUM = 3*WREG + WREG - 512
def kgen_all(A):
    kc_setup(A)
    A.e("s_barrier")
    p1f.counter_arrive(A)
    stamp(A, 1)
    A.e(f"s_cmp_lg_u32 s{s_w}, 0")
    A.e("s_cbranch_scc1 L_xw")
    A.c("-- wave 0: 9th channel, image exported")
    call_kchan(A, 0, f"s_mov_b32 s{s_ci}, 8", RB_OFF)
    A.e(f"s_add_u32 s{s_t0}, s{s_lb}, {RB_OFF}")
    A.e(f"v_add_u32 v{vCV}, s{s_t0}, v{vL16}")
    for k in range(9): A.e(f"ds_read_b128 v[{POOL[0]+4*k}:{POOL[0]+4*k+3}], v{vCV} offset:{1024*k}")
    A.e(f"s_mul_i32 s{s_t0}, s{s_ch0}, 1024")
    A.e(f"s_add_u32 s{s_t0}, s{s_t0}, {WS_R9}")
    A.e("s_waitcnt lgkmcnt(0)")
    for k in range(9):
        if k % 4 == 0 and k: A.e(f"s_add_u32 s{s_t0}, s{s_t0}, 4096")
        A.e(f"buffer_store_dwordx4 v[{POOL[0]+4*k}:{POOL[0]+4*k+3}], v{vL16}, s[{sWS}:{sWS+3}], s{s_t0} offen offset:{1024*(k%4)}")
    A.e("s_branch L_xw_done")
    A.label("L_xw")
    A.c("-- waves 1..3: u^T export and partial gate logits")
    T = vCV
    A.e(f"v_lshrrev_b32 v{T}, 1, v1")
    A.e(f"v_lshrrev_b32 v{T+1}, 1, v{T}")
    A.e(f"v_and_b32 v{T+1}, 7, v{T+1}")
    A.e(f"v_and_b32 v{T+2}, 1, v1")
    A.e(f"v_lshlrev_b32 v{T+2}, 2, v{T+2}")
    A.e(f"v_xor_b32 v{T+1}, v{T+1}, v{T+2}")
    A.e(f"s_add_u32 s{s_t3}, s{s_lb}, {SCR}")
    A.e(f"v_lshlrev_b32 v{T+3}, 7, v{T}")
    A.e(f"v_add_u32 v{T+3}, s{s_t3}, v{T+3}")
    for c in range(4):
        A.e(f"v_xor_b32 v{T+4}, {c}, v{T+1}")
        A.e(f"v_lshl_add_u32 v{T+4}, v{T+4}, 4, v{T+3}")
        for q in range(3): A.e(f"ds_read_b128 v[{vGX+16*q+4*c}:{vGX+16*q+4*c+3}], v{T+4} offset:{4096*q}")
    A.e("s_waitcnt lgkmcnt(0)")
    A.e(f"v_mov_b32 v{T+4}, 0"); A.e(f"v_mov_b32 v{T+5}, 0")
    for k in range(48): A.e(f"v_dot2c_f32_bf16 v{T+4+(k&1)}, v{vGX+k}, v{vGG+k}")
    A.e(f"s_lshl_b32 s{s_t0}, s{s_w}, 7")
    A.e(f"s_add_u32 s{s_t0}, s{s_t0}, {GSUM - 128}")
    A.e(f"v_lshlrev_b32 v{T}, 2, v{T}")
    A.e(f"v_add_f32 v{T+4}, v{T+4}, v{T+5}")
    A.e(f"v_add_u32 v{T}, s{s_t0}, v{T}")
    A.e("s_nop 0")
    A.e(f"v_add_f32_dpp v{T+4}, v{T+4}, v{T+4} quad_perm:[1,0,3,2] row_mask:0xf bank_mask:0xf")
    A.e(f"ds_write_b32 v{T}, v{T+4}")
    for q in range(0 if 'nout' in EXP else 3):
        A.e(f"s_call_b64 s[{s_ret}:{s_ret+1}], L_utsub")
        if q < 2:
            A.e(f"s_add_u32 s{s_line}, s{s_line}, 1")
            A.e(f"s_add_u32 s{s_t3}, s{s_t3}, 4096")
    A.label("L_xw_done")
    stamp(A, 2)
    call_kchan(A, 1, f"s_mov_b32 s{s_ci}, s{s_w}", RA_OFF)
    A.c("-- gate finish (wave 1), flag 1, W2 warm-up tables, counter poll")
    A.e("s_barrier")
    A.e(f"s_cmp_lg_u32 s{s_w}, 1")
    A.e("s_cbranch_scc1 L_gt_skip")
    A.e(f"v_and_b32 v{T}, 31, v1")
    A.e(f"v_lshlrev_b32 v{T}, 2, v{T}")
    A.e(f"v_add_u32 v{T+1}, {GSUM}, v{T}")
    A.e(f"ds_read2_b32 v[{T+2}:{T+3}], v{T+1} offset0:0 offset1:32")
    A.e(f"ds_read_b32 v{T+4}, v{T+1} offset:256")
    A.e(f"s_lshl_b32 s{s_t0}, s{s_upos}, 1")
    A.e(f"s_add_u32 s{s_t0}, s{s_t0}, {WS_GT}")
    A.e("s_waitcnt lgkmcnt(0)")
    A.e(f"v_add_f32 v{T+2}, v{T+2}, v{T+3}")
    A.e(f"v_add_f32 v{T+2}, v{T+2}, v{T+4}")
    A.e(f"v_mul_f32 v{T+2}, {fhex(-LOG2E)}, v{T+2}")
    A.e(f"v_exp_f32 v{T+2}, v{T+2}")
    A.e("s_nop 0")
    A.e(f"v_add_f32 v{T+2}, 1.0, v{T+2}")
    A.e(f"v_rcp_f32 v{T+2}, v{T+2}")
    A.e("s_nop 0")
    A.e(f"buffer_store_dword v{T+2}, v{T}, s[{sWS}:{sWS+3}], s{s_t0} offen{SC}")
    A.label("L_gt_skip")
    A.e(f"v_mov_b32 v{vS}, 1")
    A.e(f"s_waitcnt vmcnt(1)")
    A.e(f"buffer_store_dword v{vS}, off, s[{sWS}:{sWS+3}], s{s_fi}{SC}")
    A.e(f"buffer_load_dword v{vPL+4}, off, s[{sDBG}:{sDBG+3}], 0{SC}")
    call_kchan(A, 2, f"s_add_u32 s{s_ci}, s{s_w}, 4", RB_OFF)
    stamp(A, 3)

def utchk(A):
    A.e(f"s_mov_b32 s{s_t0}, 0x20000")
    A.e(f"s_mov_b32 s{s_t1}, {F_U}")
    A.e("s_waitcnt vmcnt(0)")
    A.label("L_uc1")
    A.e(f"v_min_u32 v{vPL}, v{vPL}, v{vPL+1}")
    A.e(f"v_min3_u32 v{vPL}, v{vPL}, v{vPL+2}, v{vPL+3}")
    A.e(f"v_cmp_gt_u32 vcc, 1, v{vPL}")
    A.e(f"v_cmp_gt_u32 s[76:77], v{vPL+6}, v{vPL+4}")
    A.e("s_or_b64 vcc, vcc, s[76:77]")
    A.e("s_cbranch_scc0 L_uc3")
    A.e(f"s_sub_u32 s{s_t0}, s{s_t0}, 1")
    A.e("s_cbranch_scc1 L_uc3")
    A.e(f"buffer_load_dword v{vPL+4}, off, s[{sDBG}:{sDBG+3}], 0{SC}")
    A.e("s_waitcnt vmcnt(0)")
    A.e(f"buffer_load_dwordx4 v[{vPL}:{vPL+3}], v{vPL+5}, s[{sWS}:{sWS+3}], s{s_t1} offen{SC}")
    A.e("s_waitcnt vmcnt(0)")
    A.e("s_branch L_uc1")
    A.label("L_uc3")

def tables(A):
    A.raw(".p2align 4")
    A.label("L_atab")
    A.raw(".long " + ", ".join(str(x) for x in a_table()))
```

```python
from common import *
aX, aA = 0, 144
E64 = '_e64' if 'e64' in EXP else ''
s_loc_bp = 65
GA = MT + 8

def setup_common(A):
    A.c("---- ids")
    A.e("s_and_b32 s3, s2, 7")
    A.e(f"s_lshr_b32 s{s_kq}, s3, 1")
    A.e("s_and_b32 s3, s3, 1")
    A.e("s_lshl_b32 s3, s3, 3")
    A.e(f"s_lshr_b32 s{s_m7}, s2, 5")
    A.e(f"s_add_u32 s{s_m}, s{s_m7}, s3")
    A.e(f"s_lshr_b32 s{s_r}, s2, 3")
    A.e(f"s_and_b32 s{s_r}, s{s_r}, 3")
    A.e("v_lshrrev_b32 v2, 6, v0")
    A.e("v_and_b32 v1, 63, v0")
    A.e(f"v_readfirstlane_b32 s{s_w}, v2")
    A.e(f"v_lshlrev_b32 v{vL16}, 4, v1")
    A.e(f"s_lshl_b32 s{s_t0}, s{s_m}, 2")
    A.e(f"s_add_u32 s{s_t0}, s{s_t0}, s{s_kq}")
    A.e(f"s_lshl_b32 s{s_hb}, s{s_t0}, 2")
    A.e(f"s_lshl_b32 s{s_fi}, s{s_t0}, 3")
    A.e(f"s_add_u32 s{s_fi}, s{s_fi}, s{s_r}")
    A.e(f"s_lshl_b32 s{s_fi}, s{s_fi}, 2")
    A.e(f"s_add_u32 s{s_fi}, s{s_fi}, s{s_w}")
    A.e(f"s_lshl_b32 s{s_fi}, s{s_fi}, 2")
    A.e(f"s_add_u32 s{s_fi}, s{s_fi}, {WS_F}")
    A.e(f"s_add_u32 s{s_hb}, s{s_hb}, s{s_w}")
    A.e(f"s_mul_i32 s{s_hb}, s{s_hb}, 73728")
    A.e(f"s_mul_i32 s{s_t0}, s{s_r}, 24576")
    A.e(f"s_add_u32 s{s_hb}, s{s_hb}, s{s_t0}")

def p1_setup(A, np_):
    A.c("---- P1 setup")
    T = MT
    A.e(f"s_mul_i32 s{s_rho}, s{s_r}, 3")
    A.e(f"s_add_u32 s{s_rho}, s{s_rho}, s{s_m7}")
    mod_small(A, s_rho, s_rho, 9)
    if 'rho0' in EXP: A.e(f"s_mov_b32 s{s_rho}, 0")
    if 'rho3r' in EXP: A.e(f"s_mul_i32 s{s_rho}, s{s_r}, 3")
    if ROT:
        A.e(f"s_mov_b32 s{s_pc}, s{s_m7}")
        for _ in range((7 // np_)): mod_small(A, s_pc, s_pc, np_)
        A.e(f"s_lshl_b32 s{s_pc}, s{s_pc}, 7")
    else:
        A.e(f"s_mov_b32 s{s_pc}, 0")
    A.e(f"s_mul_i32 s{s_t0}, s{s_kq}, 2304")
    A.e(f"s_mul_i32 s{s_t1}, s{s_r}, 768")
    A.e(f"s_add_u32 s{s_t0}, s{s_t0}, s{s_t1}")
    A.e(f"s_add_u32 s{p_w1}, s{p_w1}, s{s_t0}")
    A.e(f"s_addc_u32 s{p_w1+1}, s{p_w1+1}, 0")
    A.e(f"s_add_u32 s{sW1}, s{p_w1}, s{s_pc}")
    A.e(f"s_addc_u32 s{sW1+1}, s{p_w1+1}, 0")
    A.e(f"s_mov_b32 s{sW1+2}, {575*9216 + 128}")
    A.e(f"s_mov_b32 s{sW1+3}, 0x00020000")
    A.e(f"s_mov_b32 s{s_so}, s{s_t0}")
    A.e(f"s_mov_b32 s{s_t0}, s{s_rho}")
    for kl in range(9):
        A.e(f"s_mul_i32 s{s_rw+kl}, s{s_t0}, {64*9216}")
        if kl < 8:
            A.e(f"s_add_u32 s{s_t0}, s{s_t0}, 1")
            A.e(f"s_cmp_eq_u32 s{s_t0}, 9")
            A.e(f"s_cselect_b32 s{s_t0}, 0, s{s_t0}")
    A.e(f"s_lshl_b32 s{s_wl}, s{s_w}, 11")
    A.e(f"s_mov_b32 s{s_log2e}, {fhex(LOG2E)}")
    A.e(f"v_lshrrev_b32 v{T}, 3, v1")
    A.e(f"v_and_b32 v{T+1}, 7, v1")
    A.e(f"s_lshl_b32 s{s_t0}, s{s_m}, 7")
    A.e(f"s_lshl_b32 s{s_t1}, s{s_w}, 5")
    A.e(f"s_add_u32 s{s_t0}, s{s_t0}, s{s_t1}")
    A.e(f"v_add_u32 v{T+2}, s{s_t0}, v{T}")
    A.e(f"v_mul_u32_u24 v{T+2}, 1152, v{T+2}")
    A.e(f"v_lshrrev_b32 v{T+3}, 1, v{T}")
    A.e(f"v_xor_b32 v{T+3}, v{T+3}, v{T+1}")
    A.e(f"v_lshl_add_u32 v{vXD}, v{T+3}, 4, v{T+2}")
    A.e(f"v_xor_b32 v{vXD+1}, 64, v{vXD}")
    A.e(f"v_add_u32 v{vXD+1}, 8192, v{vXD+1}")
    A.e(f"s_lshl_b32 s{s_t0}, s{s_w}, 4")
    A.e(f"v_add_u32 v{T+2}, s{s_t0}, v{T}")
    A.e(f"v_mul_u32_u24 v{T+2}, 9216, v{T+2}")
    A.e(f"v_lshlrev_b32 v{T+3}, 1, v{T}")
    A.e(f"v_and_b32 v{T+3}, 4, v{T+3}")
    A.e(f"v_xor_b32 v{T+3}, v{T+3}, v{T+1}")
    A.e(f"v_lshl_add_u32 v{vWD}, v{T+3}, 4, v{T+2}")
    A.e(f"v_add_u32 v{vWD+1}, {8*9216 - 1024}, v{vWD}")

def p1_setup2(A):
    T = MT + 4
    A.e(f"v_and_b32 v{T}, 31, v1")
    A.e(f"v_lshrrev_b32 v{T+1}, 5, v1")
    A.e(f"v_lshrrev_b32 v{T+2}, 1, v{T}")
    A.e(f"v_and_b32 v{T+2}, 7, v{T+2}")
    A.e(f"v_xor_b32 v{T+2}, v{T+2}, v{T+1}")
    A.e(f"s_mul_i32 s{s_t0}, s{s_w}, 20480")
    A.e(f"s_add_u32 s{s_t0}, s{s_t0}, {XRING}")
    A.e(f"v_lshlrev_b32 v{T+3}, 7, v{T}")
    A.e(f"v_add_u32 v{T+3}, s{s_t0}, v{T+3}")
    for ks in range(4):
        A.e(f"v_xor_b32 v{T+4}, {2*ks}, v{T+2}")
        A.e(f"v_lshl_add_u32 v{vXR+ks}, v{T+4}, 4, v{T+3}")
    A.e(f"v_lshlrev_b32 v{vBI}, 4, v{T+1}")
    A.e(f"v_add_u32 v{vGW}, {M_GW}, v{vBI}")
    A.e(f"s_lshr_b32 s{s_loc_bp}, s{s_pc}, 7")
    A.e(f"s_lshl_b32 s{s_t0}, s{s_pc}, 1")
    A.e(f"s_add_u32 s{s_t0}, s{s_t0}, {M_BIAS}")
    A.e(f"v_add_u32 v{vBI}, s{s_t0}, v{vBI}")
    A.e(f"v_lshrrev_b32 v{T}, 2, v1")
    A.e(f"v_and_b32 v{T}, 3, v{T}")
    A.e(f"v_lshl_add_u32 v{T+2}, v{T+1}, 3, v{T}")
    A.e(f"v_lshlrev_b32 v{T+2}, 7, v{T+2}")
    A.e(f"v_lshrrev_b32 v{T}, 1, v{T}")
    A.e(f"v_lshl_add_u32 v{T+2}, v{T}, 6, v{T+2}")
    A.e(f"v_lshrrev_b32 v{T}, 4, v1")
    A.e(f"v_and_b32 v{T}, 1, v{T}")
    A.e(f"v_lshl_add_u32 v{T+2}, v{T}, 5, v{T+2}")
    A.e(f"v_and_b32 v{T}, 3, v1")
    A.e(f"v_lshl_add_u32 v{vAR}, v{T}, 3, v{T+2}")
    A.e(f"v_xor_b32 v{vAR+1}, 64, v{vAR}")
    for j in (1, 2):
        A.e(f"v_add_u32 v{vAR+2*j}, {j*2*SLOT}, v{vAR}")
        A.e(f"v_add_u32 v{vAR+2*j+1}, {j*2*SLOT}, v{vAR+1}")

def x_dma_ops(kl):
    slot = kl % 5
    o = []
    a = Op(f"s_mul_i32 s{s_t2}, s{s_w}, 20480", kind="salu")
    m = Op(f"s_add_u32 m0, s{s_t2}, {XRING + slot*4096}", kind="salu")
    s1 = Op(f"s_mul_hi_u32 s{s_so}, s{s_rw+kl}, {-(-(1 << 32)//4608)}", kind="salu")
    o += [a, m, s1]
    for i in range(4):
        if i == 2: o.append(Op(f"s_add_u32 s{s_so}, s{s_so}, 16384", kind="salu"))
        o.append(Op(f"buffer_load_dwordx4 v{vXD+(i&1)}, s[{sX}:{sX+3}], s{s_so} offen offset:{i*1024}{NTX} lds", kind="vmem", tag=f"x{kl}", deps=[(m, 2)]))
    return o

def x_read(A, kl):
    slot = kl % 5
    for ks in range(4):
        st = 4*kl + ks
        A.ds(f"ds_read_b128 a[{aX+4*st}:{aX+4*st+3}], v{vXR+ks} offset:{slot*4096}", f"xr{kl}")

def w1_line_ops(st, j, slot):
    kl = 3*(st % 3) + j
    m = Op(f"s_add_u32 m0, s{s_wl}, {slot*SLOT + j*8192}", kind="salu")
    o = [m]
    for i in range(2):
        o.append(Op(f"buffer_load_dwordx4 v{vWD+i}, s[{sW1}:{sW1+3}], s{s_rw+kl} offen offset:{i*1024}{NTW} lds", kind="vmem", tag=(f"W{kl}" if st < 3 else f"st{st}"), deps=[(m, 2)]))
    return o
def w1_dma_ops(st, slot, np_):
    o = []
    if st % 3 == 0 and st > 0:
        o += [Op(f"s_add_u32 s{s_pc}, s{s_pc}, 128", kind="salu"),
              Op(f"s_cmp_eq_u32 s{s_pc}, {128*np_}\n    s_cselect_b32 s{s_pc}, 0, s{s_pc}", kind="salu", cost=8),
              Op(f"s_add_u32 s{sW1}, s{p_w1}, s{s_pc}\n    s_addc_u32 s{sW1+1}, s{p_w1+1}, 0", kind="salu", cost=8)]
    for j in range(3): o += w1_line_ops(st, j, slot)
    return o

def mish_ops(pi, done_pos, hs_base):
    ops = []; stores = []
    cv = {}
    for grp in range(8):
        t2 = grp // 4
        es = [4*grp + i for i in range(4)]
        tb = MT + (grp % 2)*8
        m = [Op(f"v_mul_f32{E64} v{tb+2*i}, s{s_log2e}, v{TMP+e}", deps=[(done_pos[t2], 13)]) for i, e in enumerate(es)]
        x = [Op(f"v_exp_f32{E64} v{tb+2*i}, v{tb+2*i}", cost=8, trans=True, deps=[(m[i], 1)]) for i in range(4)]
        p = [Op(f"v_fma_f32 v{tb+2*i+1}, v{tb+2*i}, -0.5, -1.0", deps=[(x[i], 2)]) for i in range(4)]
        d = [Op(f"v_fma_f32 v{tb+2*i+1}, v{tb+2*i}, v{tb+2*i+1}, -1.0", deps=[(p[i], 1)]) for i in range(4)]
        r = [Op(f"v_rcp_f32{E64} v{tb+2*i+1}, v{tb+2*i+1}", cost=8, trans=True, deps=[(d[i], 1)]) for i in range(4)]
        y = [Op(f"v_fmac_f32{E64} v{TMP+e}, v{TMP+e}, v{tb+2*i+1}", deps=[(r[i], 2)]) for i, e in enumerate(es)]
        hb = hs_base + 2*grp
        c = [Op(f"v_cvt_pk_bf16_f32 v{hb+j}, v{TMP+es[2*j]}, v{TMP+es[2*j+1]}", deps=[(y[2*j], 1), (y[2*j+1], 1)]) for j in range(2)]
        if grp >= 2:
            for i in range(4):
                m[i].deps.append((cv[grp-2][3][i], 1))
                p[i].deps.append((cv[grp-2][2][i], 1))
        cv[grp] = (c, m, y, d)
        ops += m + x + p + d + r + y + c
        if grp % 2 == 1:
            q = grp // 2
            stores.append(Op(f"buffer_store_dwordx4 v[{hs_base+4*q}:{hs_base+4*q+3}], v{vL16}, s[{sWS}:{sWS+3}], s{s_hb} offen offset:{q*1024}{'' if PLAINH else SC}",
                             kind="vmem", tag=f"h{pi}", deps=[(c[1], 1), (c[0], 1), (cv[grp-1][0][0], 1), (cv[grp-1][0][1], 1)]))
    stores.append(Op(f"s_add_u32 s{s_hb}, s{s_hb}, 4096", kind="salu", deps=[(stores[-1], 1)]))
    return ops, stores

def ut_sub(A, TMP):
    A.label("L_utsub")
    T = TMP + 20
    A.e(f"v_lshrrev_b32 v{T}, 4, v1")
    A.e(f"v_lshrrev_b32 v{T+1}, 2, v1")
    A.e(f"v_and_b32 v{T+1}, 3, v{T+1}")
    A.e(f"v_lshl_add_u32 v{T+1}, v{T}, 3, v{T+1}")
    A.e(f"v_and_b32 v{T+2}, 1, v1")
    A.e(f"v_lshlrev_b32 v{T+2}, 3, v{T+2}")
    A.e(f"v_lshl_add_u32 v{T+2}, v{T+1}, 7, v{T+2}")
    A.e(f"v_add_u32 v{T+2}, s{s_t3}, v{T+2}")
    A.e(f"v_lshrrev_b32 v{T+3}, 1, v1")
    A.e(f"v_and_b32 v{T+3}, 1, v{T+3}")
    A.e(f"v_lshrrev_b32 v{T+1}, 1, v{T+1}")
    A.e(f"v_and_b32 v{T+1}, 7, v{T+1}")
    A.e(f"v_xor_b32 v{T+3}, v{T+3}, v{T+1}")
    for cb in range(4):
        for rd in range(2):
            A.e(f"v_xor_b32 v{T+4+rd}, {(2*cb) ^ (2*rd)}, v{T+3}")
            A.e(f"v_lshl_add_u32 v{T+4+rd}, v{T+4+rd}, 4, v{T+2}")
            A.e(f"ds_read_b64_tr_b16 v[{TMP+4*cb+2*rd}:{TMP+4*cb+2*rd+1}], v{T+4+rd} offset:{rd*512}")
    A.e(f"v_and_b32 v{T+1}, 15, v1")
    A.e(f"v_mul_u32_u24 v{T+1}, {UT_PITCH}, v{T+1}")
    A.e(f"v_lshl_add_u32 v{T+1}, v{T}, 4, v{T+1}")
    A.e(f"s_mul_i32 s{s_t0}, s{s_line}, {64*UT_PITCH}")
    A.e(f"s_add_u32 s{s_t0}, s{s_t0}, s{s_upos}")
    A.e(f"s_add_u32 s{s_t0}, s{s_t0}, {WS_UT + 128}")
    A.e("s_waitcnt lgkmcnt(0)")
    for cb in range(4):
        A.e(f"buffer_store_dwordx4 v[{TMP+4*cb}:{TMP+4*cb+3}], v{T+1}, s[{sWS}:{sWS+3}], s{s_t0} offen{SC}")
        A.e(f"s_add_u32 s{s_t0}, s{s_t0}, {16*UT_PITCH}")
    A.e(f"s_cmp_lg_u32 s{s_upos}, 0")
    A.e(f"s_cbranch_scc1 L_utz")
    A.e(f"v_mul_u32_u24 v{T+1}, {UT_PITCH}, v1")
    A.e(f"s_mul_i32 s{s_t0}, s{s_line}, {64*UT_PITCH}")
    A.e(f"s_add_u32 s{s_t0}, s{s_t0}, {WS_UT + 112}")
    for i in range(4): A.e(f"v_mov_b32 v{TMP+16+i}, 0")
    A.e(f"buffer_store_dwordx4 v[{TMP+16}:{TMP+19}], v{T+1}, s[{sWS}:{sWS+3}], s{s_t0} offen{SC}")
    A.label("L_utz")
    A.e(f"s_setpc_b64 s[{s_ret}:{s_ret+1}]")

def ut_check(A, kl):
    lab = A.newlabel("L_utc")
    A.e(f"s_cmp_lg_u32 s{s_upos}, {kl}")
    A.e(f"s_cbranch_scc1 {lab}")
    A.e(f"s_mov_b32 s{s_t3}, {XRING + (kl % 5)*4096}")
    A.e(f"s_call_b64 s[{s_ret}:{s_ret+1}], L_utsub")
    A.label(lab)

def bias_read(A, pi):
    for t2 in range(2):
        for g in range(4):
            A.ds(f"ds_read_b128 v[{BIAS+16*t2+4*g}:{BIAS+16*t2+4*g+3}], v{vBI} offset:{(32*t2+8*g)*4}", f"bias{pi}")

class Ring:
    def __init__(self): self.slot = {0: 0, 1: 1, 2: 2}; self.free = []; self.freed = set(); self.next = 3
    def release(self, st):
        if st >= 0 and st not in self.freed and st in self.slot:
            self.freed.add(st); self.free.append(self.slot[st])
    def alloc(self, nst):
        out = []
        while self.free and self.next < nst:
            self.slot[self.next] = self.free.pop(0); out.append(self.next); self.next += 1
        return out

def a_reads(A, gs, ring):
    st, ks = gs // 12, gs % 12
    slot = ring.slot[st]
    buf = aA + 8*(gs % 6)
    for t2 in range(1 if ('halfread' in EXP and gs >= 40) else 2):
        for rd in range(2):
            A.ds(f"ds_read_b64_tr_b16 a[{buf+4*t2+2*rd}:{buf+4*t2+2*rd+1}], v{vAR+2*(slot//2)+t2} offset:{(slot%2)*SLOT + (16*ks+4*rd)*128}", f"a{gs}")

def p1_first_loads(A, gate):
    A.e(f"v_lshlrev_b32 v{MT+2}, 1, v0")
    A.vmem(f"buffer_load_ushort v{MT}, v{MT+2}, s[{sT0}:{sT0+3}], s{s_so} offen", "b1")
    A.vmem(f"buffer_load_ushort v{MT+1}, v{MT+2}, s[{sT0}:{sT0+3}], s{s_so} offen offset:512", "b1")
    if gate:
        T = MT + 4
        A.e(f"v_and_b32 v{T}, 127, v0")
        A.e(f"v_lshrrev_b32 v{T+1}, 3, v{T}")
        A.e(f"v_add_u32 v{T+1}, s{s_rho}, v{T+1}")
        A.e(f"v_subrev_u32 v{T+2}, 9, v{T+1}")
        A.e(f"v_min_u32 v{T+1}, v{T+1}, v{T+2}")
        A.e(f"v_and_b32 v{T+2}, 7, v{T}")
        A.e(f"v_lshlrev_b32 v{T+2}, 4, v{T+2}")
        A.e(f"v_lshl_add_u32 v{T+1}, v{T+1}, 7, v{T+2}")
        A.e(f"s_and_b32 s{s_t0}, s{s_w}, 1")
        A.e(f"s_lshl_b32 s{s_t0}, s{s_t0}, 10")
        A.e(f"s_add_u32 m0, s{s_t0}, {M_GW}")
        A.e("s_nop 0")
        A.vmem(f"buffer_load_dwordx4 v{T+1}, s[{sT1}:{sT1+3}], 0 offen lds", "gw")
    for k in FIRST[:NFIRST]: emit_now(A, first_ops(k))
    if 'dry' in EXP:
        for k in ("x5", "W5", "x6", "W6", "x7", "W7", "x8", "W8"): emit_now(A, first_ops(k))
        A.e("s_waitcnt vmcnt(0)")
FIRST = ("x0", "W0", "x1", "W1", "x2", "W2", "x3", "W3", "x4", "W4", "W5", "W6", "W7", "W8")
NFIRST = 4
N2 = int(os.environ.get('N2', 6))
P0V = int(os.environ.get('P0V', 1))
FLUSH = int(os.environ.get('FLUSH', 0))
def p1_second_loads(A):
    for k in FIRST[NFIRST:N2]: emit_now(A, first_ops(k))
def first_ops(k):
    n = int(k[1])
    return x_dma_ops(n) if k[0] == "x" else w1_line_ops(n // 3, n % 3, n // 3)
def counter_arrive(A):
    lab = A.newlabel("L_cnt")
    A.e(f"s_cmp_lg_u32 s{s_w}, 0")
    A.e(f"s_cbranch_scc1 {lab}")
    A.e(f"v_mov_b32 v{vS}, 1")
    A.e("s_mov_b64 exec, 1")
    A.e(f"buffer_atomic_add v{vS}, off, s[{sDBG}:{sDBG+3}], 0 sc1")
    A.e("s_mov_b64 exec, -1")
    A.label(lab)

def p1_main(A, np_, keep, do_ut, gate, nst_total, other_dma, tail_hook=None, pre=None, counter=True):
    nst = 3*np_; nsteps = 36*np_
    ring = Ring()
    A.c("---- bias to LDS (fp32)")
    A.wait_vm("b1")
    A.e(f"v_lshlrev_b32 v{MT}, 16, v{MT}")
    A.e(f"v_lshlrev_b32 v{MT+1}, 16, v{MT+1}")
    A.e(f"v_lshlrev_b32 v{MT+2}, 2, v0")
    A.e(f"v_add_u32 v{MT+2}, {M_BIAS}, v{MT+2}")
    A.ds(f"ds_write_b32 v{MT+2}, v{MT}", "bw")
    A.ds(f"ds_write_b32 v{MT+2}, v{MT+1} offset:1024", "bw")
    A.wait_vm(["x0", "W0"])
    x_read(A, 0)
    A.wait_lg("bw")
    A.e("s_barrier")
    stamp(A, 2)
    if counter: counter_arrive(A)
    if do_ut: ut_check(A, 0)
    bias_read(A, 0)
    def gw_read(gs): A.ds(f"ds_read_b128 v[{HS+4*(gs%8)}:{HS+4*(gs%8)+3}], v{vGW} offset:{32*gs}", f"a{gs}")
    for gs in range(4):
        if gate: gw_read(gs)
        a_reads(A, gs, ring)
    memq = Filler(A); valq = Filler(A); stq = Filler(A)
    done = {}
    xsched = {0: ([1], [1]), 4: ([2], [2]), 8: ([3], [3]), 12: ([4], [4]), 16: ([5], [5]), 20: ([6], [6]), 24: ([7, 8], [7, 8]), 28: ([], [])}
    xdma = {0: ["x5", "W5"], 4: ["x6", "W6"], 8: ["x7", "W7"], 12: ["x8", "W8"]}
    for k in FIRST[N2:10]: memq.add(first_ops(k))
    def dma_ops(st):
        return w1_dma_ops(st, ring.slot[st], np_) if st < nst else other_dma(st, ring.slot[st])
    for gs in range(nsteps):
        pair, s = gs // 36, gs % 36
        st, ks = gs // 12, gs % 12
        if gs == 36 and 'p1st' not in EXP: stamp(A, 3)
        if 'p1st' in EXP and gs % 36 == 0 and gs: stamp(A, 1 + gs//36)
        if s == 0 and pair > 0:
            pp = pair - 1
            hs = ACC3 if pp == 0 else HS + 16*(pp - 1)
            ops, stores = mish_ops(pp, [lambda p=pp: done.get((p, 0)), lambda p=pp: done.get((p, 1))], hs)
            if pair == 1 and gate:
                g0 = A.n
                go = [Op(f"v_add_f32 v{HS}, v{GA}, v{GA+4}", deps=[(lambda: g0, 8)])]
                go.append(Op(f"v_mov_b32 v{HS+1}, v{HS}", deps=[(go[0], 1)]))
                go.append(Op(f"v_permlane32_swap_b32 v{HS}, v{HS+1}", deps=[(go[1], 3)]))
                go.append(Op(f"v_add_f32 v{HS}, v{HS}, v{HS+1}", deps=[(go[2], 1)]))
                go.append(Op(f"v_mul_f32 v{HS}, s{s_log2e}, v{HS}", deps=[(go[3], 1)]))
                go.append(Op(f"v_exp_f32 v{HS}, -v{HS}", cost=8, trans=True, deps=[(go[4], 1)]))
                go.append(Op(f"v_add_f32 v{HS}, 1.0, v{HS}", deps=[(go[5], 2)]))
                go.append(Op(f"v_rcp_f32 v{HS}, v{HS}", cost=8, trans=True, deps=[(go[6], 1)]))
                go.append(Op(f"v_and_b32 v{HS+1}, 31, v1", deps=[(go[3], 1)]))
                go.append(Op(f"v_lshlrev_b32 v{HS+1}, 2, v{HS+1}", deps=[(go[8], 1)]))
                for o in ops[:12]: o.deps.append((go[0], 1))
                for o in ops[26:30]: o.deps.append((go[0], 1))
                valq.add(go)
                go2 = Op(f"s_lshl_b32 s{s_t1}, s{s_w}, 7\n    s_add_u32 s{s_t1}, s{s_t1}, {M_G}\n    v_add_u32 v{HS+1}, s{s_t1}, v{HS+1}\n    ds_write_b32 v{HS+1}, v{HS}", kind="ds", tag="gatew", cost=16, deps=[(go[7], 2), (go[9], 1)])
                valq.add([go2])
            if pre and pair == 1: valq.add(pre.pre_p2_ops())
            if 'nomish' not in EXP: valq.add(ops)
            if 'nomish' not in EXP and 'nost' not in EXP: stq.add(stores)
        if pre and gs >= W2G0 and (gs - W2G0) % W2GS == 0 and gs < W2G0 + 2*NCLS*W2GS and 'nopf' not in EXP and 'w2pfbig' in EXP: memq.add(pre.w2_warm_ops((gs - W2G0)//(NCLS*W2GS), ((gs - W2G0)//W2GS) % NCLS))
        if pre and gs == 66: memq.add(pre.flagcopy_ops(counter=True))
        if pre and gs == 138 and PLAINH: memq.add(pre.flagcopy_ops(ev=3))
        for t2 in range(2):
            if s == 0 and t2 == 0: A.wait_lg([f"bias{pair}", f"a{gs}", "xr0"])
            acc = ACC + 16*t2
            cin = (BIAS + 16*t2) if s == 0 else acc
            dst = (TMP + 16*t2) if s == 35 else acc
            if s == 35: assert not valq.q
            buf = aA + 8*(gs % 6) + 4*t2
            A.e(f"v_mfma_f32_32x32x16_bf16 v[{dst}:{dst+15}], a[{buf}:{buf+3}], a[{aX+4*s}:{aX+4*s+3}], v[{cin}:{cin+15}]")
            if s == 35: done[(pair, t2)] = A.n - 1
            if t2 == 0:
                n0 = A.n
                bar = False
                if gs in xdma and 'dry' not in EXP:
                    for k in xdma[gs]: memq.add(first_ops(k))
                if gs in xsched:
                    xs, ws = xsched[gs]
                    tg = [f"x{k}" for k in xs] + [f"W{k}" for k in ws]
                    while any(o.tag in tg for o in memq.q) or (FLUSH and memq.q and gs <= FLUSH):
                        o = memq.q.pop(0)
                        while not memq.ready(o): A.e("s_nop 0")
                        memq.emit(o)
                    A.wait_vm(tg)
                    if gs == 28: A.wait_lg("xr8")
                    A.e("s_barrier"); bar = True
                    if 'p0st' in EXP and gs in (4, 12, 20, 28): stamp(A, 4 + (gs - 4)//8)
                elif ks == 8 and st + 1 < nst_total:
                    tags = [f"st{st+1}"]
                    fl = None
                    if st % 3 == 1 and pair == np_ - 1: tags.append(f"h{pair-2}"); fl = 1
                    A.wait_vm(tags); A.e("s_nop 0" if 'nobar' in EXP else "s_barrier"); bar = True
                    if pre and gs == 92:
                        A.wait_lg("fcr"); pre.check_counter(A)
                        if PLAINH: stq.q = pre.hello_ops() + stq.q
                    if pre and gs == 164 and PLAINH:
                        A.wait_lg("fcr"); pre.same_check(A)
                    if fl and 'noflag' not in EXP: stq.q = flag_store_ops(0) + stq.q
                if bar:
                    for k in range(st + 1):
                        if 12*k + 11 < gs: ring.release(k)
                    if gs == 28: ring.free += [3, 4, 5]
                    for k in ring.alloc(nst_total):
                        if not ('now1' in EXP and k >= 3): memq.add(dma_ops(k))
                if gs % 2 == 0:
                    A.wait_lg([f"a{gs+1}", f"a{gs+2}"] + ([f"xr{(gs+1)//4}", f"xr{(gs+2)//4}"] if pair == 0 else []))
                if gs in xsched:
                    for k in xsched[gs][0]: x_read(A, k)
                if gs + 4 < nsteps:
                    if gate and gs + 4 < 36: gw_read(gs + 4)
                    a_reads(A, gs + 4, ring)
                    if pre and gs == 88: A.ds(f"ds_read_b32 v{pre.vFC+1}, v{pre.vFA} offset:256", "fcr")
                    if pre and gs == 160 and PLAINH: A.ds(f"ds_read_b32 v{pre.vFC}, v{pre.vFA}", "fcr")
                elif tail_hook: tail_hook(A, gs, ring)
                if gs in xsched and do_ut and 'nout' not in EXP:
                    for k in xsched[gs][0]: ut_check(A, k)
                if s == 20 and pair + 1 < np_:
                    A.e(f"s_add_u32 s{s_loc_bp}, s{s_loc_bp}, 1")
                    A.e(f"s_cmp_eq_u32 s{s_loc_bp}, {np_}")
                    A.e(f"s_cselect_b32 s{s_t0}, {hex((-256*np_) & 0xffffffff)}, 0")
                    A.e(f"s_cselect_b32 s{s_loc_bp}, 0, s{s_loc_bp}")
                    A.e(f"s_add_u32 s{s_t0}, s{s_t0}, 256")
                    A.e(f"v_add_u32 v{vBI}, s{s_t0}, v{vBI}")
                    bias_read(A, pair + 1)
                used = 4*(A.n - n0) - (8 if ('halfread' in EXP) else 16)
                bud = max(0, (16 if 'halfread' in EXP else 8) - used)
                if pair == 0: bud = max(bud, 8) + 8
                u = stq.fill(bud, window=1)
                nv = 0
                while memq.q and (u < bud or memq.q[0].cost > 16 or (len(memq.q) > 14 and u < bud + 8)) and memq.ready(memq.q[0]):
                    o = memq.q[0]
                    if o.kind == "vmem":
                        if nv >= (P0V if pair == 0 else (1 if len(memq.q) <= 14 else 2)): break
                        nv += 1
                    memq.q.pop(0); memq.emit(o); u += o.cost
                valq.fill(max(0, bud - u), allow_trans=False, window=40)
            else:
                if gate and pair == 0 and 'nogate' not in EXP:
                    g = HS + 4*(gs % 8)
                    for hh in range(2):
                        c = "0" if gs == 0 else f"v[{GA+4*hh}:{GA+4*hh+3}]"
                        A.e(f"v_mfma_f32_4x4x4_16b_bf16 v[{GA+4*hh}:{GA+4*hh+3}], v[{g+2*hh}:{g+2*hh+1}], a[{aX+4*s+2*hh}:{aX+4*s+2*hh+1}], {c}")
                if pair == 0:
                    u = 0
                    nv = 0
                    while memq.q and u < 20 and memq.ready(memq.q[0]):
                        o = memq.q.pop(0); memq.emit(o); u += o.cost
                        if o.kind == "vmem":
                            nv += 1
                            if nv == P0V: break
                rem = 33 - s
                work = valq.total() + stq.total() + min(memq.total(), 8*max(rem, 0))
                bud = 24
                while work - bud > max(rem, 0)*(40 if 'halfread' in EXP else 32) and bud < 40: bud += 4
                fill_odd(valq, bud)
                if s == 34: valq.drain(); stq.drain()
    pp = np_ - 1
    hs = ACC3 if pp == 0 else HS + 16*(pp - 1)
    ops, stores = mish_ops(pp, [lambda p=pp: done.get((p, 0)), lambda p=pp: done.get((p, 1))], hs)
    valq.add(ops); stq.add(stores)
    return ring, memq, valq, stq
```

```python
from common import *
from p1f import Ring
aH, aR = 0, 208
s_sl, s_hs, s_r5, s_rr, s_pb, s_need, s_lane, s_val, s_w2l = 66, 70, 74, 79, 82, 83, 84, 85, 3
s_fp, s_cls = 74, 75
s_r3 = 56
vFL, vFA = vXD, vXD + 1
SEQ = [(0, k) for k in range(1, 6)] + [(0, 0)] + [(1, k) for k in range(5)] + [(2, k) for k in range(5)] + [(1, 5), (2, 5)]
G0 = 18
def acc2(t): return [32, 48, 96, 112, 224, 240][t]

def p2_setup(A):
    A.c("---- P2 setup")
    T = MT + 4
    A.e(f"s_mul_i32 s{s_w2l}, s{s_w}, 6144")
    A.e(f"s_and_b32 s{s_cls}, s{s_m7}, {NCLS//4 - 1}")
    A.e(f"s_lshl_b32 s{s_cls}, s{s_cls}, 2")
    A.e(f"s_add_u32 s{s_cls}, s{s_cls}, s{s_w}")
    A.e(f"s_mul_i32 s{s_t0}, s{s_r}, 24576")
    A.e(f"s_sub_u32 s{s_t0}, s{s_hb}, s{s_t0}")
    A.e(f"s_mul_i32 s{s_t1}, s{s_kq}, {1152*1152}")
    A.e(f"s_mul_i32 s{s_t2}, s{s_r}, 384")
    A.e(f"s_add_u32 s{s_t1}, s{s_t1}, s{s_t2}")
    for idx in range(3):
        A.e(f"s_add_u32 s{s_t2}, s{s_r}, {idx}")
        mod_small(A, s_t2, s_t2, 3)
        if idx: A.e(f"s_mov_b32 s{s_rr+idx-1}, s{s_t2}")
        A.e(f"s_mul_i32 s{s_t3}, s{s_t2}, {384*1152}")
        A.e(f"s_add_u32 s{s_sl+idx}, s{s_t1}, s{s_t3}")
        A.e(f"s_mul_i32 s{s_t3}, s{s_t2}, 24576")
        A.e(f"s_add_u32 s{s_hs+idx}, s{s_t0}, s{s_t3}")
    A.e(f"s_mul_i32 s{s_t0}, s{s_w}, {16*1152}")
    for i3 in range(3):
        A.e(f"v_add_u32 v{T}, {64*i3}, v1")
        A.e(f"v_mul_u32_u24 v{T+1}, 2731, v{T}")
        A.e(f"v_lshrrev_b32 v{T+1}, 16, v{T+1}")
        A.e(f"v_mul_u32_u24 v{T+2}, 24, v{T+1}")
        A.e(f"v_sub_u32 v{T+2}, v{T}, v{T+2}")
        A.e(f"v_lshlrev_b32 v{T+3}, 1, v{T+1}")
        A.e(f"v_and_b32 v{T+3}, 4, v{T+3}")
        A.e(f"v_xor_b32 v{T+2}, v{T+2}, v{T+3}")
        A.e(f"v_mul_u32_u24 v{T+1}, 1152, v{T+1}")
        A.e(f"v_lshl_add_u32 v{T+1}, v{T+2}, 4, v{T+1}")
        A.e(f"v_add_u32 v{T+1}, s{s_t0}, v{T+1}")
        for g in range(2):
            i = 3*g + i3
            A.e(f"v_add_u32 v{vW2D+i}, {hex((g*8*1152 - (i&3)*1024) & 0xffffffff)}, v{T+1}")
    A.e(f"v_lshrrev_b32 v{T}, 2, v1")
    A.e(f"v_and_b32 v{T}, 3, v{T}")
    A.e(f"v_lshrrev_b32 v{T+1}, 5, v1")
    A.e(f"v_lshl_add_u32 v{T+1}, v{T+1}, 2, v{T}")
    A.e(f"v_mul_u32_u24 v{T+1}, 384, v{T+1}")
    A.e(f"v_lshrrev_b32 v{T+2}, 4, v1")
    A.e(f"v_and_b32 v{T+2}, 1, v{T+2}")
    A.e(f"v_lshl_add_u32 v{T+1}, v{T+2}, 5, v{T+1}")
    A.e(f"v_and_b32 v{T+2}, 3, v1")
    A.e(f"v_lshl_add_u32 v{T+1}, v{T+2}, 3, v{T+1}")
    A.e(f"v_lshrrev_b32 v{T}, 1, v{T}")
    A.e(f"v_lshlrev_b32 v{T}, 6, v{T}")
    A.e(f"v_add_u32 v{vA2}, v{T+1}, v{T}")
    A.e(f"v_sub_u32 v{vA2+1}, v{T+1}, v{T}")
    for j in (1, 2):
        A.e(f"v_add_u32 v{vA2+2*j}, {j*2*SLOT}, v{vA2}")
        A.e(f"v_add_u32 v{vA2+2*j+1}, {j*2*SLOT}, v{vA2+1}")

def hreg(step):
    if step < 20: return f"v[{HS+4*step}:{HS+4*step+3}]"
    k = step - 20
    return f"a[{aH+4*k}:{aH+4*k+3}]"

def w2_dma_ops(gst, slot):
    k = gst - G0
    idx, pi = SEQ[k]
    tag = f"st{gst}"
    m0a = Op(f"s_add_u32 m0, s{s_w2l}, {slot*SLOT}", kind="salu")
    so = Op(f"s_add_u32 s{s_so}, s{s_sl+idx}, {pi*64*1152}", kind="salu")
    o = [m0a, so]
    for i in range(4):
        o.append(Op(f"buffer_load_dwordx4 v{vW2D+i}, s[{sW2}:{sW2+3}], s{s_so} offen offset:{i*1024}{NTW} lds", kind="vmem", tag=tag, deps=[(m0a, 2)]))
    m0b = Op(f"s_add_u32 m0, s{s_w2l}, {slot*SLOT + 4096}", kind="salu")
    o.append(m0b)
    for i in range(4, 6):
        o.append(Op(f"buffer_load_dwordx4 v{vW2D+i}, s[{sW2}:{sW2+3}], s{s_so} offen offset:{(i&3)*1024}{NTW} lds", kind="vmem", tag=tag, deps=[(m0b, 2)]))
    return o
def h_load_ops(k):
    idx, pi = SEQ[k]
    so = Op(f"s_add_u32 s{s_t2}, s{s_hs+idx}, {pi*4096}", kind="salu")
    o = [so]
    for j in range(4):
        o.append(Op(f"buffer_load_dwordx4 {hreg(4*k+j)}, v{vL16}, s[{sWS}:{sWS+3}], s{s_t2} offen offset:{j*1024}{SC}", kind="vmem", tag=f"st{G0+k}"))
    return o
def restore_ops(pi):
    k = SEQ.index((0, pi))
    so = Op(f"s_add_u32 s{s_t2}, s{s_hs}, {pi*4096}", kind="salu")
    return [so] + [Op(f"buffer_store_dwordx4 {hreg(4*k+j)}, v{vL16}, s[{sWS}:{sWS+3}], s{s_t2} offen offset:{j*1024}{SC}", kind="vmem", tag="rst") for j in range(4)]
def flagcopy_ops(counter=False, ev=0):
    if counter:
        m2 = Op(f"s_mul_i32 s{s_val}, s{s_w}, 772\n    s_add_u32 m0, s{s_val}, {M_FL + 256}\n    s_nop 0", kind="salu", cost=12)
        return [m2, Op(f"buffer_load_dword v{vFL}, s[{sDBG}:{sDBG+3}], 0 offen lds{SC}", kind="vmem", tag="cc", deps=[(m2, 1)])]
    m = Op(f"s_mul_i32 s{s_val}, s{s_w}, 768\n    s_add_u32 m0, s{s_val}, {M_FL}\n    s_and_b32 s{s_val}, s{s_fi}, 0xffffff80\n    s_add_u32 s{s_val}, s{s_val}, {ev*8192}", kind="salu", cost=16)
    o = [m, Op(f"buffer_load_dword v{vFL}, s[{sWS}:{sWS+3}], s{s_val} offen lds{SC}", kind="vmem", tag="fc", deps=[(m, 1)])]
    return o

def poll_sub(A):
    A.label("L_poll")
    A.e(f"s_mov_b32 s{s_t0}, 0x20000")
    A.e(f"v_and_b32 v{TMP2}, 3, v1")
    A.e(f"v_lshlrev_b32 v{TMP2}, 4, v{TMP2}")
    A.label("L_poll_loop")
    A.e("s_sleep 4")
    A.e(f"s_and_b32 s{s_val}, s{s_fi}, 0xffffffcf")
    A.e(f"s_add_u32 s{s_val}, s{s_val}, s{s_need}")
    A.e(f"buffer_load_dword v{TMP2+1}, v{TMP2}, s[{sWS}:{sWS+3}], s{s_val} offen{SC}")
    A.e("s_waitcnt vmcnt(0)")
    A.e(f"v_readlane_b32 s{s_val}, v{TMP2+1}, s{s_lane}")
    A.e(f"s_sub_u32 s{s_t0}, s{s_t0}, 1")
    A.e("s_cbranch_scc1 L_poll_out")
    A.e(f"s_cmp_eq_u32 s{s_val}, 0")
    A.e("s_cbranch_scc1 L_poll_loop")
    A.label("L_poll_out")
    A.e(f"s_setpc_b64 s[{s_ret}:{s_ret+1}]")
    A.label("L_pollc")
    A.e(f"s_mov_b32 s{s_t0}, 0x20000")
    A.label("L_pollc_loop")
    A.e("s_sleep 2")
    A.e(f"buffer_load_dword v{TMP2+1}, off, s[{sDBG}:{sDBG+3}], 0{SC}")
    A.e("s_waitcnt vmcnt(0)")
    A.e(f"v_readfirstlane_b32 s{s_val}, v{TMP2+1}")
    A.e(f"s_sub_u32 s{s_t0}, s{s_t0}, 1")
    A.e("s_cbranch_scc1 L_pollc_out")
    A.e(f"s_cmp_lt_u32 s{s_val}, 64")
    A.e("s_cbranch_scc1 L_pollc_loop")
    A.label("L_pollc_out")
    A.e(f"s_setpc_b64 s[{s_ret}:{s_ret+1}]")
TMP2 = vXR
vFC = vXR + 2

def check(A, lane_sgpr, need):
    lab = A.newlabel("L_chk")
    A.e(f"v_readlane_b32 s{s_val}, v{vFC}, s{lane_sgpr}")
    A.e(f"s_movk_i32 s{s_need}, {need*8192}")
    A.e(f"s_mov_b32 s{s_lane}, s{lane_sgpr}")
    A.e(f"s_cmp_eq_u32 s{s_val}, {need+1}")
    A.e(f"s_cbranch_scc1 {lab}")
    A.e(f"s_call_b64 s[{s_ret}:{s_ret+1}], L_poll")
    A.label(lab)
def hello_ops():
    mv = Op(f"s_getreg_b32 s{s_xcc}, hwreg(HW_REG_XCC_ID, 0, 4)\n    s_add_u32 s{s_xcc}, s{s_xcc}, 0x100\n    v_mov_b32 v{vS}, s{s_xcc}", kind="valu", cost=8)
    st = Op(f"s_add_u32 s{s_t1}, s{s_fi}, {3*8192}\n    buffer_store_dword v{vS}, off, s[{sWS}:{sWS+3}], s{s_t1}{SC}", kind="vmem", tag="flag", cost=8, deps=[(mv, 1)])
    return [mv, st]
def same_check(A):
    A.e(f"v_cmp_ne_u32 vcc, s{s_xcc}, v{vFC}")
    if 'forcewb' in EXP: A.e("s_mov_b32 vcc_lo, 1")
    A.e(f"s_and_b32 s{s_same}, vcc_lo, 7")
    A.e(f"s_cselect_b32 s{s_same}, 0, 1")
def wb_sub(A):
    A.label("L_wb")
    A.e("buffer_wbl2 sc1")
    A.e("s_waitcnt vmcnt(0)")
    A.e(f"s_setpc_b64 s[{s_ret}:{s_ret+1}]")
def check_counter(A):
    lab = A.newlabel("L_chk")
    A.e(f"v_readfirstlane_b32 s{s_val}, v{vFC+1}")
    A.e("s_nop 0")
    A.e(f"s_cmp_ge_u32 s{s_val}, 64")
    A.e(f"s_cbranch_scc1 {lab}")
    A.e(f"s_call_b64 s[{s_ret}:{s_ret+1}], L_pollc")
    A.label(lab)

def a2_read(A, j, ring):
    step, t = j // 6, j % 6
    k, ks = step // 4, step % 4
    slot = ring.slot[G0 + k]
    buf = aR + 4*(j % 12)
    for rd in range(2):
        A.ds(f"ds_read_b64_tr_b16 a[{buf+2*rd}:{buf+2*rd+1}], v{vA2+2*(slot//2)+(t&1)} offset:{(slot%2)*SLOT + (16*ks+8*rd)*384 + t*64}", f"f{j}")

LEAD = 7
RST0 = int(os.environ.get('RST0', 233))
def tail_hook(A, gs, ring):
    k = gs - (36*NP - 4)
    for j in (2*k, 2*k + 1):
        if j < LEAD: a2_read(A, j, ring)

def w2_warm_ops(k, site):
    t = [f"s_cmp_lg_u32 s{s_cls}, {site}", f"s_cbranch_scc1 L_w2pf_{k}_{site}", f"s_mul_i32 s{s_val}, s{s_m7}, 3", f"s_add_u32 s{s_val}, s{s_val}, s{s_r}", f"s_lshl_b32 s{s_val}, s{s_val}, 2", f"s_add_u32 s{s_val}, s{s_val}, s{s_w}",
         f"s_add_u32 s{s_val}, s{s_val}, {96*k}", f"s_cmp_lt_u32 s{s_val}, 162", f"s_cselect_b32 s{s_val}, s{s_val}, 0x8000", f"s_lshl_b32 s{s_val}, s{s_val}, 13",
         f"s_mul_i32 s{s_need}, s{s_kq}, {1152*1152}", f"s_add_u32 s{s_val}, s{s_val}, s{s_need}", f"v_lshlrev_b32 v{vXR}, 7, v1",
         f"buffer_load_dword a{192+k}, v{vXR}, s[{sW2}:{sW2+3}], s{s_val} offen{NTP}", f"L_w2pf_{k}_{site}:"]
    return [Op("\n    ".join(t), kind="salu", cost=8)]

def pre_p2_ops():
    o = [Op(f"v_and_b32 v{vFL}, 31, v1\n    v_lshlrev_b32 v{vFL}, 2, v{vFL}", cost=8),
         Op(f"v_and_b32 v{vFA}, 3, v1"),
         Op(f"v_lshlrev_b32 v{vFA}, 4, v{vFA}"),
         Op(f"s_mul_i32 s{s_val}, s{s_w}, 772\n    s_add_u32 s{s_val}, s{s_val}, {M_FL}\n    v_add_u32 v{vFA}, s{s_val}, v{vFA}", cost=12)]
    for i in range(1, 4): o[i].deps.append((o[i-1], 1))
    o.append(Op(f"v_mov_b32 v{vFC}, 0"))
    o.append(Op(f"s_mul_i32 s{s_val}, s{s_w}, 768\n    s_add_u32 s{s_val}, s{s_val}, {M_FL}\n    v_lshl_add_u32 v{vFC+1}, v1, 2, s{s_val}\n    ds_write2st64_b32 v{vFC+1}, v{vFC}, v{vFC} offset0:0 offset1:1", cost=16, kind="ds", tag="fz", deps=[(o[0], 1), (o[4], 1)]))
    return o

def p2_main(A, ring, memq, valq, stq):
    N = 432
    checks = {41: [(s_rr, 0)], 137: [(s_rr, 1), (s_rr+1, 1)], 281: [(s_rr, 2), (s_rr+1, 2)]}
    flags = {41: ("h4", 1), 113: ("h5", 2)}
    hnext = 5
    A.wait_lg("f0")
    for j in range(N):
        if j == 0 and 'p0st' not in EXP: stamp(A, 7 if 'p1st' in EXP else 4)
        if j == 120 and not (EXP & {'p0st', 'p1st'}): stamp(A, 5)
        step, t = j // 6, j % 6
        k = step // 4
        acc = acc2(t)
        buf = aR + 4*(j % 12)
        cin = "0" if step == 0 else f"v[{acc}:{acc+15}]"
        if step == 16 and t == 0: assert not valq.q, "mish(4) not finished"
        A.e(f"v_mfma_f32_32x32x16_bf16 v[{acc}:{acc+15}], a[{buf}:{buf+3}], {hreg(step)}, {cin}")
        n0 = A.n
        if (j + LEAD) % 24 == 0 and k + 1 < 18:
            tags = [f"st{G0+k+1}"]
            if j in flags: tags.append(flags[j][0])
            A.wait_vm(tags); A.e("s_nop 0" if 'nobar' in EXP else "s_barrier")
            if j in flags: stq.q = flag_store_ops(flags[j][1]) + stq.q
            ring.release(G0 + k - 1)
            for c in checks.get(j, []):
                assert not any(o.tag == "fc" for o in memq.q)
                A.wait_lg("fcr")
                if c[0] == "c": check_counter(A)
                else: check(A, *c)
            if j + 24 in checks:
                assert not memq.q
                memq.add(flagcopy_ops(ev=checks[j + 24][-1][1]))
            for g in ring.alloc(G0 + 18):
                if 'now2' not in EXP: memq.add(w2_dma_ops(g, ring.slot[g]))
            if PLAINH and 'norst' not in EXP and j >= RST0 and (j - RST0)//24 < 6: rst = restore_ops((j - RST0)//24)
            else: rst = []
            while hnext <= k + 5 and hnext < 18:
                if 'noh' not in EXP: memq.add(h_load_ops(hnext))
                hnext += 1
            memq.add(rst)
        if j % 3 == 0:
            A.wait_lg([f"f{j+1}", f"f{j+2}", f"f{j+3}"])
        if j + LEAD < N: a2_read(A, j + LEAD, ring)
        if j + 4 in checks:
            A.ds(f"ds_read_b32 v{vFC}, v{vFA}", "fcr")
        used = 4*(A.n - n0)
        bud = max(0, 24 - used)
        u = stq.fill(min(bud, 8), window=1)
        if u == 0:
            while memq.q and u < bud and memq.ready(memq.q[0]):
                o = memq.q[0]
                left = 22 - ((j + LEAD) % 24)
                if o.kind == "vmem" and j % 2 == 1 and 2*sum(x.kind == "vmem" for x in memq.q) <= left: break
                memq.q.pop(0); memq.emit(o); u += o.cost
                if o.kind == "vmem": break
        if valq.q:
            b2 = max(0, bud - u)
            if valq.total() > 11*(92 - j): b2 += 4
            if j >= 92: b2 = 1000
            fill_odd(valq, b2)
    assert not memq.q and not stq.q and not valq.q

PKR = [TMP + 4*i for i in range(8)] + [MT + 4*i for i in range(4)]
def tail(A, ring):
    OWN = ring.slot[G0 + 15]*SLOT; YT = OWN + 12288
    A.c("---- tail: export partials")
    if not (EXP & {'p0st', 'p1st'}): stamp(A, 6)
    A.e(f"s_mul_i32 s{s_pb}, s{s_m}, 3")
    A.e(f"s_add_u32 s{s_pb}, s{s_pb}, s{s_r}")
    A.e(f"s_lshl_b32 s{s_pb}, s{s_pb}, 2")
    A.e(f"s_add_u32 s{s_t0}, s{s_pb}, s{s_w}")
    A.e(f"s_lshl_b32 s{s_t0}, s{s_t0}, 2")
    A.e(f"s_add_u32 s{s_t0}, s{s_t0}, s{s_kq}")
    A.e(f"s_mul_i32 s{s_t0}, s{s_t0}, 12288")
    A.e(f"s_add_u32 s{s_t0}, s{s_t0}, {WS_P}")
    A.e(f"s_add_u32 s{s_pb}, s{s_pb}, s{s_kq}")
    A.e(f"s_mul_i32 s{s_pb}, s{s_pb}, 49152")
    A.e(f"s_mul_i32 s{s_t1}, s{s_w}, 3072")
    A.e(f"s_add_u32 s{s_pb}, s{s_pb}, s{s_t1}")
    A.e(f"s_add_u32 s{s_pb}, s{s_pb}, {WS_P}")
    for p in range(12):
        t, kk = p // 2, p % 2
        R = PKR[p]; a = acc2(t) + 8*kk
        for d in range(4): A.e(f"v_cvt_pk_bf16_f32 v{R+d}, v{a+2*d}, v{a+2*d+1}")
        if p:
            Q = PKR[p-1]
            A.e(f"v_permlane32_swap_b32 v{Q}, v{Q+2}"); A.e(f"v_permlane32_swap_b32 v{Q+1}, v{Q+3}")
    A.nop(2)
    Q = PKR[11]
    A.e(f"v_permlane32_swap_b32 v{Q}, v{Q+2}"); A.e(f"v_permlane32_swap_b32 v{Q+1}, v{Q+3}")
    if 'tst' in EXP: stamp(A, 1)
    A.e(f"s_cmp_eq_u32 s{s_w}, s{s_kq}")
    A.e("s_cbranch_scc1 L_own")
    for p in range(12):
        if p % 4 == 0 and p: A.e(f"s_add_u32 s{s_t0}, s{s_t0}, 4096")
        A.e(f"buffer_store_dwordx4 v[{PKR[p]}:{PKR[p]+3}], v{vL16}, s[{sWS}:{sWS+3}], s{s_t0} offen offset:{(p%4)*1024}{SC}")
    A.e(f"v_mov_b32 v{vS}, 1")
    A.e("s_waitcnt vmcnt(0)")
    A.e(f"buffer_store_dword v{vS}, off, s[{sWS}:{sWS+3}], s{s_fp}{SC}")
    A.e("s_branch L_own_done")
    A.label("L_own")
    A.e(f"v_add_u32 v{vS}, {OWN}, v{vL16}")
    for p in range(12):
        A.e(f"ds_write_b128 v{vS}, v[{PKR[p]}:{PKR[p]+3}] offset:{p*1024}")
    A.e("s_waitcnt lgkmcnt(0)")
    A.label("L_own_done")
    if 'tst' in EXP: stamp(A, 2)
    A.vm = []; A.lg = []
    A.c("---- poll y flags (22 conv WGs x 4 waves), then a^T DMA")
    V = 32
    A.e(f"s_mul_i32 s{s_t1}, s{s_r}, 21")
    A.e(f"v_add_u32 v{V}, s{s_t1}, v1")
    A.e(f"s_lshl_b32 s{s_t2}, s{s_m}, 2")
    A.e(f"s_add_u32 s{s_t2}, s{s_t2}, s{s_kq}")
    A.e(f"v_mov_b32 v{V+1}, s{s_t2}")
    A.e("v_cmp_lt_u32 vcc, 21, v1")
    A.e(f"s_lshl_b32 s{s_need}, s{s_t2}, 7")
    A.e(f"s_add_u32 s{s_need}, s{s_need}, {WS_GT}")
    A.e(f"v_cndmask_b32 v{V}, v{V}, v{V+1}, vcc")
    A.e(f"v_lshlrev_b32 v{V}, 4, v{V}")
    A.e(f"s_mov_b32 s{s_t1}, {F_Y}")
    A.e(f"s_mov_b32 s{s_t0}, 0x20000")
    A.e(f"v_and_b32 v{V+8}, 31, v1")
    A.label("L_py")
    A.e(f"buffer_load_dwordx4 v[{V+4}:{V+7}], v{V}, s[{sWS}:{sWS+3}], s{s_t1} offen{SC}")
    A.e("s_waitcnt vmcnt(0)")
    A.e(f"v_min_u32 v{V+4}, v{V+4}, v{V+5}")
    A.e(f"v_min3_u32 v{V+4}, v{V+4}, v{V+6}, v{V+7}")
    A.e(f"v_cmp_gt_u32 vcc, 1, v{V+4}")
    A.e(f"s_sub_u32 s{s_t0}, s{s_t0}, 1")
    A.e("s_cbranch_scc1 L_py_out")
    A.e("s_sleep 2")
    A.e("s_cbranch_vccnz L_py")
    A.label("L_py_out")
    if 'tst' in EXP: stamp(A, 3)
    A.e(f"v_lshlrev_b32 v{V+9}, 2, v{V+8}")
    A.e(f"buffer_load_dword v{V+10}, v{V+9}, s[{sWS}:{sWS+3}], s{s_need} offen{SC}")
    A.e(f"v_lshrrev_b32 v{V+1}, 2, v1")
    A.e(f"v_lshlrev_b32 v{V+1}, 12, v{V+1}")
    A.e(f"v_and_b32 v{V+2}, 3, v1")
    A.e(f"v_lshl_add_u32 v{V+1}, v{V+2}, 4, v{V+1}")
    A.e(f"s_mul_i32 s{s_t1}, s{s_r}, 192")
    A.e(f"s_mul_i32 s{s_t2}, s{s_w}, 48")
    A.e(f"s_add_u32 s{s_line}, s{s_t1}, s{s_t2}")
    A.e(f"s_lshl_b32 s{s_t1}, s{s_line}, 12")
    A.e(f"s_lshl_b32 s{s_upos}, s{s_m}, 7")
    A.e(f"s_lshl_b32 s{s_t2}, s{s_kq}, 5")
    A.e(f"s_add_u32 s{s_upos}, s{s_upos}, s{s_t2}")
    A.e(f"s_lshl_b32 s{s_t2}, s{s_upos}, 1")
    A.e(f"s_add_u32 s{s_t1}, s{s_t1}, s{s_t2}")
    A.e(f"s_add_u32 s{s_t1}, s{s_t1}, {WS_Y}")
    A.e(f"s_mul_i32 s{s_t2}, s{s_w}, 3072")
    for i in range(3):
        A.e(f"s_add_u32 m0, s{s_t2}, {YT + 1024*i}")
        A.e("s_nop 0")
        A.e(f"buffer_load_dwordx4 v{V+1}, s[{sWS}:{sWS+3}], s{s_t1} offen lds{SC}")
        if i < 2: A.e(f"s_add_u32 s{s_t1}, s{s_t1}, 65536")
    A.c("---- poll partial flags: producers (m,kq',nq) wave kq")
    A.e(f"v_and_b32 v{V}, 3, v1")
    A.e(f"v_cmp_eq_u32 s[{s_ret}:{s_ret+1}], s{s_kq}, v{V}")
    A.e(f"v_lshlrev_b32 v{V}, 2, v{V}")
    A.e(f"s_and_b32 s{s_t1}, s{s_fp}, 0xfffffe00")
    A.e(f"s_lshl_b32 s{s_t0}, s{s_kq}, 7")
    A.e(f"s_add_u32 s{s_t1}, s{s_t1}, s{s_t0}")
    A.e(f"s_mov_b32 s{s_t0}, 0x20000")
    A.label("L_pp")
    A.e(f"buffer_load_dword v{V+4}, v{V}, s[{sWS}:{sWS+3}], s{s_t1} offen{SC}")
    A.e("s_waitcnt vmcnt(0)")
    A.e(f"v_cmp_gt_u32 vcc, 1, v{V+4}")
    A.e(f"s_sub_u32 s{s_t0}, s{s_t0}, 1")
    A.e("s_cbranch_scc1 L_pp_out")
    A.e(f"s_andn2_b64 vcc, vcc, s[{s_ret}:{s_ret+1}]")
    A.e("s_sleep 1")
    A.e("s_cbranch_vccnz L_pp")
    A.label("L_pp_out")
    if 'tst' in EXP: stamp(A, 4)
    PB = 48
    for q in range(3):
        A.e(f"s_cmp_le_u32 s{s_kq}, {q}")
        A.e(f"s_cselect_b32 s{s_t1}, 12288, 0")
        A.e(f"s_add_u32 s{s_t1}, s{s_t1}, s{s_pb}")
        if q < 2: A.e(f"s_add_u32 s{s_pb}, s{s_pb}, 12288")
        for i in range(3):
            A.vmem(f"buffer_load_dwordx4 v[{PB+12*q+4*i}:{PB+12*q+4*i+3}], v{vL16}, s[{sWS}:{sWS+3}], s{s_t1} offen offset:{1024*i}{SC}", "imp")
    A.e("s_barrier")
    OW, YA = 96, 112
    A.e(f"s_add_u32 s{s_t2}, s{s_t2}, {OWN}")
    A.e(f"v_add_u32 v{V+2}, s{s_t2}, v{vL16}")
    for i in range(3): A.ds(f"ds_read_b128 v[{OW+4*i}:{OW+4*i+3}], v{V+2} offset:{1024*i}", "own")
    A.e(f"v_lshrrev_b32 v{V+3}, 2, v1")
    A.e(f"v_and_b32 v{V+3}, 3, v{V+3}")
    A.e(f"v_lshrrev_b32 v{V+4}, 5, v1")
    A.e(f"v_lshl_add_u32 v{V+3}, v{V+4}, 3, v{V+3}")
    A.e(f"v_lshlrev_b32 v{V+3}, 6, v{V+3}")
    A.e(f"v_and_b32 v{V+5}, 16, v1")
    A.e(f"v_lshl_add_u32 v{V+3}, v{V+5}, 1, v{V+3}")
    A.e(f"v_and_b32 v{V+5}, 3, v1")
    A.e(f"v_lshl_add_u32 v{V+3}, v{V+5}, 3, v{V+3}")
    A.e(f"v_add_u32 v{V+3}, s{s_t2}, v{V+3}")
    for i in range(3):
        for rd in range(2):
            A.ds(f"ds_read_b64_tr_b16 v[{YA+4*i+2*rd}:{YA+4*i+2*rd+1}], v{V+3} offset:{12288 + 1024*i + 256*rd}", "ya")
    A.e(f"v_mul_u32_u24 v{V+8}, 1152, v{V+8}")
    A.e(f"v_lshl_add_u32 v{V+8}, v{V+4}, 4, v{V+8}")
    A.e(f"s_mul_i32 s{s_t1}, s{s_upos}, 1152")
    A.e(f"s_lshl_b32 s{s_t0}, s{s_line}, 1")
    A.e(f"s_add_u32 s{s_t1}, s{s_t1}, s{s_t0}")
    A.wait_all()
    if 'tst' in EXP: stamp(A, 5)
    S = 128
    for i in range(3):
        for d in range(4):
            srcs = [OW + 4*i + d] + [PB + 12*q + 4*i + d for q in range(3)]
            y = YA + 4*i + d
            lo, hi = S + 2*d, S + 2*d + 1
            A.e(f"v_lshlrev_b32 v{lo}, 16, v{srcs[0]}")
            A.e(f"v_and_b32 v{hi}, 0xffff0000, v{srcs[0]}")
            for sreg in srcs[1:]:
                A.e(f"v_lshlrev_b32 v{S+8}, 16, v{sreg}")
                A.e(f"v_and_b32 v{S+9}, 0xffff0000, v{sreg}")
                A.e(f"v_pk_add_f32 v[{lo}:{hi}], v[{lo}:{hi}], v[{S+8}:{S+9}]")
            A.e(f"v_lshlrev_b32 v{S+8}, 16, v{y}")
            A.e(f"v_and_b32 v{S+9}, 0xffff0000, v{y}")
            A.e(f"v_pk_add_f32 v[{S+8}:{S+9}], v[{S+8}:{S+9}], v[{lo}:{hi}] neg_lo:[0,1] neg_hi:[0,1]")
            A.e(f"v_pk_fma_f32 v[{lo}:{hi}], v[{S+8}:{S+9}], v[{V+10}:{V+11}], v[{lo}:{hi}] op_sel_hi:[1,0,1]")
            A.e(f"v_cvt_pk_bf16_f32 v{S+12+4*i+d}, v{lo}, v{hi}")
        A.vmem(f"buffer_store_dwordx4 v[{S+12+4*i}:{S+15+4*i}], v{V+8}, s[{sT1}:{sT1+3}], s{s_t1} offen offset:{32*i}{OUTF}", "o")
```

```python
import sys, os
from common import *
import p1f, p2f
import conv4 as convf
import kc4
from p1f import *
s_fp = p2f.s_fp

def fused():
    A = Asm()
    K = NAME + "_kernel"
    A.raw(kernel_head(K))
    stamp(A, 0)
    A.e("s_cmp_ge_u32 s2, 256")
    A.e("s_cbranch_scc1 L_end")
    for r, n in ((sX, "u"), (p_w1, "w1"), (sWS, "ws"), (sW2, "w2"), (sDBG, "dbg")):
        A.e(f"s_load_dwordx2 s[{r}:{r+1}], s[0:1], {KA[n]}")
    if 'nocpf' not in EXP:
        A.e(f"s_getpc_b64 s[{s_ret}:{s_ret+1}]")
        A.label("L_cpf_pc")
        A.e("v_lshrrev_b32 v2, 6, v0")
        A.e("s_lshr_b32 s3, s2, 3")
        A.e("s_lshl_b32 s3, s3, 2")
        A.e("v_add_u32 v2, s3, v2")
        A.e("v_and_b32 v2, 7, v2")
        A.e("v_lshlrev_b32 v2, 13, v2")
        A.e("v_and_b32 v3, 63, v0")
        A.e("v_lshl_add_u32 v2, v3, 7, v2")
        A.e("v_min_u32 v2, L_codeend-L_cpf_pc-4, v2")
        A.e("v_and_b32 v2, -4, v2")
        A.vmem(f"global_load_dword a255, v2, s[{s_ret}:{s_ret+1}]", "cpf")
    setup_common(A)
    A.e(f"v_mov_b32 v{vS}, 0")
    A.e("s_waitcnt lgkmcnt(0)")
    for r, n in ((sX, L_*D_*2), (sWS, WS_BYTES), (sW2, D_*F_*2), (sDBG, 256)):
        A.e(f"s_mov_b32 s{r+2}, {hex(n)}"); A.e(f"s_mov_b32 s{r+3}, 0x00020000")
    if 'wsend' in EXP:
        A.e(f"s_add_u32 s{sWS}, s{sWS}, {WS_BYTES - 0x2A00000}"); A.e(f"s_addc_u32 s{sWS+1}, s{sWS+1}, 0"); A.e(f"s_mov_b32 s{sWS+2}, 0x2A00000")
    A.e(f"s_mov_b32 s{p_ws}, s{sWS}"); A.e(f"s_mov_b32 s{p_ws+1}, s{sWS+1}")
    A.e(f"s_cmp_eq_u32 s{s_r}, 3")
    A.e("s_cbranch_scc1 L_conv")
    if 'kgst' in EXP: A.e("s_endpgm")
    A.e(f"s_load_dwordx2 s[{sT0}:{sT0+1}], s[0:1], {KA['b1']}")
    A.e(f"s_load_dwordx2 s[{sT1}:{sT1+1}], s[0:1], {KA['out']}")
    p1_setup(A, NP)
    A.e(f"s_mov_b32 s{sT0+2}, {F_*2}"); A.e(f"s_mov_b32 s{sT0+3}, 0x00020000")
    A.e(f"s_mov_b32 s{sT1+2}, {L_*D_*2}"); A.e(f"s_mov_b32 s{sT1+3}, 0x00020000")
    A.e("s_waitcnt lgkmcnt(0)")
    stamp(A, 1)
    if 'ramp' in EXP:
        for n in range(9):
            emit_now(A, first_ops(f"x{n}")); emit_now(A, first_ops(f"W{n}"))
        stamp(A, 2)
        for i, n in enumerate((0, 2, 4, 6, 8)):
            A.wait_vm([f"W{n}"]); stamp(A, 3 + i)
        stamp_flush(A); A.e("s_endpgm")
    p1_first_loads(A, gate=False)
    p1_setup2(A)
    p2f.p2_setup(A)
    A.e(f"s_mul_i32 s{s_fp}, s{s_m}, 3")
    A.e(f"s_add_u32 s{s_fp}, s{s_fp}, s{s_r}")
    A.e(f"s_lshl_b32 s{s_fp}, s{s_fp}, 2")
    A.e(f"s_add_u32 s{s_fp}, s{s_fp}, s{s_w}")
    A.e(f"s_lshl_b32 s{s_fp}, s{s_fp}, 5")
    A.e(f"s_add_u32 s{s_fp}, s{s_fp}, s{s_kq}")
    A.e(f"s_lshl_b32 s{s_fp}, s{s_fp}, 2")
    A.e(f"s_add_u32 s{s_fp}, s{s_fp}, {F_P}")
    p1_second_loads(A)
    def hook(A_, gs, ring): p2f.tail_hook(A_, gs, ring)
    ring, memq, valq, stq = p1_main(A, NP, True, False, False, 36, p2f.w2_dma_ops, hook, pre=p2f, counter=False)
    p2f.p2_main(A, ring, memq, valq, stq)
    p2f.tail(A, ring)
    A.wait_all()
    if not (EXP & {'p0st', 'p1st'}): stamp(A, 7)
    stamp_flush(A)
    A.e("s_endpgm")
    A.label("L_conv")
    A.vm = ["cpf"]; A.lg = []
    A.e(f"s_and_b32 s{s_t0}, s{s_fi}, 0xffffff80")
    A.e("v_lshrrev_b32 v2, 4, v1")
    A.e("v_lshlrev_b32 v2, 13, v2")
    A.e("v_and_b32 v3, 15, v1")
    A.e("v_lshl_add_u32 v2, v3, 2, v2")
    A.e(f"v_add_u32 v2, s{s_t0}, v2")
    A.e(f"s_mul_i32 s{s_t0}, s{s_m}, 12")
    A.e(f"s_add_u32 s{s_t0}, s{s_t0}, s{s_kq}")
    A.e(f"s_lshl_b32 s{s_t0}, s{s_t0}, 7")
    A.e(f"s_add_u32 s{s_t0}, s{s_t0}, {F_P}")
    A.e("v_min_u32 v3, 11, v3")
    A.e("v_lshrrev_b32 v4, 2, v3")
    A.e("v_lshlrev_b32 v4, 9, v4")
    A.e("v_and_b32 v3, 3, v3")
    A.e("v_lshl_add_u32 v3, v3, 2, v4")
    A.e("v_cmp_gt_u32 vcc, 48, v1")
    A.e(f"v_add_u32 v3, s{s_t0}, v3")
    A.e(f"s_cmp_lg_u32 s{s_w}, 0")
    A.e("v_cndmask_b32 v2, v3, v2, vcc")
    A.e("s_cbranch_scc1 L_nz")
    A.e(f"buffer_store_dword v{vS}, v2, s[{sWS}:{sWS+3}], 0 offen{SC}")
    A.label("L_nz")
    A.e(f"s_cmp_lg_u32 s{s_w}, 1")
    A.e("s_cbranch_scc1 L_nz2")
    A.e(f"s_and_b32 s{s_t0}, s{s_fi}, 0xffffff80")
    A.e(f"s_add_u32 s{s_t0}, s{s_t0}, {3*8192}")
    A.e("v_and_b32 v3, 15, v1")
    A.e("v_lshlrev_b32 v3, 2, v3")
    A.e(f"buffer_store_dword v{vS}, v3, s[{sWS}:{sWS+3}], s{s_t0} offen{SC}")
    A.label("L_nz2")
    A.e(f"s_lshr_b32 s{s_fi}, s{s_fi}, 7")
    A.e(f"s_and_b32 s{s_fi}, s{s_fi}, 63")
    A.e(f"s_lshl_b32 s{s_fi}, s{s_fi}, 2")
    A.e(f"s_add_u32 s{s_fi}, s{s_fi}, s{s_w}")
    A.e(f"s_lshl_b32 s{s_fi}, s{s_fi}, 2")
    A.e(f"s_add_u32 s{s_fi}, s{s_fi}, {F_U}")
    A.e("v_and_b32 v2, 1, v1")
    A.e("v_lshlrev_b32 v2, 12, v2")
    A.vmem(f"buffer_store_dword v{vS}, v2, s[{sWS}:{sWS+3}], s{s_fi} offen{SC}", "fz")
    if 'noconv' in EXP: A.e("s_endpgm")
    kc4.kgen_all(A)
    if 'kgonly' in EXP:
        stamp(A, 7); stamp_flush(A); A.e("s_endpgm")
    if 'ramp' in EXP: A.e("s_endpgm")
    if 'kgst' in EXP:
        stamp(A, 7); stamp_flush(A); A.e("s_endpgm")
    convf.conv_all(A, ldflag=SC, stflag=SC)
    A.e(f"v_mov_b32 v{vS}, 1")
    A.e(f"s_add_u32 s{s_fi}, s{s_fi}, 4096")
    A.e("s_waitcnt vmcnt(0)")
    A.e(f"buffer_store_dword v{vS}, off, s[{sWS}:{sWS+3}], s{s_fi}{SC}")
    A.wait_all()
    stamp(A, 7)
    stamp_flush(A)
    A.label("L_end")
    A.e("s_endpgm")
    ut_sub(A, kc4.POOL[0])
    kc4.kchan_sub(A)
    p2f.poll_sub(A)
    p2f.wb_sub(A)
    kc4.tables(A)
    A.label("L_codeend")
    return A.text(), KD.format(name=K, vgpr=512, accum=256)

HDR = open("cdna_kernels/" + NAME + ".s.ref").read().split("; Override launch")[0]
if __name__ == "__main__":
    t, kd = fused()
    s = HDR + f"; @launch grid=(256,1,1) block=(256,1,1) lds={LDS_BYTES}\n" + '.amdgcn_target "amdgcn-amd-amdhsa--gfx950"\n.text\n' + t + '.section .rodata,"a"\n.p2align 6\n' + kd
    open(sys.argv[1], "w").write(s)
```

```python
import os
from asmlib import *
NAME = "gated_mix__ssm_conv_s4d__dense_activation_mish__prompt"
L_, D_, F_ = 2048, 576, 4608
KA = dict(u=0, loga=8, aim=16, cre=24, cim=32, logdt=40, dskip=48, bx=56, w1=64, b1=72, w2=80, gw=88, out=96, dbg=104, ws=112)
WS_H    = 0x0000000
WS_UT   = 0x1200000
UT_PITCH = 4224
WS_G    = 0x2800000
WS_Y    = 0x1700000
WS_P    = 0x1A00000
WS_F    = 0x2400000
WS_TS   = 0x2600000
WS_BYTES = 0x10000000
SLOT = 24576
XRING = 3*SLOT
MISC = 3*SLOT + 81920
M_BIAS, M_GW, M_FL = MISC, MISC + 2048, MISC + 4096
WS_GT = 0x2420000
LDS_BYTES = 163840
LOG2E = 1.4426950408889634
EXP = set(os.environ.get('EXP', '').split(','))
STAMPS = os.environ.get('STAMPS', '')
SC = " sc1"

sX, sW1, sWS, sW2, sT0, sT1, sDBG = 4, 8, 12, 16, 20, 24, 28
p_w1, p_ws = 32, 34
s_w, s_m, s_kq, s_r, s_m7, s_rho, s_fi = 36, 37, 38, 39, 40, 41, 42
s_t0, s_t1, s_t2, s_t3, s_so, s_hb, s_log2e, s_pc, s_wl, s_upos, s_line = 43, 44, 45, 46, 47, 48, 49, 50, 51, 52, 53
s_ret = 54
s_rw = 56
s_loc = 66
vXD, vXR, vWD, vAR, vBI, vL16, vW2D, vA2, vGW, vS = 2, 4, 8, 10, 16, 17, 18, 24, 30, 31
ACC, TMP, BIAS, MT, HS, ACC3 = 32, 64, 96, 128, 144, 224

def ids(b):
    xcd = b & 7; j = b >> 3
    return dict(kq=xcd >> 1, m=(xcd & 1)*8 + (j >> 2), r=j & 3)
def stamp(A, i):
    if 'probe' in EXP and int(os.environ.get("PS", -1)) == i: A.e("s_memrealtime s[94:95]")
    if STAMPS: A.e(f"{'s_memtime' if STAMPS == 'c' else 's_memrealtime'} s[{86+2*i}:{87+2*i}]")
def stamp_flush(A, n=8):
    if not STAMPS: return
    A.e("s_waitcnt lgkmcnt(0)")
    if 'dbgst' in EXP:
        A.e("s_not_b32 s86, s86")
        A.e(f"s_cmp_eq_u32 s{s_r}, 3")
        A.e(f"s_cselect_b32 s{s_t0}, 32, 0")
        A.e("s_mov_b64 exec, 1")
        for i in range(8):
            A.e(f"v_mov_b32 v3, s{86+2*i}")
            if i == 0: A.e(f"buffer_atomic_umax v3, off, s[{sDBG}:{sDBG+3}], 0 offset:32 sc1")
            else: A.e(f"buffer_atomic_umax v3, off, s[{sDBG}:{sDBG+3}], s{s_t0} offset:{4*i} sc1")
        A.e("s_waitcnt vmcnt(0)")
        return
    A.e(f"s_lshl_b32 s3, s2, 8")
    A.e(f"s_lshl_b32 s{s_t0}, s{s_w}, 6")
    A.e(f"s_add_u32 s3, s3, s{s_t0}")
    A.e(f"s_add_u32 s3, s3, {WS_TS}")
    A.e("v_mov_b32 v2, 0")
    for i in range(n):
        A.e(f"v_mov_b32 v3, s{86+2*i}")
        A.e(f"buffer_store_dword v3, v2, s[{sWS}:{sWS+3}], s3 offen offset:{4*i}")
    A.e("s_waitcnt vmcnt(0)")
def emit_now(A, ops):
    F = Filler(A)
    for o in ops:
        while not F.ready(o): A.e("s_nop 0")
        F.emit(o)
def mod_small(A, dst, src, n):
    A.e(f"s_cmp_ge_u32 s{src}, {n}")
    A.e(f"s_cselect_b32 s{s_t3}, {n}, 0")
    A.e(f"s_sub_u32 s{dst}, s{src}, s{s_t3}")
M_G = MISC + 7168
NP = 6
PLAINH = 'sc1H' not in EXP
s_same, s_xcc = 76, 77
F_P, F_U, F_Y = WS_F + 0x8000, WS_F + 0x10000, WS_F + 0x11000
F_P2 = WS_F + 0x40000
def flag_store_ops(ev):
    mv = Op(f"v_mov_b32 v{vS}, {ev+1}", kind="valu")
    wb = ""
    if PLAINH:
        wb = f"s_cmp_lg_u32 s{s_same}, 0\n    s_cbranch_scc1 L_fl{ev}\n    s_call_b64 s[{s_ret}:{s_ret+1}], L_wb\nL_fl{ev}:\n    "
    st = Op(wb + f"s_add_u32 s{s_t1}, s{s_fi}, {ev*8192}\n    buffer_store_dword v{vS}, off, s[{sWS}:{sWS+3}], s{s_t1}{SC}", kind="vmem", tag="flag", cost=8, deps=[(mv, 1)])
    return [mv, st]

ROT = 'rot' in EXP

NTW = ' nt' if 'ntw' in EXP else ''
NTX = ' nt' if 'ntx' in EXP else ''
NTP = ' nt' if 'ntp' in EXP else ''
NCLS = int(os.environ.get('NCLS', 8))
W2G0 = int(os.environ.get('W2G0', 40))
W2GS = int(os.environ.get('W2GS', 9))
OUTF = {'': '', 'sc1': ' sc1', 'nt': ' nt', 'sc1nt': ' sc1 nt'}[os.environ.get('OUTF', '')]
```

```python
from common import *
from p1f import Ring, setup_common, counter_arrive, ut_sub
vXD, vXR, vWD, vAR, vBI, vL16, vS, vEW, vER, vW2D, vA2, vCN = 2, 4, 8, 10, 13, 17, 31, 15, 16, 18, 24, 30
ACC, TMP, BIAS, MT, HS = 32, 64, 96, 128, 144
ARING = [112, 116, 120, 124, 140]
EX = 6*SLOT
M_BIAS = MISC
M_FL = MISC + 2048
s_sl, s_hs, s_rr, s_pb, s_need, s_lane, s_val, s_w2l, s_fp, s_yd = 66, 70, 79, 82, 83, 84, 85, 3, 74, 75
vFL, vFA, TMP2, vFC = vXD, vXD + 1, vXR, vXR + 2
G0 = 18
N2 = int(os.environ.get('N2', 6))
def xreg(rb, s):
    if rb == 0: return f"a[{4*s}:{4*s+3}]"
    if s < 12: return f"a[{208+4*s}:{211+4*s}]"
    if s < 28: return f"a[{144+4*(s-12)}:{147+4*(s-12)}]"
    return f"v[{224+4*(s-28)}:{227+4*(s-28)}]"
def hs(pi): return HS + 64 if pi == 0 else HS + 16*(pi - 1)

def p1_setup(A):
    T = MT
    A.e(f"s_mul_i32 s{s_rho}, s{s_r}, 3")
    A.e(f"s_add_u32 s{s_rho}, s{s_rho}, s{s_m7}")
    mod_small(A, s_rho, s_rho, 9)
    A.e(f"s_mul_i32 s{s_so}, s{s_kq}, 2304")
    A.e(f"s_mul_i32 s{s_t1}, s{s_r}, 768")
    A.e(f"s_add_u32 s{s_so}, s{s_so}, s{s_t1}")
    A.e(f"s_mov_b32 s{sW1+2}, {575*9216 + 128}")
    A.e(f"s_mov_b32 s{sW1+3}, 0x00020000")
    A.e(f"s_mov_b32 s{s_t0}, s{s_rho}")
    for kl in range(9):
        A.e(f"s_mul_i32 s{s_rw+kl}, s{s_t0}, {64*9216}")
        if kl < 8:
            A.e(f"s_add_u32 s{s_t0}, s{s_t0}, 1")
            A.e(f"s_cmp_eq_u32 s{s_t0}, 9")
            A.e(f"s_cselect_b32 s{s_t0}, 0, s{s_t0}")
    A.e(f"s_lshl_b32 s{s_wl}, s{s_w}, 11")
    A.e(f"s_mul_i32 s{s_pc}, s{s_w}, 20480")
    A.e(f"v_lshrrev_b32 v{T}, 3, v1")
    A.e(f"v_and_b32 v{T+1}, 7, v1")
    A.e(f"s_lshl_b32 s{s_t0}, s{s_m}, 7")
    A.e(f"s_lshl_b32 s{s_t1}, s{s_w}, 5")
    A.e(f"s_add_u32 s{s_t0}, s{s_t0}, s{s_t1}")
    A.e(f"v_add_u32 v{T+2}, s{s_t0}, v{T}")
    A.e(f"v_mul_u32_u24 v{T+2}, 1152, v{T+2}")
    A.e(f"v_lshrrev_b32 v{T+3}, 1, v{T}")
    A.e(f"v_xor_b32 v{T+3}, v{T+3}, v{T+1}")
    A.e(f"v_lshl_add_u32 v{vXD}, v{T+3}, 4, v{T+2}")
    A.e(f"v_xor_b32 v{vXD+1}, 64, v{vXD}")
    A.e(f"v_add_u32 v{vXD+1}, 8192, v{vXD+1}")
    A.e(f"s_lshl_b32 s{s_t0}, s{s_w}, 4")
    A.e(f"v_add_u32 v{T+2}, s{s_t0}, v{T}")
    A.e(f"v_mul_u32_u24 v{T+2}, 9216, v{T+2}")
    A.e(f"v_lshlrev_b32 v{T+3}, 1, v{T}")
    A.e(f"v_and_b32 v{T+3}, 4, v{T+3}")
    A.e(f"v_xor_b32 v{T+3}, v{T+3}, v{T+1}")
    A.e(f"v_lshl_add_u32 v{vWD}, v{T+3}, 4, v{T+2}")
    A.e(f"v_add_u32 v{vWD+1}, {8*9216 - 1024}, v{vWD}")

def setup2(A):
    T = MT + 4
    A.e(f"s_mov_b32 s{s_log2e}, {fhex(LOG2E)}")
    A.e(f"v_and_b32 v{T}, 31, v1")
    A.e(f"v_lshrrev_b32 v{T+1}, 5, v1")
    A.e(f"v_lshrrev_b32 v{T+2}, 1, v{T}")
    A.e(f"v_and_b32 v{T+2}, 7, v{T+2}")
    A.e(f"v_xor_b32 v{T+2}, v{T+2}, v{T+1}")
    A.e(f"s_lshr_b32 s{s_t0}, s{s_w}, 1")
    A.e(f"s_mul_i32 s{s_t0}, s{s_t0}, 40960")
    A.e(f"s_add_u32 s{s_t0}, s{s_t0}, {XRING}")
    A.e(f"v_lshlrev_b32 v{T+3}, 7, v{T}")
    A.e(f"v_add_u32 v{T+3}, s{s_t0}, v{T+3}")
    for ks in range(4):
        A.e(f"v_xor_b32 v{T+4}, {2*ks}, v{T+2}")
        A.e(f"v_lshl_add_u32 v{vXR+ks}, v{T+4}, 4, v{T+3}")
    A.e(f"s_and_b32 s{s_t1}, s{s_w}, 1")
    A.e(f"s_lshl_b32 s{s_t0}, s{s_t1}, 7")
    A.e(f"s_add_u32 s{s_t0}, s{s_t0}, {M_BIAS}")
    A.e(f"v_lshlrev_b32 v{vBI}, 4, v{T+1}")
    A.e(f"v_add_u32 v{vBI}, s{s_t0}, v{vBI}")
    A.e(f"v_lshrrev_b32 v{T}, 2, v1")
    A.e(f"v_and_b32 v{T}, 3, v{T}")
    A.e(f"v_lshl_add_u32 v{T+2}, v{T+1}, 3, v{T}")
    A.e(f"v_lshlrev_b32 v{T+2}, 7, v{T+2}")
    A.e(f"v_lshrrev_b32 v{T+3}, 1, v{T}")
    A.e(f"v_xor_b32 v{T+3}, s{s_t1}, v{T+3}")
    A.e(f"v_lshl_add_u32 v{T+2}, v{T+3}, 6, v{T+2}")
    A.e(f"v_lshrrev_b32 v{T+3}, 4, v1")
    A.e(f"v_and_b32 v{T+3}, 1, v{T+3}")
    A.e(f"v_lshl_add_u32 v{T+2}, v{T+3}, 5, v{T+2}")
    A.e(f"v_and_b32 v{T+4}, 3, v1")
    A.e(f"v_lshl_add_u32 v{vAR}, v{T+4}, 3, v{T+2}")
    for j in (1, 2): A.e(f"v_add_u32 v{vAR+j}, {j*2*SLOT}, v{vAR}")
    A.e(f"s_add_u32 s{s_t0}, s{s_wl}, {EX}")
    A.e(f"v_add_u32 v{vEW}, s{s_t0}, v{vL16}")
    A.e(f"v_xor_b32 v{vER}, 2048, v{vEW}")
    A.e(f"v_lshl_add_u32 v{T+1}, v{T+1}, 2, v{T}")
    A.e(f"v_mul_u32_u24 v{T+1}, 384, v{T+1}")
    A.e(f"v_lshl_add_u32 v{T+1}, v{T+3}, 5, v{T+1}")
    A.e(f"v_lshl_add_u32 v{T+1}, v{T+4}, 3, v{T+1}")
    A.e(f"v_lshrrev_b32 v{T}, 1, v{T}")
    A.e(f"v_lshlrev_b32 v{T}, 6, v{T}")
    A.e(f"v_add_u32 v{vA2}, v{T+1}, v{T}")
    A.e(f"v_sub_u32 v{vA2+1}, v{T+1}, v{T}")
    for j in (1, 2):
        A.e(f"v_add_u32 v{vA2+2*j}, {j*2*SLOT}, v{vA2}")
        A.e(f"v_add_u32 v{vA2+2*j+1}, {j*2*SLOT}, v{vA2+1}")
    A.e(f"s_mul_i32 s{s_w2l}, s{s_w}, 6144")
    A.e(f"s_mul_i32 s{s_t0}, s{s_r}, 24576")
    A.e(f"s_sub_u32 s{s_t0}, s{s_hb}, s{s_t0}")
    A.e(f"s_mul_i32 s{s_t1}, s{s_kq}, {1152*1152}")
    A.e(f"s_mul_i32 s{s_t2}, s{s_r}, 384")
    A.e(f"s_add_u32 s{s_t1}, s{s_t1}, s{s_t2}")
    for idx in range(3):
        A.e(f"s_add_u32 s{s_t2}, s{s_r}, {idx}")
        mod_small(A, s_t2, s_t2, 3)
        if idx: A.e(f"s_mov_b32 s{s_rr+idx-1}, s{s_t2}")
        A.e(f"s_mul_i32 s{s_t3}, s{s_t2}, {384*1152}")
        A.e(f"s_add_u32 s{s_sl+idx}, s{s_t1}, s{s_t3}")
        A.e(f"s_mul_i32 s{s_t3}, s{s_t2}, 24576")
        A.e(f"s_add_u32 s{s_hs+idx}, s{s_t0}, s{s_t3}")
    A.e(f"s_mul_i32 s{s_t0}, s{s_w}, {16*1152}")
    for i3 in range(3):
        A.e(f"v_add_u32 v{T}, {64*i3}, v1")
        A.e(f"v_mul_u32_u24 v{T+1}, 2731, v{T}")
        A.e(f"v_lshrrev_b32 v{T+1}, 16, v{T+1}")
        A.e(f"v_mul_u32_u24 v{T+2}, 24, v{T+1}")
        A.e(f"v_sub_u32 v{T+2}, v{T}, v{T+2}")
        A.e(f"v_lshlrev_b32 v{T+3}, 1, v{T+1}")
        A.e(f"v_and_b32 v{T+3}, 4, v{T+3}")
        A.e(f"v_xor_b32 v{T+2}, v{T+2}, v{T+3}")
        A.e(f"v_mul_u32_u24 v{T+1}, 1152, v{T+1}")
        A.e(f"v_lshl_add_u32 v{T+1}, v{T+2}, 4, v{T+1}")
        A.e(f"v_add_u32 v{T+1}, s{s_t0}, v{T+1}")
        for g in range(2):
            i = 3*g + i3
            A.e(f"v_add_u32 v{vW2D+i}, {hex((g*8*1152 - (i&3)*1024) & 0xffffffff)}, v{T+1}")
    A.e(f"s_mul_i32 s{s_fp}, s{s_m}, 3")
    A.e(f"s_add_u32 s{s_fp}, s{s_fp}, s{s_r}")
    A.e(f"s_lshl_b32 s{s_pb}, s{s_fp}, 2")
    A.e(f"s_add_u32 s{s_fp}, s{s_pb}, s{s_w}")
    A.e(f"s_lshl_b32 s{s_fp}, s{s_fp}, 5")
    A.e(f"s_add_u32 s{s_fp}, s{s_fp}, s{s_kq}")
    A.e(f"s_lshl_b32 s{s_fp}, s{s_fp}, 2")
    A.e(f"s_add_u32 s{s_fp}, s{s_fp}, {F_P}")

def x_dma_ops(kl):
    m = Op(f"s_add_u32 m0, s{s_pc}, {XRING + (kl % 5)*4096}", kind="salu")
    s1 = Op(f"s_mul_hi_u32 s{s_so}, s{s_rw+kl}, {-(-(1 << 32)//4608)}", kind="salu")
    o = [m, s1]
    for i in range(4):
        if i == 2: o.append(Op(f"s_add_u32 s{s_so}, s{s_so}, 16384", kind="salu"))
        o.append(Op(f"buffer_load_dwordx4 v{vXD+(i&1)}, s[{sX}:{sX+3}], s{s_so} offen offset:{i*1024} lds", kind="vmem", tag=f"x{kl}", deps=[(m, 2)]))
    return o
def x_read(A, kl):
    for rb in range(2):
        for ks in range(4):
            A.ds(f"ds_read_b128 {xreg(rb, 4*kl+ks)}, v{vXR+ks} offset:{rb*20480 + (kl % 5)*4096}", f"xr{kl}")
def w1_line_ops(st, j, slot):
    kl = 3*(st % 3) + j
    m = Op(f"s_add_u32 m0, s{s_wl}, {slot*SLOT + j*8192}", kind="salu")
    return [m] + [Op(f"buffer_load_dwordx4 v{vWD+i}, s[{sW1}:{sW1+3}], s{s_rw+kl} offen offset:{i*1024} lds", kind="vmem", tag=(f"W{kl}" if st < 3 else f"st{st}"), deps=[(m, 2)]) for i in range(2)]
def w1_dma_ops(st, slot):
    o = []
    if st % 3 == 0: o.append(Op(f"s_add_u32 s{sW1}, s{sW1}, 128\n    s_addc_u32 s{sW1+1}, s{sW1+1}, 0", kind="salu", cost=8))
    for j in range(3): o += w1_line_ops(st, j, slot)
    return o
FIRST = ("x0", "W0", "x1", "W1", "x2", "W2", "x3", "W3", "x4", "W4")
def first_ops(k):
    n = int(k[1])
    return x_dma_ops(n) if k[0] == "x" else w1_line_ops(n // 3, n % 3, n // 3)

def mish_ops(pi, done_pos):
    ops = []; G = []
    for grp in range(16):
        rb = grp // 8
        es = [2*grp, 2*grp + 1]
        tb = MT + (grp % 3)*4
        m = [Op(f"v_mul_f32 v{tb+2*i}, s{s_log2e}, v{TMP+e}", deps=[(done_pos[rb], 13)]) for i, e in enumerate(es)]
        x = [Op(f"v_exp_f32 v{tb+2*i}, v{tb+2*i}", cost=8, trans=True, deps=[(m[i], 1)]) for i in range(2)]
        p = [Op(f"v_fma_f32 v{tb+2*i+1}, v{tb+2*i}, -0.5, -1.0", deps=[(x[i], 2)]) for i in range(2)]
        d = [Op(f"v_fma_f32 v{tb+2*i+1}, v{tb+2*i}, v{tb+2*i+1}, -1.0", deps=[(p[i], 1)]) for i in range(2)]
        r = [Op(f"v_rcp_f32 v{tb+2*i+1}, v{tb+2*i+1}", cost=8, trans=True, deps=[(d[i], 1)]) for i in range(2)]
        y = [Op(f"v_fmac_f32 v{TMP+e}, v{TMP+e}, v{tb+2*i+1}", deps=[(r[i], 2)]) for i, e in enumerate(es)]
        c = Op(f"v_cvt_pk_bf16_f32 v{hs(pi)+grp}, v{TMP+es[0]}, v{TMP+es[1]}", deps=[(y[0], 1), (y[1], 1)])
        if grp >= 3:
            for i in range(2):
                m[i].deps.append((G[grp-3][0][i], 1)); p[i].deps.append((G[grp-3][1][i], 1))
        G.append((d, y))
        ops += m + x + p + d + r + y + [c]
    return ops
def ex_block(A, pi, send):
    l1, l2 = A.newlabel("L_ex"), A.newlabel("L_exe")
    A.e(f"s_bitcmp1_b32 s{s_w}, 0")
    A.e(f"s_cbranch_scc1 {l1}")
    for par in range(2):
        b = hs(pi) + (8 if par == 0 else 0)
        for k in range(2):
            t = (f"ds_write_b128 v{vEW}, v[{b+4*k}:{b+4*k+3}] offset:{1024*k}" if send else f"ds_read_b128 v[{b+4*k}:{b+4*k+3}], v{vER} offset:{1024*k}")
            if par == 0: A.ds(t, f"ex{'s' if send else 'r'}{pi}")
            else: A.e(t)
        if par == 0:
            A.e(f"s_branch {l2}"); A.label(l1)
    A.label(l2)
def h_store_ops(pi):
    o = [Op(f"buffer_store_dwordx4 v[{hs(pi)+4*q}:{hs(pi)+4*q+3}], v{vL16}, s[{sWS}:{sWS+3}], s{s_hb} offen offset:{q*1024}{SC}", kind="vmem", tag=f"h{pi}") for q in range(4)]
    o.append(Op(f"s_add_u32 s{s_hb}, s{s_hb}, 4096", kind="salu"))
    return o
def flag_ops(ev):
    return [Op(f"v_mov_b32 v{vS}, {ev+1}\n    s_add_u32 s{s_t1}, s{s_fi}, {ev*8192}\n    buffer_store_dword v{vS}, off, s[{sWS}:{sWS+3}], s{s_t1}{SC}", kind="vmem", tag="flag", cost=12)]
def bias_read(A, pi):
    for g in range(4):
        A.ds(f"ds_read_b128 v[{BIAS+4*g}:{BIAS+4*g+3}], v{vBI} offset:{256*pi + 32*g}", f"bias{pi}")
def a_reads(A, gs, ring):
    st, ks = gs // 12, gs % 12
    slot = ring.slot[st]; buf = ARING[gs % 5]
    for rd in range(2):
        A.ds(f"ds_read_b64_tr_b16 v[{buf+2*rd}:{buf+2*rd+1}], v{vAR+slot//2} offset:{(slot%2)*SLOT + (16*ks+4*rd)*128}", f"a{gs}")

def pump(q, bud, maxv):
    u = nv = 0
    while q.q and q.ready(q.q[0]):
        o = q.q[0]
        if o.kind == "vmem":
            if nv >= maxv: break
            nv += 1
        if u and u + o.cost > bud: break
        if u == 0 and bud <= 0: break
        q.q.pop(0); q.emit(o); u += o.cost
    return u

def p1(A):
    nsteps = 216
    ring = Ring()
    A.e(f"v_lshlrev_b32 v{MT+2}, 1, v0")
    A.vmem(f"buffer_load_ushort v{MT}, v{MT+2}, s[{sT0}:{sT0+3}], s{s_so} offen", "b1")
    A.vmem(f"buffer_load_ushort v{MT+1}, v{MT+2}, s[{sT0}:{sT0+3}], s{s_so} offen offset:512", "b1")
    for k in FIRST[:4]: emit_now(A, first_ops(k))
    setup2(A)
    for k in FIRST[4:N2]: emit_now(A, first_ops(k))
    A.wait_vm("b1")
    A.e(f"v_lshlrev_b32 v{MT}, 16, v{MT}")
    A.e(f"v_lshlrev_b32 v{MT+1}, 16, v{MT+1}")
    A.e(f"v_lshlrev_b32 v{MT+2}, 2, v0")
    A.e(f"v_add_u32 v{MT+2}, {M_BIAS}, v{MT+2}")
    A.ds(f"ds_write_b32 v{MT+2}, v{MT}", "bw")
    A.ds(f"ds_write_b32 v{MT+2}, v{MT+1} offset:1024", "bw")
    A.wait_vm(["x0", "W0"]); A.wait_lg("bw")
    A.e("s_barrier")
    stamp(A, 2)
    bias_read(A, 0); a_reads(A, 0, ring); x_read(A, 0)
    for gs in range(1, 4): a_reads(A, gs, ring)
    memq = Filler(A); valq = Filler(A); stq = Filler(A)
    done = {}
    xsched = {0: ([1], [1]), 4: ([2], [2]), 8: ([3], [3]), 12: ([4], [4]), 16: ([5], [5]), 20: ([6], [6]), 24: ([7, 8], [7, 8]), 28: ([], [])}
    xdma = {0: ["x5", "W5"], 4: ["x6", "W6"], 8: ["x7", "W7"], 12: ["x8", "W8"]}
    for k in FIRST[N2:]: memq.add(first_ops(k))
    for gs in range(nsteps):
        pair, s = gs // 36, gs % 36
        st, ks = gs // 12, gs % 12
        if gs == 36 and 'p1st' not in EXP: stamp(A, 3)
        if 'p1st' in EXP and gs % 36 == 0 and gs: stamp(A, 1 + gs//36)
        if s == 0 and pair > 0:
            pp = pair - 1
            if pair == 2: valq.add(pre_p2_ops())
            valq.add(mish_ops(pp, [lambda p=pp: done.get((p, 0)), lambda p=pp: done.get((p, 1))]))
        if gs == 100: memq.add([Op(f"buffer_load_dword v{vCN}, off, s[{sDBG}:{sDBG+3}], 0{SC}", kind="vmem", tag="cnt")])
        for rb in range(2):
            if s == 0 and rb == 0: A.wait_lg([f"bias{pair}", f"a{gs}", "xr0"])
            acc = ACC + 16*rb
            cin = BIAS if s == 0 else acc
            dst = (TMP + 16*rb) if s == 35 else acc
            if s == 35: assert not valq.q
            buf = ARING[gs % 5]
            A.e(f"v_mfma_f32_32x32x16_bf16 v[{dst}:{dst+15}], v[{buf}:{buf+3}], {xreg(rb, s)}, v[{cin}:{cin+15}]")
            if s == 35: done[(pair, rb)] = A.n - 1
            n0 = A.n
            if rb == 0:
                bar = False
                if gs in xdma:
                    for k in xdma[gs]: memq.add(first_ops(k))
                if gs in xsched:
                    xs, ws = xsched[gs]
                    tg = [f"x{k}" for k in xs] + [f"W{k}" for k in ws]
                    while any(o.tag in tg for o in memq.q):
                        o = memq.q.pop(0)
                        while not memq.ready(o): A.e("s_nop 0")
                        memq.emit(o)
                    A.wait_vm(tg)
                    if gs == 28: A.wait_lg("xr8")
                    A.e("s_barrier"); bar = True
                elif ks == 8:
                    tags = [f"st{st+1}"]
                    if gs == 212: tags += ["cnt"]
                    A.wait_vm(tags)
                    if s == 8 and pair >= 2: A.wait_lg(f"exs{pair-2}")
                    if s == 20 and pair >= 2: A.wait_lg(f"exr{pair-2}")
                    A.e("s_barrier"); bar = True
                    if gs == 212:
                        check_counter(A)
                if bar:
                    for k in range(st + 1):
                        if 12*k + 11 < gs: ring.release(k)
                    if gs == 28: ring.free += [3, 4, 5]
                    for k in ring.alloc(G0 + 18): memq.add(w1_dma_ops(k, ring.slot[k]) if k < 18 else w2_dma_ops(k, ring.slot[k]))
                if gs % 2 == 0:
                    A.wait_lg([f"a{gs+1}", f"a{gs+2}"] + ([f"xr{(gs+1)//4}", f"xr{(gs+2)//4}"] if pair == 0 else []) + ([f"exr{pair-2}"] if s == 10 else []))
                if s == 10 and pair >= 2: hst = h_store_ops(pair - 2)
                if pair >= 2 and s in HSITES:
                    stq.add([hst.pop(0)])
                    if len(hst) == 1: stq.add([hst.pop(0)])
                if gs + 4 < nsteps: a_reads(A, gs + 4, ring)
                else:
                    for j in (2*(gs - 212), 2*(gs - 212) + 1):
                        if j < LEAD: a2_read(A, j, ring)
                if gs in xsched:
                    for k in xsched[gs][0]: x_read(A, k)
                if s == 8 and pair >= 2: ex_block(A, pair - 2, False)
                if s == 22 and pair + 1 < 6: bias_read(A, pair + 1)
                bud = 24 - 4*(A.n - n0)
                u = pump(stq, bud, 1)
                if u == 0 or pair == 0: u += pump(memq, max(bud - u, 4 if len(memq.q) > 12 else 0), 1)
                valq.fill(max(0, bud - u), allow_trans=False, window=30)
            else:
                u = 0
                if pair == 0 or len(memq.q) > 10: u = pump(memq, 8, 1)
                rem = 33 - s
                work = valq.total()
                bud = 24 - u
                while work - bud > max(rem, 0)*PCAP and bud < 40: bud += 4
                fill_odd(valq, bud, window=30)
                if s == 34:
                    valq.drain()
                if s == 35 and pair >= 1: ex_block(A, pair - 1, True)
    valq.add(mish_ops(5, [lambda: done.get((5, 0)), lambda: done.get((5, 1))]))
    return ring, memq, valq, stq
HSITES = (10, 15, 23, 28)
PCAP = int(os.environ.get('PCAP', 32))

SEQ = [(0, 1), (0, 2), (0, 3), (0, 4), (0, 0), (1, 0), (0, 5), (1, 1), (1, 2), (1, 3), (2, 0), (2, 1), (2, 2), (2, 3), (1, 4), (2, 4), (1, 5), (2, 5)]
IMP = [k for k, (i, p) in enumerate(SEQ) if not (i == 0 and p > 0)]
aR = 208
LEAD = 7
def acc2(t): return [32, 48, 96, 112, 224, 240][t]
def hreg(step):
    k, j = step // 4, step % 4
    if k in IMP:
        b = 16*IMP.index(k) + 4*j
        return f"a[{b}:{b+3}]"
    b = hs(SEQ[k][1]) + 4*j
    return f"v[{b}:{b+3}]"
def w2_dma_ops(gst, slot):
    idx, pi = SEQ[gst - G0]
    tag = f"st{gst}"
    m0a = Op(f"s_add_u32 m0, s{s_w2l}, {slot*SLOT}", kind="salu")
    so = Op(f"s_add_u32 s{s_so}, s{s_sl+idx}, {pi*64*1152}", kind="salu")
    o = [m0a, so]
    for i in range(4):
        o.append(Op(f"buffer_load_dwordx4 v{vW2D+i}, s[{sW2}:{sW2+3}], s{s_so} offen offset:{i*1024} lds", kind="vmem", tag=tag, deps=[(m0a, 2)]))
    m0b = Op(f"s_add_u32 m0, s{s_w2l}, {slot*SLOT + 4096}", kind="salu")
    o.append(m0b)
    for i in range(4, 6):
        o.append(Op(f"buffer_load_dwordx4 v{vW2D+i}, s[{sW2}:{sW2+3}], s{s_so} offen offset:{(i&3)*1024} lds", kind="vmem", tag=tag, deps=[(m0b, 2)]))
    return o
def h_load_ops(k):
    idx, pi = SEQ[k]
    return [Op(f"s_add_u32 s{s_t2}, s{s_hs+idx}, {pi*4096}", kind="salu")] + \
           [Op(f"buffer_load_dwordx4 {hreg(4*k+j)}, v{vL16}, s[{sWS}:{sWS+3}], s{s_t2} offen offset:{j*1024}{SC}", kind="vmem", tag=f"st{G0+k}") for j in range(4)]
def flagcopy_ops(ev):
    return [Op(f"s_lshl_b32 s{s_val}, s{s_w}, 8\n    s_add_u32 m0, s{s_val}, {M_FL}\n    s_and_b32 s{s_val}, s{s_fi}, 0xffffff80\n    s_add_u32 s{s_val}, s{s_val}, {ev*8192}\n"
               f"    buffer_load_dword v{vFL}, s[{sWS}:{sWS+3}], s{s_val} offen sc1 lds", kind="vmem", tag="fc", cost=20)]
def pre_p2_ops():
    o = [Op(f"v_and_b32 v{vFL}, 31, v1\n    v_lshlrev_b32 v{vFL}, 2, v{vFL}", cost=8),
         Op(f"v_and_b32 v{vFA}, 3, v1\n    v_lshlrev_b32 v{vFA}, 4, v{vFA}\n    s_mul_i32 s{s_val}, s{s_w}, 260\n    s_add_u32 s{s_val}, s{s_val}, {M_FL}\n    v_add_u32 v{vFA}, s{s_val}, v{vFA}", cost=20),
         Op(f"v_mov_b32 v{vFC}, 0\n    s_lshl_b32 s{s_val}, s{s_w}, 8\n    s_add_u32 s{s_val}, s{s_val}, {M_FL}\n    v_lshl_add_u32 v{vFC+1}, v1, 2, s{s_val}\n    ds_write_b32 v{vFC+1}, v{vFC}", cost=20, kind="ds", tag="fz")]
    return o
def check(A, lane_sgpr, ev):
    lab = A.newlabel("L_chk")
    A.e(f"v_readlane_b32 s{s_val}, v{vFC}, s{lane_sgpr}")
    A.e(f"s_movk_i32 s{s_need}, {ev*8192}")
    A.e(f"s_mov_b32 s{s_lane}, s{lane_sgpr}")
    A.e(f"s_cmp_eq_u32 s{s_val}, {ev+1}")
    A.e(f"s_cbranch_scc1 {lab}")
    A.e(f"s_call_b64 s[{s_ret}:{s_ret+1}], L_poll")
    A.label(lab)
def check_counter(A):
    lab = A.newlabel("L_chk")
    A.e(f"v_readfirstlane_b32 s{s_val}, v{vCN}")
    A.e("s_nop 0")
    A.e(f"s_cmp_ge_u32 s{s_val}, 64")
    A.e(f"s_cbranch_scc1 {lab}")
    A.e(f"s_call_b64 s[{s_ret}:{s_ret+1}], L_pollc")
    A.label(lab)
def poll_sub(A):
    A.label("L_poll")
    A.e(f"s_mov_b32 s{s_t0}, 0x20000")
    A.e(f"v_and_b32 v{TMP2}, 3, v1")
    A.e(f"v_lshlrev_b32 v{TMP2}, 4, v{TMP2}")
    A.label("L_poll_loop")
    A.e("s_sleep 2")
    A.e(f"s_and_b32 s{s_val}, s{s_fi}, 0xffffffcf")
    A.e(f"s_add_u32 s{s_val}, s{s_val}, s{s_need}")
    A.e(f"buffer_load_dword v{TMP2+1}, v{TMP2}, s[{sWS}:{sWS+3}], s{s_val} offen{SC}")
    A.e("s_waitcnt vmcnt(0)")
    A.e(f"v_readlane_b32 s{s_val}, v{TMP2+1}, s{s_lane}")
    A.e(f"s_sub_u32 s{s_t0}, s{s_t0}, 1")
    A.e("s_cbranch_scc1 L_poll_out")
    A.e(f"s_cmp_eq_u32 s{s_val}, 0")
    A.e("s_cbranch_scc1 L_poll_loop")
    A.label("L_poll_out")
    A.e(f"s_setpc_b64 s[{s_ret}:{s_ret+1}]")
    A.label("L_pollc")
    A.e(f"s_mov_b32 s{s_t0}, 0x20000")
    A.label("L_pollc_loop")
    A.e("s_sleep 2")
    A.e(f"buffer_load_dword v{TMP2+1}, off, s[{sDBG}:{sDBG+3}], 0{SC}")
    A.e("s_waitcnt vmcnt(0)")
    A.e(f"v_readfirstlane_b32 s{s_val}, v{TMP2+1}")
    A.e(f"s_sub_u32 s{s_t0}, s{s_t0}, 1")
    A.e("s_cbranch_scc1 L_pollc_out")
    A.e(f"s_cmp_lt_u32 s{s_val}, 64")
    A.e("s_cbranch_scc1 L_pollc_loop")
    A.label("L_pollc_out")
    A.e(f"s_setpc_b64 s[{s_ret}:{s_ret+1}]")
TM0 = 360
def jmap(j):
    if j < TM0: return j // 6, j % 6
    return 60 + (j - TM0) % 12, (j - TM0) // 12
def a2_read(A, j, ring):
    step, t = jmap(j)
    k, ks = step // 4, step % 4
    slot = ring.slot[G0 + k]; buf = aR + 4*(j % 12)
    for rd in range(2):
        A.ds(f"ds_read_b64_tr_b16 a[{buf+2*rd}:{buf+2*rd+1}], v{vA2+2*(slot//2)+(t&1)} offset:{(slot%2)*SLOT + (16*ks+8*rd)*384 + t*64}", f"f{j}")
PKR = [HS + 4*i for i in range(12)]
vOW = TMP + 12
def export_ops(t, done):
    ops = []
    for kk in range(2):
        p = 2*t + kk
        a = acc2(t) + 8*kk; Q = PKR[p]
        c = [Op(f"v_cvt_pk_bf16_f32 v{Q+d}, v{a+2*d}, v{a+2*d+1}", deps=[(done, 13)]) for d in range(4)]
        sw = Op(f"v_permlane32_swap_b32 v{Q}, v{Q+2}\n    v_permlane32_swap_b32 v{Q+1}, v{Q+3}", cost=8, deps=[(x, 3) for x in c])
        st = Op(f"s_cmp_eq_u32 s{s_w}, s{s_kq}\n    s_cbranch_scc1 L_xo{p}\n    buffer_store_dwordx4 v[{Q}:{Q+3}], v{vL16}, s[{sWS}:{sWS+3}], s{s_sl + p//4} offen offset:{(p%4)*1024}{SC}\n"
                f"    s_branch L_xe{p}\nL_xo{p}:\n    ds_write_b128 v{vOW}, v[{Q}:{Q+3}] offset:{p*1024}\nL_xe{p}:", cost=16, deps=[(sw, 1)])
        ops += c + [sw, st]
    return ops

vYA, vYF, vYD, vGT, vRow = TMP, TMP + 4, TMP + 1, TMP + 8, TMP + 10
def y_prep_ops():
    t = [f"s_mul_i32 s{s_val}, s{s_r}, 21", f"v_add_u32 v{vYA}, s{s_val}, v1", f"s_lshr_b32 s{s_val}, s{s_fi}, 7", f"s_and_b32 s{s_val}, s{s_val}, 63",
         f"v_mov_b32 v{vYD}, s{s_val}", "v_cmp_lt_u32 vcc, 21, v1", f"s_lshl_b32 s{s_upos}, s{s_val}, 5", f"s_mov_b32 s{s_yd}, 0",
         f"v_cndmask_b32 v{vYA}, v{vYA}, v{vYD}, vcc", f"v_lshlrev_b32 v{vYA}, 4, v{vYA}"]
    a = Op("\n    ".join(t), cost=40)
    t = [f"v_lshrrev_b32 v{vYD}, 2, v1", f"v_lshlrev_b32 v{vYD}, 12, v{vYD}", f"v_and_b32 v{vRow}, 3, v1", f"v_lshl_add_u32 v{vYD}, v{vRow}, 4, v{vYD}",
         f"v_and_b32 v{vRow}, 31, v1", f"v_lshlrev_b32 v{vRow+1}, 2, v{vRow}", f"s_mul_i32 s{s_line}, s{s_r}, 192", f"s_mul_i32 s{s_val}, s{s_w}, 48", f"s_add_u32 s{s_line}, s{s_line}, s{s_val}"]
    b = Op("\n    ".join(t), cost=36)
    t = [f"v_mov_b32 v{vYF+k}, 0" for k in range(4)] + [f"ds_write_b128 v{vEW}, v[{vYF}:{vYF+3}]"]
    c = Op("\n    ".join(t), cost=24, kind="ds", tag="yz")
    return [a, b, c]
def exp_prep_op(OWN):
    t = [f"s_add_u32 s{s_val}, s{s_pb}, s{s_w}", f"s_lshl_b32 s{s_val}, s{s_val}, 2", f"s_add_u32 s{s_val}, s{s_val}, s{s_kq}", f"s_mul_i32 s{s_val}, s{s_val}, 12288",
         f"s_add_u32 s{s_sl}, s{s_val}, {WS_P}", f"s_add_u32 s{s_sl+1}, s{s_sl}, 4096", f"s_add_u32 s{s_sl+2}, s{s_sl}, 8192", f"v_add_u32 v{vOW}, {OWN}, v{vL16}"]
    return Op("\n    ".join(t), cost=32)
def y_loads(A, YT):
    A.e(f"s_lshl_b32 s{s_t1}, s{s_line}, 12")
    A.e(f"s_lshl_b32 s{s_t0}, s{s_upos}, 1")
    A.e(f"s_add_u32 s{s_t1}, s{s_t1}, s{s_t0}")
    A.e(f"s_add_u32 s{s_t1}, s{s_t1}, {WS_Y}")
    A.e(f"s_mul_i32 s{s_val}, s{s_w}, 3072")
    for i in range(3):
        A.e(f"s_add_u32 m0, s{s_val}, {YT + 1024*i}")
        if i: A.e(f"s_add_u32 s{s_t1}, s{s_t1}, 65536")
        else: A.e(f"s_lshl_b32 s{s_t0}, s{s_upos}, 2")
        A.e(f"buffer_load_dwordx4 v{vYD}, s[{sWS}:{sWS+3}], s{s_t1} offen sc1 lds")
    A.e(f"s_add_u32 s{s_t0}, s{s_t0}, {WS_GT}")
    A.e(f"buffer_load_dword v{vGT}, v{vRow+1}, s[{sWS}:{sWS+3}], s{s_t0} offen{SC}")
def y_test(A):
    A.e(f"v_and_b32 v{vYF}, v{vYF}, v{vYF+1}")
    A.e(f"v_and_b32 v{vYF+2}, v{vYF+2}, v{vYF+3}")
    A.e(f"v_and_b32 v{vYF}, v{vYF}, v{vYF+2}")
    A.e(f"v_cmp_ne_u32 vcc, 1, v{vYF}")

def p2(A, ring, memq, valq, stq):
    N = 432
    hl = {1: [4], 65: [5, 7], 89: [8], 113: [9], 137: [10], 161: [11], 185: [12], 209: [13], 233: [14], 257: [15], 281: [16, 17]}
    checks = {65: 0, 233: 1, 281: 2}
    flags = {17: ("h3", 0), 89: ("h4", 1), 185: ("h5", 2)}
    hsites = {21: 4, 33: 4, 45: 4, 57: 4, 117: 5, 129: 5, 141: 5, 153: 5}
    hst = {4: h_store_ops(4), 5: h_store_ops(5)}
    tdone = {}
    sent5 = False
    A.wait_lg("f0")
    for j in range(N):
        if j == 0: stamp(A, 7 if 'p1st' in EXP else 4)
        if j == 120 and 'p1st' not in EXP: stamp(A, 5)
        step, t = jmap(j)
        k = step // 4
        acc = acc2(t); buf = aR + 4*(j % 12)
        A.e(f"v_mfma_f32_32x32x16_bf16 v[{acc}:{acc+15}], a[{buf}:{buf+3}], {hreg(step)}, {'0' if step == 0 else f'v[{acc}:{acc+15}]'}")
        if step == 71:
            tdone[t] = A.n - 1
            valq.add(export_ops(t, lambda t=t: tdone[t]))
        n0 = A.n
        isbar = (j + LEAD) % 24 == 0 and j < TM0
        if isbar:
            tags = [f"st{G0+k+1}"]
            if j in flags: tags.append(flags[j][0])
            if j == 353: tags += [f"st{G0+16}", f"st{G0+17}"]
            A.wait_vm(tags)
            if j == 17: A.wait_lg("exs4")
            if j == 41: A.wait_lg("exr4")
            if j == 113:
                assert sent5; A.wait_lg("exs5")
            if j == 137: A.wait_lg("exr5")
            A.e("s_barrier")
            if j in flags: stq.q = flag_ops(flags[j][1]) + stq.q
            ring.release(G0 + k - 1)
            if j in checks:
                assert not any(o.tag == "fc" for o in memq.q)
                A.wait_lg("fcr")
                check(A, s_rr, checks[j]); check(A, s_rr + 1, checks[j])
            if j + 24 in checks: memq.q = flagcopy_ops(checks[j + 24]) + memq.q if not memq.q else memq.q + flagcopy_ops(checks[j + 24])
            for g in ring.alloc(G0 + 18): memq.add(w2_dma_ops(g, ring.slot[g]))
            if j == 161: valq.add(y_prep_ops())
            if j == 329: valq.add([exp_prep_op(ring.slot[G0 + 13]*SLOT)])
        if j == YC:
            memq.add([Op(f"s_add_u32 m0, s{s_wl}, {EX}\n    s_mov_b32 s{s_val}, {F_Y}\n    buffer_load_dwordx4 v{vYA}, s[{sWS}:{sWS+3}], s{s_val} offen sc1 lds", kind="vmem", tag="yc", cost=12)])
        if j == YR + 4:
            assert not memq.q
            A.wait_lg("yr")
            y_test(A)
            A.e("s_nop 0")
            A.e("s_cbranch_vccnz L_ynot")
            y_loads(A, ring.slot[G0 + 12]*SLOT)
            A.e(f"s_mov_b32 s{s_yd}, 1")
            A.label("L_ynot")
        for x in hl.get(j, []): memq.add(h_load_ops(x))
        if j % 3 == 0:
            A.wait_lg([f"f{j+1}", f"f{j+2}", f"f{j+3}"] + (["exr4"] if j == 21 else []) + (["exr5"] if j == 117 else []))
        if j in hsites:
            h = hst[hsites[j]]
            stq.add([h.pop(0)])
            if len(h) == 1: stq.add([h.pop(0)])
        if j + LEAD < N: a2_read(A, j + LEAD, ring)
        if j == 17: ex_block(A, 4, False)
        if j == 113: ex_block(A, 5, False)
        if j + 4 in checks: A.ds(f"ds_read_b32 v{vFC}, v{vFA}", "fcr")
        if j == YR: A.ds(f"ds_read_b128 v[{vYF}:{vYF+3}], v{vEW}", "yr")
        if not valq.q and not sent5 and j > 41:
            ex_block(A, 5, True); sent5 = True
        bud = max(0, 24 - 4*(A.n - n0))
        u = pump(stq, bud, 1)
        left = 22 - ((j + LEAD) % 24)
        if u == 0: u = pump(memq, bud, 1 if (j % 2 == 0 or 2*sum(x.kind == "vmem" for x in memq.q) > left) else 0)
        if valq.q:
            b2 = max(0, bud - u)
            if j < 110 and valq.total() > 11*(104 - j): b2 += 4
            if 104 <= j < 161: b2 = 1000
            if j > 161 and u == 0 and valq.q[0].cost > b2 and valq.ready(valq.q[0]): b2 = valq.q[0].cost
            fill_odd(valq, b2, window=(30 if j < 161 else 6))
    assert not memq.q and not stq.q
    if 'p1st' not in EXP: stamp(A, 6)
    valq.drain()
YC = int(os.environ.get('YC', 354))
YR = int(os.environ.get('YR', 400))

def tail(A, ring):
    OWN = ring.slot[G0 + 13]*SLOT; YT = ring.slot[G0 + 12]*SLOT
    A.e(f"s_add_u32 s{s_pb}, s{s_pb}, s{s_kq}")
    A.e(f"s_mul_i32 s{s_pb}, s{s_pb}, 49152")
    A.e(f"s_mul_i32 s{s_t2}, s{s_w}, 3072")
    A.e(f"s_add_u32 s{s_pb}, s{s_pb}, s{s_t2}")
    A.e(f"s_add_u32 s{s_pb}, s{s_pb}, {WS_P}")
    A.e("s_waitcnt lgkmcnt(0)")
    A.e("s_barrier")
    A.e(f"s_cmp_eq_u32 s{s_w}, s{s_kq}")
    A.e("s_cbranch_scc1 L_own_done")
    A.e(f"v_mov_b32 v{vS}, 1")
    A.e("s_waitcnt vmcnt(0)")
    A.e(f"buffer_store_dword v{vS}, off, s[{sWS}:{sWS+3}], s{s_fp}{SC}")
    A.label("L_own_done")
    if 'tst' in EXP: stamp(A, 2)
    A.vm = []; A.lg = []
    V = 32
    A.e(f"s_cmp_lg_u32 s{s_yd}, 0")
    A.e("s_cbranch_scc1 L_py_out")
    A.e(f"s_mov_b32 s{s_t0}, 0x20000")
    A.e(f"s_mov_b32 s{s_t1}, {F_Y}")
    A.label("L_py")
    A.e(f"buffer_load_dwordx4 v[{vYF}:{vYF+3}], v{vYA}, s[{sWS}:{sWS+3}], s{s_t1} offen{SC}")
    A.e("s_waitcnt vmcnt(0)")
    y_test(A)
    A.e(f"s_sub_u32 s{s_t0}, s{s_t0}, 1")
    A.e("s_cbranch_scc1 L_py_go")
    A.e("s_sleep 1")
    A.e("s_cbranch_vccnz L_py")
    A.label("L_py_go")
    y_loads(A, YT)
    A.label("L_py_out")
    if 'tst' in EXP: stamp(A, 3)
    A.e(f"v_and_b32 v{V}, 3, v1")
    A.e(f"v_cmp_eq_u32 s[{s_ret}:{s_ret+1}], s{s_kq}, v{V}")
    A.e(f"v_lshlrev_b32 v{V}, 2, v{V}")
    A.e(f"s_and_b32 s{s_need}, s{s_fp}, 0xfffffe00")
    A.e(f"s_lshl_b32 s{s_t0}, s{s_kq}, 7")
    A.e(f"s_add_u32 s{s_need}, s{s_need}, s{s_t0}")
    A.e(f"s_cmp_lg_u32 s{s_w}, s{s_kq}")
    A.e("s_cbranch_scc1 L_np1")
    A.e(f"buffer_load_dword v{V+4}, v{V}, s[{sWS}:{sWS+3}], s{s_need} offen{SC}")
    A.label("L_np1")
    OW, YA, BS = 96, 112, 192
    A.e(f"s_add_u32 s{s_t0}, s{s_t2}, {OWN}")
    A.e(f"v_add_u32 v{V+2}, s{s_t0}, v{vL16}")
    for i in range(3): A.e(f"ds_read_b128 v[{OW+4*i}:{OW+4*i+3}], v{V+2} offset:{1024*i}")
    A.e(f"v_lshrrev_b32 v{V+3}, 2, v1")
    A.e(f"v_and_b32 v{V+3}, 3, v{V+3}")
    A.e(f"v_lshrrev_b32 v{V+6}, 5, v1")
    A.e(f"v_lshl_add_u32 v{V+3}, v{V+6}, 3, v{V+3}")
    A.e(f"v_lshlrev_b32 v{V+3}, 6, v{V+3}")
    A.e(f"v_and_b32 v{V+5}, 16, v1")
    A.e(f"v_lshl_add_u32 v{V+3}, v{V+5}, 1, v{V+3}")
    A.e(f"v_and_b32 v{V+5}, 3, v1")
    A.e(f"v_lshl_add_u32 v{V+3}, v{V+5}, 3, v{V+3}")
    A.e(f"s_add_u32 s{s_t0}, s{s_t2}, {YT}")
    A.e(f"v_add_u32 v{V+3}, s{s_t0}, v{V+3}")
    A.e(f"v_mul_u32_u24 v{V+8}, 1152, v{vRow}")
    A.e(f"v_lshl_add_u32 v{V+8}, v{V+6}, 4, v{V+8}")
    A.e(f"s_mul_i32 s{s_t1}, s{s_upos}, 1152")
    A.e(f"s_lshl_b32 s{s_t0}, s{s_line}, 1")
    A.e(f"s_add_u32 s{s_lane}, s{s_t1}, s{s_t0}")
    A.e(f"s_cmp_eq_u32 s{s_w}, s{s_kq}")
    A.e(f"s_cselect_b32 s{s_t0}, 1, s{s_yd}")
    A.e(f"s_cmp_lg_u32 s{s_t0}, 0")
    A.e("s_cbranch_scc1 L_w1")
    A.e("s_waitcnt vmcnt(0)")
    A.label("L_w1")
    A.e("s_waitcnt vmcnt(1)")
    for i in range(3):
        for rd in range(2):
            A.e(f"ds_read_b64_tr_b16 v[{YA+4*i+2*rd}:{YA+4*i+2*rd+1}], v{V+3} offset:{1024*i + 256*rd}")
    A.e(f"v_sub_f32 v{vGT+1}, 1.0, v{vGT}")
    for q in range(3):
        A.e(f"s_cmp_le_u32 s{s_kq}, {q}")
        A.e(f"s_cselect_b32 s{s_sl+q}, 12288, 0")
        A.e(f"s_add_u32 s{s_sl+q}, s{s_sl+q}, s{s_pb}")
        if q < 2: A.e(f"s_add_u32 s{s_pb}, s{s_pb}, 12288")
    A.e("s_waitcnt lgkmcnt(0)")
    for q in range(12):
        lo = BS + 2*q
        A.e(f"v_lshlrev_b32 v{lo}, 16, v{YA+q}")
        A.e(f"v_and_b32 v{lo+1}, 0xffff0000, v{YA+q}")
        A.e(f"v_lshlrev_b32 v{V+10+2*(q&1)}, 16, v{OW+q}")
        A.e(f"v_and_b32 v{V+11+2*(q&1)}, 0xffff0000, v{OW+q}")
        A.e(f"v_pk_mul_f32 v[{lo}:{lo+1}], v[{lo}:{lo+1}], v[{vGT}:{vGT+1}] op_sel_hi:[1,0]")
        A.e(f"v_pk_fma_f32 v[{lo}:{lo+1}], v[{V+10+2*(q&1)}:{V+11+2*(q&1)}], v[{vGT}:{vGT+1}], v[{lo}:{lo+1}] op_sel:[0,1,0] op_sel_hi:[1,1,1]")
    A.e(f"s_mov_b32 s{s_t0}, 0x20000")
    A.e(f"s_cmp_lg_u32 s{s_w}, s{s_kq}")
    A.e("s_cbranch_scc1 L_pp_out")
    A.label("L_pp")
    A.e("s_waitcnt vmcnt(0)")
    A.e(f"v_cmp_ne_u32 vcc, 1, v{V+4}")
    A.e(f"s_sub_u32 s{s_t0}, s{s_t0}, 1")
    A.e("s_cbranch_scc1 L_pp_out")
    A.e(f"s_andn2_b64 vcc, vcc, s[{s_ret}:{s_ret+1}]")
    A.e("s_cbranch_vccz L_pp_out")
    A.e(f"buffer_load_dword v{V+4}, v{V}, s[{sWS}:{sWS+3}], s{s_need} offen{SC}")
    A.e("s_branch L_pp")
    A.label("L_pp_out")
    A.e("s_barrier")
    if 'tst' in EXP: stamp(A, 4)
    PB = 144
    for i in range(3):
        for q in range(3):
            A.vmem(f"buffer_load_dwordx4 v[{PB+12*i+4*q}:{PB+12*i+4*q+3}], v{vL16}, s[{sWS}:{sWS+3}], s{s_sl+q} offen offset:{1024*i}{SC}", f"imp{i}")
    A.e(f"v_mov_b32 v{V+14}, 0x3f80")
    A.e(f"v_mov_b32 v{V+15}, 0x3f800000")
    S = 40 + 8
    for i in range(3):
        A.wait_vm(f"imp{i}")
        if i == 0 and 'tst' in EXP: stamp(A, 5)
        for d in range(4):
            A.e(f"v_lshlrev_b32 v{S+2*d}, 16, v{PB+12*i+d}")
            A.e(f"v_and_b32 v{S+2*d+1}, 0xffff0000, v{PB+12*i+d}")
        for q in (1, 2):
            for d in range(4):
                A.e(f"v_dot2c_f32_bf16 v{S+2*d}, v{PB+12*i+4*q+d}, v{V+14}")
                A.e(f"v_dot2c_f32_bf16 v{S+2*d+1}, v{PB+12*i+4*q+d}, v{V+15}")
        A.nop(2)
        for d in range(4):
            lo = BS + 8*i + 2*d
            A.e(f"v_pk_fma_f32 v[{lo}:{lo+1}], v[{S+2*d}:{S+2*d+1}], v[{vGT}:{vGT+1}], v[{lo}:{lo+1}] op_sel:[0,1,0] op_sel_hi:[1,1,1]")
        for d in range(4):
            lo = BS + 8*i + 2*d
            A.e(f"v_cvt_pk_bf16_f32 v{OW+4*i+d}, v{lo}, v{lo+1}")
        A.vmem(f"buffer_store_dwordx4 v[{OW+4*i}:{OW+4*i+3}], v{V+8}, s[{sT1}:{sT1+3}], s{s_lane} offen offset:{32*i}", "o")
```

```python
from common import *
import kc4
from kc4 import SU, SR, WREG, RA_OFF, RB_OFF, U_OFF, WS_R9, s_ch0, s_lb, sU
vT = 27
s_ch, s_rd, s_yo, s_q = 60, 61, 63, 64
s_wsl, s_wsh = p_ws, p_ws + 1
vUD, vRD, vB, vA, vYW, vYR, vBl = 4, 5, 6, 7, 8, 9, 10
CACC, CA, CBm8, CP = 32, 64, 96, 100

def breg(rho):
    if rho == -8: return f"v[{CBm8}:{CBm8+3}]"
    k = rho + 7
    return f"a[{4*k}:{4*k+3}]"

def set_srds(A):
    for srd, pitch, off, n in ((sU, UT_PITCH, WS_UT + 128 - 416, 4512),):
        A.e(f"s_mul_i32 s{s_t1}, s{s_ch}, {pitch}")
        A.e(f"s_add_u32 s{s_t1}, s{s_t1}, {off}")
        A.e(f"s_add_u32 s{srd}, s{s_wsl}, s{s_t1}")
        A.e(f"s_addc_u32 s{srd+1}, s{s_wsh}, 0")
        A.e(f"s_and_b32 s{srd+1}, s{srd+1}, 0xffff")
        A.e(f"s_mov_b32 s{srd+2}, {n}")
        A.e(f"s_mov_b32 s{srd+3}, 0x00020000")

def u_dma_ops(flag=""):
    o = []
    for a0 in range(4):
        m = Op(f"s_add_u32 m0, s{s_lb}, {U_OFF + a0*SU}", kind="salu")
        so = Op(f"s_mov_b32 s{s_so}, {4*a0 + 4}", kind="salu")
        o += [m, so]
        for i in range(4):
            o.append(Op(f"buffer_load_dwordx4 v{vUD if i == 0 else vL16}, s[{sU}:{sU+3}], s{s_so} offen offset:{i*1024} lds{flag}", kind="vmem", tag="u", deps=[(m, 2)]))
    o.append(Op("s_mov_b32 exec_hi, 0", kind="salu"))
    for a0 in range(4):
        m = Op(f"s_add_u32 m0, s{s_lb}, {U_OFF + a0*SU + 4096}", kind="salu")
        so = Op(f"s_mov_b32 s{s_so}, {4*a0 + 4 + 4096}", kind="salu")
        o += [m, so, Op(f"buffer_load_dwordx4 v{vL16}, s[{sU}:{sU+3}], s{s_so} offen lds{flag}", kind="vmem", tag="u", deps=[(m, 2)])]
    o.append(Op("s_mov_b64 exec, -1", kind="salu"))
    return o
def r9_ops():
    o = [Op(f"s_mul_i32 s{s_so}, s{s_ch0}, 1024\n    s_add_u32 s{s_so}, s{s_so}, {WS_R9}", kind="salu")]
    for k in range(9):
        if k == 8: o.append(Op("s_mov_b32 exec_hi, 0xffff", kind="salu"))
        if k % 4 == 0:
            m = Op(f"s_add_u32 m0, s{s_lb}, {RA_OFF + 1024*k}" + (f"\n    s_add_u32 s{s_so}, s{s_so}, 4096" if k else ""), kind="salu"); o.append(m)
        o.append(Op(f"buffer_load_dwordx4 v{vL16}, s[{sWS}:{sWS+3}], s{s_so} offen offset:{1024*(k%4)} lds", kind="vmem", tag="u", deps=[(m, 2)]))
    o.append(Op("s_mov_b64 exec, -1", kind="salu"))
    return o

def conv_setup(A):
    A.c("---- conv setup")
    T = vT
    A.e(f"s_add_u32 s{s_ch}, s{s_ch0}, s{s_w}")
    A.e(f"s_add_u32 s{s_rd}, s{s_lb}, {RA_OFF}")
    A.e(f"v_bfrev_b32 v{vUD}, 1")
    A.e("v_cmp_le_u32 vcc, 25, v1")
    A.nop(2)
    A.e(f"v_cndmask_b32 v{vUD}, v{vUD}, v{vL16}, vcc")
    A.e(f"v_lshrrev_b32 v{T}, 4, v1")
    A.e(f"v_and_b32 v{T+1}, 3, v1")
    A.e(f"v_lshrrev_b32 v{T+2}, 2, v1")
    A.e(f"v_and_b32 v{T+2}, 3, v{T+2}")
    A.e(f"v_mul_u32_u24 v{vB}, {SU}, v{T+1}")
    A.e(f"v_lshl_add_u32 v{vB}, v{T+2}, 7, v{vB}")
    A.e(f"v_lshl_add_u32 v{vB}, v{T}, 4, v{vB}")
    A.e(f"s_add_u32 s{s_t0}, s{s_lb}, {U_OFF}")
    A.e(f"v_add_u32 v{vB}, s{s_t0}, v{vB}")
    A.e(f"v_lshlrev_b32 v{vYW}, 5, v{T}")
    A.e(f"v_lshl_add_u32 v{vYW}, v{T+1}, 2, v{vYW}")
    A.e(f"v_lshl_add_u32 v{vYW}, v{T+2}, 7, v{vYW}")
    A.e(f"s_add_u32 s{s_t0}, s{s_lb}, {U_OFF + 4*SU}")
    A.e(f"v_add_u32 v{vYW}, s{s_t0}, v{vYW}")
    A.e(f"v_add_u32 v{vYR}, s{s_t0}, v{vL16}")
    A.e(f"v_and_b32 v{T+1}, 1, v1")
    A.e(f"v_lshrrev_b32 v{T+2}, 1, v1")
    A.e(f"v_and_b32 v{T+2}, 7, v{T+2}")
    A.e(f"v_mul_u32_u24 v{vA}, {SR}, v{T+1}")
    A.e(f"v_sub_u32 v{T}, v{T}, v{T+2}")
    A.e(f"v_lshl_add_u32 v{vA}, v{T}, 4, v{vA}")
    A.e(f"s_add_u32 s{s_t0}, s{s_rd}, 112")
    A.e(f"v_add_u32 v{vA}, s{s_t0}, v{vA}")

def y_out(A, tiles, nacc, flag=""):
    pass

def conv_round(A, rnd, ldflag="", stflag=""):
    memq = Filler(A)
    ro = rnd*(RB_OFF - RA_OFF)
    def rdA(q): A.ds(f"ds_read_b128 v[{CA+4*(q%8)}:{CA+4*(q%8)+3}], v{vA} offset:{ro + 4096-64*q}", f"A{q}")
    outq = Filler(A); fin = {}
    def out_ops(j):
        pos = fin[j]
        cv = [Op(f"v_cvt_pk_bf16_f32 v{CP+2*(j&1)+e}, v{CACC+4*j+2*e}, v{CACC+4*j+2*e+1}", deps=[(lambda: pos, 9)]) for e in range(2)]
        w = [Op(f"ds_write_b32 v{vYW}, v{CP+2*(j&1)+e} offset:{512*j+16*e}", kind="ds", tag=f"yw{j}", deps=[(cv[e], 1)]) for e in range(2)]
        o = cv + w
        if j & 1:
            k = j // 2
            o.append(Op(f"ds_read_b128 v[{CP+4+4*(k&1)}:{CP+7+4*(k&1)}], v{vYR} offset:{1024*k}", kind="ds", tag=f"yr{k}", deps=[(w[1], 1)]))
            o.append(Op(f"WAITSTORE {k}", kind="x", deps=[(o[-1], 12)]))
        return o
    def pump_out(n):
        while outq.q and n > 0 and outq.ready(outq.q[0]):
            o = outq.q.pop(0)
            if o.kind == "x":
                k = int(o.txt.split()[1])
                A.wait_lg(f"yr{k}")
                A.vmem(f"buffer_store_dwordx4 v[{CP+4+4*(k&1)}:{CP+7+4*(k&1)}], v{vL16}, s[{sWS}:{sWS+3}], s{s_yo} offen offset:{1024*k}{stflag}", "yst")
            else: outq.emit(o)
            n -= 1
    def rdB(rho): A.ds(f"ds_read_b128 {breg(rho)}, v{vB} offset:{64*(rho+8)}", f"B{rho}")
    seq = [(q, j) for q in range(65) for j in range(max(0, -((8-q)//8)), 8)]
    assert len(seq) == 296
    reads = []
    seenB = set();
    for (q, j) in seq:
        if ("A", q) not in seenB: reads.append(("A", q)); seenB.add(("A", q))
        if ("B", 8*j-q) not in seenB: reads.append(("B", 8*j-q)); seenB.add(("B", 8*j-q))
    first_use = {}
    for i, (q, j) in enumerate(seq):
        first_use.setdefault(("A", q), i); first_use.setdefault(("B", 8*j-q), i)
    last_useA = {}
    for i, (q, j) in enumerate(seq): last_useA[q] = i
    ri = 0
    def issue(upto_use, cur, maxn):
        nonlocal ri
        n = 0
        while ri < len(reads) and n < maxn and first_use[reads[ri]] <= upto_use:
            k, x = reads[ri]
            if k == "A" and x >= 8 and last_useA[x-8] >= cur: break
            (rdA if k == "A" else rdB)(x); ri += 1; n += 1
        return n
    issue(9, 0, 12)
    started = set()
    u_free = False
    for i, (q, j) in enumerate(seq):
        need = [f"A{q}", f"B{8*j-q}"]
        if A._cnt(A.lg, need) >= 0:
            ahead = [f"A{seq[k][0]}" for k in range(i, min(i+3, 296))] + [f"B{8*seq[k][1]-seq[k][0]}" for k in range(i, min(i+3, 296))]
            A.wait_lg(ahead)
        assert ("A", q) not in reads[ri:] and ("B", 8*j-q) not in reads[ri:]
        acc = CACC + 4*j
        cin = f"v[{acc}:{acc+3}]" if j in started else "0"
        started.add(j)
        A.e(f"v_mfma_f32_16x16x32_bf16 v[{acc}:{acc+3}], v[{CA+4*(q%8)}:{CA+4*(q%8)+3}], {breg(8*j-q)}, {cin}")
        if q == 8*j + 8:
            fin[j] = A.n - 1; outq.add(out_ops(j))
        n = issue(i + 12, i + 1, 2)
        if n < 2 and outq.q:
            n0 = A.n; pump_out(2 - n); n += A.n - n0
        if not u_free and all(("B", r) not in reads[ri:] for r in range(-8, 57)) and A._cnt(A.lg, [f"B{r}" for r in range(-8, 57)]) < 0:
            u_free = True
            memq.add(NEXT(A, rnd, ldflag))
        if n < 2 and u_free:
            if memq.q and memq.q[0].txt.startswith(("s_mov_b64 exec, 0x", "s_mov_b32 exec_hi")):
                while True:
                    o = memq.q.pop(0)
                    while not memq.ready(o): A.e("s_nop 0")
                    memq.emit(o)
                    if o.txt == "s_mov_b64 exec, -1": break
                A.nop(1)
            else:
                k = 0
                while memq.q and k < 2 - n and not memq.q[0].txt.startswith(("s_mov_b64 exec, 0x", "s_mov_b32 exec_hi")) and memq.ready(memq.q[0]):
                    memq.emit(memq.q.pop(0)); k += 1
    assert not memq.q
    while outq.q:
        n0 = A.n; pump_out(1)
        if A.n == n0: A.e("s_nop 0")

def NEXT(A, rnd, ldflag):
    o = []
    o.append(Op(f"s_add_u32 s{s_ch}, s{s_ch}, 4" if rnd == 0 else f"s_add_u32 s{s_ch}, s{s_ch0}, 8", kind="salu"))
    class X:
        def __init__(s): s.l = []
        def e(s, t): s.l.append(t)
    x = X(); set_srds(x)
    o += [Op(t, kind="salu") for t in x.l]
    return o + u_dma_ops(ldflag) + (r9_ops() if rnd == 1 else [])

def conv_all(A, ldflag="", stflag=""):
    conv_setup(A)
    set_srds(A)
    kc4.utchk(A)
    emit_now(A, u_dma_ops(ldflag))
    A.e("s_barrier")
    for rnd in range(2):
        A.e(f"s_lshl_b32 s{s_yo}, s{s_ch}, 12")
        A.e(f"s_add_u32 s{s_yo}, s{s_yo}, {WS_Y}")
        A.wait_vm("u")
        if rnd == 0: stamp(A, 4)
        conv_round(A, rnd, ldflag, stflag)
        if rnd == 0: stamp(A, 5)
    A.c("---- 9th channel: tiles jl=w, jh=7-w")
    stamp(A, 6)
    A.e(f"s_lshl_b32 s{s_yo}, s{s_ch}, 12")
    A.e(f"s_add_u32 s{s_yo}, s{s_yo}, {WS_Y}")
    A.e(f"s_lshl_b32 s{s_t0}, s{s_w}, 6")
    A.e(f"v_subrev_u32 v11, s{s_t0}, v{vA}")
    A.e(f"v_subrev_u32 v12, s{s_t0}, v{vB}")
    A.wait_vm("u")
    def rA(h, Q): A.ds(f"ds_read_b128 a[{64*h+32+4*Q}:{64*h+35+4*Q}], v11 offset:{4096 - 512*Q - 256*h}", f"A{h}{Q}")
    def rB(h, i): A.ds(f"ds_read_b128 a[{64*h+4*i}:{64*h+3+4*i}], v12 offset:{512*i + 512 - 256*h}", f"B{h}{i}")
    pend = []
    for h in range(2):
        pend += [(rA, h, 0)] + [(rB, h, i) for i in range(8)] + [(rA, h, Q) for Q in range(1, 8)]
    for f, h, x in pend[:12]: f(h, x)
    pend = pend[12:]
    for h in range(2):
        for Q in range(8):
            for j in range(Q, 8):
                A.wait_lg([f"A{h}{Q}", f"B{h}{j-Q}"])
                acc = CACC + 4*j
                cin = "0" if (h == 0 and Q == 0) else f"v[{acc}:{acc+3}]"
                A.e(f"v_mfma_f32_16x16x32_bf16 v[{acc}:{acc+3}], a[{64*h+32+4*Q}:{64*h+35+4*Q}], a[{64*h+4*(j-Q)}:{64*h+3+4*(j-Q)}], {cin}")
                if pend:
                    f, hh, x = pend.pop(0); f(hh, x)
    A.e(f"s_cmp_lg_u32 s{s_w}, 0")
    A.e("s_cbranch_scc1 L_cv9x")
    A.e(f"ds_read_b128 a[128:131], v{vA} offset:0")
    A.e(f"ds_read_b128 v[{CBm8}:{CBm8+3}], v{vB} offset:0")
    A.e("s_waitcnt lgkmcnt(0)")
    for j in range(8):
        a = f"a[{32+4*(j+1)}:{35+4*(j+1)}]" if j < 7 else "a[128:131]"
        A.e(f"v_mfma_f32_16x16x32_bf16 v[{CACC+4*j}:{CACC+4*j+3}], {a}, v[{CBm8}:{CBm8+3}], v[{CACC+4*j}:{CACC+4*j+3}]")
    A.label("L_cv9x")
    A.e(f"s_add_u32 s{s_t0}, s{s_lb}, {U_OFF}")
    A.e(f"v_add_u32 v13, s{s_t0}, v{vL16}")
    A.e(f"s_lshl_b32 s{s_t0}, s{s_w}, 11")
    A.e(f"s_add_u32 s{s_t0}, s{s_t0}, {U_OFF}")
    A.e(f"v_add_u32 v14, s{s_t0}, v{vL16}")
    A.e(f"v_add_u32 v15, {2*WREG}, v14")
    A.nop(6)
    for j in range(8): A.e(f"ds_write_b128 v13, v[{CACC+4*j}:{CACC+4*j+3}] offset:{1024*j}")
    A.e("s_waitcnt lgkmcnt(0)")
    A.e("s_barrier")
    for ww in range(4):
        for t in range(2):
            A.e(f"ds_read_b128 v[{CA+8*ww+4*t}:{CA+8*ww+4*t+3}], v{14 + ww//2} offset:{(ww%2)*WREG + 1024*t}")
    A.e("s_waitcnt lgkmcnt(0)")
    for r in range(0, 8, 2):
        A.e(f"v_pk_add_f32 v[{CA+r}:{CA+r+1}], v[{CA+r}:{CA+r+1}], v[{CA+8+r}:{CA+9+r}]")
        A.e(f"v_pk_add_f32 v[{CA+16+r}:{CA+17+r}], v[{CA+16+r}:{CA+17+r}], v[{CA+24+r}:{CA+25+r}]")
    for r in range(0, 8, 2):
        A.e(f"v_pk_add_f32 v[{CA+r}:{CA+r+1}], v[{CA+r}:{CA+r+1}], v[{CA+16+r}:{CA+17+r}]")
    for t in range(2):
        for e in range(2):
            r = CP + 2*t + e
            A.e(f"v_cvt_pk_bf16_f32 v{r}, v{CA+4*t+2*e}, v{CA+4*t+2*e+1}")
    for t in range(2):
        for e in range(2):
            A.e(f"ds_write_b32 v{vYW}, v{CP+2*t+e} offset:{512*t+16*e}")
    A.e("s_waitcnt lgkmcnt(0)")
    A.e(f"ds_read_b128 v[{CP+4}:{CP+7}], v{vYR}")
    A.e(f"s_lshl_b32 s{s_t0}, s{s_w}, 10")
    A.e(f"s_add_u32 s{s_yo}, s{s_yo}, s{s_t0}")
    A.e("s_waitcnt lgkmcnt(0)")
    A.vmem(f"buffer_store_dwordx4 v[{CP+4}:{CP+7}], v{vL16}, s[{sWS}:{sWS+3}], s{s_yo} offen{stflag}", "yst")
```

```python
from common import *
import math, p1f
L2E_HI = struct.unpack('<f', struct.pack('<f', LOG2E))[0]
L2E_LO = LOG2E - L2E_HI
LN2 = math.log(2.0)
WREG = 40960
SU, SR = 4640, 4480
RA_OFF, RB_OFF, U_OFF = 0, 8960, 17920
SCR = 8960
T_OFF = 17920
TS_ENT = 2304
ZIDX = 2300
WS_R9 = WS_G
s_ch0, s_lb, s_dt, s_dsk, s_cA, s_cB, s_cC, s_ci, s_rdst, s_yo, s_rnd, s_dl = 56, 57, 58, 59, 60, 61, 62, 63, 64, 65, 66, 67
sP0, sP1, sU, sPF = 68, 72, 68, 72
sP2, sP3 = sT0, sT1
s_pf = 76
s_uok = 66
vW, vRD, vSc, vGa = 32, 48, 52, 64
vDt, vDk, vPF, vRW, vZW, vPL = 4, 5, 6, 7, 8, 20
vPar = 100
vCur = 112
vZ = 116
POOL = (124, 180)
vCV = 236
vD = 10
def a_table():
    t = []
    for row in range(16): t.append((row & 7) + 128*(row >> 3))
    for row in range(16):
        t.append(256 + 128*(row >> 2) + 2*(row & 3) if row < 8 else 512 + 128*((row-8) >> 1) + 4*(row & 1))
    for row in range(16): t.append(1024 + 128*row if row <= 8 else 2100)
    return t

def exp_bf16_multi(A, items):
    for d, x, a, b in items: A.e(f"v_mul_f32 v{a}, s{s_cA}, v{x}")
    for d, x, a, b in items: A.e(f"v_fma_f32 v{b}, v{x}, s{s_cA}, -v{a}")
    for d, x, a, b in items: A.e(f"v_exp_f32 v{a}, v{a}")
    for d, x, a, b in items: A.e(f"v_fma_f32 v{b}, v{x}, s{s_cB}, v{b}")
    for d, x, a, b in items: A.e(f"v_mul_f32 v{b}, s{s_cC}, v{b}")
    for d, x, a, b in items: A.e(f"v_fma_f32 v{a}, v{a}, v{b}, v{a}")
    for d, x, a, b in items: A.e(f"v_cvt_pk_bf16_f32 v{a}, v{a}, v{a}")
    for d, x, a, b in items: A.e(f"v_lshlrev_b32 v{d}, 16, v{a}")

def pf_hook(A, k):
    if 'nopf' not in EXP:
        A.e(f"buffer_load_dword a{200+k}, v{vPF}, s[{sPF}:{sPF+3}], s{s_pf+k} offen{NTP}")

class Ch:
    def __init__(self, A):
        self.A = A; self.reg = {}; self.free = list(range(0, 56, 2)); self.cvn = 0; self.pend = []
    def alloc(self, name):
        self.reg[name] = self.free.pop(0); return self.reg[name]
    def rel(self, *names):
        for n in names: self.free.append(self.reg.pop(n))
    def r(self, name, m): return POOL[m] + self.reg[name]
    def muls(self, lst):
        for d, x, y in lst: self.alloc(d)
        for d, x, y in lst:
            for m in range(2):
                D, X, M = self.r(d, m), self.r(x, m), self.r(y, m)
                self.A.e(f"v_pk_mul_f32 v[{D}:{D+1}], v[{X}:{X+1}], v[{M}:{M+1}] op_sel_hi:[1,0]")
        for d, x, y in lst:
            for m in range(2):
                D, X, M = self.r(d, m), self.r(x, m), self.r(y, m)
                self.A.e(f"v_pk_fma_f32 v[{D}:{D+1}], v[{X}:{X+1}], v[{M}:{M+1}], v[{D}:{D+1}] op_sel:[1,1,0] op_sel_hi:[0,1,1] neg_lo:[1,0,0]")
    def put(self, items):
        A = self.A; slot = 0; w = []
        for i, oa, na, ob, nb in items:
            regs = []
            for o, n in ((oa, na), (ob, nb)):
                if n is None: continue
                c = vCV + 2*slot; slot += 1
                assert slot <= 10
                for m in range(2):
                    if n == "one": A.e(f"v_mov_b32 v{c+m}, 0x3f80")
                    else:
                        X = self.r(n, m)
                        A.e(f"v_cvt_pk_bf16_f32 v{c+m}, v{X}, {'-' if o == 41 else ''}v{X+1}")
                regs.append((o, c))
            w.append((i, regs))
        for i, regs in w:
            if len(regs) == 2:
                A.e(f"ds_write2st64_b64 v{vW+i}, v[{regs[0][1]}:{regs[0][1]+1}], v[{regs[1][1]}:{regs[1][1]+1}] offset0:{regs[0][0]} offset1:{regs[1][0]}")
            else:
                A.e(f"ds_write_b64 v{vW+i}, v[{regs[0][1]}:{regs[0][1]+1}] offset:{regs[0][0]*512}")

def kchan_sub(A):
    A.label("L_kchan")
    C = Ch(A)
    A.e(f"v_readlane_b32 s{s_dt}, v{vDt}, s{s_ci}")
    A.e(f"v_readlane_b32 s{s_dsk}, v{vDk}, s{s_ci}")
    T = vCV
    A.e(f"v_lshlrev_b32 v{T}, 16, v{vCur}")
    A.e(f"v_and_b32 v{T+1}, 0xffff0000, v{vCur}")
    A.e(f"v_lshlrev_b32 v{vZ+1}, 16, v{vCur+1}")
    A.e(f"v_and_b32 v{vZ+5}, 0xffff0000, v{vCur+1}")
    exp_bf16_multi(A, [(vZ, T, T+2, T+3), (vZ+4, T+1, T+4, T+5)])
    A.e(f"v_lshlrev_b32 v{vZ+2}, 16, v{vCur+2}")
    A.e(f"v_and_b32 v{vZ+6}, 0xffff0000, v{vCur+2}")
    A.e(f"v_lshlrev_b32 v{vZ+3}, 16, v{vCur+3}")
    A.e(f"v_and_b32 v{vZ+7}, 0xffff0000, v{vCur+3}")
    for k in range(8): A.e(f"v_mul_f32 v{vZ+k}, s{s_dt}, v{vZ+k}")
    for m in range(2):
        A.e(f"v_mul_f32 v{vZ+4*m}, {fhex(-LOG2E)}, v{vZ+4*m}")
        A.e(f"v_mul_f32 v{vZ+4*m+1}, 0.15915494, v{vZ+4*m+1}")
    Ps = [1, 8, 128, 512, 1024]
    for P in Ps: C.alloc(f"E{P}")
    C.alloc("B0")
    for m in range(2):
        b = C.r("B0", m)
        A.e(f"v_add_f32 v{b}, v{vZ+4*m+2}, v{vZ+4*m+2}")
        A.e(f"v_add_f32 v{b+1}, v{vZ+4*m+3}, v{vZ+4*m+3}")
    tt = lambda k, m: T + 4*k + 2*m
    for k, P in enumerate(Ps):
        for m in range(2):
            if P == 1:
                A.e(f"v_mov_b32 v{tt(k,m)}, v{vZ+4*m}"); A.e(f"v_fract_f32 v{tt(k,m)+1}, v{vZ+4*m+1}")
            else:
                A.e(f"v_mul_f32 v{tt(k,m)}, {fhex(float(P))}, v{vZ+4*m}")
                A.e(f"v_mul_f32 v{tt(k,m)+1}, {fhex(float(P))}, v{vZ+4*m+1}")
    for k, P in enumerate(Ps):
        if P == 1: continue
        for m in range(2): A.e(f"v_fract_f32 v{tt(k,m)+1}, v{tt(k,m)+1}")
    for k, P in enumerate(Ps):
        for m in range(2):
            d = C.r(f"E{P}", m)
            A.e(f"v_exp_f32 v{tt(k,m)}, v{tt(k,m)}")
            A.e(f"v_cos_f32 v{d}, v{tt(k,m)+1}")
            A.e(f"v_sin_f32 v{d+1}, v{tt(k,m)+1}")
    A.e("s_nop 0")
    for k, P in enumerate(Ps):
        for m in range(2):
            d = C.r(f"E{P}", m)
            A.e(f"v_pk_mul_f32 v[{d}:{d+1}], v[{d}:{d+1}], v[{tt(k,m)}:{tt(k,m)+1}] op_sel_hi:[1,0]")
    C.muls([("E2", "E1", "E1"), ("E256", "E128", "E128"), ("E640", "E512", "E128"), ("E129", "E128", "E1"), ("E16", "E8", "E8"), ("B1", "B0", "E8"), ("T1", "E1024", "E128")])
    C.put([(0, 0, "one", 16, "E256"), (8, 0, "E128", 16, "E512"), (0, 32, "E1024", 41, "B0"), (1, 32, "T1", 41, "B1")])
    C.rel("E8")
    C.muls([("E3", "E2", "E1"), ("E4", "E2", "E2"), ("E384", "E256", "E128"), ("E768", "E512", "E256"), ("E130", "E128", "E2"), ("E258", "E256", "E2"),
            ("B2", "B0", "E16"), ("B3", "B1", "E16"), ("T2", "E1024", "E256"), ("T3", "T1", "E256")])
    C.rel("B0", "B1", "T1", "E1024")
    C.put([(10, 0, "E130", 16, "E640"), (1, 0, "E1", 16, "E258"), (4, 0, "E4", 16, "E384"), (2, 32, "T2", 41, "B2"), (3, 32, "T3", 41, "B3")])
    C.rel("E130", "E258")
    C.muls([("E260", "E256", "E4"), ("E516", "E512", "E4"), ("E132", "E128", "E4"), ("E131", "E128", "E3"), ("E644", "E640", "E4"),
            ("B4", "B2", "E16"), ("B5", "B3", "E16"), ("T4", "T2", "E256"), ("T5", "T3", "E256")])
    C.rel("B2", "B3", "T2", "T3", "E640")
    C.put([(2, 0, "E2", 16, "E260"), (9, 0, "E129", 16, "E516"), (12, 0, "E132", 16, "E768"), (11, 0, "E131", 16, "E644"), (4, 32, "T4", 41, "B4")])
    C.rel("E260", "E129", "E516", "E132", "E131", "E644")
    C.muls([("E5", "E4", "E1"), ("E6", "E4", "E2"), ("E7", "E4", "E3"), ("E896", "E512", "E384"), ("E386", "E384", "E2"), ("E388", "E384", "E4"), ("E772", "E768", "E4"),
            ("B6", "B4", "E16"), ("B7", "B5", "E16"), ("T6", "T4", "E256"), ("T7", "T5", "E256")])
    C.put([(5, 32, "T5", 41, "B5"), (5, 0, "E5", 16, "E386"), (6, 0, "E6", 16, "E388"), (6, 32, "T6", 41, "B6"), (7, 32, "T7", 41, "B7")])
    C.rel("B4", "B5", "T4", "T5", "E386", "E388", "E1", "E2", "E512", "E768", "T7")
    C.muls([("E262", "E256", "E6"), ("E390", "E384", "E6"), ("E133", "E128", "E5"), ("E134", "E128", "E6"), ("E135", "E128", "E7"), ("E900", "E896", "E4"),
            ("B8", "B6", "E16"), ("B9", "B7", "E16"), ("T8", "T6", "E256")])
    C.put([(3, 0, "E3", 16, "E262"), (7, 0, "E7", 16, "E390"), (13, 0, "E133", 16, "E772"), (14, 0, "E134", 16, "E896"), (15, 0, "E135", 16, "E900")])
    C.rel("B6", "B7", "T6", "E262", "E390", "E133", "E134", "E135", "E900")
    C.muls([("B10", "B8", "E16"), ("B11", "B9", "E16")])
    C.put([(8, 32, "T8", 41, "B8"), (9, 41, "B9", 0, None)])
    C.muls([("B12", "B10", "E16"), ("B13", "B11", "E16")])
    C.put([(10, 41, "B10", 0, None), (11, 41, "B11", 0, None)])
    C.muls([("B14", "B12", "E16"), ("B15", "B13", "E16")])
    C.put([(12, 41, "B12", 0, None), (13, 41, "B13", 0, None), (14, 41, "B14", 0, None), (15, 41, "B15", 0, None)])
    A.e(f"s_mov_b32 s{s_t0}, {F_U}")
    A.e(f"s_cmp_eq_u32 s{s_uok}, 2")
    A.e("s_cbranch_scc0 L_kc_npoll")
    A.e(f"s_waitcnt vmcnt(0)")
    A.e(f"buffer_load_dwordx4 v[{vPL}:{vPL+3}], v{vPL+5}, s[{sWS}:{sWS+3}], s{s_t0} offen{SC}")
    A.label("L_kc_npoll")
    A.lg = []
    A.e("s_waitcnt lgkmcnt(0)")
    D = POOL[0]
    for ks in range(8):
        A.ds(f"ds_read_b128 a[{4*ks}:{4*ks+3}], v{vRD+(ks&3)} offset:{41*512 + (ks>>2)*256}", f"kb{ks}")
        for t in range(3):
            A.ds(f"ds_read_b128 a[{32+32*t+4*ks}:{35+32*t+4*ks}], v{vRD+(ks&3)} offset:{t*8192 + (ks>>2)*256}", f"ka{ks}{t}")
        if ks >= 2:
            for t in range(3):
                k2 = ks - 2
                A.wait_lg([f"ka{k2}{t}"])
                A.e(f"v_mfma_f32_16x16x32_bf16 v[{D+4*t}:{D+4*t+3}], a[{32+32*t+4*k2}:{35+32*t+4*k2}], a[{4*k2}:{4*k2+3}], {'0' if k2 == 0 else f'v[{D+4*t}:{D+4*t+3}]'}")
    for k2 in (6, 7):
        for t in range(3):
            A.wait_lg([f"ka{k2}{t}"])
            A.e(f"v_mfma_f32_16x16x32_bf16 v[{D+4*t}:{D+4*t+3}], a[{32+32*t+4*k2}:{35+32*t+4*k2}], a[{4*k2}:{4*k2+3}], v[{D+4*t}:{D+4*t+3}]")
    A.e(f"s_cmp_eq_u32 s{s_uok}, 2")
    A.e("s_cbranch_scc0 L_kc_nchk")
    A.e("s_waitcnt vmcnt(0)")
    A.e(f"v_min_u32 v{vPL}, v{vPL}, v{vPL+1}")
    A.e(f"v_min3_u32 v{vPL}, v{vPL}, v{vPL+2}, v{vPL+3}")
    A.e(f"v_cmp_gt_u32 vcc, 1, v{vPL}")
    A.e(f"v_cmp_gt_u32 s[76:77], v{vPL+6}, v{vPL+4}")
    A.e("s_or_b64 vcc, vcc, s[76:77]")
    A.e("s_cbranch_scc1 L_kc_nchk")
    A.e(f"s_mov_b32 s{s_uok}, 1")
    A.e(f"s_add_u32 s{s_t0}, s{s_ch0}, s{s_w}")
    A.e(f"s_mul_i32 s{s_t0}, s{s_t0}, {UT_PITCH}")
    A.e(f"s_add_u32 s{s_t0}, s{s_t0}, {WS_UT}")
    A.e(f"v_min_u32 v{vPL}, 32, v1")
    A.e(f"v_lshlrev_b32 v{vPL}, 7, v{vPL}")
    A.e(f"buffer_load_dword a197, v{vPL}, s[{sWS}:{sWS+3}], s{s_t0} offen{SC}")
    A.label("L_kc_nchk")
    A.e(f"v_mov_b32 v{T}, 0")
    A.e(f"v_writelane_b32 v{T}, s{s_dsk}, 0")
    for k in range(4): A.e(f"v_mov_b32 v{T+4+k}, 0")
    A.e(f"v_add_u32 v{T+2}, s{s_rdst}, v{vRW}")
    A.e(f"v_add_u32 v{T+3}, s{s_rdst}, v{vZW}")
    A.e(f"v_add_f32 v{D}, v{D}, v{T}")
    for k in range(12): A.e(f"ds_write_b32 v{vSc+k}, v{D+k}")
    A.e(f"ds_write_b32 v{9}, v{T+4}")
    A.e(f"ds_write_b128 v{T+3}, v[{T+4}:{T+7}]")
    A.e("s_waitcnt lgkmcnt(0)")
    G = POOL[0] + 12
    for k in range(4):
        for e in range(9): A.ds(f"ds_read_b32 v{G+9*k+e}, v{vGa+9*k+e}", f"g{k}")
    O = POOL[1]
    for k in range(4):
        A.wait_lg(f"g{k}")
        g = G + 9*k
        for e in range(4): A.e(f"v_cvt_pk_bf16_f32 v{O+8*k+e}, v{g+2*e+1}, v{g+2*e+2}")
        for e in range(4): A.e(f"v_cvt_pk_bf16_f32 v{O+8*k+4+e}, v{g+2*e}, v{g+2*e+1}")
    for k in range(4):
        A.e(f"ds_write_b128 v{T+2}, v[{O+8*k}:{O+8*k+3}] offset:{1024*k}")
        A.e(f"ds_write_b128 v{T+2}, v[{O+8*k+4}:{O+8*k+7}] offset:{SR + 1024*k}")
    A.e("s_waitcnt lgkmcnt(0)")
    A.lg = []
    A.e(f"s_setpc_b64 s[{s_ret}:{s_ret+1}]")

vGX, vGG = POOL[0], POOL[1]
def kc_setup(A):
    A.c("======== conv role setup")
    for r, n in ((sP0, 'loga'), (sP1, 'aim'), (sP2, 'cre'), (sP3, 'cim'), (76, 'logdt'), (80, 'dskip'), (84, 'gw')):
        A.e(f"s_load_dwordx2 s[{r}:{r+1}], s[0:1], {KA[n]}")
    A.e(f"s_lshl_b32 s{s_ch0}, s{s_m}, 2")
    A.e(f"s_add_u32 s{s_ch0}, s{s_ch0}, s{s_kq}")
    A.e(f"s_mul_i32 s{s_ch0}, s{s_ch0}, 9")
    A.e(f"s_mul_i32 s{s_lb}, s{s_w}, {WREG}")
    for r, n in ((sP0, D_*256), (sP1, D_*256), (sP2, D_*256), (sP3, D_*256), (76, D_*2), (80, D_*2)):
        A.e(f"s_mov_b32 s{r+2}, {n}"); A.e(f"s_mov_b32 s{r+3}, 0x00020000")
    T = vCV
    A.e(f"v_lshlrev_b32 v{T}, 2, v1")
    A.e(f"v_min_u32 v{T+1}, 8, v1")
    A.e(f"v_add_u32 v{T+1}, s{s_ch0}, v{T+1}")
    A.e(f"v_lshlrev_b32 v{T+1}, 1, v{T+1}")
    A.e(f"s_add_u32 s{s_t0}, s{s_ch0}, s{s_w}")
    A.e(f"s_lshl_b32 s{s_t0}, s{s_t0}, 8")
    A.e(f"s_add_u32 s{s_t1}, s{s_ch0}, 8")
    A.e(f"s_lshl_b32 s{s_t1}, s{s_t1}, 8")
    A.e(f"s_lshl_b32 s{s_upos}, s{s_m}, 7")
    A.e(f"s_lshl_b32 s{s_t2}, s{s_kq}, 5")
    A.e(f"s_add_u32 s{s_upos}, s{s_upos}, s{s_t2}")
    A.e(f"v_lshrrev_b32 v{T+4}, 3, v1")
    A.e(f"v_and_b32 v{T+5}, 7, v1")
    A.e(f"v_add_u32 v{T+6}, s{s_upos}, v{T+4}")
    A.e(f"v_mul_u32_u24 v{T+6}, 1152, v{T+6}")
    A.e(f"v_lshrrev_b32 v{T+7}, 1, v{T+4}")
    A.e(f"v_xor_b32 v{T+7}, v{T+7}, v{T+5}")
    A.e(f"v_lshl_add_u32 v{vXD}, v{T+7}, 4, v{T+6}")
    A.e(f"v_xor_b32 v{vXD+1}, 64, v{vXD}")
    A.e(f"v_add_u32 v{vXD+1}, 8192, v{vXD+1}")
    A.e(f"s_lshl_b32 s{s_upos}, s{s_upos}, 1")
    A.e("s_waitcnt lgkmcnt(0)")
    for slot, (so, off) in enumerate(((s_t1, 0), (s_t0, 0), (s_t0, 1024))):
        for k, srd in enumerate((sP0, sP1, sP2, sP3)):
            A.vmem(f"buffer_load_dword v{vPar+4*slot+k}, v{T}, s[{srd}:{srd+3}], s{so} offen offset:{off}", "kp")
    A.vmem(f"buffer_load_ushort v{vDt}, v{T+1}, s[76:79], 0 offen", "kp")
    A.vmem(f"buffer_load_ushort v{vDk}, v{T+1}, s[80:83], 0 offen", "kp")
    A.e(f"s_getpc_b64 s[{s_ret}:{s_ret+1}]")
    A.label("L_kg_pc")
    A.e(f"s_add_u32 s{s_ret}, s{s_ret}, L_atab-L_kg_pc")
    A.e(f"s_addc_u32 s{s_ret+1}, s{s_ret+1}, 0")
    A.e(f"v_and_b32 v{T+2}, 48, v1")
    for t in range(3):
        A.vmem(f"global_load_dwordx4 v[{vSc+4*t}:{vSc+4*t+3}], v{T+2}, s[{s_ret}:{s_ret+1}] offset:{64*t}", "kp")
    A.e(f"s_cmp_eq_u32 s{s_w}, 0")
    A.e("s_cbranch_scc1 L_xp_skip")
    A.e(f"s_mov_b32 s80, s84"); A.e("s_mov_b32 s81, s85")
    A.e(f"s_mul_i32 s{s_line}, s{s_w}, 3")
    A.e(f"s_sub_u32 s{s_line}, s{s_line}, 3")
    for q in range(3):
        A.e(f"s_add_u32 m0, s{s_lb}, {SCR + 4096*q}")
        A.e(f"s_add_u32 s{s_so}, s{s_line}, {q}")
        A.e(f"s_lshl_b32 s{s_so}, s{s_so}, 7")
        for i in range(4):
            if i == 2: A.e(f"s_add_u32 s{s_so}, s{s_so}, 16384")
            A.e(f"buffer_load_dwordx4 v{vXD+(i&1)}, s[{sX}:{sX+3}], s{s_so} offen offset:{i*1024} lds")
    A.e(f"v_and_b32 v{T+3}, 1, v1")
    A.e(f"v_lshlrev_b32 v{T+3}, 6, v{T+3}")
    A.e(f"s_lshl_b32 s{s_so}, s{s_line}, 7")
    for q in range(3):
        for c in range(4):
            A.e(f"buffer_load_dwordx4 v[{vGG+16*q+4*c}:{vGG+16*q+4*c+3}], v{T+3}, s[80:83], s{s_so} offen offset:{128*q+16*c}")
    A.label("L_xp_skip")
    if 'now1pf' not in EXP and 'nopf' not in EXP:
        A.e(f"s_mul_i32 s{s_t0}, s{s_kq}, 2304")
        A.e(f"s_add_u32 s{sW1}, s{p_w1}, s{s_t0}")
        A.e(f"s_addc_u32 s{sW1+1}, s{p_w1+1}, 0")
        A.e(f"s_mov_b32 s{sW1+2}, {575*9216 + 2304}")
        A.e(f"s_mov_b32 s{sW1+3}, 0x00020000")
        A.e(f"v_mul_u32_u24 v{vPF}, 9216, v1")
        A.e(f"s_lshl_b32 s{s_t3}, s{s_m7}, 2")
        A.e(f"s_add_u32 s{s_t3}, s{s_t3}, s{s_w}")
        A.e(f"s_mul_i32 s{s_t0}, s{s_t3}, 57")
        A.e(f"s_lshr_b32 s{s_t0}, s{s_t0}, 9")
        A.e(f"s_mul_i32 s{s_t1}, s{s_t0}, 9")
        A.e(f"s_sub_u32 s{s_t1}, s{s_t3}, s{s_t1}")
        A.e(f"s_mul_i32 s{s_t1}, s{s_t1}, {64*9216}")
        A.e(f"s_mul_i32 s{s_t0}, s{s_t0}, 768")
        A.e(f"s_add_u32 s{s_t1}, s{s_t1}, s{s_t0}")
        A.e(f"s_add_u32 s{s_t1}, s{s_t1}, 128")
        A.e(f"s_cmp_lt_u32 s{s_t3}, 27")
        A.e(f"s_cselect_b32 s{s_t1}, s{s_t1}, 0x40000000")
        A.e(f"buffer_load_dword a199, v{vPF}, s[{sW1}:{sW1+3}], s{s_t1} offen")
        if 'w1pf2' in EXP:
            A.e(f"buffer_load_dword a198, v{vPF}, s[{sW1}:{sW1+3}], s{s_t1} offen offset:128")
    A.e(f"s_mul_i32 s{s_t0}, s{s_kq}, {1152*1152}")
    A.e(f"s_add_u32 s{sPF}, s{sW2}, s{s_t0}")
    A.e(f"s_addc_u32 s{sPF+1}, s{sW2+1}, 0")
    A.e(f"s_mov_b32 s{sPF+2}, {1152*1152}")
    A.e(f"s_mov_b32 s{sPF+3}, 0x00020000")
    A.e(f"v_lshlrev_b32 v{vPF}, 7, v1")
    A.e(f"s_lshl_b32 s{s_t3}, s{s_m7}, 2")
    A.e(f"s_add_u32 s{s_t3}, s{s_t3}, s{s_w}")
    A.e(f"s_mul_i32 s{s_t0}, s{s_t3}, 57")
    A.e(f"s_lshr_b32 s{s_t0}, s{s_t0}, 9")
    A.e(f"s_mul_i32 s{s_t0}, s{s_t0}, {384*1152 - 9*8192}")
    A.e(f"s_lshl_b32 s{s_t1}, s{s_t3}, 13")
    A.e(f"s_add_u32 s{s_pf+5}, s{s_t0}, s{s_t1}")
    A.e(f"s_lshr_b32 s{s_t0}, s{s_m}, 3")
    A.e(f"s_mul_i32 s{s_t1}, s{s_t0}, {64*1152}")
    A.e(f"s_add_u32 s{s_t1}, s{s_t1}, s{s_pf+5}")
    A.e(f"s_add_u32 s{s_pf}, s{s_t1}, {1*64*1152}")
    A.e(f"s_add_u32 s{s_pf+1}, s{s_t1}, {3*64*1152}")
    A.e(f"s_add_u32 s{s_pf+2}, s{s_pf+5}, {5*64*1152}")
    A.e(f"s_cmp_eq_u32 s{s_t0}, 0")
    A.e(f"s_cselect_b32 s{s_pf+2}, s{s_pf+2}, s{s_pf+5}")
    if 'now2c' in EXP:
        for q in range(3): A.e(f"s_mov_b32 s{s_pf+q}, 0x40000000")
    pf_hook(A, 0); pf_hook(A, 1)
    A.e(f"s_mov_b32 s{s_cA}, {fhex(L2E_HI)}")
    A.e(f"s_mov_b32 s{s_cB}, {fhex(L2E_LO)}")
    A.e(f"s_mov_b32 s{s_cC}, {fhex(LN2)}")
    A.e(f"s_add_u32 s{s_t0}, s{s_lb}, {SCR}")
    A.e(f"v_lshrrev_b32 v{T+4}, 1, v1")
    A.e(f"v_and_b32 v{T+5}, 1, v1")
    A.e(f"v_lshlrev_b32 v{T+5}, 3, v{T+5}")
    A.e(f"v_add_u32 v{T+5}, s{s_t0}, v{T+5}")
    for i in range(16):
        A.e(f"v_xor_b32 v{vW+i}, {33*i}, v{T+4}")
        A.e(f"v_lshl_add_u32 v{vW+i}, v{vW+i}, 4, v{T+5}")
    A.e(f"v_and_b32 v{T+6}, 15, v1")
    A.e(f"v_lshrrev_b32 v{T+7}, 4, v1")
    A.e(f"v_xor_b32 v{T+7}, v{T+7}, v{T+6}")
    A.e(f"v_lshlrev_b32 v{T+8}, 9, v{T+6}")
    A.e(f"v_add_u32 v{T+8}, s{s_t0}, v{T+8}")
    for k in range(4):
        A.e(f"v_xor_b32 v{vRD+k}, {4*k}, v{T+7}")
        A.e(f"v_lshl_add_u32 v{vRD+k}, v{vRD+k}, 4, v{T+8}")
    A.e(f"s_add_u32 s{s_t1}, s{s_lb}, {T_OFF}")
    A.e(f"v_lshlrev_b32 v{T+9}, 3, v1")
    A.e(f"v_sub_u32 v{T+9}, 2047, v{T+9}")
    for k in range(4):
        for e in range(9):
            g = vGa + 9*k + e
            A.e(f"v_subrev_u32 v{g}, {512*k + e}, v{T+9}")
        if k == 3: A.e(f"v_max_i32 v{vGa+35}, 0, v{vGa+35}")
        for e in range(9): A.e(f"v_cvt_f32_u32 v{vGa+9*k+e}, v{vGa+9*k+e}")
    for g in range(vGa, vGa + 36, 2):
        A.e(f"v_cvt_pk_bf16_f32 v{g+1}, v{g}, v{g+1}")
    for g in range(vGa, vGa + 36, 2):
        A.e(f"v_lshlrev_b32 v{g}, 16, v{g+1}")
        A.e(f"v_and_b32 v{g+1}, 0xffff0000, v{g+1}")
    for g in range(vGa, vGa + 36): A.e(f"v_cvt_u32_f32 v{g}, v{g}")
    for g in range(vGa, vGa + 36):
        A.e(f"v_lshrrev_b32 v{T+10+(g&1)}, 5, v{g}")
        A.e(f"v_add_lshl_u32 v{g}, v{g}, v{T+10+(g&1)}, 2")
    for g in range(vGa, vGa + 36): A.e(f"v_add_u32 v{g}, s{s_t1}, v{g}")
    pf_hook(A, 2)
    A.e(f"s_add_u32 s{s_t2}, s{s_t1}, {4*2296}")
    A.e(f"v_mov_b32 v9, s{s_t2}")
    A.e("v_cmp_eq_u32 vcc, 63, v1")
    A.e(f"v_add_u32 v{vRW}, 16, v{vL16}")
    A.e(f"v_mov_b32 v{vPL+6}, 64")
    A.e(f"v_cndmask_b32 v{vGa+35}, v{vGa+35}, v9, vcc")
    A.e(f"v_add_u32 v{T+10}, 256, v{T+6}")
    A.e(f"v_cmp_eq_u32 vcc, 0, v{T+6}")
    A.e(f"v_mov_b32 v{vPL+5}, v{vL16}")
    A.e(f"v_and_b32 v{T+11}, 16, v1")
    A.e(f"v_cndmask_b32 v{T+10}, v{T+10}, v{T+6}, vcc")
    A.e(f"v_lshlrev_b32 v{T+10}, 4, v{T+10}")
    A.e(f"v_mul_u32_u24 v{T+11}, {SR//16}, v{T+11}")
    A.e(f"v_add_u32 v{vZW}, v{T+10}, v{T+11}")
    A.e(f"s_waitcnt vmcnt({0 if 'nopf' in EXP else (3 if 'now1pf' in EXP else (5 if 'w1pf2' in EXP else 4))})"); A.vm = []
    A.e(f"v_lshlrev_b32 v{T+6}, 3, v{T+6}")
    for k in range(12): A.e(f"v_add_u32 v{vSc+k}, v{vSc+k}, v{T+6}")
    for k in range(12):
        A.e(f"v_lshrrev_b32 v{T+10+(k&1)}, 5, v{vSc+k}")
        A.e(f"v_add_lshl_u32 v{vSc+k}, v{vSc+k}, v{T+10+(k&1)}, 2")
    for k in range(12): A.e(f"v_add_u32 v{vSc+k}, s{s_t1}, v{vSc+k}")
    A.e(f"v_lshlrev_b32 v{vDt}, 16, v{vDt}")
    A.e(f"v_lshlrev_b32 v{vDk}, 16, v{vDk}")
    exp_bf16_multi(A, [(vDt, vDt, T+12, T+13)])

def call_kchan(A, slot, ci_expr, rdst_off):
    for k in range(4): A.e(f"v_mov_b32 v{vCur+k}, v{vPar+4*slot+k}")
    A.e(ci_expr)
    A.e(f"s_add_u32 s{s_rdst}, s{s_lb}, {rdst_off}")
    if 'nokc' not in EXP: A.e(f"s_call_b64 s[{s_ret}:{s_ret+1}], L_kchan")

GSUM = 3*WREG + WREG - 512
def kgen_all(A):
    kc_setup(A)
    p1f.counter_arrive(A)
    stamp(A, 1)
    A.e(f"s_mov_b32 s{s_uok}, 0")
    A.e(f"s_cmp_lg_u32 s{s_w}, 0")
    A.e("s_cbranch_scc1 L_xw")
    A.c("-- wave 0: 9th channel, image exported")
    call_kchan(A, 0, f"s_mov_b32 s{s_ci}, 8", RB_OFF)
    A.e(f"s_add_u32 s{s_t0}, s{s_lb}, {RB_OFF}")
    A.e(f"v_add_u32 v{vCV}, s{s_t0}, v{vL16}")
    for k in range(9): A.e(f"ds_read_b128 v[{POOL[0]+4*k}:{POOL[0]+4*k+3}], v{vCV} offset:{1024*k}")
    A.e(f"s_mul_i32 s{s_t0}, s{s_ch0}, 1024")
    A.e(f"s_add_u32 s{s_t0}, s{s_t0}, {WS_R9}")
    A.e("s_waitcnt lgkmcnt(0)")
    for k in range(9):
        if k % 4 == 0 and k: A.e(f"s_add_u32 s{s_t0}, s{s_t0}, 4096")
        A.e(f"buffer_store_dwordx4 v[{POOL[0]+4*k}:{POOL[0]+4*k+3}], v{vL16}, s[{sWS}:{sWS+3}], s{s_t0} offen offset:{1024*(k%4)}")
    A.e("s_branch L_xw_done")
    A.label("L_xw")
    A.c("-- waves 1..3: u^T export and partial gate logits")
    T = vCV
    A.e(f"v_lshrrev_b32 v{T}, 1, v1")
    A.e(f"v_lshrrev_b32 v{T+1}, 1, v{T}")
    A.e(f"v_and_b32 v{T+1}, 7, v{T+1}")
    A.e(f"v_and_b32 v{T+2}, 1, v1")
    A.e(f"v_lshlrev_b32 v{T+2}, 2, v{T+2}")
    A.e(f"v_xor_b32 v{T+1}, v{T+1}, v{T+2}")
    A.e(f"s_add_u32 s{s_t3}, s{s_lb}, {SCR}")
    A.e(f"v_lshlrev_b32 v{T+3}, 7, v{T}")
    A.e(f"v_add_u32 v{T+3}, s{s_t3}, v{T+3}")
    for c in range(4):
        A.e(f"v_xor_b32 v{T+4}, {c}, v{T+1}")
        A.e(f"v_lshl_add_u32 v{T+4}, v{T+4}, 4, v{T+3}")
        for q in range(3): A.e(f"ds_read_b128 v[{vGX+16*q+4*c}:{vGX+16*q+4*c+3}], v{T+4} offset:{4096*q}")
    A.e("s_waitcnt lgkmcnt(0)")
    A.e(f"v_mov_b32 v{T+4}, 0"); A.e(f"v_mov_b32 v{T+5}, 0")
    for k in range(48): A.e(f"v_dot2c_f32_bf16 v{T+4+(k&1)}, v{vGX+k}, v{vGG+k}")
    A.e(f"s_lshl_b32 s{s_t0}, s{s_w}, 7")
    A.e(f"s_add_u32 s{s_t0}, s{s_t0}, {GSUM - 128}")
    A.e(f"v_lshlrev_b32 v{T}, 2, v{T}")
    A.e(f"v_add_f32 v{T+4}, v{T+4}, v{T+5}")
    A.e(f"v_add_u32 v{T}, s{s_t0}, v{T}")
    A.e("s_nop 0")
    A.e(f"v_add_f32_dpp v{T+4}, v{T+4}, v{T+4} quad_perm:[1,0,3,2] row_mask:0xf bank_mask:0xf")
    A.e(f"ds_write_b32 v{T}, v{T+4}")
    for q in range(0 if 'nout' in EXP else 3):
        A.e(f"s_call_b64 s[{s_ret}:{s_ret+1}], L_utsub")
        if q < 2:
            A.e(f"s_add_u32 s{s_line}, s{s_line}, 1")
            A.e(f"s_add_u32 s{s_t3}, s{s_t3}, 4096")
    A.label("L_xw_done")
    stamp(A, 2)
    call_kchan(A, 1, f"s_mov_b32 s{s_ci}, s{s_w}", RA_OFF)
    A.c("-- gate finish (wave 1), flag 1, W2 warm-up tables, counter poll")
    A.e("s_barrier")
    A.e(f"v_mov_b32 v{vS}, 1")
    A.e(f"s_waitcnt vmcnt(1)" if False else "s_waitcnt vmcnt(0)")
    A.e(f"buffer_store_dword v{vS}, off, s[{sWS}:{sWS+3}], s{s_fi}{SC}")
    A.e(f"s_cmp_lg_u32 s{s_w}, 1")
    A.e("s_cbranch_scc1 L_gt_skip")
    A.e(f"v_and_b32 v{T}, 31, v1")
    A.e(f"v_lshlrev_b32 v{T}, 2, v{T}")
    A.e(f"v_add_u32 v{T+1}, {GSUM}, v{T}")
    A.e(f"ds_read2_b32 v[{T+2}:{T+3}], v{T+1} offset0:0 offset1:32")
    A.e(f"ds_read_b32 v{T+4}, v{T+1} offset:256")
    A.e(f"s_lshl_b32 s{s_t0}, s{s_upos}, 1")
    A.e(f"s_add_u32 s{s_t0}, s{s_t0}, {WS_GT}")
    A.e("s_waitcnt lgkmcnt(0)")
    A.e(f"v_add_f32 v{T+2}, v{T+2}, v{T+3}")
    A.e(f"v_add_f32 v{T+2}, v{T+2}, v{T+4}")
    A.e(f"v_mul_f32 v{T+2}, {fhex(-LOG2E)}, v{T+2}")
    A.e(f"v_exp_f32 v{T+2}, v{T+2}")
    A.e("s_nop 0")
    A.e(f"v_add_f32 v{T+2}, 1.0, v{T+2}")
    A.e(f"v_rcp_f32 v{T+2}, v{T+2}")
    A.e("s_nop 0")
    A.e(f"buffer_store_dword v{T+2}, v{T}, s[{sWS}:{sWS+3}], s{s_t0} offen{SC}")
    A.label("L_gt_skip")
    A.e(f"buffer_load_dword v{vPL+4}, off, s[{sDBG}:{sDBG+3}], 0{SC}")
    A.e(f"s_mov_b32 s{s_uok}, 2")
    call_kchan(A, 2, f"s_add_u32 s{s_ci}, s{s_w}, 4", RB_OFF)
    stamp(A, 3)

def utchk(A):
    A.e(f"s_cmp_eq_u32 s{s_uok}, 1")
    A.e("s_cbranch_scc1 L_uc3")
    A.e(f"s_mov_b32 s{s_t0}, 0x20000")
    A.e(f"s_mov_b32 s{s_t1}, {F_U}")
    A.e(f"v_mov_b32 v{vPL}, 0")
    A.label("L_uc1")
    A.e(f"v_min_u32 v{vPL}, v{vPL}, v{vPL+1}")
    A.e(f"v_min3_u32 v{vPL}, v{vPL}, v{vPL+2}, v{vPL+3}")
    A.e(f"v_cmp_gt_u32 vcc, 1, v{vPL}")
    A.e(f"v_cmp_gt_u32 s[76:77], v{vPL+6}, v{vPL+4}")
    A.e("s_or_b64 vcc, vcc, s[76:77]")
    A.e("s_cbranch_scc0 L_uc3")
    A.e(f"s_sub_u32 s{s_t0}, s{s_t0}, 1")
    A.e("s_cbranch_scc1 L_uc3")
    A.e(f"buffer_load_dword v{vPL+4}, off, s[{sDBG}:{sDBG+3}], 0{SC}")
    A.e("s_waitcnt vmcnt(0)")
    A.e(f"buffer_load_dwordx4 v[{vPL}:{vPL+3}], v{vPL+5}, s[{sWS}:{sWS+3}], s{s_t1} offen{SC}")
    A.e("s_waitcnt vmcnt(0)")
    A.e("s_branch L_uc1")
    A.label("L_uc3")

def tables(A):
    A.raw(".p2align 4")
    A.label("L_atab")
    A.raw(".long " + ", ".join(str(x) for x in a_table()))
```

```python
import sys, os
from common import *
import p1f, big2
import conv5 as convf
import kc4
from p1f import *

def fused():
    A = Asm()
    K = NAME + "_kernel"
    A.raw(kernel_head(K))
    stamp(A, 0)
    A.e("s_cmp_ge_u32 s2, 256")
    A.e("s_cbranch_scc1 L_end")
    for r, n in ((sX, "u"), (p_w1, "w1"), (sWS, "ws"), (sW2, "w2"), (sDBG, "dbg")):
        A.e(f"s_load_dwordx2 s[{r}:{r+1}], s[0:1], {KA[n]}")
    if 'nocpf' not in EXP:
        A.e(f"s_getpc_b64 s[{s_ret}:{s_ret+1}]")
        A.label("L_cpf_pc")
        A.e("v_lshrrev_b32 v2, 6, v0")
        A.e("s_lshr_b32 s3, s2, 3")
        A.e("s_lshl_b32 s3, s3, 2")
        A.e("v_add_u32 v2, s3, v2")
        A.e("v_and_b32 v2, 7, v2")
        A.e("v_lshlrev_b32 v2, 13, v2")
        A.e("v_and_b32 v3, 63, v0")
        A.e("v_lshl_add_u32 v2, v3, 7, v2")
        A.e("v_min_u32 v2, L_codeend-L_cpf_pc-4, v2")
        A.e("v_and_b32 v2, -4, v2")
        A.vmem(f"global_load_dword a255, v2, s[{s_ret}:{s_ret+1}]", "cpf")
    setup_common(A)
    A.e(f"v_mov_b32 v{vS}, 0")
    A.e("s_waitcnt lgkmcnt(0)")
    for r, n in ((sX, L_*D_*2), (sWS, WS_BYTES), (sW2, D_*F_*2), (sDBG, 256)):
        A.e(f"s_mov_b32 s{r+2}, {hex(n)}"); A.e(f"s_mov_b32 s{r+3}, 0x00020000")
    if 'wsend' in EXP:
        A.e(f"s_add_u32 s{sWS}, s{sWS}, {WS_BYTES - 0x2A00000}"); A.e(f"s_addc_u32 s{sWS+1}, s{sWS+1}, 0"); A.e(f"s_mov_b32 s{sWS+2}, 0x2A00000")
    A.e(f"s_mov_b32 s{p_ws}, s{sWS}"); A.e(f"s_mov_b32 s{p_ws+1}, s{sWS+1}")
    A.e(f"s_cmp_eq_u32 s{s_r}, 3")
    A.e("s_cbranch_scc1 L_conv")
    A.e(f"s_load_dwordx2 s[{sT0}:{sT0+1}], s[0:1], {KA['b1']}")
    A.e(f"s_load_dwordx2 s[{sT1}:{sT1+1}], s[0:1], {KA['out']}")
    big2.p1_setup(A)
    A.e(f"s_add_u32 s{sW1}, s{p_w1}, s{s_so}")
    A.e(f"s_addc_u32 s{sW1+1}, s{p_w1+1}, 0")
    A.e(f"s_mov_b32 s{sT0+2}, {F_*2}"); A.e(f"s_mov_b32 s{sT0+3}, 0x00020000")
    A.e(f"s_mov_b32 s{sT1+2}, {L_*D_*2}"); A.e(f"s_mov_b32 s{sT1+3}, 0x00020000")
    A.e("s_waitcnt lgkmcnt(0)")
    if 'tst' not in EXP: stamp(A, 1)
    ctx = big2.p1(A)
    big2.p2(A, *ctx)
    big2.tail(A, ctx[0])
    if STAMPS:
        A.wait_all()
        if 'p1st' not in EXP: stamp(A, 7)
        stamp_flush(A)
    A.e("s_endpgm")
    A.label("L_conv")
    A.vm = ["cpf"]; A.lg = []
    A.e(f"s_and_b32 s{s_t0}, s{s_fi}, 0xffffff80")
    A.e("v_lshrrev_b32 v2, 4, v1")
    A.e("v_lshlrev_b32 v2, 13, v2")
    A.e("v_and_b32 v3, 15, v1")
    A.e("v_lshl_add_u32 v2, v3, 2, v2")
    A.e(f"v_add_u32 v2, s{s_t0}, v2")
    A.e(f"s_mul_i32 s{s_t0}, s{s_m}, 12")
    A.e(f"s_add_u32 s{s_t0}, s{s_t0}, s{s_kq}")
    A.e(f"s_lshl_b32 s{s_t0}, s{s_t0}, 7")
    A.e(f"s_add_u32 s{s_t0}, s{s_t0}, {F_P}")
    A.e("v_min_u32 v3, 11, v3")
    A.e("v_lshrrev_b32 v4, 2, v3")
    A.e("v_lshlrev_b32 v4, 9, v4")
    A.e("v_and_b32 v3, 3, v3")
    A.e("v_lshl_add_u32 v3, v3, 2, v4")
    A.e("v_cmp_gt_u32 vcc, 48, v1")
    A.e(f"v_add_u32 v3, s{s_t0}, v3")
    A.e(f"s_cmp_lg_u32 s{s_w}, 0")
    A.e("v_cndmask_b32 v2, v3, v2, vcc")
    A.e("s_cbranch_scc1 L_nz")
    A.e(f"buffer_store_dword v{vS}, v2, s[{sWS}:{sWS+3}], 0 offen{SC}")
    A.label("L_nz")
    A.e(f"s_lshr_b32 s{s_fi}, s{s_fi}, 7")
    A.e(f"s_and_b32 s{s_fi}, s{s_fi}, 63")
    A.e(f"s_lshl_b32 s{s_fi}, s{s_fi}, 2")
    A.e(f"s_add_u32 s{s_fi}, s{s_fi}, s{s_w}")
    A.e(f"s_lshl_b32 s{s_fi}, s{s_fi}, 2")
    A.e(f"s_add_u32 s{s_fi}, s{s_fi}, {F_U}")
    A.e(f"s_cmp_lg_u32 s{s_w}, 0")
    A.e("s_cbranch_scc1 L_nz3")
    A.e("v_and_b32 v2, 4, v1")
    A.e("v_lshlrev_b32 v2, 10, v2")
    A.e("v_and_b32 v3, 3, v1")
    A.e("v_lshl_add_u32 v2, v3, 2, v2")
    A.e(f"buffer_store_dword v{vS}, v2, s[{sWS}:{sWS+3}], s{s_fi} offen{SC}")
    A.label("L_nz3")
    if 'noconv' in EXP: A.e("s_endpgm")
    kc4.kgen_all(A)
    if 'kgonly' in EXP:
        stamp(A, 7); stamp_flush(A); A.e("s_endpgm")
    if 'ramp' in EXP: A.e("s_endpgm")
    if 'kgst' in EXP:
        stamp(A, 7); stamp_flush(A); A.e("s_endpgm")
    convf.conv_all(A, ldflag=SC, stflag=SC)
    A.e(f"v_mov_b32 v{vS}, 1")
    A.e(f"s_add_u32 s{s_fi}, s{s_fi}, 4096")
    A.e("s_waitcnt vmcnt(0)")
    A.e(f"buffer_store_dword v{vS}, off, s[{sWS}:{sWS+3}], s{s_fi}{SC}")
    A.wait_all()
    stamp(A, 7)
    stamp_flush(A)
    A.label("L_end")
    A.e("s_endpgm")
    ut_sub(A, kc4.POOL[0])
    kc4.kchan_sub(A)
    big2.poll_sub(A)
    kc4.tables(A)
    A.label("L_codeend")
    return A.text(), KD.format(name=K, vgpr=512, accum=256)

HDR = open("cdna_kernels/" + NAME + ".s.ref").read().split("; Override launch")[0]
if __name__ == "__main__":
    t, kd = fused()
    s = HDR + f"; @launch grid=(256,1,1) block=(256,1,1) lds={LDS_BYTES}\n" + '.amdgcn_target "amdgcn-amd-amdhsa--gfx950"\n.text\n' + t + '.section .rodata,"a"\n.p2align 6\n' + kd
    open(sys.argv[1], "w").write(s)
```

```python
from common import *
import math, p1f
L2E_HI = struct.unpack('<f', struct.pack('<f', LOG2E))[0]
L2E_LO = LOG2E - L2E_HI
LN2 = math.log(2.0)
TLBS = int(os.environ.get('TLBS', 0))
WREG = 40960
SU, SR = 4640, 4480
RA_OFF, RB_OFF, U_OFF = 0, 8960, 17920
SCR = 8960
T_OFF = 17920
TS_ENT = 2304
ZIDX = 2300
WS_R9 = WS_G
s_ch0, s_lb, s_dt, s_dsk, s_cA, s_cB, s_cC, s_ci, s_rdst, s_yo, s_rnd, s_dl = 56, 57, 58, 59, 60, 61, 62, 63, 64, 65, 66, 67
sP0, sP1, sU, sPF = 68, 72, 68, 72
sP2, sP3 = sT0, sT1
s_pf = 76
s_uok = 66
vW, vRD, vSc, vGa = 32, 48, 52, 64
vDt, vDk, vPF, vRW, vZW, vPL = 4, 5, 6, 7, 8, 20
vPar = 100
vCur = 112
vZ = 116
POOL = (124, 180)
vCV = 236
vD = 10
def a_table():
    t = []
    for row in range(16): t.append((row & 7) + 128*(row >> 3))
    for row in range(16):
        t.append(256 + 128*(row >> 2) + 2*(row & 3) if row < 8 else 512 + 128*((row-8) >> 1) + 4*(row & 1))
    for row in range(16): t.append(1024 + 128*row if row <= 8 else 2100)
    return t

def exp_bf16_multi(A, items):
    for d, x, a, b in items: A.e(f"v_mul_f32 v{a}, s{s_cA}, v{x}")
    for d, x, a, b in items: A.e(f"v_fma_f32 v{b}, v{x}, s{s_cA}, -v{a}")
    for d, x, a, b in items: A.e(f"v_exp_f32 v{a}, v{a}")
    for d, x, a, b in items: A.e(f"v_fma_f32 v{b}, v{x}, s{s_cB}, v{b}")
    for d, x, a, b in items: A.e(f"v_mul_f32 v{b}, s{s_cC}, v{b}")
    for d, x, a, b in items: A.e(f"v_fma_f32 v{a}, v{a}, v{b}, v{a}")
    for d, x, a, b in items: A.e(f"v_cvt_pk_bf16_f32 v{a}, v{a}, v{a}")
    for d, x, a, b in items: A.e(f"v_lshlrev_b32 v{d}, 16, v{a}")

def pf_hook(A, k):
    if 'nopf' not in EXP:
        A.e(f"buffer_load_dword a{200+k}, v{vPF}, s[{sPF}:{sPF+3}], s{s_pf+k} offen{NTP}")

class Ch:
    def __init__(self, A):
        self.A = A; self.reg = {}; self.free = list(range(0, 56, 2)); self.cvn = 0; self.pend = []
    def alloc(self, name):
        self.reg[name] = self.free.pop(0); return self.reg[name]
    def rel(self, *names):
        for n in names: self.free.append(self.reg.pop(n))
    def r(self, name, m): return POOL[m] + self.reg[name]
    def muls(self, lst):
        for d, x, y in lst: self.alloc(d)
        for d, x, y in lst:
            for m in range(2):
                D, X, M = self.r(d, m), self.r(x, m), self.r(y, m)
                self.A.e(f"v_pk_mul_f32 v[{D}:{D+1}], v[{X}:{X+1}], v[{M}:{M+1}] op_sel_hi:[1,0]")
        for d, x, y in lst:
            for m in range(2):
                D, X, M = self.r(d, m), self.r(x, m), self.r(y, m)
                self.A.e(f"v_pk_fma_f32 v[{D}:{D+1}], v[{X}:{X+1}], v[{M}:{M+1}], v[{D}:{D+1}] op_sel:[1,1,0] op_sel_hi:[0,1,1] neg_lo:[1,0,0]")
    def put(self, items):
        A = self.A; slot = 0; w = []
        for i, oa, na, ob, nb in items:
            regs = []
            for o, n in ((oa, na), (ob, nb)):
                if n is None: continue
                c = vCV + 2*slot; slot += 1
                assert slot <= 10
                for m in range(2):
                    if n == "one": A.e(f"v_mov_b32 v{c+m}, 0x3f80")
                    else:
                        X = self.r(n, m)
                        A.e(f"v_cvt_pk_bf16_f32 v{c+m}, v{X}, {'-' if o == 41 else ''}v{X+1}")
                regs.append((o, c))
            w.append((i, regs))
        for i, regs in w:
            if len(regs) == 2:
                A.e(f"ds_write2st64_b64 v{vW+i}, v[{regs[0][1]}:{regs[0][1]+1}], v[{regs[1][1]}:{regs[1][1]+1}] offset0:{regs[0][0]} offset1:{regs[1][0]}")
            else:
                A.e(f"ds_write_b64 v{vW+i}, v[{regs[0][1]}:{regs[0][1]+1}] offset:{regs[0][0]*512}")

def kchan_sub(A):
    A.label("L_kchan")
    C = Ch(A)
    A.e(f"v_readlane_b32 s{s_dt}, v{vDt}, s{s_ci}")
    A.e(f"v_readlane_b32 s{s_dsk}, v{vDk}, s{s_ci}")
    T = vCV
    A.e(f"v_lshlrev_b32 v{T}, 16, v{vCur}")
    A.e(f"v_and_b32 v{T+1}, 0xffff0000, v{vCur}")
    A.e(f"v_lshlrev_b32 v{vZ+1}, 16, v{vCur+1}")
    A.e(f"v_and_b32 v{vZ+5}, 0xffff0000, v{vCur+1}")
    exp_bf16_multi(A, [(vZ, T, T+2, T+3), (vZ+4, T+1, T+4, T+5)])
    A.e(f"v_lshlrev_b32 v{vZ+2}, 16, v{vCur+2}")
    A.e(f"v_and_b32 v{vZ+6}, 0xffff0000, v{vCur+2}")
    A.e(f"v_lshlrev_b32 v{vZ+3}, 16, v{vCur+3}")
    A.e(f"v_and_b32 v{vZ+7}, 0xffff0000, v{vCur+3}")
    for k in range(8): A.e(f"v_mul_f32 v{vZ+k}, s{s_dt}, v{vZ+k}")
    for m in range(2):
        A.e(f"v_mul_f32 v{vZ+4*m}, {fhex(-LOG2E)}, v{vZ+4*m}")
        A.e(f"v_mul_f32 v{vZ+4*m+1}, 0.15915494, v{vZ+4*m+1}")
    Ps = [1, 8, 128, 512, 1024]
    for P in Ps: C.alloc(f"E{P}")
    C.alloc("B0")
    for m in range(2):
        b = C.r("B0", m)
        A.e(f"v_add_f32 v{b}, v{vZ+4*m+2}, v{vZ+4*m+2}")
        A.e(f"v_add_f32 v{b+1}, v{vZ+4*m+3}, v{vZ+4*m+3}")
    tt = lambda k, m: T + 4*k + 2*m
    for k, P in enumerate(Ps):
        for m in range(2):
            if P == 1:
                A.e(f"v_mov_b32 v{tt(k,m)}, v{vZ+4*m}"); A.e(f"v_fract_f32 v{tt(k,m)+1}, v{vZ+4*m+1}")
            else:
                A.e(f"v_mul_f32 v{tt(k,m)}, {fhex(float(P))}, v{vZ+4*m}")
                A.e(f"v_mul_f32 v{tt(k,m)+1}, {fhex(float(P))}, v{vZ+4*m+1}")
    for k, P in enumerate(Ps):
        if P == 1: continue
        for m in range(2): A.e(f"v_fract_f32 v{tt(k,m)+1}, v{tt(k,m)+1}")
    for k, P in enumerate(Ps):
        for m in range(2):
            d = C.r(f"E{P}", m)
            A.e(f"v_exp_f32 v{tt(k,m)}, v{tt(k,m)}")
            A.e(f"v_cos_f32 v{d}, v{tt(k,m)+1}")
            A.e(f"v_sin_f32 v{d+1}, v{tt(k,m)+1}")
    A.e("s_nop 0")
    for k, P in enumerate(Ps):
        for m in range(2):
            d = C.r(f"E{P}", m)
            A.e(f"v_pk_mul_f32 v[{d}:{d+1}], v[{d}:{d+1}], v[{tt(k,m)}:{tt(k,m)+1}] op_sel_hi:[1,0]")
    C.muls([("E2", "E1", "E1"), ("E256", "E128", "E128"), ("E640", "E512", "E128"), ("E129", "E128", "E1"), ("E16", "E8", "E8"), ("B1", "B0", "E8"), ("T1", "E1024", "E128")])
    C.put([(0, 0, "one", 16, "E256"), (8, 0, "E128", 16, "E512"), (0, 32, "E1024", 41, "B0"), (1, 32, "T1", 41, "B1")])
    C.rel("E8")
    C.muls([("E3", "E2", "E1"), ("E4", "E2", "E2"), ("E384", "E256", "E128"), ("E768", "E512", "E256"), ("E130", "E128", "E2"), ("E258", "E256", "E2"),
            ("B2", "B0", "E16"), ("B3", "B1", "E16"), ("T2", "E1024", "E256"), ("T3", "T1", "E256")])
    C.rel("B0", "B1", "T1", "E1024")
    C.put([(10, 0, "E130", 16, "E640"), (1, 0, "E1", 16, "E258"), (4, 0, "E4", 16, "E384"), (2, 32, "T2", 41, "B2"), (3, 32, "T3", 41, "B3")])
    C.rel("E130", "E258")
    C.muls([("E260", "E256", "E4"), ("E516", "E512", "E4"), ("E132", "E128", "E4"), ("E131", "E128", "E3"), ("E644", "E640", "E4"),
            ("B4", "B2", "E16"), ("B5", "B3", "E16"), ("T4", "T2", "E256"), ("T5", "T3", "E256")])
    C.rel("B2", "B3", "T2", "T3", "E640")
    C.put([(2, 0, "E2", 16, "E260"), (9, 0, "E129", 16, "E516"), (12, 0, "E132", 16, "E768"), (11, 0, "E131", 16, "E644"), (4, 32, "T4", 41, "B4")])
    C.rel("E260", "E129", "E516", "E132", "E131", "E644")
    C.muls([("E5", "E4", "E1"), ("E6", "E4", "E2"), ("E7", "E4", "E3"), ("E896", "E512", "E384"), ("E386", "E384", "E2"), ("E388", "E384", "E4"), ("E772", "E768", "E4"),
            ("B6", "B4", "E16"), ("B7", "B5", "E16"), ("T6", "T4", "E256"), ("T7", "T5", "E256")])
    C.put([(5, 32, "T5", 41, "B5"), (5, 0, "E5", 16, "E386"), (6, 0, "E6", 16, "E388"), (6, 32, "T6", 41, "B6"), (7, 32, "T7", 41, "B7")])
    C.rel("B4", "B5", "T4", "T5", "E386", "E388", "E1", "E2", "E512", "E768", "T7")
    C.muls([("E262", "E256", "E6"), ("E390", "E384", "E6"), ("E133", "E128", "E5"), ("E134", "E128", "E6"), ("E135", "E128", "E7"), ("E900", "E896", "E4"),
            ("B8", "B6", "E16"), ("B9", "B7", "E16"), ("T8", "T6", "E256")])
    C.put([(3, 0, "E3", 16, "E262"), (7, 0, "E7", 16, "E390"), (13, 0, "E133", 16, "E772"), (14, 0, "E134", 16, "E896"), (15, 0, "E135", 16, "E900")])
    C.rel("B6", "B7", "T6", "E262", "E390", "E133", "E134", "E135", "E900")
    C.muls([("B10", "B8", "E16"), ("B11", "B9", "E16")])
    C.put([(8, 32, "T8", 41, "B8"), (9, 41, "B9", 0, None)])
    C.muls([("B12", "B10", "E16"), ("B13", "B11", "E16")])
    C.put([(10, 41, "B10", 0, None), (11, 41, "B11", 0, None)])
    C.muls([("B14", "B12", "E16"), ("B15", "B13", "E16")])
    C.put([(12, 41, "B12", 0, None), (13, 41, "B13", 0, None), (14, 41, "B14", 0, None), (15, 41, "B15", 0, None)])
    A.e(f"s_mov_b32 s{s_t0}, {F_U}")
    A.e(f"s_cmp_eq_u32 s{s_uok}, 2")
    A.e("s_cbranch_scc0 L_kc_npoll")
    A.e(f"s_waitcnt vmcnt(0)")
    A.e(f"buffer_load_dwordx4 v[{vPL}:{vPL+3}], v{vPL+5}, s[{sWS}:{sWS+3}], s{s_t0} offen{SC}")
    A.label("L_kc_npoll")
    A.lg = []
    A.e("s_waitcnt lgkmcnt(0)")
    D = POOL[0]
    for ks in range(8):
        A.ds(f"ds_read_b128 a[{4*ks}:{4*ks+3}], v{vRD+(ks&3)} offset:{41*512 + (ks>>2)*256}", f"kb{ks}")
        for t in range(3):
            A.ds(f"ds_read_b128 a[{32+32*t+4*ks}:{35+32*t+4*ks}], v{vRD+(ks&3)} offset:{t*8192 + (ks>>2)*256}", f"ka{ks}{t}")
        if ks >= 2:
            for t in range(3):
                k2 = ks - 2
                A.wait_lg([f"ka{k2}{t}"])
                A.e(f"v_mfma_f32_16x16x32_bf16 v[{D+4*t}:{D+4*t+3}], a[{32+32*t+4*k2}:{35+32*t+4*k2}], a[{4*k2}:{4*k2+3}], {'0' if k2 == 0 else f'v[{D+4*t}:{D+4*t+3}]'}")
    for k2 in (6, 7):
        for t in range(3):
            A.wait_lg([f"ka{k2}{t}"])
            A.e(f"v_mfma_f32_16x16x32_bf16 v[{D+4*t}:{D+4*t+3}], a[{32+32*t+4*k2}:{35+32*t+4*k2}], a[{4*k2}:{4*k2+3}], v[{D+4*t}:{D+4*t+3}]")
    A.e(f"s_cmp_eq_u32 s{s_uok}, 2")
    A.e("s_cbranch_scc0 L_kc_nchk")
    A.e("s_waitcnt vmcnt(0)")
    A.e(f"v_min_u32 v{vPL}, v{vPL}, v{vPL+1}")
    A.e(f"v_min3_u32 v{vPL}, v{vPL}, v{vPL+2}, v{vPL+3}")
    A.e(f"v_cmp_gt_u32 vcc, 1, v{vPL}")
    A.e(f"v_cmp_gt_u32 s[76:77], v{vPL+6}, v{vPL+4}")
    A.e("s_or_b64 vcc, vcc, s[76:77]")
    A.e("s_cbranch_scc1 L_kc_nchk")
    A.e(f"s_mov_b32 s{s_uok}, 1")
    A.e(f"s_add_u32 s{s_t0}, s{s_ch0}, s{s_w}")
    A.e(f"s_mul_i32 s{s_t0}, s{s_t0}, {UT_PITCH}")
    A.e(f"s_add_u32 s{s_t0}, s{s_t0}, {WS_UT}")
    A.e(f"v_min_u32 v{vPL}, 32, v1")
    A.e(f"v_lshlrev_b32 v{vPL}, 7, v{vPL}")
    A.e(f"buffer_load_dword a197, v{vPL}, s[{sWS}:{sWS+3}], s{s_t0} offen{SC}")
    A.label("L_kc_nchk")
    A.e(f"v_mov_b32 v{T}, 0")
    A.e(f"v_writelane_b32 v{T}, s{s_dsk}, 0")
    for k in range(4): A.e(f"v_mov_b32 v{T+4+k}, 0")
    A.e(f"v_add_u32 v{T+2}, s{s_rdst}, v{vRW}")
    A.e(f"v_add_u32 v{T+3}, s{s_rdst}, v{vZW}")
    A.e(f"v_add_f32 v{D}, v{D}, v{T}")
    for k in range(12): A.e(f"ds_write_b32 v{vSc+k}, v{D+k}")
    A.e(f"ds_write_b32 v{9}, v{T+4}")
    A.e(f"ds_write_b128 v{T+3}, v[{T+4}:{T+7}]")
    A.e("s_waitcnt lgkmcnt(0)")
    G = POOL[0] + 12
    for k in range(4):
        for e in range(9): A.ds(f"ds_read_b32 v{G+9*k+e}, v{vGa+9*k+e}", f"g{k}")
    O = POOL[1]
    for k in range(4):
        A.wait_lg(f"g{k}")
        g = G + 9*k
        for e in range(4): A.e(f"v_cvt_pk_bf16_f32 v{O+8*k+e}, v{g+2*e+1}, v{g+2*e+2}")
        for e in range(4): A.e(f"v_cvt_pk_bf16_f32 v{O+8*k+4+e}, v{g+2*e}, v{g+2*e+1}")
    for k in range(4):
        A.e(f"ds_write_b128 v{T+2}, v[{O+8*k}:{O+8*k+3}] offset:{1024*k}")
        A.e(f"ds_write_b128 v{T+2}, v[{O+8*k+4}:{O+8*k+7}] offset:{SR + 1024*k}")
    A.e("s_waitcnt lgkmcnt(0)")
    A.lg = []
    A.e(f"s_setpc_b64 s[{s_ret}:{s_ret+1}]")

vGX, vGG = POOL[0], POOL[1]
def kc_setup(A):
    A.c("======== conv role setup")
    for r, n in ((sP0, 'loga'), (sP1, 'aim'), (sP2, 'cre'), (sP3, 'cim'), (76, 'logdt'), (80, 'dskip'), (84, 'gw')):
        A.e(f"s_load_dwordx2 s[{r}:{r+1}], s[0:1], {KA[n]}")
    A.e(f"s_lshl_b32 s{s_ch0}, s{s_m}, 2")
    A.e(f"s_add_u32 s{s_ch0}, s{s_ch0}, s{s_kq}")
    A.e(f"s_mul_i32 s{s_ch0}, s{s_ch0}, 9")
    A.e(f"s_mul_i32 s{s_lb}, s{s_w}, {WREG}")
    for r, n in ((sP0, D_*256), (sP1, D_*256), (sP2, D_*256), (sP3, D_*256), (76, D_*2), (80, D_*2)):
        A.e(f"s_mov_b32 s{r+2}, {n}"); A.e(f"s_mov_b32 s{r+3}, 0x00020000")
    T = vCV
    A.e(f"v_lshlrev_b32 v{T}, 2, v1")
    A.e(f"v_min_u32 v{T+1}, 8, v1")
    A.e(f"v_add_u32 v{T+1}, s{s_ch0}, v{T+1}")
    A.e(f"v_lshlrev_b32 v{T+1}, 1, v{T+1}")
    A.e(f"s_add_u32 s{s_t0}, s{s_ch0}, s{s_w}")
    A.e(f"s_lshl_b32 s{s_t0}, s{s_t0}, 8")
    A.e(f"s_add_u32 s{s_t1}, s{s_ch0}, 8")
    A.e(f"s_lshl_b32 s{s_t1}, s{s_t1}, 8")
    A.e(f"s_lshl_b32 s{s_upos}, s{s_m}, 7")
    A.e(f"s_lshl_b32 s{s_t2}, s{s_kq}, 5")
    A.e(f"s_add_u32 s{s_upos}, s{s_upos}, s{s_t2}")
    A.e(f"v_lshrrev_b32 v{T+4}, 3, v1")
    A.e(f"v_and_b32 v{T+5}, 7, v1")
    A.e(f"v_add_u32 v{T+6}, s{s_upos}, v{T+4}")
    A.e(f"v_mul_u32_u24 v{T+6}, 1152, v{T+6}")
    A.e(f"v_lshrrev_b32 v{T+7}, 1, v{T+4}")
    A.e(f"v_xor_b32 v{T+7}, v{T+7}, v{T+5}")
    A.e(f"v_lshl_add_u32 v{vXD}, v{T+7}, 4, v{T+6}")
    A.e(f"v_xor_b32 v{vXD+1}, 64, v{vXD}")
    A.e(f"v_add_u32 v{vXD+1}, 8192, v{vXD+1}")
    A.e(f"s_lshl_b32 s{s_upos}, s{s_upos}, 1")
    A.e("s_waitcnt lgkmcnt(0)")
    for slot, (so, off) in enumerate(((s_t1, 0), (s_t0, 0), (s_t0, 1024))):
        for k, srd in enumerate((sP0, sP1, sP2, sP3)):
            A.vmem(f"buffer_load_dword v{vPar+4*slot+k}, v{T}, s[{srd}:{srd+3}], s{so} offen offset:{off}", "kp")
    A.vmem(f"buffer_load_ushort v{vDt}, v{T+1}, s[76:79], 0 offen", "kp")
    A.vmem(f"buffer_load_ushort v{vDk}, v{T+1}, s[80:83], 0 offen", "kp")
    A.e(f"s_getpc_b64 s[{s_ret}:{s_ret+1}]")
    A.label("L_kg_pc")
    A.e(f"s_add_u32 s{s_ret}, s{s_ret}, L_atab-L_kg_pc")
    A.e(f"s_addc_u32 s{s_ret+1}, s{s_ret+1}, 0")
    A.e(f"v_and_b32 v{T+2}, 48, v1")
    for t in range(3):
        A.vmem(f"global_load_dwordx4 v[{vSc+4*t}:{vSc+4*t+3}], v{T+2}, s[{s_ret}:{s_ret+1}] offset:{64*t}", "kp")
    A.e(f"s_cmp_eq_u32 s{s_w}, 0")
    A.e("s_cbranch_scc1 L_xp_skip")
    A.e(f"s_mov_b32 s80, s84"); A.e("s_mov_b32 s81, s85")
    A.e(f"s_mul_i32 s{s_line}, s{s_w}, 3")
    A.e(f"s_sub_u32 s{s_line}, s{s_line}, 3")
    for q in range(3):
        A.e(f"s_add_u32 m0, s{s_lb}, {SCR + 4096*q}")
        A.e(f"s_add_u32 s{s_so}, s{s_line}, {q}")
        A.e(f"s_lshl_b32 s{s_so}, s{s_so}, 7")
        for i in range(4):
            if i == 2: A.e(f"s_add_u32 s{s_so}, s{s_so}, 16384")
            A.e(f"buffer_load_dwordx4 v{vXD+(i&1)}, s[{sX}:{sX+3}], s{s_so} offen offset:{i*1024} lds")
    A.e(f"v_and_b32 v{T+3}, 1, v1")
    A.e(f"v_lshlrev_b32 v{T+3}, 6, v{T+3}")
    A.e(f"s_lshl_b32 s{s_so}, s{s_line}, 7")
    for q in range(3):
        for c in range(4):
            A.e(f"buffer_load_dwordx4 v[{vGG+16*q+4*c}:{vGG+16*q+4*c+3}], v{T+3}, s[80:83], s{s_so} offen offset:{128*q+16*c}")
    A.label("L_xp_skip")
    if 'notlb' not in EXP:
        A.e(f"s_load_dwordx2 s[{sW1}:{sW1+1}], s[0:1], {KA['out']}")
        A.e(f"s_lshl_b32 s{s_t3}, s{s_m7}, 2")
        A.e(f"s_add_u32 s{s_t3}, s{s_t3}, s{s_w}")
        A.e(f"s_lshl_b32 s{s_t0}, s{s_t3}, {22 + TLBS}")
        A.e(f"s_cmp_lt_u32 s{s_t0}, 0x2A00000")
        A.e(f"s_cselect_b32 s{s_t0}, s{s_t0}, 0x40000000")
        A.e(f"v_lshlrev_b32 v{vPF}, {16 + TLBS}, v1")
        A.e(f"s_mov_b32 s{sW1+2}, {L_*D_*2}")
        A.e(f"s_mov_b32 s{sW1+3}, 0x00020000")
        A.e(f"buffer_load_dword a196, v{vPF}, s[{sWS}:{sWS+3}], s{s_t0} offen{SC}")
        A.e(f"s_cmp_eq_u32 s{s_t3}, 30")
        A.e(f"s_cselect_b32 s{s_t0}, 0, 0x40000000")
        A.e("s_waitcnt lgkmcnt(0)")
        A.e(f"buffer_load_dword a195, v{vPF}, s[{sW1}:{sW1+3}], s{s_t0} offen{SC}")
    if 'now1pf' not in EXP and 'nopf' not in EXP:
        A.e(f"s_mul_i32 s{s_t0}, s{s_kq}, 2304")
        A.e(f"s_add_u32 s{sW1}, s{p_w1}, s{s_t0}")
        A.e(f"s_addc_u32 s{sW1+1}, s{p_w1+1}, 0")
        A.e(f"s_mov_b32 s{sW1+2}, {575*9216 + 2304}")
        A.e(f"s_mov_b32 s{sW1+3}, 0x00020000")
        A.e(f"v_mul_u32_u24 v{vPF}, 9216, v1")
        A.e(f"s_lshl_b32 s{s_t3}, s{s_m7}, 2")
        A.e(f"s_add_u32 s{s_t3}, s{s_t3}, s{s_w}")
        A.e(f"s_mul_i32 s{s_t0}, s{s_t3}, 57")
        A.e(f"s_lshr_b32 s{s_t0}, s{s_t0}, 9")
        A.e(f"s_mul_i32 s{s_t1}, s{s_t0}, 9")
        A.e(f"s_sub_u32 s{s_t1}, s{s_t3}, s{s_t1}")
        A.e(f"s_mul_i32 s{s_t1}, s{s_t1}, {64*9216}")
        A.e(f"s_mul_i32 s{s_t0}, s{s_t0}, 768")
        A.e(f"s_add_u32 s{s_t1}, s{s_t1}, s{s_t0}")
        A.e(f"s_add_u32 s{s_t1}, s{s_t1}, 128")
        A.e(f"s_cmp_lt_u32 s{s_t3}, 27")
        A.e(f"s_cselect_b32 s{s_t1}, s{s_t1}, 0x40000000")
        A.e(f"buffer_load_dword a199, v{vPF}, s[{sW1}:{sW1+3}], s{s_t1} offen")
        if 'w1pf2' in EXP:
            A.e(f"buffer_load_dword a198, v{vPF}, s[{sW1}:{sW1+3}], s{s_t1} offen offset:128")
    A.e(f"s_mul_i32 s{s_t0}, s{s_kq}, {1152*1152}")
    A.e(f"s_add_u32 s{sPF}, s{sW2}, s{s_t0}")
    A.e(f"s_addc_u32 s{sPF+1}, s{sW2+1}, 0")
    A.e(f"s_mov_b32 s{sPF+2}, {1152*1152}")
    A.e(f"s_mov_b32 s{sPF+3}, 0x00020000")
    A.e(f"v_lshlrev_b32 v{vPF}, 7, v1")
    A.e(f"s_lshl_b32 s{s_t3}, s{s_m7}, 2")
    A.e(f"s_add_u32 s{s_t3}, s{s_t3}, s{s_w}")
    A.e(f"s_mul_i32 s{s_t0}, s{s_t3}, 57")
    A.e(f"s_lshr_b32 s{s_t0}, s{s_t0}, 9")
    A.e(f"s_mul_i32 s{s_t0}, s{s_t0}, {384*1152 - 9*8192}")
    A.e(f"s_lshl_b32 s{s_t1}, s{s_t3}, 13")
    A.e(f"s_add_u32 s{s_pf+5}, s{s_t0}, s{s_t1}")
    A.e(f"s_lshr_b32 s{s_t0}, s{s_m}, 3")
    A.e(f"s_mul_i32 s{s_t1}, s{s_t0}, {64*1152}")
    A.e(f"s_add_u32 s{s_t1}, s{s_t1}, s{s_pf+5}")
    A.e(f"s_add_u32 s{s_pf}, s{s_t1}, {1*64*1152}")
    A.e(f"s_add_u32 s{s_pf+1}, s{s_t1}, {3*64*1152}")
    A.e(f"s_add_u32 s{s_pf+2}, s{s_pf+5}, {5*64*1152}")
    A.e(f"s_cmp_eq_u32 s{s_t0}, 0")
    A.e(f"s_cselect_b32 s{s_pf+2}, s{s_pf+2}, s{s_pf+5}")
    if 'now2c' in EXP:
        for q in range(3): A.e(f"s_mov_b32 s{s_pf+q}, 0x40000000")
    pf_hook(A, 0); pf_hook(A, 1)
    A.e(f"s_mov_b32 s{s_cA}, {fhex(L2E_HI)}")
    A.e(f"s_mov_b32 s{s_cB}, {fhex(L2E_LO)}")
    A.e(f"s_mov_b32 s{s_cC}, {fhex(LN2)}")
    A.e(f"s_add_u32 s{s_t0}, s{s_lb}, {SCR}")
    A.e(f"v_lshrrev_b32 v{T+4}, 1, v1")
    A.e(f"v_and_b32 v{T+5}, 1, v1")
    A.e(f"v_lshlrev_b32 v{T+5}, 3, v{T+5}")
    A.e(f"v_add_u32 v{T+5}, s{s_t0}, v{T+5}")
    for i in range(16):
        A.e(f"v_xor_b32 v{vW+i}, {33*i}, v{T+4}")
        A.e(f"v_lshl_add_u32 v{vW+i}, v{vW+i}, 4, v{T+5}")
    A.e(f"v_and_b32 v{T+6}, 15, v1")
    A.e(f"v_lshrrev_b32 v{T+7}, 4, v1")
    A.e(f"v_xor_b32 v{T+7}, v{T+7}, v{T+6}")
    A.e(f"v_lshlrev_b32 v{T+8}, 9, v{T+6}")
    A.e(f"v_add_u32 v{T+8}, s{s_t0}, v{T+8}")
    for k in range(4):
        A.e(f"v_xor_b32 v{vRD+k}, {4*k}, v{T+7}")
        A.e(f"v_lshl_add_u32 v{vRD+k}, v{vRD+k}, 4, v{T+8}")
    A.e(f"s_add_u32 s{s_t1}, s{s_lb}, {T_OFF}")
    A.e(f"v_lshlrev_b32 v{T+9}, 3, v1")
    A.e(f"v_sub_u32 v{T+9}, 2047, v{T+9}")
    for k in range(4):
        for e in range(9):
            g = vGa + 9*k + e
            A.e(f"v_subrev_u32 v{g}, {512*k + e}, v{T+9}")
        if k == 3: A.e(f"v_max_i32 v{vGa+35}, 0, v{vGa+35}")
        for e in range(9): A.e(f"v_cvt_f32_u32 v{vGa+9*k+e}, v{vGa+9*k+e}")
    for g in range(vGa, vGa + 36, 2):
        A.e(f"v_cvt_pk_bf16_f32 v{g+1}, v{g}, v{g+1}")
    for g in range(vGa, vGa + 36, 2):
        A.e(f"v_lshlrev_b32 v{g}, 16, v{g+1}")
        A.e(f"v_and_b32 v{g+1}, 0xffff0000, v{g+1}")
    for g in range(vGa, vGa + 36): A.e(f"v_cvt_u32_f32 v{g}, v{g}")
    for g in range(vGa, vGa + 36):
        A.e(f"v_lshrrev_b32 v{T+10+(g&1)}, 5, v{g}")
        A.e(f"v_add_lshl_u32 v{g}, v{g}, v{T+10+(g&1)}, 2")
    for g in range(vGa, vGa + 36): A.e(f"v_add_u32 v{g}, s{s_t1}, v{g}")
    pf_hook(A, 2)
    A.e(f"s_add_u32 s{s_t2}, s{s_t1}, {4*2296}")
    A.e(f"v_mov_b32 v9, s{s_t2}")
    A.e("v_cmp_eq_u32 vcc, 63, v1")
    A.e(f"v_add_u32 v{vRW}, 16, v{vL16}")
    A.e(f"v_mov_b32 v{vPL+6}, 64")
    A.e(f"v_cndmask_b32 v{vGa+35}, v{vGa+35}, v9, vcc")
    A.e(f"v_add_u32 v{T+10}, 256, v{T+6}")
    A.e(f"v_cmp_eq_u32 vcc, 0, v{T+6}")
    A.e(f"v_mov_b32 v{vPL+5}, v{vL16}")
    A.e(f"v_and_b32 v{T+11}, 16, v1")
    A.e(f"v_cndmask_b32 v{T+10}, v{T+10}, v{T+6}, vcc")
    A.e(f"v_lshlrev_b32 v{T+10}, 4, v{T+10}")
    A.e(f"v_mul_u32_u24 v{T+11}, {SR//16}, v{T+11}")
    A.e(f"v_add_u32 v{vZW}, v{T+10}, v{T+11}")
    A.e(f"s_waitcnt vmcnt({0 if 'nopf' in EXP else (3 if 'now1pf' in EXP else (5 if 'w1pf2' in EXP else 4)) + (0 if 'notlb' in EXP else 2)})"); A.vm = []
    A.e(f"v_lshlrev_b32 v{T+6}, 3, v{T+6}")
    for k in range(12): A.e(f"v_add_u32 v{vSc+k}, v{vSc+k}, v{T+6}")
    for k in range(12):
        A.e(f"v_lshrrev_b32 v{T+10+(k&1)}, 5, v{vSc+k}")
        A.e(f"v_add_lshl_u32 v{vSc+k}, v{vSc+k}, v{T+10+(k&1)}, 2")
    for k in range(12): A.e(f"v_add_u32 v{vSc+k}, s{s_t1}, v{vSc+k}")
    A.e(f"v_lshlrev_b32 v{vDt}, 16, v{vDt}")
    A.e(f"v_lshlrev_b32 v{vDk}, 16, v{vDk}")
    exp_bf16_multi(A, [(vDt, vDt, T+12, T+13)])

def call_kchan(A, slot, ci_expr, rdst_off):
    for k in range(4): A.e(f"v_mov_b32 v{vCur+k}, v{vPar+4*slot+k}")
    A.e(ci_expr)
    A.e(f"s_add_u32 s{s_rdst}, s{s_lb}, {rdst_off}")
    if 'nokc' not in EXP: A.e(f"s_call_b64 s[{s_ret}:{s_ret+1}], L_kchan")

GSUM = 3*WREG + WREG - 512
def kgen_all(A):
    kc_setup(A)
    p1f.counter_arrive(A)
    stamp(A, 1)
    A.e(f"s_mov_b32 s{s_uok}, 0")
    A.e(f"s_cmp_lg_u32 s{s_w}, 0")
    A.e("s_cbranch_scc1 L_xw")
    A.c("-- wave 0: 9th channel, image exported")
    call_kchan(A, 0, f"s_mov_b32 s{s_ci}, 8", RB_OFF)
    A.e(f"s_add_u32 s{s_t0}, s{s_lb}, {RB_OFF}")
    A.e(f"v_add_u32 v{vCV}, s{s_t0}, v{vL16}")
    for k in range(9): A.e(f"ds_read_b128 v[{POOL[0]+4*k}:{POOL[0]+4*k+3}], v{vCV} offset:{1024*k}")
    A.e(f"s_mul_i32 s{s_t0}, s{s_ch0}, 1024")
    A.e(f"s_add_u32 s{s_t0}, s{s_t0}, {WS_R9}")
    A.e("s_waitcnt lgkmcnt(0)")
    for k in range(9):
        if k % 4 == 0 and k: A.e(f"s_add_u32 s{s_t0}, s{s_t0}, 4096")
        A.e(f"buffer_store_dwordx4 v[{POOL[0]+4*k}:{POOL[0]+4*k+3}], v{vL16}, s[{sWS}:{sWS+3}], s{s_t0} offen offset:{1024*(k%4)}")
    A.e("s_branch L_xw_done")
    A.label("L_xw")
    A.c("-- waves 1..3: u^T export and partial gate logits")
    T = vCV
    A.e(f"v_lshrrev_b32 v{T}, 1, v1")
    A.e(f"v_lshrrev_b32 v{T+1}, 1, v{T}")
    A.e(f"v_and_b32 v{T+1}, 7, v{T+1}")
    A.e(f"v_and_b32 v{T+2}, 1, v1")
    A.e(f"v_lshlrev_b32 v{T+2}, 2, v{T+2}")
    A.e(f"v_xor_b32 v{T+1}, v{T+1}, v{T+2}")
    A.e(f"s_add_u32 s{s_t3}, s{s_lb}, {SCR}")
    A.e(f"v_lshlrev_b32 v{T+3}, 7, v{T}")
    A.e(f"v_add_u32 v{T+3}, s{s_t3}, v{T+3}")
    for c in range(4):
        A.e(f"v_xor_b32 v{T+4}, {c}, v{T+1}")
        A.e(f"v_lshl_add_u32 v{T+4}, v{T+4}, 4, v{T+3}")
        for q in range(3): A.e(f"ds_read_b128 v[{vGX+16*q+4*c}:{vGX+16*q+4*c+3}], v{T+4} offset:{4096*q}")
    A.e("s_waitcnt lgkmcnt(0)")
    A.e(f"v_mov_b32 v{T+4}, 0"); A.e(f"v_mov_b32 v{T+5}, 0")
    for k in range(48): A.e(f"v_dot2c_f32_bf16 v{T+4+(k&1)}, v{vGX+k}, v{vGG+k}")
    A.e(f"s_lshl_b32 s{s_t0}, s{s_w}, 7")
    A.e(f"s_add_u32 s{s_t0}, s{s_t0}, {GSUM - 128}")
    A.e(f"v_lshlrev_b32 v{T}, 2, v{T}")
    A.e(f"v_add_f32 v{T+4}, v{T+4}, v{T+5}")
    A.e(f"v_add_u32 v{T}, s{s_t0}, v{T}")
    A.e("s_nop 0")
    A.e(f"v_add_f32_dpp v{T+4}, v{T+4}, v{T+4} quad_perm:[1,0,3,2] row_mask:0xf bank_mask:0xf")
    A.e(f"ds_write_b32 v{T}, v{T+4}")
    for q in range(0 if 'nout' in EXP else 3):
        A.e(f"s_call_b64 s[{s_ret}:{s_ret+1}], L_utsub")
        if q < 2:
            A.e(f"s_add_u32 s{s_line}, s{s_line}, 1")
            A.e(f"s_add_u32 s{s_t3}, s{s_t3}, 4096")
    A.label("L_xw_done")
    stamp(A, 2)
    call_kchan(A, 1, f"s_mov_b32 s{s_ci}, s{s_w}", RA_OFF)
    A.c("-- gate finish (wave 1), flag 1, W2 warm-up tables, counter poll")
    A.e("s_barrier")
    A.e(f"v_mov_b32 v{vS}, 1")
    A.e(f"s_waitcnt vmcnt(1)" if False else "s_waitcnt vmcnt(0)")
    A.e(f"buffer_store_dword v{vS}, off, s[{sWS}:{sWS+3}], s{s_fi}{SC}")
    A.e(f"s_cmp_lg_u32 s{s_w}, 1")
    A.e("s_cbranch_scc1 L_gt_skip")
    A.e(f"v_and_b32 v{T}, 31, v1")
    A.e(f"v_lshlrev_b32 v{T}, 2, v{T}")
    A.e(f"v_add_u32 v{T+1}, {GSUM}, v{T}")
    A.e(f"ds_read2_b32 v[{T+2}:{T+3}], v{T+1} offset0:0 offset1:32")
    A.e(f"ds_read_b32 v{T+4}, v{T+1} offset:256")
    A.e(f"s_lshl_b32 s{s_t0}, s{s_upos}, 1")
    A.e(f"s_add_u32 s{s_t0}, s{s_t0}, {WS_GT}")
    A.e("s_waitcnt lgkmcnt(0)")
    A.e(f"v_add_f32 v{T+2}, v{T+2}, v{T+3}")
    A.e(f"v_add_f32 v{T+2}, v{T+2}, v{T+4}")
    A.e(f"v_mul_f32 v{T+2}, {fhex(-LOG2E)}, v{T+2}")
    A.e(f"v_exp_f32 v{T+2}, v{T+2}")
    A.e("s_nop 0")
    A.e(f"v_add_f32 v{T+2}, 1.0, v{T+2}")
    A.e(f"v_rcp_f32 v{T+2}, v{T+2}")
    A.e("s_nop 0")
    A.e(f"buffer_store_dword v{T+2}, v{T}, s[{sWS}:{sWS+3}], s{s_t0} offen{SC}")
    A.label("L_gt_skip")
    A.e(f"buffer_load_dword v{vPL+4}, off, s[{sDBG}:{sDBG+3}], 0{SC}")
    A.e(f"s_mov_b32 s{s_uok}, 2")
    call_kchan(A, 2, f"s_add_u32 s{s_ci}, s{s_w}, 4", RB_OFF)
    stamp(A, 3)

def utchk(A):
    A.e(f"s_cmp_eq_u32 s{s_uok}, 1")
    A.e("s_cbranch_scc1 L_uc3")
    A.e(f"s_mov_b32 s{s_t0}, 0x20000")
    A.e(f"s_mov_b32 s{s_t1}, {F_U}")
    A.e(f"v_mov_b32 v{vPL}, 0")
    A.label("L_uc1")
    A.e(f"v_min_u32 v{vPL}, v{vPL}, v{vPL+1}")
    A.e(f"v_min3_u32 v{vPL}, v{vPL}, v{vPL+2}, v{vPL+3}")
    A.e(f"v_cmp_gt_u32 vcc, 1, v{vPL}")
    A.e(f"v_cmp_gt_u32 s[76:77], v{vPL+6}, v{vPL+4}")
    A.e("s_or_b64 vcc, vcc, s[76:77]")
    A.e("s_cbranch_scc0 L_uc3")
    A.e(f"s_sub_u32 s{s_t0}, s{s_t0}, 1")
    A.e("s_cbranch_scc1 L_uc3")
    A.e(f"buffer_load_dword v{vPL+4}, off, s[{sDBG}:{sDBG+3}], 0{SC}")
    A.e("s_waitcnt vmcnt(0)")
    A.e(f"buffer_load_dwordx4 v[{vPL}:{vPL+3}], v{vPL+5}, s[{sWS}:{sWS+3}], s{s_t1} offen{SC}")
    A.e("s_waitcnt vmcnt(0)")
    A.e("s_branch L_uc1")
    A.label("L_uc3")

def tables(A):
    A.raw(".p2align 4")
    A.label("L_atab")
    A.raw(".long " + ", ".join(str(x) for x in a_table()))
```

```python
import sys, os
from common import *
import p1f, big2
import conv5 as convf
import kc4
from p1f import *

def fused():
    A = Asm()
    K = NAME + "_kernel"
    A.raw(kernel_head(K))
    stamp(A, 0)
    if 'probe' in EXP: A.e("s_memrealtime s[86:87]")
    A.e("s_cmp_ge_u32 s2, 256")
    A.e("s_cbranch_scc1 L_end")
    for r, n in ((sX, "u"), (p_w1, "w1"), (sWS, "ws"), (sW2, "w2"), (sDBG, "dbg")):
        A.e(f"s_load_dwordx2 s[{r}:{r+1}], s[0:1], {KA[n]}")
    if 'nocpf' not in EXP:
        A.e(f"s_getpc_b64 s[{s_ret}:{s_ret+1}]")
        A.label("L_cpf_pc")
        A.e("v_lshrrev_b32 v2, 6, v0")
        A.e("s_lshr_b32 s3, s2, 3")
        A.e("s_lshl_b32 s3, s3, 2")
        A.e("v_add_u32 v2, s3, v2")
        A.e("v_and_b32 v2, 7, v2")
        A.e("v_lshlrev_b32 v2, 13, v2")
        A.e("v_and_b32 v3, 63, v0")
        A.e("v_lshl_add_u32 v2, v3, 7, v2")
        A.e("v_min_u32 v2, L_codeend-L_cpf_pc-4, v2")
        A.e("v_and_b32 v2, -4, v2")
        A.vmem(f"global_load_dword a255, v2, s[{s_ret}:{s_ret+1}]", "cpf")
    setup_common(A)
    A.e(f"v_mov_b32 v{vS}, 0")
    A.e("s_waitcnt lgkmcnt(0)")
    for r, n in ((sX, L_*D_*2), (sWS, WS_BYTES), (sW2, D_*F_*2), (sDBG, 256)):
        A.e(f"s_mov_b32 s{r+2}, {hex(n)}"); A.e(f"s_mov_b32 s{r+3}, 0x00020000")
    if 'wsend' in EXP:
        A.e(f"s_add_u32 s{sWS}, s{sWS}, {WS_BYTES - 0x2A00000}"); A.e(f"s_addc_u32 s{sWS+1}, s{sWS+1}, 0"); A.e(f"s_mov_b32 s{sWS+2}, 0x2A00000")
    A.e(f"s_mov_b32 s{p_ws}, s{sWS}"); A.e(f"s_mov_b32 s{p_ws+1}, s{sWS+1}")
    A.e(f"s_cmp_eq_u32 s{s_r}, 3")
    A.e("s_cbranch_scc1 L_conv")
    A.e(f"s_load_dwordx2 s[{sT0}:{sT0+1}], s[0:1], {KA['b1']}")
    A.e(f"s_load_dwordx2 s[{sT1}:{sT1+1}], s[0:1], {KA['out']}")
    big2.p1_setup(A)
    A.e(f"s_add_u32 s{sW1}, s{p_w1}, s{s_so}")
    A.e(f"s_addc_u32 s{sW1+1}, s{p_w1+1}, 0")
    A.e(f"s_mov_b32 s{sT0+2}, {F_*2}"); A.e(f"s_mov_b32 s{sT0+3}, 0x00020000")
    A.e(f"s_mov_b32 s{sT1+2}, {L_*D_*2}"); A.e(f"s_mov_b32 s{sT1+3}, 0x00020000")
    A.e("s_waitcnt lgkmcnt(0)")
    if 'tst' not in EXP: stamp(A, 1)
    ctx = big2.p1(A)
    big2.p2(A, *ctx)
    big2.tail(A, ctx[0])
    if 'probe' in EXP:
        A.e("s_cmp_lg_u32 s2, 0")
        A.e("s_cbranch_scc1 L_prb2")
        A.e(f"buffer_load_dwordx2 v[2:3], off, s[{sDBG}:{sDBG+3}], 0 offset:128 sc1")
        A.e("s_memrealtime s[88:89]")
        A.e("s_waitcnt vmcnt(0) lgkmcnt(0)")
        A.e("v_not_b32 v3, v3"); A.e("v_sub_u32 v2, v2, v3"); A.e("s_nop 1")
        A.e("v_readfirstlane_b32 s90, v2")
        A.e("s_min_u32 s90, s90, 2000")
        A.e("s_mul_i32 s90, s90, 10")
        A.e(f"buffer_store_dword v2, off, s[{sDBG}:{sDBG+3}], 0 offset:4")
        A.label("L_prb3")
        A.e("s_memrealtime s[92:93]"); A.e("s_waitcnt lgkmcnt(0)")
        A.e("s_sub_u32 s91, s92, s88"); A.e("s_cmp_lt_u32 s91, s90"); A.e("s_cbranch_scc1 L_prb3")
        A.label("L_prb2")
    if STAMPS:
        A.wait_all()
        if 'p1st' not in EXP: stamp(A, 7)
        stamp_flush(A)
    A.e("s_endpgm")
    A.label("L_conv")
    A.vm = ["cpf"]; A.lg = []
    if 'probe' in EXP:
        A.e(f"s_cmp_lg_u32 s{s_w}, 3")
        A.e("s_cbranch_scc1 L_prb")
        A.e("s_mov_b64 exec, 1")
        A.e("v_mov_b32 v2, s86"); A.e("v_not_b32 v3, v2")
        A.e(f"buffer_atomic_umax v2, off, s[{sDBG}:{sDBG+3}], 0 offset:128 sc1")
        A.e(f"buffer_atomic_umax v3, off, s[{sDBG}:{sDBG+3}], 0 offset:132 sc1")
        A.e("s_mov_b64 exec, -1")
        A.label("L_prb")
    A.e(f"s_and_b32 s{s_t0}, s{s_fi}, 0xffffff80")
    A.e("v_lshrrev_b32 v2, 4, v1")
    A.e("v_lshlrev_b32 v2, 13, v2")
    A.e("v_and_b32 v3, 15, v1")
    A.e("v_lshl_add_u32 v2, v3, 2, v2")
    A.e(f"v_add_u32 v2, s{s_t0}, v2")
    A.e(f"s_mul_i32 s{s_t0}, s{s_m}, 12")
    A.e(f"s_add_u32 s{s_t0}, s{s_t0}, s{s_kq}")
    A.e(f"s_lshl_b32 s{s_t0}, s{s_t0}, 7")
    A.e(f"s_add_u32 s{s_t0}, s{s_t0}, {F_P}")
    A.e("v_min_u32 v3, 11, v3")
    A.e("v_lshrrev_b32 v4, 2, v3")
    A.e("v_lshlrev_b32 v4, 9, v4")
    A.e("v_and_b32 v3, 3, v3")
    A.e("v_lshl_add_u32 v3, v3, 2, v4")
    A.e("v_cmp_gt_u32 vcc, 48, v1")
    A.e(f"v_add_u32 v3, s{s_t0}, v3")
    A.e(f"s_cmp_lg_u32 s{s_w}, 0")
    A.e("v_cndmask_b32 v2, v3, v2, vcc")
    A.e("s_cbranch_scc1 L_nz")
    A.e(f"buffer_store_dword v{vS}, v2, s[{sWS}:{sWS+3}], 0 offen{SC}")
    A.label("L_nz")
    A.e(f"s_lshr_b32 s{s_fi}, s{s_fi}, 7")
    A.e(f"s_and_b32 s{s_fi}, s{s_fi}, 63")
    A.e(f"s_lshl_b32 s{s_fi}, s{s_fi}, 2")
    A.e(f"s_add_u32 s{s_fi}, s{s_fi}, s{s_w}")
    A.e(f"s_lshl_b32 s{s_fi}, s{s_fi}, 2")
    A.e(f"s_add_u32 s{s_fi}, s{s_fi}, {F_U}")
    A.e(f"s_cmp_lg_u32 s{s_w}, 0")
    A.e("s_cbranch_scc1 L_nz3")
    A.e("v_and_b32 v2, 4, v1")
    A.e("v_lshlrev_b32 v2, 10, v2")
    A.e("v_and_b32 v3, 3, v1")
    A.e("v_lshl_add_u32 v2, v3, 2, v2")
    A.e(f"buffer_store_dword v{vS}, v2, s[{sWS}:{sWS+3}], s{s_fi} offen{SC}")
    A.label("L_nz3")
    if 'noconv' in EXP: A.e("s_endpgm")
    kc4.kgen_all(A)
    if 'kgonly' in EXP:
        stamp(A, 7); stamp_flush(A); A.e("s_endpgm")
    if 'ramp' in EXP: A.e("s_endpgm")
    if 'kgst' in EXP:
        stamp(A, 7); stamp_flush(A); A.e("s_endpgm")
    convf.conv_all(A, ldflag=SC, stflag=SC)
    A.e(f"v_mov_b32 v{vS}, 1")
    A.e(f"s_add_u32 s{s_fi}, s{s_fi}, 4096")
    A.e("s_waitcnt vmcnt(0)")
    A.e(f"buffer_store_dword v{vS}, off, s[{sWS}:{sWS+3}], s{s_fi}{SC}")
    A.wait_all()
    stamp(A, 7)
    stamp_flush(A)
    A.label("L_end")
    A.e("s_endpgm")
    ut_sub(A, kc4.POOL[0])
    kc4.kchan_sub(A)
    big2.poll_sub(A)
    kc4.tables(A)
    A.label("L_codeend")
    return A.text(), KD.format(name=K, vgpr=512, accum=256)

HDR = open("cdna_kernels/" + NAME + ".s.ref").read().split("; Override launch")[0]
if __name__ == "__main__":
    t, kd = fused()
    s = HDR + f"; @launch grid=(256,1,1) block=(256,1,1) lds={LDS_BYTES}\n" + '.amdgcn_target "amdgcn-amd-amdhsa--gfx950"\n.text\n' + t + '.section .rodata,"a"\n.p2align 6\n' + kd
    open(sys.argv[1], "w").write(s)
```

```python
import sys, os
from common import *
import p1f, big2
import conv5 as convf
import kc4
from p1f import *

def fused():
    A = Asm()
    K = NAME + "_kernel"
    A.raw(kernel_head(K))
    stamp(A, 0)
    if 'probe' in EXP: A.e("s_memrealtime s[86:87]")
    A.e("s_cmp_ge_u32 s2, 256")
    A.e("s_cbranch_scc1 L_end")
    for r, n in ((sX, "u"), (p_w1, "w1"), (sWS, "ws"), (sW2, "w2"), (sDBG, "dbg")):
        A.e(f"s_load_dwordx2 s[{r}:{r+1}], s[0:1], {KA[n]}")
    if 'nocpf' not in EXP:
        A.e(f"s_getpc_b64 s[{s_ret}:{s_ret+1}]")
        A.label("L_cpf_pc")
        A.e("v_lshrrev_b32 v2, 6, v0")
        A.e("s_lshr_b32 s3, s2, 3")
        A.e("s_lshl_b32 s3, s3, 2")
        A.e("v_add_u32 v2, s3, v2")
        A.e("v_and_b32 v2, 7, v2")
        A.e("v_lshlrev_b32 v2, 13, v2")
        A.e("v_and_b32 v3, 63, v0")
        A.e("v_lshl_add_u32 v2, v3, 7, v2")
        A.e("v_min_u32 v2, L_codeend-L_cpf_pc-4, v2")
        A.e("v_and_b32 v2, -4, v2")
        A.vmem(f"global_load_dword a255, v2, s[{s_ret}:{s_ret+1}]", "cpf")
    setup_common(A)
    A.e(f"v_mov_b32 v{vS}, 0")
    A.e("s_waitcnt lgkmcnt(0)")
    for r, n in ((sX, L_*D_*2), (sWS, WS_BYTES), (sW2, D_*F_*2), (sDBG, 256)):
        A.e(f"s_mov_b32 s{r+2}, {hex(n)}"); A.e(f"s_mov_b32 s{r+3}, 0x00020000")
    if 'wsend' in EXP:
        A.e(f"s_add_u32 s{sWS}, s{sWS}, {WS_BYTES - 0x2A00000}"); A.e(f"s_addc_u32 s{sWS+1}, s{sWS+1}, 0"); A.e(f"s_mov_b32 s{sWS+2}, 0x2A00000")
    A.e(f"s_mov_b32 s{p_ws}, s{sWS}"); A.e(f"s_mov_b32 s{p_ws+1}, s{sWS+1}")
    A.e(f"s_cmp_eq_u32 s{s_r}, 3")
    A.e("s_cbranch_scc1 L_conv")
    A.e(f"s_load_dwordx2 s[{sT0}:{sT0+1}], s[0:1], {KA['b1']}")
    A.e(f"s_load_dwordx2 s[{sT1}:{sT1+1}], s[0:1], {KA['out']}")
    big2.p1_setup(A)
    A.e(f"s_add_u32 s{sW1}, s{p_w1}, s{s_so}")
    A.e(f"s_addc_u32 s{sW1+1}, s{p_w1+1}, 0")
    A.e(f"s_mov_b32 s{sT0+2}, {F_*2}"); A.e(f"s_mov_b32 s{sT0+3}, 0x00020000")
    A.e(f"s_mov_b32 s{sT1+2}, {L_*D_*2}"); A.e(f"s_mov_b32 s{sT1+3}, 0x00020000")
    A.e("s_waitcnt lgkmcnt(0)")
    if 'tst' not in EXP: stamp(A, 1)
    ctx = big2.p1(A)
    big2.p2(A, *ctx)
    big2.tail(A, ctx[0])
    if 'probe' in EXP:
        A.e("s_cmp_lg_u32 s2, 0")
        A.e("s_cbranch_scc1 L_prb2")
        A.e(f"buffer_load_dwordx2 v[2:3], off, s[{sDBG}:{sDBG+3}], 0 offset:128 sc1")
        A.e("s_memrealtime s[88:89]")
        A.e("s_waitcnt vmcnt(0) lgkmcnt(0)")
        A.e("v_not_b32 v3, v3")
        PS = int(os.environ.get("PS", -1))
        if PS >= 0: A.e(f"v_mov_b32 v2, s{88 if PS == 9 else 94}")
        A.e("v_sub_u32 v2, v2, v3"); A.e("s_nop 1")
        A.e("v_readfirstlane_b32 s90, v2")
        A.e("s_min_u32 s90, s90, 5000")
        A.e(f"s_mul_i32 s90, s90, {10 if PS < 0 else 4}")
        A.e(f"buffer_store_dword v2, off, s[{sDBG}:{sDBG+3}], 0 offset:4")
        A.label("L_prb3")
        A.e("s_memrealtime s[92:93]"); A.e("s_waitcnt lgkmcnt(0)")
        A.e("s_sub_u32 s91, s92, s88"); A.e("s_cmp_lt_u32 s91, s90"); A.e("s_cbranch_scc1 L_prb3")
        A.label("L_prb2")
    if STAMPS:
        A.wait_all()
        if 'p1st' not in EXP: stamp(A, 7)
        stamp_flush(A)
    A.e("s_endpgm")
    A.label("L_conv")
    A.vm = ["cpf"]; A.lg = []
    if 'probe' in EXP:
        A.e(f"s_cmp_lg_u32 s{s_w}, 3")
        A.e("s_cbranch_scc1 L_prb")
        A.e("s_mov_b64 exec, 1")
        A.e("v_mov_b32 v2, s86"); A.e("v_not_b32 v3, v2")
        A.e(f"buffer_atomic_umax v2, off, s[{sDBG}:{sDBG+3}], 0 offset:128 sc1")
        A.e(f"buffer_atomic_umax v3, off, s[{sDBG}:{sDBG+3}], 0 offset:132 sc1")
        A.e("s_mov_b64 exec, -1")
        A.label("L_prb")
    A.e(f"s_and_b32 s{s_t0}, s{s_fi}, 0xffffff80")
    A.e("v_lshrrev_b32 v2, 4, v1")
    A.e("v_lshlrev_b32 v2, 13, v2")
    A.e("v_and_b32 v3, 15, v1")
    A.e("v_lshl_add_u32 v2, v3, 2, v2")
    A.e(f"v_add_u32 v2, s{s_t0}, v2")
    A.e(f"s_mul_i32 s{s_t0}, s{s_m}, 12")
    A.e(f"s_add_u32 s{s_t0}, s{s_t0}, s{s_kq}")
    A.e(f"s_lshl_b32 s{s_t0}, s{s_t0}, 7")
    A.e(f"s_add_u32 s{s_t0}, s{s_t0}, {F_P}")
    A.e("v_min_u32 v3, 11, v3")
    A.e("v_lshrrev_b32 v4, 2, v3")
    A.e("v_lshlrev_b32 v4, 9, v4")
    A.e("v_and_b32 v3, 3, v3")
    A.e("v_lshl_add_u32 v3, v3, 2, v4")
    A.e("v_cmp_gt_u32 vcc, 48, v1")
    A.e(f"v_add_u32 v3, s{s_t0}, v3")
    A.e(f"s_cmp_lg_u32 s{s_w}, 0")
    A.e("v_cndmask_b32 v2, v3, v2, vcc")
    A.e("s_cbranch_scc1 L_nz")
    A.e(f"buffer_store_dword v{vS}, v2, s[{sWS}:{sWS+3}], 0 offen{SC}")
    A.label("L_nz")
    A.e(f"s_lshr_b32 s{s_fi}, s{s_fi}, 7")
    A.e(f"s_and_b32 s{s_fi}, s{s_fi}, 63")
    A.e(f"s_lshl_b32 s{s_fi}, s{s_fi}, 2")
    A.e(f"s_add_u32 s{s_fi}, s{s_fi}, s{s_w}")
    A.e(f"s_lshl_b32 s{s_fi}, s{s_fi}, 2")
    A.e(f"s_add_u32 s{s_fi}, s{s_fi}, {F_U}")
    A.e(f"s_cmp_lg_u32 s{s_w}, 0")
    A.e("s_cbranch_scc1 L_nz3")
    A.e("v_and_b32 v2, 4, v1")
    A.e("v_lshlrev_b32 v2, 10, v2")
    A.e("v_and_b32 v3, 3, v1")
    A.e("v_lshl_add_u32 v2, v3, 2, v2")
    A.e(f"buffer_store_dword v{vS}, v2, s[{sWS}:{sWS+3}], s{s_fi} offen{SC}")
    A.label("L_nz3")
    if 'noconv' in EXP: A.e("s_endpgm")
    kc4.kgen_all(A)
    if 'kgonly' in EXP:
        stamp(A, 7); stamp_flush(A); A.e("s_endpgm")
    if 'ramp' in EXP: A.e("s_endpgm")
    if 'kgst' in EXP:
        stamp(A, 7); stamp_flush(A); A.e("s_endpgm")
    convf.conv_all(A, ldflag=SC, stflag=SC)
    A.e(f"v_mov_b32 v{vS}, 1")
    A.e(f"s_add_u32 s{s_fi}, s{s_fi}, 4096")
    A.e("s_waitcnt vmcnt(0)")
    A.e(f"buffer_store_dword v{vS}, off, s[{sWS}:{sWS+3}], s{s_fi}{SC}")
    A.wait_all()
    stamp(A, 7)
    stamp_flush(A)
    A.label("L_end")
    A.e("s_endpgm")
    ut_sub(A, kc4.POOL[0])
    kc4.kchan_sub(A)
    big2.poll_sub(A)
    kc4.tables(A)
    A.label("L_codeend")
    return A.text(), KD.format(name=K, vgpr=512, accum=256)

HDR = open("cdna_kernels/" + NAME + ".s.ref").read().split("; Override launch")[0]
if __name__ == "__main__":
    t, kd = fused()
    s = HDR + f"; @launch grid=(256,1,1) block=(256,1,1) lds={LDS_BYTES}\n" + '.amdgcn_target "amdgcn-amd-amdhsa--gfx950"\n.text\n' + t + '.section .rodata,"a"\n.p2align 6\n' + kd
    open(sys.argv[1], "w").write(s)
```

```python
from common import *
from p1f import Ring, setup_common, counter_arrive, ut_sub
vXD, vXR, vWD, vAR, vBI, vL16, vS, vEW, vER, vW2D, vA2 = 2, 4, 8, 10, 13, 17, 31, 15, 16, 18, 24
ACC, TMP, BIAS, MT, HS = 32, 64, 96, 128, 144
ARING = [112, 116, 120, 124, 140]
EX = 6*SLOT
M_BIAS = MISC
M_FL = MISC + 2048
s_sl, s_hs, s_rr, s_pb, s_need, s_lane, s_val, s_w2l, s_fp, s_yd = 66, 70, 79, 82, 83, 84, 85, 3, 74, 75
vFL, vFA, TMP2, vFC = vXD, vXD + 1, vXR, vXR + 2
vCN = vFC + 1
vSA, vSR, vSV = 14, 0, 30
SBAR = MISC + 4096
SOFT = 'softbar' in EXP
class Soft:
    n = 0
def sb_arrive(A):
    Soft.n += 1
    A.e(f"v_mov_b32 v{vS}, {Soft.n}")
    A.ds(f"ds_write_b32 v{vSA}, v{vS}", "sbw")
def sb_read(A): A.ds(f"ds_read_b32 v{vSV}, v{vSR}", "sbr")
def sb_check(A):
    l1, l2 = A.newlabel("L_sb"), A.newlabel("L_sbs")
    A.wait_lg("sbr")
    A.e(f"v_cmp_gt_u32 vcc, {Soft.n}, v{vSV}")
    A.e(f"s_cbranch_vccnz {l2}")
    A.label(l1)
    A.slow.append((l2, l1, Soft.n))
def sb_slow(A):
    for l2, l1, n in A.slow:
        A.label(l2)
        A.e(f"ds_read_b32 v{vSV}, v{vSR}")
        A.e("s_waitcnt lgkmcnt(0)")
        A.e(f"v_cmp_gt_u32 vcc, {n}, v{vSV}")
        A.e(f"s_cbranch_vccnz {l2}")
        A.e(f"s_branch {l1}")
G0 = 18
AOFF = 0 if 'single0' in EXP else 36
PB0 = int(os.environ.get('PB0', 10))
PB1 = int(os.environ.get('PB1', 0))
N0 = int(os.environ.get('N0', 3))
N2 = int(os.environ.get('N2', 6))
P0V = int(os.environ.get('P0V', 1))
FLUSH = int(os.environ.get('FLUSH', 0))
def xreg(rb, s):
    if rb == 0: return f"a[{4*s}:{4*s+3}]"
    if s < 12: return f"a[{208+4*s}:{211+4*s}]"
    if s < 28: return f"a[{144+4*(s-12)}:{147+4*(s-12)}]"
    return f"v[{224+4*(s-28)}:{227+4*(s-28)}]"
def hs(pi): return HS + 64 if pi == 0 else HS + 16*(pi - 1)

def rw_entries(A, lo, hi):
    for kl in range(lo, hi):
        A.e(f"s_mul_i32 s{s_rw+kl}, s{s_rho}, {64*9216}")
        if kl < 8:
            A.e(f"s_add_u32 s{s_rho}, s{s_rho}, 1")
            A.e(f"s_cmp_eq_u32 s{s_rho}, 9")
            A.e(f"s_cselect_b32 s{s_rho}, 0, s{s_rho}")
def prologue(A):
    T = MT
    if 'cpf0' in EXP:
        A.e(f"s_getpc_b64 s[{s_ret}:{s_ret+1}]")
        A.e("v_lshlrev_b32 v2, 7, v0")
        A.e("v_and_b32 v2, 0x1fff, v2")
        A.vmem(f"global_load_dword v{HS}, v2, s[{s_ret}:{s_ret+1}]", "cpf")
    for r, n in ((sX, "u"), (sW1, "w1"), (sT0, "b1"), (sWS, "ws"), (sW2, "w2"), (sDBG, "dbg"), (sT1, "out")):
        A.e(f"s_load_dwordx2 s[{r}:{r+1}], s[0:1], {KA[n]}")
    A.e("v_lshrrev_b32 v2, 6, v0")
    A.e("v_and_b32 v1, 63, v0")
    A.e("s_and_b32 s3, s2, 7")
    A.e(f"v_readfirstlane_b32 s{s_w}, v2")
    A.e(f"s_lshr_b32 s{s_kq}, s3, 1")
    A.e("s_and_b32 s3, s3, 1")
    A.e("s_lshl_b32 s3, s3, 3")
    A.e(f"s_lshr_b32 s{s_m7}, s2, 5")
    A.e(f"s_add_u32 s{s_m}, s{s_m7}, s3")
    A.e(f"s_mul_i32 s{s_rho}, s{s_r}, 3")
    A.e(f"s_add_u32 s{s_rho}, s{s_rho}, s{s_m7}")
    mod_small(A, s_rho, s_rho, 9)
    rw_entries(A, 0, 2)
    A.e(f"s_mul_i32 s{s_t2}, s{s_kq}, 2304")
    A.e(f"s_mul_i32 s{s_t1}, s{s_r}, 768")
    A.e(f"s_add_u32 s{s_t2}, s{s_t2}, s{s_t1}")
    A.e(f"s_lshl_b32 s{s_wl}, s{s_w}, 11")
    A.e(f"s_mul_i32 s{s_pc}, s{s_w}, 20480")
    A.e(f"v_lshrrev_b32 v{T}, 3, v1")
    A.e(f"v_and_b32 v{T+1}, 7, v1")
    A.e(f"s_lshl_b32 s{s_t0}, s{s_m}, 7")
    A.e(f"s_lshl_b32 s{s_t1}, s{s_w}, 5")
    A.e(f"s_add_u32 s{s_t0}, s{s_t0}, s{s_t1}")
    A.e(f"v_add_u32 v{T+2}, s{s_t0}, v{T}")
    A.e(f"v_mul_u32_u24 v{T+2}, 1152, v{T+2}")
    A.e(f"v_lshrrev_b32 v{T+3}, 1, v{T}")
    A.e(f"v_xor_b32 v{T+3}, v{T+3}, v{T+1}")
    A.e(f"v_lshl_add_u32 v{vXD}, v{T+3}, 4, v{T+2}")
    A.e(f"v_xor_b32 v{vXD+1}, 64, v{vXD}")
    A.e(f"v_add_u32 v{vXD+1}, 8192, v{vXD+1}")
    A.e(f"s_lshl_b32 s{s_t0}, s{s_w}, 4")
    A.e(f"v_add_u32 v{T+2}, s{s_t0}, v{T}")
    A.e(f"v_mul_u32_u24 v{T+2}, 9216, v{T+2}")
    A.e(f"v_lshlrev_b32 v{T+3}, 1, v{T}")
    A.e(f"v_and_b32 v{T+3}, 4, v{T+3}")
    A.e(f"v_xor_b32 v{T+3}, v{T+3}, v{T+1}")
    A.e(f"v_lshl_add_u32 v{vWD}, v{T+3}, 4, v{T+2}")
    A.e(f"v_add_u32 v{vWD+1}, {8*9216 - 1024}, v{vWD}")
    A.e(f"v_lshlrev_b32 v{MT+2}, 1, v0")
    for r, n in ((sX, L_*D_*2), (sW1, 575*9216 + 256), (sT0, F_*2)):
        A.e(f"s_mov_b32 s{r+2}, {hex(n)}"); A.e(f"s_mov_b32 s{r+3}, 0x00020000")
    A.e("s_waitcnt lgkmcnt(0)")
    A.e(f"s_add_u32 s{sW1}, s{sW1}, s{s_t2}")
    A.e(f"s_addc_u32 s{sW1+1}, s{sW1+1}, 0")

def setup2(A):
    T = MT + 4
    rw_entries(A, 2, 9)
    for r, n in ((sWS, WS_BYTES), (sW2, D_*F_*2), (sDBG, 256), (sT1, L_*D_*2)):
        A.e(f"s_mov_b32 s{r+2}, {hex(n)}"); A.e(f"s_mov_b32 s{r+3}, 0x00020000")
    A.e(f"v_lshlrev_b32 v{vL16}, 4, v1")
    A.e(f"s_lshl_b32 s{s_t0}, s{s_m}, 2")
    A.e(f"s_add_u32 s{s_t0}, s{s_t0}, s{s_kq}")
    A.e(f"s_lshl_b32 s{s_hb}, s{s_t0}, 2")
    A.e(f"s_lshl_b32 s{s_fi}, s{s_t0}, 3")
    A.e(f"s_add_u32 s{s_fi}, s{s_fi}, s{s_r}")
    A.e(f"s_lshl_b32 s{s_fi}, s{s_fi}, 2")
    A.e(f"s_add_u32 s{s_fi}, s{s_fi}, s{s_w}")
    A.e(f"s_lshl_b32 s{s_fi}, s{s_fi}, 2")
    A.e(f"s_add_u32 s{s_fi}, s{s_fi}, {WS_F}")
    A.e(f"s_add_u32 s{s_hb}, s{s_hb}, s{s_w}")
    A.e(f"s_mul_i32 s{s_hb}, s{s_hb}, 73728")
    A.e(f"s_mul_i32 s{s_t0}, s{s_r}, 24576")
    A.e(f"s_add_u32 s{s_hb}, s{s_hb}, s{s_t0}")
    A.e(f"s_mov_b32 s{s_log2e}, {fhex(LOG2E)}")
    A.e(f"v_and_b32 v{T}, 31, v1")
    A.e(f"v_lshrrev_b32 v{T+1}, 5, v1")
    A.e(f"v_lshrrev_b32 v{T+2}, 1, v{T}")
    A.e(f"v_and_b32 v{T+2}, 7, v{T+2}")
    A.e(f"v_xor_b32 v{T+2}, v{T+2}, v{T+1}")
    A.e(f"s_lshr_b32 s{s_t0}, s{s_w}, 1")
    A.e(f"s_mul_i32 s{s_t0}, s{s_t0}, 40960")
    A.e(f"s_add_u32 s{s_t0}, s{s_t0}, {XRING}")
    A.e(f"v_lshlrev_b32 v{T+3}, 7, v{T}")
    A.e(f"v_add_u32 v{T+3}, s{s_t0}, v{T+3}")
    for ks in range(4):
        A.e(f"v_xor_b32 v{T+4}, {2*ks}, v{T+2}")
        A.e(f"v_lshl_add_u32 v{vXR+ks}, v{T+4}, 4, v{T+3}")
    A.e(f"s_and_b32 s{s_t1}, s{s_w}, 1")
    A.e(f"s_lshl_b32 s{s_t0}, s{s_t1}, 7")
    A.e(f"s_add_u32 s{s_t0}, s{s_t0}, {M_BIAS}")
    A.e(f"v_lshlrev_b32 v{vBI}, 4, v{T+1}")
    A.e(f"v_add_u32 v{vBI}, s{s_t0}, v{vBI}")
    A.e(f"v_lshrrev_b32 v{T}, 2, v1")
    A.e(f"v_and_b32 v{T}, 3, v{T}")
    A.e(f"v_lshl_add_u32 v{T+2}, v{T+1}, 3, v{T}")
    A.e(f"v_lshlrev_b32 v{T+2}, 7, v{T+2}")
    A.e(f"v_lshrrev_b32 v{T+3}, 1, v{T}")
    A.e(f"v_xor_b32 v{T+3}, s{s_t1}, v{T+3}")
    A.e(f"v_lshl_add_u32 v{T+2}, v{T+3}, 6, v{T+2}")
    A.e(f"v_lshrrev_b32 v{T+3}, 4, v1")
    A.e(f"v_and_b32 v{T+3}, 1, v{T+3}")
    A.e(f"v_lshl_add_u32 v{T+2}, v{T+3}, 5, v{T+2}")
    A.e(f"v_and_b32 v{T+4}, 3, v1")
    A.e(f"v_lshl_add_u32 v{vAR}, v{T+4}, 3, v{T+2}")
    for j in (1, 2): A.e(f"v_add_u32 v{vAR+j}, {j*2*SLOT}, v{vAR}")
    A.e(f"s_add_u32 s{s_t0}, s{s_wl}, {EX}")
    A.e(f"v_add_u32 v{vEW}, s{s_t0}, v{vL16}")
    A.e(f"v_xor_b32 v{vER}, 2048, v{vEW}")
    A.e(f"v_lshl_add_u32 v{T+1}, v{T+1}, 2, v{T}")
    A.e(f"v_mul_u32_u24 v{T+1}, 384, v{T+1}")
    A.e(f"v_lshl_add_u32 v{T+1}, v{T+3}, 5, v{T+1}")
    A.e(f"v_lshl_add_u32 v{T+1}, v{T+4}, 3, v{T+1}")
    A.e(f"v_lshrrev_b32 v{T}, 1, v{T}")
    A.e(f"v_lshlrev_b32 v{T}, 6, v{T}")
    A.e(f"v_add_u32 v{vA2}, v{T+1}, v{T}")
    A.e(f"v_sub_u32 v{vA2+1}, v{T+1}, v{T}")
    for j in (1, 2):
        A.e(f"v_add_u32 v{vA2+2*j}, {j*2*SLOT}, v{vA2}")
        A.e(f"v_add_u32 v{vA2+2*j+1}, {j*2*SLOT}, v{vA2+1}")
    A.e(f"s_mul_i32 s{s_w2l}, s{s_w}, 6144")
    A.e(f"s_mul_i32 s{s_t0}, s{s_r}, 24576")
    A.e(f"s_sub_u32 s{s_t0}, s{s_hb}, s{s_t0}")
    A.e(f"s_mul_i32 s{s_t1}, s{s_kq}, {1152*1152}")
    A.e(f"s_mul_i32 s{s_t2}, s{s_r}, 384")
    A.e(f"s_add_u32 s{s_t1}, s{s_t1}, s{s_t2}")
    for idx in range(3):
        A.e(f"s_add_u32 s{s_t2}, s{s_r}, {idx}")
        mod_small(A, s_t2, s_t2, 3)
        if idx: A.e(f"s_mov_b32 s{s_rr+idx-1}, s{s_t2}")
        A.e(f"s_mul_i32 s{s_t3}, s{s_t2}, {384*1152}")
        A.e(f"s_add_u32 s{s_sl+idx}, s{s_t1}, s{s_t3}")
        A.e(f"s_mul_i32 s{s_t3}, s{s_t2}, 24576")
        A.e(f"s_add_u32 s{s_hs+idx}, s{s_t0}, s{s_t3}")
    A.e(f"s_mul_i32 s{s_t0}, s{s_w}, {16*1152}")
    for i3 in range(3):
        A.e(f"v_add_u32 v{T}, {64*i3}, v1")
        A.e(f"v_mul_u32_u24 v{T+1}, 2731, v{T}")
        A.e(f"v_lshrrev_b32 v{T+1}, 16, v{T+1}")
        A.e(f"v_mul_u32_u24 v{T+2}, 24, v{T+1}")
        A.e(f"v_sub_u32 v{T+2}, v{T}, v{T+2}")
        A.e(f"v_lshlrev_b32 v{T+3}, 1, v{T+1}")
        A.e(f"v_and_b32 v{T+3}, 4, v{T+3}")
        A.e(f"v_xor_b32 v{T+2}, v{T+2}, v{T+3}")
        A.e(f"v_mul_u32_u24 v{T+1}, 1152, v{T+1}")
        A.e(f"v_lshl_add_u32 v{T+1}, v{T+2}, 4, v{T+1}")
        A.e(f"v_add_u32 v{T+1}, s{s_t0}, v{T+1}")
        for g in range(2):
            i = 3*g + i3
            A.e(f"v_add_u32 v{vW2D+i}, {hex((g*8*1152 - (i&3)*1024) & 0xffffffff)}, v{T+1}")
    A.e(f"s_mul_i32 s{s_fp}, s{s_m}, 3")
    A.e(f"s_add_u32 s{s_fp}, s{s_fp}, s{s_r}")
    A.e(f"s_lshl_b32 s{s_pb}, s{s_fp}, 2")
    A.e(f"s_add_u32 s{s_fp}, s{s_pb}, s{s_w}")
    A.e(f"s_lshl_b32 s{s_fp}, s{s_fp}, 5")
    A.e(f"s_add_u32 s{s_fp}, s{s_fp}, s{s_kq}")
    A.e(f"s_lshl_b32 s{s_fp}, s{s_fp}, 2")
    A.e(f"s_add_u32 s{s_fp}, s{s_fp}, {F_P}")

def x_dma_ops(kl):
    m = Op(f"s_add_u32 m0, s{s_pc}, {XRING + (kl % 5)*4096}", kind="salu")
    s1 = Op(f"s_mul_hi_u32 s{s_so}, s{s_rw+kl}, {-(-(1 << 32)//4608)}", kind="salu")
    o = [m, s1]
    for i in range(4):
        if i == 2: o.append(Op(f"s_add_u32 s{s_so}, s{s_so}, 16384", kind="salu"))
        o.append(Op(f"buffer_load_dwordx4 v{vXD+(i&1)}, s[{sX}:{sX+3}], s{s_so} offen offset:{i*1024} lds", kind="vmem", tag=f"x{kl}", deps=[(m, 2)]))
    return o
def x_read(A, kl):
    for rb in range(2):
        for ks in range(4):
            A.ds(f"ds_read_b128 {xreg(rb, 4*kl+ks)}, v{vXR+ks} offset:{rb*20480 + (kl % 5)*4096}", f"xr{kl}")
def w1_line_ops(st, j, slot):
    kl = 3*(st % 3) + j
    m = Op(f"s_add_u32 m0, s{s_wl}, {slot*SLOT + j*8192}", kind="salu")
    return [m] + [Op(f"buffer_load_dwordx4 v{vWD+i}, s[{sW1}:{sW1+3}], s{s_rw+kl} offen offset:{i*1024} lds", kind="vmem", tag=(f"W{kl}" if st < 3 else f"st{st}"), deps=[(m, 2)]) for i in range(2)]
def w1_dma_ops(st, slot):
    o = []
    if st % 3 == 0: o.append(Op(f"s_add_u32 s{sW1}, s{sW1}, {256 if (st == 6 and 'single0' not in EXP) else 128}\n    s_addc_u32 s{sW1+1}, s{sW1+1}, 0", kind="salu", cost=8))
    for j in range(3): o += w1_line_ops(st, j, slot)
    return o
FIRST = ("x0", "W0", "x1", "W1", "x2", "W2", "x3", "W3", "x4", "W4")
def first_ops(k):
    n = int(k[1])
    return x_dma_ops(n) if k[0] == "x" else w1_line_ops(n // 3, n % 3, n // 3)

def mish_ops(pi, done_pos, TMP=TMP, prev=None):
    ops = []; G = []
    for grp in range(16):
        rb = grp // 8
        es = [2*grp, 2*grp + 1]
        tb = MT + (grp % 3)*4
        m = [Op(f"v_mul_f32 v{tb+2*i}, s{s_log2e}, v{TMP+e}", deps=[(done_pos[rb], 13)]) for i, e in enumerate(es)]
        x = [Op(f"v_exp_f32 v{tb+2*i}, v{tb+2*i}", cost=8, trans=True, deps=[(m[i], 1)]) for i in range(2)]
        p = [Op(f"v_fma_f32 v{tb+2*i+1}, v{tb+2*i}, -0.5, -1.0", deps=[(x[i], 2)]) for i in range(2)]
        d = [Op(f"v_fma_f32 v{tb+2*i+1}, v{tb+2*i}, v{tb+2*i+1}, -1.0", deps=[(p[i], 1)]) for i in range(2)]
        r = [Op(f"v_rcp_f32 v{tb+2*i+1}, v{tb+2*i+1}", cost=8, trans=True, deps=[(d[i], 1)]) for i in range(2)]
        y = [Op(f"v_fmac_f32 v{TMP+e}, v{TMP+e}, v{tb+2*i+1}", deps=[(r[i], 2)]) for i, e in enumerate(es)]
        c = Op(f"v_cvt_pk_bf16_f32 v{hs(pi)+grp}, v{TMP+es[0]}, v{TMP+es[1]}", deps=[(y[0], 1), (y[1], 1)])
        Gp = G[grp-3] if grp >= 3 else (prev[13 + (grp + 2) % 3] if prev else None)
        if Gp:
            for i in range(2):
                m[i].deps.append((Gp[0][i], 1)); p[i].deps.append((Gp[1][i], 1))
        G.append((d, y))
        ops += m + x + p + d + r + y + [c]
    mish_ops.G = G
    return ops
def ex_block(A, pi, send):
    l1, l2 = A.newlabel("L_ex"), A.newlabel("L_exe")
    A.e(f"s_bitcmp1_b32 s{s_w}, 0")
    A.e(f"s_cbranch_scc1 {l1}")
    for par in range(2):
        b = hs(pi) + (8 if par == 0 else 0)
        for k in range(2):
            t = (f"ds_write_b128 v{vEW}, v[{b+4*k}:{b+4*k+3}] offset:{1024*k}" if send else f"ds_read_b128 v[{b+4*k}:{b+4*k+3}], v{vER} offset:{1024*k}")
            if par == 0: A.ds(t, f"ex{'s' if send else 'r'}{pi}")
            else: A.e(t)
        if par == 0:
            A.e(f"s_branch {l2}"); A.label(l1)
    A.label(l2)
def h_store_ops(pi):
    o = [Op(f"buffer_store_dwordx4 v[{hs(pi)+4*q}:{hs(pi)+4*q+3}], v{vL16}, s[{sWS}:{sWS+3}], s{s_hb} offen offset:{q*1024}{SC}", kind="vmem", tag=f"h{pi}") for q in range(4)]
    o.append(Op(f"s_add_u32 s{s_hb}, s{s_hb}, 4096", kind="salu"))
    return o
def reread_ops(pi, n):
    if 'rr' not in EXP: return []
    v = f"v_lshlrev_b32 v{TMP2}, 7, v1" if n == 2 else f"v_lshlrev_b32 v{TMP2}, 5, v{vFL}"
    return [Op(f"{v}\n    s_add_u32 s{s_t1}, s{s_hs}, {pi*4096}\n    buffer_load_dword v{TMP2+1}, v{TMP2}, s[{sWS}:{sWS+3}], s{s_t1} offen{SC}", kind="vmem", tag="rr", cost=12)]
def flag_ops(ev):
    return [Op(f"v_mov_b32 v{vS}, {ev+1}\n    s_add_u32 s{s_t1}, s{s_fi}, {ev*8192}\n    buffer_store_dword v{vS}, off, s[{sWS}:{sWS+3}], s{s_t1}{SC}", kind="vmem", tag="flag", cost=12)]
def bias_read(A, pi, BIAS=BIAS):
    for g in range(4):
        A.ds(f"ds_read_b128 v[{BIAS+4*g}:{BIAS+4*g+3}], v{vBI} offset:{256*pi + 32*g}", f"bias{pi}")
def a_reads(A, gs, ring):
    st, ks = gs // 12, gs % 12
    slot = ring.slot[st]; buf = ARING[(gs - AOFF) % 5]
    for rd in range(2):
        A.ds(f"ds_read_b64_tr_b16 v[{buf+2*rd}:{buf+2*rd+1}], v{vAR+slot//2} offset:{(slot%2)*SLOT + (16*ks+4*rd)*128}", f"a{gs}")

def pump(q, bud, maxv):
    u = nv = 0
    while q.q and q.ready(q.q[0]):
        o = q.q[0]
        if o.kind == "vmem":
            if nv >= maxv: break
            nv += 1
        if u and u + o.cost > bud: break
        if u == 0 and bud <= 0: break
        q.q.pop(0); q.emit(o); u += o.cost
    return u

ACCB, BIASB = HS + 32, HS + 16
BRING = [TMP + 4*i for i in range(5)]
def wimg_ops(n):
    kl, b = n // 2, n % 2
    m = Op(f"s_add_u32 m0, s{s_wl}, {(n % 9)*8192}" + (f"\n    s_add_u32 s{s_so}, s{s_rw+kl}, 128" if b else ""), kind="salu")
    return [m] + [Op(f"buffer_load_dwordx4 v{vWD+i}, s[{sW1}:{sW1+3}], s{s_so if b else s_rw+kl} offen offset:{i*1024} lds", kind="vmem", tag=f"W{kl}", deps=[(m, 2)]) for i in range(2)]
def a0_reads(A, gs):
    kl, ks = gs // 4, gs % 4
    for b in range(2):
        o = ((2*kl + b) % 9)*8192 + 16*ks*128
        base = vAR if o < 49152 else vAR + 1
        if o >= 49152: o -= 49152
        buf = (ARING if b == 0 else BRING)[gs % 5]
        for rd in range(2):
            A.ds(f"ds_read_b64_tr_b16 v[{buf+2*rd}:{buf+2*rd+1}], v{base} offset:{o + 512*rd}", f"a{gs}")
def flush_tags(A, memq, tg):
    while any(o.tag in tg for o in memq.q):
        o = memq.q.pop(0)
        while not memq.ready(o): A.e("s_nop 0")
        memq.emit(o)

def phase0(A):
    ring = Ring(); ring.slot = {}; ring.next = 6
    xo, wo = x_dma_ops(0), wimg_ops(0)
    emit_now(A, xo[:3]); emit_now(A, wo[:2])
    A.vmem(f"buffer_load_ushort v{MT}, v{MT+2}, s[{sT0}:{sT0+3}], s{s_t2} offen", "b1")
    A.e(f"s_mov_b32 s{s_line}, s{s_t2}")
    setup2(A)
    emit_now(A, wo[2:])
    xo2 = x_dma_ops(0); emit_now(A, xo2[:1] + xo2[3:])
    emit_now(A, wimg_ops(1))
    A.vmem(f"buffer_load_ushort v{MT+1}, v{MT+2}, s[{sT0}:{sT0+3}], s{s_line} offen offset:512", "b1")
    rest = []
    for kl in range(1, 5):
        rest.append(x_dma_ops(kl)); rest.append(wimg_ops(2*kl))
        if kl < 4: rest.append(wimg_ops(2*kl + 1))
    for g in rest[:N0]: emit_now(A, g)
    A.wait_vm("b1")
    A.e(f"v_lshlrev_b32 v{MT}, 16, v{MT}")
    A.e(f"v_lshlrev_b32 v{MT+1}, 16, v{MT+1}")
    A.e(f"v_lshlrev_b32 v{MT+2}, 2, v0")
    A.e(f"v_add_u32 v{MT+2}, {M_BIAS}, v{MT+2}")
    A.ds(f"ds_write_b32 v{MT+2}, v{MT}", "bw")
    A.ds(f"ds_write_b32 v{MT+2}, v{MT+1} offset:1024", "bw")
    A.slow = []
    A.wait_lg("bw")
    A.e("s_barrier")
    stamp(A, 2)
    memq = Filler(A)
    for g in rest[N0:]: memq.add(g)
    bias_read(A, 0); bias_read(A, 1, BIASB); a0_reads(A, 0); x_read(A, 0)
    for gs in range(1, 4): a0_reads(A, gs)
    xrd = {0: [1], 4: [2], 8: [3], 12: [4], 16: [5, 6], 20: [7, 8]}
    done = {}
    for gs in range(36):
        order = [(0, 0), (0, 1), (1, 0), (1, 1)] if gs < 35 else [(1, 0), (1, 1), (0, 0), (0, 1)]
        for q, (b, rb) in enumerate(order):
            if gs == 0 and q == 0: A.wait_lg(["bias1", "a0", "xr0"])
            acc = (ACC if b == 0 else ACCB) + 16*rb
            cin = (BIAS if b == 0 else BIASB) if gs == 0 else acc
            dst = TMP + 16*rb if (gs == 35 and b == 0) else acc
            buf = (ARING if b == 0 else BRING)[gs % 5]
            A.e(f"v_mfma_f32_32x32x16_bf16 v[{dst}:{dst+15}], v[{buf}:{buf+3}], {xreg(rb, gs)}, v[{cin}:{cin+15}]")
            if gs == 35: done[(b, rb)] = A.n - 1
            if q == 0:
                if gs % 4 == 0:
                    j = gs // 4
                    tg = ([f"W{j+1}"] if j < 8 else ["st6"]) + [f"x{k}" for k in xrd.get(gs, [])]
                    flush_tags(A, memq, tg)
                    A.wait_vm(tg)
                    if gs == 24: A.wait_lg("xr8")
                    A.e("s_barrier")
                    if j + 5 <= 8: memq.add(x_dma_ops(j + 5))
                    for n in (2*j + 7, 2*j + 8):
                        if 9 <= n <= 17: memq.add(wimg_ops(n))
                    if gs == 24: ring.free += [3, 4, 5]
                    if gs == 28: ring.free += [0]
                    for k in ring.alloc(G0 + 18): memq.add(w1_dma_ops(k, ring.slot[k]))
                if gs % 2 == 0:
                    A.wait_lg([f"a{gs+1}", f"a{gs+2}", f"xr{(gs+1)//4}", f"xr{(gs+2)//4}"] if gs < 34 else ["a35", "a72"])
                if gs + 4 < 36: a0_reads(A, gs + 4)
                else: a_reads(A, 72 + gs - 32, ring)
            if q == 1:
                for k in xrd.get(gs, []): x_read(A, k)
                if gs == 22: bias_read(A, 2)
            nv = sum(o.kind == "vmem" for o in memq.q)
            if q in (1, 3) or (q == 2 and nv > PB0): pump(memq, 40, 1)
    return ring, memq, done

def p1(A):
    if 'single0' not in EXP: return p1_rest(A, *phase0(A))
    return p1_old(A)
def p1_old(A):
    nsteps = 216
    ring = Ring()
    xo, wo = first_ops("x0"), first_ops("W0")
    emit_now(A, xo[:3])
    emit_now(A, wo[:2])
    A.vmem(f"buffer_load_ushort v{MT}, v{MT+2}, s[{sT0}:{sT0+3}], s{s_t2} offen", "b1")
    A.e(f"s_mov_b32 s{s_line}, s{s_t2}")
    if 'rst' in EXP: stamp(A, 3)
    setup2(A)
    if 'rst' in EXP: stamp(A, 4)
    emit_now(A, wo[2:])
    xo2 = first_ops("x0"); emit_now(A, xo2[:1] + xo2[3:])
    A.vmem(f"buffer_load_ushort v{MT+1}, v{MT+2}, s[{sT0}:{sT0+3}], s{s_line} offen offset:512", "b1")
    for k in FIRST[2:N2]: emit_now(A, first_ops(k))
    if 'rst' in EXP: stamp(A, 5)
    A.wait_vm("b1")
    if 'rst' in EXP: stamp(A, 6)
    A.e(f"v_lshlrev_b32 v{MT}, 16, v{MT}")
    A.e(f"v_lshlrev_b32 v{MT+1}, 16, v{MT+1}")
    A.e(f"v_lshlrev_b32 v{MT+2}, 2, v0")
    A.e(f"v_add_u32 v{MT+2}, {M_BIAS}, v{MT+2}")
    A.ds(f"ds_write_b32 v{MT+2}, v{MT}", "bw")
    A.ds(f"ds_write_b32 v{MT+2}, v{MT+1} offset:1024", "bw")
    A.slow = []
    A.e(f"s_lshl_b32 s{s_t0}, s{s_w}, 2")
    A.e(f"s_add_u32 s{s_t0}, s{s_t0}, {SBAR}")
    A.e(f"v_mov_b32 v{vSA}, s{s_t0}")
    A.e(f"v_mov_b32 v{vS}, 0")
    A.e(f"v_and_b32 v{vSR}, 3, v1")
    A.e(f"v_lshlrev_b32 v{vSR}, 2, v{vSR}")
    A.e(f"v_add_u32 v{vSR}, {SBAR}, v{vSR}")
    A.ds(f"ds_write_b32 v{vSA}, v{vS}", "bw")
    A.wait_vm(["x0", "W0"]); A.wait_lg("bw")
    if 'rst' in EXP:
        stamp(A, 7); A.e("s_barrier"); stamp(A, 2); stamp_flush(A); A.e("s_endpgm")
    A.e("s_barrier")
    if 'p2st' not in EXP: stamp(A, 2)
    bias_read(A, 0); a_reads(A, 0, ring); x_read(A, 0)
    for gs in range(1, 4): a_reads(A, gs, ring)
    memq = Filler(A); valq = Filler(A); stq = Filler(A)
    done = {}
    xsched = {0: ([1], [1]), 4: ([2], [2]), 8: ([3], [3]), 12: ([4], [4]), 16: ([5], [5]), 20: ([6], [6]), 24: ([7, 8], [7, 8]), 28: ([], [])}
    xdma = {0: ["x5", "W5"], 4: ["x6", "W6"], 8: ["x7", "W7"], 12: ["x8", "W8"]}
    for k in FIRST[N2:]: memq.add(first_ops(k))
    return p1_loop(A, 0, ring, memq, valq, stq, done, xsched, xdma)
def p1_rest(A, ring, memq, done):
    return p1_loop(A, 72, ring, memq, Filler(A), Filler(A), done, {}, {})
def p1_loop(A, gs0, ring, memq, valq, stq, done, xsched, xdma):
    nsteps = 216
    dbl = gs0 == 72
    sent0 = False
    for gs in range(gs0, nsteps):
        pair, s = gs // 36, gs % 36
        st, ks = gs // 12, gs % 12
        if gs == 72 and not (EXP & {'p1st', 'p2st'}): stamp(A, 3)
        if 'p1st' in EXP and gs % 36 == 0 and gs: stamp(A, 1 + gs//36)
        if s == 0 and pair > 0:
            pp = pair - 1
            if pair == 3: valq.add(pre_p2_ops())
            if dbl and pair == 2:
                m0 = mish_ops(0, [lambda: done[(0, 0)], lambda: done[(0, 1)]]); valq.add(m0)
                valq.add(mish_ops(1, [lambda: done[(1, 0)], lambda: done[(1, 1)]], TMP=ACCB, prev=mish_ops.G))
            if 'nomish' not in EXP and not (dbl and pair == 2): valq.add(mish_ops(pp, [lambda p=pp: done.get((p, 0)), lambda p=pp: done.get((p, 1))]))
        if gs == 150: memq.add([Op(f"buffer_load_dword v{vCN}, off, s[{sDBG}:{sDBG+3}], 0{SC}", kind="vmem", tag="cnt")])
        for rb in range(2):
            if s == 0 and rb == 0: A.wait_lg([f"bias{pair}", f"a{gs}", "xr0"])
            acc = ACC + 16*rb
            cin = BIAS if s == 0 else acc
            dst = (TMP + 16*rb) if s == 35 else acc
            if s == 35: assert not valq.q
            buf = ARING[(gs - AOFF) % 5]
            A.e(f"v_mfma_f32_32x32x16_bf16 v[{dst}:{dst+15}], v[{buf}:{buf+3}], {xreg(rb, s)}, v[{cin}:{cin+15}]")
            if s == 35: done[(pair, rb)] = A.n - 1
            n0 = A.n
            if rb == 0:
                bar = False
                if gs in xdma:
                    for k in xdma[gs]: memq.add(first_ops(k))
                if gs in xsched:
                    xs, ws = xsched[gs]
                    tg = [f"x{k}" for k in xs] + [f"W{k}" for k in ws]
                    while any(o.tag in tg for o in memq.q) or (memq.q and gs < FLUSH):
                        o = memq.q.pop(0)
                        while not memq.ready(o): A.e("s_nop 0")
                        memq.emit(o)
                    A.wait_vm(tg)
                    if gs == 28: A.wait_lg("xr8")
                    A.e("s_barrier"); bar = True
                elif SOFT and ks == SD1 and gs > 28:
                    tags = [f"st{st+1}"]
                    if gs + 8 - SD1 == 212: tags += ["cnt"]
                    A.wait_vm(tags)
                    if s + 8 - SD1 == 8 and pair >= 2: A.wait_lg(f"exs{pair-2}")
                    if s + 8 - SD1 == 20 and pair >= 2: A.wait_lg(f"exr{pair-2}")
                    sb_arrive(A)
                elif SOFT and ks == 8:
                    sb_check(A); bar = True
                    if gs == 212: check_counter(A)
                elif ks == 8:
                    tags = [f"st{st+1}"]
                    if gs == 212: tags += ["cnt"]
                    if gs == 152: tags += ["h1"]
                    A.wait_vm(tags)
                    if s == 8 and pair >= 2: A.wait_lg(f"exs{pair-2}")
                    if s == 20 and pair >= 2: A.wait_lg([f"exr{pair-2}", "exs0"])
                    if s == 32: A.wait_lg("exr0")
                    if dbl and gs == 80: ring.free += [1, 2]
                    if dbl and gs == 92: assert sent0
                    A.e("s_nop 0" if 'nobar' in EXP else "s_barrier"); bar = True
                    if gs == 152: stq.add(reread_ops(0, 2))
                    if gs == 212:
                        check_counter(A)
                if bar:
                    for k in range(st + 1):
                        if 12*k + 11 < gs: ring.release(k)
                    if gs == 28: ring.free += [3, 4, 5]
                    for k in ring.alloc(G0 + 18):
                        if not ('now1' in EXP and k >= 6): memq.add(w1_dma_ops(k, ring.slot[k]) if k < 18 else w2_dma_ops(k, ring.slot[k]))
                if gs % 2 == 0:
                    A.wait_lg([f"a{gs+1}", f"a{gs+2}"] + ([f"xr{(gs+1)//4}", f"xr{(gs+2)//4}"] if pair == 0 else []) + ([f"exr{pair-2}"] if s == 10 else []) + (["exr0"] if gs == 94 else []))
                if s == (22 if (dbl and pair == 2) else 10) and pair >= 2: hst = h_store_ops(pair - 2)
                if pair >= 2 and s in ((22, 25, 28, 31) if (dbl and pair == 2) else HSITES):
                    if 'nost' not in EXP: stq.add([hst.pop(0)])
                    if len(hst) == 1: stq.add([hst.pop(0)])
                if gs + 4 < nsteps: a_reads(A, gs + 4, ring)
                else:
                    for j in (2*(gs - 212), 2*(gs - 212) + 1):
                        if j < LEAD: a2_read(A, j, ring)
                if gs in xsched:
                    for k in xsched[gs][0]: x_read(A, k)
                if SOFT and ks == 7 and gs > 28: sb_read(A)
                if s == (20 if (dbl and pair == 2) else 8) and pair >= 2: ex_block(A, pair - 2, False)
                if s == 22 and pair + 1 < 6: bias_read(A, pair + 1)
                bud = 24 - 4*(A.n - n0)
                u = pump(stq, bud, 1)
                if pair == 0: u += pump(memq, 40, P0V)
                elif u == 0: u += pump(memq, max(bud - u, 4 if len(memq.q) > 12 else 0), 1)
                valq.fill(max(0, bud - u), allow_trans=False, window=30)
            else:
                u = 0
                if pair == 0:
                    if sum(o.kind == "vmem" for o in memq.q) > PB1: u = pump(memq, 40, P0V)
                elif len(memq.q) > 10: u = pump(memq, 8, 1)
                rem = 33 - s
                work = valq.total()
                bud = 24 - u
                while work - bud > max(rem, 0)*PCAP and bud < (64 if (dbl and pair == 2) else 40): bud += 4
                if dbl and pair == 2:
                    left0 = sum(o.cost for o in m0 if o.pos is None)
                    while left0 - bud > max(17 - s, 0)*PCAP and bud < 64 and s <= 18: bud += 4
                    if s == 18 and left0: bud = left0 + 64
                fill_odd(valq, bud, window=30)
                if dbl and pair == 2 and not sent0 and all(o.pos is not None for o in m0):
                    ex_block(A, 0, True); sent0 = True
                if s == 34:
                    valq.drain()
                if s == 35 and pair >= 1: ex_block(A, pair - 1, True)
    valq.add(mish_ops(5, [lambda: done.get((5, 0)), lambda: done.get((5, 1))]))
    return ring, memq, valq, stq
HSITES = eval(os.environ.get('HSITES', '(10, 15, 23, 28)'))
SD1 = int(os.environ.get('SD1', 5))
SD2 = int(os.environ.get('SD2', 7))
PCAP = int(os.environ.get('PCAP', 32))

SEQ = [(0, 1), (0, 2), (0, 3), (0, 4), (0, 0), (0, 5), (1, 0), (1, 1), (1, 2), (1, 3), (2, 0), (2, 1), (2, 2), (2, 3), (1, 4), (2, 4), (1, 5), (2, 5)]
IMP = [k for k, (i, p) in enumerate(SEQ) if not (i == 0 and p > 0)]
aR = 208
LEAD = 7
def acc2(t): return [32, 48, 96, 112, 224, 240][t]
def hreg(step):
    k, j = step // 4, step % 4
    if k in IMP:
        b = 16*IMP.index(k) + 4*j
        return f"a[{b}:{b+3}]"
    b = hs(SEQ[k][1]) + 4*j
    return f"v[{b}:{b+3}]"
def w2_dma_ops(gst, slot):
    idx, pi = SEQ[gst - G0]
    tag = f"st{gst}"
    m0a = Op(f"s_add_u32 m0, s{s_w2l}, {slot*SLOT}", kind="salu")
    so = Op(f"s_add_u32 s{s_so}, s{s_sl+idx}, {pi*64*1152}", kind="salu")
    o = [m0a, so]
    for i in range(4):
        o.append(Op(f"buffer_load_dwordx4 v{vW2D+i}, s[{sW2}:{sW2+3}], s{s_so} offen offset:{i*1024} lds", kind="vmem", tag=tag, deps=[(m0a, 2)]))
    m0b = Op(f"s_add_u32 m0, s{s_w2l}, {slot*SLOT + 4096}", kind="salu")
    o.append(m0b)
    for i in range(4, 6):
        o.append(Op(f"buffer_load_dwordx4 v{vW2D+i}, s[{sW2}:{sW2+3}], s{s_so} offen offset:{(i&3)*1024} lds", kind="vmem", tag=tag, deps=[(m0b, 2)]))
    return o
def h_load_ops(k):
    idx, pi = SEQ[k]
    return [Op(f"s_add_u32 s{s_t2}, s{s_hs+idx}, {pi*4096}", kind="salu")] + \
           [Op(f"buffer_load_dwordx4 {hreg(4*k+j)}, v{vL16}, s[{sWS}:{sWS+3}], s{s_t2} offen offset:{j*1024}{SC}", kind="vmem", tag=f"st{G0+k}") for j in range(4)]
def flagcopy_ops(ev):
    return [Op(f"s_lshl_b32 s{s_val}, s{s_w}, 8\n    s_add_u32 m0, s{s_val}, {M_FL}\n    s_and_b32 s{s_val}, s{s_fi}, 0xffffff80\n    s_add_u32 s{s_val}, s{s_val}, {ev*8192}\n"
               f"    buffer_load_dword v{vFL}, s[{sWS}:{sWS+3}], s{s_val} offen sc1 lds", kind="vmem", tag="fc", cost=20)]
def pre_p2_ops():
    o = [Op(f"v_and_b32 v{vFL}, 31, v1\n    v_lshlrev_b32 v{vFL}, 2, v{vFL}", cost=8),
         Op(f"v_and_b32 v{vFA}, 3, v1\n    v_lshlrev_b32 v{vFA}, 4, v{vFA}\n    s_mul_i32 s{s_val}, s{s_w}, 260\n    s_add_u32 s{s_val}, s{s_val}, {M_FL}\n    v_add_u32 v{vFA}, s{s_val}, v{vFA}", cost=20),
         Op(f"v_mov_b32 v{vFC}, 0\n    s_lshl_b32 s{s_val}, s{s_w}, 8\n    s_add_u32 s{s_val}, s{s_val}, {M_FL}\n    v_lshl_add_u32 v{vFC+1}, v1, 2, s{s_val}\n    ds_write_b32 v{vFC+1}, v{vFC}", cost=20, kind="ds", tag="fz")]
    return o
def check(A, lane_sgpr, ev):
    lab = A.newlabel("L_chk")
    A.e(f"v_readlane_b32 s{s_val}, v{vFC}, s{lane_sgpr}")
    A.e(f"s_movk_i32 s{s_need}, {ev*8192}")
    A.e(f"s_mov_b32 s{s_lane}, s{lane_sgpr}")
    A.e(f"s_cmp_eq_u32 s{s_val}, {ev+1}")
    A.e(f"s_cbranch_scc1 {lab}")
    A.e(f"s_call_b64 s[{s_ret}:{s_ret+1}], L_poll")
    A.label(lab)
def check_counter(A):
    lab = A.newlabel("L_chk")
    A.e(f"v_readfirstlane_b32 s{s_val}, v{vCN}")
    A.e("s_nop 0")
    A.e(f"s_cmp_ge_u32 s{s_val}, 64")
    A.e(f"s_cbranch_scc1 {lab}")
    A.e(f"s_call_b64 s[{s_ret}:{s_ret+1}], L_pollc")
    A.label(lab)
def poll_sub(A):
    A.label("L_poll")
    A.e(f"s_mov_b32 s{s_t0}, 0x20000")
    A.e(f"v_and_b32 v{TMP2}, 3, v1")
    A.e(f"v_lshlrev_b32 v{TMP2}, 4, v{TMP2}")
    A.label("L_poll_loop")
    A.e("s_sleep 2")
    A.e(f"s_and_b32 s{s_val}, s{s_fi}, 0xffffffcf")
    A.e(f"s_add_u32 s{s_val}, s{s_val}, s{s_need}")
    A.e(f"buffer_load_dword v{TMP2+1}, v{TMP2}, s[{sWS}:{sWS+3}], s{s_val} offen{SC}")
    A.e("s_waitcnt vmcnt(0)")
    A.e(f"v_readlane_b32 s{s_val}, v{TMP2+1}, s{s_lane}")
    A.e(f"s_sub_u32 s{s_t0}, s{s_t0}, 1")
    A.e("s_cbranch_scc1 L_poll_out")
    A.e(f"s_cmp_eq_u32 s{s_val}, 0")
    A.e("s_cbranch_scc1 L_poll_loop")
    A.label("L_poll_out")
    A.e(f"s_setpc_b64 s[{s_ret}:{s_ret+1}]")
    A.label("L_pollc")
    A.e(f"s_mov_b32 s{s_t0}, 0x20000")
    A.label("L_pollc_loop")
    A.e("s_sleep 2")
    A.e(f"buffer_load_dword v{TMP2+1}, off, s[{sDBG}:{sDBG+3}], 0{SC}")
    A.e("s_waitcnt vmcnt(0)")
    A.e(f"v_readfirstlane_b32 s{s_val}, v{TMP2+1}")
    A.e(f"s_sub_u32 s{s_t0}, s{s_t0}, 1")
    A.e("s_cbranch_scc1 L_pollc_out")
    A.e(f"s_cmp_lt_u32 s{s_val}, 64")
    A.e("s_cbranch_scc1 L_pollc_loop")
    A.label("L_pollc_out")
    A.e(f"s_setpc_b64 s[{s_ret}:{s_ret+1}]")
TM0 = 360
def jmap(j):
    if j < TM0: return j // 6, j % 6
    return 60 + (j - TM0) % 12, (j - TM0) // 12
def a2_read(A, j, ring):
    step, t = jmap(j)
    k, ks = step // 4, step % 4
    slot = ring.slot[G0 + k]; buf = aR + 4*(j % 12)
    for rd in range(2):
        A.ds(f"ds_read_b64_tr_b16 a[{buf+2*rd}:{buf+2*rd+1}], v{vA2+2*(slot//2)+(t&1)} offset:{(slot%2)*SLOT + (16*ks+8*rd)*384 + t*64}", f"f{j}")
PKR = [HS + 4*i for i in range(12)]
vOW = TMP + 12
def export_ops(t, done):
    ops = []
    for kk in range(2):
        p = 2*t + kk
        a = acc2(t) + 8*kk; Q = PKR[p]
        c = [Op(f"v_cvt_pk_bf16_f32 v{Q+d}, v{a+2*d}, v{a+2*d+1}", deps=[(done, 13)]) for d in range(4)]
        sw = Op(f"v_permlane32_swap_b32 v{Q}, v{Q+2}\n    v_permlane32_swap_b32 v{Q+1}, v{Q+3}", cost=8, deps=[(x, 3) for x in c])
        st = Op(f"s_cmp_eq_u32 s{s_w}, s{s_kq}\n    s_cbranch_scc1 L_xo{p}\n    buffer_store_dwordx4 v[{Q}:{Q+3}], v{vL16}, s[{sWS}:{sWS+3}], s{s_sl + p//4} offen offset:{(p%4)*1024}{SC}\n"
                f"    s_branch L_xe{p}\nL_xo{p}:\n    ds_write_b128 v{vOW}, v[{Q}:{Q+3}] offset:{p*1024}\nL_xe{p}:", cost=16, deps=[(sw, 1)])
        ops += c + [sw, st]
    return ops

vYA, vYF, vYD, vGT, vRow = TMP, TMP + 4, TMP + 1, TMP + 8, TMP + 10
def y_prep_ops():
    t = [f"s_mul_i32 s{s_val}, s{s_r}, 21", f"v_add_u32 v{vYA}, s{s_val}, v1", f"s_lshr_b32 s{s_val}, s{s_fi}, 7", f"s_and_b32 s{s_val}, s{s_val}, 63",
         f"v_mov_b32 v{vYD}, s{s_val}", "v_cmp_lt_u32 vcc, 21, v1", f"s_lshl_b32 s{s_upos}, s{s_val}, 5", f"s_mov_b32 s{s_yd}, 0",
         f"v_cndmask_b32 v{vYA}, v{vYA}, v{vYD}, vcc", f"v_lshlrev_b32 v{vYA}, 4, v{vYA}"]
    a = Op("\n    ".join(t), cost=40)
    t = [f"v_lshrrev_b32 v{vYD}, 2, v1", f"v_lshlrev_b32 v{vYD}, 12, v{vYD}", f"v_and_b32 v{vRow}, 3, v1", f"v_lshl_add_u32 v{vYD}, v{vRow}, 4, v{vYD}",
         f"v_and_b32 v{vRow}, 31, v1", f"v_lshlrev_b32 v{vRow+1}, 2, v{vRow}", f"s_mul_i32 s{s_line}, s{s_r}, 192", f"s_mul_i32 s{s_val}, s{s_w}, 48", f"s_add_u32 s{s_line}, s{s_line}, s{s_val}"]
    b = Op("\n    ".join(t), cost=36)
    t = [f"v_mov_b32 v{vYF+k}, 0" for k in range(4)] + [f"ds_write_b128 v{vEW}, v[{vYF}:{vYF+3}]"]
    c = Op("\n    ".join(t), cost=24, kind="ds", tag="yz")
    return [a, b, c]
def exp_prep_op(OWN):
    t = [f"s_add_u32 s{s_val}, s{s_pb}, s{s_w}", f"s_lshl_b32 s{s_val}, s{s_val}, 2", f"s_add_u32 s{s_val}, s{s_val}, s{s_kq}", f"s_mul_i32 s{s_val}, s{s_val}, 12288",
         f"s_add_u32 s{s_sl}, s{s_val}, {WS_P}", f"s_add_u32 s{s_sl+1}, s{s_sl}, 4096", f"s_add_u32 s{s_sl+2}, s{s_sl}, 8192", f"v_add_u32 v{vOW}, {OWN}, v{vL16}"]
    return Op("\n    ".join(t), cost=32)
def y_loads(A, YT):
    A.e(f"s_lshl_b32 s{s_t1}, s{s_line}, 12")
    A.e(f"s_lshl_b32 s{s_t0}, s{s_upos}, 1")
    A.e(f"s_add_u32 s{s_t1}, s{s_t1}, s{s_t0}")
    A.e(f"s_add_u32 s{s_t1}, s{s_t1}, {WS_Y}")
    A.e(f"s_mul_i32 s{s_val}, s{s_w}, 3072")
    for i in range(3):
        A.e(f"s_add_u32 m0, s{s_val}, {YT + 1024*i}")
        if i: A.e(f"s_add_u32 s{s_t1}, s{s_t1}, 65536")
        else: A.e(f"s_lshl_b32 s{s_t0}, s{s_upos}, 2")
        A.e(f"buffer_load_dwordx4 v{vYD}, s[{sWS}:{sWS+3}], s{s_t1} offen sc1 lds")
    A.e(f"s_add_u32 s{s_t0}, s{s_t0}, {WS_GT}")
    A.e(f"buffer_load_dword v{vGT}, v{vRow+1}, s[{sWS}:{sWS+3}], s{s_t0} offen{SC}")
def y_test(A):
    A.e(f"v_and_b32 v{vYF}, v{vYF}, v{vYF+1}")
    A.e(f"v_and_b32 v{vYF+2}, v{vYF+2}, v{vYF+3}")
    A.e(f"v_and_b32 v{vYF}, v{vYF}, v{vYF+2}")
    A.e(f"v_cmp_ne_u32 vcc, 1, v{vYF}")

def p2(A, ring, memq, valq, stq):
    N = 432
    hl = {1: [4], 89: [6, 7], 101: [8], 113: [9], 137: [10], 161: [11], 185: [12], 209: [13], 233: [14], 257: [15], 281: [16, 17]}
    checks = {89: 0, 233: 1, 281: 2}
    flags = {17: ("h3", 0), 89: ("h4", 1), 185: ("h5", 2)}
    hsites = {21: 4, 33: 4, 45: 4, 57: 4, 117: 5, 129: 5, 141: 5, 153: 5}
    hst = {4: h_store_ops(4), 5: h_store_ops(5)}
    tdone = {}
    sent5 = False
    A.wait_lg(["f0", "f1"])
    for j in range(N):
        if 'p2st' in EXP:
            if j % 72 == 0: stamp(A, 1 + j//72)
        else:
            if j == 0: stamp(A, 7 if 'p1st' in EXP else 4)
            if j == 120 and 'p1st' not in EXP: stamp(A, 5)
        step, t = jmap(j)
        k = step // 4
        acc = acc2(t); buf = aR + 4*(j % 12)
        A.e(f"v_mfma_f32_32x32x16_bf16 v[{acc}:{acc+15}], a[{buf}:{buf+3}], {hreg(step)}, {'0' if step == 0 else f'v[{acc}:{acc+15}]'}")
        if step == 71:
            tdone[t] = A.n - 1
            valq.add(export_ops(t, lambda t=t: tdone[t]))
        n0 = A.n
        isbar = (j + LEAD) % 24 == 0 and j < TM0
        if SOFT and (j + SD2 + LEAD) % 24 == 0 and j + SD2 < TM0:
            jb = j + SD2
            tags = [f"st{G0+k+1}"]
            if jb in flags: tags.append(flags[jb][0])
            if jb == 353: tags += [f"st{G0+16}", f"st{G0+17}"]
            A.wait_vm(tags)
            if jb == 17: A.wait_lg("exs4")
            if jb == 41: A.wait_lg("exr4")
            if jb == 113:
                assert sent5; A.wait_lg("exs5")
            if jb == 137: A.wait_lg("exr5")
            sb_arrive(A)
        if isbar and SOFT: sb_check(A)
        if isbar and not SOFT:
            tags = [f"st{G0+k+1}"]
            if j in flags: tags.append(flags[j][0])
            if j == 353: tags += [f"st{G0+16}", f"st{G0+17}"]
            A.wait_vm(tags)
            if j == 17: A.wait_lg("exs4")
            if j == 41: A.wait_lg("exr4")
            if j == 113:
                assert sent5; A.wait_lg("exs5")
            if j == 137: A.wait_lg("exr5")
            A.e("s_nop 0" if 'nobar' in EXP else "s_barrier")
        if isbar:
            if j in flags: stq.q = flag_ops(flags[j][1]) + reread_ops(*{17: (2, 2), 89: (4, 1), 185: (5, 1)}[j]) + stq.q
            ring.release(G0 + k - 1)
            if j in checks:
                assert not any(o.tag == "fc" for o in memq.q)
                A.wait_lg("fcr")

                if 'nochk' not in EXP: check(A, s_rr, checks[j]); check(A, s_rr + 1, checks[j])
            if j + 48 in checks: memq.add(flagcopy_ops(checks[j + 48]))
            for g in ring.alloc(G0 + 18):
                if 'now2' not in EXP: memq.add(w2_dma_ops(g, ring.slot[g]))
            if j == 161: valq.add(y_prep_ops())
            if j == 329: valq.add([exp_prep_op(ring.slot[G0 + 13]*SLOT)])
        if j == YC:
            memq.add([Op(f"s_add_u32 m0, s{s_wl}, {EX}\n    s_mov_b32 s{s_val}, {F_Y}\n    buffer_load_dwordx4 v{vYA}, s[{sWS}:{sWS+3}], s{s_val} offen sc1 lds", kind="vmem", tag="yc", cost=12)])
        if j == YR + 4:
            assert not memq.q
            A.wait_lg("yr")
            y_test(A)
            A.e("s_nop 0")
            A.e("s_cbranch_vccnz L_ynot")
            y_loads(A, ring.slot[G0 + 12]*SLOT)
            A.e(f"s_mov_b32 s{s_yd}, 1")
            A.label("L_ynot")
        for x in ([] if 'noh' in EXP else hl.get(j, [])): memq.add(h_load_ops(x))
        if j % 3 == 0:
            A.wait_lg([f"f{j+1}", f"f{j+2}", f"f{j+3}"] + (["exr4"] if j == 21 else []) + (["exr5"] if j == 117 else []))
        if j in hsites:
            h = hst[hsites[j]]
            stq.add([h.pop(0)])
            if len(h) == 1: stq.add([h.pop(0)])
        if j < PR:
            if j % 2 == 1:
                a2_read(A, j + LEAD, ring); a2_read(A, j + LEAD + 1, ring)
            elif j == 0: a2_read(A, LEAD, ring)
        elif j + LEAD < N and not (PR and j == PR): a2_read(A, j + LEAD, ring)
        if SOFT and (j + 3 + LEAD) % 24 == 0 and j + 3 < TM0: sb_read(A)
        if j == 17: ex_block(A, 4, False)
        if j == 113: ex_block(A, 5, False)
        if j + 4 in checks: A.ds(f"ds_read_b32 v{vFC}, v{vFA}", "fcr")
        if j == YR: A.ds(f"ds_read_b128 v[{vYF}:{vYF+3}], v{vEW}", "yr")
        if not valq.q and not sent5 and j > 41:
            ex_block(A, 5, True); sent5 = True
        bud = max(0, 24 - 4*(A.n - n0))
        u = pump(stq, bud, 1)
        left = 22 - ((j + LEAD) % 24)
        if u == 0: u = pump(memq, bud, 1 if (j % 2 == (1 if j < PR else 0) or 2*sum(x.kind == "vmem" for x in memq.q) > left) else 0)
        if valq.q and j < PR and j % 2 == 1:
            valq.fill(max(0, bud - u), allow_trans=False, window=30)
        elif valq.q:
            b2 = max(0, bud - u)
            if j < 110 and valq.total() > MC*(MEND - j): b2 += 4
            if MEND <= j < 161: b2 = 1000
            if j > 161 and u == 0 and valq.q[0].cost > b2 and valq.ready(valq.q[0]): b2 = valq.q[0].cost
            fill_odd(valq, b2, window=(30 if j < 161 else 6))
    assert not memq.q and not stq.q
    if 'p1st' not in EXP: stamp(A, 7 if 'p2st' in EXP else 6)
    valq.drain()
PR = int(os.environ.get('PR', 0))
MEND = 98
MC = int(os.environ.get('MC', 11))
YC = int(os.environ.get('YC', 354))
YR = int(os.environ.get('YR', 400))

def tail(A, ring):
    OWN = ring.slot[G0 + 13]*SLOT; YT = ring.slot[G0 + 12]*SLOT
    A.e(f"s_add_u32 s{s_pb}, s{s_pb}, s{s_kq}")
    A.e(f"s_mul_i32 s{s_pb}, s{s_pb}, 49152")
    A.e(f"s_mul_i32 s{s_t2}, s{s_w}, 3072")
    A.e(f"s_add_u32 s{s_pb}, s{s_pb}, s{s_t2}")
    A.e(f"s_add_u32 s{s_pb}, s{s_pb}, {WS_P}")
    A.e("s_waitcnt lgkmcnt(0)")
    A.e("s_barrier")
    A.e(f"s_cmp_eq_u32 s{s_w}, s{s_kq}")
    A.e("s_cbranch_scc1 L_own_done")
    A.e(f"v_mov_b32 v{vS}, 1")
    A.e("s_waitcnt vmcnt(0)")
    A.e(f"buffer_store_dword v{vS}, off, s[{sWS}:{sWS+3}], s{s_fp}{SC}")
    A.label("L_own_done")
    if 'tst' in EXP: stamp(A, 2)
    A.vm = []; A.lg = []
    V = 32
    A.e(f"s_cmp_lg_u32 s{s_yd}, 0")
    A.e("s_cbranch_scc1 L_py_out")
    A.e(f"s_mov_b32 s{s_t0}, 0x20000")
    A.e(f"s_mov_b32 s{s_t1}, {F_Y}")
    A.label("L_py")
    A.e(f"buffer_load_dwordx4 v[{vYF}:{vYF+3}], v{vYA}, s[{sWS}:{sWS+3}], s{s_t1} offen{SC}")
    A.e("s_waitcnt vmcnt(0)")
    y_test(A)
    A.e(f"s_sub_u32 s{s_t0}, s{s_t0}, 1")
    A.e("s_cbranch_scc1 L_py_go")
    A.e("s_sleep 1")
    A.e("s_cbranch_vccnz L_py")
    A.label("L_py_go")
    y_loads(A, YT)
    A.label("L_py_out")
    if 'tst' in EXP: stamp(A, 3)
    A.e(f"v_and_b32 v{V}, 3, v1")
    A.e(f"v_cmp_eq_u32 s[{s_ret}:{s_ret+1}], s{s_kq}, v{V}")
    A.e(f"v_lshlrev_b32 v{V}, 2, v{V}")
    A.e(f"s_and_b32 s{s_need}, s{s_fp}, 0xfffffe00")
    A.e(f"s_lshl_b32 s{s_t0}, s{s_kq}, 7")
    A.e(f"s_add_u32 s{s_need}, s{s_need}, s{s_t0}")
    A.e(f"s_cmp_lg_u32 s{s_w}, s{s_kq}")
    A.e("s_cbranch_scc1 L_np1")
    A.e(f"buffer_load_dword v{V+4}, v{V}, s[{sWS}:{sWS+3}], s{s_need} offen{SC}")
    A.label("L_np1")
    OW, YA, BS = 96, 112, 192
    A.e(f"s_add_u32 s{s_t0}, s{s_t2}, {OWN}")
    A.e(f"v_add_u32 v{V+2}, s{s_t0}, v{vL16}")
    for i in range(3): A.e(f"ds_read_b128 v[{OW+4*i}:{OW+4*i+3}], v{V+2} offset:{1024*i}")
    A.e(f"v_lshrrev_b32 v{V+3}, 2, v1")
    A.e(f"v_and_b32 v{V+3}, 3, v{V+3}")
    A.e(f"v_lshrrev_b32 v{V+6}, 5, v1")
    A.e(f"v_lshl_add_u32 v{V+3}, v{V+6}, 3, v{V+3}")
    A.e(f"v_lshlrev_b32 v{V+3}, 6, v{V+3}")
    A.e(f"v_and_b32 v{V+5}, 16, v1")
    A.e(f"v_lshl_add_u32 v{V+3}, v{V+5}, 1, v{V+3}")
    A.e(f"v_and_b32 v{V+5}, 3, v1")
    A.e(f"v_lshl_add_u32 v{V+3}, v{V+5}, 3, v{V+3}")
    A.e(f"s_add_u32 s{s_t0}, s{s_t2}, {YT}")
    A.e(f"v_add_u32 v{V+3}, s{s_t0}, v{V+3}")
    A.e(f"v_mul_u32_u24 v{V+8}, 1152, v{vRow}")
    A.e(f"v_lshl_add_u32 v{V+8}, v{V+6}, 4, v{V+8}")
    A.e(f"s_mul_i32 s{s_t1}, s{s_upos}, 1152")
    A.e(f"s_lshl_b32 s{s_t0}, s{s_line}, 1")
    A.e(f"s_add_u32 s{s_lane}, s{s_t1}, s{s_t0}")
    A.e(f"s_cmp_eq_u32 s{s_w}, s{s_kq}")
    A.e(f"s_cselect_b32 s{s_t0}, 1, s{s_yd}")
    A.e(f"s_cmp_lg_u32 s{s_t0}, 0")
    A.e("s_cbranch_scc1 L_w1")
    A.e("s_waitcnt vmcnt(0)")
    A.label("L_w1")
    A.e("s_waitcnt vmcnt(1)")
    for i in range(3):
        for rd in range(2):
            A.e(f"ds_read_b64_tr_b16 v[{YA+4*i+2*rd}:{YA+4*i+2*rd+1}], v{V+3} offset:{1024*i + 256*rd}")
    A.e(f"v_sub_f32 v{vGT+1}, 1.0, v{vGT}")
    for q in range(3):
        A.e(f"s_cmp_le_u32 s{s_kq}, {q}")
        A.e(f"s_cselect_b32 s{s_sl+q}, 12288, 0")
        A.e(f"s_add_u32 s{s_sl+q}, s{s_sl+q}, s{s_pb}")
        if q < 2: A.e(f"s_add_u32 s{s_pb}, s{s_pb}, 12288")
    A.e("s_waitcnt lgkmcnt(0)")
    for q in range(12):
        lo = BS + 2*q
        A.e(f"v_lshlrev_b32 v{lo}, 16, v{YA+q}")
        A.e(f"v_and_b32 v{lo+1}, 0xffff0000, v{YA+q}")
        A.e(f"v_lshlrev_b32 v{V+10+2*(q&1)}, 16, v{OW+q}")
        A.e(f"v_and_b32 v{V+11+2*(q&1)}, 0xffff0000, v{OW+q}")
        A.e(f"v_pk_mul_f32 v[{lo}:{lo+1}], v[{lo}:{lo+1}], v[{vGT}:{vGT+1}] op_sel_hi:[1,0]")
        A.e(f"v_pk_fma_f32 v[{lo}:{lo+1}], v[{V+10+2*(q&1)}:{V+11+2*(q&1)}], v[{vGT}:{vGT+1}], v[{lo}:{lo+1}] op_sel:[0,1,0] op_sel_hi:[1,1,1]")
    A.e(f"s_mov_b32 s{s_t0}, 0x20000")
    A.e(f"s_cmp_lg_u32 s{s_w}, s{s_kq}")
    A.e("s_cbranch_scc1 L_pp_out")
    A.label("L_pp")
    A.e("s_waitcnt vmcnt(0)")
    A.e(f"v_cmp_ne_u32 vcc, 1, v{V+4}")
    A.e(f"s_sub_u32 s{s_t0}, s{s_t0}, 1")
    A.e("s_cbranch_scc1 L_pp_out")
    A.e(f"s_andn2_b64 vcc, vcc, s[{s_ret}:{s_ret+1}]")
    A.e("s_cbranch_vccz L_pp_out")
    A.e(f"buffer_load_dword v{V+4}, v{V}, s[{sWS}:{sWS+3}], s{s_need} offen{SC}")
    A.e("s_branch L_pp")
    A.label("L_pp_out")
    A.e("s_barrier")
    if 'tst' in EXP: stamp(A, 4)
    PB = 144
    for i in range(3):
        for q in range(3):
            A.vmem(f"buffer_load_dwordx4 v[{PB+12*i+4*q}:{PB+12*i+4*q+3}], v{vL16}, s[{sWS}:{sWS+3}], s{s_sl+q} offen offset:{1024*i}{SC}", f"imp{i}")
    A.e(f"v_mov_b32 v{V+14}, 0x3f80")
    A.e(f"v_mov_b32 v{V+15}, 0x3f800000")
    S = 40 + 8
    for i in range(3):
        A.wait_vm(f"imp{i}")
        if i == 0 and 'tst' in EXP: stamp(A, 5)
        for d in range(4):
            A.e(f"v_lshlrev_b32 v{S+2*d}, 16, v{PB+12*i+d}")
            A.e(f"v_and_b32 v{S+2*d+1}, 0xffff0000, v{PB+12*i+d}")
        for q in (1, 2):
            for d in range(4):
                A.e(f"v_dot2c_f32_bf16 v{S+2*d}, v{PB+12*i+4*q+d}, v{V+14}")
                A.e(f"v_dot2c_f32_bf16 v{S+2*d+1}, v{PB+12*i+4*q+d}, v{V+15}")
        A.nop(2)
        for d in range(4):
            lo = BS + 8*i + 2*d
            A.e(f"v_pk_fma_f32 v[{lo}:{lo+1}], v[{S+2*d}:{S+2*d+1}], v[{vGT}:{vGT+1}], v[{lo}:{lo+1}] op_sel:[0,1,0] op_sel_hi:[1,1,1]")
        for d in range(4):
            lo = BS + 8*i + 2*d
            A.e(f"v_cvt_pk_bf16_f32 v{OW+4*i+d}, v{lo}, v{lo+1}")
        A.vmem(f"buffer_store_dwordx4 v[{OW+4*i}:{OW+4*i+3}], v{V+8}, s[{sT1}:{sT1+3}], s{s_lane} offen offset:{32*i}", "o")
```

```python
from common import *
import math, p1f
L2E_HI = struct.unpack('<f', struct.pack('<f', LOG2E))[0]
L2E_LO = LOG2E - L2E_HI
LN2 = math.log(2.0)
W2T = int(os.environ.get('W2T', 0))
TLBS = int(os.environ.get('TLBS', 0))
WREG = 40960
SU, SR = 4640, 4480
RA_OFF, RB_OFF, U_OFF = 0, 8960, 17920
SCR = 8960
T_OFF = 17920
TS_ENT = 2304
ZIDX = 2300
WS_R9 = WS_G
s_ch0, s_lb, s_dt, s_dsk, s_cA, s_cB, s_cC, s_ci, s_rdst, s_yo, s_rnd, s_dl = 56, 57, 58, 59, 60, 61, 62, 63, 64, 65, 66, 67
sP0, sP1, sU, sPF = 68, 72, 68, 72
sP2, sP3 = sT0, sT1
s_pf = 76
s_uok = 66
vW, vRD, vSc, vGa = 32, 48, 52, 64
vDt, vDk, vPF, vRW, vZW, vPL = 4, 5, 6, 7, 8, 20
vPar = 100
vCur = 112
vZ = 116
POOL = (124, 180)
vCV = 236
vD = 10
def a_table():
    t = []
    for row in range(16): t.append((row & 7) + 128*(row >> 3))
    for row in range(16):
        t.append(256 + 128*(row >> 2) + 2*(row & 3) if row < 8 else 512 + 128*((row-8) >> 1) + 4*(row & 1))
    for row in range(16): t.append(1024 + 128*row if row <= 8 else 2100)
    return t

def exp_bf16_multi(A, items):
    for d, x, a, b in items: A.e(f"v_mul_f32 v{a}, s{s_cA}, v{x}")
    for d, x, a, b in items: A.e(f"v_fma_f32 v{b}, v{x}, s{s_cA}, -v{a}")
    for d, x, a, b in items: A.e(f"v_exp_f32 v{a}, v{a}")
    for d, x, a, b in items: A.e(f"v_fma_f32 v{b}, v{x}, s{s_cB}, v{b}")
    for d, x, a, b in items: A.e(f"v_mul_f32 v{b}, s{s_cC}, v{b}")
    for d, x, a, b in items: A.e(f"v_fma_f32 v{a}, v{a}, v{b}, v{a}")
    for d, x, a, b in items: A.e(f"v_cvt_pk_bf16_f32 v{a}, v{a}, v{a}")
    for d, x, a, b in items: A.e(f"v_lshlrev_b32 v{d}, 16, v{a}")

def pf_hook(A, k):
    if 'nopf' not in EXP:
        A.e(f"buffer_load_dword a{200+k}, v{vPF}, s[{sPF}:{sPF+3}], s{s_pf+k} offen{NTP}")

class Ch:
    def __init__(self, A):
        self.A = A; self.reg = {}; self.free = list(range(0, 56, 2)); self.cvn = 0; self.pend = []
    def alloc(self, name):
        self.reg[name] = self.free.pop(0); return self.reg[name]
    def rel(self, *names):
        for n in names: self.free.append(self.reg.pop(n))
    def r(self, name, m): return POOL[m] + self.reg[name]
    def muls(self, lst):
        for d, x, y in lst: self.alloc(d)
        for d, x, y in lst:
            for m in range(2):
                D, X, M = self.r(d, m), self.r(x, m), self.r(y, m)
                self.A.e(f"v_pk_mul_f32 v[{D}:{D+1}], v[{X}:{X+1}], v[{M}:{M+1}] op_sel_hi:[1,0]")
        for d, x, y in lst:
            for m in range(2):
                D, X, M = self.r(d, m), self.r(x, m), self.r(y, m)
                self.A.e(f"v_pk_fma_f32 v[{D}:{D+1}], v[{X}:{X+1}], v[{M}:{M+1}], v[{D}:{D+1}] op_sel:[1,1,0] op_sel_hi:[0,1,1] neg_lo:[1,0,0]")
    def put(self, items):
        A = self.A; slot = 0; w = []
        for i, oa, na, ob, nb in items:
            regs = []
            for o, n in ((oa, na), (ob, nb)):
                if n is None: continue
                c = vCV + 2*slot; slot += 1
                assert slot <= 10
                for m in range(2):
                    if n == "one": A.e(f"v_mov_b32 v{c+m}, 0x3f80")
                    else:
                        X = self.r(n, m)
                        A.e(f"v_cvt_pk_bf16_f32 v{c+m}, v{X}, {'-' if o == 41 else ''}v{X+1}")
                regs.append((o, c))
            w.append((i, regs))
        for i, regs in w:
            if len(regs) == 2:
                A.e(f"ds_write2st64_b64 v{vW+i}, v[{regs[0][1]}:{regs[0][1]+1}], v[{regs[1][1]}:{regs[1][1]+1}] offset0:{regs[0][0]} offset1:{regs[1][0]}")
            else:
                A.e(f"ds_write_b64 v{vW+i}, v[{regs[0][1]}:{regs[0][1]+1}] offset:{regs[0][0]*512}")

def kchan_sub(A):
    A.label("L_kchan")
    C = Ch(A)
    A.e(f"v_readlane_b32 s{s_dt}, v{vDt}, s{s_ci}")
    A.e(f"v_readlane_b32 s{s_dsk}, v{vDk}, s{s_ci}")
    T = vCV
    A.e(f"v_lshlrev_b32 v{T}, 16, v{vCur}")
    A.e(f"v_and_b32 v{T+1}, 0xffff0000, v{vCur}")
    A.e(f"v_lshlrev_b32 v{vZ+1}, 16, v{vCur+1}")
    A.e(f"v_and_b32 v{vZ+5}, 0xffff0000, v{vCur+1}")
    exp_bf16_multi(A, [(vZ, T, T+2, T+3), (vZ+4, T+1, T+4, T+5)])
    A.e(f"v_lshlrev_b32 v{vZ+2}, 16, v{vCur+2}")
    A.e(f"v_and_b32 v{vZ+6}, 0xffff0000, v{vCur+2}")
    A.e(f"v_lshlrev_b32 v{vZ+3}, 16, v{vCur+3}")
    A.e(f"v_and_b32 v{vZ+7}, 0xffff0000, v{vCur+3}")
    for k in range(8): A.e(f"v_mul_f32 v{vZ+k}, s{s_dt}, v{vZ+k}")
    for m in range(2):
        A.e(f"v_mul_f32 v{vZ+4*m}, {fhex(-LOG2E)}, v{vZ+4*m}")
        A.e(f"v_mul_f32 v{vZ+4*m+1}, 0.15915494, v{vZ+4*m+1}")
    Ps = [1, 8, 128, 512, 1024]
    for P in Ps: C.alloc(f"E{P}")
    C.alloc("B0")
    for m in range(2):
        b = C.r("B0", m)
        A.e(f"v_add_f32 v{b}, v{vZ+4*m+2}, v{vZ+4*m+2}")
        A.e(f"v_add_f32 v{b+1}, v{vZ+4*m+3}, v{vZ+4*m+3}")
    tt = lambda k, m: T + 4*k + 2*m
    for k, P in enumerate(Ps):
        for m in range(2):
            if P == 1:
                A.e(f"v_mov_b32 v{tt(k,m)}, v{vZ+4*m}"); A.e(f"v_fract_f32 v{tt(k,m)+1}, v{vZ+4*m+1}")
            else:
                A.e(f"v_mul_f32 v{tt(k,m)}, {fhex(float(P))}, v{vZ+4*m}")
                A.e(f"v_mul_f32 v{tt(k,m)+1}, {fhex(float(P))}, v{vZ+4*m+1}")
    for k, P in enumerate(Ps):
        if P == 1: continue
        for m in range(2): A.e(f"v_fract_f32 v{tt(k,m)+1}, v{tt(k,m)+1}")
    for k, P in enumerate(Ps):
        for m in range(2):
            d = C.r(f"E{P}", m)
            A.e(f"v_exp_f32 v{tt(k,m)}, v{tt(k,m)}")
            A.e(f"v_cos_f32 v{d}, v{tt(k,m)+1}")
            A.e(f"v_sin_f32 v{d+1}, v{tt(k,m)+1}")
    A.e("s_nop 0")
    for k, P in enumerate(Ps):
        for m in range(2):
            d = C.r(f"E{P}", m)
            A.e(f"v_pk_mul_f32 v[{d}:{d+1}], v[{d}:{d+1}], v[{tt(k,m)}:{tt(k,m)+1}] op_sel_hi:[1,0]")
    C.muls([("E2", "E1", "E1"), ("E256", "E128", "E128"), ("E640", "E512", "E128"), ("E129", "E128", "E1"), ("E16", "E8", "E8"), ("B1", "B0", "E8"), ("T1", "E1024", "E128")])
    C.put([(0, 0, "one", 16, "E256"), (8, 0, "E128", 16, "E512"), (0, 32, "E1024", 41, "B0"), (1, 32, "T1", 41, "B1")])
    C.rel("E8")
    C.muls([("E3", "E2", "E1"), ("E4", "E2", "E2"), ("E384", "E256", "E128"), ("E768", "E512", "E256"), ("E130", "E128", "E2"), ("E258", "E256", "E2"),
            ("B2", "B0", "E16"), ("B3", "B1", "E16"), ("T2", "E1024", "E256"), ("T3", "T1", "E256")])
    C.rel("B0", "B1", "T1", "E1024")
    C.put([(10, 0, "E130", 16, "E640"), (1, 0, "E1", 16, "E258"), (4, 0, "E4", 16, "E384"), (2, 32, "T2", 41, "B2"), (3, 32, "T3", 41, "B3")])
    C.rel("E130", "E258")
    C.muls([("E260", "E256", "E4"), ("E516", "E512", "E4"), ("E132", "E128", "E4"), ("E131", "E128", "E3"), ("E644", "E640", "E4"),
            ("B4", "B2", "E16"), ("B5", "B3", "E16"), ("T4", "T2", "E256"), ("T5", "T3", "E256")])
    C.rel("B2", "B3", "T2", "T3", "E640")
    C.put([(2, 0, "E2", 16, "E260"), (9, 0, "E129", 16, "E516"), (12, 0, "E132", 16, "E768"), (11, 0, "E131", 16, "E644"), (4, 32, "T4", 41, "B4")])
    C.rel("E260", "E129", "E516", "E132", "E131", "E644")
    C.muls([("E5", "E4", "E1"), ("E6", "E4", "E2"), ("E7", "E4", "E3"), ("E896", "E512", "E384"), ("E386", "E384", "E2"), ("E388", "E384", "E4"), ("E772", "E768", "E4"),
            ("B6", "B4", "E16"), ("B7", "B5", "E16"), ("T6", "T4", "E256"), ("T7", "T5", "E256")])
    C.put([(5, 32, "T5", 41, "B5"), (5, 0, "E5", 16, "E386"), (6, 0, "E6", 16, "E388"), (6, 32, "T6", 41, "B6"), (7, 32, "T7", 41, "B7")])
    C.rel("B4", "B5", "T4", "T5", "E386", "E388", "E1", "E2", "E512", "E768", "T7")
    C.muls([("E262", "E256", "E6"), ("E390", "E384", "E6"), ("E133", "E128", "E5"), ("E134", "E128", "E6"), ("E135", "E128", "E7"), ("E900", "E896", "E4"),
            ("B8", "B6", "E16"), ("B9", "B7", "E16"), ("T8", "T6", "E256")])
    C.put([(3, 0, "E3", 16, "E262"), (7, 0, "E7", 16, "E390"), (13, 0, "E133", 16, "E772"), (14, 0, "E134", 16, "E896"), (15, 0, "E135", 16, "E900")])
    C.rel("B6", "B7", "T6", "E262", "E390", "E133", "E134", "E135", "E900")
    C.muls([("B10", "B8", "E16"), ("B11", "B9", "E16")])
    C.put([(8, 32, "T8", 41, "B8"), (9, 41, "B9", 0, None)])
    C.muls([("B12", "B10", "E16"), ("B13", "B11", "E16")])
    C.put([(10, 41, "B10", 0, None), (11, 41, "B11", 0, None)])
    C.muls([("B14", "B12", "E16"), ("B15", "B13", "E16")])
    C.put([(12, 41, "B12", 0, None), (13, 41, "B13", 0, None), (14, 41, "B14", 0, None), (15, 41, "B15", 0, None)])
    A.e(f"s_mov_b32 s{s_t0}, {F_U}")
    A.e(f"s_cmp_eq_u32 s{s_uok}, 2")
    A.e("s_cbranch_scc0 L_kc_npoll")
    A.e(f"s_waitcnt vmcnt(0)")
    A.e(f"buffer_load_dwordx4 v[{vPL}:{vPL+3}], v{vPL+5}, s[{sWS}:{sWS+3}], s{s_t0} offen{SC}")
    A.label("L_kc_npoll")
    A.lg = []
    A.e("s_waitcnt lgkmcnt(0)")
    D = POOL[0]
    for ks in range(8):
        A.ds(f"ds_read_b128 a[{4*ks}:{4*ks+3}], v{vRD+(ks&3)} offset:{41*512 + (ks>>2)*256}", f"kb{ks}")
        for t in range(3):
            A.ds(f"ds_read_b128 a[{32+32*t+4*ks}:{35+32*t+4*ks}], v{vRD+(ks&3)} offset:{t*8192 + (ks>>2)*256}", f"ka{ks}{t}")
        if ks >= 2:
            for t in range(3):
                k2 = ks - 2
                A.wait_lg([f"ka{k2}{t}"])
                A.e(f"v_mfma_f32_16x16x32_bf16 v[{D+4*t}:{D+4*t+3}], a[{32+32*t+4*k2}:{35+32*t+4*k2}], a[{4*k2}:{4*k2+3}], {'0' if k2 == 0 else f'v[{D+4*t}:{D+4*t+3}]'}")
    for k2 in (6, 7):
        for t in range(3):
            A.wait_lg([f"ka{k2}{t}"])
            A.e(f"v_mfma_f32_16x16x32_bf16 v[{D+4*t}:{D+4*t+3}], a[{32+32*t+4*k2}:{35+32*t+4*k2}], a[{4*k2}:{4*k2+3}], v[{D+4*t}:{D+4*t+3}]")
    A.e(f"s_cmp_eq_u32 s{s_uok}, 2")
    A.e("s_cbranch_scc0 L_kc_nchk")
    A.e("s_waitcnt vmcnt(0)")
    A.e(f"v_min_u32 v{vPL}, v{vPL}, v{vPL+1}")
    A.e(f"v_min3_u32 v{vPL}, v{vPL}, v{vPL+2}, v{vPL+3}")
    A.e(f"v_cmp_gt_u32 vcc, 1, v{vPL}")
    A.e(f"v_cmp_gt_u32 s[76:77], v{vPL+6}, v{vPL+4}")
    A.e("s_or_b64 vcc, vcc, s[76:77]")
    A.e("s_cbranch_scc1 L_kc_nchk")
    A.e(f"s_mov_b32 s{s_uok}, 1")
    A.e(f"s_add_u32 s{s_t0}, s{s_ch0}, s{s_w}")
    A.e(f"s_mul_i32 s{s_t0}, s{s_t0}, {UT_PITCH}")
    A.e(f"s_add_u32 s{s_t0}, s{s_t0}, {WS_UT}")
    A.e(f"v_min_u32 v{vPL}, 32, v1")
    A.e(f"v_lshlrev_b32 v{vPL}, 7, v{vPL}")
    A.e(f"buffer_load_dword a197, v{vPL}, s[{sWS}:{sWS+3}], s{s_t0} offen{SC}")
    A.label("L_kc_nchk")
    A.e(f"v_mov_b32 v{T}, 0")
    A.e(f"v_writelane_b32 v{T}, s{s_dsk}, 0")
    for k in range(4): A.e(f"v_mov_b32 v{T+4+k}, 0")
    A.e(f"v_add_u32 v{T+2}, s{s_rdst}, v{vRW}")
    A.e(f"v_add_u32 v{T+3}, s{s_rdst}, v{vZW}")
    A.e(f"v_add_f32 v{D}, v{D}, v{T}")
    for k in range(12): A.e(f"ds_write_b32 v{vSc+k}, v{D+k}")
    A.e(f"ds_write_b32 v{9}, v{T+4}")
    A.e(f"ds_write_b128 v{T+3}, v[{T+4}:{T+7}]")
    A.e("s_waitcnt lgkmcnt(0)")
    G = POOL[0] + 12
    for k in range(4):
        for e in range(9): A.ds(f"ds_read_b32 v{G+9*k+e}, v{vGa+9*k+e}", f"g{k}")
    O = POOL[1]
    for k in range(4):
        A.wait_lg(f"g{k}")
        g = G + 9*k
        for e in range(4): A.e(f"v_cvt_pk_bf16_f32 v{O+8*k+e}, v{g+2*e+1}, v{g+2*e+2}")
        for e in range(4): A.e(f"v_cvt_pk_bf16_f32 v{O+8*k+4+e}, v{g+2*e}, v{g+2*e+1}")
    for k in range(4):
        A.e(f"ds_write_b128 v{T+2}, v[{O+8*k}:{O+8*k+3}] offset:{1024*k}")
        A.e(f"ds_write_b128 v{T+2}, v[{O+8*k+4}:{O+8*k+7}] offset:{SR + 1024*k}")
    A.e("s_waitcnt lgkmcnt(0)")
    A.lg = []
    A.e(f"s_setpc_b64 s[{s_ret}:{s_ret+1}]")

vGX, vGG = POOL[0], POOL[1]
def kc_setup(A):
    A.c("======== conv role setup")
    for r, n in ((sP0, 'loga'), (sP1, 'aim'), (sP2, 'cre'), (sP3, 'cim'), (76, 'logdt'), (80, 'dskip'), (84, 'gw')):
        A.e(f"s_load_dwordx2 s[{r}:{r+1}], s[0:1], {KA[n]}")
    A.e(f"s_lshl_b32 s{s_ch0}, s{s_m}, 2")
    A.e(f"s_add_u32 s{s_ch0}, s{s_ch0}, s{s_kq}")
    A.e(f"s_mul_i32 s{s_ch0}, s{s_ch0}, 9")
    A.e(f"s_mul_i32 s{s_lb}, s{s_w}, {WREG}")
    for r, n in ((sP0, D_*256), (sP1, D_*256), (sP2, D_*256), (sP3, D_*256), (76, D_*2), (80, D_*2)):
        A.e(f"s_mov_b32 s{r+2}, {n}"); A.e(f"s_mov_b32 s{r+3}, 0x00020000")
    T = vCV
    A.e(f"v_lshlrev_b32 v{T}, 2, v1")
    A.e(f"v_min_u32 v{T+1}, 8, v1")
    A.e(f"v_add_u32 v{T+1}, s{s_ch0}, v{T+1}")
    A.e(f"v_lshlrev_b32 v{T+1}, 1, v{T+1}")
    A.e(f"s_add_u32 s{s_t0}, s{s_ch0}, s{s_w}")
    A.e(f"s_lshl_b32 s{s_t0}, s{s_t0}, 8")
    A.e(f"s_add_u32 s{s_t1}, s{s_ch0}, 8")
    A.e(f"s_lshl_b32 s{s_t1}, s{s_t1}, 8")
    A.e(f"s_lshl_b32 s{s_upos}, s{s_m}, 7")
    A.e(f"s_lshl_b32 s{s_t2}, s{s_kq}, 5")
    A.e(f"s_add_u32 s{s_upos}, s{s_upos}, s{s_t2}")
    A.e(f"v_lshrrev_b32 v{T+4}, 3, v1")
    A.e(f"v_and_b32 v{T+5}, 7, v1")
    A.e(f"v_add_u32 v{T+6}, s{s_upos}, v{T+4}")
    A.e(f"v_mul_u32_u24 v{T+6}, 1152, v{T+6}")
    A.e(f"v_lshrrev_b32 v{T+7}, 1, v{T+4}")
    A.e(f"v_xor_b32 v{T+7}, v{T+7}, v{T+5}")
    A.e(f"v_lshl_add_u32 v{vXD}, v{T+7}, 4, v{T+6}")
    A.e(f"v_xor_b32 v{vXD+1}, 64, v{vXD}")
    A.e(f"v_add_u32 v{vXD+1}, 8192, v{vXD+1}")
    A.e(f"s_lshl_b32 s{s_upos}, s{s_upos}, 1")
    A.e("s_waitcnt lgkmcnt(0)")
    for slot, (so, off) in enumerate(((s_t1, 0), (s_t0, 0), (s_t0, 1024))):
        for k, srd in enumerate((sP0, sP1, sP2, sP3)):
            A.vmem(f"buffer_load_dword v{vPar+4*slot+k}, v{T}, s[{srd}:{srd+3}], s{so} offen offset:{off}", "kp")
    A.vmem(f"buffer_load_ushort v{vDt}, v{T+1}, s[76:79], 0 offen", "kp")
    A.vmem(f"buffer_load_ushort v{vDk}, v{T+1}, s[80:83], 0 offen", "kp")
    A.e(f"s_getpc_b64 s[{s_ret}:{s_ret+1}]")
    A.label("L_kg_pc")
    A.e(f"s_add_u32 s{s_ret}, s{s_ret}, L_atab-L_kg_pc")
    A.e(f"s_addc_u32 s{s_ret+1}, s{s_ret+1}, 0")
    A.e(f"v_and_b32 v{T+2}, 48, v1")
    for t in range(3):
        A.vmem(f"global_load_dwordx4 v[{vSc+4*t}:{vSc+4*t+3}], v{T+2}, s[{s_ret}:{s_ret+1}] offset:{64*t}", "kp")
    A.e(f"s_cmp_eq_u32 s{s_w}, 0")
    A.e("s_cbranch_scc1 L_xp_skip")
    A.e(f"s_mov_b32 s80, s84"); A.e("s_mov_b32 s81, s85")
    A.e(f"s_mul_i32 s{s_line}, s{s_w}, 3")
    A.e(f"s_sub_u32 s{s_line}, s{s_line}, 3")
    for q in range(3):
        A.e(f"s_add_u32 m0, s{s_lb}, {SCR + 4096*q}")
        A.e(f"s_add_u32 s{s_so}, s{s_line}, {q}")
        A.e(f"s_lshl_b32 s{s_so}, s{s_so}, 7")
        for i in range(4):
            if i == 2: A.e(f"s_add_u32 s{s_so}, s{s_so}, 16384")
            A.e(f"buffer_load_dwordx4 v{vXD+(i&1)}, s[{sX}:{sX+3}], s{s_so} offen offset:{i*1024} lds")
    A.e(f"v_and_b32 v{T+3}, 1, v1")
    A.e(f"v_lshlrev_b32 v{T+3}, 6, v{T+3}")
    A.e(f"s_lshl_b32 s{s_so}, s{s_line}, 7")
    for q in range(3):
        for c in range(4):
            A.e(f"buffer_load_dwordx4 v[{vGG+16*q+4*c}:{vGG+16*q+4*c+3}], v{T+3}, s[80:83], s{s_so} offen offset:{128*q+16*c}")
    A.label("L_xp_skip")
    if 'notlb' not in EXP:
        A.e(f"s_load_dwordx2 s[{sW1}:{sW1+1}], s[0:1], {KA['out']}")
        A.e(f"s_lshl_b32 s{s_t3}, s{s_m7}, 2")
        A.e(f"s_add_u32 s{s_t3}, s{s_t3}, s{s_w}")
        A.e(f"s_lshl_b32 s{s_t0}, s{s_t3}, {22 + TLBS}")
        A.e(f"s_cmp_lt_u32 s{s_t0}, 0x2A00000")
        A.e(f"s_cselect_b32 s{s_t0}, s{s_t0}, 0x40000000")
        A.e(f"v_lshlrev_b32 v{vPF}, {16 + TLBS}, v1")
        A.e(f"s_mov_b32 s{sW1+2}, {L_*D_*2}")
        A.e(f"s_mov_b32 s{sW1+3}, 0x00020000")
        A.e(f"buffer_load_dword a196, v{vPF}, s[{sWS}:{sWS+3}], s{s_t0} offen{SC}")
        A.e(f"s_cmp_eq_u32 s{s_t3}, 30")
        A.e(f"s_cselect_b32 s{s_t0}, 0, 0x40000000")
        A.e("s_waitcnt lgkmcnt(0)")
        A.e(f"buffer_load_dword a195, v{vPF}, s[{sW1}:{sW1+3}], s{s_t0} offen{SC}")
    if 'now1pf' not in EXP and 'nopf' not in EXP:
        A.e(f"s_mul_i32 s{s_t0}, s{s_kq}, 2304")
        A.e(f"s_add_u32 s{sW1}, s{p_w1}, s{s_t0}")
        A.e(f"s_addc_u32 s{sW1+1}, s{p_w1+1}, 0")
        A.e(f"s_mov_b32 s{sW1+2}, {575*9216 + 2304}")
        A.e(f"s_mov_b32 s{sW1+3}, 0x00020000")
        A.e(f"v_mul_u32_u24 v{vPF}, 9216, v1")
        A.e(f"s_lshl_b32 s{s_t3}, s{s_m7}, 2")
        A.e(f"s_add_u32 s{s_t3}, s{s_t3}, s{s_w}")
        A.e(f"s_mul_i32 s{s_t0}, s{s_t3}, 57")
        A.e(f"s_lshr_b32 s{s_t0}, s{s_t0}, 9")
        A.e(f"s_mul_i32 s{s_t1}, s{s_t0}, 9")
        A.e(f"s_sub_u32 s{s_t1}, s{s_t3}, s{s_t1}")
        A.e(f"s_mul_i32 s{s_t1}, s{s_t1}, {64*9216}")
        A.e(f"s_mul_i32 s{s_t0}, s{s_t0}, 768")
        A.e(f"s_add_u32 s{s_t1}, s{s_t1}, s{s_t0}")
        A.e(f"s_add_u32 s{s_t1}, s{s_t1}, 128")
        A.e(f"s_cmp_lt_u32 s{s_t3}, 27")
        A.e(f"s_cselect_b32 s{s_t1}, s{s_t1}, 0x40000000")
        A.e(f"buffer_load_dword a199, v{vPF}, s[{sW1}:{sW1+3}], s{s_t1} offen")
        if 'w1pf2' in EXP:
            A.e(f"buffer_load_dword a198, v{vPF}, s[{sW1}:{sW1+3}], s{s_t1} offen offset:128")
    A.e(f"s_mul_i32 s{s_t0}, s{s_kq}, {1152*1152}")
    A.e(f"s_add_u32 s{sPF}, s{sW2}, s{s_t0}")
    A.e(f"s_addc_u32 s{sPF+1}, s{sW2+1}, 0")
    A.e(f"s_mov_b32 s{sPF+2}, {1152*1152}")
    A.e(f"s_mov_b32 s{sPF+3}, 0x00020000")
    A.e(f"v_lshlrev_b32 v{vPF}, 7, v1")
    A.e(f"s_lshl_b32 s{s_t3}, s{s_m7}, 2")
    A.e(f"s_add_u32 s{s_t3}, s{s_t3}, s{s_w}")
    A.e(f"s_mul_i32 s{s_t0}, s{s_t3}, 57")
    A.e(f"s_lshr_b32 s{s_t0}, s{s_t0}, 9")
    A.e(f"s_mul_i32 s{s_t0}, s{s_t0}, {384*1152 - 9*8192}")
    A.e(f"s_lshl_b32 s{s_t1}, s{s_t3}, 13")
    A.e(f"s_add_u32 s{s_pf+5}, s{s_t0}, s{s_t1}")
    A.e(f"s_lshr_b32 s{s_t0}, s{s_m}, 3")
    A.e(f"s_mul_i32 s{s_t1}, s{s_t0}, {64*1152}")
    A.e(f"s_add_u32 s{s_t1}, s{s_t1}, s{s_pf+5}")
    A.e(f"s_add_u32 s{s_pf}, s{s_t1}, {1*64*1152}")
    A.e(f"s_add_u32 s{s_pf+1}, s{s_t1}, {3*64*1152}")
    A.e(f"s_add_u32 s{s_pf+2}, s{s_pf+5}, {5*64*1152}")
    A.e(f"s_cmp_eq_u32 s{s_t0}, 0")
    A.e(f"s_cselect_b32 s{s_pf+2}, s{s_pf+2}, s{s_pf+5}")
    if 'now2c' in EXP:
        for q in range(3): A.e(f"s_mov_b32 s{s_pf+q}, 0x40000000")
    if W2T == 0: pf_hook(A, 0); pf_hook(A, 1)
    A.e(f"s_mov_b32 s{s_cA}, {fhex(L2E_HI)}")
    A.e(f"s_mov_b32 s{s_cB}, {fhex(L2E_LO)}")
    A.e(f"s_mov_b32 s{s_cC}, {fhex(LN2)}")
    A.e(f"s_add_u32 s{s_t0}, s{s_lb}, {SCR}")
    A.e(f"v_lshrrev_b32 v{T+4}, 1, v1")
    A.e(f"v_and_b32 v{T+5}, 1, v1")
    A.e(f"v_lshlrev_b32 v{T+5}, 3, v{T+5}")
    A.e(f"v_add_u32 v{T+5}, s{s_t0}, v{T+5}")
    for i in range(16):
        A.e(f"v_xor_b32 v{vW+i}, {33*i}, v{T+4}")
        A.e(f"v_lshl_add_u32 v{vW+i}, v{vW+i}, 4, v{T+5}")
    A.e(f"v_and_b32 v{T+6}, 15, v1")
    A.e(f"v_lshrrev_b32 v{T+7}, 4, v1")
    A.e(f"v_xor_b32 v{T+7}, v{T+7}, v{T+6}")
    A.e(f"v_lshlrev_b32 v{T+8}, 9, v{T+6}")
    A.e(f"v_add_u32 v{T+8}, s{s_t0}, v{T+8}")
    for k in range(4):
        A.e(f"v_xor_b32 v{vRD+k}, {4*k}, v{T+7}")
        A.e(f"v_lshl_add_u32 v{vRD+k}, v{vRD+k}, 4, v{T+8}")
    A.e(f"s_add_u32 s{s_t1}, s{s_lb}, {T_OFF}")
    A.e(f"v_lshlrev_b32 v{T+9}, 3, v1")
    A.e(f"v_sub_u32 v{T+9}, 2047, v{T+9}")
    for k in range(4):
        for e in range(9):
            g = vGa + 9*k + e
            A.e(f"v_subrev_u32 v{g}, {512*k + e}, v{T+9}")
        if k == 3: A.e(f"v_max_i32 v{vGa+35}, 0, v{vGa+35}")
        for e in range(9): A.e(f"v_cvt_f32_u32 v{vGa+9*k+e}, v{vGa+9*k+e}")
    for g in range(vGa, vGa + 36, 2):
        A.e(f"v_cvt_pk_bf16_f32 v{g+1}, v{g}, v{g+1}")
    for g in range(vGa, vGa + 36, 2):
        A.e(f"v_lshlrev_b32 v{g}, 16, v{g+1}")
        A.e(f"v_and_b32 v{g+1}, 0xffff0000, v{g+1}")
    for g in range(vGa, vGa + 36): A.e(f"v_cvt_u32_f32 v{g}, v{g}")
    for g in range(vGa, vGa + 36):
        A.e(f"v_lshrrev_b32 v{T+10+(g&1)}, 5, v{g}")
        A.e(f"v_add_lshl_u32 v{g}, v{g}, v{T+10+(g&1)}, 2")
    for g in range(vGa, vGa + 36): A.e(f"v_add_u32 v{g}, s{s_t1}, v{g}")
    if W2T == 0: pf_hook(A, 2)
    if W2T == 2: pf_hook(A, 0)
    A.e(f"s_add_u32 s{s_t2}, s{s_t1}, {4*2296}")
    A.e(f"v_mov_b32 v9, s{s_t2}")
    A.e("v_cmp_eq_u32 vcc, 63, v1")
    A.e(f"v_add_u32 v{vRW}, 16, v{vL16}")
    A.e(f"v_mov_b32 v{vPL+6}, 64")
    A.e(f"v_cndmask_b32 v{vGa+35}, v{vGa+35}, v9, vcc")
    A.e(f"v_add_u32 v{T+10}, 256, v{T+6}")
    A.e(f"v_cmp_eq_u32 vcc, 0, v{T+6}")
    A.e(f"v_mov_b32 v{vPL+5}, v{vL16}")
    A.e(f"v_and_b32 v{T+11}, 16, v1")
    A.e(f"v_cndmask_b32 v{T+10}, v{T+10}, v{T+6}, vcc")
    A.e(f"v_lshlrev_b32 v{T+10}, 4, v{T+10}")
    A.e(f"v_mul_u32_u24 v{T+11}, {SR//16}, v{T+11}")
    A.e(f"v_add_u32 v{vZW}, v{T+10}, v{T+11}")
    A.e(f"s_waitcnt vmcnt({0 if 'nopf' in EXP else (3 if 'now1pf' in EXP else (5 if 'w1pf2' in EXP else 4)) + (0 if 'notlb' in EXP else 2) - (0, 3, 2, 3)[W2T]})"); A.vm = []
    A.e(f"v_lshlrev_b32 v{T+6}, 3, v{T+6}")
    for k in range(12): A.e(f"v_add_u32 v{vSc+k}, v{vSc+k}, v{T+6}")
    for k in range(12):
        A.e(f"v_lshrrev_b32 v{T+10+(k&1)}, 5, v{vSc+k}")
        A.e(f"v_add_lshl_u32 v{vSc+k}, v{vSc+k}, v{T+10+(k&1)}, 2")
    for k in range(12): A.e(f"v_add_u32 v{vSc+k}, s{s_t1}, v{vSc+k}")
    A.e(f"v_lshlrev_b32 v{vDt}, 16, v{vDt}")
    A.e(f"v_lshlrev_b32 v{vDk}, 16, v{vDk}")
    exp_bf16_multi(A, [(vDt, vDt, T+12, T+13)])

def call_kchan(A, slot, ci_expr, rdst_off):
    for k in range(4): A.e(f"v_mov_b32 v{vCur+k}, v{vPar+4*slot+k}")
    A.e(ci_expr)
    A.e(f"s_add_u32 s{s_rdst}, s{s_lb}, {rdst_off}")
    if 'nokc' not in EXP: A.e(f"s_call_b64 s[{s_ret}:{s_ret+1}], L_kchan")

GSUM = 3*WREG + WREG - 512
def kgen_all(A):
    kc_setup(A)
    p1f.counter_arrive(A)
    stamp(A, 1)
    A.e(f"s_mov_b32 s{s_uok}, 0")
    if W2T == 1: pf_hook(A, 0); pf_hook(A, 1)
    if W2T == 2: pf_hook(A, 1)
    if W2T == 3: pf_hook(A, 0)
    A.e(f"s_cmp_lg_u32 s{s_w}, 0")
    A.e("s_cbranch_scc1 L_xw")
    A.c("-- wave 0: 9th channel, image exported")
    call_kchan(A, 0, f"s_mov_b32 s{s_ci}, 8", RB_OFF)
    A.e(f"s_add_u32 s{s_t0}, s{s_lb}, {RB_OFF}")
    A.e(f"v_add_u32 v{vCV}, s{s_t0}, v{vL16}")
    for k in range(9): A.e(f"ds_read_b128 v[{POOL[0]+4*k}:{POOL[0]+4*k+3}], v{vCV} offset:{1024*k}")
    A.e(f"s_mul_i32 s{s_t0}, s{s_ch0}, 1024")
    A.e(f"s_add_u32 s{s_t0}, s{s_t0}, {WS_R9}")
    A.e("s_waitcnt lgkmcnt(0)")
    for k in range(9):
        if k % 4 == 0 and k: A.e(f"s_add_u32 s{s_t0}, s{s_t0}, 4096")
        A.e(f"buffer_store_dwordx4 v[{POOL[0]+4*k}:{POOL[0]+4*k+3}], v{vL16}, s[{sWS}:{sWS+3}], s{s_t0} offen offset:{1024*(k%4)}")
    A.e("s_branch L_xw_done")
    A.label("L_xw")
    A.c("-- waves 1..3: u^T export and partial gate logits")
    T = vCV
    A.e(f"v_lshrrev_b32 v{T}, 1, v1")
    A.e(f"v_lshrrev_b32 v{T+1}, 1, v{T}")
    A.e(f"v_and_b32 v{T+1}, 7, v{T+1}")
    A.e(f"v_and_b32 v{T+2}, 1, v1")
    A.e(f"v_lshlrev_b32 v{T+2}, 2, v{T+2}")
    A.e(f"v_xor_b32 v{T+1}, v{T+1}, v{T+2}")
    A.e(f"s_add_u32 s{s_t3}, s{s_lb}, {SCR}")
    A.e(f"v_lshlrev_b32 v{T+3}, 7, v{T}")
    A.e(f"v_add_u32 v{T+3}, s{s_t3}, v{T+3}")
    for c in range(4):
        A.e(f"v_xor_b32 v{T+4}, {c}, v{T+1}")
        A.e(f"v_lshl_add_u32 v{T+4}, v{T+4}, 4, v{T+3}")
        for q in range(3): A.e(f"ds_read_b128 v[{vGX+16*q+4*c}:{vGX+16*q+4*c+3}], v{T+4} offset:{4096*q}")
    A.e("s_waitcnt lgkmcnt(0)")
    A.e(f"v_mov_b32 v{T+4}, 0"); A.e(f"v_mov_b32 v{T+5}, 0")
    for k in range(48): A.e(f"v_dot2c_f32_bf16 v{T+4+(k&1)}, v{vGX+k}, v{vGG+k}")
    A.e(f"s_lshl_b32 s{s_t0}, s{s_w}, 7")
    A.e(f"s_add_u32 s{s_t0}, s{s_t0}, {GSUM - 128}")
    A.e(f"v_lshlrev_b32 v{T}, 2, v{T}")
    A.e(f"v_add_f32 v{T+4}, v{T+4}, v{T+5}")
    A.e(f"v_add_u32 v{T}, s{s_t0}, v{T}")
    A.e("s_nop 0")
    A.e(f"v_add_f32_dpp v{T+4}, v{T+4}, v{T+4} quad_perm:[1,0,3,2] row_mask:0xf bank_mask:0xf")
    A.e(f"ds_write_b32 v{T}, v{T+4}")
    for q in range(0 if 'nout' in EXP else 3):
        A.e(f"s_call_b64 s[{s_ret}:{s_ret+1}], L_utsub")
        if q < 2:
            A.e(f"s_add_u32 s{s_line}, s{s_line}, 1")
            A.e(f"s_add_u32 s{s_t3}, s{s_t3}, 4096")
    A.label("L_xw_done")
    if W2T in (1, 2): pf_hook(A, 2)
    if W2T == 3: pf_hook(A, 1); pf_hook(A, 2)
    stamp(A, 2)
    call_kchan(A, 1, f"s_mov_b32 s{s_ci}, s{s_w}", RA_OFF)
    A.c("-- gate finish (wave 1), flag 1, W2 warm-up tables, counter poll")
    A.e("s_barrier")
    A.e(f"v_mov_b32 v{vS}, 1")
    A.e(f"s_waitcnt vmcnt(1)" if False else "s_waitcnt vmcnt(0)")
    A.e(f"buffer_store_dword v{vS}, off, s[{sWS}:{sWS+3}], s{s_fi}{SC}")
    A.e(f"s_cmp_lg_u32 s{s_w}, 1")
    A.e("s_cbranch_scc1 L_gt_skip")
    A.e(f"v_and_b32 v{T}, 31, v1")
    A.e(f"v_lshlrev_b32 v{T}, 2, v{T}")
    A.e(f"v_add_u32 v{T+1}, {GSUM}, v{T}")
    A.e(f"ds_read2_b32 v[{T+2}:{T+3}], v{T+1} offset0:0 offset1:32")
    A.e(f"ds_read_b32 v{T+4}, v{T+1} offset:256")
    A.e(f"s_lshl_b32 s{s_t0}, s{s_upos}, 1")
    A.e(f"s_add_u32 s{s_t0}, s{s_t0}, {WS_GT}")
    A.e("s_waitcnt lgkmcnt(0)")
    A.e(f"v_add_f32 v{T+2}, v{T+2}, v{T+3}")
    A.e(f"v_add_f32 v{T+2}, v{T+2}, v{T+4}")
    A.e(f"v_mul_f32 v{T+2}, {fhex(-LOG2E)}, v{T+2}")
    A.e(f"v_exp_f32 v{T+2}, v{T+2}")
    A.e("s_nop 0")
    A.e(f"v_add_f32 v{T+2}, 1.0, v{T+2}")
    A.e(f"v_rcp_f32 v{T+2}, v{T+2}")
    A.e("s_nop 0")
    A.e(f"buffer_store_dword v{T+2}, v{T}, s[{sWS}:{sWS+3}], s{s_t0} offen{SC}")
    A.label("L_gt_skip")
    A.e(f"buffer_load_dword v{vPL+4}, off, s[{sDBG}:{sDBG+3}], 0{SC}")
    A.e(f"s_mov_b32 s{s_uok}, 2")
    call_kchan(A, 2, f"s_add_u32 s{s_ci}, s{s_w}, 4", RB_OFF)
    stamp(A, 3)

def utchk(A):
    A.e(f"s_cmp_eq_u32 s{s_uok}, 1")
    A.e("s_cbranch_scc1 L_uc3")
    A.e(f"s_mov_b32 s{s_t0}, 0x20000")
    A.e(f"s_mov_b32 s{s_t1}, {F_U}")
    A.e(f"v_mov_b32 v{vPL}, 0")
    A.label("L_uc1")
    A.e(f"v_min_u32 v{vPL}, v{vPL}, v{vPL+1}")
    A.e(f"v_min3_u32 v{vPL}, v{vPL}, v{vPL+2}, v{vPL+3}")
    A.e(f"v_cmp_gt_u32 vcc, 1, v{vPL}")
    A.e(f"v_cmp_gt_u32 s[76:77], v{vPL+6}, v{vPL+4}")
    A.e("s_or_b64 vcc, vcc, s[76:77]")
    A.e("s_cbranch_scc0 L_uc3")
    A.e(f"s_sub_u32 s{s_t0}, s{s_t0}, 1")
    A.e("s_cbranch_scc1 L_uc3")
    A.e(f"buffer_load_dword v{vPL+4}, off, s[{sDBG}:{sDBG+3}], 0{SC}")
    A.e("s_waitcnt vmcnt(0)")
    A.e(f"buffer_load_dwordx4 v[{vPL}:{vPL+3}], v{vPL+5}, s[{sWS}:{sWS+3}], s{s_t1} offen{SC}")
    A.e("s_waitcnt vmcnt(0)")
    A.e("s_branch L_uc1")
    A.label("L_uc3")

def tables(A):
    A.raw(".p2align 4")
    A.label("L_atab")
    A.raw(".long " + ", ".join(str(x) for x in a_table()))
```

```python
import sys, os
from common import *
import p1f, big2
import conv5 as convf
import kc4
from p1f import *

def fused():
    A = Asm()
    K = NAME + "_kernel"
    A.raw(kernel_head(K))
    A.label("L_start")
    stamp(A, 0)
    if 'probe' in EXP: A.e("s_memrealtime s[86:87]")
    A.e("s_cmp_ge_u32 s2, 256")
    A.e("s_cbranch_scc1 L_end")
    A.e(f"s_lshr_b32 s{s_r}, s2, 3")
    A.e(f"s_and_b32 s{s_r}, s{s_r}, 3")
    A.e(f"s_cmp_eq_u32 s{s_r}, 3")
    A.e("s_cbranch_scc1 L_conv")
    big2.prologue(A)
    if not (EXP & {'tst', 'p2st'}): stamp(A, 1)
    ctx = big2.p1(A)
    big2.p2(A, *ctx)
    big2.tail(A, ctx[0])
    if 'probe' in EXP:
        A.e("s_cmp_lg_u32 s2, 0")
        A.e("s_cbranch_scc1 L_prb2")
        A.e(f"buffer_load_dwordx2 v[2:3], off, s[{sDBG}:{sDBG+3}], 0 offset:128 sc1")
        A.e("s_memrealtime s[88:89]")
        A.e("s_waitcnt vmcnt(0) lgkmcnt(0)")
        A.e("v_not_b32 v3, v3")
        PS = int(os.environ.get("PS", -1))
        if PS >= 0: A.e(f"v_mov_b32 v2, s{88 if PS == 9 else 94}")
        A.e("v_sub_u32 v2, v2, v3"); A.e("s_nop 1")
        A.e("v_readfirstlane_b32 s90, v2")
        A.e("s_min_u32 s90, s90, 5000")
        A.e(f"s_mul_i32 s90, s90, {10 if PS < 0 else 4}")
        A.e(f"buffer_store_dword v2, off, s[{sDBG}:{sDBG+3}], 0 offset:4")
        A.label("L_prb3")
        A.e("s_memrealtime s[92:93]"); A.e("s_waitcnt lgkmcnt(0)")
        A.e("s_sub_u32 s91, s92, s88"); A.e("s_cmp_lt_u32 s91, s90"); A.e("s_cbranch_scc1 L_prb3")
        A.label("L_prb2")
    if STAMPS:
        A.wait_all()
        if not (EXP & {'p1st', 'p2st'}): stamp(A, 7)
        stamp_flush(A)
    A.e("s_endpgm")
    A.label("L_conv")
    A.vm = []; A.lg = []
    for r, n in ((sX, "u"), (p_w1, "w1"), (sWS, "ws"), (sW2, "w2"), (sDBG, "dbg")):
        A.e(f"s_load_dwordx2 s[{r}:{r+1}], s[0:1], {KA[n]}")
    if 'nocpf' not in EXP:
        A.e(f"s_getpc_b64 s[{s_ret}:{s_ret+1}]")
        A.label("L_cpf_pc")
        A.e(f"s_sub_u32 s{s_ret}, s{s_ret}, L_cpf_pc-L_start")
        A.e(f"s_subb_u32 s{s_ret+1}, s{s_ret+1}, 0")
        A.e("v_lshrrev_b32 v2, 6, v0")
        A.e("s_lshr_b32 s3, s2, 5")
        A.e("s_lshl_b32 s3, s3, 2")
        A.e("v_add_u32 v2, s3, v2")
        A.e("v_and_b32 v2, 7, v2")
        A.e("v_lshlrev_b32 v2, 13, v2")
        A.e("v_and_b32 v3, 63, v0")
        A.e("v_lshl_add_u32 v2, v3, 7, v2")
        A.e("v_min_u32 v2, L_codeend-L_start-4, v2")
        A.e("v_and_b32 v2, -4, v2")
        A.vmem(f"global_load_dword a255, v2, s[{s_ret}:{s_ret+1}]", "cpf")
    setup_common(A)
    A.e(f"v_mov_b32 v{vS}, 0")
    A.e("s_waitcnt lgkmcnt(0)")
    for r, n in ((sX, L_*D_*2), (sWS, WS_BYTES), (sW2, D_*F_*2), (sDBG, 256)):
        A.e(f"s_mov_b32 s{r+2}, {hex(n)}"); A.e(f"s_mov_b32 s{r+3}, 0x00020000")
    if 'wsend' in EXP:
        A.e(f"s_add_u32 s{sWS}, s{sWS}, {WS_BYTES - 0x2A00000}"); A.e(f"s_addc_u32 s{sWS+1}, s{sWS+1}, 0"); A.e(f"s_mov_b32 s{sWS+2}, 0x2A00000")
    A.e(f"s_mov_b32 s{p_ws}, s{sWS}"); A.e(f"s_mov_b32 s{p_ws+1}, s{sWS+1}")
    A.vm = ["cpf"]; A.lg = []
    if 'probe' in EXP:
        A.e(f"s_cmp_lg_u32 s{s_w}, 3")
        A.e("s_cbranch_scc1 L_prb")
        A.e("s_mov_b64 exec, 1")
        A.e("v_mov_b32 v2, s86"); A.e("v_not_b32 v3, v2")
        A.e(f"buffer_atomic_umax v2, off, s[{sDBG}:{sDBG+3}], 0 offset:128 sc1")
        A.e(f"buffer_atomic_umax v3, off, s[{sDBG}:{sDBG+3}], 0 offset:132 sc1")
        A.e("s_mov_b64 exec, -1")
        A.label("L_prb")
    A.e(f"s_and_b32 s{s_t0}, s{s_fi}, 0xffffff80")
    A.e("v_lshrrev_b32 v2, 4, v1")
    A.e("v_lshlrev_b32 v2, 13, v2")
    A.e("v_and_b32 v3, 15, v1")
    A.e("v_lshl_add_u32 v2, v3, 2, v2")
    A.e(f"v_add_u32 v2, s{s_t0}, v2")
    A.e(f"s_mul_i32 s{s_t0}, s{s_m}, 12")
    A.e(f"s_add_u32 s{s_t0}, s{s_t0}, s{s_kq}")
    A.e(f"s_lshl_b32 s{s_t0}, s{s_t0}, 7")
    A.e(f"s_add_u32 s{s_t0}, s{s_t0}, {F_P}")
    A.e("v_min_u32 v3, 11, v3")
    A.e("v_lshrrev_b32 v4, 2, v3")
    A.e("v_lshlrev_b32 v4, 9, v4")
    A.e("v_and_b32 v3, 3, v3")
    A.e("v_lshl_add_u32 v3, v3, 2, v4")
    A.e("v_cmp_gt_u32 vcc, 48, v1")
    A.e(f"v_add_u32 v3, s{s_t0}, v3")
    A.e(f"s_cmp_lg_u32 s{s_w}, 0")
    A.e("v_cndmask_b32 v2, v3, v2, vcc")
    A.e("s_cbranch_scc1 L_nz")
    A.e(f"buffer_store_dword v{vS}, v2, s[{sWS}:{sWS+3}], 0 offen{SC}")
    A.label("L_nz")
    A.e(f"s_lshr_b32 s{s_fi}, s{s_fi}, 7")
    A.e(f"s_and_b32 s{s_fi}, s{s_fi}, 63")
    A.e(f"s_lshl_b32 s{s_fi}, s{s_fi}, 2")
    A.e(f"s_add_u32 s{s_fi}, s{s_fi}, s{s_w}")
    A.e(f"s_lshl_b32 s{s_fi}, s{s_fi}, 2")
    A.e(f"s_add_u32 s{s_fi}, s{s_fi}, {F_U}")
    A.e(f"s_cmp_lg_u32 s{s_w}, 0")
    A.e("s_cbranch_scc1 L_nz3")
    A.e("v_and_b32 v2, 4, v1")
    A.e("v_lshlrev_b32 v2, 10, v2")
    A.e("v_and_b32 v3, 3, v1")
    A.e("v_lshl_add_u32 v2, v3, 2, v2")
    A.e(f"buffer_store_dword v{vS}, v2, s[{sWS}:{sWS+3}], s{s_fi} offen{SC}")
    A.label("L_nz3")
    if 'noconv' in EXP: A.e("s_endpgm")
    kc4.kgen_all(A)
    if 'kgonly' in EXP:
        stamp(A, 7); stamp_flush(A); A.e("s_endpgm")
    if 'ramp' in EXP: A.e("s_endpgm")
    if 'kgst' in EXP:
        stamp(A, 7); stamp_flush(A); A.e("s_endpgm")
    convf.conv_all(A, ldflag=SC, stflag=SC)
    A.e(f"v_mov_b32 v{vS}, 1")
    A.e(f"s_add_u32 s{s_fi}, s{s_fi}, 4096")
    A.e("s_waitcnt vmcnt(0)")
    A.e(f"buffer_store_dword v{vS}, off, s[{sWS}:{sWS+3}], s{s_fi}{SC}")
    A.wait_all()
    stamp(A, 7)
    stamp_flush(A)
    A.label("L_end")
    A.e("s_endpgm")
    ut_sub(A, kc4.POOL[0])
    kc4.kchan_sub(A)
    big2.poll_sub(A)
    big2.sb_slow(A)
    kc4.tables(A)
    A.label("L_codeend")
    return A.text(), KD.format(name=K, vgpr=512, accum=256)

HDR = open("cdna_kernels/" + NAME + ".s.ref").read().split("; Override launch")[0]
if __name__ == "__main__":
    t, kd = fused()
    s = HDR + f"; @launch grid=(256,1,1) block=(256,1,1) lds={LDS_BYTES}\n" + '.amdgcn_target "amdgcn-amd-amdhsa--gfx950"\n.text\n' + t + '.section .rodata,"a"\n.p2align 6\n' + kd
    open(sys.argv[1], "w").write(s)
```

```python
from common import *
from p1f import Ring, setup_common, counter_arrive, ut_sub
vXD, vXR, vWD, vAR, vBI, vL16, vS, vEW, vER, vW2D, vA2 = 2, 4, 8, 10, 13, 17, 31, 15, 16, 18, 24
ACC, TMP, BIAS, MT, HS = 32, 64, 96, 128, 144
ARING = [112, 116, 120, 124, 140]
EX = 6*SLOT
M_BIAS = MISC
M_FL = MISC + 2048
s_sl, s_hs, s_rr, s_pb, s_need, s_lane, s_val, s_w2l, s_fp, s_yd = 66, 70, 79, 82, 83, 84, 85, 3, 74, 75
vFL, vFA, TMP2, vFC = vXD, vXD + 1, vXR, vXR + 2
vCN = vFC + 1
vSA, vSR, vSV = 14, 0, 30
SBAR = MISC + 4096
SOFT = 'softbar' in EXP
class Soft:
    n = 0
def sb_arrive(A):
    Soft.n += 1
    A.e(f"v_mov_b32 v{vS}, {Soft.n}")
    A.ds(f"ds_write_b32 v{vSA}, v{vS}", "sbw")
def sb_read(A): A.ds(f"ds_read_b32 v{vSV}, v{vSR}", "sbr")
def sb_check(A):
    l1, l2 = A.newlabel("L_sb"), A.newlabel("L_sbs")
    A.wait_lg("sbr")
    A.e(f"v_cmp_gt_u32 vcc, {Soft.n}, v{vSV}")
    A.e(f"s_cbranch_vccnz {l2}")
    A.label(l1)
    A.slow.append((l2, l1, Soft.n))
def sb_slow(A):
    for l2, l1, n in A.slow:
        A.label(l2)
        A.e(f"ds_read_b32 v{vSV}, v{vSR}")
        A.e("s_waitcnt lgkmcnt(0)")
        A.e(f"v_cmp_gt_u32 vcc, {n}, v{vSV}")
        A.e(f"s_cbranch_vccnz {l2}")
        A.e(f"s_branch {l1}")
G0 = 18
AOFF = 0 if 'single0' in EXP else 36
PB0 = int(os.environ.get('PB0', 10))
PB1 = int(os.environ.get('PB1', 0))
N0 = int(os.environ.get('N0', 3))
N2 = int(os.environ.get('N2', 6))
P0V = int(os.environ.get('P0V', 1))
FLUSH = int(os.environ.get('FLUSH', 0))
def xreg(rb, s):
    if rb == 0: return f"a[{4*s}:{4*s+3}]"
    if s < 12: return f"a[{208+4*s}:{211+4*s}]"
    if s < 28: return f"a[{144+4*(s-12)}:{147+4*(s-12)}]"
    return f"v[{224+4*(s-28)}:{227+4*(s-28)}]"
def hs(pi): return HS + 64 if pi == 0 else HS + 16*(pi - 1)

def rw_entries(A, lo, hi):
    for kl in range(lo, hi):
        A.e(f"s_mul_i32 s{s_rw+kl}, s{s_rho}, {64*9216}")
        if kl < 8:
            A.e(f"s_add_u32 s{s_rho}, s{s_rho}, 1")
            A.e(f"s_cmp_eq_u32 s{s_rho}, 9")
            A.e(f"s_cselect_b32 s{s_rho}, 0, s{s_rho}")
def prologue(A):
    T = MT
    if 'cpf0' in EXP:
        A.e(f"s_getpc_b64 s[{s_ret}:{s_ret+1}]")
        A.e("v_lshlrev_b32 v2, 7, v0")
        A.e("v_and_b32 v2, 0x1fff, v2")
        A.vmem(f"global_load_dword v{HS}, v2, s[{s_ret}:{s_ret+1}]", "cpf")
    for r, n in ((sX, "u"), (sW1, "w1"), (sT0, "b1"), (sWS, "ws"), (sW2, "w2"), (sDBG, "dbg"), (sT1, "out")):
        A.e(f"s_load_dwordx2 s[{r}:{r+1}], s[0:1], {KA[n]}")
    A.e("v_lshrrev_b32 v2, 6, v0")
    A.e("v_and_b32 v1, 63, v0")
    A.e("s_and_b32 s3, s2, 7")
    A.e(f"v_readfirstlane_b32 s{s_w}, v2")
    A.e(f"s_lshr_b32 s{s_kq}, s3, 1")
    A.e("s_and_b32 s3, s3, 1")
    A.e("s_lshl_b32 s3, s3, 3")
    A.e(f"s_lshr_b32 s{s_m7}, s2, 5")
    A.e(f"s_add_u32 s{s_m}, s{s_m7}, s3")
    A.e(f"s_mul_i32 s{s_rho}, s{s_r}, 3")
    A.e(f"s_add_u32 s{s_rho}, s{s_rho}, s{s_m7}")
    mod_small(A, s_rho, s_rho, 9)
    rw_entries(A, 0, 2)
    A.e(f"s_mul_i32 s{s_t2}, s{s_kq}, 2304")
    A.e(f"s_mul_i32 s{s_t1}, s{s_r}, 768")
    A.e(f"s_add_u32 s{s_t2}, s{s_t2}, s{s_t1}")
    A.e(f"s_lshl_b32 s{s_wl}, s{s_w}, 11")
    A.e(f"s_mul_i32 s{s_pc}, s{s_w}, 20480")
    A.e(f"v_lshrrev_b32 v{T}, 3, v1")
    A.e(f"v_and_b32 v{T+1}, 7, v1")
    A.e(f"s_lshl_b32 s{s_t0}, s{s_m}, 7")
    A.e(f"s_lshl_b32 s{s_t1}, s{s_w}, 5")
    A.e(f"s_add_u32 s{s_t0}, s{s_t0}, s{s_t1}")
    A.e(f"v_add_u32 v{T+2}, s{s_t0}, v{T}")
    A.e(f"v_mul_u32_u24 v{T+2}, 1152, v{T+2}")
    A.e(f"v_lshrrev_b32 v{T+3}, 1, v{T}")
    A.e(f"v_xor_b32 v{T+3}, v{T+3}, v{T+1}")
    A.e(f"v_lshl_add_u32 v{vXD}, v{T+3}, 4, v{T+2}")
    A.e(f"v_xor_b32 v{vXD+1}, 64, v{vXD}")
    A.e(f"v_add_u32 v{vXD+1}, 8192, v{vXD+1}")
    A.e(f"s_lshl_b32 s{s_t0}, s{s_w}, 4")
    A.e(f"v_add_u32 v{T+2}, s{s_t0}, v{T}")
    A.e(f"v_mul_u32_u24 v{T+2}, 9216, v{T+2}")
    A.e(f"v_lshlrev_b32 v{T+3}, 1, v{T}")
    A.e(f"v_and_b32 v{T+3}, 4, v{T+3}")
    A.e(f"v_xor_b32 v{T+3}, v{T+3}, v{T+1}")
    A.e(f"v_lshl_add_u32 v{vWD}, v{T+3}, 4, v{T+2}")
    A.e(f"v_add_u32 v{vWD+1}, {8*9216 - 1024}, v{vWD}")
    A.e(f"v_lshlrev_b32 v{MT+2}, 1, v0")
    for r, n in ((sX, L_*D_*2), (sW1, 575*9216 + 256), (sT0, F_*2)):
        A.e(f"s_mov_b32 s{r+2}, {hex(n)}"); A.e(f"s_mov_b32 s{r+3}, 0x00020000")
    A.e("s_waitcnt lgkmcnt(0)")
    A.e(f"s_add_u32 s{sW1}, s{sW1}, s{s_t2}")
    A.e(f"s_addc_u32 s{sW1+1}, s{sW1+1}, 0")

def setup2(A):
    T = MT + 4
    rw_entries(A, 2, 9)
    for r, n in ((sWS, WS_BYTES), (sW2, D_*F_*2), (sDBG, 256), (sT1, L_*D_*2)):
        A.e(f"s_mov_b32 s{r+2}, {hex(n)}"); A.e(f"s_mov_b32 s{r+3}, 0x00020000")
    A.e(f"v_lshlrev_b32 v{vL16}, 4, v1")
    A.e(f"s_lshl_b32 s{s_t0}, s{s_m}, 2")
    A.e(f"s_add_u32 s{s_t0}, s{s_t0}, s{s_kq}")
    A.e(f"s_lshl_b32 s{s_hb}, s{s_t0}, 2")
    A.e(f"s_lshl_b32 s{s_fi}, s{s_t0}, 3")
    A.e(f"s_add_u32 s{s_fi}, s{s_fi}, s{s_r}")
    A.e(f"s_lshl_b32 s{s_fi}, s{s_fi}, 2")
    A.e(f"s_add_u32 s{s_fi}, s{s_fi}, s{s_w}")
    A.e(f"s_lshl_b32 s{s_fi}, s{s_fi}, 2")
    A.e(f"s_add_u32 s{s_fi}, s{s_fi}, {WS_F}")
    A.e(f"s_add_u32 s{s_hb}, s{s_hb}, s{s_w}")
    A.e(f"s_mul_i32 s{s_hb}, s{s_hb}, 73728")
    A.e(f"s_mul_i32 s{s_t0}, s{s_r}, 24576")
    A.e(f"s_add_u32 s{s_hb}, s{s_hb}, s{s_t0}")
    A.e(f"s_mov_b32 s{s_log2e}, {fhex(LOG2E)}")
    A.e(f"v_and_b32 v{T}, 31, v1")
    A.e(f"v_lshrrev_b32 v{T+1}, 5, v1")
    A.e(f"v_lshrrev_b32 v{T+2}, 1, v{T}")
    A.e(f"v_and_b32 v{T+2}, 7, v{T+2}")
    A.e(f"v_xor_b32 v{T+2}, v{T+2}, v{T+1}")
    A.e(f"s_lshr_b32 s{s_t0}, s{s_w}, 1")
    A.e(f"s_mul_i32 s{s_t0}, s{s_t0}, 40960")
    A.e(f"s_add_u32 s{s_t0}, s{s_t0}, {XRING}")
    A.e(f"v_lshlrev_b32 v{T+3}, 7, v{T}")
    A.e(f"v_add_u32 v{T+3}, s{s_t0}, v{T+3}")
    for ks in range(4):
        A.e(f"v_xor_b32 v{T+4}, {2*ks}, v{T+2}")
        A.e(f"v_lshl_add_u32 v{vXR+ks}, v{T+4}, 4, v{T+3}")
    A.e(f"s_and_b32 s{s_t1}, s{s_w}, 1")
    A.e(f"s_lshl_b32 s{s_t0}, s{s_t1}, 7")
    A.e(f"s_add_u32 s{s_t0}, s{s_t0}, {M_BIAS}")
    A.e(f"v_lshlrev_b32 v{vBI}, 4, v{T+1}")
    A.e(f"v_add_u32 v{vBI}, s{s_t0}, v{vBI}")
    A.e(f"v_lshrrev_b32 v{T}, 2, v1")
    A.e(f"v_and_b32 v{T}, 3, v{T}")
    A.e(f"v_lshl_add_u32 v{T+2}, v{T+1}, 3, v{T}")
    A.e(f"v_lshlrev_b32 v{T+2}, 7, v{T+2}")
    A.e(f"v_lshrrev_b32 v{T+3}, 1, v{T}")
    A.e(f"v_xor_b32 v{T+3}, s{s_t1}, v{T+3}")
    A.e(f"v_lshl_add_u32 v{T+2}, v{T+3}, 6, v{T+2}")
    A.e(f"v_lshrrev_b32 v{T+3}, 4, v1")
    A.e(f"v_and_b32 v{T+3}, 1, v{T+3}")
    A.e(f"v_lshl_add_u32 v{T+2}, v{T+3}, 5, v{T+2}")
    A.e(f"v_and_b32 v{T+4}, 3, v1")
    A.e(f"v_lshl_add_u32 v{vAR}, v{T+4}, 3, v{T+2}")
    for j in (1, 2): A.e(f"v_add_u32 v{vAR+j}, {j*2*SLOT}, v{vAR}")
    A.e(f"s_add_u32 s{s_t0}, s{s_wl}, {EX}")
    A.e(f"v_add_u32 v{vEW}, s{s_t0}, v{vL16}")
    A.e(f"v_xor_b32 v{vER}, 2048, v{vEW}")
    A.e(f"v_lshl_add_u32 v{T+1}, v{T+1}, 2, v{T}")
    A.e(f"v_mul_u32_u24 v{T+1}, 384, v{T+1}")
    A.e(f"v_lshl_add_u32 v{T+1}, v{T+3}, 5, v{T+1}")
    A.e(f"v_lshl_add_u32 v{T+1}, v{T+4}, 3, v{T+1}")
    A.e(f"v_lshrrev_b32 v{T}, 1, v{T}")
    A.e(f"v_lshlrev_b32 v{T}, 6, v{T}")
    A.e(f"v_add_u32 v{vA2}, v{T+1}, v{T}")
    A.e(f"v_sub_u32 v{vA2+1}, v{T+1}, v{T}")
    for j in (1, 2):
        A.e(f"v_add_u32 v{vA2+2*j}, {j*2*SLOT}, v{vA2}")
        A.e(f"v_add_u32 v{vA2+2*j+1}, {j*2*SLOT}, v{vA2+1}")
    A.e(f"s_mul_i32 s{s_w2l}, s{s_w}, 6144")
    A.e(f"s_mul_i32 s{s_t0}, s{s_r}, 24576")
    A.e(f"s_sub_u32 s{s_t0}, s{s_hb}, s{s_t0}")
    A.e(f"s_mul_i32 s{s_t1}, s{s_kq}, {1152*1152}")
    A.e(f"s_mul_i32 s{s_t2}, s{s_r}, 384")
    A.e(f"s_add_u32 s{s_t1}, s{s_t1}, s{s_t2}")
    for idx in range(3):
        A.e(f"s_add_u32 s{s_t2}, s{s_r}, {idx}")
        mod_small(A, s_t2, s_t2, 3)
        if idx: A.e(f"s_mov_b32 s{s_rr+idx-1}, s{s_t2}")
        A.e(f"s_mul_i32 s{s_t3}, s{s_t2}, {384*1152}")
        A.e(f"s_add_u32 s{s_sl+idx}, s{s_t1}, s{s_t3}")
        A.e(f"s_mul_i32 s{s_t3}, s{s_t2}, 24576")
        A.e(f"s_add_u32 s{s_hs+idx}, s{s_t0}, s{s_t3}")
    A.e(f"s_mul_i32 s{s_t0}, s{s_w}, {16*1152}")
    for i3 in range(3):
        A.e(f"v_add_u32 v{T}, {64*i3}, v1")
        A.e(f"v_mul_u32_u24 v{T+1}, 2731, v{T}")
        A.e(f"v_lshrrev_b32 v{T+1}, 16, v{T+1}")
        A.e(f"v_mul_u32_u24 v{T+2}, 24, v{T+1}")
        A.e(f"v_sub_u32 v{T+2}, v{T}, v{T+2}")
        A.e(f"v_lshlrev_b32 v{T+3}, 1, v{T+1}")
        A.e(f"v_and_b32 v{T+3}, 4, v{T+3}")
        A.e(f"v_xor_b32 v{T+2}, v{T+2}, v{T+3}")
        A.e(f"v_mul_u32_u24 v{T+1}, 1152, v{T+1}")
        A.e(f"v_lshl_add_u32 v{T+1}, v{T+2}, 4, v{T+1}")
        A.e(f"v_add_u32 v{T+1}, s{s_t0}, v{T+1}")
        for g in range(2):
            i = 3*g + i3
            A.e(f"v_add_u32 v{vW2D+i}, {hex((g*8*1152 - (i&3)*1024) & 0xffffffff)}, v{T+1}")
    A.e(f"s_mul_i32 s{s_fp}, s{s_m}, 3")
    A.e(f"s_add_u32 s{s_fp}, s{s_fp}, s{s_r}")
    A.e(f"s_lshl_b32 s{s_pb}, s{s_fp}, 2")
    A.e(f"s_add_u32 s{s_fp}, s{s_pb}, s{s_w}")
    A.e(f"s_lshl_b32 s{s_fp}, s{s_fp}, 5")
    A.e(f"s_add_u32 s{s_fp}, s{s_fp}, s{s_kq}")
    A.e(f"s_lshl_b32 s{s_fp}, s{s_fp}, 2")
    A.e(f"s_add_u32 s{s_fp}, s{s_fp}, {F_P}")

def x_dma_ops(kl):
    m = Op(f"s_add_u32 m0, s{s_pc}, {XRING + (kl % 5)*4096}", kind="salu")
    s1 = Op(f"s_mul_hi_u32 s{s_so}, s{s_rw+kl}, {-(-(1 << 32)//4608)}", kind="salu")
    o = [m, s1]
    for i in range(4):
        if i == 2: o.append(Op(f"s_add_u32 s{s_so}, s{s_so}, 16384", kind="salu"))
        o.append(Op(f"buffer_load_dwordx4 v{vXD+(i&1)}, s[{sX}:{sX+3}], s{s_so} offen offset:{i*1024} lds", kind="vmem", tag=f"x{kl}", deps=[(m, 2)]))
    return o
def x_read(A, kl):
    for rb in range(2):
        for ks in range(4):
            A.ds(f"ds_read_b128 {xreg(rb, 4*kl+ks)}, v{vXR+ks} offset:{rb*20480 + (kl % 5)*4096}", f"xr{kl}")
def w1_line_ops(st, j, slot):
    kl = 3*(st % 3) + j
    m = Op(f"s_add_u32 m0, s{s_wl}, {slot*SLOT + j*8192}", kind="salu")
    return [m] + [Op(f"buffer_load_dwordx4 v{vWD+i}, s[{sW1}:{sW1+3}], s{s_rw+kl} offen offset:{i*1024} lds", kind="vmem", tag=(f"W{kl}" if st < 3 else f"st{st}"), deps=[(m, 2)]) for i in range(2)]
def w1_dma_ops(st, slot):
    o = []
    if st % 3 == 0: o.append(Op(f"s_add_u32 s{sW1}, s{sW1}, {256 if (st == 6 and 'single0' not in EXP) else 128}\n    s_addc_u32 s{sW1+1}, s{sW1+1}, 0", kind="salu", cost=8))
    for j in range(3): o += w1_line_ops(st, j, slot)
    return o
FIRST = ("x0", "W0", "x1", "W1", "x2", "W2", "x3", "W3", "x4", "W4")
def first_ops(k):
    n = int(k[1])
    return x_dma_ops(n) if k[0] == "x" else w1_line_ops(n // 3, n % 3, n // 3)

def mish_ops(pi, done_pos, TMP=TMP, prev=None):
    ops = []; G = []
    for grp in range(16):
        rb = grp // 8
        es = [2*grp, 2*grp + 1]
        tb = MT + (grp % 3)*4
        m = [Op(f"v_mul_f32 v{tb+2*i}, s{s_log2e}, v{TMP+e}", deps=[(done_pos[rb], 13)]) for i, e in enumerate(es)]
        x = [Op(f"v_exp_f32 v{tb+2*i}, v{tb+2*i}", cost=8, trans=True, deps=[(m[i], 1)]) for i in range(2)]
        p = [Op(f"v_fma_f32 v{tb+2*i+1}, v{tb+2*i}, -0.5, -1.0", deps=[(x[i], 2)]) for i in range(2)]
        d = [Op(f"v_fma_f32 v{tb+2*i+1}, v{tb+2*i}, v{tb+2*i+1}, -1.0", deps=[(p[i], 1)]) for i in range(2)]
        r = [Op(f"v_rcp_f32 v{tb+2*i+1}, v{tb+2*i+1}", cost=8, trans=True, deps=[(d[i], 1)]) for i in range(2)]
        y = [Op(f"v_fmac_f32 v{TMP+e}, v{TMP+e}, v{tb+2*i+1}", deps=[(r[i], 2)]) for i, e in enumerate(es)]
        c = Op(f"v_cvt_pk_bf16_f32 v{hs(pi)+grp}, v{TMP+es[0]}, v{TMP+es[1]}", deps=[(y[0], 1), (y[1], 1)])
        Gp = G[grp-3] if grp >= 3 else (prev[13 + (grp + 2) % 3] if prev else None)
        if Gp:
            for i in range(2):
                m[i].deps.append((Gp[0][i], 1)); p[i].deps.append((Gp[1][i], 1))
        G.append((d, y))
        ops += m + x + p + d + r + y + [c]
    mish_ops.G = G
    return ops
def ex_block(A, pi, send):
    l1, l2 = A.newlabel("L_ex"), A.newlabel("L_exe")
    A.e(f"s_bitcmp1_b32 s{s_w}, 0")
    A.e(f"s_cbranch_scc1 {l1}")
    for par in range(2):
        b = hs(pi) + (8 if par == 0 else 0)
        for k in range(2):
            t = (f"ds_write_b128 v{vEW}, v[{b+4*k}:{b+4*k+3}] offset:{1024*k}" if send else f"ds_read_b128 v[{b+4*k}:{b+4*k+3}], v{vER} offset:{1024*k}")
            if par == 0: A.ds(t, f"ex{'s' if send else 'r'}{pi}")
            else: A.e(t)
        if par == 0:
            A.e(f"s_branch {l2}"); A.label(l1)
    A.label(l2)
def h_store_ops(pi):
    o = [Op(f"buffer_store_dwordx4 v[{hs(pi)+4*q}:{hs(pi)+4*q+3}], v{vL16}, s[{sWS}:{sWS+3}], s{s_hb} offen offset:{q*1024}{SC}", kind="vmem", tag=f"h{pi}") for q in range(4)]
    o.append(Op(f"s_add_u32 s{s_hb}, s{s_hb}, 4096", kind="salu"))
    return o
def reread_ops(pi, n):
    if 'rr' not in EXP: return []
    v = f"v_lshlrev_b32 v{TMP2}, 7, v1" if n == 2 else f"v_lshlrev_b32 v{TMP2}, 5, v{vFL}"
    return [Op(f"{v}\n    s_add_u32 s{s_t1}, s{s_hs}, {pi*4096}\n    buffer_load_dword v{TMP2+1}, v{TMP2}, s[{sWS}:{sWS+3}], s{s_t1} offen{SC}", kind="vmem", tag="rr", cost=12)]
def flag_ops(ev):
    return [Op(f"v_mov_b32 v{vS}, {ev+1}\n    s_add_u32 s{s_t1}, s{s_fi}, {ev*8192}\n    buffer_store_dword v{vS}, off, s[{sWS}:{sWS+3}], s{s_t1}{SC}", kind="vmem", tag="flag", cost=12)]
def bias_read(A, pi, BIAS=BIAS):
    for g in range(4):
        A.ds(f"ds_read_b128 v[{BIAS+4*g}:{BIAS+4*g+3}], v{vBI} offset:{256*pi + 32*g}", f"bias{pi}")
def a_reads(A, gs, ring):
    st, ks = gs // 12, gs % 12
    slot = ring.slot[st]; buf = ARING[(gs - AOFF) % 5]
    for rd in range(2):
        A.ds(f"ds_read_b64_tr_b16 v[{buf+2*rd}:{buf+2*rd+1}], v{vAR+slot//2} offset:{(slot%2)*SLOT + (16*ks+4*rd)*128}", f"a{gs}")

def pump(q, bud, maxv):
    u = nv = 0
    while q.q and q.ready(q.q[0]):
        o = q.q[0]
        if o.kind == "vmem":
            if nv >= maxv: break
            nv += 1
        if u and u + o.cost > bud: break
        if u == 0 and bud <= 0: break
        q.q.pop(0); q.emit(o); u += o.cost
    return u

ACCB, BIASB = HS + 32, HS + 16
BRING = [TMP + 4*i for i in range(5)]
def wimg_ops(n):
    kl, b = n // 2, n % 2
    m = Op(f"s_add_u32 m0, s{s_wl}, {(n % 9)*8192}" + (f"\n    s_add_u32 s{s_so}, s{s_rw+kl}, 128" if b else ""), kind="salu")
    return [m] + [Op(f"buffer_load_dwordx4 v{vWD+i}, s[{sW1}:{sW1+3}], s{s_so if b else s_rw+kl} offen offset:{i*1024} lds", kind="vmem", tag=f"W{kl}", deps=[(m, 2)]) for i in range(2)]
def a0_reads(A, gs):
    kl, ks = gs // 4, gs % 4
    for b in range(2):
        o = ((2*kl + b) % 9)*8192 + 16*ks*128
        base = vAR if o < 49152 else vAR + 1
        if o >= 49152: o -= 49152
        buf = (ARING if b == 0 else BRING)[gs % 5]
        for rd in range(2):
            A.ds(f"ds_read_b64_tr_b16 v[{buf+2*rd}:{buf+2*rd+1}], v{base} offset:{o + 512*rd}", f"a{gs}")
def flush_tags(A, memq, tg):
    while any(o.tag in tg for o in memq.q):
        o = memq.q.pop(0)
        while not memq.ready(o): A.e("s_nop 0")
        memq.emit(o)

def phase0(A):
    ring = Ring(); ring.slot = {}; ring.next = 6
    xo, wo = x_dma_ops(0), wimg_ops(0)
    emit_now(A, xo[:3]); emit_now(A, wo[:2])
    A.vmem(f"buffer_load_ushort v{MT}, v{MT+2}, s[{sT0}:{sT0+3}], s{s_t2} offen", "b1")
    A.e(f"s_mov_b32 s{s_line}, s{s_t2}")
    setup2(A)
    emit_now(A, wo[2:])
    xo2 = x_dma_ops(0); emit_now(A, xo2[:1] + xo2[3:])
    emit_now(A, wimg_ops(1))
    A.vmem(f"buffer_load_ushort v{MT+1}, v{MT+2}, s[{sT0}:{sT0+3}], s{s_line} offen offset:512", "b1")
    rest = []
    for kl in range(1, 5):
        rest.append(x_dma_ops(kl)); rest.append(wimg_ops(2*kl))
        if kl < 4: rest.append(wimg_ops(2*kl + 1))
    for g in rest[:N0]: emit_now(A, g)
    A.wait_vm("b1")
    A.e(f"v_lshlrev_b32 v{MT}, 16, v{MT}")
    A.e(f"v_lshlrev_b32 v{MT+1}, 16, v{MT+1}")
    A.e(f"v_lshlrev_b32 v{MT+2}, 2, v0")
    A.e(f"v_add_u32 v{MT+2}, {M_BIAS}, v{MT+2}")
    A.ds(f"ds_write_b32 v{MT+2}, v{MT}", "bw")
    A.ds(f"ds_write_b32 v{MT+2}, v{MT+1} offset:1024", "bw")
    A.slow = []
    A.wait_lg("bw")
    A.e("s_barrier")
    stamp(A, 2)
    memq = Filler(A)
    for g in rest[N0:]: memq.add(g)
    bias_read(A, 0); bias_read(A, 1, BIASB); a0_reads(A, 0); x_read(A, 0)
    for gs in range(1, 4): a0_reads(A, gs)
    xrd = {0: [1], 4: [2], 8: [3], 12: [4], 16: [5, 6], 20: [7, 8]}
    done = {}
    for gs in range(36):
        order = [(0, 0), (0, 1), (1, 0), (1, 1)] if gs < 35 else [(1, 0), (1, 1), (0, 0), (0, 1)]
        for q, (b, rb) in enumerate(order):
            if gs == 0 and q == 0: A.wait_lg(["bias1", "a0", "xr0"])
            acc = (ACC if b == 0 else ACCB) + 16*rb
            cin = (BIAS if b == 0 else BIASB) if gs == 0 else acc
            dst = TMP + 16*rb if (gs == 35 and b == 0) else acc
            buf = (ARING if b == 0 else BRING)[gs % 5]
            A.e(f"v_mfma_f32_32x32x16_bf16 v[{dst}:{dst+15}], v[{buf}:{buf+3}], {xreg(rb, gs)}, v[{cin}:{cin+15}]")
            if gs == 35: done[(b, rb)] = A.n - 1
            if q == 0:
                if gs % 4 == 0:
                    j = gs // 4
                    tg = ([f"W{j+1}"] if j < 8 else ["st6"]) + [f"x{k}" for k in xrd.get(gs, [])]
                    flush_tags(A, memq, tg)
                    A.wait_vm(tg)
                    if gs == 24: A.wait_lg("xr8")
                    A.e("s_barrier")
                    if j + 5 <= 8: memq.add(x_dma_ops(j + 5))
                    for n in (2*j + 7, 2*j + 8):
                        if 9 <= n <= 17: memq.add(wimg_ops(n))
                    if gs == 24: ring.free += [3, 4, 5]
                    if gs == 28: ring.free += [0]
                    for k in ring.alloc(G0 + 18): memq.add(w1_dma_ops(k, ring.slot[k]))
                if gs % 2 == 0:
                    A.wait_lg([f"a{gs+1}", f"a{gs+2}", f"xr{(gs+1)//4}", f"xr{(gs+2)//4}"] if gs < 34 else ["a35", "a72"])
                if gs + 4 < 36: a0_reads(A, gs + 4)
                else: a_reads(A, 72 + gs - 32, ring)
            if q == 1:
                for k in xrd.get(gs, []): x_read(A, k)
                if gs == 22: bias_read(A, 2)
            nv = sum(o.kind == "vmem" for o in memq.q)
            if q in (1, 3) or (q == 2 and nv > PB0): pump(memq, 40, 1)
    return ring, memq, done

def p1(A):
    if 'single0' not in EXP: return p1_rest(A, *phase0(A))
    return p1_old(A)
def p1_old(A):
    nsteps = 216
    ring = Ring()
    xo, wo = first_ops("x0"), first_ops("W0")
    emit_now(A, xo[:3])
    emit_now(A, wo[:2])
    A.vmem(f"buffer_load_ushort v{MT}, v{MT+2}, s[{sT0}:{sT0+3}], s{s_t2} offen", "b1")
    A.e(f"s_mov_b32 s{s_line}, s{s_t2}")
    if 'rst' in EXP: stamp(A, 3)
    setup2(A)
    if 'rst' in EXP: stamp(A, 4)
    emit_now(A, wo[2:])
    xo2 = first_ops("x0"); emit_now(A, xo2[:1] + xo2[3:])
    A.vmem(f"buffer_load_ushort v{MT+1}, v{MT+2}, s[{sT0}:{sT0+3}], s{s_line} offen offset:512", "b1")
    for k in FIRST[2:N2]: emit_now(A, first_ops(k))
    if 'rst' in EXP: stamp(A, 5)
    A.wait_vm("b1")
    if 'rst' in EXP: stamp(A, 6)
    A.e(f"v_lshlrev_b32 v{MT}, 16, v{MT}")
    A.e(f"v_lshlrev_b32 v{MT+1}, 16, v{MT+1}")
    A.e(f"v_lshlrev_b32 v{MT+2}, 2, v0")
    A.e(f"v_add_u32 v{MT+2}, {M_BIAS}, v{MT+2}")
    A.ds(f"ds_write_b32 v{MT+2}, v{MT}", "bw")
    A.ds(f"ds_write_b32 v{MT+2}, v{MT+1} offset:1024", "bw")
    A.slow = []
    A.e(f"s_lshl_b32 s{s_t0}, s{s_w}, 2")
    A.e(f"s_add_u32 s{s_t0}, s{s_t0}, {SBAR}")
    A.e(f"v_mov_b32 v{vSA}, s{s_t0}")
    A.e(f"v_mov_b32 v{vS}, 0")
    A.e(f"v_and_b32 v{vSR}, 3, v1")
    A.e(f"v_lshlrev_b32 v{vSR}, 2, v{vSR}")
    A.e(f"v_add_u32 v{vSR}, {SBAR}, v{vSR}")
    A.ds(f"ds_write_b32 v{vSA}, v{vS}", "bw")
    A.wait_vm(["x0", "W0"]); A.wait_lg("bw")
    if 'rst' in EXP:
        stamp(A, 7); A.e("s_barrier"); stamp(A, 2); stamp_flush(A); A.e("s_endpgm")
    A.e("s_barrier")
    if 'p2st' not in EXP: stamp(A, 2)
    bias_read(A, 0); a_reads(A, 0, ring); x_read(A, 0)
    for gs in range(1, 4): a_reads(A, gs, ring)
    memq = Filler(A); valq = Filler(A); stq = Filler(A)
    done = {}
    xsched = {0: ([1], [1]), 4: ([2], [2]), 8: ([3], [3]), 12: ([4], [4]), 16: ([5], [5]), 20: ([6], [6]), 24: ([7, 8], [7, 8]), 28: ([], [])}
    xdma = {0: ["x5", "W5"], 4: ["x6", "W6"], 8: ["x7", "W7"], 12: ["x8", "W8"]}
    for k in FIRST[N2:]: memq.add(first_ops(k))
    return p1_loop(A, 0, ring, memq, valq, stq, done, xsched, xdma)
def p1_rest(A, ring, memq, done):
    return p1_loop(A, 72, ring, memq, Filler(A), Filler(A), done, {}, {})
def p1_loop(A, gs0, ring, memq, valq, stq, done, xsched, xdma):
    nsteps = 216
    dbl = gs0 == 72
    sent0 = False
    for gs in range(gs0, nsteps):
        pair, s = gs // 36, gs % 36
        st, ks = gs // 12, gs % 12
        if gs == 72 and not (EXP & {'p1st', 'p2st'}): stamp(A, 3)
        if 'p1st' in EXP and gs % 36 == 0 and gs: stamp(A, 1 + gs//36)
        if s == 0 and pair > 0:
            pp = pair - 1
            if pair == 3: valq.add(pre_p2_ops())
            if dbl and pair == 2:
                m0 = mish_ops(0, [lambda: done[(0, 0)], lambda: done[(0, 1)]]); valq.add(m0)
                valq.add(mish_ops(1, [lambda: done[(1, 0)], lambda: done[(1, 1)]], TMP=ACCB, prev=mish_ops.G))
            if 'nomish' not in EXP and not (dbl and pair == 2): valq.add(mish_ops(pp, [lambda p=pp: done.get((p, 0)), lambda p=pp: done.get((p, 1))]))
        if gs == 150: memq.add([Op(f"buffer_load_dword v{vCN}, off, s[{sDBG}:{sDBG+3}], 0{SC}", kind="vmem", tag="cnt")])
        for rb in range(2):
            if s == 0 and rb == 0: A.wait_lg([f"bias{pair}", f"a{gs}", "xr0"])
            acc = ACC + 16*rb
            cin = BIAS if s == 0 else acc
            dst = (TMP + 16*rb) if s == 35 else acc
            if s == 35: assert not valq.q
            buf = ARING[(gs - AOFF) % 5]
            A.e(f"v_mfma_f32_32x32x16_bf16 v[{dst}:{dst+15}], v[{buf}:{buf+3}], {xreg(rb, s)}, v[{cin}:{cin+15}]")
            if s == 35: done[(pair, rb)] = A.n - 1
            n0 = A.n
            if rb == 0:
                bar = False
                if gs in xdma:
                    for k in xdma[gs]: memq.add(first_ops(k))
                if gs in xsched:
                    xs, ws = xsched[gs]
                    tg = [f"x{k}" for k in xs] + [f"W{k}" for k in ws]
                    while any(o.tag in tg for o in memq.q) or (memq.q and gs < FLUSH):
                        o = memq.q.pop(0)
                        while not memq.ready(o): A.e("s_nop 0")
                        memq.emit(o)
                    A.wait_vm(tg)
                    if gs == 28: A.wait_lg("xr8")
                    A.e("s_barrier"); bar = True
                elif SOFT and ks == SD1 and gs > 28:
                    tags = [f"st{st+1}"]
                    if gs + 8 - SD1 == 212: tags += ["cnt"]
                    A.wait_vm(tags)
                    if s + 8 - SD1 == 8 and pair >= 2: A.wait_lg(f"exs{pair-2}")
                    if s + 8 - SD1 == 20 and pair >= 2: A.wait_lg(f"exr{pair-2}")
                    sb_arrive(A)
                elif SOFT and ks == 8:
                    sb_check(A); bar = True
                    if gs == 212: check_counter(A)
                elif ks == 8:
                    tags = [f"st{st+1}"]
                    if gs == 188: tags += ["cnt", "h2"]
                    A.wait_vm(tags)
                    if s == 8 and pair >= 2: A.wait_lg(f"exs{pair-2}")
                    if s == 20 and pair >= 2: A.wait_lg([f"exr{pair-2}", "exs0"])
                    if s == 32: A.wait_lg("exr0")
                    if dbl and gs == 80: ring.free += [1, 2]
                    if dbl and gs == 92: assert sent0
                    A.e("s_nop 0" if 'nobar' in EXP else "s_barrier"); bar = True
                    if gs == 188:
                        check_counter(A); stq.q = flag_ops(0) + stq.q
                    if gs == 212: memq.add(flagcopy_ops(0))
                if bar:
                    for k in range(st + 1):
                        if 12*k + 11 < gs: ring.release(k)
                    if gs == 28: ring.free += [3, 4, 5]
                    for k in ring.alloc(G0 + 18):
                        if not ('now1' in EXP and k >= 6): memq.add(w1_dma_ops(k, ring.slot[k]) if k < 18 else w2_dma_ops(k, ring.slot[k]))
                if gs % 2 == 0:
                    A.wait_lg([f"a{gs+1}", f"a{gs+2}"] + ([f"xr{(gs+1)//4}", f"xr{(gs+2)//4}"] if pair == 0 else []) + ([f"exr{pair-2}"] if s == 10 else []) + (["exr0"] if gs == 94 else []))
                if s == (22 if (dbl and pair == 2) else 10) and pair >= 2: hst = h_store_ops(pair - 2)
                if pair >= 2 and s in ((22, 25, 28, 31) if (dbl and pair == 2) else HSITES):
                    if 'nost' not in EXP: stq.add([hst.pop(0)])
                    if len(hst) == 1: stq.add([hst.pop(0)])
                if gs + 4 < nsteps: a_reads(A, gs + 4, ring)
                else:
                    for j in (2*(gs - 212), 2*(gs - 212) + 1):
                        if j < LEAD: a2_read(A, j, ring)
                if gs in xsched:
                    for k in xsched[gs][0]: x_read(A, k)
                if SOFT and ks == 7 and gs > 28: sb_read(A)
                if s == (20 if (dbl and pair == 2) else 8) and pair >= 2: ex_block(A, pair - 2, False)
                if s == 22 and pair + 1 < 6: bias_read(A, pair + 1)
                bud = 24 - 4*(A.n - n0)
                if pair == 0:
                    u = pump(memq, 40, P0V)
                elif 'oldpace' in EXP:
                    u = pump(stq, bud, 1)
                    if u == 0: u += pump(memq, max(bud - u, 4 if len(memq.q) > 12 else 0), 1)
                else:
                    nv = sum(o.kind == "vmem" for o in memq.q)
                    left = (7 - ks) % 12
                    u = pump(memq, bud, 1 if (gs % 2 == 1 or nv > left//2 + BK1) else 0) if bud > 0 else 0
                valq.fill(max(0, bud - u), allow_trans=False, window=30)
            else:
                u = 0
                if pair == 0:
                    if sum(o.kind == "vmem" for o in memq.q) > PB1: u = pump(memq, 40, P0V)
                elif 'oldpace' in EXP:
                    if len(memq.q) > 10: u = pump(memq, 8, 1)
                else:
                    u = pump(stq, 12, 1)
                    if u == 0 and sum(o.kind == "vmem" for o in memq.q) > BK2: u = pump(memq, 8, 1)
                rem = 33 - s
                work = valq.total()
                bud = 24 - u
                while work - bud > max(rem, 0)*PCAP and bud < (64 if (dbl and pair == 2) else 40): bud += 4
                if dbl and pair == 2:
                    left0 = sum(o.cost for o in m0 if o.pos is None)
                    while left0 - bud > max(17 - s, 0)*PCAP and bud < 64 and s <= 18: bud += 4
                    if s == 18 and left0: bud = left0 + 64
                fill_odd(valq, bud, window=30)
                if dbl and pair == 2 and not sent0 and all(o.pos is not None for o in m0):
                    ex_block(A, 0, True); sent0 = True
                if s == 34:
                    valq.drain()
                if s == 35 and pair >= 1: ex_block(A, pair - 1, True)
    valq.add(mish_ops(5, [lambda: done.get((5, 0)), lambda: done.get((5, 1))]))
    return ring, memq, valq, stq
HSITES = eval(os.environ.get('HSITES', '(10, 16, 24, 30)'))
BK1 = int(os.environ.get('BK1', 2))
BK2 = int(os.environ.get('BK2', 9))
SD1 = int(os.environ.get('SD1', 5))
SD2 = int(os.environ.get('SD2', 7))
PCAP = int(os.environ.get('PCAP', 32))

SEQ = [(0, 1), (0, 2), (0, 3), (0, 4), (0, 0), (0, 5), (1, 0), (1, 1), (1, 2), (2, 0), (2, 1), (2, 2), (1, 3), (2, 3), (1, 4), (2, 4), (1, 5), (2, 5)]
IMP = [k for k, (i, p) in enumerate(SEQ) if not (i == 0 and p > 0)]
aR = 208
LEAD = 7
def acc2(t): return [32, 48, 96, 112, 224, 240][t]
def hreg(step):
    k, j = step // 4, step % 4
    if k in IMP:
        b = 16*IMP.index(k) + 4*j
        return f"a[{b}:{b+3}]"
    b = hs(SEQ[k][1]) + 4*j
    return f"v[{b}:{b+3}]"
def w2_dma_ops(gst, slot):
    idx, pi = SEQ[gst - G0]
    tag = f"st{gst}"
    m0a = Op(f"s_add_u32 m0, s{s_w2l}, {slot*SLOT}", kind="salu")
    so = Op(f"s_add_u32 s{s_so}, s{s_sl+idx}, {pi*64*1152}", kind="salu")
    o = [m0a, so]
    for i in range(4):
        o.append(Op(f"buffer_load_dwordx4 v{vW2D+i}, s[{sW2}:{sW2+3}], s{s_so} offen offset:{i*1024} lds", kind="vmem", tag=tag, deps=[(m0a, 2)]))
    m0b = Op(f"s_add_u32 m0, s{s_w2l}, {slot*SLOT + 4096}", kind="salu")
    o.append(m0b)
    for i in range(4, 6):
        o.append(Op(f"buffer_load_dwordx4 v{vW2D+i}, s[{sW2}:{sW2+3}], s{s_so} offen offset:{(i&3)*1024} lds", kind="vmem", tag=tag, deps=[(m0b, 2)]))
    return o
def h_load_ops(k):
    idx, pi = SEQ[k]
    return [Op(f"s_add_u32 s{s_t2}, s{s_hs+idx}, {pi*4096}", kind="salu")] + \
           [Op(f"buffer_load_dwordx4 {hreg(4*k+j)}, v{vL16}, s[{sWS}:{sWS+3}], s{s_t2} offen offset:{j*1024}{SC}", kind="vmem", tag=f"st{G0+k}") for j in range(4)]
def flagcopy_ops(ev):
    return [Op(f"s_lshl_b32 s{s_val}, s{s_w}, 8\n    s_add_u32 m0, s{s_val}, {M_FL}\n    s_and_b32 s{s_val}, s{s_fi}, 0xffffff80\n    s_add_u32 s{s_val}, s{s_val}, {ev*8192}\n"
               f"    buffer_load_dword v{vFL}, s[{sWS}:{sWS+3}], s{s_val} offen sc1 lds", kind="vmem", tag="fc", cost=20)]
def pre_p2_ops():
    o = [Op(f"v_and_b32 v{vFL}, 31, v1\n    v_lshlrev_b32 v{vFL}, 2, v{vFL}", cost=8),
         Op(f"v_and_b32 v{vFA}, 3, v1\n    v_lshlrev_b32 v{vFA}, 4, v{vFA}\n    s_mul_i32 s{s_val}, s{s_w}, 260\n    s_add_u32 s{s_val}, s{s_val}, {M_FL}\n    v_add_u32 v{vFA}, s{s_val}, v{vFA}", cost=20),
         Op(f"v_mov_b32 v{vFC}, 0\n    s_lshl_b32 s{s_val}, s{s_w}, 8\n    s_add_u32 s{s_val}, s{s_val}, {M_FL}\n    v_lshl_add_u32 v{vFC+1}, v1, 2, s{s_val}\n    ds_write_b32 v{vFC+1}, v{vFC}", cost=20, kind="ds", tag="fz")]
    return o
def check(A, lane_sgpr, ev):
    lab = A.newlabel("L_chk")
    A.e(f"v_readlane_b32 s{s_val}, v{vFC}, s{lane_sgpr}")
    A.e(f"s_movk_i32 s{s_need}, {ev*8192}")
    A.e(f"s_mov_b32 s{s_lane}, s{lane_sgpr}")
    A.e(f"s_cmp_eq_u32 s{s_val}, {ev+1}")
    A.e(f"s_cbranch_scc1 {lab}")
    A.e(f"s_call_b64 s[{s_ret}:{s_ret+1}], L_poll")
    A.label(lab)
def check_counter(A):
    lab = A.newlabel("L_chk")
    A.e(f"v_readfirstlane_b32 s{s_val}, v{vCN}")
    A.e("s_nop 0")
    A.e(f"s_cmp_ge_u32 s{s_val}, 64")
    A.e(f"s_cbranch_scc1 {lab}")
    A.e(f"s_call_b64 s[{s_ret}:{s_ret+1}], L_pollc")
    A.label(lab)
def poll_sub(A):
    A.label("L_poll")
    A.e(f"s_mov_b32 s{s_t0}, 0x20000")
    A.e(f"v_and_b32 v{TMP2}, 3, v1")
    A.e(f"v_lshlrev_b32 v{TMP2}, 4, v{TMP2}")
    A.label("L_poll_loop")
    A.e("s_sleep 2")
    A.e(f"s_and_b32 s{s_val}, s{s_fi}, 0xffffffcf")
    A.e(f"s_add_u32 s{s_val}, s{s_val}, s{s_need}")
    A.e(f"buffer_load_dword v{TMP2+1}, v{TMP2}, s[{sWS}:{sWS+3}], s{s_val} offen{SC}")
    A.e("s_waitcnt vmcnt(0)")
    A.e(f"v_readlane_b32 s{s_val}, v{TMP2+1}, s{s_lane}")
    A.e(f"s_sub_u32 s{s_t0}, s{s_t0}, 1")
    A.e("s_cbranch_scc1 L_poll_out")
    A.e(f"s_cmp_eq_u32 s{s_val}, 0")
    A.e("s_cbranch_scc1 L_poll_loop")
    A.label("L_poll_out")
    A.e(f"s_setpc_b64 s[{s_ret}:{s_ret+1}]")
    A.label("L_pollc")
    A.e(f"s_mov_b32 s{s_t0}, 0x20000")
    A.label("L_pollc_loop")
    A.e("s_sleep 2")
    A.e(f"buffer_load_dword v{TMP2+1}, off, s[{sDBG}:{sDBG+3}], 0{SC}")
    A.e("s_waitcnt vmcnt(0)")
    A.e(f"v_readfirstlane_b32 s{s_val}, v{TMP2+1}")
    A.e(f"s_sub_u32 s{s_t0}, s{s_t0}, 1")
    A.e("s_cbranch_scc1 L_pollc_out")
    A.e(f"s_cmp_lt_u32 s{s_val}, 64")
    A.e("s_cbranch_scc1 L_pollc_loop")
    A.label("L_pollc_out")
    A.e(f"s_setpc_b64 s[{s_ret}:{s_ret+1}]")
TM0 = 360
def jmap(j):
    if j < TM0: return j // 6, j % 6
    return 60 + (j - TM0) % 12, (j - TM0) // 12
def a2_read(A, j, ring):
    step, t = jmap(j)
    k, ks = step // 4, step % 4
    slot = ring.slot[G0 + k]; buf = aR + 4*(j % 12)
    for rd in range(2):
        A.ds(f"ds_read_b64_tr_b16 a[{buf+2*rd}:{buf+2*rd+1}], v{vA2+2*(slot//2)+(t&1)} offset:{(slot%2)*SLOT + (16*ks+8*rd)*384 + t*64}", f"f{j}")
PKR = [HS + 4*i for i in range(12)]
vOW = TMP + 12
def export_ops(t, done):
    ops = []
    for kk in range(2):
        p = 2*t + kk
        a = acc2(t) + 8*kk; Q = PKR[p]
        c = [Op(f"v_cvt_pk_bf16_f32 v{Q+d}, v{a+2*d}, v{a+2*d+1}", deps=[(done, 13)]) for d in range(4)]
        sw = Op(f"v_permlane32_swap_b32 v{Q}, v{Q+2}\n    v_permlane32_swap_b32 v{Q+1}, v{Q+3}", cost=8, deps=[(x, 3) for x in c])
        st = Op(f"s_cmp_eq_u32 s{s_w}, s{s_kq}\n    s_cbranch_scc1 L_xo{p}\n    buffer_store_dwordx4 v[{Q}:{Q+3}], v{vL16}, s[{sWS}:{sWS+3}], s{s_sl + p//4} offen offset:{(p%4)*1024}{SC}\n"
                f"    s_branch L_xe{p}\nL_xo{p}:\n    ds_write_b128 v{vOW}, v[{Q}:{Q+3}] offset:{p*1024}\nL_xe{p}:", cost=16, deps=[(sw, 1)])
        ops += c + [sw, st]
    return ops

vYA, vYF, vYD, vGT, vRow = TMP, TMP + 4, TMP + 1, TMP + 8, TMP + 10
def y_prep_ops():
    t = [f"s_mul_i32 s{s_val}, s{s_r}, 21", f"v_add_u32 v{vYA}, s{s_val}, v1", f"s_lshr_b32 s{s_val}, s{s_fi}, 7", f"s_and_b32 s{s_val}, s{s_val}, 63",
         f"v_mov_b32 v{vYD}, s{s_val}", "v_cmp_lt_u32 vcc, 21, v1", f"s_lshl_b32 s{s_upos}, s{s_val}, 5", f"s_mov_b32 s{s_yd}, 0",
         f"v_cndmask_b32 v{vYA}, v{vYA}, v{vYD}, vcc", f"v_lshlrev_b32 v{vYA}, 4, v{vYA}"]
    a = Op("\n    ".join(t), cost=40)
    t = [f"v_lshrrev_b32 v{vYD}, 2, v1", f"v_lshlrev_b32 v{vYD}, 12, v{vYD}", f"v_and_b32 v{vRow}, 3, v1", f"v_lshl_add_u32 v{vYD}, v{vRow}, 4, v{vYD}",
         f"v_and_b32 v{vRow}, 31, v1", f"v_lshlrev_b32 v{vRow+1}, 2, v{vRow}", f"s_mul_i32 s{s_line}, s{s_r}, 192", f"s_mul_i32 s{s_val}, s{s_w}, 48", f"s_add_u32 s{s_line}, s{s_line}, s{s_val}"]
    b = Op("\n    ".join(t), cost=36)
    t = [f"v_mov_b32 v{vYF+k}, 0" for k in range(4)] + [f"ds_write_b128 v{vEW}, v[{vYF}:{vYF+3}]"]
    c = Op("\n    ".join(t), cost=24, kind="ds", tag="yz")
    return [a, b, c]
def exp_prep_op(OWN):
    t = [f"s_add_u32 s{s_val}, s{s_pb}, s{s_w}", f"s_lshl_b32 s{s_val}, s{s_val}, 2", f"s_add_u32 s{s_val}, s{s_val}, s{s_kq}", f"s_mul_i32 s{s_val}, s{s_val}, 12288",
         f"s_add_u32 s{s_sl}, s{s_val}, {WS_P}", f"s_add_u32 s{s_sl+1}, s{s_sl}, 4096", f"s_add_u32 s{s_sl+2}, s{s_sl}, 8192", f"v_add_u32 v{vOW}, {OWN}, v{vL16}"]
    return Op("\n    ".join(t), cost=32)
def y_loads(A, YT):
    A.e(f"s_lshl_b32 s{s_t1}, s{s_line}, 12")
    A.e(f"s_lshl_b32 s{s_t0}, s{s_upos}, 1")
    A.e(f"s_add_u32 s{s_t1}, s{s_t1}, s{s_t0}")
    A.e(f"s_add_u32 s{s_t1}, s{s_t1}, {WS_Y}")
    A.e(f"s_mul_i32 s{s_val}, s{s_w}, 3072")
    for i in range(3):
        A.e(f"s_add_u32 m0, s{s_val}, {YT + 1024*i}")
        if i: A.e(f"s_add_u32 s{s_t1}, s{s_t1}, 65536")
        else: A.e(f"s_lshl_b32 s{s_t0}, s{s_upos}, 2")
        A.e(f"buffer_load_dwordx4 v{vYD}, s[{sWS}:{sWS+3}], s{s_t1} offen sc1 lds")
    A.e(f"s_add_u32 s{s_t0}, s{s_t0}, {WS_GT}")
    A.e(f"buffer_load_dword v{vGT}, v{vRow+1}, s[{sWS}:{sWS+3}], s{s_t0} offen{SC}")
def y_test(A):
    A.e(f"v_and_b32 v{vYF}, v{vYF}, v{vYF+1}")
    A.e(f"v_and_b32 v{vYF+2}, v{vYF+2}, v{vYF+3}")
    A.e(f"v_and_b32 v{vYF}, v{vYF}, v{vYF+2}")
    A.e(f"v_cmp_ne_u32 vcc, 1, v{vYF}")

def p2(A, ring, memq, valq, stq):
    N = 432
    hl = {1: [4], 41: [6], 65: [7], 89: [8], 113: [9], 137: [10], 161: [11], 209: [12, 13], 233: [14], 257: [15], 281: [16, 17]}
    checks = {41: 0, 209: 1, 281: 2}
    flags = {113: ("h4", 1), 209: ("h5", 2)}
    hsites = {21: 4, 33: 4, 45: 4, 57: 4, 117: 5, 129: 5, 141: 5, 153: 5}
    hst = {4: h_store_ops(4), 5: h_store_ops(5)}
    tdone = {}
    sent5 = False
    A.wait_lg(["f0", "f1"])
    for j in range(N):
        if 'p2st' in EXP:
            if j % 72 == 0: stamp(A, 1 + j//72)
        else:
            if j == 0: stamp(A, 7 if 'p1st' in EXP else 4)
            if j == 120 and 'p1st' not in EXP: stamp(A, 5)
        step, t = jmap(j)
        k = step // 4
        acc = acc2(t); buf = aR + 4*(j % 12)
        A.e(f"v_mfma_f32_32x32x16_bf16 v[{acc}:{acc+15}], a[{buf}:{buf+3}], {hreg(step)}, {'0' if step == 0 else f'v[{acc}:{acc+15}]'}")
        if step == 71:
            tdone[t] = A.n - 1
            valq.add(export_ops(t, lambda t=t: tdone[t]))
        n0 = A.n
        isbar = (j + LEAD) % 24 == 0 and j < TM0
        if SOFT and (j + SD2 + LEAD) % 24 == 0 and j + SD2 < TM0:
            jb = j + SD2
            tags = [f"st{G0+k+1}"]
            if jb in flags: tags.append(flags[jb][0])
            if jb == 353: tags += [f"st{G0+16}", f"st{G0+17}"]
            A.wait_vm(tags)
            if jb == 17: A.wait_lg("exs4")
            if jb == 41: A.wait_lg("exr4")
            if jb == 113:
                assert sent5; A.wait_lg("exs5")
            if jb == 137: A.wait_lg("exr5")
            sb_arrive(A)
        if isbar and SOFT: sb_check(A)
        if isbar and not SOFT:
            tags = [f"st{G0+k+1}"]
            if j in flags: tags.append(flags[j][0])
            if j == 353: tags += [f"st{G0+16}", f"st{G0+17}"]
            A.wait_vm(tags)
            if j == 17: A.wait_lg("exs4")
            if j == 41: A.wait_lg("exr4")
            if j == 113:
                assert sent5; A.wait_lg("exs5")
            if j == 137: A.wait_lg("exr5")
            A.e("s_nop 0" if 'nobar' in EXP else "s_barrier")
        if isbar:
            if j in flags: stq.q = flag_ops(flags[j][1]) + stq.q
            ring.release(G0 + k - 1)
            if j in checks:
                assert not any(o.tag == "fc" for o in memq.q)
                A.wait_lg("fcr")

                if 'nochk' not in EXP: check(A, s_rr, checks[j]); check(A, s_rr + 1, checks[j])
            if j + 48 in checks: memq.add(flagcopy_ops(checks[j + 48]))
            for g in ring.alloc(G0 + 18):
                if 'now2' not in EXP: memq.add(w2_dma_ops(g, ring.slot[g]))
            if j == 161: valq.add(y_prep_ops())
            if j == 329: valq.add([exp_prep_op(ring.slot[G0 + 13]*SLOT)])
        if j == YC:
            memq.add([Op(f"s_add_u32 m0, s{s_wl}, {EX}\n    s_mov_b32 s{s_val}, {F_Y}\n    buffer_load_dwordx4 v{vYA}, s[{sWS}:{sWS+3}], s{s_val} offen sc1 lds", kind="vmem", tag="yc", cost=12)])
        if j == YR + 4:
            assert not memq.q
            A.wait_lg("yr")
            y_test(A)
            A.e("s_nop 0")
            A.e("s_cbranch_vccnz L_ynot")
            y_loads(A, ring.slot[G0 + 12]*SLOT)
            A.e(f"s_mov_b32 s{s_yd}, 1")
            A.label("L_ynot")
        for x in ([] if 'noh' in EXP else hl.get(j, [])): memq.add(h_load_ops(x))
        if j % 3 == 0:
            A.wait_lg([f"f{j+1}", f"f{j+2}", f"f{j+3}"] + (["exr4"] if j == 21 else []) + (["exr5"] if j == 117 else []))
        if j in hsites:
            h = hst[hsites[j]]
            stq.add([h.pop(0)])
            if len(h) == 1: stq.add([h.pop(0)])
        if j < PR:
            if j % 2 == 1:
                a2_read(A, j + LEAD, ring); a2_read(A, j + LEAD + 1, ring)
            elif j == 0: a2_read(A, LEAD, ring)
        elif j + LEAD < N and not (PR and j == PR): a2_read(A, j + LEAD, ring)
        if SOFT and (j + 3 + LEAD) % 24 == 0 and j + 3 < TM0: sb_read(A)
        if j == 17: ex_block(A, 4, False)
        if j == 113: ex_block(A, 5, False)
        if j + 4 in checks: A.ds(f"ds_read_b32 v{vFC}, v{vFA}", "fcr")
        if j == YR: A.ds(f"ds_read_b128 v[{vYF}:{vYF+3}], v{vEW}", "yr")
        if not valq.q and not sent5 and j > 41:
            ex_block(A, 5, True); sent5 = True
        bud = max(0, 24 - 4*(A.n - n0))
        u = pump(stq, bud, 1)
        left = 22 - ((j + LEAD) % 24)
        if u == 0: u = pump(memq, bud, 1 if (j % 2 == (1 if j < PR else 0) or 2*sum(x.kind == "vmem" for x in memq.q) > left) else 0)
        if valq.q and j < PR and j % 2 == 1:
            valq.fill(max(0, bud - u), allow_trans=False, window=30)
        elif valq.q:
            b2 = max(0, bud - u)
            if j < 110 and valq.total() > MC*(MEND - j): b2 += 4
            if MEND <= j < 161: b2 = 1000
            if j > 161 and u == 0 and valq.q[0].cost > b2 and valq.ready(valq.q[0]): b2 = valq.q[0].cost
            fill_odd(valq, b2, window=(30 if j < 161 else 6))
    assert not memq.q and not stq.q
    if 'p1st' not in EXP: stamp(A, 7 if 'p2st' in EXP else 6)
    valq.drain()
PR = int(os.environ.get('PR', 0))
MEND = 98
MC = int(os.environ.get('MC', 11))
YC = int(os.environ.get('YC', 354))
YR = int(os.environ.get('YR', 400))

def tail(A, ring):
    OWN = ring.slot[G0 + 13]*SLOT; YT = ring.slot[G0 + 12]*SLOT
    A.e(f"s_add_u32 s{s_pb}, s{s_pb}, s{s_kq}")
    A.e(f"s_mul_i32 s{s_pb}, s{s_pb}, 49152")
    A.e(f"s_mul_i32 s{s_t2}, s{s_w}, 3072")
    A.e(f"s_add_u32 s{s_pb}, s{s_pb}, s{s_t2}")
    A.e(f"s_add_u32 s{s_pb}, s{s_pb}, {WS_P}")
    A.e("s_waitcnt lgkmcnt(0)")
    A.e("s_barrier")
    A.e(f"s_cmp_eq_u32 s{s_w}, s{s_kq}")
    A.e("s_cbranch_scc1 L_own_done")
    A.e(f"v_mov_b32 v{vS}, 1")
    A.e("s_waitcnt vmcnt(0)")
    A.e(f"buffer_store_dword v{vS}, off, s[{sWS}:{sWS+3}], s{s_fp}{SC}")
    A.label("L_own_done")
    if 'tst' in EXP: stamp(A, 2)
    A.vm = []; A.lg = []
    V = 32
    A.e(f"s_cmp_lg_u32 s{s_yd}, 0")
    A.e("s_cbranch_scc1 L_py_out")
    A.e(f"s_mov_b32 s{s_t0}, 0x20000")
    A.e(f"s_mov_b32 s{s_t1}, {F_Y}")
    A.label("L_py")
    A.e(f"buffer_load_dwordx4 v[{vYF}:{vYF+3}], v{vYA}, s[{sWS}:{sWS+3}], s{s_t1} offen{SC}")
    A.e("s_waitcnt vmcnt(0)")
    y_test(A)
    A.e(f"s_sub_u32 s{s_t0}, s{s_t0}, 1")
    A.e("s_cbranch_scc1 L_py_go")
    A.e("s_sleep 1")
    A.e("s_cbranch_vccnz L_py")
    A.label("L_py_go")
    y_loads(A, YT)
    A.label("L_py_out")
    if 'tst' in EXP: stamp(A, 3)
    A.e(f"v_and_b32 v{V}, 3, v1")
    A.e(f"v_cmp_eq_u32 s[{s_ret}:{s_ret+1}], s{s_kq}, v{V}")
    A.e(f"v_lshlrev_b32 v{V}, 2, v{V}")
    A.e(f"s_and_b32 s{s_need}, s{s_fp}, 0xfffffe00")
    A.e(f"s_lshl_b32 s{s_t0}, s{s_kq}, 7")
    A.e(f"s_add_u32 s{s_need}, s{s_need}, s{s_t0}")
    A.e(f"s_cmp_lg_u32 s{s_w}, s{s_kq}")
    A.e("s_cbranch_scc1 L_np1")
    A.e(f"buffer_load_dword v{V+4}, v{V}, s[{sWS}:{sWS+3}], s{s_need} offen{SC}")
    A.label("L_np1")
    OW, YA, BS = 96, 112, 192
    A.e(f"s_add_u32 s{s_t0}, s{s_t2}, {OWN}")
    A.e(f"v_add_u32 v{V+2}, s{s_t0}, v{vL16}")
    for i in range(3): A.e(f"ds_read_b128 v[{OW+4*i}:{OW+4*i+3}], v{V+2} offset:{1024*i}")
    A.e(f"v_lshrrev_b32 v{V+3}, 2, v1")
    A.e(f"v_and_b32 v{V+3}, 3, v{V+3}")
    A.e(f"v_lshrrev_b32 v{V+6}, 5, v1")
    A.e(f"v_lshl_add_u32 v{V+3}, v{V+6}, 3, v{V+3}")
    A.e(f"v_lshlrev_b32 v{V+3}, 6, v{V+3}")
    A.e(f"v_and_b32 v{V+5}, 16, v1")
    A.e(f"v_lshl_add_u32 v{V+3}, v{V+5}, 1, v{V+3}")
    A.e(f"v_and_b32 v{V+5}, 3, v1")
    A.e(f"v_lshl_add_u32 v{V+3}, v{V+5}, 3, v{V+3}")
    A.e(f"s_add_u32 s{s_t0}, s{s_t2}, {YT}")
    A.e(f"v_add_u32 v{V+3}, s{s_t0}, v{V+3}")
    A.e(f"v_mul_u32_u24 v{V+8}, 1152, v{vRow}")
    A.e(f"v_lshl_add_u32 v{V+8}, v{V+6}, 4, v{V+8}")
    A.e(f"s_mul_i32 s{s_t1}, s{s_upos}, 1152")
    A.e(f"s_lshl_b32 s{s_t0}, s{s_line}, 1")
    A.e(f"s_add_u32 s{s_lane}, s{s_t1}, s{s_t0}")
    A.e(f"s_cmp_eq_u32 s{s_w}, s{s_kq}")
    A.e(f"s_cselect_b32 s{s_t0}, 1, s{s_yd}")
    A.e(f"s_cmp_lg_u32 s{s_t0}, 0")
    A.e("s_cbranch_scc1 L_w1")
    A.e("s_waitcnt vmcnt(0)")
    A.label("L_w1")
    A.e("s_waitcnt vmcnt(1)")
    for i in range(3):
        for rd in range(2):
            A.e(f"ds_read_b64_tr_b16 v[{YA+4*i+2*rd}:{YA+4*i+2*rd+1}], v{V+3} offset:{1024*i + 256*rd}")
    A.e(f"v_sub_f32 v{vGT+1}, 1.0, v{vGT}")
    for q in range(3):
        A.e(f"s_cmp_le_u32 s{s_kq}, {q}")
        A.e(f"s_cselect_b32 s{s_sl+q}, 12288, 0")
        A.e(f"s_add_u32 s{s_sl+q}, s{s_sl+q}, s{s_pb}")
        if q < 2: A.e(f"s_add_u32 s{s_pb}, s{s_pb}, 12288")
    A.e("s_waitcnt lgkmcnt(0)")
    for q in range(12):
        lo = BS + 2*q
        A.e(f"v_lshlrev_b32 v{lo}, 16, v{YA+q}")
        A.e(f"v_and_b32 v{lo+1}, 0xffff0000, v{YA+q}")
        A.e(f"v_lshlrev_b32 v{V+10+2*(q&1)}, 16, v{OW+q}")
        A.e(f"v_and_b32 v{V+11+2*(q&1)}, 0xffff0000, v{OW+q}")
        A.e(f"v_pk_mul_f32 v[{lo}:{lo+1}], v[{lo}:{lo+1}], v[{vGT}:{vGT+1}] op_sel_hi:[1,0]")
        A.e(f"v_pk_fma_f32 v[{lo}:{lo+1}], v[{V+10+2*(q&1)}:{V+11+2*(q&1)}], v[{vGT}:{vGT+1}], v[{lo}:{lo+1}] op_sel:[0,1,0] op_sel_hi:[1,1,1]")
    A.e(f"s_mov_b32 s{s_t0}, 0x20000")
    A.e(f"s_cmp_lg_u32 s{s_w}, s{s_kq}")
    A.e("s_cbranch_scc1 L_pp_out")
    A.label("L_pp")
    A.e("s_waitcnt vmcnt(0)")
    A.e(f"v_cmp_ne_u32 vcc, 1, v{V+4}")
    A.e(f"s_sub_u32 s{s_t0}, s{s_t0}, 1")
    A.e("s_cbranch_scc1 L_pp_out")
    A.e(f"s_andn2_b64 vcc, vcc, s[{s_ret}:{s_ret+1}]")
    A.e("s_cbranch_vccz L_pp_out")
    A.e(f"buffer_load_dword v{V+4}, v{V}, s[{sWS}:{sWS+3}], s{s_need} offen{SC}")
    A.e("s_branch L_pp")
    A.label("L_pp_out")
    A.e("s_barrier")
    if 'tst' in EXP: stamp(A, 4)
    PB = 144
    for i in range(3):
        for q in range(3):
            A.vmem(f"buffer_load_dwordx4 v[{PB+12*i+4*q}:{PB+12*i+4*q+3}], v{vL16}, s[{sWS}:{sWS+3}], s{s_sl+q} offen offset:{1024*i}{SC}", f"imp{i}")
    A.e(f"v_mov_b32 v{V+14}, 0x3f80")
    A.e(f"v_mov_b32 v{V+15}, 0x3f800000")
    S = 40 + 8
    for i in range(3):
        A.wait_vm(f"imp{i}")
        if i == 0 and 'tst' in EXP: stamp(A, 5)
        for d in range(4):
            A.e(f"v_lshlrev_b32 v{S+2*d}, 16, v{PB+12*i+d}")
            A.e(f"v_and_b32 v{S+2*d+1}, 0xffff0000, v{PB+12*i+d}")
        for q in (1, 2):
            for d in range(4):
                A.e(f"v_dot2c_f32_bf16 v{S+2*d}, v{PB+12*i+4*q+d}, v{V+14}")
                A.e(f"v_dot2c_f32_bf16 v{S+2*d+1}, v{PB+12*i+4*q+d}, v{V+15}")
        A.nop(2)
        for d in range(4):
            lo = BS + 8*i + 2*d
            A.e(f"v_pk_fma_f32 v[{lo}:{lo+1}], v[{S+2*d}:{S+2*d+1}], v[{vGT}:{vGT+1}], v[{lo}:{lo+1}] op_sel:[0,1,0] op_sel_hi:[1,1,1]")
        for d in range(4):
            lo = BS + 8*i + 2*d
            A.e(f"v_cvt_pk_bf16_f32 v{OW+4*i+d}, v{lo}, v{lo+1}")
        A.vmem(f"buffer_store_dwordx4 v[{OW+4*i}:{OW+4*i+3}], v{V+8}, s[{sT1}:{sT1+3}], s{s_lane} offen offset:{32*i}", "o")
```

```python
from common import *
from p1f import Ring, setup_common, counter_arrive, ut_sub
vXD, vXR, vWD, vAR, vBI, vL16, vS, vXW, vXRd, vW2D, vA2, vYL = 2, 4, 8, 10, 13, 17, 31, 14, 15, 18, 24, 30
vXR2 = 180
s_hb2, s_hsB = 52, 76
ACC, TMP, BIAS, MT, HS = 32, 64, 96, 128, 144
ARING = [112, 116, 120, 124, 140]
EX = 6*SLOT
M_Y = MISC + 4096
M_BIAS = MISC
M_FL = MISC + 2048
s_sl, s_hs, s_rr, s_pb, s_need, s_lane, s_val, s_w2l, s_fp, s_yd = 66, 70, 79, 82, 83, 84, 85, 3, 74, 75
vFL, vFA, TMP2, vFC = vXD, vXD + 1, vXR, vXR + 2
vCN = vFC + 1
G0 = 18
AOFF = 36
PB0 = int(os.environ.get('PB0', 10))
PB1 = int(os.environ.get('PB1', 0))
N0 = int(os.environ.get('N0', 3))
N2 = int(os.environ.get('N2', 6))
P0V = int(os.environ.get('P0V', 1))
FLUSH = int(os.environ.get('FLUSH', 0))
def xreg(rb, s):
    if rb == 0: return f"a[{4*s}:{4*s+3}]"
    if s < 8: return f"a[{224+4*s}:{227+4*s}]"
    if s < 28: return f"a[{144+4*(s-8)}:{147+4*(s-8)}]"
    return f"v[{224+4*(s-28)}:{227+4*(s-28)}]"
TMPB = 192
def raw(pi): return TMPB if pi % 2 else TMP
def hs(pi): return HS + 16*(pi - 1) if 1 <= pi <= 3 else raw(pi)

def rw_entries(A, lo, hi):
    for kl in range(lo, hi):
        A.e(f"s_mul_i32 s{s_rw+kl}, s{s_rho}, {64*9216}")
        if kl < 8:
            A.e(f"s_add_u32 s{s_rho}, s{s_rho}, 1")
            A.e(f"s_cmp_eq_u32 s{s_rho}, 9")
            A.e(f"s_cselect_b32 s{s_rho}, 0, s{s_rho}")
def prologue(A):
    T = MT
    if 'cpf0' in EXP:
        A.e(f"s_getpc_b64 s[{s_ret}:{s_ret+1}]")
        A.e("v_lshlrev_b32 v2, 7, v0")
        A.e("v_and_b32 v2, 0x1fff, v2")
        A.vmem(f"global_load_dword v{HS}, v2, s[{s_ret}:{s_ret+1}]", "cpf")
    for r, n in ((sX, "u"), (sW1, "w1"), (sT0, "b1"), (sWS, "ws"), (sW2, "w2"), (sDBG, "dbg"), (sT1, "out")):
        A.e(f"s_load_dwordx2 s[{r}:{r+1}], s[0:1], {KA[n]}")
    A.e("v_lshrrev_b32 v2, 6, v0")
    A.e("v_and_b32 v1, 63, v0")
    A.e("s_and_b32 s3, s2, 7")
    A.e(f"v_readfirstlane_b32 s{s_w}, v2")
    A.e(f"s_lshr_b32 s{s_kq}, s3, 1")
    A.e("s_and_b32 s3, s3, 1")
    A.e("s_lshl_b32 s3, s3, 3")
    A.e(f"s_lshr_b32 s{s_m7}, s2, 5")
    A.e(f"s_add_u32 s{s_m}, s{s_m7}, s3")
    A.e(f"s_mul_i32 s{s_rho}, s{s_r}, 3")
    A.e(f"s_add_u32 s{s_rho}, s{s_rho}, s{s_m7}")
    mod_small(A, s_rho, s_rho, 9)
    rw_entries(A, 0, 2)
    A.e(f"s_mul_i32 s{s_t2}, s{s_kq}, 2304")
    A.e(f"s_mul_i32 s{s_t1}, s{s_r}, 768")
    A.e(f"s_add_u32 s{s_t2}, s{s_t2}, s{s_t1}")
    A.e(f"s_lshl_b32 s{s_wl}, s{s_w}, 11")
    A.e(f"s_mul_i32 s{s_pc}, s{s_w}, 20480")
    A.e(f"v_lshrrev_b32 v{T}, 3, v1")
    A.e(f"v_and_b32 v{T+1}, 7, v1")
    A.e(f"s_lshl_b32 s{s_t0}, s{s_m}, 7")
    A.e(f"s_lshl_b32 s{s_t1}, s{s_w}, 5")
    A.e(f"s_add_u32 s{s_t0}, s{s_t0}, s{s_t1}")
    A.e(f"v_add_u32 v{T+2}, s{s_t0}, v{T}")
    A.e(f"v_mul_u32_u24 v{T+2}, 1152, v{T+2}")
    A.e(f"v_lshrrev_b32 v{T+3}, 1, v{T}")
    A.e(f"v_xor_b32 v{T+3}, v{T+3}, v{T+1}")
    A.e(f"v_lshl_add_u32 v{vXD}, v{T+3}, 4, v{T+2}")
    A.e(f"v_xor_b32 v{vXD+1}, 64, v{vXD}")
    A.e(f"v_add_u32 v{vXD+1}, 8192, v{vXD+1}")
    A.e(f"s_lshl_b32 s{s_t0}, s{s_w}, 4")
    A.e(f"v_add_u32 v{T+2}, s{s_t0}, v{T}")
    A.e(f"v_mul_u32_u24 v{T+2}, 9216, v{T+2}")
    A.e(f"v_lshlrev_b32 v{T+3}, 1, v{T}")
    A.e(f"v_and_b32 v{T+3}, 4, v{T+3}")
    A.e(f"v_xor_b32 v{T+3}, v{T+3}, v{T+1}")
    A.e(f"v_lshl_add_u32 v{vWD}, v{T+3}, 4, v{T+2}")
    A.e(f"v_add_u32 v{vWD+1}, {8*9216 - 1024}, v{vWD}")
    A.e(f"v_lshlrev_b32 v{MT+2}, 1, v0")
    for r, n in ((sX, L_*D_*2), (sW1, 575*9216 + 256), (sT0, F_*2)):
        A.e(f"s_mov_b32 s{r+2}, {hex(n)}"); A.e(f"s_mov_b32 s{r+3}, 0x00020000")
    A.e("s_waitcnt lgkmcnt(0)")
    A.e(f"s_add_u32 s{sW1}, s{sW1}, s{s_t2}")
    A.e(f"s_addc_u32 s{sW1+1}, s{sW1+1}, 0")

def setup2(A):
    T = MT + 4
    rw_entries(A, 2, 9)
    for r, n in ((sWS, WS_BYTES), (sW2, D_*F_*2), (sDBG, 256), (sT1, L_*D_*2)):
        A.e(f"s_mov_b32 s{r+2}, {hex(n)}"); A.e(f"s_mov_b32 s{r+3}, 0x00020000")
    A.e(f"v_lshlrev_b32 v{vL16}, 4, v1")
    A.e(f"s_lshl_b32 s{s_t0}, s{s_m}, 2")
    A.e(f"s_add_u32 s{s_t0}, s{s_t0}, s{s_kq}")
    A.e(f"s_lshl_b32 s{s_hb}, s{s_t0}, 2")
    A.e(f"s_lshl_b32 s{s_fi}, s{s_t0}, 3")
    A.e(f"s_add_u32 s{s_fi}, s{s_fi}, s{s_r}")
    A.e(f"s_lshl_b32 s{s_fi}, s{s_fi}, 2")
    A.e(f"s_add_u32 s{s_fi}, s{s_fi}, s{s_w}")
    A.e(f"s_lshl_b32 s{s_fi}, s{s_fi}, 2")
    A.e(f"s_add_u32 s{s_fi}, s{s_fi}, {WS_F}")
    A.e(f"s_add_u32 s{s_hb}, s{s_hb}, s{s_w}")
    A.e(f"s_mul_i32 s{s_hb}, s{s_hb}, 73728")
    A.e(f"s_mul_i32 s{s_t0}, s{s_r}, 24576")
    A.e(f"s_add_u32 s{s_hb}, s{s_hb}, s{s_t0}")
    A.e(f"s_mov_b32 s{s_log2e}, {fhex(LOG2E)}")
    A.e(f"v_and_b32 v{T}, 31, v1")
    A.e(f"v_lshrrev_b32 v{T+1}, 5, v1")
    A.e(f"v_lshrrev_b32 v{T+2}, 1, v{T}")
    A.e(f"v_and_b32 v{T+2}, 7, v{T+2}")
    A.e(f"v_xor_b32 v{T+2}, v{T+2}, v{T+1}")
    A.e(f"s_add_u32 s{s_t0}, s{s_pc}, {XRING}")
    A.e(f"s_bitcmp1_b32 s{s_w}, 0")
    A.e(f"s_cselect_b32 s{s_t1}, -1, 1")
    A.e(f"s_mul_i32 s{s_t1}, s{s_t1}, 20480")
    A.e(f"v_lshlrev_b32 v{T+3}, 7, v{T}")
    A.e(f"v_add_u32 v{T+3}, s{s_t0}, v{T+3}")
    for ks in range(4):
        A.e(f"v_xor_b32 v{T+4}, {2*ks}, v{T+2}")
        A.e(f"v_lshl_add_u32 v{vXR+ks}, v{T+4}, 4, v{T+3}")
        A.e(f"v_add_u32 v{vXR2+ks}, s{s_t1}, v{vXR+ks}")
    A.e(f"s_and_b32 s{s_t1}, s{s_w}, 1")
    A.e(f"s_lshl_b32 s{s_t0}, s{s_t1}, 7")
    A.e(f"s_add_u32 s{s_t0}, s{s_t0}, {M_BIAS}")
    A.e(f"v_lshlrev_b32 v{vBI}, 4, v{T+1}")
    A.e(f"v_add_u32 v{vBI}, s{s_t0}, v{vBI}")
    A.e(f"v_lshrrev_b32 v{T}, 2, v1")
    A.e(f"v_and_b32 v{T}, 3, v{T}")
    A.e(f"v_lshl_add_u32 v{T+2}, v{T+1}, 3, v{T}")
    A.e(f"v_lshlrev_b32 v{T+2}, 7, v{T+2}")
    A.e(f"v_lshrrev_b32 v{T+3}, 1, v{T}")
    A.e(f"v_xor_b32 v{T+3}, s{s_t1}, v{T+3}")
    A.e(f"v_lshl_add_u32 v{T+2}, v{T+3}, 6, v{T+2}")
    A.e(f"v_lshrrev_b32 v{T+3}, 4, v1")
    A.e(f"v_and_b32 v{T+3}, 1, v{T+3}")
    A.e(f"v_lshl_add_u32 v{T+2}, v{T+3}, 5, v{T+2}")
    A.e(f"v_and_b32 v{T+4}, 3, v1")
    A.e(f"v_lshl_add_u32 v{vAR}, v{T+4}, 3, v{T+2}")
    for j in (1, 2): A.e(f"v_add_u32 v{vAR+j}, {j*2*SLOT}, v{vAR}")
    A.e(f"v_lshl_add_u32 v{T+1}, v{T+1}, 2, v{T}")
    A.e(f"s_lshl_b32 s{s_t0}, s{s_t1}, 5")
    A.e(f"v_add_u32 v{T+1}, s{s_t0}, v{T+1}")
    A.e(f"v_mul_u32_u24 v{T+1}, 384, v{T+1}")
    A.e(f"v_lshl_add_u32 v{T+1}, v{T+3}, 5, v{T+1}")
    A.e(f"v_lshl_add_u32 v{T+1}, v{T+4}, 3, v{T+1}")
    A.e(f"v_lshrrev_b32 v{T}, 1, v{T}")
    A.e(f"v_lshlrev_b32 v{T}, 6, v{T}")
    A.e(f"v_add_u32 v{vA2}, v{T+1}, v{T}")
    A.e(f"v_sub_u32 v{vA2+1}, v{T+1}, v{T}")
    for j in (1, 2):
        A.e(f"v_add_u32 v{vA2+2*j}, {j*2*SLOT}, v{vA2}")
        A.e(f"v_add_u32 v{vA2+2*j+1}, {j*2*SLOT}, v{vA2+1}")
    A.e(f"s_mul_i32 s{s_w2l}, s{s_w}, 6144")
    A.e(f"s_lshl_b32 s{s_t0}, s{s_t1}, 11")
    A.e(f"s_add_u32 s{s_hb}, s{s_hb}, s{s_t0}")
    A.e(f"s_cmp_eq_u32 s{s_t1}, 1")
    A.e(f"s_cselect_b32 s{s_val}, -1, 1")
    A.e(f"s_mul_i32 s{s_val}, s{s_val}, 73728")
    A.e(f"s_add_u32 s{s_hb2}, s{s_hb}, s{s_val}")
    A.e(f"s_mul_i32 s{s_t0}, s{s_r}, 24576")
    A.e(f"s_sub_u32 s{s_t0}, s{s_hb}, s{s_t0}")
    A.e(f"s_mul_i32 s{s_t1}, s{s_kq}, {1152*1152}")
    A.e(f"s_mul_i32 s{s_t2}, s{s_r}, 384")
    A.e(f"s_add_u32 s{s_t1}, s{s_t1}, s{s_t2}")
    for idx in range(3):
        A.e(f"s_add_u32 s{s_t2}, s{s_r}, {idx}")
        mod_small(A, s_t2, s_t2, 3)
        if idx: A.e(f"s_mov_b32 s{s_rr+idx-1}, s{s_t2}")
        A.e(f"s_mul_i32 s{s_t3}, s{s_t2}, {384*1152}")
        A.e(f"s_add_u32 s{s_sl+idx}, s{s_t1}, s{s_t3}")
        A.e(f"s_mul_i32 s{s_t3}, s{s_t2}, 24576")
        A.e(f"s_add_u32 s{s_hs+idx}, s{s_t0}, s{s_t3}")
        A.e(f"s_add_u32 s{s_hsB+idx}, s{s_hs+idx}, s{s_val}")
    A.e(f"s_mul_i32 s{s_t0}, s{s_w}, {16*1152}")
    for i3 in range(3):
        A.e(f"v_add_u32 v{T}, {64*i3}, v1")
        A.e(f"v_mul_u32_u24 v{T+1}, 2731, v{T}")
        A.e(f"v_lshrrev_b32 v{T+1}, 16, v{T+1}")
        A.e(f"v_mul_u32_u24 v{T+2}, 24, v{T+1}")
        A.e(f"v_sub_u32 v{T+2}, v{T}, v{T+2}")
        A.e(f"v_lshlrev_b32 v{T+3}, 1, v{T+1}")
        A.e(f"v_and_b32 v{T+3}, 4, v{T+3}")
        A.e(f"v_xor_b32 v{T+2}, v{T+2}, v{T+3}")
        A.e(f"v_mul_u32_u24 v{T+1}, 1152, v{T+1}")
        A.e(f"v_lshl_add_u32 v{T+1}, v{T+2}, 4, v{T+1}")
        A.e(f"v_add_u32 v{T+1}, s{s_t0}, v{T+1}")
        for g in range(2):
            i = 3*g + i3
            A.e(f"v_add_u32 v{vW2D+i}, {hex((g*8*1152 - (i&3)*1024) & 0xffffffff)}, v{T+1}")
    A.e(f"s_mul_i32 s{s_fp}, s{s_m}, 3")
    A.e(f"s_add_u32 s{s_fp}, s{s_fp}, s{s_r}")
    A.e(f"s_lshl_b32 s{s_pb}, s{s_fp}, 2")
    A.e(f"s_add_u32 s{s_fp}, s{s_pb}, s{s_w}")
    A.e(f"s_lshl_b32 s{s_fp}, s{s_fp}, 5")
    A.e(f"s_add_u32 s{s_fp}, s{s_fp}, s{s_kq}")
    A.e(f"s_lshl_b32 s{s_fp}, s{s_fp}, 2")
    A.e(f"s_add_u32 s{s_fp}, s{s_fp}, {F_P}")

def x_dma_ops(kl):
    m = Op(f"s_add_u32 m0, s{s_pc}, {XRING + (kl % 5)*4096}", kind="salu")
    s1 = Op(f"s_mul_hi_u32 s{s_so}, s{s_rw+kl}, {-(-(1 << 32)//4608)}", kind="salu")
    o = [m, s1]
    for i in range(4):
        if i == 2: o.append(Op(f"s_add_u32 s{s_so}, s{s_so}, 16384", kind="salu"))
        o.append(Op(f"buffer_load_dwordx4 v{vXD+(i&1)}, s[{sX}:{sX+3}], s{s_so} offen offset:{i*1024} lds", kind="vmem", tag=f"x{kl}", deps=[(m, 2)]))
    return o
def x_read(A, kl):
    for rb in range(2):
        for ks in range(4):
            A.ds(f"ds_read_b128 {xreg(rb, 4*kl+ks)}, v{(vXR2 if rb else vXR)+ks} offset:{(kl % 5)*4096}", f"xr{kl}")
def w1_line_ops(st, j, slot):
    kl = 3*(st % 3) + j
    m = Op(f"s_add_u32 m0, s{s_wl}, {slot*SLOT + j*8192}", kind="salu")
    return [m] + [Op(f"buffer_load_dwordx4 v{vWD+i}, s[{sW1}:{sW1+3}], s{s_rw+kl} offen offset:{i*1024} lds", kind="vmem", tag=(f"W{kl}" if st < 3 else f"st{st}"), deps=[(m, 2)]) for i in range(2)]
def w1_dma_ops(st, slot):
    o = []
    if st % 3 == 0: o.append(Op(f"s_add_u32 s{sW1}, s{sW1}, {256 if st == 6 else 128}\n    s_addc_u32 s{sW1+1}, s{sW1+1}, 0", kind="salu", cost=8))
    for j in range(3): o += w1_line_ops(st, j, slot)
    return o
FIRST = ("x0", "W0", "x1", "W1", "x2", "W2", "x3", "W3", "x4", "W4")
def first_ops(k):
    n = int(k[1])
    return x_dma_ops(n) if k[0] == "x" else w1_line_ops(n // 3, n % 3, n // 3)

def mish_ops(pi, done_pos, prev=None):
    TMP = raw(pi)
    ops = []; G = []; C = []
    for grp in range(16):
        rb = grp // 8
        es = [2*grp, 2*grp + 1]
        tb = MT + (grp % 3)*4
        m = [Op(f"v_mul_f32 v{tb+2*i}, s{s_log2e}, v{TMP+e}", deps=[(done_pos[rb], 13)]) for i, e in enumerate(es)]
        x = [Op(f"v_exp_f32 v{tb+2*i}, v{tb+2*i}", cost=8, trans=True, deps=[(m[i], 1)]) for i in range(2)]
        p = [Op(f"v_fma_f32 v{tb+2*i+1}, v{tb+2*i}, -0.5, -1.0", deps=[(x[i], 2)]) for i in range(2)]
        d = [Op(f"v_fma_f32 v{tb+2*i+1}, v{tb+2*i}, v{tb+2*i+1}, -1.0", deps=[(p[i], 1)]) for i in range(2)]
        r = [Op(f"v_rcp_f32 v{tb+2*i+1}, v{tb+2*i+1}", cost=8, trans=True, deps=[(d[i], 1)]) for i in range(2)]
        y = [Op(f"v_fmac_f32 v{TMP+e}, v{TMP+e}, v{tb+2*i+1}", deps=[(r[i], 2)]) for i, e in enumerate(es)]
        c = Op(f"v_cvt_pk_bf16_f32 v{hs(pi)+grp}, v{TMP+es[0]}, v{TMP+es[1]}", deps=[(y[0], 1), (y[1], 1)])
        Gp = G[grp-3] if grp >= 3 else (prev[13 + (grp + 2) % 3] if prev else None)
        if Gp:
            for i in range(2):
                m[i].deps.append((Gp[0][i], 1)); p[i].deps.append((Gp[1][i], 1))
        if C: c.deps.append((C[-1], 1))
        G.append((d, y)); C.append(c)
        ops += m + x + p + d + r + y + [c]
    st = []
    for q in range(4):
        st.append(Op(f"buffer_store_dwordx4 v[{hs(pi)+4*q}:{hs(pi)+4*q+3}], v{vL16}, s[{sWS}:{sWS+3}], s{s_hb2 if q >= 2 else s_hb} offen offset:{(q&1)*1024}{SC}",
                     kind="vmem", tag=f"h{pi}", deps=[(c, 1) for c in C[4*q:4*q+4]]))
    mish_ops.G = G
    st.append(Op(f"s_add_u32 s{s_hb}, s{s_hb}, 4096\n    s_add_u32 s{s_hb2}, s{s_hb2}, 4096", kind="salu", cost=8))
    return ops, st
def reread_ops(pi, n):
    if 'rr' not in EXP: return []
    v = f"v_lshlrev_b32 v{TMP2}, 7, v1" if n == 2 else f"v_lshlrev_b32 v{TMP2}, 5, v{vFL}"
    return [Op(f"{v}\n    s_add_u32 s{s_t1}, s{s_hs}, {pi*4096}\n    buffer_load_dword v{TMP2+1}, v{TMP2}, s[{sWS}:{sWS+3}], s{s_t1} offen{SC}", kind="vmem", tag="rr", cost=12)]
def flag_ops(ev):
    return [Op(f"v_mov_b32 v{vS}, {ev+1}\n    s_add_u32 s{s_t1}, s{s_fi}, {ev*8192}\n    buffer_store_dword v{vS}, off, s[{sWS}:{sWS+3}], s{s_t1}{SC}", kind="vmem", tag="flag", cost=12)]
def bias_read(A, pi, BIAS=BIAS):
    for g in range(4):
        A.ds(f"ds_read_b128 v[{BIAS+4*g}:{BIAS+4*g+3}], v{vBI} offset:{256*pi + 32*g}", f"bias{pi}")
def a_reads(A, gs, ring):
    st, ks = gs // 12, gs % 12
    slot = ring.slot[st]; buf = ARING[(gs - AOFF) % 5]
    for rd in range(2):
        A.ds(f"ds_read_b64_tr_b16 v[{buf+2*rd}:{buf+2*rd+1}], v{vAR+slot//2} offset:{(slot%2)*SLOT + (16*ks+4*rd)*128}", f"a{gs}")

def pump(q, bud, maxv):
    u = nv = 0
    while q.q and q.ready(q.q[0]):
        o = q.q[0]
        if o.kind == "vmem":
            if nv >= maxv: break
            nv += 1
        if u and u + o.cost > bud: break
        if u == 0 and bud <= 0: break
        q.q.pop(0); q.emit(o); u += o.cost
    return u

ACCB, BIASB = TMPB, HS
BRING = [HS + 16 + 4*i for i in range(5)]
def wimg_ops(n):
    kl, b = n // 2, n % 2
    m = Op(f"s_add_u32 m0, s{s_wl}, {(n % 9)*8192}" + (f"\n    s_add_u32 s{s_so}, s{s_rw+kl}, 128" if b else ""), kind="salu")
    return [m] + [Op(f"buffer_load_dwordx4 v{vWD+i}, s[{sW1}:{sW1+3}], s{s_so if b else s_rw+kl} offen offset:{i*1024} lds", kind="vmem", tag=f"W{kl}", deps=[(m, 2)]) for i in range(2)]
def a0_reads(A, gs):
    kl, ks = gs // 4, gs % 4
    for b in range(2):
        o = ((2*kl + b) % 9)*8192 + 16*ks*128
        base = vAR if o < 49152 else vAR + 1
        if o >= 49152: o -= 49152
        buf = (ARING if b == 0 else BRING)[gs % 5]
        for rd in range(2):
            A.ds(f"ds_read_b64_tr_b16 v[{buf+2*rd}:{buf+2*rd+1}], v{base} offset:{o + 512*rd}", f"a{gs}")
def flush_tags(A, memq, tg):
    while any(o.tag in tg for o in memq.q):
        o = memq.q.pop(0)
        while not memq.ready(o): A.e("s_nop 0")
        memq.emit(o)

def phase0(A):
    ring = Ring(); ring.slot = {}; ring.next = 6
    xo, wo = x_dma_ops(0), wimg_ops(0)
    emit_now(A, xo[:3]); emit_now(A, wo[:2])
    A.vmem(f"buffer_load_ushort v{MT}, v{MT+2}, s[{sT0}:{sT0+3}], s{s_t2} offen", "b1")
    A.e(f"s_mov_b32 s{s_line}, s{s_t2}")
    setup2(A)
    emit_now(A, wo[2:])
    xo2 = x_dma_ops(0); emit_now(A, xo2[:1] + xo2[3:])
    emit_now(A, wimg_ops(1))
    A.vmem(f"buffer_load_ushort v{MT+1}, v{MT+2}, s[{sT0}:{sT0+3}], s{s_line} offen offset:512", "b1")
    rest = []
    for kl in range(1, 5):
        rest.append(x_dma_ops(kl)); rest.append(wimg_ops(2*kl))
        if kl < 4: rest.append(wimg_ops(2*kl + 1))
    for g in rest[:N0]: emit_now(A, g)
    A.wait_vm("b1")
    A.e(f"v_lshlrev_b32 v{MT}, 16, v{MT}")
    A.e(f"v_lshlrev_b32 v{MT+1}, 16, v{MT+1}")
    A.e(f"v_lshlrev_b32 v{MT+2}, 2, v0")
    A.e(f"v_add_u32 v{MT+2}, {M_BIAS}, v{MT+2}")
    A.ds(f"ds_write_b32 v{MT+2}, v{MT}", "bw")
    A.ds(f"ds_write_b32 v{MT+2}, v{MT+1} offset:1024", "bw")
    A.wait_lg("bw")
    A.e("s_barrier")
    stamp(A, 2)
    memq = Filler(A)
    for g in rest[N0:]: memq.add(g)
    bias_read(A, 0); bias_read(A, 1, BIASB); a0_reads(A, 0); x_read(A, 0)
    for gs in range(1, 4): a0_reads(A, gs)
    xrd = {0: [1], 4: [2], 8: [3], 12: [4], 16: [5, 6], 20: [7, 8]}
    done = {}
    for gs in range(36):
        order = [(0, 0), (0, 1), (1, 0), (1, 1)]
        for q, (b, rb) in enumerate(order):
            if gs == 0 and q == 0: A.wait_lg(["bias1", "a0", "xr0"])
            acc = (ACC if b == 0 else ACCB) + 16*rb
            cin = (BIAS if b == 0 else BIASB) if gs == 0 else acc
            dst = TMP + 16*rb if (gs == 35 and b == 0) else acc
            buf = (ARING if b == 0 else BRING)[gs % 5]
            A.e(f"v_mfma_f32_32x32x16_bf16 v[{dst}:{dst+15}], v[{buf}:{buf+3}], {xreg(rb, gs)}, v[{cin}:{cin+15}]")
            if gs == 35: done[(b, rb)] = A.n - 1
            if q == 0:
                if gs % 4 == 0:
                    j = gs // 4
                    tg = ([f"W{j+1}"] if j < 8 else ["st6"]) + [f"x{k}" for k in xrd.get(gs, [])]
                    flush_tags(A, memq, tg)
                    A.wait_vm(tg)
                    if gs == 24: A.wait_lg("xr8")
                    A.e("s_barrier")
                    if j + 5 <= 8: memq.add(x_dma_ops(j + 5))
                    for n in (2*j + 7, 2*j + 8):
                        if 9 <= n <= 17: memq.add(wimg_ops(n))
                    if gs == 24: ring.free += [3, 4, 5]
                    if gs == 28: ring.free += [0]
                    for k in ring.alloc(G0 + 18): memq.add(w1_dma_ops(k, ring.slot[k]))
                if gs % 2 == 0:
                    A.wait_lg([f"a{gs+1}", f"a{gs+2}", f"xr{(gs+1)//4}", f"xr{(gs+2)//4}"] if gs < 34 else ["a35", "a72"])
                if gs + 4 < 36: a0_reads(A, gs + 4)
                else: a_reads(A, 72 + gs - 32, ring)
            if q == 1:
                for k in xrd.get(gs, []): x_read(A, k)
                if gs == 22: bias_read(A, 2)
            nv = sum(o.kind == "vmem" for o in memq.q)
            if q in (1, 3) or (q == 2 and nv > PB0): pump(memq, 40, 1)
    return ring, memq, done

def p1(A):
    ring, memq, done = phase0(A)
    return p1_loop(A, 72, ring, memq, Filler(A), Filler(A), done, {}, {})
def p1_loop(A, gs0, ring, memq, valq, stq, done, xsched, xdma):
    nsteps = 216
    for gs in range(gs0, nsteps):
        pair, s = gs // 36, gs % 36
        st, ks = gs // 12, gs % 12
        if gs == 72 and not (EXP & {'p1st', 'p2st'}): stamp(A, 3)
        if 'p1st' in EXP and gs % 36 == 0 and gs: stamp(A, 1 + gs//36)
        if s == 0 and pair > 0:
            pp = pair - 2
            if pair == 3: valq.add(pre_p2_ops())
            ops, sts = mish_ops(pp, [lambda p=pp: done.get((p, 0)), lambda p=pp: done.get((p, 1))])
            valq.add(ops); stq.add(sts)
        if gs == 150: memq.add([Op(f"buffer_load_dword v{vCN}, off, s[{sDBG}:{sDBG+3}], 0{SC}", kind="vmem", tag="cnt")])
        for rb in range(2):
            if s == 0 and rb == 0: A.wait_lg([f"bias{pair}", f"a{gs}", "xr0"])
            acc = ACC + 16*rb
            cin = BIAS if s == 0 else acc
            dst = (raw(pair) + 16*rb) if s == 35 else acc
            if s == 35: assert not valq.q and not any(o.kind == 'vmem' for o in stq.q)
            buf = ARING[(gs - AOFF) % 5]
            A.e(f"v_mfma_f32_32x32x16_bf16 v[{dst}:{dst+15}], v[{buf}:{buf+3}], {xreg(rb, s)}, v[{cin}:{cin+15}]")
            if s == 35: done[(pair, rb)] = A.n - 1
            n0 = A.n
            if rb == 0:
                bar = False
                if gs in xdma:
                    for k in xdma[gs]: memq.add(first_ops(k))
                if gs in xsched:
                    xs, ws = xsched[gs]
                    tg = [f"x{k}" for k in xs] + [f"W{k}" for k in ws]
                    while any(o.tag in tg for o in memq.q):
                        o = memq.q.pop(0)
                        while not memq.ready(o): A.e("s_nop 0")
                        memq.emit(o)
                    A.wait_vm(tg)
                    if gs == 28: A.wait_lg("xr8")
                    A.e("s_barrier"); bar = True
                elif ks == 8:
                    tags = [f"st{st+1}"]
                    if gs == 200: tags += ["cnt", "h2"]
                    if gs == 80: ring.free += [1, 2]
                    A.wait_vm(tags)
                    A.e("s_barrier"); bar = True
                    if gs == 200:
                        check_counter(A); stq.q = flag_ops(0) + stq.q
                if bar:
                    for k in range(st + 1):
                        if 12*k + 11 < gs: ring.release(k)
                    if gs == 28: ring.free += [3, 4, 5]
                    for k in ring.alloc(G0 + 18): memq.add(w1_dma_ops(k, ring.slot[k]) if k < 18 else w2_dma_ops(k, ring.slot[k]))
                if gs % 2 == 0:
                    A.wait_lg([f"a{gs+1}", f"a{gs+2}"] + ([f"xr{(gs+1)//4}", f"xr{(gs+2)//4}"] if pair == 0 else []))
                if gs + 4 < nsteps: a_reads(A, gs + 4, ring)
                else:
                    a2_read(A, gs - 212, ring)
                    if gs == 215: a2_read(A, 4, ring)
                if gs in xsched:
                    for k in xsched[gs][0]: x_read(A, k)
                if s == 23 and pair + 1 < 6: bias_read(A, pair + 1)
                bud = 24 - 4*(A.n - n0)
                if pair == 0: u = pump(memq, 40, 1)
                else:
                    nv = sum(o.kind == "vmem" for o in memq.q)
                    left = (7 - ks) % 12
                    u = pump(memq, bud, 1 if (gs % 2 == 1 or nv > left//2 + BK1) else 0) if bud > 0 else 0
                valq.fill(max(0, bud - u), allow_trans=False, window=30)
            else:
                if pair == 0: u = pump(memq, 40, 1)
                else:
                    u = pump(stq, 12, 1) if (gs % 2 == 0 or s >= 33) else 0
                    if u == 0 and sum(o.kind == "vmem" for o in memq.q) > BK2: u = pump(memq, 8, 1)
                rem = 32 - s
                bud = 24 - u
                while valq.total() - bud > max(rem, 0)*PCAP and bud < 40: bud += 4
                fill_odd(valq, bud, window=30)
                if s == 33: valq.drain()
                if s == 34: stq.drain(); A.nop(2)
    for pp in (4, 5):
        ops, sts = mish_ops(pp, [lambda p=pp: done.get((p, 0)), lambda p=pp: done.get((p, 1))], prev=(mish_ops.G if pp == 5 else None))
        valq.add(ops); stq.add(sts)
    return ring, memq, valq, stq
HSITES = eval(os.environ.get('HSITES', '(10, 16, 24, 30)'))
BK1 = int(os.environ.get('BK1', 2))
BK2 = int(os.environ.get('BK2', 9))
SD1 = int(os.environ.get('SD1', 5))
SD2 = int(os.environ.get('SD2', 7))
PCAP = int(os.environ.get('PCAP', 32))

SEQ = [(0, 1), (0, 2), (0, 3), (0, 0), (0, 4), (1, 0), (0, 5), (1, 1), (1, 2), (2, 0), (2, 1), (2, 2), (1, 3), (2, 3), (1, 4), (2, 4), (1, 5), (2, 5)]
IMP = [k for k, (i, p) in enumerate(SEQ) if not (i == 0 and p > 0)]
aIM, aR = 96, 224
LF = 5
def acc2(t): return [32, 48, 96, 112, 224, 240][t]
def hreg(k, q):
    if k in IMP:
        b = aIM + 16*(IMP.index(k) % 8) + 4*q
        return f"a[{b}:{b+3}]"
    b = hs(SEQ[k][1]) + 4*q
    return f"v[{b}:{b+3}]"
def w2_dma_ops(gst, slot):
    idx, pi = SEQ[gst - G0]
    tag = f"st{gst}"
    m0a = Op(f"s_add_u32 m0, s{s_w2l}, {slot*SLOT}", kind="salu")
    so = Op(f"s_add_u32 s{s_so}, s{s_sl+idx}, {pi*64*1152}", kind="salu")
    o = [m0a, so]
    for i in range(4):
        o.append(Op(f"buffer_load_dwordx4 v{vW2D+i}, s[{sW2}:{sW2+3}], s{s_so} offen offset:{i*1024} lds", kind="vmem", tag=tag, deps=[(m0a, 2)]))
    m0b = Op(f"s_add_u32 m0, s{s_w2l}, {slot*SLOT + 4096}", kind="salu")
    o.append(m0b)
    for i in range(4, 6):
        o.append(Op(f"buffer_load_dwordx4 v{vW2D+i}, s[{sW2}:{sW2+3}], s{s_so} offen offset:{(i&3)*1024} lds", kind="vmem", tag=tag, deps=[(m0b, 2)]))
    return o
def h_load_ops(k):
    idx, pi = SEQ[k]
    o = []
    for rb in range(2):
        o.append(Op(f"s_add_u32 s{s_t2}, s{(s_hsB if rb else s_hs)+idx}, {pi*4096}", kind="salu"))
        o += [Op(f"buffer_load_dwordx4 {hreg(k, 2*rb+q)}, v{vL16}, s[{sWS}:{sWS+3}], s{s_t2} offen offset:{q*1024}{SC}", kind="vmem", tag=f"st{G0+k}") for q in range(2)]
    return o
def flagcopy_ops(ev):
    return [Op(f"s_lshl_b32 s{s_val}, s{s_w}, 8\n    s_add_u32 m0, s{s_val}, {M_FL}\n    s_and_b32 s{s_val}, s{s_fi}, 0xffffff80\n    s_add_u32 s{s_val}, s{s_val}, {ev*8192}\n"
               f"    buffer_load_dword v{vFL}, s[{sWS}:{sWS+3}], s{s_val} offen sc1 lds", kind="vmem", tag="fc", cost=20)]
def pre_p2_ops():
    o = [Op(f"v_and_b32 v{vFL}, 31, v1\n    v_lshlrev_b32 v{vFL}, 2, v{vFL}", cost=8),
         Op(f"v_and_b32 v{vFA}, 3, v1\n    v_lshlrev_b32 v{vFA}, 4, v{vFA}\n    s_mul_i32 s{s_val}, s{s_w}, 260\n    s_add_u32 s{s_val}, s{s_val}, {M_FL}\n    v_add_u32 v{vFA}, s{s_val}, v{vFA}", cost=20),
         Op(f"v_mov_b32 v{vFC}, 0\n    s_lshl_b32 s{s_val}, s{s_w}, 8\n    s_add_u32 s{s_val}, s{s_val}, {M_FL}\n    v_lshl_add_u32 v{vFC+1}, v1, 2, s{s_val}\n    ds_write_b32 v{vFC+1}, v{vFC}", cost=20, kind="ds", tag="fz")]
    return o
def check(A, lane_sgpr, ev):
    lab = A.newlabel("L_chk")
    A.e(f"v_readlane_b32 s{s_val}, v{vFC}, s{lane_sgpr}")
    A.e(f"s_movk_i32 s{s_need}, {ev*8192}")
    A.e(f"s_mov_b32 s{s_lane}, s{lane_sgpr}")
    A.e(f"s_cmp_eq_u32 s{s_val}, {ev+1}")
    A.e(f"s_cbranch_scc1 {lab}")
    A.e(f"s_call_b64 s[{s_ret}:{s_ret+1}], L_poll")
    A.label(lab)
def check_counter(A):
    lab = A.newlabel("L_chk")
    A.e(f"v_readfirstlane_b32 s{s_val}, v{vCN}")
    A.e("s_nop 0")
    A.e(f"s_cmp_ge_u32 s{s_val}, 64")
    A.e(f"s_cbranch_scc1 {lab}")
    A.e(f"s_call_b64 s[{s_ret}:{s_ret+1}], L_pollc")
    A.label(lab)
def poll_sub(A):
    A.label("L_poll")
    A.e(f"s_mov_b32 s{s_t0}, 0x20000")
    A.e(f"v_and_b32 v{TMP2}, 3, v1")
    A.e(f"v_lshlrev_b32 v{TMP2}, 4, v{TMP2}")
    A.label("L_poll_loop")
    A.e("s_sleep 2")
    A.e(f"s_and_b32 s{s_val}, s{s_fi}, 0xffffffcf")
    A.e(f"s_add_u32 s{s_val}, s{s_val}, s{s_need}")
    A.e(f"buffer_load_dword v{TMP2+1}, v{TMP2}, s[{sWS}:{sWS+3}], s{s_val} offen{SC}")
    A.e("s_waitcnt vmcnt(0)")
    A.e(f"v_readlane_b32 s{s_val}, v{TMP2+1}, s{s_lane}")
    A.e(f"s_sub_u32 s{s_t0}, s{s_t0}, 1")
    A.e("s_cbranch_scc1 L_poll_out")
    A.e(f"s_cmp_eq_u32 s{s_val}, 0")
    A.e("s_cbranch_scc1 L_poll_loop")
    A.label("L_poll_out")
    A.e(f"s_setpc_b64 s[{s_ret}:{s_ret+1}]")
    A.label("L_pollc")
    A.e(f"s_mov_b32 s{s_t0}, 0x20000")
    A.label("L_pollc_loop")
    A.e("s_sleep 2")
    A.e(f"buffer_load_dword v{TMP2+1}, off, s[{sDBG}:{sDBG+3}], 0{SC}")
    A.e("s_waitcnt vmcnt(0)")
    A.e(f"v_readfirstlane_b32 s{s_val}, v{TMP2+1}")
    A.e(f"s_sub_u32 s{s_t0}, s{s_t0}, 1")
    A.e("s_cbranch_scc1 L_pollc_out")
    A.e(f"s_cmp_lt_u32 s{s_val}, 64")
    A.e("s_cbranch_scc1 L_pollc_loop")
    A.label("L_pollc_out")
    A.e(f"s_setpc_b64 s[{s_ret}:{s_ret+1}]")
NTS = int(os.environ.get('NTS', 4))
PER = 4*NTS
TM0 = 432 - 24*NTS
def fmap(F):
    if F < TM0//2: return F // 12, (F % 12) // 6, F % 6
    x = F - TM0//2
    return 18 - NTS + (x % (2*NTS))//2, x % 2, x // (2*NTS)
def a2_read(A, F, ring):
    k, sp, t = fmap(F)
    slot = ring.slot[G0 + k]; buf = aR + 4*(F % 8)
    for rd in range(2):
        A.ds(f"ds_read_b64_tr_b16 a[{buf+2*rd}:{buf+2*rd+1}], v{vA2+2*(slot//2)+(t&1)} offset:{(slot%2)*SLOT + (16*sp+8*rd)*384 + t*64}", f"f{F}")
RT = TMP + 16
PKR = [HS + 4*i for i in range(12)]
vOW = TMP + 12
RT5 = TMPB + 16
def export_ops(t):
    RT = RT5 if t == 5 else TMP + 16
    ops = []
    for kk in range(2):
        p = 2*t + kk
        a = acc2(t) + 8*kk; Q = PKR[p]
        ad = [Op(f"v_add_f32 v{a+e}, v{a+e}, v{RT+8*kk+e}") for e in range(8)]
        ops += ad
        c = [Op(f"v_cvt_pk_bf16_f32 v{Q+d}, v{a+2*d}, v{a+2*d+1}", deps=[(ad[2*d], 1), (ad[2*d+1], 1)]) for d in range(4)]
        sw = Op(f"v_permlane32_swap_b32 v{Q}, v{Q+2}\n    v_permlane32_swap_b32 v{Q+1}, v{Q+3}", cost=8, deps=[(x, 3) for x in c])
        st = Op(f"s_cmp_eq_u32 s{s_w}, s{s_kq}\n    s_cbranch_scc1 L_xo{p}\n    buffer_store_dwordx4 v[{Q}:{Q+3}], v{vL16}, s[{sWS}:{sWS+3}], s{s_sl + p//4} offen offset:{(p%4)*1024}{SC}\n"
                f"    s_branch L_xe{p}\nL_xo{p}:\n    ds_write_b128 v{vOW}, v[{Q}:{Q+3}] offset:{p*1024}\nL_xe{p}:", cost=16, deps=[(sw, 1)])
        ops += c + [sw] + ([] if 'noxs' in EXP else [st])
    return ops

vYA, vYF, vYD, vGT, vRow = TMP, TMP + 4, TMP + 1, TMP + 8, TMP + 10
def y_prep_ops():
    t = [f"s_mul_i32 s{s_val}, s{s_r}, 21", f"v_add_u32 v{vYA}, s{s_val}, v1", f"s_lshr_b32 s{s_val}, s{s_fi}, 7", f"s_and_b32 s{s_val}, s{s_val}, 63",
         f"v_mov_b32 v{vYD}, s{s_val}", "v_cmp_lt_u32 vcc, 21, v1", f"s_lshl_b32 s{s_upos}, s{s_val}, 5", f"s_mov_b32 s{s_yd}, 0",
         f"v_cndmask_b32 v{vYA}, v{vYA}, v{vYD}, vcc", f"v_lshlrev_b32 v{vYA}, 4, v{vYA}"]
    a = Op("\n    ".join(t), cost=40)
    t = [f"v_lshrrev_b32 v{vYD}, 2, v1", f"v_lshlrev_b32 v{vYD}, 12, v{vYD}", f"v_and_b32 v{vRow}, 3, v1", f"v_lshl_add_u32 v{vYD}, v{vRow}, 4, v{vYD}",
         f"v_and_b32 v{vRow}, 31, v1", f"v_lshlrev_b32 v{vRow+1}, 2, v{vRow}", f"s_mul_i32 s{s_line}, s{s_r}, 192", f"s_mul_i32 s{s_val}, s{s_w}, 48", f"s_add_u32 s{s_line}, s{s_line}, s{s_val}"]
    b = Op("\n    ".join(t), cost=36)
    t = [f"v_mov_b32 v{vYF+k}, 0" for k in range(4)] + [f"s_lshl_b32 s{s_val}, s{s_w}, 10", f"s_add_u32 s{s_val}, s{s_val}, {M_Y}", f"v_add_u32 v{vYL}, s{s_val}, v{vL16}", f"ds_write_b128 v{vYL}, v[{vYF}:{vYF+3}]"]
    c = Op("\n    ".join(t), cost=36, kind="ds", tag="yz")
    return [a, b, c]
def exp_prep_op(OWN, YT):
    t = [f"s_add_u32 s{s_val}, s{s_pb}, s{s_w}", f"s_lshl_b32 s{s_val}, s{s_val}, 2", f"s_add_u32 s{s_val}, s{s_val}, s{s_kq}", f"s_mul_i32 s{s_val}, s{s_val}, 12288",
         f"s_add_u32 s{s_sl}, s{s_val}, {WS_P}", f"s_add_u32 s{s_sl+1}, s{s_sl}, 4096", f"s_add_u32 s{s_sl+2}, s{s_sl}, 8192", f"v_add_u32 v{vOW}, {OWN}, v{vL16}"]
    for k, xr in enumerate((0, 1)):
        t += [f"s_xor_b32 s{s_need}, s{s_w}, {xr}", f"s_lshl_b32 s{s_val}, s{s_need}, 12"]
        for b, base in enumerate((YT, OWN)):
            t += [f"s_add_u32 s{s_lane}, s{s_val}, {base + 12288}", f"s_cmp_eq_u32 s{s_need}, 3", f"s_cselect_b32 s{s_lane}, {EX + 4096*b}, s{s_lane}",
                  f"v_add_u32 v{vPS+2*k+b}, s{s_lane}, v{vL16}"]
    t += [f"s_lshl_b32 s{s_val}, s{s_w}, 2", f"s_add_u32 s{s_val}, s{s_val}, {SFL}", f"v_mov_b32 v{vSF}, s{s_val}", f"v_xor_b32 v{vSF+1}, 4, v{vSF}",
          f"v_mov_b32 v{vS}, 0", f"ds_write_b32 v{vSF}, v{vS}"]
    return Op("\n    ".join(t), cost=120, kind="ds", tag="sfz")
vPS = MT
def y_loads(A, YT):
    A.e(f"s_lshl_b32 s{s_t1}, s{s_line}, 12")
    A.e(f"s_lshl_b32 s{s_t0}, s{s_upos}, 1")
    A.e(f"s_add_u32 s{s_t1}, s{s_t1}, s{s_t0}")
    A.e(f"s_add_u32 s{s_t1}, s{s_t1}, {WS_Y}")
    A.e(f"s_mul_i32 s{s_val}, s{s_w}, 3072")
    for i in range(3):
        A.e(f"s_add_u32 m0, s{s_val}, {YT + 1024*i}")
        if i: A.e(f"s_add_u32 s{s_t1}, s{s_t1}, 65536")
        else: A.e(f"s_lshl_b32 s{s_t0}, s{s_upos}, 2")
        A.e(f"buffer_load_dwordx4 v{vYD}, s[{sWS}:{sWS+3}], s{s_t1} offen sc1 lds")
    A.e(f"s_add_u32 s{s_t0}, s{s_t0}, {WS_GT}")
    A.e(f"buffer_load_dword v{vGT}, v{vRow+1}, s[{sWS}:{sWS+3}], s{s_t0} offen{SC}")
def y_test(A):
    A.e(f"v_and_b32 v{vYF}, v{vYF}, v{vYF+1}")
    A.e(f"v_and_b32 v{vYF+2}, v{vYF+2}, v{vYF+3}")
    A.e(f"v_and_b32 v{vYF}, v{vYF}, v{vYF+2}")
    A.e(f"v_cmp_ne_u32 vcc, 1, v{vYF}")

def SL(ring, i):
    return ring.slot[G0 + 12 + i]*SLOT
PSB = 'psbar' in EXP
vSF = MT + 4
SFL = M_FL + 1024
def sf_set(A, t):
    A.wait_lg(f"ps{t}")
    A.e(f"v_mov_b32 v{vS}, {t+1}")
    A.ds(f"ds_write_b32 v{vSF}, v{vS}", "sfw")
def sf_check(A, t):
    l1, l2 = A.newlabel("L_sf"), A.newlabel("L_sfs")
    A.wait_lg("sfr")
    A.e(f"v_cmp_gt_u32 vcc, {t+1}, v{vSF+2}")
    A.e(f"s_cbranch_vccnz {l2}")
    A.label(l1)
    A.slow.append((l2, l1, t + 1))
def sf_slow(A):
    for l2, l1, n in A.slow:
        A.label(l2)
        A.e(f"ds_read_b32 v{vSF+2}, v{vSF+1}")
        A.e("s_waitcnt lgkmcnt(0)")
        A.e(f"v_cmp_gt_u32 vcc, {n}, v{vSF+2}")
        A.e(f"s_cbranch_vccnz {l2}")
        A.e(f"s_branch {l1}")
def ps_send(A, t, qs=range(4)):
    for q in ([] if 'nops' in EXP else qs): A.ds(f"ds_write_b128 v{vPS + t % 2}, a[{16*t+4*q}:{16*t+4*q+3}] offset:{1024*q}", f"ps{t}")
def ps_recv(A, t, qs=range(4)):
    for q in ([] if 'nops' in EXP else qs): A.ds(f"ds_read_b128 v[{RT+4*q}:{RT+4*q+3}], v{vPS + 2 + t % 2} offset:{1024*q}", f"pr{t}")
def p2(A, ring, memq, valq, stq):
    N = 432
    BJ = lambda k: 24*k + 14
    hl = {1: [3], BJ(2): [5, 7], BJ(3): [8], BJ(4): [9], BJ(5): [10], BJ(6): [11], BJ(8): [12, 13], BJ(9): [14], BJ(10): [15], BJ(11): [16, 17]}
    checks = {BJ(2): 0, BJ(8): 1, BJ(11): 2}
    flags = {BJ(4): ("h4", 1), BJ(7): ("h5", 2)}
    tdone = {}; A.slow = []
    A.wait_lg(["f0"])
    for j in range(N):
        if 'p2st' in EXP:
            if j % 72 == 0: stamp(A, 1 + j//72)
        else:
            if j == 0: stamp(A, 7 if 'p1st' in EXP else 4)
            if j == 120 and 'p1st' not in EXP: stamp(A, 5)
        F, rb = j // 2, j % 2
        LT = N - PER
        if j >= LT: F, rb = LT//2 + (j - LT) % (PER//2), 1 - (j - LT)//(PER//2)
        k, sp, t = fmap(F)
        buf = aR + 4*(F % 8)
        acc = f"a[{16*t}:{16*t+15}]" if rb else f"v[{acc2(t)}:{acc2(t)+15}]"
        if j == 96: assert not any(f"v{TMP+31}" in o.txt for o in valq.q), "mish(4) late"
        if j == 144: assert not valq.q, "mish(5) late"
        A.e(f"v_mfma_f32_32x32x16_bf16 {acc}, a[{buf}:{buf+3}], {hreg(k, 2*rb+sp)}, {'0' if j < 12 else acc}")
        if j >= TM0 and (j - TM0) % PER == PER - 1: tdone[t] = A.n - 1
        if j == LT + PER//2 - 1: tdone['b5'] = A.n - 1
        n0 = A.n
        if j % 24 == 14 and j < TM0:
            tags = [f"st{G0+k+1}"]
            if j in flags: tags.append(flags[j][0])
            if k == 17 - NTS: tags += [f"st{G0+x}" for x in range(k + 2, 18 if NTS == 3 else 17)]
            A.wait_vm(tags)
            A.e("s_barrier")
            if j in flags: stq.q = flag_ops(flags[j][1]) + stq.q
            ring.release(G0 + k - 1)
            if j in checks:
                assert not any(o.tag == "fc" for o in memq.q)
                A.wait_lg("fcr")
                check(A, s_rr, checks[j]); check(A, s_rr + 1, checks[j])
            if j + 48 in checks: memq.add(flagcopy_ops(checks[j + 48]))
            for g in ring.alloc(G0 + 18): memq.add(w2_dma_ops(g, ring.slot[g]))
            if k == 8: valq.add(y_prep_ops())
            if k == 17 - NTS:
                assert not memq.q
                valq.add([exp_prep_op(SL(ring, 1), SL(ring, 0))])
        for x in hl.get(j, []): memq.add(h_load_ops(x))
        if NTS == 4 and j == TM0 + 2:
            assert not valq.q
            A.wait_vm(f"st{G0+17}"); A.wait_lg("sfz"); A.e("s_barrier")
        if j == YC and 'noy' not in EXP:
            memq.add([Op(f"s_lshl_b32 s{s_val}, s{s_w}, 10\n    s_add_u32 m0, s{s_val}, {M_Y}\n    s_mov_b32 s{s_val}, {F_Y}\n    buffer_load_dwordx4 v{vYA}, s[{sWS}:{sWS+3}], s{s_val} offen sc1 lds", kind="vmem", tag="yc", cost=16)])
        if j == YR + 4 and 'noy' not in EXP:
            assert not memq.q
            A.wait_lg("yr")
            y_test(A)
            A.e("s_nop 0")
            A.e("s_cbranch_vccnz L_ynot")
            y_loads(A, SL(ring, 0))
            A.e(f"s_mov_b32 s{s_yd}, 1")
            A.label("L_ynot")
        tp, ph = ((j - TM0 - PER)//PER, (j - TM0) % PER) if j >= TM0 + PER else (None, None)
        if PSB and ph == 9:
            A.wait_lg(f"ps{tp}"); A.e("s_barrier")
        P = dict(send={3: [0], 4: [1], 5: [2], 6: [3]}, set=9, rd=11, chk=13, exp=15) if tp != 4 else dict(send={2: [0, 1], 3: [2, 3]}, set=5, rd=7, chk=9, exp=11)
        if ph == P['set']: sf_set(A, tp)
        if ph == P['chk']: sf_check(A, tp)
        if j >= LT - 2: A.wait_lg([f"f{F+1}", f"f{F+2}"])
        elif j % 6 == 0:
            A.wait_lg([f"f{F+1}", f"f{F+2}", f"f{F+3}"])
        if ph == P['exp']:
            A.wait_lg(f"pr{tp}"); valq.add(export_ops(tp))
        if j < LT - 4:
            if rb == 0: a2_read(A, F + LF, ring)
        elif j < LT - 1: a2_read(A, LT//2 + 3 + (j - LT + 4) + 0, ring) if False else None
        if LT - 4 <= j < LT + 1:
            nf = (LT - 4)//2 + LF + (j - (LT - 4))
            if nf < N//2: a2_read(A, nf, ring)
        if ph in P['send']:
            while A.n - tdone[tp] < 13: A.e("s_nop 0")
            ps_send(A, tp, P['send'][ph])
        r0 = P['chk']
        if ph == P['rd']: A.ds(f"ds_read_b32 v{vSF+2}, v{vSF+1}", "sfr")
        if ph in (r0, r0 + 1):
            while any("v_add_f32" in o.txt for o in valq.q):
                if not fill_odd(valq, 4, window=8): A.e("s_nop 0")
            ps_recv(A, tp, [2*(ph - r0), 2*(ph - r0) + 1])
        if j - LT in (12, 13):
            while A.n - tdone['b5'] < 13: A.e("s_nop 0")
            q = j - LT - 12
            ps_send(A, 5, [2*q, 2*q + 1])
        if j + 4 in checks: A.ds(f"ds_read_b32 v{vFC}, v{vFA}", "fcr")
        if j == YR: A.ds(f"ds_read_b128 v[{vYF}:{vYF+3}], v{vYL}", "yr")
        bud = max(0, 24 - 4*(A.n - n0))
        u = pump(stq, bud, 1) if rb == 1 else 0
        left = (13 - j) % 24
        if u == 0: u = pump(memq, bud, 1 if (rb == 1 or 2*sum(x.kind == "vmem" for x in memq.q) > left + 2) else 0)
        if valq.q:
            b2 = max(0, bud - u)
            if j < 144:
                if valq.total() > MC*(MEND - j): b2 += 4
                if j >= MEND: b2 = 1000
            elif u == 0 and valq.q[0].cost > b2 and valq.ready(valq.q[0]): b2 = valq.q[0].cost
            fill_odd(valq, b2, window=(30 if j < 144 else 8))
    assert not memq.q and not stq.q
    if 'p1st' not in EXP: stamp(A, 7 if 'p2st' in EXP else 6)
    A.wait_lg("ps5"); A.e("s_barrier")
    for q in range(4): A.ds(f"ds_read_b128 v[{RT5+4*q}:{RT5+4*q+3}], v{vPS + 3} offset:{1024*q}", "pr5")
    valq.drain()
    while A.n - tdone[5] < 13: A.e("s_nop 0")
    A.wait_lg("pr5")
    valq.add(export_ops(5)); valq.drain()
MEND = int(os.environ.get('MEND', 132))
MC = int(os.environ.get('MC', 16))
YC = int(os.environ.get('YC', 385))
YR = int(os.environ.get('YR', 404))

def tail(A, ring):
    OWN = SL(ring, 1); YT = SL(ring, 0)
    A.e(f"s_add_u32 s{s_pb}, s{s_pb}, s{s_kq}")
    A.e(f"s_mul_i32 s{s_pb}, s{s_pb}, 49152")
    A.e(f"s_mul_i32 s{s_t2}, s{s_w}, 3072")
    A.e(f"s_add_u32 s{s_pb}, s{s_pb}, s{s_t2}")
    A.e(f"s_add_u32 s{s_pb}, s{s_pb}, {WS_P}")
    A.e("s_waitcnt lgkmcnt(0)")
    A.e("s_barrier")
    A.e(f"s_cmp_eq_u32 s{s_w}, s{s_kq}")
    A.e("s_cbranch_scc1 L_own_done")
    A.e(f"v_mov_b32 v{vS}, 1")
    A.e("s_waitcnt vmcnt(0)")
    A.e(f"buffer_store_dword v{vS}, off, s[{sWS}:{sWS+3}], s{s_fp}{SC}")
    A.label("L_own_done")
    if 'tst' in EXP: stamp(A, 2)
    A.vm = []; A.lg = []
    V = 32
    A.e(f"s_cmp_lg_u32 s{s_yd}, 0")
    A.e("s_cbranch_scc1 L_py_out")
    A.e(f"s_mov_b32 s{s_t0}, 0x20000")
    A.e(f"s_mov_b32 s{s_t1}, {F_Y}")
    A.label("L_py")
    A.e(f"buffer_load_dwordx4 v[{vYF}:{vYF+3}], v{vYA}, s[{sWS}:{sWS+3}], s{s_t1} offen{SC}")
    A.e("s_waitcnt vmcnt(0)")
    y_test(A)
    A.e(f"s_sub_u32 s{s_t0}, s{s_t0}, 1")
    A.e("s_cbranch_scc1 L_py_go")
    A.e("s_sleep 1")
    A.e("s_cbranch_vccnz L_py")
    A.label("L_py_go")
    y_loads(A, YT)
    A.label("L_py_out")
    if 'tst' in EXP: stamp(A, 3)
    A.e(f"v_and_b32 v{V}, 3, v1")
    A.e(f"v_cmp_eq_u32 s[{s_ret}:{s_ret+1}], s{s_kq}, v{V}")
    A.e(f"v_lshlrev_b32 v{V}, 2, v{V}")
    A.e(f"s_and_b32 s{s_need}, s{s_fp}, 0xfffffe00")
    A.e(f"s_lshl_b32 s{s_t0}, s{s_kq}, 7")
    A.e(f"s_add_u32 s{s_need}, s{s_need}, s{s_t0}")
    A.e(f"s_cmp_lg_u32 s{s_w}, s{s_kq}")
    A.e("s_cbranch_scc1 L_np1")
    A.e(f"buffer_load_dword v{V+4}, v{V}, s[{sWS}:{sWS+3}], s{s_need} offen{SC}")
    A.label("L_np1")
    OW, YA, BS = 96, 112, 192
    A.e(f"s_add_u32 s{s_t0}, s{s_t2}, {OWN}")
    A.e(f"v_add_u32 v{V+2}, s{s_t0}, v{vL16}")
    for i in range(3): A.e(f"ds_read_b128 v[{OW+4*i}:{OW+4*i+3}], v{V+2} offset:{1024*i}")
    A.e(f"v_lshrrev_b32 v{V+3}, 2, v1")
    A.e(f"v_and_b32 v{V+3}, 3, v{V+3}")
    A.e(f"v_lshrrev_b32 v{V+6}, 5, v1")
    A.e(f"v_lshl_add_u32 v{V+3}, v{V+6}, 3, v{V+3}")
    A.e(f"v_lshlrev_b32 v{V+3}, 6, v{V+3}")
    A.e(f"v_and_b32 v{V+5}, 16, v1")
    A.e(f"v_lshl_add_u32 v{V+3}, v{V+5}, 1, v{V+3}")
    A.e(f"v_and_b32 v{V+5}, 3, v1")
    A.e(f"v_lshl_add_u32 v{V+3}, v{V+5}, 3, v{V+3}")
    A.e(f"s_add_u32 s{s_t0}, s{s_t2}, {YT}")
    A.e(f"v_add_u32 v{V+3}, s{s_t0}, v{V+3}")
    A.e(f"v_mul_u32_u24 v{V+8}, 1152, v{vRow}")
    A.e(f"v_lshl_add_u32 v{V+8}, v{V+6}, 4, v{V+8}")
    A.e(f"s_mul_i32 s{s_t1}, s{s_upos}, 1152")
    A.e(f"s_lshl_b32 s{s_t0}, s{s_line}, 1")
    A.e(f"s_add_u32 s{s_lane}, s{s_t1}, s{s_t0}")
    A.e(f"s_cmp_eq_u32 s{s_w}, s{s_kq}")
    A.e(f"s_cselect_b32 s{s_t0}, 1, s{s_yd}")
    A.e(f"s_cmp_lg_u32 s{s_t0}, 0")
    A.e("s_cbranch_scc1 L_w1")
    A.e("s_waitcnt vmcnt(0)")
    A.label("L_w1")
    A.e("s_waitcnt vmcnt(1)")
    for i in range(3):
        for rd in range(2):
            A.e(f"ds_read_b64_tr_b16 v[{YA+4*i+2*rd}:{YA+4*i+2*rd+1}], v{V+3} offset:{1024*i + 256*rd}")
    A.e(f"v_sub_f32 v{vGT+1}, 1.0, v{vGT}")
    for q in range(3):
        A.e(f"s_cmp_le_u32 s{s_kq}, {q}")
        A.e(f"s_cselect_b32 s{s_sl+q}, 12288, 0")
        A.e(f"s_add_u32 s{s_sl+q}, s{s_sl+q}, s{s_pb}")
        if q < 2: A.e(f"s_add_u32 s{s_pb}, s{s_pb}, 12288")
    A.e("s_waitcnt lgkmcnt(0)")
    for q in range(12):
        lo = BS + 2*q
        A.e(f"v_lshlrev_b32 v{lo}, 16, v{YA+q}")
        A.e(f"v_and_b32 v{lo+1}, 0xffff0000, v{YA+q}")
        A.e(f"v_lshlrev_b32 v{V+10+2*(q&1)}, 16, v{OW+q}")
        A.e(f"v_and_b32 v{V+11+2*(q&1)}, 0xffff0000, v{OW+q}")
        A.e(f"v_pk_mul_f32 v[{lo}:{lo+1}], v[{lo}:{lo+1}], v[{vGT}:{vGT+1}] op_sel_hi:[1,0]")
        A.e(f"v_pk_fma_f32 v[{lo}:{lo+1}], v[{V+10+2*(q&1)}:{V+11+2*(q&1)}], v[{vGT}:{vGT+1}], v[{lo}:{lo+1}] op_sel:[0,1,0] op_sel_hi:[1,1,1]")
    A.e(f"s_mov_b32 s{s_t0}, 0x20000")
    A.e(f"s_cmp_lg_u32 s{s_w}, s{s_kq}")
    A.e("s_cbranch_scc1 L_pp_out")
    A.label("L_pp")
    A.e("s_waitcnt vmcnt(0)")
    A.e(f"v_cmp_ne_u32 vcc, 1, v{V+4}")
    A.e(f"s_sub_u32 s{s_t0}, s{s_t0}, 1")
    A.e("s_cbranch_scc1 L_pp_out")
    A.e(f"s_andn2_b64 vcc, vcc, s[{s_ret}:{s_ret+1}]")
    A.e("s_cbranch_vccz L_pp_out")
    A.e(f"buffer_load_dword v{V+4}, v{V}, s[{sWS}:{sWS+3}], s{s_need} offen{SC}")
    A.e("s_branch L_pp")
    A.label("L_pp_out")
    A.e("s_barrier")
    if 'tst' in EXP: stamp(A, 4)
    PB = 144
    for i in range(3):
        for q in range(3):
            A.vmem(f"buffer_load_dwordx4 v[{PB+12*i+4*q}:{PB+12*i+4*q+3}], v{vL16}, s[{sWS}:{sWS+3}], s{s_sl+q} offen offset:{1024*i}{SC}", f"imp{i}")
    A.e(f"v_mov_b32 v{V+14}, 0x3f80")
    A.e(f"v_mov_b32 v{V+15}, 0x3f800000")
    S = 40 + 8
    for i in range(3):
        A.wait_vm(f"imp{i}")
        if i == 0 and 'tst' in EXP: stamp(A, 5)
        for d in range(4):
            A.e(f"v_lshlrev_b32 v{S+2*d}, 16, v{PB+12*i+d}")
            A.e(f"v_and_b32 v{S+2*d+1}, 0xffff0000, v{PB+12*i+d}")
        for q in (1, 2):
            for d in range(4):
                A.e(f"v_dot2c_f32_bf16 v{S+2*d}, v{PB+12*i+4*q+d}, v{V+14}")
                A.e(f"v_dot2c_f32_bf16 v{S+2*d+1}, v{PB+12*i+4*q+d}, v{V+15}")
        A.nop(2)
        for d in range(4):
            lo = BS + 8*i + 2*d
            A.e(f"v_pk_fma_f32 v[{lo}:{lo+1}], v[{S+2*d}:{S+2*d+1}], v[{vGT}:{vGT+1}], v[{lo}:{lo+1}] op_sel:[0,1,0] op_sel_hi:[1,1,1]")
        for d in range(4):
            lo = BS + 8*i + 2*d
            A.e(f"v_cvt_pk_bf16_f32 v{OW+4*i+d}, v{lo}, v{lo+1}")
        A.vmem(f"buffer_store_dwordx4 v[{OW+4*i}:{OW+4*i+3}], v{V+8}, s[{sT1}:{sT1+3}], s{s_lane} offen offset:{32*i}", "o")
```

```python
from common import *
import kc4
from kc4 import SU, SR, WREG, RA_OFF, RB_OFF, U_OFF, WS_R9, s_ch0, s_lb, sU
vT = 27
VSP = int(os.environ.get('VSP', 6))
s_ch, s_rd, s_yo, s_q = 60, 61, 63, 64
s_wsl, s_wsh = p_ws, p_ws + 1
vUD, vRD, vB, vA, vYW, vYR, vBl = 4, 5, 6, 7, 8, 9, 10
CACC, CA, CBm8, CP = 32, 64, 96, 100

def breg(rho):
    if rho == -8: return f"v[{CBm8}:{CBm8+3}]"
    k = rho + 7
    return f"a[{4*k}:{4*k+3}]"

def set_srds(A):
    for srd, pitch, off, n in ((sU, UT_PITCH, WS_UT + 128 - 416, 4512),):
        A.e(f"s_mul_i32 s{s_t1}, s{s_ch}, {pitch}")
        A.e(f"s_add_u32 s{s_t1}, s{s_t1}, {off}")
        A.e(f"s_add_u32 s{srd}, s{s_wsl}, s{s_t1}")
        A.e(f"s_addc_u32 s{srd+1}, s{s_wsh}, 0")
        A.e(f"s_and_b32 s{srd+1}, s{srd+1}, 0xffff")
        A.e(f"s_mov_b32 s{srd+2}, {n}")
        A.e(f"s_mov_b32 s{srd+3}, 0x00020000")

def u_dma_ops(flag=""):
    o = []
    for a0 in range(4):
        m = Op(f"s_add_u32 m0, s{s_lb}, {U_OFF + a0*SU}", kind="salu")
        so = Op(f"s_mov_b32 s{s_so}, {4*a0 + 4}", kind="salu")
        o += [m, so]
        for i in range(4):
            o.append(Op(f"buffer_load_dwordx4 v{vUD if i == 0 else vL16}, s[{sU}:{sU+3}], s{s_so} offen offset:{i*1024} lds{flag}", kind="vmem", tag="u", deps=[(m, 2)]))
    for a0 in range(4):
        o.append(Op(f"s_add_u32 m0, s{s_lb}, {U_OFF + a0*SU + 4096}\n    s_mov_b32 s{s_so}, {4*a0 + 4 + 4096}\n    s_mov_b32 exec_hi, 0\n"
                    f"    buffer_load_dwordx4 v{vL16}, s[{sU}:{sU+3}], s{s_so} offen{flag} lds\n    s_mov_b64 exec, -1", kind="vmem", tag="u"))
    return o
def r9_ops():
    o = [Op(f"s_mul_i32 s{s_so}, s{s_ch0}, 1024\n    s_add_u32 s{s_so}, s{s_so}, {WS_R9}", kind="salu")]
    for k in range(8):
        if k % 4 == 0:
            m = Op(f"s_add_u32 m0, s{s_lb}, {RA_OFF + 1024*k}" + (f"\n    s_add_u32 s{s_so}, s{s_so}, 4096" if k else ""), kind="salu"); o.append(m)
        o.append(Op(f"buffer_load_dwordx4 v{vL16}, s[{sWS}:{sWS+3}], s{s_so} offen offset:{1024*(k%4)} lds", kind="vmem", tag="u", deps=[(m, 2)]))
    o.append(Op(f"s_add_u32 m0, s{s_lb}, {RA_OFF + 8192}\n    s_add_u32 s{s_so}, s{s_so}, 4096\n    s_mov_b32 exec_hi, 0xffff\n"
                f"    buffer_load_dwordx4 v{vL16}, s[{sWS}:{sWS+3}], s{s_so} offen lds\n    s_mov_b64 exec, -1", kind="vmem", tag="u"))
    return o

def conv_setup(A):
    A.c("---- conv setup")
    T = vT
    A.e(f"s_add_u32 s{s_ch}, s{s_ch0}, s{s_w}")
    A.e(f"s_add_u32 s{s_rd}, s{s_lb}, {RA_OFF}")
    A.e(f"v_bfrev_b32 v{vUD}, 1")
    A.e("v_cmp_le_u32 vcc, 25, v1")
    A.nop(2)
    A.e(f"v_cndmask_b32 v{vUD}, v{vUD}, v{vL16}, vcc")
    A.e(f"v_lshrrev_b32 v{T}, 4, v1")
    A.e(f"v_and_b32 v{T+1}, 3, v1")
    A.e(f"v_lshrrev_b32 v{T+2}, 2, v1")
    A.e(f"v_and_b32 v{T+2}, 3, v{T+2}")
    A.e(f"v_mul_u32_u24 v{vB}, {SU}, v{T+1}")
    A.e(f"v_lshl_add_u32 v{vB}, v{T+2}, 7, v{vB}")
    A.e(f"v_lshl_add_u32 v{vB}, v{T}, 4, v{vB}")
    A.e(f"s_add_u32 s{s_t0}, s{s_lb}, {U_OFF}")
    A.e(f"v_add_u32 v{vB}, s{s_t0}, v{vB}")
    A.e(f"v_lshlrev_b32 v{vYW}, 5, v{T}")
    A.e(f"v_lshl_add_u32 v{vYW}, v{T+1}, 2, v{vYW}")
    A.e(f"v_lshl_add_u32 v{vYW}, v{T+2}, 7, v{vYW}")
    A.e(f"s_add_u32 s{s_t0}, s{s_lb}, {U_OFF + 4*SU}")
    A.e(f"v_add_u32 v{vYW}, s{s_t0}, v{vYW}")
    A.e(f"v_add_u32 v{vYR}, s{s_t0}, v{vL16}")
    A.e(f"v_and_b32 v{T+1}, 1, v1")
    A.e(f"v_lshrrev_b32 v{T+2}, 1, v1")
    A.e(f"v_and_b32 v{T+2}, 7, v{T+2}")
    A.e(f"v_mul_u32_u24 v{vA}, {SR}, v{T+1}")
    A.e(f"v_sub_u32 v{T}, v{T}, v{T+2}")
    A.e(f"v_lshl_add_u32 v{vA}, v{T}, 4, v{vA}")
    A.e(f"s_add_u32 s{s_t0}, s{s_rd}, 112")
    A.e(f"v_add_u32 v{vA}, s{s_t0}, v{vA}")

def y_out(A, tiles, nacc, flag=""):
    pass

def conv_round(A, rnd, ldflag="", stflag=""):
    memq = Filler(A)
    ro = rnd*(RB_OFF - RA_OFF)
    def rdA(q): A.ds(f"ds_read_b128 v[{CA+4*(q%8)}:{CA+4*(q%8)+3}], v{vA} offset:{ro + 4096-64*q}", f"A{q}")
    outq = Filler(A); fin = {}
    def out_ops(j):
        pos = fin[j]
        cv = [Op(f"v_cvt_pk_bf16_f32 v{CP+2*(j&1)+e}, v{CACC+4*j+2*e}, v{CACC+4*j+2*e+1}", deps=[(lambda: pos, 9)]) for e in range(2)]
        w = [Op(f"ds_write_b32 v{vYW}, v{CP+2*(j&1)+e} offset:{512*j+16*e}", kind="ds", tag=f"yw{j}", deps=[(cv[e], 1)]) for e in range(2)]
        o = cv + w
        if j & 1:
            k = j // 2
            o.append(Op(f"ds_read_b128 v[{CP+4+4*(k&1)}:{CP+7+4*(k&1)}], v{vYR} offset:{1024*k}", kind="ds", tag=f"yr{k}", deps=[(w[1], 1)]))
            o.append(Op(f"WAITSTORE {k}", kind="x", deps=[(o[-1], 12)]))
        return o
    def pump_out(n):
        while outq.q and n > 0 and outq.ready(outq.q[0]):
            o = outq.q.pop(0)
            if o.kind == "x":
                k = int(o.txt.split()[1])
                A.wait_lg(f"yr{k}")
                A.vmem(f"buffer_store_dwordx4 v[{CP+4+4*(k&1)}:{CP+7+4*(k&1)}], v{vL16}, s[{sWS}:{sWS+3}], s{s_yo} offen offset:{1024*k}{stflag}", "yst")
            else: outq.emit(o)
            n -= 1
    def rdB(rho): A.ds(f"ds_read_b128 {breg(rho)}, v{vB} offset:{64*(rho+8)}", f"B{rho}")
    seq = [(q, j) for q in range(65) for j in range(max(0, -((8-q)//8)), 8)]
    assert len(seq) == 296
    reads = []
    seenB = set();
    for (q, j) in seq:
        if ("A", q) not in seenB: reads.append(("A", q)); seenB.add(("A", q))
        if ("B", 8*j-q) not in seenB: reads.append(("B", 8*j-q)); seenB.add(("B", 8*j-q))
    first_use = {}
    for i, (q, j) in enumerate(seq):
        first_use.setdefault(("A", q), i); first_use.setdefault(("B", 8*j-q), i)
    last_useA = {}
    for i, (q, j) in enumerate(seq): last_useA[q] = i
    ri = 0
    def issue(upto_use, cur, maxn):
        nonlocal ri
        n = 0
        while ri < len(reads) and n < maxn and first_use[reads[ri]] <= upto_use:
            k, x = reads[ri]
            if k == "A" and x >= 8 and last_useA[x-8] >= cur: break
            (rdA if k == "A" else rdB)(x); ri += 1; n += 1
        return n
    issue(9, 0, 12)
    started = set()
    u_free = False
    lastv = [-99]
    for i, (q, j) in enumerate(seq):
        need = [f"A{q}", f"B{8*j-q}"]
        if A._cnt(A.lg, need) >= 0:
            ahead = [f"A{seq[k][0]}" for k in range(i, min(i+3, 296))] + [f"B{8*seq[k][1]-seq[k][0]}" for k in range(i, min(i+3, 296))]
            A.wait_lg(ahead)
        assert ("A", q) not in reads[ri:] and ("B", 8*j-q) not in reads[ri:]
        acc = CACC + 4*j
        cin = f"v[{acc}:{acc+3}]" if j in started else "0"
        started.add(j)
        A.e(f"v_mfma_f32_16x16x32_bf16 v[{acc}:{acc+3}], v[{CA+4*(q%8)}:{CA+4*(q%8)+3}], {breg(8*j-q)}, {cin}")
        if q == 8*j + 8:
            fin[j] = A.n - 1; outq.add(out_ops(j))
        n = issue(i + 12, i + 1, 2)
        if n < 2 and outq.q:
            n0 = A.n; pump_out(2 - n); n += A.n - n0
        if not u_free and all(("B", r) not in reads[ri:] for r in range(-8, 57)) and A._cnt(A.lg, [f"B{r}" for r in range(-8, 57)]) < 0:
            u_free = True
            memq.add(NEXT(A, rnd, ldflag))
        if n < 2 and u_free:
            k = 0
            while memq.q and k < 2 - n and memq.ready(memq.q[0]):
                o = memq.q[0]
                if o.kind == "vmem":
                    if i - lastv[0] < VSP: break
                    lastv[0] = i
                memq.emit(memq.q.pop(0)); k += 1
                if o.kind == "vmem": break
    assert not memq.q
    while outq.q:
        n0 = A.n; pump_out(1)
        if A.n == n0: A.e("s_nop 0")

def NEXT(A, rnd, ldflag):
    o = []
    o.append(Op(f"s_add_u32 s{s_ch}, s{s_ch}, 4" if rnd == 0 else f"s_add_u32 s{s_ch}, s{s_ch0}, 8", kind="salu"))
    class X:
        def __init__(s): s.l = []
        def e(s, t): s.l.append(t)
    x = X(); set_srds(x)
    o += [Op(t, kind="salu") for t in x.l]
    return o + u_dma_ops(ldflag) + (r9_ops() if rnd == 1 else [])

def conv_all(A, ldflag="", stflag=""):
    conv_setup(A)
    set_srds(A)
    kc4.utchk(A)
    emit_now(A, u_dma_ops(ldflag))
    A.e("s_barrier")
    for rnd in range(2):
        A.e(f"s_lshl_b32 s{s_yo}, s{s_ch}, 12")
        A.e(f"s_add_u32 s{s_yo}, s{s_yo}, {WS_Y}")
        A.wait_vm("u")
        if rnd == 0: stamp(A, 4)
        conv_round(A, rnd, ldflag, stflag)
        if rnd == 0: stamp(A, 5)
    A.c("---- 9th channel: tiles jl=w, jh=7-w")
    stamp(A, 6)
    A.e(f"s_lshl_b32 s{s_yo}, s{s_ch}, 12")
    A.e(f"s_add_u32 s{s_yo}, s{s_yo}, {WS_Y}")
    A.e(f"s_lshl_b32 s{s_t0}, s{s_w}, 6")
    A.e(f"v_subrev_u32 v11, s{s_t0}, v{vA}")
    A.e(f"v_subrev_u32 v12, s{s_t0}, v{vB}")
    A.wait_vm("u")
    def rA(h, Q): A.ds(f"ds_read_b128 a[{64*h+32+4*Q}:{64*h+35+4*Q}], v11 offset:{4096 - 512*Q - 256*h}", f"A{h}{Q}")
    def rB(h, i): A.ds(f"ds_read_b128 a[{64*h+4*i}:{64*h+3+4*i}], v12 offset:{512*i + 512 - 256*h}", f"B{h}{i}")
    pend = []
    for h in range(2):
        pend += [(rA, h, 0)] + [(rB, h, i) for i in range(8)] + [(rA, h, Q) for Q in range(1, 8)]
    for f, h, x in pend[:12]: f(h, x)
    pend = pend[12:]
    for h in range(2):
        for Q in range(8):
            for j in range(Q, 8):
                A.wait_lg([f"A{h}{Q}", f"B{h}{j-Q}"])
                acc = CACC + 4*j
                cin = "0" if (h == 0 and Q == 0) else f"v[{acc}:{acc+3}]"
                A.e(f"v_mfma_f32_16x16x32_bf16 v[{acc}:{acc+3}], a[{64*h+32+4*Q}:{64*h+35+4*Q}], a[{64*h+4*(j-Q)}:{64*h+3+4*(j-Q)}], {cin}")
                if pend:
                    f, hh, x = pend.pop(0); f(hh, x)
    A.e(f"s_cmp_lg_u32 s{s_w}, 0")
    A.e("s_cbranch_scc1 L_cv9x")
    A.e(f"ds_read_b128 a[128:131], v{vA} offset:0")
    A.e(f"ds_read_b128 v[{CBm8}:{CBm8+3}], v{vB} offset:0")
    A.e("s_waitcnt lgkmcnt(0)")
    for j in range(8):
        a = f"a[{32+4*(j+1)}:{35+4*(j+1)}]" if j < 7 else "a[128:131]"
        A.e(f"v_mfma_f32_16x16x32_bf16 v[{CACC+4*j}:{CACC+4*j+3}], {a}, v[{CBm8}:{CBm8+3}], v[{CACC+4*j}:{CACC+4*j+3}]")
    A.label("L_cv9x")
    A.e(f"s_add_u32 s{s_t0}, s{s_lb}, {U_OFF}")
    A.e(f"v_add_u32 v13, s{s_t0}, v{vL16}")
    A.e(f"s_lshl_b32 s{s_t0}, s{s_w}, 11")
    A.e(f"s_add_u32 s{s_t0}, s{s_t0}, {U_OFF}")
    A.e(f"v_add_u32 v14, s{s_t0}, v{vL16}")
    A.e(f"v_add_u32 v15, {2*WREG}, v14")
    A.nop(6)
    for j in range(8): A.e(f"ds_write_b128 v13, v[{CACC+4*j}:{CACC+4*j+3}] offset:{1024*j}")
    A.e("s_waitcnt lgkmcnt(0)")
    A.e("s_barrier")
    for ww in range(4):
        for t in range(2):
            A.e(f"ds_read_b128 v[{CA+8*ww+4*t}:{CA+8*ww+4*t+3}], v{14 + ww//2} offset:{(ww%2)*WREG + 1024*t}")
    A.e("s_waitcnt lgkmcnt(0)")
    for r in range(0, 8, 2):
        A.e(f"v_pk_add_f32 v[{CA+r}:{CA+r+1}], v[{CA+r}:{CA+r+1}], v[{CA+8+r}:{CA+9+r}]")
        A.e(f"v_pk_add_f32 v[{CA+16+r}:{CA+17+r}], v[{CA+16+r}:{CA+17+r}], v[{CA+24+r}:{CA+25+r}]")
    for r in range(0, 8, 2):
        A.e(f"v_pk_add_f32 v[{CA+r}:{CA+r+1}], v[{CA+r}:{CA+r+1}], v[{CA+16+r}:{CA+17+r}]")
    for t in range(2):
        for e in range(2):
            r = CP + 2*t + e
            A.e(f"v_cvt_pk_bf16_f32 v{r}, v{CA+4*t+2*e}, v{CA+4*t+2*e+1}")
    for t in range(2):
        for e in range(2):
            A.e(f"ds_write_b32 v{vYW}, v{CP+2*t+e} offset:{512*t+16*e}")
    A.e("s_waitcnt lgkmcnt(0)")
    A.e(f"ds_read_b128 v[{CP+4}:{CP+7}], v{vYR}")
    A.e(f"s_lshl_b32 s{s_t0}, s{s_w}, 10")
    A.e(f"s_add_u32 s{s_yo}, s{s_yo}, s{s_t0}")
    A.e("s_waitcnt lgkmcnt(0)")
    A.vmem(f"buffer_store_dwordx4 v[{CP+4}:{CP+7}], v{vL16}, s[{sWS}:{sWS+3}], s{s_yo} offen{stflag}", "yst")
```

```python
import sys, os
from common import *
import p1f
import big3 as big2
import conv5 as convf
import kc4
from p1f import *

def fused():
    A = Asm()
    K = NAME + "_kernel"
    A.raw(kernel_head(K))
    A.label("L_start")
    stamp(A, 0)
    if 'probe' in EXP: A.e("s_memrealtime s[86:87]")
    A.e("s_cmp_ge_u32 s2, 256")
    A.e("s_cbranch_scc1 L_end")
    A.e(f"s_lshr_b32 s{s_r}, s2, 3")
    A.e(f"s_and_b32 s{s_r}, s{s_r}, 3")
    A.e(f"s_cmp_eq_u32 s{s_r}, 3")
    A.e("s_cbranch_scc1 L_conv")
    big2.prologue(A)
    if not (EXP & {'tst', 'p2st'}): stamp(A, 1)
    ctx = big2.p1(A)
    big2.p2(A, *ctx)
    big2.tail(A, ctx[0])
    if 'probe' in EXP:
        A.e("s_cmp_lg_u32 s2, 0")
        A.e("s_cbranch_scc1 L_prb2")
        A.e(f"buffer_load_dwordx2 v[2:3], off, s[{sDBG}:{sDBG+3}], 0 offset:128 sc1")
        A.e("s_memrealtime s[88:89]")
        A.e("s_waitcnt vmcnt(0) lgkmcnt(0)")
        A.e("v_not_b32 v3, v3")
        PS = int(os.environ.get("PS", -1))
        if PS >= 0: A.e(f"v_mov_b32 v2, s{88 if PS == 9 else 94}")
        A.e("v_sub_u32 v2, v2, v3"); A.e("s_nop 1")
        A.e("v_readfirstlane_b32 s90, v2")
        A.e("s_min_u32 s90, s90, 5000")
        A.e(f"s_mul_i32 s90, s90, {10 if PS < 0 else 4}")
        A.e(f"buffer_store_dword v2, off, s[{sDBG}:{sDBG+3}], 0 offset:4")
        A.label("L_prb3")
        A.e("s_memrealtime s[92:93]"); A.e("s_waitcnt lgkmcnt(0)")
        A.e("s_sub_u32 s91, s92, s88"); A.e("s_cmp_lt_u32 s91, s90"); A.e("s_cbranch_scc1 L_prb3")
        A.label("L_prb2")
    if STAMPS:
        A.wait_all()
        if not (EXP & {'p1st', 'p2st'}): stamp(A, 7)
        stamp_flush(A)
    A.e("s_endpgm")
    A.label("L_conv")
    A.vm = []; A.lg = []
    for r, n in ((sX, "u"), (p_w1, "w1"), (sWS, "ws"), (sW2, "w2"), (sDBG, "dbg")):
        A.e(f"s_load_dwordx2 s[{r}:{r+1}], s[0:1], {KA[n]}")
    if 'nocpf' not in EXP:
        A.e(f"s_getpc_b64 s[{s_ret}:{s_ret+1}]")
        A.label("L_cpf_pc")
        A.e(f"s_sub_u32 s{s_ret}, s{s_ret}, L_cpf_pc-L_start")
        A.e(f"s_subb_u32 s{s_ret+1}, s{s_ret+1}, 0")
        A.e("v_lshrrev_b32 v2, 6, v0")
        A.e("s_lshr_b32 s3, s2, 5")
        A.e("s_lshl_b32 s3, s3, 2")
        A.e("v_add_u32 v2, s3, v2")
        A.e("v_and_b32 v2, 7, v2")
        A.e("v_lshlrev_b32 v2, 13, v2")
        A.e("v_and_b32 v3, 63, v0")
        A.e("v_lshl_add_u32 v2, v3, 7, v2")
        A.e("v_min_u32 v2, L_codeend-L_start-4, v2")
        A.e("v_and_b32 v2, -4, v2")
        A.vmem(f"global_load_dword a255, v2, s[{s_ret}:{s_ret+1}]", "cpf")
    setup_common(A)
    A.e(f"v_mov_b32 v{vS}, 0")
    A.e("s_waitcnt lgkmcnt(0)")
    for r, n in ((sX, L_*D_*2), (sWS, WS_BYTES), (sW2, D_*F_*2), (sDBG, 256)):
        A.e(f"s_mov_b32 s{r+2}, {hex(n)}"); A.e(f"s_mov_b32 s{r+3}, 0x00020000")
    if 'wsend' in EXP:
        A.e(f"s_add_u32 s{sWS}, s{sWS}, {WS_BYTES - 0x2A00000}"); A.e(f"s_addc_u32 s{sWS+1}, s{sWS+1}, 0"); A.e(f"s_mov_b32 s{sWS+2}, 0x2A00000")
    A.e(f"s_mov_b32 s{p_ws}, s{sWS}"); A.e(f"s_mov_b32 s{p_ws+1}, s{sWS+1}")
    A.vm = ["cpf"]; A.lg = []
    if 'probe' in EXP:
        A.e(f"s_cmp_lg_u32 s{s_w}, 3")
        A.e("s_cbranch_scc1 L_prb")
        A.e("s_mov_b64 exec, 1")
        A.e("v_mov_b32 v2, s86"); A.e("v_not_b32 v3, v2")
        A.e(f"buffer_atomic_umax v2, off, s[{sDBG}:{sDBG+3}], 0 offset:128 sc1")
        A.e(f"buffer_atomic_umax v3, off, s[{sDBG}:{sDBG+3}], 0 offset:132 sc1")
        A.e("s_mov_b64 exec, -1")
        A.label("L_prb")
    A.e(f"s_and_b32 s{s_t0}, s{s_fi}, 0xffffff80")
    A.e("v_lshrrev_b32 v2, 4, v1")
    A.e("v_lshlrev_b32 v2, 13, v2")
    A.e("v_and_b32 v3, 15, v1")
    A.e("v_lshl_add_u32 v2, v3, 2, v2")
    A.e(f"v_add_u32 v2, s{s_t0}, v2")
    A.e(f"s_mul_i32 s{s_t0}, s{s_m}, 12")
    A.e(f"s_add_u32 s{s_t0}, s{s_t0}, s{s_kq}")
    A.e(f"s_lshl_b32 s{s_t0}, s{s_t0}, 7")
    A.e(f"s_add_u32 s{s_t0}, s{s_t0}, {F_P}")
    A.e("v_min_u32 v3, 11, v3")
    A.e("v_lshrrev_b32 v4, 2, v3")
    A.e("v_lshlrev_b32 v4, 9, v4")
    A.e("v_and_b32 v3, 3, v3")
    A.e("v_lshl_add_u32 v3, v3, 2, v4")
    A.e("v_cmp_gt_u32 vcc, 48, v1")
    A.e(f"v_add_u32 v3, s{s_t0}, v3")
    A.e(f"s_cmp_lg_u32 s{s_w}, 0")
    A.e("v_cndmask_b32 v2, v3, v2, vcc")
    A.e("s_cbranch_scc1 L_nz")
    A.e(f"buffer_store_dword v{vS}, v2, s[{sWS}:{sWS+3}], 0 offen{SC}")
    A.label("L_nz")
    A.e(f"s_lshr_b32 s{s_fi}, s{s_fi}, 7")
    A.e(f"s_and_b32 s{s_fi}, s{s_fi}, 63")
    A.e(f"s_lshl_b32 s{s_fi}, s{s_fi}, 2")
    A.e(f"s_add_u32 s{s_fi}, s{s_fi}, s{s_w}")
    A.e(f"s_lshl_b32 s{s_fi}, s{s_fi}, 2")
    A.e(f"s_add_u32 s{s_fi}, s{s_fi}, {F_U}")
    A.e(f"s_cmp_lg_u32 s{s_w}, 0")
    A.e("s_cbranch_scc1 L_nz3")
    A.e("v_and_b32 v2, 4, v1")
    A.e("v_lshlrev_b32 v2, 10, v2")
    A.e("v_and_b32 v3, 3, v1")
    A.e("v_lshl_add_u32 v2, v3, 2, v2")
    A.e(f"buffer_store_dword v{vS}, v2, s[{sWS}:{sWS+3}], s{s_fi} offen{SC}")
    A.label("L_nz3")
    if 'noconv' in EXP: A.e("s_endpgm")
    kc4.kgen_all(A)
    if 'kgonly' in EXP:
        stamp(A, 7); stamp_flush(A); A.e("s_endpgm")
    if 'ramp' in EXP: A.e("s_endpgm")
    if 'kgst' in EXP:
        stamp(A, 7); stamp_flush(A); A.e("s_endpgm")
    convf.conv_all(A, ldflag=SC, stflag=SC)
    A.e(f"v_mov_b32 v{vS}, 1")
    A.e(f"s_add_u32 s{s_fi}, s{s_fi}, 4096")
    A.e("s_waitcnt vmcnt(0)")
    A.e(f"buffer_store_dword v{vS}, off, s[{sWS}:{sWS+3}], s{s_fi}{SC}")
    A.wait_all()
    stamp(A, 7)
    stamp_flush(A)
    A.label("L_end")
    A.e("s_endpgm")
    ut_sub(A, kc4.POOL[0])
    kc4.kchan_sub(A)
    big2.poll_sub(A)
    big2.sf_slow(A)
    kc4.tables(A)
    A.label("L_codeend")
    return A.text(), KD.format(name=K, vgpr=512, accum=256)

HDR = open("cdna_kernels/" + NAME + ".s.ref").read().split("; Override launch")[0]
if __name__ == "__main__":
    t, kd = fused()
    s = HDR + f"; @launch grid=(256,1,1) block=(256,1,1) lds={LDS_BYTES}\n" + '.amdgcn_target "amdgcn-amd-amdhsa--gfx950"\n.text\n' + t + '.section .rodata,"a"\n.p2align 6\n' + kd
    open(sys.argv[1], "w").write(s)
```

```python
from common import *
from p1f import Ring, setup_common, counter_arrive, ut_sub
vXD, vXR, vWD, vAR, vBI, vL16, vS, vXW, vXRd, vW2D, vA2, vYL = 2, 4, 8, 10, 13, 17, 31, 14, 15, 18, 24, 30
vXR2 = 180
s_hb2, s_hsB = 52, 76
ACC, TMP, BIAS, MT, HS = 32, 64, 96, 128, 144
ARING = [112, 116, 120, 124, 140]
EX = 6*SLOT
M_Y = MISC + 4096
M_BIAS = MISC
M_FL = MISC + 2048
s_sl, s_hs, s_rr, s_pb, s_need, s_lane, s_val, s_w2l, s_fp, s_yd = 66, 70, 79, 82, 83, 84, 85, 3, 74, 75
vFL, vFA, TMP2, vFC = vXD, vXD + 1, vXR, vXR + 2
vCN = vFC + 1
G0 = 18
NXR, NWS = 4, 11
XR0 = NWS*8192
XW = NXR*4096
AOFF = 36
PB0 = int(os.environ.get('PB0', 10))
PB1 = int(os.environ.get('PB1', 0))
XRN = int(os.environ.get('XRN', 2))
NA0 = int(os.environ.get('NA0', 3))
N0 = int(os.environ.get('N0', 3))
N2 = int(os.environ.get('N2', 6))
P0V = int(os.environ.get('P0V', 1))
FLUSH = int(os.environ.get('FLUSH', 0))
def xreg(rb, s):
    if rb == 0: return f"a[{4*s}:{4*s+3}]"
    if s < 8: return f"a[{224+4*s}:{227+4*s}]"
    if s < 28: return f"a[{144+4*(s-8)}:{147+4*(s-8)}]"
    return f"v[{224+4*(s-28)}:{227+4*(s-28)}]"
TMPB = 192
def raw(pi): return TMPB if pi % 2 else TMP
def hs(pi): return HS + 16*(pi - 1) if 1 <= pi <= 3 else raw(pi)

def rw_entries(A, lo, hi):
    for kl in range(lo, hi):
        A.e(f"s_mul_i32 s{s_rw+kl}, s{s_rho}, {64*9216}")
        if kl < 8:
            A.e(f"s_add_u32 s{s_rho}, s{s_rho}, 1")
            A.e(f"s_cmp_eq_u32 s{s_rho}, 9")
            A.e(f"s_cselect_b32 s{s_rho}, 0, s{s_rho}")
def prologue(A):
    T = MT
    if 'cpf0' in EXP:
        A.e(f"s_getpc_b64 s[{s_ret}:{s_ret+1}]")
        A.e("v_lshlrev_b32 v2, 7, v0")
        A.e("v_and_b32 v2, 0x1fff, v2")
        A.vmem(f"global_load_dword v{HS}, v2, s[{s_ret}:{s_ret+1}]", "cpf")
    for r, n in ((sX, "u"), (sW1, "w1"), (sT0, "b1"), (sWS, "ws"), (sW2, "w2"), (sDBG, "dbg"), (sT1, "out")):
        A.e(f"s_load_dwordx2 s[{r}:{r+1}], s[0:1], {KA[n]}")
    A.e("v_lshrrev_b32 v2, 6, v0")
    A.e("v_and_b32 v1, 63, v0")
    A.e("s_and_b32 s3, s2, 7")
    A.e(f"v_readfirstlane_b32 s{s_w}, v2")
    A.e(f"s_lshr_b32 s{s_kq}, s3, 1")
    A.e("s_and_b32 s3, s3, 1")
    A.e("s_lshl_b32 s3, s3, 3")
    A.e(f"s_lshr_b32 s{s_m7}, s2, 5")
    A.e(f"s_add_u32 s{s_m}, s{s_m7}, s3")
    A.e(f"s_mul_i32 s{s_rho}, s{s_r}, 3")
    A.e(f"s_add_u32 s{s_rho}, s{s_rho}, s{s_m7}")
    mod_small(A, s_rho, s_rho, 9)
    rw_entries(A, 0, 2)
    A.e(f"s_mul_i32 s{s_t2}, s{s_kq}, 2304")
    A.e(f"s_mul_i32 s{s_t1}, s{s_r}, 768")
    A.e(f"s_add_u32 s{s_t2}, s{s_t2}, s{s_t1}")
    A.e(f"s_lshl_b32 s{s_wl}, s{s_w}, 11")
    A.e(f"s_mul_i32 s{s_pc}, s{s_w}, {XW}")
    A.e(f"v_lshrrev_b32 v{T}, 3, v1")
    A.e(f"v_and_b32 v{T+1}, 7, v1")
    A.e(f"s_lshl_b32 s{s_t0}, s{s_m}, 7")
    A.e(f"s_lshl_b32 s{s_t1}, s{s_w}, 5")
    A.e(f"s_add_u32 s{s_t0}, s{s_t0}, s{s_t1}")
    A.e(f"v_add_u32 v{T+2}, s{s_t0}, v{T}")
    A.e(f"v_mul_u32_u24 v{T+2}, 1152, v{T+2}")
    A.e(f"v_lshrrev_b32 v{T+3}, 1, v{T}")
    A.e(f"v_xor_b32 v{T+3}, v{T+3}, v{T+1}")
    A.e(f"v_lshl_add_u32 v{vXD}, v{T+3}, 4, v{T+2}")
    A.e(f"v_xor_b32 v{vXD+1}, 64, v{vXD}")
    A.e(f"v_add_u32 v{vXD+1}, 8192, v{vXD+1}")
    A.e(f"s_lshl_b32 s{s_t0}, s{s_w}, 4")
    A.e(f"v_add_u32 v{T+2}, s{s_t0}, v{T}")
    A.e(f"v_mul_u32_u24 v{T+2}, 9216, v{T+2}")
    A.e(f"v_lshlrev_b32 v{T+3}, 1, v{T}")
    A.e(f"v_and_b32 v{T+3}, 4, v{T+3}")
    A.e(f"v_xor_b32 v{T+3}, v{T+3}, v{T+1}")
    A.e(f"v_lshl_add_u32 v{vWD}, v{T+3}, 4, v{T+2}")
    A.e(f"v_add_u32 v{vWD+1}, {8*9216 - 1024}, v{vWD}")
    A.e(f"v_lshlrev_b32 v{MT+2}, 1, v0")
    for r, n in ((sX, L_*D_*2), (sW1, 575*9216 + 256), (sT0, F_*2)):
        A.e(f"s_mov_b32 s{r+2}, {hex(n)}"); A.e(f"s_mov_b32 s{r+3}, 0x00020000")
    A.e("s_waitcnt lgkmcnt(0)")
    A.e(f"s_add_u32 s{sW1}, s{sW1}, s{s_t2}")
    A.e(f"s_addc_u32 s{sW1+1}, s{sW1+1}, 0")

def setupA(A):
    T = MT + 4
    A.e(f"s_mov_b32 s{s_log2e}, {fhex(LOG2E)}")
    A.e(f"v_and_b32 v{T}, 31, v1")
    A.e(f"v_lshrrev_b32 v{T+1}, 5, v1")
    A.e(f"v_lshrrev_b32 v{T+2}, 1, v{T}")
    A.e(f"v_and_b32 v{T+2}, 7, v{T+2}")
    A.e(f"v_xor_b32 v{T+2}, v{T+2}, v{T+1}")
    A.e(f"s_add_u32 s{s_t0}, s{s_pc}, {XR0}")
    A.e(f"s_bitcmp1_b32 s{s_w}, 0")
    A.e(f"s_cselect_b32 s{s_t1}, -1, 1")
    A.e(f"s_mul_i32 s{s_t1}, s{s_t1}, {XW}")
    A.e(f"v_lshlrev_b32 v{T+3}, 7, v{T}")
    A.e(f"v_add_u32 v{T+3}, s{s_t0}, v{T+3}")
    for ks in range(4):
        A.e(f"v_xor_b32 v{T+4}, {2*ks}, v{T+2}")
        A.e(f"v_lshl_add_u32 v{vXR+ks}, v{T+4}, 4, v{T+3}")
        A.e(f"v_add_u32 v{vXR2+ks}, s{s_t1}, v{vXR+ks}")
    A.e(f"s_and_b32 s{s_t1}, s{s_w}, 1")
    A.e(f"s_lshl_b32 s{s_t0}, s{s_t1}, 7")
    A.e(f"s_add_u32 s{s_t0}, s{s_t0}, {M_BIAS}")
    A.e(f"v_lshlrev_b32 v{vBI}, 4, v{T+1}")
    A.e(f"v_add_u32 v{vBI}, s{s_t0}, v{vBI}")
    A.e(f"v_lshrrev_b32 v{T}, 2, v1")
    A.e(f"v_and_b32 v{T}, 3, v{T}")
    A.e(f"v_lshl_add_u32 v{T+2}, v{T+1}, 3, v{T}")
    A.e(f"v_lshlrev_b32 v{T+2}, 7, v{T+2}")
    A.e(f"v_lshrrev_b32 v{T+3}, 1, v{T}")
    A.e(f"v_xor_b32 v{T+3}, s{s_t1}, v{T+3}")
    A.e(f"v_lshl_add_u32 v{T+2}, v{T+3}, 6, v{T+2}")
    A.e(f"v_lshrrev_b32 v{T+3}, 4, v1")
    A.e(f"v_and_b32 v{T+3}, 1, v{T+3}")
    A.e(f"v_lshl_add_u32 v{T+2}, v{T+3}, 5, v{T+2}")
    A.e(f"v_and_b32 v{T+4}, 3, v1")
    A.e(f"v_lshl_add_u32 v{vAR}, v{T+4}, 3, v{T+2}")
    for j in (1, 2): A.e(f"v_add_u32 v{vAR+j}, {j*2*SLOT}, v{vAR}")

def setupB(A):
    T = MT + 4
    for r, n in ((sWS, WS_BYTES), (sW2, D_*F_*2), (sDBG, 256), (sT1, L_*D_*2)):
        A.e(f"s_mov_b32 s{r+2}, {hex(n)}"); A.e(f"s_mov_b32 s{r+3}, 0x00020000")
    A.e(f"v_lshlrev_b32 v{vL16}, 4, v1")
    A.e(f"s_lshl_b32 s{s_t0}, s{s_m}, 2")
    A.e(f"s_add_u32 s{s_t0}, s{s_t0}, s{s_kq}")
    A.e(f"s_lshl_b32 s{s_hb}, s{s_t0}, 2")
    A.e(f"s_lshl_b32 s{s_fi}, s{s_t0}, 3")
    A.e(f"s_add_u32 s{s_fi}, s{s_fi}, s{s_r}")
    A.e(f"s_lshl_b32 s{s_fi}, s{s_fi}, 2")
    A.e(f"s_add_u32 s{s_fi}, s{s_fi}, s{s_w}")
    A.e(f"s_lshl_b32 s{s_fi}, s{s_fi}, 2")
    A.e(f"s_add_u32 s{s_fi}, s{s_fi}, {WS_F}")
    A.e(f"s_add_u32 s{s_hb}, s{s_hb}, s{s_w}")
    A.e(f"s_mul_i32 s{s_hb}, s{s_hb}, 73728")
    A.e(f"s_mul_i32 s{s_t0}, s{s_r}, 24576")
    A.e(f"s_add_u32 s{s_hb}, s{s_hb}, s{s_t0}")
    A.e(f"s_and_b32 s{s_t1}, s{s_w}, 1")
    A.e(f"v_lshrrev_b32 v{T+1}, 5, v1")
    A.e(f"v_lshrrev_b32 v{T}, 2, v1")
    A.e(f"v_and_b32 v{T}, 3, v{T}")
    A.e(f"v_lshrrev_b32 v{T+3}, 4, v1")
    A.e(f"v_and_b32 v{T+3}, 1, v{T+3}")
    A.e(f"v_and_b32 v{T+4}, 3, v1")
    A.e(f"v_lshl_add_u32 v{T+1}, v{T+1}, 2, v{T}")
    A.e(f"s_lshl_b32 s{s_t0}, s{s_t1}, 5")
    A.e(f"v_add_u32 v{T+1}, s{s_t0}, v{T+1}")
    A.e(f"v_mul_u32_u24 v{T+1}, 384, v{T+1}")
    A.e(f"v_lshl_add_u32 v{T+1}, v{T+3}, 5, v{T+1}")
    A.e(f"v_lshl_add_u32 v{T+1}, v{T+4}, 3, v{T+1}")
    A.e(f"v_lshrrev_b32 v{T}, 1, v{T}")
    A.e(f"v_lshlrev_b32 v{T}, 6, v{T}")
    A.e(f"v_add_u32 v{vA2}, v{T+1}, v{T}")
    A.e(f"v_sub_u32 v{vA2+1}, v{T+1}, v{T}")
    for j in (1, 2):
        A.e(f"v_add_u32 v{vA2+2*j}, {j*2*SLOT}, v{vA2}")
        A.e(f"v_add_u32 v{vA2+2*j+1}, {j*2*SLOT}, v{vA2+1}")
    A.e(f"s_mul_i32 s{s_w2l}, s{s_w}, 6144")
    A.e(f"s_lshl_b32 s{s_t0}, s{s_t1}, 11")
    A.e(f"s_add_u32 s{s_hb}, s{s_hb}, s{s_t0}")
    A.e(f"s_cmp_eq_u32 s{s_t1}, 1")
    A.e(f"s_cselect_b32 s{s_val}, -1, 1")
    A.e(f"s_mul_i32 s{s_val}, s{s_val}, 73728")
    A.e(f"s_add_u32 s{s_hb2}, s{s_hb}, s{s_val}")
    A.e(f"s_mul_i32 s{s_t0}, s{s_r}, 24576")
    A.e(f"s_sub_u32 s{s_t0}, s{s_hb}, s{s_t0}")
    A.e(f"s_mul_i32 s{s_t1}, s{s_kq}, {1152*1152}")
    A.e(f"s_mul_i32 s{s_t2}, s{s_r}, 384")
    A.e(f"s_add_u32 s{s_t1}, s{s_t1}, s{s_t2}")
    for idx in range(3):
        A.e(f"s_add_u32 s{s_t2}, s{s_r}, {idx}")
        mod_small(A, s_t2, s_t2, 3)
        if idx: A.e(f"s_mov_b32 s{s_rr+idx-1}, s{s_t2}")
        A.e(f"s_mul_i32 s{s_t3}, s{s_t2}, {384*1152}")
        A.e(f"s_add_u32 s{s_sl+idx}, s{s_t1}, s{s_t3}")
        A.e(f"s_mul_i32 s{s_t3}, s{s_t2}, 24576")
        A.e(f"s_add_u32 s{s_hs+idx}, s{s_t0}, s{s_t3}")
        A.e(f"s_add_u32 s{s_hsB+idx}, s{s_hs+idx}, s{s_val}")
    A.e(f"s_mul_i32 s{s_t0}, s{s_w}, {16*1152}")
    for i3 in range(3):
        A.e(f"v_add_u32 v{T}, {64*i3}, v1")
        A.e(f"v_mul_u32_u24 v{T+1}, 2731, v{T}")
        A.e(f"v_lshrrev_b32 v{T+1}, 16, v{T+1}")
        A.e(f"v_mul_u32_u24 v{T+2}, 24, v{T+1}")
        A.e(f"v_sub_u32 v{T+2}, v{T}, v{T+2}")
        A.e(f"v_lshlrev_b32 v{T+3}, 1, v{T+1}")
        A.e(f"v_and_b32 v{T+3}, 4, v{T+3}")
        A.e(f"v_xor_b32 v{T+2}, v{T+2}, v{T+3}")
        A.e(f"v_mul_u32_u24 v{T+1}, 1152, v{T+1}")
        A.e(f"v_lshl_add_u32 v{T+1}, v{T+2}, 4, v{T+1}")
        A.e(f"v_add_u32 v{T+1}, s{s_t0}, v{T+1}")
        for g in range(2):
            i = 3*g + i3
            A.e(f"v_add_u32 v{vW2D+i}, {hex((g*8*1152 - (i&3)*1024) & 0xffffffff)}, v{T+1}")
    A.e(f"s_mul_i32 s{s_fp}, s{s_m}, 3")
    A.e(f"s_add_u32 s{s_fp}, s{s_fp}, s{s_r}")
    A.e(f"s_lshl_b32 s{s_pb}, s{s_fp}, 2")
    A.e(f"s_add_u32 s{s_fp}, s{s_pb}, s{s_w}")
    A.e(f"s_lshl_b32 s{s_fp}, s{s_fp}, 5")
    A.e(f"s_add_u32 s{s_fp}, s{s_fp}, s{s_kq}")
    A.e(f"s_lshl_b32 s{s_fp}, s{s_fp}, 2")
    A.e(f"s_add_u32 s{s_fp}, s{s_fp}, {F_P}")


def soff(slot): return 7*8192 if slot == 'x' else slot*SLOT
def x_dma_ops(kl):
    m = Op(f"s_add_u32 m0, s{s_pc}, {XR0 + (kl % NXR)*4096}", kind="salu")
    s1 = Op(f"s_mul_hi_u32 s{s_so}, s{s_rw+kl}, {-(-(1 << 32)//4608)}", kind="salu")
    o = [m, s1]
    for i in range(4):
        if i == 2: o.append(Op(f"s_add_u32 s{s_so}, s{s_so}, 16384", kind="salu"))
        o.append(Op(f"buffer_load_dwordx4 v{vXD+(i&1)}, s[{sX}:{sX+3}], s{s_so} offen offset:{i*1024} lds", kind="vmem", tag=f"x{kl}", deps=[(m, 2)]))
    return o
def x_read(A, kl):
    for rb in range(2):
        for ks in range(4):
            A.ds(f"ds_read_b128 {xreg(rb, 4*kl+ks)}, v{(vXR2 if rb else vXR)+ks} offset:{(kl % NXR)*4096}", f"xr{kl}")
def w1_line_ops(st, j, slot):
    kl = 3*(st % 3) + j
    m = Op(f"s_add_u32 m0, s{s_wl}, {soff(slot) + j*8192}", kind="salu")
    return [m] + [Op(f"buffer_load_dwordx4 v{vWD+i}, s[{sW1}:{sW1+3}], s{s_rw+kl} offen offset:{i*1024} lds", kind="vmem", tag=(f"W{kl}" if st < 3 else f"st{st}"), deps=[(m, 2)]) for i in range(2)]
def w1_dma_ops(st, slot):
    o = []
    if st % 3 == 0: o.append(Op(f"s_add_u32 s{sW1}, s{sW1}, {256 if st == 6 else 128}\n    s_addc_u32 s{sW1+1}, s{sW1+1}, 0", kind="salu", cost=8))
    for j in range(3): o += w1_line_ops(st, j, slot)
    return o
FIRST = ("x0", "W0", "x1", "W1", "x2", "W2", "x3", "W3", "x4", "W4")
def first_ops(k):
    n = int(k[1])
    return x_dma_ops(n) if k[0] == "x" else w1_line_ops(n // 3, n % 3, n // 3)

def mish_ops(pi, done_pos, prev=None):
    TMP = raw(pi)
    ops = []; G = []; C = []
    for grp in range(16):
        rb = grp // 8
        es = [2*grp, 2*grp + 1]
        tb = MT + (grp % 3)*4
        m = [Op(f"v_mul_f32 v{tb+2*i}, s{s_log2e}, v{TMP+e}", deps=[(done_pos[rb], 13)]) for i, e in enumerate(es)]
        x = [Op(f"v_exp_f32 v{tb+2*i}, v{tb+2*i}", cost=8, trans=True, deps=[(m[i], 1)]) for i in range(2)]
        p = [Op(f"v_fma_f32 v{tb+2*i+1}, v{tb+2*i}, -0.5, -1.0", deps=[(x[i], 2)]) for i in range(2)]
        d = [Op(f"v_fma_f32 v{tb+2*i+1}, v{tb+2*i}, v{tb+2*i+1}, -1.0", deps=[(p[i], 1)]) for i in range(2)]
        r = [Op(f"v_rcp_f32 v{tb+2*i+1}, v{tb+2*i+1}", cost=8, trans=True, deps=[(d[i], 1)]) for i in range(2)]
        y = [Op(f"v_fmac_f32 v{TMP+e}, v{TMP+e}, v{tb+2*i+1}", deps=[(r[i], 2)]) for i, e in enumerate(es)]
        c = Op(f"v_cvt_pk_bf16_f32 v{hs(pi)+grp}, v{TMP+es[0]}, v{TMP+es[1]}", deps=[(y[0], 1), (y[1], 1)])
        Gp = G[grp-3] if grp >= 3 else (prev[13 + (grp + 2) % 3] if prev else None)
        if Gp:
            for i in range(2):
                m[i].deps.append((Gp[0][i], 1)); p[i].deps.append((Gp[1][i], 1))
        if C: c.deps.append((C[-1], 1))
        G.append((d, y)); C.append(c)
        ops += m + x + p + d + r + y + [c]
    st = []
    for q in range(4):
        st.append(Op(f"buffer_store_dwordx4 v[{hs(pi)+4*q}:{hs(pi)+4*q+3}], v{vL16}, s[{sWS}:{sWS+3}], s{s_hb2 if q >= 2 else s_hb} offen offset:{(q&1)*1024}{SC}",
                     kind="vmem", tag=f"h{pi}", deps=[(c, 1) for c in C[4*q:4*q+4]]))
    mish_ops.G = G
    st.append(Op(f"s_add_u32 s{s_hb}, s{s_hb}, 4096\n    s_add_u32 s{s_hb2}, s{s_hb2}, 4096", kind="salu", cost=8))
    return ops, st
def reread_ops(pi, n):
    if 'rr' not in EXP: return []
    v = f"v_lshlrev_b32 v{TMP2}, 7, v1" if n == 2 else f"v_lshlrev_b32 v{TMP2}, 5, v{vFL}"
    return [Op(f"{v}\n    s_add_u32 s{s_t1}, s{s_hs}, {pi*4096}\n    buffer_load_dword v{TMP2+1}, v{TMP2}, s[{sWS}:{sWS+3}], s{s_t1} offen{SC}", kind="vmem", tag="rr", cost=12)]
def flag_ops(ev):
    return [Op(f"v_mov_b32 v{vS}, {ev+1}\n    s_add_u32 s{s_t1}, s{s_fi}, {ev*8192}\n    buffer_store_dword v{vS}, off, s[{sWS}:{sWS+3}], s{s_t1}{SC}", kind="vmem", tag="flag", cost=12)]
def bias_read(A, pi, BIAS=BIAS):
    for g in range(4):
        A.ds(f"ds_read_b128 v[{BIAS+4*g}:{BIAS+4*g+3}], v{vBI} offset:{256*pi + 32*g}", f"bias{pi}")
def a_reads(A, gs, ring):
    st, ks = gs // 12, gs % 12
    slot = ring.slot[st]; buf = ARING[(gs - AOFF) % 5]
    for rd in range(2):
        A.ds(f"ds_read_b64_tr_b16 v[{buf+2*rd}:{buf+2*rd+1}], v{vAR+soff(slot)//(2*SLOT)} offset:{soff(slot) % (2*SLOT) + (16*ks+4*rd)*128}", f"a{gs}")

def pump(q, bud, maxv):
    u = nv = 0
    while q.q and q.ready(q.q[0]):
        o = q.q[0]
        if o.kind == "vmem":
            if nv >= maxv: break
            nv += 1
        if u and u + o.cost > bud: break
        if u == 0 and bud <= 0: break
        q.q.pop(0); q.emit(o); u += o.cost
    return u

ACCB, BIASB = TMPB, HS
BRING = [HS + 16 + 4*i for i in range(5)]
def wimg_ops(n):
    kl, b = n // 2, n % 2
    m = Op(f"s_add_u32 m0, s{s_wl}, {(n % NWS)*8192}" + (f"\n    s_add_u32 s{s_so}, s{s_rw+kl}, 128" if b else ""), kind="salu")
    return [m] + [Op(f"buffer_load_dwordx4 v{vWD+i}, s[{sW1}:{sW1+3}], s{s_so if b else s_rw+kl} offen offset:{i*1024} lds", kind="vmem", tag=f"W{kl}", deps=[(m, 2)]) for i in range(2)]
def a0_reads(A, gs):
    kl, ks = gs // 4, gs % 4
    for b in range(2):
        o = ((2*kl + b) % NWS)*8192 + 16*ks*128
        base = vAR if o < 49152 else vAR + 1
        if o >= 49152: o -= 49152
        buf = (ARING if b == 0 else BRING)[gs % 5]
        for rd in range(2):
            A.ds(f"ds_read_b64_tr_b16 v[{buf+2*rd}:{buf+2*rd+1}], v{base} offset:{o + 512*rd}", f"a{gs}")
def flush_tags(A, memq, tg):
    while any(o.tag in tg for o in memq.q):
        o = memq.q.pop(0)
        while not memq.ready(o): A.e("s_nop 0")
        memq.emit(o)

def phase0(A):
    ring = Ring(); ring.slot = {}; ring.next = 6
    emit_now(A, x_dma_ops(0)); emit_now(A, wimg_ops(0)); emit_now(A, wimg_ops(1))
    A.vmem(f"buffer_load_ushort v{MT}, v{MT+2}, s[{sT0}:{sT0+3}], s{s_t2} offen", "b1")
    A.vmem(f"buffer_load_ushort v{MT+1}, v{MT+2}, s[{sT0}:{sT0+3}], s{s_t2} offen offset:512", "b1")
    rest = []
    for kl in range(1, 6):
        if kl < NXR: rest.append(x_dma_ops(kl))
        rest.append(wimg_ops(2*kl))
        if kl < 5: rest.append(wimg_ops(2*kl + 1))
    for g in rest[:NA0]: emit_now(A, g)
    rw_entries(A, 2, 9)
    setupA(A)
    for g in rest[NA0:N0]: emit_now(A, g)
    A.wait_vm("b1")
    A.e(f"v_lshlrev_b32 v{MT}, 16, v{MT}")
    A.e(f"v_lshlrev_b32 v{MT+1}, 16, v{MT+1}")
    A.e(f"v_lshlrev_b32 v{MT+2}, 2, v0")
    A.e(f"v_add_u32 v{MT+2}, {M_BIAS}, v{MT+2}")
    A.ds(f"ds_write_b32 v{MT+2}, v{MT}", "bw")
    A.ds(f"ds_write_b32 v{MT+2}, v{MT+1} offset:1024", "bw")
    A.wait_lg("bw")
    A.e("s_barrier")
    stamp(A, 2)
    memq = Filler(A)
    for g in rest[N0:]: memq.add(g)
    class Cap:
        def __init__(s): s.l = []
        def e(s, t): s.l.append(t)
    cap = Cap(); setupB(cap)
    late = cap.l
    bias_read(A, 0); bias_read(A, 1, BIASB); a0_reads(A, 0); x_read(A, 0)
    for gs in range(1, 4): a0_reads(A, gs)
    xrd = {0: [1], 4: [2], 8: [3], 12: [4], 16: [5], 20: [6], 24: [7, 8]}
    done = {}
    xq = []
    for gs in range(36):
        if gs % 4 == 2 and gs < 24: assert not xq
        if gs == 27: assert not xq
        order = [(0, 0), (0, 1), (1, 0), (1, 1)]
        for q, (b, rb) in enumerate(order):
            if gs == 0 and q == 0: A.wait_lg(["bias1", "a0", "xr0"])
            acc = (ACC if b == 0 else ACCB) + 16*rb
            cin = (BIAS if b == 0 else BIASB) if gs == 0 else acc
            dst = TMP + 16*rb if (gs == 35 and b == 0) else acc
            buf = (ARING if b == 0 else BRING)[gs % 5]
            A.e(f"v_mfma_f32_32x32x16_bf16 v[{dst}:{dst+15}], v[{buf}:{buf+3}], {xreg(rb, gs)}, v[{cin}:{cin+15}]")
            if gs == 35: done[(b, rb)] = A.n - 1
            if q == 0:
                if gs % 4 == 0:
                    j = gs // 4
                    tg = ([f"W{j+1}"] if j < 8 else ["st6"]) + [f"x{k}" for k in xrd.get(gs, [])]
                    flush_tags(A, memq, tg)
                    A.wait_vm(tg)
                    if gs == 28: A.wait_lg("xr8")
                    A.e("s_barrier")
                    if 'p0st' in EXP and gs in (4, 12, 20, 28): stamp(A, 4 + (gs - 4)//8)
                    if j + NXR <= 8 and 'nox' not in EXP: memq.add(x_dma_ops(j + NXR))
                    for n in (2*j + NWS - 2, 2*j + NWS - 1):
                        if NWS <= n <= 17 and 'nowi' not in EXP: memq.add(wimg_ops(n))
                    if gs == 24: ring.free += ['x']
                    if gs == 28: ring.free += [4, 5]
                    if gs == 32: ring.free += [0]
                    for k in ring.alloc(G0 + 18):
                        if 'nos6' not in EXP: memq.add(w1_dma_ops(k, ring.slot[k]))
                if gs % 2 == 0:
                    A.wait_lg([f"a{gs+1}", f"a{gs+2}", f"xr{(gs+1)//4}", f"xr{(gs+2)//4}"] if gs < 34 else ["a35", "a72"])
                if gs + 4 < 36: a0_reads(A, gs + 4)
                else: a_reads(A, 72 + gs - 32, ring)
            if q == 1:
                for k in ([] if 'noxr' in EXP else xrd.get(gs, [])):
                    cp = Cap(); cp.ds = lambda t, tag: xq.append((t, tag)); x_read(cp, k)
            if q >= 1:
                for _ in range(XRN if len(xq) <= 8 else XRN + 1):
                    if xq: A.ds(*xq.pop(0))
            if q == 1:
                if gs == 22: bias_read(A, 2)
            nv = sum(o.kind == "vmem" for o in memq.q)
            if q in (1, 3) or (q == 2 and nv > PB0): pump(memq, 40, 1)
            if q == 3 and gs >= 2:
                n = 0
                while late and (n < 4 or late[0].startswith(("s_cselect", "s_addc"))):
                    A.e(late.pop(0)); n += 1
    assert not late
    return ring, memq, done

def p1(A):
    ring, memq, done = phase0(A)
    return p1_loop(A, 72, ring, memq, Filler(A), Filler(A), done, {}, {})
def p1_loop(A, gs0, ring, memq, valq, stq, done, xsched, xdma):
    nsteps = 216
    for gs in range(gs0, nsteps):
        pair, s = gs // 36, gs % 36
        st, ks = gs // 12, gs % 12
        if gs == 72 and not (EXP & {'p1st', 'p2st'}): stamp(A, 3)
        if 'p1st' in EXP and gs % 36 == 0 and gs: stamp(A, 1 + gs//36)
        if s == 0 and pair > 0:
            pp = pair - 2
            if pair == 3: valq.add(pre_p2_ops())
            ops, sts = mish_ops(pp, [lambda p=pp: done.get((p, 0)), lambda p=pp: done.get((p, 1))])
            valq.add(ops); stq.add(sts)
        if gs == 150: memq.add([Op(f"buffer_load_dword v{vCN}, off, s[{sDBG}:{sDBG+3}], 0{SC}", kind="vmem", tag="cnt")])
        for rb in range(2):
            if s == 0 and rb == 0: A.wait_lg([f"bias{pair}", f"a{gs}", "xr0"])
            acc = ACC + 16*rb
            cin = BIAS if s == 0 else acc
            dst = (raw(pair) + 16*rb) if s == 35 else acc
            if s == 35: assert not valq.q and not any(o.kind == 'vmem' for o in stq.q)
            buf = ARING[(gs - AOFF) % 5]
            A.e(f"v_mfma_f32_32x32x16_bf16 v[{dst}:{dst+15}], v[{buf}:{buf+3}], {xreg(rb, s)}, v[{cin}:{cin+15}]")
            if s == 35: done[(pair, rb)] = A.n - 1
            n0 = A.n
            if rb == 0:
                bar = False
                if gs in xdma:
                    for k in xdma[gs]: memq.add(first_ops(k))
                if gs in xsched:
                    xs, ws = xsched[gs]
                    tg = [f"x{k}" for k in xs] + [f"W{k}" for k in ws]
                    while any(o.tag in tg for o in memq.q):
                        o = memq.q.pop(0)
                        while not memq.ready(o): A.e("s_nop 0")
                        memq.emit(o)
                    A.wait_vm(tg)
                    if gs == 28: A.wait_lg("xr8")
                    A.e("s_barrier"); bar = True
                elif ks == 8:
                    tags = [f"st{st+1}"]
                    if gs == 200: tags += ["cnt", "h2"]
                    if gs == 80: ring.free += [1]
                    if gs == 92: ring.freed.add(6); ring.free += [2, 3]
                    A.wait_vm(tags)
                    A.e("s_barrier"); bar = True
                    if gs == 200:
                        check_counter(A); stq.q = flag_ops(0) + stq.q
                if bar:
                    for k in range(st + 1):
                        if 12*k + 11 < gs: ring.release(k)
                    if gs == 28: ring.free += [3, 4, 5]
                    for k in ring.alloc(G0 + 18): memq.add(w1_dma_ops(k, ring.slot[k]) if k < 18 else w2_dma_ops(k, ring.slot[k]))
                if gs % 2 == 0:
                    A.wait_lg([f"a{gs+1}", f"a{gs+2}"] + ([f"xr{(gs+1)//4}", f"xr{(gs+2)//4}"] if pair == 0 else []))
                if gs + 4 < nsteps: a_reads(A, gs + 4, ring)
                else:
                    a2_read(A, gs - 212, ring)
                    if gs == 215: a2_read(A, 4, ring)
                if gs in xsched:
                    for k in xsched[gs][0]: x_read(A, k)
                if s == 23 and pair + 1 < 6: bias_read(A, pair + 1)
                bud = 24 - 4*(A.n - n0)
                if pair == 0: u = pump(memq, 40, 1)
                else:
                    nv = sum(o.kind == "vmem" for o in memq.q)
                    left = (7 - ks) % 12
                    u = pump(memq, bud, 1 if (gs % 2 == 1 or nv > left//2 + BK1) else 0) if bud > 0 else 0
                valq.fill(max(0, bud - u), allow_trans=False, window=30)
            else:
                if pair == 0: u = pump(memq, 40, 1)
                else:
                    u = pump(stq, 12, 1) if (gs % 2 == 0 or s >= 33) else 0
                    if u == 0 and sum(o.kind == "vmem" for o in memq.q) > BK2: u = pump(memq, 8, 1)
                rem = 32 - s
                bud = 24 - u
                while valq.total() - bud > max(rem, 0)*PCAP and bud < 40: bud += 4
                fill_odd(valq, bud, window=30)
                if s == 33: valq.drain()
                if s == 34: stq.drain(); A.nop(2)
    for pp in (4, 5):
        ops, sts = mish_ops(pp, [lambda p=pp: done.get((p, 0)), lambda p=pp: done.get((p, 1))], prev=(mish_ops.G if pp == 5 else None))
        valq.add(ops); stq.add(sts)
    return ring, memq, valq, stq
HSITES = eval(os.environ.get('HSITES', '(10, 16, 24, 30)'))
BK1 = int(os.environ.get('BK1', 2))
BK2 = int(os.environ.get('BK2', 9))
SD1 = int(os.environ.get('SD1', 5))
SD2 = int(os.environ.get('SD2', 7))
PCAP = int(os.environ.get('PCAP', 32))

SEQ = [(0, 1), (0, 2), (0, 3), (0, 0), (0, 4), (1, 0), (0, 5), (1, 1), (1, 2), (2, 0), (2, 1), (2, 2), (1, 3), (2, 3), (1, 4), (2, 4), (1, 5), (2, 5)]
IMP = [k for k, (i, p) in enumerate(SEQ) if not (i == 0 and p > 0)]
aIM, aR = 96, 224
LF = 5
def acc2(t): return [32, 48, 96, 112, 224, 240][t]
def hreg(k, q):
    if k in IMP:
        b = aIM + 16*(IMP.index(k) % 8) + 4*q
        return f"a[{b}:{b+3}]"
    b = hs(SEQ[k][1]) + 4*q
    return f"v[{b}:{b+3}]"
def w2_dma_ops(gst, slot):
    idx, pi = SEQ[gst - G0]
    tag = f"st{gst}"
    m0a = Op(f"s_add_u32 m0, s{s_w2l}, {slot*SLOT}", kind="salu")
    so = Op(f"s_add_u32 s{s_so}, s{s_sl+idx}, {pi*64*1152}", kind="salu")
    o = [m0a, so]
    for i in range(4):
        o.append(Op(f"buffer_load_dwordx4 v{vW2D+i}, s[{sW2}:{sW2+3}], s{s_so} offen offset:{i*1024} lds", kind="vmem", tag=tag, deps=[(m0a, 2)]))
    m0b = Op(f"s_add_u32 m0, s{s_w2l}, {slot*SLOT + 4096}", kind="salu")
    o.append(m0b)
    for i in range(4, 6):
        o.append(Op(f"buffer_load_dwordx4 v{vW2D+i}, s[{sW2}:{sW2+3}], s{s_so} offen offset:{(i&3)*1024} lds", kind="vmem", tag=tag, deps=[(m0b, 2)]))
    return o
def h_load_ops(k):
    idx, pi = SEQ[k]
    o = []
    for rb in range(2):
        o.append(Op(f"s_add_u32 s{s_t2}, s{(s_hsB if rb else s_hs)+idx}, {pi*4096}", kind="salu"))
        o += [Op(f"buffer_load_dwordx4 {hreg(k, 2*rb+q)}, v{vL16}, s[{sWS}:{sWS+3}], s{s_t2} offen offset:{q*1024}{SC}", kind="vmem", tag=f"st{G0+k}") for q in range(2)]
    return o
def flagcopy_ops(ev):
    return [Op(f"s_lshl_b32 s{s_val}, s{s_w}, 8\n    s_add_u32 m0, s{s_val}, {M_FL}\n    s_and_b32 s{s_val}, s{s_fi}, 0xffffff80\n    s_add_u32 s{s_val}, s{s_val}, {ev*8192}\n"
               f"    buffer_load_dword v{vFL}, s[{sWS}:{sWS+3}], s{s_val} offen sc1 lds", kind="vmem", tag="fc", cost=20)]
def pre_p2_ops():
    o = [Op(f"v_and_b32 v{vFL}, 31, v1\n    v_lshlrev_b32 v{vFL}, 2, v{vFL}", cost=8),
         Op(f"v_and_b32 v{vFA}, 3, v1\n    v_lshlrev_b32 v{vFA}, 4, v{vFA}\n    s_mul_i32 s{s_val}, s{s_w}, 260\n    s_add_u32 s{s_val}, s{s_val}, {M_FL}\n    v_add_u32 v{vFA}, s{s_val}, v{vFA}", cost=20),
         Op(f"v_mov_b32 v{vFC}, 0\n    s_lshl_b32 s{s_val}, s{s_w}, 8\n    s_add_u32 s{s_val}, s{s_val}, {M_FL}\n    v_lshl_add_u32 v{vFC+1}, v1, 2, s{s_val}\n    ds_write_b32 v{vFC+1}, v{vFC}", cost=20, kind="ds", tag="fz")]
    return o
def check(A, lane_sgpr, ev):
    lab = A.newlabel("L_chk")
    A.e(f"v_readlane_b32 s{s_val}, v{vFC}, s{lane_sgpr}")
    A.e(f"s_movk_i32 s{s_need}, {ev*8192}")
    A.e(f"s_mov_b32 s{s_lane}, s{lane_sgpr}")
    A.e(f"s_cmp_eq_u32 s{s_val}, {ev+1}")
    A.e(f"s_cbranch_scc1 {lab}")
    A.e(f"s_call_b64 s[{s_ret}:{s_ret+1}], L_poll")
    A.label(lab)
def check_counter(A):
    lab = A.newlabel("L_chk")
    A.e(f"v_readfirstlane_b32 s{s_val}, v{vCN}")
    A.e("s_nop 0")
    A.e(f"s_cmp_ge_u32 s{s_val}, 64")
    A.e(f"s_cbranch_scc1 {lab}")
    A.e(f"s_call_b64 s[{s_ret}:{s_ret+1}], L_pollc")
    A.label(lab)
def poll_sub(A):
    A.label("L_poll")
    A.e(f"s_mov_b32 s{s_t0}, 0x20000")
    A.e(f"v_and_b32 v{TMP2}, 3, v1")
    A.e(f"v_lshlrev_b32 v{TMP2}, 4, v{TMP2}")
    A.label("L_poll_loop")
    A.e("s_sleep 2")
    A.e(f"s_and_b32 s{s_val}, s{s_fi}, 0xffffffcf")
    A.e(f"s_add_u32 s{s_val}, s{s_val}, s{s_need}")
    A.e(f"buffer_load_dword v{TMP2+1}, v{TMP2}, s[{sWS}:{sWS+3}], s{s_val} offen{SC}")
    A.e("s_waitcnt vmcnt(0)")
    A.e(f"v_readlane_b32 s{s_val}, v{TMP2+1}, s{s_lane}")
    A.e(f"s_sub_u32 s{s_t0}, s{s_t0}, 1")
    A.e("s_cbranch_scc1 L_poll_out")
    A.e(f"s_cmp_eq_u32 s{s_val}, 0")
    A.e("s_cbranch_scc1 L_poll_loop")
    A.label("L_poll_out")
    A.e(f"s_setpc_b64 s[{s_ret}:{s_ret+1}]")
    A.label("L_pollc")
    A.e(f"s_mov_b32 s{s_t0}, 0x20000")
    A.label("L_pollc_loop")
    A.e("s_sleep 2")
    A.e(f"buffer_load_dword v{TMP2+1}, off, s[{sDBG}:{sDBG+3}], 0{SC}")
    A.e("s_waitcnt vmcnt(0)")
    A.e(f"v_readfirstlane_b32 s{s_val}, v{TMP2+1}")
    A.e(f"s_sub_u32 s{s_t0}, s{s_t0}, 1")
    A.e("s_cbranch_scc1 L_pollc_out")
    A.e(f"s_cmp_lt_u32 s{s_val}, 64")
    A.e("s_cbranch_scc1 L_pollc_loop")
    A.label("L_pollc_out")
    A.e(f"s_setpc_b64 s[{s_ret}:{s_ret+1}]")
NTS = int(os.environ.get('NTS', 4))
PER = 4*NTS
TM0 = 432 - 24*NTS
def fmap(F):
    if F < TM0//2: return F // 12, (F % 12) // 6, F % 6
    x = F - TM0//2
    return 18 - NTS + (x % (2*NTS))//2, x % 2, x // (2*NTS)
def a2_read(A, F, ring):
    k, sp, t = fmap(F)
    slot = ring.slot[G0 + k]; buf = aR + 4*(F % 8)
    for rd in range(2):
        A.ds(f"ds_read_b64_tr_b16 a[{buf+2*rd}:{buf+2*rd+1}], v{vA2+2*(slot//2)+(t&1)} offset:{(slot%2)*SLOT + (16*sp+8*rd)*384 + t*64}", f"f{F}")
RT = TMP + 16
PKR = [HS + 4*i for i in range(12)]
vOW = TMP + 12
RT5 = TMPB + 16
def export_ops(t):
    RT = RT5 if t == 5 else TMP + 16
    ops = []
    for kk in range(2):
        p = 2*t + kk
        a = acc2(t) + 8*kk; Q = PKR[p]
        ad = [Op(f"v_add_f32 v{a+e}, v{a+e}, v{RT+8*kk+e}") for e in range(8)]
        ops += ad
        c = [Op(f"v_cvt_pk_bf16_f32 v{Q+d}, v{a+2*d}, v{a+2*d+1}", deps=[(ad[2*d], 1), (ad[2*d+1], 1)]) for d in range(4)]
        sw = Op(f"v_permlane32_swap_b32 v{Q}, v{Q+2}\n    v_permlane32_swap_b32 v{Q+1}, v{Q+3}", cost=8, deps=[(x, 3) for x in c])
        st = Op(f"s_cmp_eq_u32 s{s_w}, s{s_kq}\n    s_cbranch_scc1 L_xo{p}\n    buffer_store_dwordx4 v[{Q}:{Q+3}], v{vL16}, s[{sWS}:{sWS+3}], s{s_sl + p//4} offen offset:{(p%4)*1024}{SC}\n"
                f"    s_branch L_xe{p}\nL_xo{p}:\n    ds_write_b128 v{vOW}, v[{Q}:{Q+3}] offset:{p*1024}\nL_xe{p}:", cost=16, deps=[(sw, 1)])
        ops += c + [sw] + ([] if 'noxs' in EXP else [st])
    return ops

vYA, vYF, vYD, vGT, vRow = TMP, TMP + 4, TMP + 1, TMP + 8, TMP + 10
def y_prep_ops():
    t = [f"s_mul_i32 s{s_val}, s{s_r}, 21", f"v_add_u32 v{vYA}, s{s_val}, v1", f"s_lshr_b32 s{s_val}, s{s_fi}, 7", f"s_and_b32 s{s_val}, s{s_val}, 63",
         f"v_mov_b32 v{vYD}, s{s_val}", "v_cmp_lt_u32 vcc, 21, v1", f"s_lshl_b32 s{s_upos}, s{s_val}, 5", f"s_mov_b32 s{s_yd}, 0",
         f"v_cndmask_b32 v{vYA}, v{vYA}, v{vYD}, vcc", f"v_lshlrev_b32 v{vYA}, 4, v{vYA}"]
    a = Op("\n    ".join(t), cost=40)
    t = [f"v_lshrrev_b32 v{vYD}, 2, v1", f"v_lshlrev_b32 v{vYD}, 12, v{vYD}", f"v_and_b32 v{vRow}, 3, v1", f"v_lshl_add_u32 v{vYD}, v{vRow}, 4, v{vYD}",
         f"v_and_b32 v{vRow}, 31, v1", f"v_lshlrev_b32 v{vRow+1}, 2, v{vRow}", f"s_mul_i32 s{s_line}, s{s_r}, 192", f"s_mul_i32 s{s_val}, s{s_w}, 48", f"s_add_u32 s{s_line}, s{s_line}, s{s_val}"]
    b = Op("\n    ".join(t), cost=36)
    t = [f"v_mov_b32 v{vYF+k}, 0" for k in range(4)] + [f"s_lshl_b32 s{s_val}, s{s_w}, 10", f"s_add_u32 s{s_val}, s{s_val}, {M_Y}", f"v_add_u32 v{vYL}, s{s_val}, v{vL16}", f"ds_write_b128 v{vYL}, v[{vYF}:{vYF+3}]"]
    c = Op("\n    ".join(t), cost=36, kind="ds", tag="yz")
    return [a, b, c]
def exp_prep_op(OWN, YT):
    t = [f"s_add_u32 s{s_val}, s{s_pb}, s{s_w}", f"s_lshl_b32 s{s_val}, s{s_val}, 2", f"s_add_u32 s{s_val}, s{s_val}, s{s_kq}", f"s_mul_i32 s{s_val}, s{s_val}, 12288",
         f"s_add_u32 s{s_sl}, s{s_val}, {WS_P}", f"s_add_u32 s{s_sl+1}, s{s_sl}, 4096", f"s_add_u32 s{s_sl+2}, s{s_sl}, 8192", f"v_add_u32 v{vOW}, {OWN}, v{vL16}"]
    for k, xr in enumerate((0, 1)):
        t += [f"s_xor_b32 s{s_need}, s{s_w}, {xr}", f"s_lshl_b32 s{s_val}, s{s_need}, 12"]
        for b, base in enumerate((YT, OWN)):
            t += [f"s_add_u32 s{s_lane}, s{s_val}, {base + 12288}", f"s_cmp_eq_u32 s{s_need}, 3", f"s_cselect_b32 s{s_lane}, {EX + 4096*b}, s{s_lane}",
                  f"v_add_u32 v{vPS+2*k+b}, s{s_lane}, v{vL16}"]
    t += [f"s_lshl_b32 s{s_val}, s{s_w}, 2", f"s_add_u32 s{s_val}, s{s_val}, {SFL}", f"v_mov_b32 v{vSF}, s{s_val}", f"v_xor_b32 v{vSF+1}, 4, v{vSF}",
          f"v_mov_b32 v{vS}, 0", f"ds_write_b32 v{vSF}, v{vS}"]
    return Op("\n    ".join(t), cost=120, kind="ds", tag="sfz")
vPS = MT
def y_loads(A, YT):
    A.e(f"s_lshl_b32 s{s_t1}, s{s_line}, 12")
    A.e(f"s_lshl_b32 s{s_t0}, s{s_upos}, 1")
    A.e(f"s_add_u32 s{s_t1}, s{s_t1}, s{s_t0}")
    A.e(f"s_add_u32 s{s_t1}, s{s_t1}, {WS_Y}")
    A.e(f"s_mul_i32 s{s_val}, s{s_w}, 3072")
    for i in range(3):
        A.e(f"s_add_u32 m0, s{s_val}, {YT + 1024*i}")
        if i: A.e(f"s_add_u32 s{s_t1}, s{s_t1}, 65536")
        else: A.e(f"s_lshl_b32 s{s_t0}, s{s_upos}, 2")
        A.e(f"buffer_load_dwordx4 v{vYD}, s[{sWS}:{sWS+3}], s{s_t1} offen sc1 lds")
    A.e(f"s_add_u32 s{s_t0}, s{s_t0}, {WS_GT}")
    A.e(f"buffer_load_dword v{vGT}, v{vRow+1}, s[{sWS}:{sWS+3}], s{s_t0} offen{SC}")
def y_test(A):
    A.e(f"v_and_b32 v{vYF}, v{vYF}, v{vYF+1}")
    A.e(f"v_and_b32 v{vYF+2}, v{vYF+2}, v{vYF+3}")
    A.e(f"v_and_b32 v{vYF}, v{vYF}, v{vYF+2}")
    A.e(f"v_cmp_ne_u32 vcc, 1, v{vYF}")

def SL(ring, i):
    return ring.slot[G0 + 12 + i]*SLOT
PSB = 'psbar' in EXP
vSF = MT + 4
SFL = M_FL + 1024
def sf_set(A, t):
    A.wait_lg(f"ps{t}")
    A.e(f"v_mov_b32 v{vS}, {t+1}")
    A.ds(f"ds_write_b32 v{vSF}, v{vS}", "sfw")
def sf_check(A, t):
    l1, l2 = A.newlabel("L_sf"), A.newlabel("L_sfs")
    A.wait_lg("sfr")
    A.e(f"v_cmp_gt_u32 vcc, {t+1}, v{vSF+2}")
    A.e(f"s_cbranch_vccnz {l2}")
    A.label(l1)
    A.slow.append((l2, l1, t + 1))
def sf_slow(A):
    for l2, l1, n in A.slow:
        A.label(l2)
        A.e(f"ds_read_b32 v{vSF+2}, v{vSF+1}")
        A.e("s_waitcnt lgkmcnt(0)")
        A.e(f"v_cmp_gt_u32 vcc, {n}, v{vSF+2}")
        A.e(f"s_cbranch_vccnz {l2}")
        A.e(f"s_branch {l1}")
def ps_send(A, t, qs=range(4)):
    for q in ([] if 'nops' in EXP else qs): A.ds(f"ds_write_b128 v{vPS + t % 2}, a[{16*t+4*q}:{16*t+4*q+3}] offset:{1024*q}", f"ps{t}")
def ps_recv(A, t, qs=range(4)):
    for q in ([] if 'nops' in EXP else qs): A.ds(f"ds_read_b128 v[{RT+4*q}:{RT+4*q+3}], v{vPS + 2 + t % 2} offset:{1024*q}", f"pr{t}")
def p2(A, ring, memq, valq, stq):
    N = 432
    BJ = lambda k: 24*k + 14
    hl = {1: [3], BJ(2): [5, 7], BJ(3): [8], BJ(4): [9], BJ(5): [10], BJ(6): [11], BJ(8): [12, 13], BJ(9): [14], BJ(10): [15], BJ(11): [16, 17]}
    checks = {BJ(2): 0, BJ(8): 1, BJ(11): 2}
    flags = {BJ(4): ("h4", 1), BJ(7): ("h5", 2)}
    tdone = {}; A.slow = []
    A.wait_lg(["f0"])
    for j in range(N):
        if 'p0st' in EXP: pass
        elif 'p2st' in EXP:
            if j % 72 == 0: stamp(A, 1 + j//72)
        else:
            if j == 0: stamp(A, 7 if 'p1st' in EXP else 4)
            if j == 120 and 'p1st' not in EXP: stamp(A, 5)
        F, rb = j // 2, j % 2
        LT = N - PER
        if j >= LT: F, rb = LT//2 + (j - LT) % (PER//2), 1 - (j - LT)//(PER//2)
        k, sp, t = fmap(F)
        buf = aR + 4*(F % 8)
        acc = f"a[{16*t}:{16*t+15}]" if rb else f"v[{acc2(t)}:{acc2(t)+15}]"
        if j == 96: assert not any(f"v{TMP+31}" in o.txt for o in valq.q), "mish(4) late"
        if j == 144: assert not valq.q, "mish(5) late"
        A.e(f"v_mfma_f32_32x32x16_bf16 {acc}, a[{buf}:{buf+3}], {hreg(k, 2*rb+sp)}, {'0' if j < 12 else acc}")
        if j >= TM0 and (j - TM0) % PER == PER - 1: tdone[t] = A.n - 1
        if j == LT + PER//2 - 1: tdone['b5'] = A.n - 1
        n0 = A.n
        if j % 24 == 14 and j < TM0:
            tags = [f"st{G0+k+1}"]
            if j in flags: tags.append(flags[j][0])
            if k == 17 - NTS: tags += [f"st{G0+x}" for x in range(k + 2, 18 if NTS == 3 else 17)]
            A.wait_vm(tags)
            A.e("s_barrier")
            if j in flags: stq.q = flag_ops(flags[j][1]) + stq.q
            ring.release(G0 + k - 1)
            if j in checks:
                assert not any(o.tag == "fc" for o in memq.q)
                A.wait_lg("fcr")
                check(A, s_rr, checks[j]); check(A, s_rr + 1, checks[j])
            if j + 48 in checks: memq.add(flagcopy_ops(checks[j + 48]))
            for g in ring.alloc(G0 + 18): memq.add(w2_dma_ops(g, ring.slot[g]))
            if k == 8: valq.add(y_prep_ops())
            if k == 17 - NTS:
                assert not memq.q
                valq.add([exp_prep_op(SL(ring, 1), SL(ring, 0))])
        for x in hl.get(j, []): memq.add(h_load_ops(x))
        if NTS == 4 and j == TM0 + 2:
            assert not valq.q
            A.wait_vm(f"st{G0+17}"); A.wait_lg("sfz"); A.e("s_barrier")
        if j == YC and 'noy' not in EXP:
            memq.add([Op(f"s_lshl_b32 s{s_val}, s{s_w}, 10\n    s_add_u32 m0, s{s_val}, {M_Y}\n    s_mov_b32 s{s_val}, {F_Y}\n    buffer_load_dwordx4 v{vYA}, s[{sWS}:{sWS+3}], s{s_val} offen sc1 lds", kind="vmem", tag="yc", cost=16)])
        if j == YR + 4 and 'noy' not in EXP:
            assert not memq.q
            A.wait_lg("yr")
            y_test(A)
            A.e("s_nop 0")
            A.e("s_cbranch_vccnz L_ynot")
            y_loads(A, SL(ring, 0))
            A.e(f"s_mov_b32 s{s_yd}, 1")
            A.label("L_ynot")
        tp, ph = ((j - TM0 - PER)//PER, (j - TM0) % PER) if j >= TM0 + PER else (None, None)
        if PSB and ph == 9:
            A.wait_lg(f"ps{tp}"); A.e("s_barrier")
        P = dict(send={3: [0], 4: [1], 5: [2], 6: [3]}, set=9, rd=11, chk=13, exp=15) if tp != 4 else dict(send={2: [0, 1], 3: [2, 3]}, set=5, rd=7, chk=9, exp=11)
        if ph == P['set']: sf_set(A, tp)
        if ph == P['chk']: sf_check(A, tp)
        if j >= LT - 2: A.wait_lg([f"f{F+1}", f"f{F+2}"])
        elif j % 6 == 0:
            A.wait_lg([f"f{F+1}", f"f{F+2}", f"f{F+3}"])
        if ph == P['exp']:
            A.wait_lg(f"pr{tp}"); valq.add(export_ops(tp))
        if j < LT - 4:
            if rb == 0: a2_read(A, F + LF, ring)
        elif j < LT - 1: a2_read(A, LT//2 + 3 + (j - LT + 4) + 0, ring) if False else None
        if LT - 4 <= j < LT + 1:
            nf = (LT - 4)//2 + LF + (j - (LT - 4))
            if nf < N//2: a2_read(A, nf, ring)
        if ph in P['send']:
            while A.n - tdone[tp] < 13: A.e("s_nop 0")
            ps_send(A, tp, P['send'][ph])
        r0 = P['chk']
        if ph == P['rd']: A.ds(f"ds_read_b32 v{vSF+2}, v{vSF+1}", "sfr")
        if ph in (r0, r0 + 1):
            while any("v_add_f32" in o.txt for o in valq.q):
                if not fill_odd(valq, 4, window=8): A.e("s_nop 0")
            ps_recv(A, tp, [2*(ph - r0), 2*(ph - r0) + 1])
        if j - LT in (12, 13):
            while A.n - tdone['b5'] < 13: A.e("s_nop 0")
            q = j - LT - 12
            ps_send(A, 5, [2*q, 2*q + 1])
        if j + 4 in checks: A.ds(f"ds_read_b32 v{vFC}, v{vFA}", "fcr")
        if j == YR: A.ds(f"ds_read_b128 v[{vYF}:{vYF+3}], v{vYL}", "yr")
        bud = max(0, 24 - 4*(A.n - n0))
        u = pump(stq, bud, 1) if rb == 1 else 0
        left = (13 - j) % 24
        if u == 0: u = pump(memq, bud, 1 if (rb == 1 or 2*sum(x.kind == "vmem" for x in memq.q) > left + 2) else 0)
        if valq.q:
            b2 = max(0, bud - u)
            if j < 144:
                if valq.total() > MC*(MEND - j): b2 += 4
                if j >= MEND: b2 = 1000
            elif u == 0 and valq.q[0].cost > b2 and valq.ready(valq.q[0]): b2 = valq.q[0].cost
            fill_odd(valq, b2, window=(30 if j < 144 else 8))
    assert not memq.q and not stq.q
    if not (EXP & {'p1st', 'p0st'}): stamp(A, 7 if 'p2st' in EXP else 6)
    A.wait_lg("ps5"); A.e("s_barrier")
    for q in range(4): A.ds(f"ds_read_b128 v[{RT5+4*q}:{RT5+4*q+3}], v{vPS + 3} offset:{1024*q}", "pr5")
    valq.drain()
    while A.n - tdone[5] < 13: A.e("s_nop 0")
    A.wait_lg("pr5")
    valq.add(export_ops(5)); valq.drain()
MEND = int(os.environ.get('MEND', 132))
MC = int(os.environ.get('MC', 16))
YC = int(os.environ.get('YC', 385))
YR = int(os.environ.get('YR', 404))

def tail(A, ring):
    OWN = SL(ring, 1); YT = SL(ring, 0)
    A.e(f"s_add_u32 s{s_pb}, s{s_pb}, s{s_kq}")
    A.e(f"s_mul_i32 s{s_pb}, s{s_pb}, 49152")
    A.e(f"s_mul_i32 s{s_t2}, s{s_w}, 3072")
    A.e(f"s_add_u32 s{s_pb}, s{s_pb}, s{s_t2}")
    A.e(f"s_add_u32 s{s_pb}, s{s_pb}, {WS_P}")
    A.e("s_waitcnt lgkmcnt(0)")
    A.e("s_barrier")
    A.e(f"s_cmp_eq_u32 s{s_w}, s{s_kq}")
    A.e("s_cbranch_scc1 L_own_done")
    A.e(f"v_mov_b32 v{vS}, 1")
    A.e("s_waitcnt vmcnt(0)")
    A.e(f"buffer_store_dword v{vS}, off, s[{sWS}:{sWS+3}], s{s_fp}{SC}")
    A.label("L_own_done")
    if 'tst' in EXP: stamp(A, 2)
    A.vm = []; A.lg = []
    V = 32
    A.e(f"s_cmp_lg_u32 s{s_yd}, 0")
    A.e("s_cbranch_scc1 L_py_out")
    A.e(f"s_mov_b32 s{s_t0}, 0x20000")
    A.e(f"s_mov_b32 s{s_t1}, {F_Y}")
    A.label("L_py")
    A.e(f"buffer_load_dwordx4 v[{vYF}:{vYF+3}], v{vYA}, s[{sWS}:{sWS+3}], s{s_t1} offen{SC}")
    A.e("s_waitcnt vmcnt(0)")
    y_test(A)
    A.e(f"s_sub_u32 s{s_t0}, s{s_t0}, 1")
    A.e("s_cbranch_scc1 L_py_go")
    A.e("s_sleep 1")
    A.e("s_cbranch_vccnz L_py")
    A.label("L_py_go")
    y_loads(A, YT)
    A.label("L_py_out")
    if 'tst' in EXP: stamp(A, 3)
    A.e(f"v_and_b32 v{V}, 3, v1")
    A.e(f"v_cmp_eq_u32 s[{s_ret}:{s_ret+1}], s{s_kq}, v{V}")
    A.e(f"v_lshlrev_b32 v{V}, 2, v{V}")
    A.e(f"s_and_b32 s{s_need}, s{s_fp}, 0xfffffe00")
    A.e(f"s_lshl_b32 s{s_t0}, s{s_kq}, 7")
    A.e(f"s_add_u32 s{s_need}, s{s_need}, s{s_t0}")
    A.e(f"s_cmp_lg_u32 s{s_w}, s{s_kq}")
    A.e("s_cbranch_scc1 L_np1")
    A.e(f"buffer_load_dword v{V+4}, v{V}, s[{sWS}:{sWS+3}], s{s_need} offen{SC}")
    A.label("L_np1")
    OW, YA, BS = 96, 112, 192
    A.e(f"s_add_u32 s{s_t0}, s{s_t2}, {OWN}")
    A.e(f"v_add_u32 v{V+2}, s{s_t0}, v{vL16}")
    for i in range(3): A.e(f"ds_read_b128 v[{OW+4*i}:{OW+4*i+3}], v{V+2} offset:{1024*i}")
    A.e(f"v_lshrrev_b32 v{V+3}, 2, v1")
    A.e(f"v_and_b32 v{V+3}, 3, v{V+3}")
    A.e(f"v_lshrrev_b32 v{V+6}, 5, v1")
    A.e(f"v_lshl_add_u32 v{V+3}, v{V+6}, 3, v{V+3}")
    A.e(f"v_lshlrev_b32 v{V+3}, 6, v{V+3}")
    A.e(f"v_and_b32 v{V+5}, 16, v1")
    A.e(f"v_lshl_add_u32 v{V+3}, v{V+5}, 1, v{V+3}")
    A.e(f"v_and_b32 v{V+5}, 3, v1")
    A.e(f"v_lshl_add_u32 v{V+3}, v{V+5}, 3, v{V+3}")
    A.e(f"s_add_u32 s{s_t0}, s{s_t2}, {YT}")
    A.e(f"v_add_u32 v{V+3}, s{s_t0}, v{V+3}")
    A.e(f"v_mul_u32_u24 v{V+8}, 1152, v{vRow}")
    A.e(f"v_lshl_add_u32 v{V+8}, v{V+6}, 4, v{V+8}")
    A.e(f"s_mul_i32 s{s_t1}, s{s_upos}, 1152")
    A.e(f"s_lshl_b32 s{s_t0}, s{s_line}, 1")
    A.e(f"s_add_u32 s{s_lane}, s{s_t1}, s{s_t0}")
    A.e(f"s_cmp_eq_u32 s{s_w}, s{s_kq}")
    A.e(f"s_cselect_b32 s{s_t0}, 1, s{s_yd}")
    A.e(f"s_cmp_lg_u32 s{s_t0}, 0")
    A.e("s_cbranch_scc1 L_w1")
    A.e("s_waitcnt vmcnt(0)")
    A.label("L_w1")
    A.e("s_waitcnt vmcnt(1)")
    for i in range(3):
        for rd in range(2):
            A.e(f"ds_read_b64_tr_b16 v[{YA+4*i+2*rd}:{YA+4*i+2*rd+1}], v{V+3} offset:{1024*i + 256*rd}")
    A.e(f"v_sub_f32 v{vGT+1}, 1.0, v{vGT}")
    for q in range(3):
        A.e(f"s_cmp_le_u32 s{s_kq}, {q}")
        A.e(f"s_cselect_b32 s{s_sl+q}, 12288, 0")
        A.e(f"s_add_u32 s{s_sl+q}, s{s_sl+q}, s{s_pb}")
        if q < 2: A.e(f"s_add_u32 s{s_pb}, s{s_pb}, 12288")
    A.e("s_waitcnt lgkmcnt(0)")
    for q in range(12):
        lo = BS + 2*q
        A.e(f"v_lshlrev_b32 v{lo}, 16, v{YA+q}")
        A.e(f"v_and_b32 v{lo+1}, 0xffff0000, v{YA+q}")
        A.e(f"v_lshlrev_b32 v{V+10+2*(q&1)}, 16, v{OW+q}")
        A.e(f"v_and_b32 v{V+11+2*(q&1)}, 0xffff0000, v{OW+q}")
        A.e(f"v_pk_mul_f32 v[{lo}:{lo+1}], v[{lo}:{lo+1}], v[{vGT}:{vGT+1}] op_sel_hi:[1,0]")
        A.e(f"v_pk_fma_f32 v[{lo}:{lo+1}], v[{V+10+2*(q&1)}:{V+11+2*(q&1)}], v[{vGT}:{vGT+1}], v[{lo}:{lo+1}] op_sel:[0,1,0] op_sel_hi:[1,1,1]")
    A.e(f"s_mov_b32 s{s_t0}, 0x20000")
    A.e(f"s_cmp_lg_u32 s{s_w}, s{s_kq}")
    A.e("s_cbranch_scc1 L_pp_out")
    A.label("L_pp")
    A.e("s_waitcnt vmcnt(0)")
    A.e(f"v_cmp_ne_u32 vcc, 1, v{V+4}")
    A.e(f"s_sub_u32 s{s_t0}, s{s_t0}, 1")
    A.e("s_cbranch_scc1 L_pp_out")
    A.e(f"s_andn2_b64 vcc, vcc, s[{s_ret}:{s_ret+1}]")
    A.e("s_cbranch_vccz L_pp_out")
    A.e(f"buffer_load_dword v{V+4}, v{V}, s[{sWS}:{sWS+3}], s{s_need} offen{SC}")
    A.e("s_branch L_pp")
    A.label("L_pp_out")
    A.e("s_barrier")
    if 'tst' in EXP: stamp(A, 4)
    PB = 144
    for i in range(3):
        for q in range(3):
            A.vmem(f"buffer_load_dwordx4 v[{PB+12*i+4*q}:{PB+12*i+4*q+3}], v{vL16}, s[{sWS}:{sWS+3}], s{s_sl+q} offen offset:{1024*i}{SC}", f"imp{i}")
    A.e(f"v_mov_b32 v{V+14}, 0x3f80")
    A.e(f"v_mov_b32 v{V+15}, 0x3f800000")
    S = 40 + 8
    for i in range(3):
        A.wait_vm(f"imp{i}")
        if i == 0 and 'tst' in EXP: stamp(A, 5)
        for d in range(4):
            A.e(f"v_lshlrev_b32 v{S+2*d}, 16, v{PB+12*i+d}")
            A.e(f"v_and_b32 v{S+2*d+1}, 0xffff0000, v{PB+12*i+d}")
        for q in (1, 2):
            for d in range(4):
                A.e(f"v_dot2c_f32_bf16 v{S+2*d}, v{PB+12*i+4*q+d}, v{V+14}")
                A.e(f"v_dot2c_f32_bf16 v{S+2*d+1}, v{PB+12*i+4*q+d}, v{V+15}")
        A.nop(2)
        for d in range(4):
            lo = BS + 8*i + 2*d
            A.e(f"v_pk_fma_f32 v[{lo}:{lo+1}], v[{S+2*d}:{S+2*d+1}], v[{vGT}:{vGT+1}], v[{lo}:{lo+1}] op_sel:[0,1,0] op_sel_hi:[1,1,1]")
        for d in range(4):
            lo = BS + 8*i + 2*d
            A.e(f"v_cvt_pk_bf16_f32 v{OW+4*i+d}, v{lo}, v{lo+1}")
        A.vmem(f"buffer_store_dwordx4 v[{OW+4*i}:{OW+4*i+3}], v{V+8}, s[{sT1}:{sT1+3}], s{s_lane} offen offset:{32*i}", "o")
```

```python
import sys, os
from common import *
import p1f
import big3 as big2
import conv5 as convf
import kc4
from p1f import *

def probe_end(A, sfx):
    if 'probe' in EXP:
        A.e("s_cmp_lg_u32 s2, " + os.environ.get("PW", "0"))
        A.e("s_cbranch_scc1 L_prb2" + sfx + "")
        A.e(f"buffer_load_dwordx2 v[2:3], off, s[{sDBG}:{sDBG+3}], 0 offset:128 sc1")
        A.e("s_memrealtime s[88:89]")
        A.e("s_waitcnt vmcnt(0) lgkmcnt(0)")
        A.e("v_not_b32 v3, v3")
        PS = int(os.environ.get("PS", -1))
        if PS >= 0: A.e(f"v_mov_b32 v2, s{88 if PS == 9 else 94}")
        A.e("v_sub_u32 v2, v2, v3"); A.e("s_nop 1")
        A.e("v_readfirstlane_b32 s90, v2")
        A.e("s_min_u32 s90, s90, 5000")
        A.e(f"s_mul_i32 s90, s90, {10 if PS < 0 else 4}")
        A.e(f"buffer_store_dword v2, off, s[{sDBG}:{sDBG+3}], 0 offset:4")
        A.label("L_prb3" + sfx + "")
        A.e("s_memrealtime s[92:93]"); A.e("s_waitcnt lgkmcnt(0)")
        A.e("s_sub_u32 s91, s92, s88"); A.e("s_cmp_lt_u32 s91, s90"); A.e("s_cbranch_scc1 L_prb3" + sfx + "")
        A.label("L_prb2" + sfx + "")

def fused():
    A = Asm()
    K = NAME + "_kernel"
    A.raw(kernel_head(K))
    A.label("L_start")
    stamp(A, 0)
    if 'probe' in EXP: A.e("s_memrealtime s[86:87]")
    A.e("s_cmp_ge_u32 s2, 256")
    A.e("s_cbranch_scc1 L_end")
    A.e(f"s_lshr_b32 s{s_r}, s2, 3")
    A.e(f"s_and_b32 s{s_r}, s{s_r}, 3")
    A.e(f"s_cmp_eq_u32 s{s_r}, 3")
    A.e("s_cbranch_scc1 L_conv")
    big2.prologue(A)
    if not (EXP & {'tst', 'p2st'}): stamp(A, 1)
    ctx = big2.p1(A)
    big2.p2(A, *ctx)
    big2.tail(A, ctx[0])
    probe_end(A, 'a')
    if STAMPS:
        A.wait_all()
        if not (EXP & {'p1st', 'p2st', 'p0st'}): stamp(A, 7)
        stamp_flush(A)
    A.e("s_endpgm")
    A.label("L_conv")
    A.vm = []; A.lg = []
    for r, n in ((sX, "u"), (p_w1, "w1"), (sWS, "ws"), (sW2, "w2"), (sDBG, "dbg")):
        A.e(f"s_load_dwordx2 s[{r}:{r+1}], s[0:1], {KA[n]}")
    if 'nocpf' not in EXP:
        A.e(f"s_getpc_b64 s[{s_ret}:{s_ret+1}]")
        A.label("L_cpf_pc")
        A.e(f"s_sub_u32 s{s_ret}, s{s_ret}, L_cpf_pc-L_start")
        A.e(f"s_subb_u32 s{s_ret+1}, s{s_ret+1}, 0")
        A.e("v_lshrrev_b32 v2, 6, v0")
        A.e("s_lshr_b32 s3, s2, 5")
        A.e("s_lshl_b32 s3, s3, 2")
        A.e("v_add_u32 v2, s3, v2")
        A.e("v_and_b32 v2, 7, v2")
        A.e("v_lshlrev_b32 v2, 13, v2")
        A.e("v_and_b32 v3, 63, v0")
        A.e("v_lshl_add_u32 v2, v3, 7, v2")
        A.e("v_min_u32 v2, L_codeend-L_start-4, v2")
        A.e("v_and_b32 v2, -4, v2")
        A.vmem(f"global_load_dword a255, v2, s[{s_ret}:{s_ret+1}]", "cpf")
    setup_common(A)
    A.e(f"v_mov_b32 v{vS}, 0")
    A.e("s_waitcnt lgkmcnt(0)")
    for r, n in ((sX, L_*D_*2), (sWS, WS_BYTES), (sW2, D_*F_*2), (sDBG, 256)):
        A.e(f"s_mov_b32 s{r+2}, {hex(n)}"); A.e(f"s_mov_b32 s{r+3}, 0x00020000")
    if 'wsend' in EXP:
        A.e(f"s_add_u32 s{sWS}, s{sWS}, {WS_BYTES - 0x2A00000}"); A.e(f"s_addc_u32 s{sWS+1}, s{sWS+1}, 0"); A.e(f"s_mov_b32 s{sWS+2}, 0x2A00000")
    A.e(f"s_mov_b32 s{p_ws}, s{sWS}"); A.e(f"s_mov_b32 s{p_ws+1}, s{sWS+1}")
    A.vm = ["cpf"]; A.lg = []
    if 'probe' in EXP:
        A.e(f"s_cmp_lg_u32 s{s_w}, 3")
        A.e("s_cbranch_scc1 L_prb")
        A.e("s_mov_b64 exec, 1")
        A.e("v_mov_b32 v2, s86"); A.e("v_not_b32 v3, v2")
        A.e(f"buffer_atomic_umax v2, off, s[{sDBG}:{sDBG+3}], 0 offset:128 sc1")
        A.e(f"buffer_atomic_umax v3, off, s[{sDBG}:{sDBG+3}], 0 offset:132 sc1")
        A.e("s_mov_b64 exec, -1")
        A.label("L_prb")
    A.e(f"s_and_b32 s{s_t0}, s{s_fi}, 0xffffff80")
    A.e("v_lshrrev_b32 v2, 4, v1")
    A.e("v_lshlrev_b32 v2, 13, v2")
    A.e("v_and_b32 v3, 15, v1")
    A.e("v_lshl_add_u32 v2, v3, 2, v2")
    A.e(f"v_add_u32 v2, s{s_t0}, v2")
    A.e(f"s_mul_i32 s{s_t0}, s{s_m}, 12")
    A.e(f"s_add_u32 s{s_t0}, s{s_t0}, s{s_kq}")
    A.e(f"s_lshl_b32 s{s_t0}, s{s_t0}, 7")
    A.e(f"s_add_u32 s{s_t0}, s{s_t0}, {F_P}")
    A.e("v_min_u32 v3, 11, v3")
    A.e("v_lshrrev_b32 v4, 2, v3")
    A.e("v_lshlrev_b32 v4, 9, v4")
    A.e("v_and_b32 v3, 3, v3")
    A.e("v_lshl_add_u32 v3, v3, 2, v4")
    A.e("v_cmp_gt_u32 vcc, 48, v1")
    A.e(f"v_add_u32 v3, s{s_t0}, v3")
    A.e(f"s_cmp_lg_u32 s{s_w}, 0")
    A.e("v_cndmask_b32 v2, v3, v2, vcc")
    A.e("s_cbranch_scc1 L_nz")
    A.e(f"buffer_store_dword v{vS}, v2, s[{sWS}:{sWS+3}], 0 offen{SC}")
    A.label("L_nz")
    A.e(f"s_lshr_b32 s{s_fi}, s{s_fi}, 7")
    A.e(f"s_and_b32 s{s_fi}, s{s_fi}, 63")
    A.e(f"s_lshl_b32 s{s_fi}, s{s_fi}, 2")
    A.e(f"s_add_u32 s{s_fi}, s{s_fi}, s{s_w}")
    A.e(f"s_lshl_b32 s{s_fi}, s{s_fi}, 2")
    A.e(f"s_add_u32 s{s_fi}, s{s_fi}, {F_U}")
    A.e(f"s_cmp_lg_u32 s{s_w}, 0")
    A.e("s_cbranch_scc1 L_nz3")
    A.e("v_and_b32 v2, 4, v1")
    A.e("v_lshlrev_b32 v2, 10, v2")
    A.e("v_and_b32 v3, 3, v1")
    A.e("v_lshl_add_u32 v2, v3, 2, v2")
    A.e(f"buffer_store_dword v{vS}, v2, s[{sWS}:{sWS+3}], s{s_fi} offen{SC}")
    A.label("L_nz3")
    if 'noconv' in EXP: A.e("s_endpgm")
    kc4.kgen_all(A)
    if 'kgonly' in EXP:
        stamp(A, 7); stamp_flush(A); A.e("s_endpgm")
    if 'ramp' in EXP: A.e("s_endpgm")
    if 'kgst' in EXP:
        stamp(A, 7); stamp_flush(A); A.e("s_endpgm")
    convf.conv_all(A, ldflag=SC, stflag=SC)
    A.e(f"v_mov_b32 v{vS}, 1")
    A.e(f"s_add_u32 s{s_fi}, s{s_fi}, 4096")
    A.e("s_waitcnt vmcnt(0)")
    A.e(f"buffer_store_dword v{vS}, off, s[{sWS}:{sWS+3}], s{s_fi}{SC}")
    A.wait_all()
    probe_end(A, 'b')
    stamp(A, 7)
    stamp_flush(A)
    A.label("L_end")
    A.e("s_endpgm")
    ut_sub(A, kc4.POOL[0])
    kc4.kchan_sub(A)
    big2.poll_sub(A)
    big2.sf_slow(A)
    kc4.tables(A)
    A.label("L_codeend")
    return A.text(), KD.format(name=K, vgpr=512, accum=256)

HDR = open("cdna_kernels/" + NAME + ".s.ref").read().split("; Override launch")[0]
if __name__ == "__main__":
    t, kd = fused()
    s = HDR + f"; @launch grid=(256,1,1) block=(256,1,1) lds={LDS_BYTES}\n" + '.amdgcn_target "amdgcn-amd-amdhsa--gfx950"\n.text\n' + t + '.section .rodata,"a"\n.p2align 6\n' + kd
    open(sys.argv[1], "w").write(s)
```

```python
from common import *
from p1f import Ring, setup_common, counter_arrive, ut_sub
vXD, vXR, vWD, vAR, vBI, vL16, vS, vEW, vER, vW2D, vA2 = 2, 4, 8, 10, 13, 17, 31, 15, 16, 18, 24
ACC, TMP, BIAS, MT, HS = 32, 64, 96, 128, 144
ARING = [112, 116, 120, 124, 140]
EX = 6*SLOT
M_BIAS = MISC
M_FL = MISC + 2048
s_sl, s_hs, s_rr, s_pb, s_need, s_lane, s_val, s_w2l, s_fp, s_yd = 66, 70, 79, 82, 83, 84, 85, 3, 74, 75
vFL, vFA, TMP2, vFC = vXD, vXD + 1, vXR, vXR + 2
vCN = vFC + 1
vSA, vSR, vSV = 14, 0, 30
SBAR = MISC + 4096
SOFT = 'softbar' in EXP
class Soft:
    n = 0
def sb_arrive(A):
    Soft.n += 1
    A.e(f"v_mov_b32 v{vS}, {Soft.n}")
    A.ds(f"ds_write_b32 v{vSA}, v{vS}", "sbw")
def sb_read(A): A.ds(f"ds_read_b32 v{vSV}, v{vSR}", "sbr")
def sb_check(A):
    l1, l2 = A.newlabel("L_sb"), A.newlabel("L_sbs")
    A.wait_lg("sbr")
    A.e(f"v_cmp_gt_u32 vcc, {Soft.n}, v{vSV}")
    A.e(f"s_cbranch_vccnz {l2}")
    A.label(l1)
    A.slow.append((l2, l1, Soft.n))
def sb_slow(A):
    for l2, l1, n in A.slow:
        A.label(l2)
        A.e(f"ds_read_b32 v{vSV}, v{vSR}")
        A.e("s_waitcnt lgkmcnt(0)")
        A.e(f"v_cmp_gt_u32 vcc, {n}, v{vSV}")
        A.e(f"s_cbranch_vccnz {l2}")
        A.e(f"s_branch {l1}")
G0 = 18
AOFF = 0 if 'single0' in EXP else 36
PB0 = int(os.environ.get('PB0', 10))
PB1 = int(os.environ.get('PB1', 0))
N0 = int(os.environ.get('N0', 3))
N2 = int(os.environ.get('N2', 6))
P0V = int(os.environ.get('P0V', 1))
FLUSH = int(os.environ.get('FLUSH', 0))
def xreg(rb, s):
    if rb == 0: return f"a[{4*s}:{4*s+3}]"
    if s < 12: return f"a[{208+4*s}:{211+4*s}]"
    if s < 28: return f"a[{144+4*(s-12)}:{147+4*(s-12)}]"
    return f"v[{224+4*(s-28)}:{227+4*(s-28)}]"
def hs(pi): return HS + 64 if pi == 0 else HS + 16*(pi - 1)

def rw_entries(A, lo, hi):
    for kl in range(lo, hi):
        A.e(f"s_mul_i32 s{s_rw+kl}, s{s_rho}, {64*9216}")
        if kl < 8:
            A.e(f"s_add_u32 s{s_rho}, s{s_rho}, 1")
            A.e(f"s_cmp_eq_u32 s{s_rho}, 9")
            A.e(f"s_cselect_b32 s{s_rho}, 0, s{s_rho}")
def prologue(A):
    T = MT
    if 'cpf0' in EXP:
        A.e(f"s_getpc_b64 s[{s_ret}:{s_ret+1}]")
        A.e("v_lshlrev_b32 v2, 7, v0")
        A.e("v_and_b32 v2, 0x1fff, v2")
        A.vmem(f"global_load_dword v{HS}, v2, s[{s_ret}:{s_ret+1}]", "cpf")
    for r, n in ((sX, "u"), (sW1, "w1"), (sT0, "b1"), (sWS, "ws"), (sW2, "w2"), (sDBG, "dbg"), (sT1, "out")):
        A.e(f"s_load_dwordx2 s[{r}:{r+1}], s[0:1], {KA[n]}")
    A.e("v_lshrrev_b32 v2, 6, v0")
    A.e("v_and_b32 v1, 63, v0")
    A.e("s_and_b32 s3, s2, 7")
    A.e(f"v_readfirstlane_b32 s{s_w}, v2")
    A.e(f"s_lshr_b32 s{s_kq}, s3, 1")
    A.e("s_and_b32 s3, s3, 1")
    A.e("s_lshl_b32 s3, s3, 3")
    A.e(f"s_lshr_b32 s{s_m7}, s2, 5")
    A.e(f"s_add_u32 s{s_m}, s{s_m7}, s3")
    A.e(f"s_mul_i32 s{s_rho}, s{s_r}, 3")
    A.e(f"s_add_u32 s{s_rho}, s{s_rho}, s{s_m7}")
    mod_small(A, s_rho, s_rho, 9)
    rw_entries(A, 0, 2)
    A.e(f"s_mul_i32 s{s_t2}, s{s_kq}, 2304")
    A.e(f"s_mul_i32 s{s_t1}, s{s_r}, 768")
    A.e(f"s_add_u32 s{s_t2}, s{s_t2}, s{s_t1}")
    A.e(f"s_lshl_b32 s{s_wl}, s{s_w}, 11")
    A.e(f"s_mul_i32 s{s_pc}, s{s_w}, 20480")
    A.e(f"v_lshrrev_b32 v{T}, 3, v1")
    A.e(f"v_and_b32 v{T+1}, 7, v1")
    A.e(f"s_lshl_b32 s{s_t0}, s{s_m}, 7")
    A.e(f"s_lshl_b32 s{s_t1}, s{s_w}, 5")
    A.e(f"s_add_u32 s{s_t0}, s{s_t0}, s{s_t1}")
    A.e(f"v_add_u32 v{T+2}, s{s_t0}, v{T}")
    A.e(f"v_mul_u32_u24 v{T+2}, 1152, v{T+2}")
    A.e(f"v_lshrrev_b32 v{T+3}, 1, v{T}")
    A.e(f"v_xor_b32 v{T+3}, v{T+3}, v{T+1}")
    A.e(f"v_lshl_add_u32 v{vXD}, v{T+3}, 4, v{T+2}")
    A.e(f"v_xor_b32 v{vXD+1}, 64, v{vXD}")
    A.e(f"v_add_u32 v{vXD+1}, 8192, v{vXD+1}")
    A.e(f"s_lshl_b32 s{s_t0}, s{s_w}, 4")
    A.e(f"v_add_u32 v{T+2}, s{s_t0}, v{T}")
    A.e(f"v_mul_u32_u24 v{T+2}, 9216, v{T+2}")
    A.e(f"v_lshlrev_b32 v{T+3}, 1, v{T}")
    A.e(f"v_and_b32 v{T+3}, 4, v{T+3}")
    A.e(f"v_xor_b32 v{T+3}, v{T+3}, v{T+1}")
    A.e(f"v_lshl_add_u32 v{vWD}, v{T+3}, 4, v{T+2}")
    A.e(f"v_add_u32 v{vWD+1}, {8*9216 - 1024}, v{vWD}")
    A.e(f"v_lshlrev_b32 v{MT+2}, 1, v0")
    for r, n in ((sX, L_*D_*2), (sW1, 575*9216 + 256), (sT0, F_*2)):
        A.e(f"s_mov_b32 s{r+2}, {hex(n)}"); A.e(f"s_mov_b32 s{r+3}, 0x00020000")
    A.e("s_waitcnt lgkmcnt(0)")
    A.e(f"s_add_u32 s{sW1}, s{sW1}, s{s_t2}")
    A.e(f"s_addc_u32 s{sW1+1}, s{sW1+1}, 0")

def setupA(A):
    T = MT + 4
    A.e(f"s_mov_b32 s{s_log2e}, {fhex(LOG2E)}")
    A.e(f"v_and_b32 v{T}, 31, v1")
    A.e(f"v_lshrrev_b32 v{T+1}, 5, v1")
    A.e(f"v_lshrrev_b32 v{T+2}, 1, v{T}")
    A.e(f"v_and_b32 v{T+2}, 7, v{T+2}")
    A.e(f"v_xor_b32 v{T+2}, v{T+2}, v{T+1}")
    A.e(f"s_lshr_b32 s{s_t0}, s{s_w}, 1")
    A.e(f"s_mul_i32 s{s_t0}, s{s_t0}, 40960")
    A.e(f"s_add_u32 s{s_t0}, s{s_t0}, {XRING}")
    A.e(f"v_lshlrev_b32 v{T+3}, 7, v{T}")
    A.e(f"v_add_u32 v{T+3}, s{s_t0}, v{T+3}")
    for ks in range(4):
        A.e(f"v_xor_b32 v{T+4}, {2*ks}, v{T+2}")
        A.e(f"v_lshl_add_u32 v{vXR+ks}, v{T+4}, 4, v{T+3}")
    A.e(f"s_and_b32 s{s_t1}, s{s_w}, 1")
    A.e(f"s_lshl_b32 s{s_t0}, s{s_t1}, 7")
    A.e(f"s_add_u32 s{s_t0}, s{s_t0}, {M_BIAS}")
    A.e(f"v_lshlrev_b32 v{vBI}, 4, v{T+1}")
    A.e(f"v_add_u32 v{vBI}, s{s_t0}, v{vBI}")
    A.e(f"v_lshrrev_b32 v{T}, 2, v1")
    A.e(f"v_and_b32 v{T}, 3, v{T}")
    A.e(f"v_lshl_add_u32 v{T+2}, v{T+1}, 3, v{T}")
    A.e(f"v_lshlrev_b32 v{T+2}, 7, v{T+2}")
    A.e(f"v_lshrrev_b32 v{T+3}, 1, v{T}")
    A.e(f"v_xor_b32 v{T+3}, s{s_t1}, v{T+3}")
    A.e(f"v_lshl_add_u32 v{T+2}, v{T+3}, 6, v{T+2}")
    A.e(f"v_lshrrev_b32 v{T+3}, 4, v1")
    A.e(f"v_and_b32 v{T+3}, 1, v{T+3}")
    A.e(f"v_lshl_add_u32 v{T+2}, v{T+3}, 5, v{T+2}")
    A.e(f"v_and_b32 v{T+4}, 3, v1")
    A.e(f"v_lshl_add_u32 v{vAR}, v{T+4}, 3, v{T+2}")
    for j in (1, 2): A.e(f"v_add_u32 v{vAR+j}, {j*2*SLOT}, v{vAR}")

def setupB(A):
    T = MT + 4
    for r, n in ((sWS, WS_BYTES), (sW2, D_*F_*2), (sDBG, 256), (sT1, L_*D_*2)):
        A.e(f"s_mov_b32 s{r+2}, {hex(n)}"); A.e(f"s_mov_b32 s{r+3}, 0x00020000")
    A.e(f"v_lshlrev_b32 v{vL16}, 4, v1")
    A.e(f"s_lshl_b32 s{s_t0}, s{s_m}, 2")
    A.e(f"s_add_u32 s{s_t0}, s{s_t0}, s{s_kq}")
    A.e(f"s_lshl_b32 s{s_hb}, s{s_t0}, 2")
    A.e(f"s_lshl_b32 s{s_fi}, s{s_t0}, 3")
    A.e(f"s_add_u32 s{s_fi}, s{s_fi}, s{s_r}")
    A.e(f"s_lshl_b32 s{s_fi}, s{s_fi}, 2")
    A.e(f"s_add_u32 s{s_fi}, s{s_fi}, s{s_w}")
    A.e(f"s_lshl_b32 s{s_fi}, s{s_fi}, 2")
    A.e(f"s_add_u32 s{s_fi}, s{s_fi}, {WS_F}")
    A.e(f"s_add_u32 s{s_hb}, s{s_hb}, s{s_w}")
    A.e(f"s_mul_i32 s{s_hb}, s{s_hb}, 73728")
    A.e(f"s_mul_i32 s{s_t0}, s{s_r}, 24576")
    A.e(f"s_add_u32 s{s_hb}, s{s_hb}, s{s_t0}")
    A.e(f"s_add_u32 s{s_t0}, s{s_wl}, {EX}")
    A.e(f"v_add_u32 v{vEW}, s{s_t0}, v{vL16}")
    A.e(f"v_xor_b32 v{vER}, 2048, v{vEW}")
    A.e(f"v_lshrrev_b32 v{T+1}, 5, v1")
    A.e(f"v_lshrrev_b32 v{T}, 2, v1")
    A.e(f"v_and_b32 v{T}, 3, v{T}")
    A.e(f"v_lshrrev_b32 v{T+3}, 4, v1")
    A.e(f"v_and_b32 v{T+3}, 1, v{T+3}")
    A.e(f"v_and_b32 v{T+4}, 3, v1")
    A.e(f"v_lshl_add_u32 v{T+1}, v{T+1}, 2, v{T}")
    A.e(f"v_mul_u32_u24 v{T+1}, 384, v{T+1}")
    A.e(f"v_lshl_add_u32 v{T+1}, v{T+3}, 5, v{T+1}")
    A.e(f"v_lshl_add_u32 v{T+1}, v{T+4}, 3, v{T+1}")
    A.e(f"v_lshrrev_b32 v{T}, 1, v{T}")
    A.e(f"v_lshlrev_b32 v{T}, 6, v{T}")
    A.e(f"v_add_u32 v{vA2}, v{T+1}, v{T}")
    A.e(f"v_sub_u32 v{vA2+1}, v{T+1}, v{T}")
    for j in (1, 2):
        A.e(f"v_add_u32 v{vA2+2*j}, {j*2*SLOT}, v{vA2}")
        A.e(f"v_add_u32 v{vA2+2*j+1}, {j*2*SLOT}, v{vA2+1}")
    A.e(f"s_mul_i32 s{s_w2l}, s{s_w}, 6144")
    A.e(f"s_mul_i32 s{s_t0}, s{s_r}, 24576")
    A.e(f"s_sub_u32 s{s_t0}, s{s_hb}, s{s_t0}")
    A.e(f"s_mul_i32 s{s_t1}, s{s_kq}, {1152*1152}")
    A.e(f"s_mul_i32 s{s_t2}, s{s_r}, 384")
    A.e(f"s_add_u32 s{s_t1}, s{s_t1}, s{s_t2}")
    for idx in range(3):
        A.e(f"s_add_u32 s{s_t2}, s{s_r}, {idx}")
        mod_small(A, s_t2, s_t2, 3)
        if idx: A.e(f"s_mov_b32 s{s_rr+idx-1}, s{s_t2}")
        A.e(f"s_mul_i32 s{s_t3}, s{s_t2}, {384*1152}")
        A.e(f"s_add_u32 s{s_sl+idx}, s{s_t1}, s{s_t3}")
        A.e(f"s_mul_i32 s{s_t3}, s{s_t2}, 24576")
        A.e(f"s_add_u32 s{s_hs+idx}, s{s_t0}, s{s_t3}")
    A.e(f"s_mul_i32 s{s_t0}, s{s_w}, {16*1152}")
    A.e(f"s_add_u32 s{s_t1}, s{s_kq}, 1")
    A.e(f"s_and_b32 s{s_t1}, s{s_t1}, 3")
    A.e(f"s_mul_i32 s{s_t1}, s{s_t1}, 6")
    for i3 in range(3):
        A.e(f"v_add_u32 v{T}, {64*i3}, v1")
        A.e(f"v_mul_u32_u24 v{T+1}, 2731, v{T}")
        A.e(f"v_lshrrev_b32 v{T+1}, 16, v{T+1}")
        A.e(f"v_mul_u32_u24 v{T+2}, 24, v{T+1}")
        A.e(f"v_sub_u32 v{T+2}, v{T}, v{T+2}")
        A.e(f"v_lshlrev_b32 v{T+3}, 1, v{T+1}")
        A.e(f"v_and_b32 v{T+3}, 4, v{T+3}")
        A.e(f"v_xor_b32 v{T+2}, v{T+2}, v{T+3}")
        A.e(f"v_add_u32 v{T+2}, s{s_t1}, v{T+2}")
        A.e(f"v_subrev_u32 v{T+3}, 24, v{T+2}")
        A.e(f"v_min_u32 v{T+2}, v{T+2}, v{T+3}")
        A.e(f"v_mul_u32_u24 v{T+1}, 1152, v{T+1}")
        A.e(f"v_lshl_add_u32 v{T+1}, v{T+2}, 4, v{T+1}")
        A.e(f"v_add_u32 v{T+1}, s{s_t0}, v{T+1}")
        for g in range(2):
            i = 3*g + i3
            A.e(f"v_add_u32 v{vW2D+i}, {hex((g*8*1152 - (i&3)*1024) & 0xffffffff)}, v{T+1}")
    A.e(f"s_mul_i32 s{s_fp}, s{s_m}, 3")
    A.e(f"s_add_u32 s{s_fp}, s{s_fp}, s{s_r}")
    A.e(f"s_lshl_b32 s{s_pb}, s{s_fp}, 2")
    A.e(f"s_lshl_b32 s{s_fp}, s{s_fp}, 11")
    A.e(f"s_add_u32 s{s_fp}, s{s_fp}, {F_P2}")

def x_dma_ops(kl):
    m = Op(f"s_add_u32 m0, s{s_pc}, {XRING + (kl % 5)*4096}", kind="salu")
    s1 = Op(f"s_mul_hi_u32 s{s_so}, s{s_rw+kl}, {-(-(1 << 32)//4608)}", kind="salu")
    o = [m, s1]
    for i in range(4):
        if i == 2: o.append(Op(f"s_add_u32 s{s_so}, s{s_so}, 16384", kind="salu"))
        o.append(Op(f"buffer_load_dwordx4 v{vXD+(i&1)}, s[{sX}:{sX+3}], s{s_so} offen offset:{i*1024} lds", kind="vmem", tag=f"x{kl}", deps=[(m, 2)]))
    return o
def x_read(A, kl):
    for rb in range(2):
        for ks in range(4):
            A.ds(f"ds_read_b128 {xreg(rb, 4*kl+ks)}, v{vXR+ks} offset:{rb*20480 + (kl % 5)*4096}", f"xr{kl}")
def w1_line_ops(st, j, slot):
    kl = 3*(st % 3) + j
    m = Op(f"s_add_u32 m0, s{s_wl}, {slot*SLOT + j*8192}", kind="salu")
    return [m] + [Op(f"buffer_load_dwordx4 v{vWD+i}, s[{sW1}:{sW1+3}], s{s_rw+kl} offen offset:{i*1024} lds", kind="vmem", tag=(f"W{kl}" if st < 3 else f"st{st}"), deps=[(m, 2)]) for i in range(2)]
def w1_dma_ops(st, slot):
    o = []
    if st % 3 == 0: o.append(Op(f"s_add_u32 s{sW1}, s{sW1}, {256 if (st == 6 and 'single0' not in EXP) else 128}\n    s_addc_u32 s{sW1+1}, s{sW1+1}, 0", kind="salu", cost=8))
    for j in range(3): o += w1_line_ops(st, j, slot)
    return o
FIRST = ("x0", "W0", "x1", "W1", "x2", "W2", "x3", "W3", "x4", "W4")
def first_ops(k):
    n = int(k[1])
    return x_dma_ops(n) if k[0] == "x" else w1_line_ops(n // 3, n % 3, n // 3)

def mish_ops(pi, done_pos, TMP=TMP, prev=None):
    ops = []; G = []
    for grp in range(16):
        rb = grp // 8
        es = [2*grp, 2*grp + 1]
        tb = MT + (grp % 3)*4
        m = [Op(f"v_mul_f32 v{tb+2*i}, s{s_log2e}, v{TMP+e}", deps=[(done_pos[rb], 13)]) for i, e in enumerate(es)]
        x = [Op(f"v_exp_f32 v{tb+2*i}, v{tb+2*i}", cost=8, trans=True, deps=[(m[i], 1)]) for i in range(2)]
        p = [Op(f"v_fma_f32 v{tb+2*i+1}, v{tb+2*i}, -0.5, -1.0", deps=[(x[i], 2)]) for i in range(2)]
        d = [Op(f"v_fma_f32 v{tb+2*i+1}, v{tb+2*i}, v{tb+2*i+1}, -1.0", deps=[(p[i], 1)]) for i in range(2)]
        r = [Op(f"v_rcp_f32 v{tb+2*i+1}, v{tb+2*i+1}", cost=8, trans=True, deps=[(d[i], 1)]) for i in range(2)]
        y = [Op(f"v_fmac_f32 v{TMP+e}, v{TMP+e}, v{tb+2*i+1}", deps=[(r[i], 2)]) for i, e in enumerate(es)]
        c = Op(f"v_cvt_pk_bf16_f32 v{hs(pi)+grp}, v{TMP+es[0]}, v{TMP+es[1]}", deps=[(y[0], 1), (y[1], 1)])
        Gp = G[grp-3] if grp >= 3 else (prev[13 + (grp + 2) % 3] if prev else None)
        if Gp:
            for i in range(2):
                m[i].deps.append((Gp[0][i], 1)); p[i].deps.append((Gp[1][i], 1))
        G.append((d, y))
        ops += m + x + p + d + r + y + [c]
    mish_ops.G = G
    return ops
def ex_block(A, pi, send, ks=(0, 1)):
    l1, l2 = A.newlabel("L_ex"), A.newlabel("L_exe")
    A.e(f"s_bitcmp1_b32 s{s_w}, 0")
    A.e(f"s_cbranch_scc1 {l1}")
    for par in range(2):
        b = hs(pi) + (8 if par == 0 else 0)
        for k in ks:
            t = (f"ds_write_b128 v{vEW}, v[{b+4*k}:{b+4*k+3}] offset:{1024*k}" if send else f"ds_read_b128 v[{b+4*k}:{b+4*k+3}], v{vER} offset:{1024*k}")
            if par == 0: A.ds(t, f"ex{'s' if send else 'r'}{pi}")
            else: A.e(t)
        if par == 0:
            A.e(f"s_branch {l2}"); A.label(l1)
    A.label(l2)
def h_store_ops(pi):
    o = [Op(f"buffer_store_dwordx4 v[{hs(pi)+4*q}:{hs(pi)+4*q+3}], v{vL16}, s[{sWS}:{sWS+3}], s{s_hb} offen offset:{q*1024}{'' if 'plainH' in EXP else SC}", kind="vmem", tag=f"h{pi}") for q in range(4)]
    o.append(Op(f"s_add_u32 s{s_hb}, s{s_hb}, 4096", kind="salu"))
    return o
def reread_ops(pi, n):
    if 'rr' not in EXP: return []
    v = f"v_lshlrev_b32 v{TMP2}, 7, v1" if n == 2 else f"v_lshlrev_b32 v{TMP2}, 5, v{vFL}"
    return [Op(f"{v}\n    s_add_u32 s{s_t1}, s{s_hs}, {pi*4096}\n    buffer_load_dword v{TMP2+1}, v{TMP2}, s[{sWS}:{sWS+3}], s{s_t1} offen{SC}", kind="vmem", tag="rr", cost=12)]
def flag_ops(ev):
    return [Op(f"v_mov_b32 v{vS}, {ev+1}\n    s_add_u32 s{s_t1}, s{s_fi}, {ev*8192}\n    buffer_store_dword v{vS}, off, s[{sWS}:{sWS+3}], s{s_t1}{SC}", kind="vmem", tag="flag", cost=12)]
def bias_read(A, pi, BIAS=BIAS):
    for g in range(4):
        A.ds(f"ds_read_b128 v[{BIAS+4*g}:{BIAS+4*g+3}], v{vBI} offset:{256*pi + 32*g}", f"bias{pi}")
def a_reads(A, gs, ring):
    st, ks = gs // 12, gs % 12
    slot = ring.slot[st]; buf = ARING[(gs - AOFF) % 5]
    for rd in range(2):
        A.ds(f"ds_read_b64_tr_b16 v[{buf+2*rd}:{buf+2*rd+1}], v{vAR+slot//2} offset:{(slot%2)*SLOT + (16*ks+4*rd)*128}", f"a{gs}")

def pump(q, bud, maxv):
    u = nv = 0
    while q.q and q.ready(q.q[0]):
        o = q.q[0]
        if o.kind == "vmem":
            if nv >= maxv: break
            nv += 1
        if u and u + o.cost > bud: break
        if u == 0 and bud <= 0: break
        q.q.pop(0); q.emit(o); u += o.cost
    return u

ACCB, BIASB = HS + 32, HS + 16
BRING = [TMP + 4*i for i in range(5)]
def wimg_ops(n):
    kl, b = n // 2, n % 2
    m = Op(f"s_add_u32 m0, s{s_wl}, {(n % 9)*8192}" + (f"\n    s_add_u32 s{s_so}, s{s_rw+kl}, 128" if b else ""), kind="salu")
    return [m] + [Op(f"buffer_load_dwordx4 v{vWD+i}, s[{sW1}:{sW1+3}], s{s_so if b else s_rw+kl} offen offset:{i*1024} lds", kind="vmem", tag=f"W{kl}", deps=[(m, 2)]) for i in range(2)]
def a0_reads(A, gs):
    kl, ks = gs // 4, gs % 4
    for b in range(2):
        o = ((2*kl + b) % 9)*8192 + 16*ks*128
        base = vAR if o < 49152 else vAR + 1
        if o >= 49152: o -= 49152
        buf = (ARING if b == 0 else BRING)[gs % 5]
        for rd in range(2):
            A.ds(f"ds_read_b64_tr_b16 v[{buf+2*rd}:{buf+2*rd+1}], v{base} offset:{o + 512*rd}", f"a{gs}")
def flush_tags(A, memq, tg):
    while any(o.tag in tg for o in memq.q):
        o = memq.q.pop(0)
        while not memq.ready(o): A.e("s_nop 0")
        memq.emit(o)

def phase0(A):
    ring = Ring(); ring.slot = {}; ring.next = 6
    xo, wo = x_dma_ops(0), wimg_ops(0)
    emit_now(A, xo[:3]); emit_now(A, wo[:2])
    A.vmem(f"buffer_load_ushort v{MT}, v{MT+2}, s[{sT0}:{sT0+3}], s{s_t2} offen", "b1")
    A.e(f"s_mov_b32 s{s_line}, s{s_t2}")
    setup2(A)
    emit_now(A, wo[2:])
    xo2 = x_dma_ops(0); emit_now(A, xo2[:1] + xo2[3:])
    emit_now(A, wimg_ops(1))
    A.vmem(f"buffer_load_ushort v{MT+1}, v{MT+2}, s[{sT0}:{sT0+3}], s{s_line} offen offset:512", "b1")
    rest = []
    for kl in range(1, 5):
        rest.append(x_dma_ops(kl)); rest.append(wimg_ops(2*kl))
        if kl < 4: rest.append(wimg_ops(2*kl + 1))
    for g in rest[:N0]: emit_now(A, g)
    A.wait_vm("b1")
    A.e(f"v_lshlrev_b32 v{MT}, 16, v{MT}")
    A.e(f"v_lshlrev_b32 v{MT+1}, 16, v{MT+1}")
    A.e(f"v_lshlrev_b32 v{MT+2}, 2, v0")
    A.e(f"v_add_u32 v{MT+2}, {M_BIAS}, v{MT+2}")
    A.ds(f"ds_write_b32 v{MT+2}, v{MT}", "bw")
    A.ds(f"ds_write_b32 v{MT+2}, v{MT+1} offset:1024", "bw")
    A.slow = []
    A.wait_lg("bw")
    A.e("s_barrier")
    stamp(A, 2)
    memq = Filler(A)
    for g in rest[N0:]: memq.add(g)
    bias_read(A, 0); bias_read(A, 1, BIASB); a0_reads(A, 0); x_read(A, 0)
    for gs in range(1, 4): a0_reads(A, gs)
    xrd = {0: [1], 4: [2], 8: [3], 12: [4], 16: [5, 6], 20: [7, 8]}
    done = {}
    for gs in range(36):
        order = [(0, 0), (0, 1), (1, 0), (1, 1)] if gs < 35 else [(1, 0), (1, 1), (0, 0), (0, 1)]
        for q, (b, rb) in enumerate(order):
            if gs == 0 and q == 0: A.wait_lg(["bias1", "a0", "xr0"])
            acc = (ACC if b == 0 else ACCB) + 16*rb
            cin = (BIAS if b == 0 else BIASB) if gs == 0 else acc
            dst = TMP + 16*rb if (gs == 35 and b == 0) else acc
            buf = (ARING if b == 0 else BRING)[gs % 5]
            A.e(f"v_mfma_f32_32x32x16_bf16 v[{dst}:{dst+15}], v[{buf}:{buf+3}], {xreg(rb, gs)}, v[{cin}:{cin+15}]")
            if gs == 35: done[(b, rb)] = A.n - 1
            if q == 0:
                if gs % 4 == 0:
                    j = gs // 4
                    tg = ([f"W{j+1}"] if j < 8 else ["st6"]) + [f"x{k}" for k in xrd.get(gs, [])]
                    flush_tags(A, memq, tg)
                    A.wait_vm(tg)
                    if gs == 24: A.wait_lg("xr8")
                    A.e("s_barrier")
                    if j + 5 <= 8: memq.add(x_dma_ops(j + 5))
                    for n in (2*j + 7, 2*j + 8):
                        if 9 <= n <= 17: memq.add(wimg_ops(n))
                    if gs == 24: ring.free += [3, 4, 5]
                    if gs == 28: ring.free += [0]
                    for k in ring.alloc(G0 + 18): memq.add(w1_dma_ops(k, ring.slot[k]))
                if gs % 2 == 0:
                    A.wait_lg([f"a{gs+1}", f"a{gs+2}", f"xr{(gs+1)//4}", f"xr{(gs+2)//4}"] if gs < 34 else ["a35", "a72"])
                if gs + 4 < 36: a0_reads(A, gs + 4)
                else: a_reads(A, 72 + gs - 32, ring)
            if q == 1:
                for k in xrd.get(gs, []): x_read(A, k)
                if gs == 22: bias_read(A, 2)
            nv = sum(o.kind == "vmem" for o in memq.q)
            if q in (1, 3) or (q == 2 and nv > PB0): pump(memq, 40, 1)
    return ring, memq, done

def p1(A):
    if 'single0' not in EXP: return p1_rest(A, *phase0(A))
    return p1_old(A)
def p1_old(A):
    nsteps = 216
    ring = Ring()
    for k in FIRST[:2]: emit_now(A, first_ops(k))
    A.vmem(f"buffer_load_ushort v{MT}, v{MT+2}, s[{sT0}:{sT0+3}], s{s_t2} offen", "b1")
    A.vmem(f"buffer_load_ushort v{MT+1}, v{MT+2}, s[{sT0}:{sT0+3}], s{s_t2} offen offset:512", "b1")
    for k in FIRST[2:4]: emit_now(A, first_ops(k))
    rw_entries(A, 2, 9)
    setupA(A)
    for k in FIRST[4:N2]: emit_now(A, first_ops(k))
    class Cap:
        def __init__(s): s.l = []
        def e(s, t): s.l.append(t)
    cap = Cap(); setupB(cap); A.late = cap.l
    if 'rst' in EXP: stamp(A, 5)
    A.wait_vm("b1")
    if 'rst' in EXP: stamp(A, 6)
    A.e(f"v_lshlrev_b32 v{MT}, 16, v{MT}")
    A.e(f"v_lshlrev_b32 v{MT+1}, 16, v{MT+1}")
    A.e(f"v_lshlrev_b32 v{MT+2}, 2, v0")
    A.e(f"v_add_u32 v{MT+2}, {M_BIAS}, v{MT+2}")
    A.ds(f"ds_write_b32 v{MT+2}, v{MT}", "bw")
    A.ds(f"ds_write_b32 v{MT+2}, v{MT+1} offset:1024", "bw")
    A.slow = []
    A.e(f"s_lshl_b32 s{s_t0}, s{s_w}, 2")
    A.e(f"s_add_u32 s{s_t0}, s{s_t0}, {SBAR}")
    A.e(f"v_mov_b32 v{vSA}, s{s_t0}")
    A.e(f"v_mov_b32 v{vS}, 0")
    A.e(f"v_and_b32 v{vSR}, 3, v1")
    A.e(f"v_lshlrev_b32 v{vSR}, 2, v{vSR}")
    A.e(f"v_add_u32 v{vSR}, {SBAR}, v{vSR}")
    A.ds(f"ds_write_b32 v{vSA}, v{vS}", "bw")
    A.wait_vm(["x0", "W0"]); A.wait_lg("bw")
    if 'rst' in EXP:
        stamp(A, 7); A.e("s_barrier"); stamp(A, 2); stamp_flush(A); A.e("s_endpgm")
    A.e("s_barrier")
    if 'p2st' not in EXP: stamp(A, 2)
    bias_read(A, 0); a_reads(A, 0, ring); x_read(A, 0)
    for gs in range(1, 4): a_reads(A, gs, ring)
    memq = Filler(A); valq = Filler(A); stq = Filler(A)
    done = {}
    xsched = {0: ([1], [1]), 4: ([2], [2]), 8: ([3], [3]), 12: ([4], [4]), 16: ([5], [5]), 20: ([6], [6]), 24: ([7, 8], [7, 8]), 28: ([], [])}
    xdma = {0: ["x5", "W5"], 4: ["x6", "W6"], 8: ["x7", "W7"], 12: ["x8", "W8"]}
    for k in FIRST[N2:]: memq.add(first_ops(k))
    return p1_loop(A, 0, ring, memq, valq, stq, done, xsched, xdma)
def p1_rest(A, ring, memq, done):
    return p1_loop(A, 72, ring, memq, Filler(A), Filler(A), done, {}, {})
def p1_loop(A, gs0, ring, memq, valq, stq, done, xsched, xdma):
    nsteps = 216
    dbl = gs0 == 72
    sent0 = False
    for gs in range(gs0, nsteps):
        pair, s = gs // 36, gs % 36
        st, ks = gs // 12, gs % 12
        if gs == 72 and not (EXP & {'p1st', 'p2st'}): stamp(A, 3)
        if 'p1st' in EXP and gs % 36 == 0 and gs: stamp(A, 1 + gs//36)
        if s == 0 and pair > 0:
            pp = pair - 1
            if pair == 3: valq.add(pre_p2_ops())
            if dbl and pair == 2:
                m0 = mish_ops(0, [lambda: done[(0, 0)], lambda: done[(0, 1)]]); valq.add(m0)
                valq.add(mish_ops(1, [lambda: done[(1, 0)], lambda: done[(1, 1)]], TMP=ACCB, prev=mish_ops.G))
            if 'nomish' not in EXP and not (dbl and pair == 2): valq.add(mish_ops(pp, [lambda p=pp: done.get((p, 0)), lambda p=pp: done.get((p, 1))]))
        if gs == 150: memq.add([Op(f"buffer_load_dword v{vCN}, off, s[{sDBG}:{sDBG+3}], 0{SC}", kind="vmem", tag="cnt")])
        for rb in range(2):
            if s == 0 and rb == 0: A.wait_lg([f"bias{pair}", f"a{gs}", "xr0"])
            acc = ACC + 16*rb
            cin = BIAS if s == 0 else acc
            dst = (TMP + 16*rb) if s == 35 else acc
            if s == 35: assert not valq.q
            buf = ARING[(gs - AOFF) % 5]
            A.e(f"v_mfma_f32_32x32x16_bf16 v[{dst}:{dst+15}], v[{buf}:{buf+3}], {xreg(rb, s)}, v[{cin}:{cin+15}]")
            if s == 35: done[(pair, rb)] = A.n - 1
            n0 = A.n
            if rb == 0:
                bar = False
                if gs in xdma:
                    for k in xdma[gs]: memq.add(first_ops(k))
                if gs in xsched:
                    xs, ws = xsched[gs]
                    tg = [f"x{k}" for k in xs] + [f"W{k}" for k in ws]
                    while any(o.tag in tg for o in memq.q) or (memq.q and gs < FLUSH):
                        o = memq.q.pop(0)
                        while not memq.ready(o): A.e("s_nop 0")
                        memq.emit(o)
                    A.wait_vm(tg)
                    if gs == 28: A.wait_lg("xr8")
                    A.e("s_barrier"); bar = True
                elif SOFT and ks == SD1 and gs > 28:
                    tags = [f"st{st+1}"]
                    if gs + 8 - SD1 == 212: tags += ["cnt"]
                    A.wait_vm(tags)
                    if s + 8 - SD1 == 8 and pair >= 2: A.wait_lg(f"exs{pair-2}")
                    if s + 8 - SD1 == 20 and pair >= 2: A.wait_lg(f"exr{pair-2}")
                    sb_arrive(A)
                elif SOFT and ks == 8:
                    sb_check(A); bar = True
                    if gs == 212: check_counter(A)
                elif ks == 8:
                    tags = [f"st{st+1}"]
                    if gs == 188: tags += ["cnt", "h2"]
                    A.wait_vm(tags)
                    if s == 8 and pair >= 2: A.wait_lg(f"exs{pair-2}")
                    if s == 20 and pair >= 2: A.wait_lg([f"exr{pair-2}", "exs0"])
                    if s == 32: A.wait_lg("exr0")
                    if dbl and gs == 80: ring.free += [1, 2]
                    if dbl and gs == 92: assert sent0
                    A.e("s_nop 0" if 'nobar' in EXP else "s_barrier"); bar = True
                    if gs == 188:
                        check_counter(A); stq.q = flag_ops(0) + stq.q
                    if gs == 212: memq.add(flagcopy_ops(0))
                if bar:
                    for k in range(st + 1):
                        if 12*k + 11 < gs: ring.release(k)
                    if gs == 28: ring.free += [3, 4, 5]
                    for k in ring.alloc(G0 + 18):
                        if not ('now1' in EXP and k >= 6): memq.add(w1_dma_ops(k, ring.slot[k]) if k < 18 else w2_dma_ops(k, ring.slot[k]))
                if gs % 2 == 0:
                    A.wait_lg([f"a{gs+1}", f"a{gs+2}"] + ([f"xr{(gs+1)//4}", f"xr{(gs+2)//4}"] if pair == 0 else []) + ([f"exr{pair-2}"] if s == 10 else []) + (["exr0"] if gs == 94 else []))
                if s == (22 if (dbl and pair == 2) else 10) and pair >= 2: hst = h_store_ops(pair - 2)
                if pair >= 2 and s in ((22, 25, 28, 31) if (dbl and pair == 2) else HSITES):
                    if 'nost' not in EXP: stq.add([hst.pop(0)])
                    if len(hst) == 1: stq.add([hst.pop(0)])
                if gs + 4 < nsteps: a_reads(A, gs + 4, ring)
                else:
                    for j in (2*(gs - 212), 2*(gs - 212) + 1):
                        if j < LEAD: a2_read(A, j, ring)
                if gs in xsched:
                    for k in xsched[gs][0]: x_read(A, k)
                if SOFT and ks == 7 and gs > 28: sb_read(A)
                if s == (20 if (dbl and pair == 2) else 8) and pair >= 2: ex_block(A, pair - 2, False)
                if s == 22 and pair + 1 < 6: bias_read(A, pair + 1)
                bud = 24 - 4*(A.n - n0)
                if pair == 0:
                    u = pump(memq, 40, P0V)
                elif 'oldpace' in EXP:
                    u = pump(stq, bud, 1)
                    if u == 0: u += pump(memq, max(bud - u, 4 if len(memq.q) > 12 else 0), 1)
                else:
                    nv = sum(o.kind == "vmem" for o in memq.q)
                    left = (7 - ks) % 12
                    u = pump(memq, bud, 1 if (gs % 2 == 1 or nv > left//2 + BK1) else 0) if bud > 0 else 0
                valq.fill(max(0, bud - u), allow_trans=False, window=30)
            else:
                u = 0
                if pair == 0:
                    if sum(o.kind == "vmem" for o in memq.q) > PB1: u = pump(memq, 40, P0V)
                elif 'oldpace' in EXP:
                    if len(memq.q) > 10: u = pump(memq, 8, 1)
                else:
                    u = pump(stq, 12, 1)
                    if u == 0 and sum(o.kind == "vmem" for o in memq.q) > BK2: u = pump(memq, 8, 1)
                if pair == 0 and gs >= 1:
                    n = 0
                    while A.late and (n < 4 or A.late[0].startswith(("s_cselect", "s_addc"))):
                        A.e(A.late.pop(0)); n += 1
                if gs == 35: assert not A.late
                rem = 33 - s
                work = valq.total()
                bud = 24 - u
                while work - bud > max(rem, 0)*PCAP and bud < (64 if (dbl and pair == 2) else 40): bud += 4
                if dbl and pair == 2:
                    left0 = sum(o.cost for o in m0 if o.pos is None)
                    while left0 - bud > max(17 - s, 0)*PCAP and bud < 64 and s <= 18: bud += 4
                    if s == 18 and left0: bud = left0 + 64
                fill_odd(valq, bud, window=30)
                if dbl and pair == 2 and not sent0 and all(o.pos is not None for o in m0):
                    ex_block(A, 0, True); sent0 = True
                if s == 34:
                    valq.drain()
                if s == 35 and pair >= 1: ex_block(A, pair - 1, True, (0,) if SPLITW else (0, 1))
                if SPLITW and s == 1 and pair >= 2: ex_block(A, pair - 2, True, (1,))
    valq.add(mish_ops(5, [lambda: done.get((5, 0)), lambda: done.get((5, 1))]))
    return ring, memq, valq, stq
HSITES = eval(os.environ.get('HSITES', '(10, 16, 24, 30)'))
SPLITW = int(os.environ.get('SPLITW', 1))
PSL = int(os.environ.get('PSL', 0))
LPOLL = int(os.environ.get('LPOLL', 0))
BK1 = int(os.environ.get('BK1', 2))
BK2 = int(os.environ.get('BK2', 9))
SD1 = int(os.environ.get('SD1', 5))
SD2 = int(os.environ.get('SD2', 7))
PCAP = int(os.environ.get('PCAP', 32))

SEQ = [(0, 1), (0, 2), (0, 3), (0, 4), (0, 0), (0, 5), (1, 0), (1, 1), (1, 2), (2, 0), (2, 1), (2, 2), (1, 3), (2, 3), (1, 4), (2, 4), (1, 5), (2, 5)]
IMP = [k for k, (i, p) in enumerate(SEQ) if not (i == 0 and p > 0)]
aR = 208
LEAD = 7
def acc2(t): return [32, 48, 96, 112, 224, 240][t]
def hreg(step):
    k, j = step // 4, step % 4
    if k in IMP:
        b = 16*IMP.index(k) + 4*j
        return f"a[{b}:{b+3}]"
    b = hs(SEQ[k][1]) + 4*j
    return f"v[{b}:{b+3}]"
def w2_dma_ops(gst, slot):
    idx, pi = SEQ[gst - G0]
    tag = f"st{gst}"
    m0a = Op(f"s_add_u32 m0, s{s_w2l}, {slot*SLOT}", kind="salu")
    so = Op(f"s_add_u32 s{s_so}, s{s_sl+idx}, {pi*64*1152}", kind="salu")
    o = [m0a, so]
    for i in range(4):
        o.append(Op(f"buffer_load_dwordx4 v{vW2D+i}, s[{sW2}:{sW2+3}], s{s_so} offen offset:{i*1024} lds", kind="vmem", tag=tag, deps=[(m0a, 2)]))
    m0b = Op(f"s_add_u32 m0, s{s_w2l}, {slot*SLOT + 4096}", kind="salu")
    o.append(m0b)
    for i in range(4, 6):
        o.append(Op(f"buffer_load_dwordx4 v{vW2D+i}, s[{sW2}:{sW2+3}], s{s_so} offen offset:{(i&3)*1024} lds", kind="vmem", tag=tag, deps=[(m0b, 2)]))
    return o
def h_load_ops(k):
    idx, pi = SEQ[k]
    return [Op(f"s_add_u32 s{s_t2}, s{s_hs+idx}, {pi*4096}", kind="salu")] + \
           [Op(f"buffer_load_dwordx4 {hreg(4*k+j)}, v{vL16}, s[{sWS}:{sWS+3}], s{s_t2} offen offset:{j*1024}{SC}", kind="vmem", tag=f"st{G0+k}") for j in range(4)]
def flagcopy_ops(ev):
    return [Op(f"s_lshl_b32 s{s_val}, s{s_w}, 8\n    s_add_u32 m0, s{s_val}, {M_FL}\n    s_and_b32 s{s_val}, s{s_fi}, 0xffffff80\n    s_add_u32 s{s_val}, s{s_val}, {ev*8192}\n"
               f"    buffer_load_dword v{vFL}, s[{sWS}:{sWS+3}], s{s_val} offen sc1 lds", kind="vmem", tag="fc", cost=20)]
def pre_p2_ops():
    o = [Op(f"v_and_b32 v{vFL}, 31, v1\n    v_lshlrev_b32 v{vFL}, 2, v{vFL}", cost=8),
         Op(f"v_and_b32 v{vFA}, 3, v1\n    v_lshlrev_b32 v{vFA}, 4, v{vFA}\n    s_mul_i32 s{s_val}, s{s_w}, 260\n    s_add_u32 s{s_val}, s{s_val}, {M_FL}\n    v_add_u32 v{vFA}, s{s_val}, v{vFA}", cost=20),
         Op(f"v_mov_b32 v{vFC}, 0\n    s_lshl_b32 s{s_val}, s{s_w}, 8\n    s_add_u32 s{s_val}, s{s_val}, {M_FL}\n    v_lshl_add_u32 v{vFC+1}, v1, 2, s{s_val}\n    ds_write_b32 v{vFC+1}, v{vFC}", cost=20, kind="ds", tag="fz")]
    return o
def check(A, lane_sgpr, ev):
    lab = A.newlabel("L_chk")
    A.e(f"v_readlane_b32 s{s_val}, v{vFC}, s{lane_sgpr}")
    A.e(f"s_movk_i32 s{s_need}, {ev*8192}")
    A.e(f"s_mov_b32 s{s_lane}, s{lane_sgpr}")
    A.e(f"s_cmp_eq_u32 s{s_val}, {ev+1}")
    A.e(f"s_cbranch_scc1 {lab}")
    A.e(f"s_call_b64 s[{s_ret}:{s_ret+1}], L_poll")
    A.label(lab)
def check_counter(A):
    lab = A.newlabel("L_chk")
    A.e(f"v_readfirstlane_b32 s{s_val}, v{vCN}")
    A.e("s_nop 0")
    A.e(f"s_cmp_ge_u32 s{s_val}, 64")
    A.e(f"s_cbranch_scc1 {lab}")
    A.e(f"s_call_b64 s[{s_ret}:{s_ret+1}], L_pollc")
    A.label(lab)
def poll_sub(A):
    A.label("L_poll")
    A.e(f"s_mov_b32 s{s_t0}, 0x20000")
    A.e(f"v_and_b32 v{TMP2}, 3, v1")
    A.e(f"v_lshlrev_b32 v{TMP2}, 4, v{TMP2}")
    A.label("L_poll_loop")
    A.e("s_sleep 2")
    A.e(f"s_and_b32 s{s_val}, s{s_fi}, 0xffffffcf")
    A.e(f"s_add_u32 s{s_val}, s{s_val}, s{s_need}")
    A.e(f"buffer_load_dword v{TMP2+1}, v{TMP2}, s[{sWS}:{sWS+3}], s{s_val} offen{SC}")
    A.e("s_waitcnt vmcnt(0)")
    A.e(f"v_readlane_b32 s{s_val}, v{TMP2+1}, s{s_lane}")
    A.e(f"s_sub_u32 s{s_t0}, s{s_t0}, 1")
    A.e("s_cbranch_scc1 L_poll_out")
    A.e(f"s_cmp_eq_u32 s{s_val}, 0")
    A.e("s_cbranch_scc1 L_poll_loop")
    A.label("L_poll_out")
    A.e(f"s_setpc_b64 s[{s_ret}:{s_ret+1}]")
    A.label("L_pollc")
    A.e(f"s_mov_b32 s{s_t0}, 0x20000")
    A.label("L_pollc_loop")
    A.e("s_sleep 2")
    A.e(f"buffer_load_dword v{TMP2+1}, off, s[{sDBG}:{sDBG+3}], 0{SC}")
    A.e("s_waitcnt vmcnt(0)")
    A.e(f"v_readfirstlane_b32 s{s_val}, v{TMP2+1}")
    A.e(f"s_sub_u32 s{s_t0}, s{s_t0}, 1")
    A.e("s_cbranch_scc1 L_pollc_out")
    A.e(f"s_cmp_lt_u32 s{s_val}, 64")
    A.e("s_cbranch_scc1 L_pollc_loop")
    A.label("L_pollc_out")
    A.e(f"s_setpc_b64 s[{s_ret}:{s_ret+1}]")
TM0 = 360
def jmap(j):
    if j < TM0: return j // 6, j % 6
    return 60 + (j - TM0) % 12, (j - TM0) // 12
def a2_read(A, j, ring):
    step, t = jmap(j)
    k, ks = step // 4, step % 4
    slot = ring.slot[G0 + k]; buf = aR + 4*(j % 12)
    for rd in range(2):
        A.ds(f"ds_read_b64_tr_b16 a[{buf+2*rd}:{buf+2*rd+1}], v{vA2+2*(slot//2)+(t&1)} offset:{(slot%2)*SLOT + (16*ks+8*rd)*384 + t*64}", f"f{j}")
PKR = [HS + 4*i for i in range(12)]
vOW = TMP + 12
def export_ops(t, done):
    ops = []
    for kk in range(2):
        p = 2*t + kk
        if p >= 9: continue
        a = acc2(t) + 8*kk; Q = PKR[p]
        c = [Op(f"v_cvt_pk_bf16_f32 v{Q+d}, v{a+2*d}, v{a+2*d+1}", deps=[(done, 13)]) for d in range(4)]
        sw = Op(f"v_permlane32_swap_b32 v{Q}, v{Q+2}\n    v_permlane32_swap_b32 v{Q+1}, v{Q+3}", cost=8, deps=[(x, 3) for x in c])
        st = Op(f"buffer_store_dwordx4 v[{Q}:{Q+3}], v{vL16}, s[{sWS}:{sWS+3}], s{s_sl + p//3} offen offset:{(p%3)*1024}{SC}", kind="vmem", tag="xp", deps=[(sw, 1)])
        ops += c + [sw, st]
        if p == 8:
            ops += [Op(f"v_permlane32_swap_b32 v{acc2(4)+8+e}, v{acc2(4)+12+e}", deps=[(done, 13)]) for e in range(4)]
    return ops

vYA, vYF, vYD, vGT, vRow = TMP, TMP + 4, TMP + 1, TMP + 8, TMP + 10
def y_prep_ops():
    t = [f"s_mul_i32 s{s_line}, s{s_r}, 192", f"s_mul_i32 s{s_val}, s{s_kq}, 48", f"s_add_u32 s{s_line}, s{s_line}, s{s_val}",
         f"s_mul_i32 s{s_val}, s{s_line}, 7282", f"s_lshr_b32 s{s_val}, s{s_val}, 16", f"v_add_u32 v{vYA}, s{s_val}, v1", f"v_min_u32 v{vYA}, 63, v{vYA}",
         f"s_lshl_b32 s{s_val}, s{s_m}, 2", f"s_add_u32 s{s_val}, s{s_val}, s{s_w}", f"v_mov_b32 v{vYD}, s{s_val}", "v_cmp_lt_u32 vcc, 6, v1",
         f"s_lshl_b32 s{s_upos}, s{s_val}, 5", f"s_mov_b32 s{s_yd}, 0", f"v_cndmask_b32 v{vYA}, v{vYA}, v{vYD}, vcc", f"v_lshlrev_b32 v{vYA}, 4, v{vYA}"]
    a = Op("\n    ".join(t), cost=60)
    t = [f"v_lshrrev_b32 v{vYD}, 2, v1", f"v_lshlrev_b32 v{vYD}, 12, v{vYD}", f"v_and_b32 v{vRow}, 3, v1", f"v_lshl_add_u32 v{vYD}, v{vRow}, 4, v{vYD}",
         f"v_and_b32 v{vRow}, 31, v1", f"v_lshlrev_b32 v{vRow+1}, 2, v{vRow}"]
    b = Op("\n    ".join(t), cost=24)
    t = [f"v_mov_b32 v{vYF+k}, 0" for k in range(4)] + [f"ds_write_b128 v{vEW}, v[{vYF}:{vYF+3}]"]
    c = Op("\n    ".join(t), cost=24, kind="ds", tag="yz")
    return [a, b, c]
vFW, vFR = TMP + 12, TMP + 13
def exp_prep_op():
    t = [f"s_mul_i32 s{s_need}, s{s_w}, 3072", f"s_add_u32 s{s_need}, s{s_need}, {WS_P}"]
    for q in range(3):
        t += [f"s_add_u32 s{s_val}, s{s_kq}, {q+1}", f"s_and_b32 s{s_val}, s{s_val}, 3",
              f"s_add_u32 s{s_lane}, s{s_pb}, s{s_val}", f"s_lshl_b32 s{s_lane}, s{s_lane}, 2", f"s_add_u32 s{s_lane}, s{s_lane}, s{s_kq}",
              f"s_mul_i32 s{s_lane}, s{s_lane}, 12288", f"s_add_u32 s{s_sl+q}, s{s_lane}, s{s_need}",
              f"s_add_u32 s{s_lane}, s{s_pb}, s{s_kq}", f"s_lshl_b32 s{s_lane}, s{s_lane}, 2", f"s_add_u32 s{s_lane}, s{s_lane}, s{s_val}",
              f"s_mul_i32 s{s_lane}, s{s_lane}, 12288", f"s_add_u32 s{s_hs+q}, s{s_lane}, s{s_need}"]
    t += [f"v_min_u32 v{vFR}, 2, v1", f"s_add_u32 s{s_val}, s{s_kq}, 1", f"v_add_u32 v{vFR}, s{s_val}, v{vFR}", f"v_and_b32 v{vFR}, 3, v{vFR}",
          f"s_lshl_b32 s{s_val}, s{s_kq}, 2", f"s_lshl_b32 s{s_lane}, s{s_w}, 7", f"s_add_u32 s{s_val}, s{s_val}, s{s_lane}",
          f"v_lshlrev_b32 v{vFW}, 9, v{vFR}", f"v_add_u32 v{vFW}, s{s_val}, v{vFW}",
          f"s_lshl_b32 s{s_val}, s{s_kq}, 9", f"s_add_u32 s{s_val}, s{s_val}, s{s_lane}", f"v_lshlrev_b32 v{vFR}, 2, v{vFR}", f"v_add_u32 v{vFR}, s{s_val}, v{vFR}"]
    h = len(t)//3
    return [Op("\n    ".join(t[:2+12]), cost=56), Op("\n    ".join(t[14:38]), cost=96), Op("\n    ".join(t[38:]), cost=52)]
def y_loads(A, YT):
    A.e(f"s_lshl_b32 s{s_t1}, s{s_line}, 12")
    A.e(f"s_lshl_b32 s{s_t0}, s{s_upos}, 1")
    A.e(f"s_add_u32 s{s_t1}, s{s_t1}, s{s_t0}")
    A.e(f"s_add_u32 s{s_t1}, s{s_t1}, {WS_Y}")
    A.e(f"s_mul_i32 s{s_val}, s{s_w}, 3072")
    for i in range(3):
        A.e(f"s_add_u32 m0, s{s_val}, {YT + 1024*i}")
        if i: A.e(f"s_add_u32 s{s_t1}, s{s_t1}, 65536")
        else: A.e(f"s_lshl_b32 s{s_t0}, s{s_upos}, 2")
        A.e(f"buffer_load_dwordx4 v{vYD}, s[{sWS}:{sWS+3}], s{s_t1} offen sc1 lds")
    A.e(f"s_add_u32 s{s_t0}, s{s_t0}, {WS_GT}")
    A.e(f"buffer_load_dword v{vGT}, v{vRow+1}, s[{sWS}:{sWS+3}], s{s_t0} offen{SC}")
def y_test(A):
    A.e(f"v_and_b32 v{vYF}, v{vYF}, v{vYF+1}")
    A.e(f"v_and_b32 v{vYF+2}, v{vYF+2}, v{vYF+3}")
    A.e(f"v_and_b32 v{vYF}, v{vYF}, v{vYF+2}")
    A.e(f"v_cmp_ne_u32 vcc, 1, v{vYF}")

def p2(A, ring, memq, valq, stq):
    N = 432
    hl = {1: [4], 41: [6], 65: [7], 89: [8], 113: [9], 137: [10], 161: [11], 209: [12, 13], 233: [14], 257: [15], 281: [16, 17]}
    checks = {41: 0, 209: 1, 281: 2}
    flags = {113: ("h4", 1), 209: ("h5", 2)}
    hsites = {21: 4, 33: 4, 45: 4, 57: 4, 117: 5, 129: 5, 141: 5, 153: 5}
    hst = {4: h_store_ops(4), 5: h_store_ops(5)}
    tdone = {}
    sent5 = False
    A.wait_lg(["f0", "f1"])
    for j in range(N):
        if 'p2st' in EXP:
            if j % 72 == 0: stamp(A, 1 + j//72)
        else:
            if j == 0: stamp(A, 7 if 'p1st' in EXP else 4)
            if j == 120 and 'p1st' not in EXP: stamp(A, 5)
        step, t = jmap(j)
        k = step // 4
        acc = acc2(t); buf = aR + 4*(j % 12)
        A.e(f"v_mfma_f32_32x32x16_bf16 v[{acc}:{acc+15}], a[{buf}:{buf+3}], {hreg(step)}, {'0' if step == 0 else f'v[{acc}:{acc+15}]'}")
        if step == 71:
            tdone[t] = A.n - 1
            valq.add(export_ops(t, lambda t=t: tdone[t]))
        n0 = A.n
        isbar = (j + LEAD) % 24 == 0 and j < TM0
        if SOFT and (j + SD2 + LEAD) % 24 == 0 and j + SD2 < TM0:
            jb = j + SD2
            tags = [f"st{G0+k+1}"]
            if jb in flags: tags.append(flags[jb][0])
            if jb == 353: tags += [f"st{G0+16}", f"st{G0+17}"]
            A.wait_vm(tags)
            if jb == 17: A.wait_lg("exs4")
            if jb == 41: A.wait_lg("exr4")
            if jb == 113:
                assert sent5; A.wait_lg("exs5")
            if jb == 137: A.wait_lg("exr5")
            sb_arrive(A)
        if isbar and SOFT: sb_check(A)
        if isbar and not SOFT:
            tags = [f"st{G0+k+1}"]
            if j in flags: tags.append(flags[j][0])
            if j == 353: tags += [f"st{G0+16}", f"st{G0+17}"]
            A.wait_vm(tags)
            if j == 17: A.wait_lg("exs4")
            if j == 41: A.wait_lg("exr4")
            if j == 113:
                assert sent5; A.wait_lg("exs5")
            if j == 137: A.wait_lg("exr5")
            A.e("s_nop 0" if 'nobar' in EXP else "s_barrier")
        if isbar:
            if j in flags: stq.q = flag_ops(flags[j][1]) + stq.q
            ring.release(G0 + k - 1)
            if j in checks:
                assert not any(o.tag == "fc" for o in memq.q)
                A.wait_lg("fcr")

                if 'nochk' not in EXP: check(A, s_rr, checks[j]); check(A, s_rr + 1, checks[j])
            if j + 48 in checks: memq.add(flagcopy_ops(checks[j + 48]))
            for g in ring.alloc(G0 + 18):
                if 'now2' not in EXP: memq.add(w2_dma_ops(g, ring.slot[g]))
            if j == 161: valq.add(y_prep_ops())
            if j == 329:
                assert not memq.q
                valq.add(exp_prep_op())
        if j == YC:
            memq.add([Op(f"s_add_u32 m0, s{s_wl}, {EX}\n    s_mov_b32 s{s_val}, {F_Y}\n    buffer_load_dwordx4 v{vYA}, s[{sWS}:{sWS+3}], s{s_val} offen sc1 lds", kind="vmem", tag="yc", cost=12)])
        if j == YR + 4:
            assert not memq.q
            A.wait_lg("yr")
            y_test(A)
            A.e("s_nop 0")
            A.e("s_cbranch_vccnz L_ynot")
            y_loads(A, ring.slot[G0 + 12]*SLOT)
            A.e(f"s_mov_b32 s{s_yd}, 1")
            A.label("L_ynot")
        for x in ([] if 'noh' in EXP else hl.get(j, [])): memq.add(h_load_ops(x))
        if j % 3 == 0:
            A.wait_lg([f"f{j+1}", f"f{j+2}", f"f{j+3}"] + (["exr4"] if j == 21 else []) + (["exr5"] if j == 117 else []))
        if j in hsites:
            h = hst[hsites[j]]
            stq.add([h.pop(0)])
            if len(h) == 1: stq.add([h.pop(0)])
        if j < PR:
            if j % 2 == 1:
                a2_read(A, j + LEAD, ring); a2_read(A, j + LEAD + 1, ring)
            elif j == 0: a2_read(A, LEAD, ring)
        elif j + LEAD < N and not (PR and j == PR): a2_read(A, j + LEAD, ring)
        if SOFT and (j + 3 + LEAD) % 24 == 0 and j + 3 < TM0: sb_read(A)
        if SPLITW and j == 3: ex_block(A, 4, True, (1,))
        if j == 17: ex_block(A, 4, False)
        if j == 113: ex_block(A, 5, False)
        if j + 4 in checks: A.ds(f"ds_read_b32 v{vFC}, v{vFA}", "fcr")
        if j == YR: A.ds(f"ds_read_b128 v[{vYF}:{vYF+3}], v{vEW}", "yr")
        if not valq.q and not sent5 and j > 41:
            ex_block(A, 5, True, (0,) if SPLITW else (0, 1)); sent5 = j
        if SPLITW and sent5 and j == sent5 + 2: ex_block(A, 5, True, (1,))
        bud = max(0, 24 - 4*(A.n - n0))
        u = pump(stq, bud, 1)
        left = 22 - ((j + LEAD) % 24)
        if u == 0: u = pump(memq, bud, 1 if (j % 2 == (1 if j < PR else 0) or 2*sum(x.kind == "vmem" for x in memq.q) > left) else 0)
        if valq.q and j < PR and j % 2 == 1:
            valq.fill(max(0, bud - u), allow_trans=False, window=30)
        elif valq.q:
            b2 = max(0, bud - u)
            if j < 110 and valq.total() > MC*(MEND - j): b2 += 4
            if MEND <= j < 161: b2 = 1000
            if j > 161 and u == 0 and valq.q[0].cost > b2 and valq.ready(valq.q[0]): b2 = valq.q[0].cost
            fill_odd(valq, b2, window=(30 if j < 161 else 6))
    assert not memq.q and not stq.q
    if 'p1st' not in EXP: stamp(A, 7 if 'p2st' in EXP else 6)
    valq.drain()
PR = int(os.environ.get('PR', 0))
MEND = 98
MC = int(os.environ.get('MC', 11))
YC = int(os.environ.get('YC', 354))
YR = int(os.environ.get('YR', 400))

def tail(A, ring):
    YT = ring.slot[G0 + 12]*SLOT
    V = 32
    OWNR = [acc2(4) + 8, acc2(5), acc2(5) + 8]
    A.e(f"v_mov_b32 v{vS}, 1")
    A.wait_vm("xp")
    A.vmem(f"buffer_store_dword v{vS}, v{vFW}, s[{sWS}:{sWS+3}], s{s_fp} offen{SC}", "fl")
    if 'tst' in EXP: stamp(A, 2)
    A.e(f"s_cmp_lg_u32 s{s_yd}, 0")
    A.e("s_cbranch_scc1 L_py_out")
    A.e(f"s_mov_b32 s{s_t0}, 0x20000")
    A.e(f"s_mov_b32 s{s_t1}, {F_Y}")
    A.label("L_py")
    A.e(f"buffer_load_dwordx4 v[{vYF}:{vYF+3}], v{vYA}, s[{sWS}:{sWS+3}], s{s_t1} offen{SC}")
    A.e("s_waitcnt vmcnt(0)")
    y_test(A)
    A.e(f"s_sub_u32 s{s_t0}, s{s_t0}, 1")
    A.e("s_cbranch_scc1 L_py_go")
    A.e("s_sleep 1")
    A.e("s_cbranch_vccnz L_py")
    A.label("L_py_go")
    y_loads(A, YT)
    A.e("s_waitcnt vmcnt(0)")
    A.label("L_py_out")
    if 'tst' in EXP: stamp(A, 3)
    if LPOLL:
        A.e(f"s_lshl_b32 s{s_val}, s{s_w}, 8")
        A.e(f"s_add_u32 m0, s{s_val}, {M_FL}")
        A.e(f"v_lshl_add_u32 v{V+2}, v1, 2, m0")
        A.e(f"buffer_load_dword v{vFR}, s[{sWS}:{sWS+3}], s{s_fp} offen sc1 lds")
    else: A.e(f"buffer_load_dword v{V+4}, v{vFR}, s[{sWS}:{sWS+3}], s{s_fp} offen{SC}")
    YA, BS = 112, 192
    A.e(f"s_mul_i32 s{s_t2}, s{s_w}, 3072")
    A.e(f"v_lshrrev_b32 v{V+3}, 2, v1")
    A.e(f"v_and_b32 v{V+3}, 3, v{V+3}")
    A.e(f"v_lshrrev_b32 v{V+6}, 5, v1")
    A.e(f"v_lshl_add_u32 v{V+3}, v{V+6}, 3, v{V+3}")
    A.e(f"v_lshlrev_b32 v{V+3}, 6, v{V+3}")
    A.e(f"v_and_b32 v{V+5}, 16, v1")
    A.e(f"v_lshl_add_u32 v{V+3}, v{V+5}, 1, v{V+3}")
    A.e(f"v_and_b32 v{V+5}, 3, v1")
    A.e(f"v_lshl_add_u32 v{V+3}, v{V+5}, 3, v{V+3}")
    A.e(f"s_add_u32 s{s_t0}, s{s_t2}, {YT}")
    A.e(f"v_add_u32 v{V+3}, s{s_t0}, v{V+3}")
    for i in range(3):
        for rd in range(2):
            A.e(f"ds_read_b64_tr_b16 v[{YA+4*i+2*rd}:{YA+4*i+2*rd+1}], v{V+3} offset:{1024*i + 256*rd}")
    for b in OWNR[1:]:
        for e in range(4): A.e(f"v_permlane32_swap_b32 v{b+e}, v{b+4+e}")
    A.e(f"v_mul_u32_u24 v{V+8}, 1152, v{vRow}")
    A.e(f"v_lshl_add_u32 v{V+8}, v{V+6}, 4, v{V+8}")
    A.e(f"s_mul_i32 s{s_t1}, s{s_upos}, 1152")
    A.e(f"s_lshl_b32 s{s_t0}, s{s_line}, 1")
    A.e(f"s_add_u32 s{s_lane}, s{s_t1}, s{s_t0}")
    A.e(f"v_sub_f32 v{vGT+1}, 1.0, v{vGT}")
    A.e(f"v_mov_b32 v{V+14}, 0x3f80")
    A.e(f"v_mov_b32 v{V+15}, 0x3f800000")
    A.e("s_waitcnt lgkmcnt(0)")
    for q in range(12):
        lo = BS + 2*q; ow = OWNR[q//4] + 2*(q % 4)
        A.e(f"v_lshlrev_b32 v{lo}, 16, v{YA+q}")
        A.e(f"v_and_b32 v{lo+1}, 0xffff0000, v{YA+q}")
        A.e(f"v_pk_mul_f32 v[{ow}:{ow+1}], v[{ow}:{ow+1}], v[{vGT}:{vGT+1}] op_sel:[0,1] op_sel_hi:[1,1]")
        A.e(f"v_pk_fma_f32 v[{lo}:{lo+1}], v[{lo}:{lo+1}], v[{vGT}:{vGT+1}], v[{ow}:{ow+1}] op_sel_hi:[1,0,1]")
    A.e(f"s_mov_b32 s{s_t0}, 0x20000")
    A.label("L_pp")
    if LPOLL:
        A.e(f"ds_read_b32 v{V+4}, v{V+2}")
        A.e("s_waitcnt lgkmcnt(0)")
    else: A.e("s_waitcnt vmcnt(0)")
    A.e(f"v_cmp_ne_u32 vcc, 1, v{V+4}")
    A.e(f"s_sub_u32 s{s_t0}, s{s_t0}, 1")
    A.e("s_cbranch_scc1 L_pp_out")
    A.e("s_cbranch_vccz L_pp_out")
    if LPOLL:
        A.e(f"s_sleep {LPOLL}")
        A.e("s_waitcnt vmcnt(3)")
        A.e(f"buffer_load_dword v{vFR}, s[{sWS}:{sWS+3}], s{s_fp} offen sc1 lds")
    else:
        if PSL: A.e(f"s_sleep {PSL}")
        A.e(f"buffer_load_dword v{V+4}, v{vFR}, s[{sWS}:{sWS+3}], s{s_fp} offen{SC}")
    A.e("s_branch L_pp")
    A.label("L_pp_out")
    A.vm = []; A.lg = []
    if 'tst' in EXP: stamp(A, 4)
    PB, S, OW = 144, 48, 96
    for i in range(3):
        for q in range(3):
            A.vmem(f"buffer_load_dwordx4 v[{PB+12*i+4*q}:{PB+12*i+4*q+3}], v{vL16}, s[{sWS}:{sWS+3}], s{s_hs+q} offen offset:{1024*i}{SC}", f"imp{i}")
    for i in range(3):
        A.wait_vm(f"imp{i}")
        if i == 0 and 'tst' in EXP: stamp(A, 5)
        for d in range(4):
            A.e(f"v_lshlrev_b32 v{S+2*d}, 16, v{PB+12*i+d}")
            A.e(f"v_and_b32 v{S+2*d+1}, 0xffff0000, v{PB+12*i+d}")
        for q in (1, 2):
            for d in range(4):
                A.e(f"v_dot2c_f32_bf16 v{S+2*d}, v{PB+12*i+4*q+d}, v{V+14}")
                A.e(f"v_dot2c_f32_bf16 v{S+2*d+1}, v{PB+12*i+4*q+d}, v{V+15}")
        A.nop(2)
        for d in range(4):
            lo = BS + 8*i + 2*d
            A.e(f"v_pk_fma_f32 v[{lo}:{lo+1}], v[{S+2*d}:{S+2*d+1}], v[{vGT}:{vGT+1}], v[{lo}:{lo+1}] op_sel:[0,1,0] op_sel_hi:[1,1,1]")
        for d in range(4):
            lo = BS + 8*i + 2*d
            A.e(f"v_cvt_pk_bf16_f32 v{OW+4*i+d}, v{lo}, v{lo+1}")
        A.vmem(f"buffer_store_dwordx4 v[{OW+4*i}:{OW+4*i+3}], v{V+8}, s[{sT1}:{sT1+3}], s{s_lane} offen offset:{32*i}", "o")
```

```python
from common import *
import math, p1f
L2E_HI = struct.unpack('<f', struct.pack('<f', LOG2E))[0]
L2E_LO = LOG2E - L2E_HI
LN2 = math.log(2.0)
W2T = int(os.environ.get('W2T', 0))
TLBS = int(os.environ.get('TLBS', 0))
WREG = 40960
SU, SR = 4640, 4480
RA_OFF, RB_OFF, U_OFF = 0, 8960, 17920
SCR = 8960
T_OFF = 17920
TS_ENT = 2304
ZIDX = 2300
WS_R9 = WS_G
s_ch0, s_lb, s_dt, s_dsk, s_cA, s_cB, s_cC, s_ci, s_rdst, s_yo, s_rnd, s_dl = 56, 57, 58, 59, 60, 61, 62, 63, 64, 65, 66, 67
sP0, sP1, sU, sPF = 68, 72, 68, 72
sP2, sP3 = sT0, sT1
s_pf = 76
s_uok = 66
vW, vRD, vSc, vGa = 32, 48, 52, 64
vDt, vDk, vPF, vRW, vZW, vPL = 4, 5, 6, 7, 8, 20
vPar = 100
vCur = 112
vZ = 116
POOL = (124, 180)
vCV = 236
vD = 10
def a_table():
    t = []
    for row in range(16): t.append((row & 7) + 128*(row >> 3))
    for row in range(16):
        t.append(256 + 128*(row >> 2) + 2*(row & 3) if row < 8 else 512 + 128*((row-8) >> 1) + 4*(row & 1))
    for row in range(16): t.append(1024 + 128*row if row <= 8 else 2100)
    return t

def exp_bf16_multi(A, items):
    for d, x, a, b in items: A.e(f"v_mul_f32 v{a}, s{s_cA}, v{x}")
    for d, x, a, b in items: A.e(f"v_fma_f32 v{b}, v{x}, s{s_cA}, -v{a}")
    for d, x, a, b in items: A.e(f"v_exp_f32 v{a}, v{a}")
    for d, x, a, b in items: A.e(f"v_fma_f32 v{b}, v{x}, s{s_cB}, v{b}")
    for d, x, a, b in items: A.e(f"v_mul_f32 v{b}, s{s_cC}, v{b}")
    for d, x, a, b in items: A.e(f"v_fma_f32 v{a}, v{a}, v{b}, v{a}")
    for d, x, a, b in items: A.e(f"v_cvt_pk_bf16_f32 v{a}, v{a}, v{a}")
    for d, x, a, b in items: A.e(f"v_lshlrev_b32 v{d}, 16, v{a}")

def pf_hook(A, k):
    if 'nopf' not in EXP:
        A.e(f"buffer_load_dword a{200+k}, v{vPF}, s[{sPF}:{sPF+3}], s{s_pf+k} offen{NTP}")

class Ch:
    def __init__(self, A):
        self.A = A; self.reg = {}; self.free = list(range(0, 56, 2)); self.cvn = 0; self.pend = []
    def alloc(self, name):
        self.reg[name] = self.free.pop(0); return self.reg[name]
    def rel(self, *names):
        for n in names: self.free.append(self.reg.pop(n))
    def r(self, name, m): return POOL[m] + self.reg[name]
    def muls(self, lst):
        for d, x, y in lst: self.alloc(d)
        for d, x, y in lst:
            for m in range(2):
                D, X, M = self.r(d, m), self.r(x, m), self.r(y, m)
                self.A.e(f"v_pk_mul_f32 v[{D}:{D+1}], v[{X}:{X+1}], v[{M}:{M+1}] op_sel_hi:[1,0]")
        for d, x, y in lst:
            for m in range(2):
                D, X, M = self.r(d, m), self.r(x, m), self.r(y, m)
                self.A.e(f"v_pk_fma_f32 v[{D}:{D+1}], v[{X}:{X+1}], v[{M}:{M+1}], v[{D}:{D+1}] op_sel:[1,1,0] op_sel_hi:[0,1,1] neg_lo:[1,0,0]")
    def put(self, items):
        A = self.A; slot = 0; w = []
        for i, oa, na, ob, nb in items:
            regs = []
            for o, n in ((oa, na), (ob, nb)):
                if n is None: continue
                c = vCV + 2*slot; slot += 1
                assert slot <= 10
                for m in range(2):
                    if n == "one": A.e(f"v_mov_b32 v{c+m}, 0x3f80")
                    else:
                        X = self.r(n, m)
                        A.e(f"v_cvt_pk_bf16_f32 v{c+m}, v{X}, {'-' if o == 41 else ''}v{X+1}")
                regs.append((o, c))
            w.append((i, regs))
        for i, regs in w:
            if len(regs) == 2:
                A.e(f"ds_write2st64_b64 v{vW+i}, v[{regs[0][1]}:{regs[0][1]+1}], v[{regs[1][1]}:{regs[1][1]+1}] offset0:{regs[0][0]} offset1:{regs[1][0]}")
            else:
                A.e(f"ds_write_b64 v{vW+i}, v[{regs[0][1]}:{regs[0][1]+1}] offset:{regs[0][0]*512}")

def kchan_sub(A):
    A.label("L_kchan")
    C = Ch(A)
    A.e(f"v_readlane_b32 s{s_dt}, v{vDt}, s{s_ci}")
    A.e(f"v_readlane_b32 s{s_dsk}, v{vDk}, s{s_ci}")
    T = vCV
    A.e(f"v_lshlrev_b32 v{T}, 16, v{vCur}")
    A.e(f"v_and_b32 v{T+1}, 0xffff0000, v{vCur}")
    A.e(f"v_lshlrev_b32 v{vZ+1}, 16, v{vCur+1}")
    A.e(f"v_and_b32 v{vZ+5}, 0xffff0000, v{vCur+1}")
    exp_bf16_multi(A, [(vZ, T, T+2, T+3), (vZ+4, T+1, T+4, T+5)])
    A.e(f"v_lshlrev_b32 v{vZ+2}, 16, v{vCur+2}")
    A.e(f"v_and_b32 v{vZ+6}, 0xffff0000, v{vCur+2}")
    A.e(f"v_lshlrev_b32 v{vZ+3}, 16, v{vCur+3}")
    A.e(f"v_and_b32 v{vZ+7}, 0xffff0000, v{vCur+3}")
    for k in range(8): A.e(f"v_mul_f32 v{vZ+k}, s{s_dt}, v{vZ+k}")
    for m in range(2):
        A.e(f"v_mul_f32 v{vZ+4*m}, {fhex(-LOG2E)}, v{vZ+4*m}")
        A.e(f"v_mul_f32 v{vZ+4*m+1}, 0.15915494, v{vZ+4*m+1}")
    Ps = [1, 8, 128, 512, 1024]
    for P in Ps: C.alloc(f"E{P}")
    C.alloc("B0")
    for m in range(2):
        b = C.r("B0", m)
        A.e(f"v_add_f32 v{b}, v{vZ+4*m+2}, v{vZ+4*m+2}")
        A.e(f"v_add_f32 v{b+1}, v{vZ+4*m+3}, v{vZ+4*m+3}")
    tt = lambda k, m: T + 4*k + 2*m
    for k, P in enumerate(Ps):
        for m in range(2):
            if P == 1:
                A.e(f"v_mov_b32 v{tt(k,m)}, v{vZ+4*m}"); A.e(f"v_fract_f32 v{tt(k,m)+1}, v{vZ+4*m+1}")
            else:
                A.e(f"v_mul_f32 v{tt(k,m)}, {fhex(float(P))}, v{vZ+4*m}")
                A.e(f"v_mul_f32 v{tt(k,m)+1}, {fhex(float(P))}, v{vZ+4*m+1}")
    for k, P in enumerate(Ps):
        if P == 1: continue
        for m in range(2): A.e(f"v_fract_f32 v{tt(k,m)+1}, v{tt(k,m)+1}")
    for k, P in enumerate(Ps):
        for m in range(2):
            d = C.r(f"E{P}", m)
            A.e(f"v_exp_f32 v{tt(k,m)}, v{tt(k,m)}")
            A.e(f"v_cos_f32 v{d}, v{tt(k,m)+1}")
            A.e(f"v_sin_f32 v{d+1}, v{tt(k,m)+1}")
    A.e("s_nop 0")
    for k, P in enumerate(Ps):
        for m in range(2):
            d = C.r(f"E{P}", m)
            A.e(f"v_pk_mul_f32 v[{d}:{d+1}], v[{d}:{d+1}], v[{tt(k,m)}:{tt(k,m)+1}] op_sel_hi:[1,0]")
    C.muls([("E2", "E1", "E1"), ("E256", "E128", "E128"), ("E640", "E512", "E128"), ("E129", "E128", "E1"), ("E16", "E8", "E8"), ("B1", "B0", "E8"), ("T1", "E1024", "E128")])
    C.put([(0, 0, "one", 16, "E256"), (8, 0, "E128", 16, "E512"), (0, 32, "E1024", 41, "B0"), (1, 32, "T1", 41, "B1")])
    C.rel("E8")
    C.muls([("E3", "E2", "E1"), ("E4", "E2", "E2"), ("E384", "E256", "E128"), ("E768", "E512", "E256"), ("E130", "E128", "E2"), ("E258", "E256", "E2"),
            ("B2", "B0", "E16"), ("B3", "B1", "E16"), ("T2", "E1024", "E256"), ("T3", "T1", "E256")])
    C.rel("B0", "B1", "T1", "E1024")
    C.put([(10, 0, "E130", 16, "E640"), (1, 0, "E1", 16, "E258"), (4, 0, "E4", 16, "E384"), (2, 32, "T2", 41, "B2"), (3, 32, "T3", 41, "B3")])
    C.rel("E130", "E258")
    C.muls([("E260", "E256", "E4"), ("E516", "E512", "E4"), ("E132", "E128", "E4"), ("E131", "E128", "E3"), ("E644", "E640", "E4"),
            ("B4", "B2", "E16"), ("B5", "B3", "E16"), ("T4", "T2", "E256"), ("T5", "T3", "E256")])
    C.rel("B2", "B3", "T2", "T3", "E640")
    C.put([(2, 0, "E2", 16, "E260"), (9, 0, "E129", 16, "E516"), (12, 0, "E132", 16, "E768"), (11, 0, "E131", 16, "E644"), (4, 32, "T4", 41, "B4")])
    C.rel("E260", "E129", "E516", "E132", "E131", "E644")
    C.muls([("E5", "E4", "E1"), ("E6", "E4", "E2"), ("E7", "E4", "E3"), ("E896", "E512", "E384"), ("E386", "E384", "E2"), ("E388", "E384", "E4"), ("E772", "E768", "E4"),
            ("B6", "B4", "E16"), ("B7", "B5", "E16"), ("T6", "T4", "E256"), ("T7", "T5", "E256")])
    C.put([(5, 32, "T5", 41, "B5"), (5, 0, "E5", 16, "E386"), (6, 0, "E6", 16, "E388"), (6, 32, "T6", 41, "B6"), (7, 32, "T7", 41, "B7")])
    C.rel("B4", "B5", "T4", "T5", "E386", "E388", "E1", "E2", "E512", "E768", "T7")
    C.muls([("E262", "E256", "E6"), ("E390", "E384", "E6"), ("E133", "E128", "E5"), ("E134", "E128", "E6"), ("E135", "E128", "E7"), ("E900", "E896", "E4"),
            ("B8", "B6", "E16"), ("B9", "B7", "E16"), ("T8", "T6", "E256")])
    C.put([(3, 0, "E3", 16, "E262"), (7, 0, "E7", 16, "E390"), (13, 0, "E133", 16, "E772"), (14, 0, "E134", 16, "E896"), (15, 0, "E135", 16, "E900")])
    C.rel("B6", "B7", "T6", "E262", "E390", "E133", "E134", "E135", "E900")
    C.muls([("B10", "B8", "E16"), ("B11", "B9", "E16")])
    C.put([(8, 32, "T8", 41, "B8"), (9, 41, "B9", 0, None)])
    C.muls([("B12", "B10", "E16"), ("B13", "B11", "E16")])
    C.put([(10, 41, "B10", 0, None), (11, 41, "B11", 0, None)])
    C.muls([("B14", "B12", "E16"), ("B15", "B13", "E16")])
    C.put([(12, 41, "B12", 0, None), (13, 41, "B13", 0, None), (14, 41, "B14", 0, None), (15, 41, "B15", 0, None)])
    A.e(f"s_mov_b32 s{s_t0}, {F_U}")
    A.e(f"s_cmp_eq_u32 s{s_uok}, 2")
    A.e("s_cbranch_scc0 L_kc_npoll")
    A.e(f"s_waitcnt vmcnt(0)")
    A.e(f"buffer_load_dwordx4 v[{vPL}:{vPL+3}], v{vPL+5}, s[{sWS}:{sWS+3}], s{s_t0} offen{SC}")
    A.label("L_kc_npoll")
    A.lg = []
    A.e("s_waitcnt lgkmcnt(0)")
    D = POOL[0]
    for ks in range(8):
        A.ds(f"ds_read_b128 a[{4*ks}:{4*ks+3}], v{vRD+(ks&3)} offset:{41*512 + (ks>>2)*256}", f"kb{ks}")
        for t in range(3):
            A.ds(f"ds_read_b128 a[{32+32*t+4*ks}:{35+32*t+4*ks}], v{vRD+(ks&3)} offset:{t*8192 + (ks>>2)*256}", f"ka{ks}{t}")
        if ks >= 2:
            for t in range(3):
                k2 = ks - 2
                A.wait_lg([f"ka{k2}{t}"])
                A.e(f"v_mfma_f32_16x16x32_bf16 v[{D+4*t}:{D+4*t+3}], a[{32+32*t+4*k2}:{35+32*t+4*k2}], a[{4*k2}:{4*k2+3}], {'0' if k2 == 0 else f'v[{D+4*t}:{D+4*t+3}]'}")
    for k2 in (6, 7):
        for t in range(3):
            A.wait_lg([f"ka{k2}{t}"])
            A.e(f"v_mfma_f32_16x16x32_bf16 v[{D+4*t}:{D+4*t+3}], a[{32+32*t+4*k2}:{35+32*t+4*k2}], a[{4*k2}:{4*k2+3}], v[{D+4*t}:{D+4*t+3}]")
    A.e(f"s_cmp_eq_u32 s{s_uok}, 2")
    A.e("s_cbranch_scc0 L_kc_nchk")
    A.e("s_waitcnt vmcnt(0)")
    A.e(f"v_min_u32 v{vPL}, v{vPL}, v{vPL+1}")
    A.e(f"v_min3_u32 v{vPL}, v{vPL}, v{vPL+2}, v{vPL+3}")
    A.e(f"v_cmp_gt_u32 vcc, 1, v{vPL}")
    A.e(f"v_cmp_gt_u32 s[76:77], v{vPL+6}, v{vPL+4}")
    A.e("s_or_b64 vcc, vcc, s[76:77]")
    A.e("s_cbranch_scc1 L_kc_nchk")
    A.e(f"s_mov_b32 s{s_uok}, 1")
    A.e(f"s_add_u32 s{s_t0}, s{s_ch0}, s{s_w}")
    A.e(f"s_mul_i32 s{s_t0}, s{s_t0}, {UT_PITCH}")
    A.e(f"s_add_u32 s{s_t0}, s{s_t0}, {WS_UT}")
    A.e(f"v_min_u32 v{vPL}, 32, v1")
    A.e(f"v_lshlrev_b32 v{vPL}, 7, v{vPL}")
    A.e(f"buffer_load_dword a197, v{vPL}, s[{sWS}:{sWS+3}], s{s_t0} offen{SC}")
    A.label("L_kc_nchk")
    A.e(f"v_mov_b32 v{T}, 0")
    A.e(f"v_writelane_b32 v{T}, s{s_dsk}, 0")
    for k in range(4): A.e(f"v_mov_b32 v{T+4+k}, 0")
    A.e(f"v_add_u32 v{T+2}, s{s_rdst}, v{vRW}")
    A.e(f"v_add_u32 v{T+3}, s{s_rdst}, v{vZW}")
    A.e(f"v_add_f32 v{D}, v{D}, v{T}")
    for k in range(12): A.e(f"ds_write_b32 v{vSc+k}, v{D+k}")
    A.e(f"ds_write_b32 v{9}, v{T+4}")
    A.e(f"ds_write_b128 v{T+3}, v[{T+4}:{T+7}]")
    A.e("s_waitcnt lgkmcnt(0)")
    G = POOL[0] + 12
    for k in range(4):
        for e in range(9): A.ds(f"ds_read_b32 v{G+9*k+e}, v{vGa+9*k+e}", f"g{k}")
    O = POOL[1]
    for k in range(4):
        A.wait_lg(f"g{k}")
        g = G + 9*k
        for e in range(4): A.e(f"v_cvt_pk_bf16_f32 v{O+8*k+e}, v{g+2*e+1}, v{g+2*e+2}")
        for e in range(4): A.e(f"v_cvt_pk_bf16_f32 v{O+8*k+4+e}, v{g+2*e}, v{g+2*e+1}")
    for k in range(4):
        A.e(f"ds_write_b128 v{T+2}, v[{O+8*k}:{O+8*k+3}] offset:{1024*k}")
        A.e(f"ds_write_b128 v{T+2}, v[{O+8*k+4}:{O+8*k+7}] offset:{SR + 1024*k}")
    A.e("s_waitcnt lgkmcnt(0)")
    A.lg = []
    A.e(f"s_setpc_b64 s[{s_ret}:{s_ret+1}]")

vGX, vGG = POOL[0], POOL[1]
def kc_setup(A):
    A.c("======== conv role setup")
    for r, n in ((sP0, 'loga'), (sP1, 'aim'), (sP2, 'cre'), (sP3, 'cim'), (76, 'logdt'), (80, 'dskip'), (84, 'gw')):
        A.e(f"s_load_dwordx2 s[{r}:{r+1}], s[0:1], {KA[n]}")
    A.e(f"s_lshl_b32 s{s_ch0}, s{s_m}, 2")
    A.e(f"s_add_u32 s{s_ch0}, s{s_ch0}, s{s_kq}")
    A.e(f"s_mul_i32 s{s_ch0}, s{s_ch0}, 9")
    A.e(f"s_mul_i32 s{s_lb}, s{s_w}, {WREG}")
    for r, n in ((sP0, D_*256), (sP1, D_*256), (sP2, D_*256), (sP3, D_*256), (76, D_*2), (80, D_*2)):
        A.e(f"s_mov_b32 s{r+2}, {n}"); A.e(f"s_mov_b32 s{r+3}, 0x00020000")
    T = vCV
    A.e(f"v_lshlrev_b32 v{T}, 2, v1")
    A.e(f"v_min_u32 v{T+1}, 8, v1")
    A.e(f"v_add_u32 v{T+1}, s{s_ch0}, v{T+1}")
    A.e(f"v_lshlrev_b32 v{T+1}, 1, v{T+1}")
    A.e(f"s_add_u32 s{s_t0}, s{s_ch0}, s{s_w}")
    A.e(f"s_lshl_b32 s{s_t0}, s{s_t0}, 8")
    A.e(f"s_add_u32 s{s_t1}, s{s_ch0}, 8")
    A.e(f"s_lshl_b32 s{s_t1}, s{s_t1}, 8")
    A.e(f"s_lshl_b32 s{s_upos}, s{s_m}, 7")
    A.e(f"s_lshl_b32 s{s_t2}, s{s_kq}, 5")
    A.e(f"s_add_u32 s{s_upos}, s{s_upos}, s{s_t2}")
    A.e(f"v_lshrrev_b32 v{T+4}, 3, v1")
    A.e(f"v_and_b32 v{T+5}, 7, v1")
    A.e(f"v_add_u32 v{T+6}, s{s_upos}, v{T+4}")
    A.e(f"v_mul_u32_u24 v{T+6}, 1152, v{T+6}")
    A.e(f"v_lshrrev_b32 v{T+7}, 1, v{T+4}")
    A.e(f"v_xor_b32 v{T+7}, v{T+7}, v{T+5}")
    A.e(f"v_lshl_add_u32 v{vXD}, v{T+7}, 4, v{T+6}")
    A.e(f"v_xor_b32 v{vXD+1}, 64, v{vXD}")
    A.e(f"v_add_u32 v{vXD+1}, 8192, v{vXD+1}")
    A.e(f"s_lshl_b32 s{s_upos}, s{s_upos}, 1")
    A.e("s_waitcnt lgkmcnt(0)")
    for slot, (so, off) in enumerate(((s_t1, 0), (s_t0, 0), (s_t0, 1024))):
        for k, srd in enumerate((sP0, sP1, sP2, sP3)):
            A.vmem(f"buffer_load_dword v{vPar+4*slot+k}, v{T}, s[{srd}:{srd+3}], s{so} offen offset:{off}", "kp")
    A.vmem(f"buffer_load_ushort v{vDt}, v{T+1}, s[76:79], 0 offen", "kp")
    A.vmem(f"buffer_load_ushort v{vDk}, v{T+1}, s[80:83], 0 offen", "kp")
    A.e(f"s_getpc_b64 s[{s_ret}:{s_ret+1}]")
    A.label("L_kg_pc")
    A.e(f"s_add_u32 s{s_ret}, s{s_ret}, L_atab-L_kg_pc")
    A.e(f"s_addc_u32 s{s_ret+1}, s{s_ret+1}, 0")
    A.e(f"v_and_b32 v{T+2}, 48, v1")
    for t in range(3):
        A.vmem(f"global_load_dwordx4 v[{vSc+4*t}:{vSc+4*t+3}], v{T+2}, s[{s_ret}:{s_ret+1}] offset:{64*t}", "kp")
    A.e(f"s_cmp_eq_u32 s{s_w}, 0")
    A.e("s_cbranch_scc1 L_xp_skip")
    A.e(f"s_mov_b32 s80, s84"); A.e("s_mov_b32 s81, s85")
    A.e(f"s_mul_i32 s{s_line}, s{s_w}, 3")
    A.e(f"s_sub_u32 s{s_line}, s{s_line}, 3")
    for q in range(3):
        A.e(f"s_add_u32 m0, s{s_lb}, {SCR + 4096*q}")
        A.e(f"s_add_u32 s{s_so}, s{s_line}, {q}")
        A.e(f"s_lshl_b32 s{s_so}, s{s_so}, 7")
        for i in range(4):
            if i == 2: A.e(f"s_add_u32 s{s_so}, s{s_so}, 16384")
            A.e(f"buffer_load_dwordx4 v{vXD+(i&1)}, s[{sX}:{sX+3}], s{s_so} offen offset:{i*1024} lds")
    A.e(f"v_and_b32 v{T+3}, 1, v1")
    A.e(f"v_lshlrev_b32 v{T+3}, 6, v{T+3}")
    A.e(f"s_lshl_b32 s{s_so}, s{s_line}, 7")
    for q in range(3):
        for c in range(4):
            A.e(f"buffer_load_dwordx4 v[{vGG+16*q+4*c}:{vGG+16*q+4*c+3}], v{T+3}, s[80:83], s{s_so} offen offset:{128*q+16*c}")
    A.label("L_xp_skip")
    if 'notlb' not in EXP:
        A.e(f"s_load_dwordx2 s[{sW1}:{sW1+1}], s[0:1], {KA['out']}")
        A.e(f"s_lshl_b32 s{s_t3}, s{s_m7}, 2")
        A.e(f"s_add_u32 s{s_t3}, s{s_t3}, s{s_w}")
        A.e(f"s_lshl_b32 s{s_t0}, s{s_t3}, {22 + TLBS}")
        A.e(f"s_cmp_lt_u32 s{s_t0}, 0x2A00000")
        A.e(f"s_cselect_b32 s{s_t0}, s{s_t0}, 0x40000000")
        A.e(f"v_lshlrev_b32 v{vPF}, {16 + TLBS}, v1")
        A.e(f"s_mov_b32 s{sW1+2}, {L_*D_*2}")
        A.e(f"s_mov_b32 s{sW1+3}, 0x00020000")
        A.e(f"buffer_load_dword a196, v{vPF}, s[{sWS}:{sWS+3}], s{s_t0} offen{SC}")
        A.e(f"s_cmp_eq_u32 s{s_t3}, 30")
        A.e(f"s_cselect_b32 s{s_t0}, 0, 0x40000000")
        A.e("s_waitcnt lgkmcnt(0)")
        A.e(f"buffer_load_dword a195, v{vPF}, s[{sW1}:{sW1+3}], s{s_t0} offen{SC}")
    if 'now1pf' not in EXP and 'nopf' not in EXP:
        A.e(f"s_mul_i32 s{s_t0}, s{s_kq}, 2304")
        A.e(f"s_add_u32 s{sW1}, s{p_w1}, s{s_t0}")
        A.e(f"s_addc_u32 s{sW1+1}, s{p_w1+1}, 0")
        A.e(f"s_mov_b32 s{sW1+2}, {575*9216 + 2304}")
        A.e(f"s_mov_b32 s{sW1+3}, 0x00020000")
        A.e(f"v_mul_u32_u24 v{vPF}, 9216, v1")
        A.e(f"s_lshl_b32 s{s_t3}, s{s_m7}, 2")
        A.e(f"s_add_u32 s{s_t3}, s{s_t3}, s{s_w}")
        A.e(f"s_mul_i32 s{s_t0}, s{s_t3}, 57")
        A.e(f"s_lshr_b32 s{s_t0}, s{s_t0}, 9")
        A.e(f"s_mul_i32 s{s_t1}, s{s_t0}, 9")
        A.e(f"s_sub_u32 s{s_t1}, s{s_t3}, s{s_t1}")
        A.e(f"s_mul_i32 s{s_t1}, s{s_t1}, {64*9216}")
        A.e(f"s_mul_i32 s{s_t0}, s{s_t0}, 768")
        A.e(f"s_add_u32 s{s_t1}, s{s_t1}, s{s_t0}")
        A.e(f"s_add_u32 s{s_t1}, s{s_t1}, 128")
        A.e(f"s_cmp_lt_u32 s{s_t3}, 27")
        A.e(f"s_cselect_b32 s{s_t1}, s{s_t1}, 0x40000000")
        A.e(f"buffer_load_dword a199, v{vPF}, s[{sW1}:{sW1+3}], s{s_t1} offen")
        if 'w1pf2' in EXP:
            A.e(f"buffer_load_dword a198, v{vPF}, s[{sW1}:{sW1+3}], s{s_t1} offen offset:128")
    A.e(f"s_mul_i32 s{s_t0}, s{s_kq}, {1152*1152}")
    A.e(f"s_add_u32 s{sPF}, s{sW2}, s{s_t0}")
    A.e(f"s_addc_u32 s{sPF+1}, s{sW2+1}, 0")
    A.e(f"s_mov_b32 s{sPF+2}, {1152*1152}")
    A.e(f"s_mov_b32 s{sPF+3}, 0x00020000")
    A.e(f"v_lshlrev_b32 v{vPF}, 7, v1")
    A.e(f"s_lshl_b32 s{s_t3}, s{s_m7}, 2")
    A.e(f"s_add_u32 s{s_t3}, s{s_t3}, s{s_w}")
    if 'w2sym' in EXP:
        A.e(f"s_lshr_b32 s{s_t0}, s{s_m}, 3")
        A.e(f"s_lshl_b32 s{s_t3}, s{s_t3}, 1")
        A.e(f"s_add_u32 s{s_t3}, s{s_t3}, s{s_t0}")
        for q in range(3):
            u = s_pf + q
            A.e(f"s_add_u32 s{s_t2}, s{s_t3}, {64*q}")
            A.e(f"s_mul_i32 s{s_t0}, s{s_t2}, 2428")
            A.e(f"s_lshr_b32 s{s_t0}, s{s_t0}, 16")
            A.e(f"s_mul_i32 s{s_t1}, s{s_t0}, 27")
            A.e(f"s_sub_u32 s{s_t1}, s{s_t2}, s{s_t1}")
            A.e(f"s_add_u32 s{s_t0}, s{s_t0}, 1")
            A.e(f"s_cmp_eq_u32 s{s_t0}, 6")
            A.e(f"s_cselect_b32 s{s_t0}, 0, s{s_t0}")
            A.e(f"s_mul_i32 s{u}, s{s_t0}, {64*1152}")
            A.e(f"s_mul_i32 s{s_t0}, s{s_t1}, 57")
            A.e(f"s_lshr_b32 s{s_t0}, s{s_t0}, 9")
            A.e(f"s_mul_i32 s{s_t0}, s{s_t0}, {384*1152 - 9*8192}")
            A.e(f"s_add_u32 s{u}, s{u}, s{s_t0}")
            A.e(f"s_lshl_b32 s{s_t1}, s{s_t1}, 13")
            A.e(f"s_add_u32 s{u}, s{u}, s{s_t1}")
            if q == 2:
                A.e(f"s_cmp_lt_u32 s{s_t2}, 162")
                A.e(f"s_cselect_b32 s{u}, s{u}, 0x40000000")
    else:
        A.e(f"s_mul_i32 s{s_t0}, s{s_t3}, 57")
        A.e(f"s_lshr_b32 s{s_t0}, s{s_t0}, 9")
        A.e(f"s_mul_i32 s{s_t0}, s{s_t0}, {384*1152 - 9*8192}")
        A.e(f"s_lshl_b32 s{s_t1}, s{s_t3}, 13")
        A.e(f"s_add_u32 s{s_pf+5}, s{s_t0}, s{s_t1}")
        A.e(f"s_lshr_b32 s{s_t0}, s{s_m}, 3")
        A.e(f"s_mul_i32 s{s_t1}, s{s_t0}, {64*1152}")
        A.e(f"s_add_u32 s{s_t1}, s{s_t1}, s{s_pf+5}")
        A.e(f"s_add_u32 s{s_pf}, s{s_t1}, {1*64*1152}")
        A.e(f"s_add_u32 s{s_pf+1}, s{s_t1}, {3*64*1152}")
        A.e(f"s_add_u32 s{s_pf+2}, s{s_pf+5}, {5*64*1152}")
        A.e(f"s_cmp_eq_u32 s{s_t0}, 0")
        A.e(f"s_cselect_b32 s{s_pf+2}, s{s_pf+2}, s{s_pf+5}")
    if 'now2c' in EXP:
        for q in range(3): A.e(f"s_mov_b32 s{s_pf+q}, 0x40000000")
    if W2T == 0: pf_hook(A, 0); pf_hook(A, 1)
    A.e(f"s_mov_b32 s{s_cA}, {fhex(L2E_HI)}")
    A.e(f"s_mov_b32 s{s_cB}, {fhex(L2E_LO)}")
    A.e(f"s_mov_b32 s{s_cC}, {fhex(LN2)}")
    A.e(f"s_add_u32 s{s_t0}, s{s_lb}, {SCR}")
    A.e(f"v_lshrrev_b32 v{T+4}, 1, v1")
    A.e(f"v_and_b32 v{T+5}, 1, v1")
    A.e(f"v_lshlrev_b32 v{T+5}, 3, v{T+5}")
    A.e(f"v_add_u32 v{T+5}, s{s_t0}, v{T+5}")
    for i in range(16):
        A.e(f"v_xor_b32 v{vW+i}, {33*i}, v{T+4}")
        A.e(f"v_lshl_add_u32 v{vW+i}, v{vW+i}, 4, v{T+5}")
    A.e(f"v_and_b32 v{T+6}, 15, v1")
    A.e(f"v_lshrrev_b32 v{T+7}, 4, v1")
    A.e(f"v_xor_b32 v{T+7}, v{T+7}, v{T+6}")
    A.e(f"v_lshlrev_b32 v{T+8}, 9, v{T+6}")
    A.e(f"v_add_u32 v{T+8}, s{s_t0}, v{T+8}")
    for k in range(4):
        A.e(f"v_xor_b32 v{vRD+k}, {4*k}, v{T+7}")
        A.e(f"v_lshl_add_u32 v{vRD+k}, v{vRD+k}, 4, v{T+8}")
    A.e(f"s_add_u32 s{s_t1}, s{s_lb}, {T_OFF}")
    A.e(f"v_lshlrev_b32 v{T+9}, 3, v1")
    A.e(f"v_sub_u32 v{T+9}, 2047, v{T+9}")
    for k in range(4):
        for e in range(9):
            g = vGa + 9*k + e
            A.e(f"v_subrev_u32 v{g}, {512*k + e}, v{T+9}")
        if k == 3: A.e(f"v_max_i32 v{vGa+35}, 0, v{vGa+35}")
        for e in range(9): A.e(f"v_cvt_f32_u32 v{vGa+9*k+e}, v{vGa+9*k+e}")
    for g in range(vGa, vGa + 36, 2):
        A.e(f"v_cvt_pk_bf16_f32 v{g+1}, v{g}, v{g+1}")
    for g in range(vGa, vGa + 36, 2):
        A.e(f"v_lshlrev_b32 v{g}, 16, v{g+1}")
        A.e(f"v_and_b32 v{g+1}, 0xffff0000, v{g+1}")
    for g in range(vGa, vGa + 36): A.e(f"v_cvt_u32_f32 v{g}, v{g}")
    for g in range(vGa, vGa + 36):
        A.e(f"v_lshrrev_b32 v{T+10+(g&1)}, 5, v{g}")
        A.e(f"v_add_lshl_u32 v{g}, v{g}, v{T+10+(g&1)}, 2")
    for g in range(vGa, vGa + 36): A.e(f"v_add_u32 v{g}, s{s_t1}, v{g}")
    if W2T == 0: pf_hook(A, 2)
    if W2T == 2: pf_hook(A, 0)
    A.e(f"s_add_u32 s{s_t2}, s{s_t1}, {4*2296}")
    A.e(f"v_mov_b32 v9, s{s_t2}")
    A.e("v_cmp_eq_u32 vcc, 63, v1")
    A.e(f"v_add_u32 v{vRW}, 16, v{vL16}")
    A.e(f"v_mov_b32 v{vPL+6}, 64")
    A.e(f"v_cndmask_b32 v{vGa+35}, v{vGa+35}, v9, vcc")
    A.e(f"v_add_u32 v{T+10}, 256, v{T+6}")
    A.e(f"v_cmp_eq_u32 vcc, 0, v{T+6}")
    A.e(f"v_mov_b32 v{vPL+5}, v{vL16}")
    A.e(f"v_and_b32 v{T+11}, 16, v1")
    A.e(f"v_cndmask_b32 v{T+10}, v{T+10}, v{T+6}, vcc")
    A.e(f"v_lshlrev_b32 v{T+10}, 4, v{T+10}")
    A.e(f"v_mul_u32_u24 v{T+11}, {SR//16}, v{T+11}")
    A.e(f"v_add_u32 v{vZW}, v{T+10}, v{T+11}")
    A.e(f"s_waitcnt vmcnt({0 if 'nopf' in EXP else (3 if 'now1pf' in EXP else (5 if 'w1pf2' in EXP else 4)) + (0 if 'notlb' in EXP else 2) - (0, 3, 2, 3)[W2T]})"); A.vm = []
    A.e(f"v_lshlrev_b32 v{T+6}, 3, v{T+6}")
    for k in range(12): A.e(f"v_add_u32 v{vSc+k}, v{vSc+k}, v{T+6}")
    for k in range(12):
        A.e(f"v_lshrrev_b32 v{T+10+(k&1)}, 5, v{vSc+k}")
        A.e(f"v_add_lshl_u32 v{vSc+k}, v{vSc+k}, v{T+10+(k&1)}, 2")
    for k in range(12): A.e(f"v_add_u32 v{vSc+k}, s{s_t1}, v{vSc+k}")
    A.e(f"v_lshlrev_b32 v{vDt}, 16, v{vDt}")
    A.e(f"v_lshlrev_b32 v{vDk}, 16, v{vDk}")
    exp_bf16_multi(A, [(vDt, vDt, T+12, T+13)])

def call_kchan(A, slot, ci_expr, rdst_off):
    for k in range(4): A.e(f"v_mov_b32 v{vCur+k}, v{vPar+4*slot+k}")
    A.e(ci_expr)
    A.e(f"s_add_u32 s{s_rdst}, s{s_lb}, {rdst_off}")
    if 'nokc' not in EXP: A.e(f"s_call_b64 s[{s_ret}:{s_ret+1}], L_kchan")

GSUM = 3*WREG + WREG - 512
def kgen_all(A):
    kc_setup(A)
    p1f.counter_arrive(A)
    stamp(A, 1)
    A.e(f"s_mov_b32 s{s_uok}, 0")
    if W2T == 1: pf_hook(A, 0); pf_hook(A, 1)
    if W2T == 2: pf_hook(A, 1)
    if W2T == 3: pf_hook(A, 0)
    A.e(f"s_cmp_lg_u32 s{s_w}, 0")
    A.e("s_cbranch_scc1 L_xw")
    A.c("-- wave 0: 9th channel, image exported")
    call_kchan(A, 0, f"s_mov_b32 s{s_ci}, 8", RB_OFF)
    A.e(f"s_add_u32 s{s_t0}, s{s_lb}, {RB_OFF}")
    A.e(f"v_add_u32 v{vCV}, s{s_t0}, v{vL16}")
    for k in range(9): A.e(f"ds_read_b128 v[{POOL[0]+4*k}:{POOL[0]+4*k+3}], v{vCV} offset:{1024*k}")
    A.e(f"s_mul_i32 s{s_t0}, s{s_ch0}, 1024")
    A.e(f"s_add_u32 s{s_t0}, s{s_t0}, {WS_R9}")
    A.e("s_waitcnt lgkmcnt(0)")
    for k in range(9):
        if k % 4 == 0 and k: A.e(f"s_add_u32 s{s_t0}, s{s_t0}, 4096")
        A.e(f"buffer_store_dwordx4 v[{POOL[0]+4*k}:{POOL[0]+4*k+3}], v{vL16}, s[{sWS}:{sWS+3}], s{s_t0} offen offset:{1024*(k%4)}")
    A.e("s_branch L_xw_done")
    A.label("L_xw")
    A.c("-- waves 1..3: u^T export and partial gate logits")
    T = vCV
    A.e(f"v_lshrrev_b32 v{T}, 1, v1")
    A.e(f"v_lshrrev_b32 v{T+1}, 1, v{T}")
    A.e(f"v_and_b32 v{T+1}, 7, v{T+1}")
    A.e(f"v_and_b32 v{T+2}, 1, v1")
    A.e(f"v_lshlrev_b32 v{T+2}, 2, v{T+2}")
    A.e(f"v_xor_b32 v{T+1}, v{T+1}, v{T+2}")
    A.e(f"s_add_u32 s{s_t3}, s{s_lb}, {SCR}")
    A.e(f"v_lshlrev_b32 v{T+3}, 7, v{T}")
    A.e(f"v_add_u32 v{T+3}, s{s_t3}, v{T+3}")
    for c in range(4):
        A.e(f"v_xor_b32 v{T+4}, {c}, v{T+1}")
        A.e(f"v_lshl_add_u32 v{T+4}, v{T+4}, 4, v{T+3}")
        for q in range(3): A.e(f"ds_read_b128 v[{vGX+16*q+4*c}:{vGX+16*q+4*c+3}], v{T+4} offset:{4096*q}")
    A.e("s_waitcnt lgkmcnt(0)")
    A.e(f"v_mov_b32 v{T+4}, 0"); A.e(f"v_mov_b32 v{T+5}, 0")
    for k in range(48): A.e(f"v_dot2c_f32_bf16 v{T+4+(k&1)}, v{vGX+k}, v{vGG+k}")
    A.e(f"s_lshl_b32 s{s_t0}, s{s_w}, 7")
    A.e(f"s_add_u32 s{s_t0}, s{s_t0}, {GSUM - 128}")
    A.e(f"v_lshlrev_b32 v{T}, 2, v{T}")
    A.e(f"v_add_f32 v{T+4}, v{T+4}, v{T+5}")
    A.e(f"v_add_u32 v{T}, s{s_t0}, v{T}")
    A.e("s_nop 0")
    A.e(f"v_add_f32_dpp v{T+4}, v{T+4}, v{T+4} quad_perm:[1,0,3,2] row_mask:0xf bank_mask:0xf")
    A.e(f"ds_write_b32 v{T}, v{T+4}")
    for q in range(0 if 'nout' in EXP else 3):
        A.e(f"s_call_b64 s[{s_ret}:{s_ret+1}], L_utsub")
        if q < 2:
            A.e(f"s_add_u32 s{s_line}, s{s_line}, 1")
            A.e(f"s_add_u32 s{s_t3}, s{s_t3}, 4096")
    A.label("L_xw_done")
    if W2T in (1, 2): pf_hook(A, 2)
    if W2T == 3: pf_hook(A, 1); pf_hook(A, 2)
    stamp(A, 2)
    call_kchan(A, 1, f"s_mov_b32 s{s_ci}, s{s_w}", RA_OFF)
    A.c("-- gate finish (wave 1), flag 1, W2 warm-up tables, counter poll")
    A.e("s_barrier")
    A.e(f"v_mov_b32 v{vS}, 1")
    A.e(f"s_waitcnt vmcnt(1)" if False else "s_waitcnt vmcnt(0)")
    A.e(f"buffer_store_dword v{vS}, off, s[{sWS}:{sWS+3}], s{s_fi}{SC}")
    A.e(f"s_cmp_lg_u32 s{s_w}, 1")
    A.e("s_cbranch_scc1 L_gt_skip")
    A.e(f"v_and_b32 v{T}, 31, v1")
    A.e(f"v_lshlrev_b32 v{T}, 2, v{T}")
    A.e(f"v_add_u32 v{T+1}, {GSUM}, v{T}")
    A.e(f"ds_read2_b32 v[{T+2}:{T+3}], v{T+1} offset0:0 offset1:32")
    A.e(f"ds_read_b32 v{T+4}, v{T+1} offset:256")
    A.e(f"s_lshl_b32 s{s_t0}, s{s_upos}, 1")
    A.e(f"s_add_u32 s{s_t0}, s{s_t0}, {WS_GT}")
    A.e("s_waitcnt lgkmcnt(0)")
    A.e(f"v_add_f32 v{T+2}, v{T+2}, v{T+3}")
    A.e(f"v_add_f32 v{T+2}, v{T+2}, v{T+4}")
    A.e(f"v_mul_f32 v{T+2}, {fhex(-LOG2E)}, v{T+2}")
    A.e(f"v_exp_f32 v{T+2}, v{T+2}")
    A.e("s_nop 0")
    A.e(f"v_add_f32 v{T+2}, 1.0, v{T+2}")
    A.e(f"v_rcp_f32 v{T+2}, v{T+2}")
    A.e("s_nop 0")
    A.e(f"buffer_store_dword v{T+2}, v{T}, s[{sWS}:{sWS+3}], s{s_t0} offen{SC}")
    A.label("L_gt_skip")
    A.e(f"buffer_load_dword v{vPL+4}, off, s[{sDBG}:{sDBG+3}], 0{SC}")
    if 'w2full' in EXP:
        A.e(f"s_lshr_b32 s{s_t0}, s{s_m}, 3")
        A.e(f"s_cmp_eq_u32 s{s_t0}, 0")
        A.e(f"s_cselect_b32 s{s_t0}, 1, -1")
        A.e(f"s_mul_i32 s{s_t0}, s{s_t0}, {64*1152}")
        A.e(f"s_add_u32 s{s_pf}, s{s_pf}, s{s_t0}")
        A.e(f"s_add_u32 s{s_pf+1}, s{s_pf+1}, s{s_t0}")
        A.e(f"s_mul_i32 s{s_t0}, s{s_t0}, 5")
        A.e(f"s_sub_u32 s{s_pf+2}, s{s_pf+2}, s{s_t0}")
        pf_hook(A, 0); pf_hook(A, 1); pf_hook(A, 2)
    A.e(f"s_mov_b32 s{s_uok}, 2")
    call_kchan(A, 2, f"s_add_u32 s{s_ci}, s{s_w}, 4", RB_OFF)
    stamp(A, 3)

def utchk(A):
    A.e(f"s_cmp_eq_u32 s{s_uok}, 1")
    A.e("s_cbranch_scc1 L_uc3")
    A.e(f"s_mov_b32 s{s_t0}, 0x20000")
    A.e(f"s_mov_b32 s{s_t1}, {F_U}")
    A.e(f"v_mov_b32 v{vPL}, 0")
    A.label("L_uc1")
    A.e(f"v_min_u32 v{vPL}, v{vPL}, v{vPL+1}")
    A.e(f"v_min3_u32 v{vPL}, v{vPL}, v{vPL+2}, v{vPL+3}")
    A.e(f"v_cmp_gt_u32 vcc, 1, v{vPL}")
    A.e(f"v_cmp_gt_u32 s[76:77], v{vPL+6}, v{vPL+4}")
    A.e("s_or_b64 vcc, vcc, s[76:77]")
    A.e("s_cbranch_scc0 L_uc3")
    A.e(f"s_sub_u32 s{s_t0}, s{s_t0}, 1")
    A.e("s_cbranch_scc1 L_uc3")
    A.e(f"buffer_load_dword v{vPL+4}, off, s[{sDBG}:{sDBG+3}], 0{SC}")
    A.e("s_waitcnt vmcnt(0)")
    A.e(f"buffer_load_dwordx4 v[{vPL}:{vPL+3}], v{vPL+5}, s[{sWS}:{sWS+3}], s{s_t1} offen{SC}")
    A.e("s_waitcnt vmcnt(0)")
    A.e("s_branch L_uc1")
    A.label("L_uc3")

def tables(A):
    A.raw(".p2align 4")
    A.label("L_atab")
    A.raw(".long " + ", ".join(str(x) for x in a_table()))
```

```python
import sys, os
from common import *
import p1f
import big5 as big2
import conv5 as convf
import kc4
from p1f import *

def fused():
    A = Asm()
    K = NAME + "_kernel"
    A.raw(kernel_head(K))
    A.label("L_start")
    stamp(A, 0)
    if 'probe' in EXP: A.e("s_memrealtime s[86:87]")
    A.e("s_cmp_ge_u32 s2, 256")
    A.e("s_cbranch_scc1 L_end")
    A.e(f"s_lshr_b32 s{s_r}, s2, 3")
    A.e(f"s_and_b32 s{s_r}, s{s_r}, 3")
    A.e(f"s_cmp_eq_u32 s{s_r}, 3")
    A.e("s_cbranch_scc1 L_conv")
    big2.prologue(A)
    if not (EXP & {'tst', 'p2st'}): stamp(A, 1)
    ctx = big2.p1(A)
    big2.p2(A, *ctx)
    big2.tail(A, ctx[0])
    if 'probe' in EXP:
        A.e("s_cmp_lg_u32 s2, 0")
        A.e("s_cbranch_scc1 L_prb2")
        A.e(f"buffer_load_dwordx2 v[2:3], off, s[{sDBG}:{sDBG+3}], 0 offset:128 sc1")
        A.e("s_memrealtime s[88:89]")
        A.e("s_waitcnt vmcnt(0) lgkmcnt(0)")
        A.e("v_not_b32 v3, v3")
        PS = int(os.environ.get("PS", -1))
        if PS >= 0: A.e(f"v_mov_b32 v2, s{88 if PS == 9 else 94}")
        A.e("v_sub_u32 v2, v2, v3"); A.e("s_nop 1")
        A.e("v_readfirstlane_b32 s90, v2")
        A.e("s_min_u32 s90, s90, 5000")
        A.e(f"s_mul_i32 s90, s90, {10 if PS < 0 else 4}")
        A.e(f"buffer_store_dword v2, off, s[{sDBG}:{sDBG+3}], 0 offset:4")
        A.label("L_prb3")
        A.e("s_memrealtime s[92:93]"); A.e("s_waitcnt lgkmcnt(0)")
        A.e("s_sub_u32 s91, s92, s88"); A.e("s_cmp_lt_u32 s91, s90"); A.e("s_cbranch_scc1 L_prb3")
        A.label("L_prb2")
    if STAMPS:
        A.wait_all()
        if not (EXP & {'p1st', 'p2st'}): stamp(A, 7)
        stamp_flush(A)
    A.e("s_endpgm")
    A.label("L_conv")
    A.vm = []; A.lg = []
    for r, n in ((sX, "u"), (p_w1, "w1"), (sWS, "ws"), (sW2, "w2"), (sDBG, "dbg")):
        A.e(f"s_load_dwordx2 s[{r}:{r+1}], s[0:1], {KA[n]}")
    if 'nocpf' not in EXP:
        A.e(f"s_getpc_b64 s[{s_ret}:{s_ret+1}]")
        A.label("L_cpf_pc")
        A.e(f"s_sub_u32 s{s_ret}, s{s_ret}, L_cpf_pc-L_start")
        A.e(f"s_subb_u32 s{s_ret+1}, s{s_ret+1}, 0")
        A.e("v_lshrrev_b32 v2, 6, v0")
        A.e("s_lshr_b32 s3, s2, 5")
        A.e("s_lshl_b32 s3, s3, 2")
        A.e("v_add_u32 v2, s3, v2")
        A.e("v_and_b32 v2, 7, v2")
        A.e("v_lshlrev_b32 v2, 13, v2")
        A.e("v_and_b32 v3, 63, v0")
        A.e("v_lshl_add_u32 v2, v3, 7, v2")
        A.e("v_min_u32 v2, L_codeend-L_start-4, v2")
        A.e("v_and_b32 v2, -4, v2")
        A.vmem(f"global_load_dword a255, v2, s[{s_ret}:{s_ret+1}]", "cpf")
    setup_common(A)
    A.e(f"v_mov_b32 v{vS}, 0")
    A.e("s_waitcnt lgkmcnt(0)")
    for r, n in ((sX, L_*D_*2), (sWS, WS_BYTES), (sW2, D_*F_*2), (sDBG, 256)):
        A.e(f"s_mov_b32 s{r+2}, {hex(n)}"); A.e(f"s_mov_b32 s{r+3}, 0x00020000")
    if 'wsend' in EXP:
        A.e(f"s_add_u32 s{sWS}, s{sWS}, {WS_BYTES - 0x2A00000}"); A.e(f"s_addc_u32 s{sWS+1}, s{sWS+1}, 0"); A.e(f"s_mov_b32 s{sWS+2}, 0x2A00000")
    A.e(f"s_mov_b32 s{p_ws}, s{sWS}"); A.e(f"s_mov_b32 s{p_ws+1}, s{sWS+1}")
    A.vm = ["cpf"]; A.lg = []
    if 'probe' in EXP:
        A.e(f"s_cmp_lg_u32 s{s_w}, 3")
        A.e("s_cbranch_scc1 L_prb")
        A.e("s_mov_b64 exec, 1")
        A.e("v_mov_b32 v2, s86"); A.e("v_not_b32 v3, v2")
        A.e(f"buffer_atomic_umax v2, off, s[{sDBG}:{sDBG+3}], 0 offset:128 sc1")
        A.e(f"buffer_atomic_umax v3, off, s[{sDBG}:{sDBG+3}], 0 offset:132 sc1")
        A.e("s_mov_b64 exec, -1")
        A.label("L_prb")
    A.e(f"s_and_b32 s{s_t0}, s{s_fi}, 0xffffff80")
    A.e("v_lshrrev_b32 v2, 4, v1")
    A.e("v_lshlrev_b32 v2, 13, v2")
    A.e("v_and_b32 v3, 15, v1")
    A.e("v_lshl_add_u32 v2, v3, 2, v2")
    A.e(f"v_add_u32 v2, s{s_t0}, v2")
    A.e(f"s_mul_i32 s{s_t0}, s{s_m}, 12")
    A.e(f"s_add_u32 s{s_t0}, s{s_t0}, s{s_kq}")
    A.e(f"s_lshl_b32 s{s_t0}, s{s_t0}, 9")
    A.e(f"s_add_u32 s{s_t0}, s{s_t0}, {F_P2}")
    A.e("v_min_u32 v4, 47, v1")
    A.e("v_lshrrev_b32 v4, 4, v4")
    A.e("v_lshlrev_b32 v4, 11, v4")
    A.e("v_lshrrev_b32 v5, 2, v3")
    A.e("v_lshl_add_u32 v4, v5, 7, v4")
    A.e("v_and_b32 v3, 3, v3")
    A.e("v_lshl_add_u32 v3, v3, 2, v4")
    A.e(f"s_cmp_lg_u32 s{s_w}, 0")
    A.e("s_cbranch_scc1 L_nz")
    A.e(f"buffer_store_dword v{vS}, v2, s[{sWS}:{sWS+3}], 0 offen{SC}")
    A.e(f"buffer_store_dword v{vS}, v3, s[{sWS}:{sWS+3}], s{s_t0} offen{SC}")
    A.label("L_nz")
    A.e(f"s_lshr_b32 s{s_fi}, s{s_fi}, 7")
    A.e(f"s_and_b32 s{s_fi}, s{s_fi}, 63")
    A.e(f"s_lshl_b32 s{s_fi}, s{s_fi}, 2")
    A.e(f"s_add_u32 s{s_fi}, s{s_fi}, s{s_w}")
    A.e(f"s_lshl_b32 s{s_fi}, s{s_fi}, 2")
    A.e(f"s_add_u32 s{s_fi}, s{s_fi}, {F_U}")
    A.e(f"s_cmp_lg_u32 s{s_w}, 0")
    A.e("s_cbranch_scc1 L_nz3")
    A.e("v_and_b32 v2, 4, v1")
    A.e("v_lshlrev_b32 v2, 10, v2")
    A.e("v_and_b32 v3, 3, v1")
    A.e("v_lshl_add_u32 v2, v3, 2, v2")
    A.e(f"buffer_store_dword v{vS}, v2, s[{sWS}:{sWS+3}], s{s_fi} offen{SC}")
    A.label("L_nz3")
    if 'noconv' in EXP: A.e("s_endpgm")
    kc4.kgen_all(A)
    if 'kgonly' in EXP:
        stamp(A, 7); stamp_flush(A); A.e("s_endpgm")
    if 'ramp' in EXP: A.e("s_endpgm")
    if 'kgst' in EXP:
        stamp(A, 7); stamp_flush(A); A.e("s_endpgm")
    convf.conv_all(A, ldflag=SC, stflag=SC)
    A.e(f"v_mov_b32 v{vS}, 1")
    A.e(f"s_add_u32 s{s_fi}, s{s_fi}, 4096")
    A.e("s_waitcnt vmcnt(0)")
    A.e(f"buffer_store_dword v{vS}, off, s[{sWS}:{sWS+3}], s{s_fi}{SC}")
    if 'wb1' in EXP:
        A.e(f"s_or_b32 s{s_t0}, s{s_m7}, s{s_w}")
        A.e(f"s_cmp_lg_u32 s{s_t0}, 0")
        A.e("s_cbranch_scc1 L_nowb")
        A.e("buffer_wbl2 sc1")
        A.label("L_nowb")
    A.wait_all()
    stamp(A, 7)
    stamp_flush(A)
    A.label("L_end")
    A.e("s_endpgm")
    ut_sub(A, kc4.POOL[0])
    kc4.kchan_sub(A)
    big2.poll_sub(A)
    big2.sb_slow(A)
    kc4.tables(A)
    A.label("L_codeend")
    return A.text(), KD.format(name=K, vgpr=512, accum=256)

HDR = open("cdna_kernels/" + NAME + ".s.ref").read().split("; Override launch")[0]
if __name__ == "__main__":
    t, kd = fused()
    s = HDR + f"; @launch grid=(256,1,1) block=(256,1,1) lds={LDS_BYTES}\n" + '.amdgcn_target "amdgcn-amd-amdhsa--gfx950"\n.text\n' + t + '.section .rodata,"a"\n.p2align 6\n' + kd
    open(sys.argv[1], "w").write(s)
```

```python
from common import *
from p1f import Ring, setup_common, counter_arrive, ut_sub
vXD, vXR, vWD, vAR, vBI, vL16, vS, vEW, vER, vW2D, vA2 = 2, 4, 8, 10, 13, 17, 31, 15, 16, 18, 24
ACC, TMP, BIAS, MT, HS = 32, 64, 96, 128, 144
ARING = [112, 116, 120, 124, 140]
EX = 6*SLOT
M_BIAS = MISC
M_FL = MISC + 2048
s_sl, s_hs, s_rr, s_pb, s_need, s_lane, s_val, s_w2l, s_fp, s_yd = 66, 70, 79, 82, 83, 84, 85, 3, 74, 75
vFL, vFA, TMP2, vFC = vXD, vXD + 1, vXR, vXR + 2
vCN = vFC + 1
vSA, vSR, vSV = 14, 0, 30
SBAR = MISC + 4096
SOFT = 'softbar' in EXP
class Soft:
    n = 0
def sb_arrive(A):
    Soft.n += 1
    A.e(f"v_mov_b32 v{vS}, {Soft.n}")
    A.ds(f"ds_write_b32 v{vSA}, v{vS}", "sbw")
def sb_read(A): A.ds(f"ds_read_b32 v{vSV}, v{vSR}", "sbr")
def sb_check(A):
    l1, l2 = A.newlabel("L_sb"), A.newlabel("L_sbs")
    A.wait_lg("sbr")
    A.e(f"v_cmp_gt_u32 vcc, {Soft.n}, v{vSV}")
    A.e(f"s_cbranch_vccnz {l2}")
    A.label(l1)
    A.slow.append((l2, l1, Soft.n))
def sb_slow(A):
    for l2, l1, n in A.slow:
        A.label(l2)
        A.e(f"ds_read_b32 v{vSV}, v{vSR}")
        A.e("s_waitcnt lgkmcnt(0)")
        A.e(f"v_cmp_gt_u32 vcc, {n}, v{vSV}")
        A.e(f"s_cbranch_vccnz {l2}")
        A.e(f"s_branch {l1}")
G0 = 18
AOFF = 0 if 'single0' in EXP else 36
PB0 = int(os.environ.get('PB0', 10))
PB1 = int(os.environ.get('PB1', 6))
N0 = int(os.environ.get('N0', 3))
N2 = int(os.environ.get('N2', 6))
P0V = int(os.environ.get('P0V', 1))
FLUSH = int(os.environ.get('FLUSH', 0))
def xreg(rb, s):
    if rb == 0: return f"a[{4*s}:{4*s+3}]"
    if s < 12: return f"a[{208+4*s}:{211+4*s}]"
    if s < 28: return f"a[{144+4*(s-12)}:{147+4*(s-12)}]"
    return f"v[{224+4*(s-28)}:{227+4*(s-28)}]"
def hs(pi): return HS + 64 if pi == 0 else HS + 16*(pi - 1)

def rw_entries(A, lo, hi):
    for kl in range(lo, hi):
        A.e(f"s_mul_i32 s{s_rw+kl}, s{s_rho}, {64*9216}")
        if kl < 8:
            A.e(f"s_add_u32 s{s_rho}, s{s_rho}, 1")
            A.e(f"s_cmp_eq_u32 s{s_rho}, 9")
            A.e(f"s_cselect_b32 s{s_rho}, 0, s{s_rho}")
def prologue(A):
    T = MT
    if 'cpf0' in EXP:
        A.e(f"s_getpc_b64 s[{s_ret}:{s_ret+1}]")
        A.e("v_lshlrev_b32 v2, 7, v0")
        A.e("v_and_b32 v2, 0x1fff, v2")
        A.vmem(f"global_load_dword v{HS}, v2, s[{s_ret}:{s_ret+1}]", "cpf")
    for r, n in ((sX, "u"), (sW1, "w1"), (sT0, "b1"), (sWS, "ws"), (sW2, "w2"), (sDBG, "dbg"), (sT1, "out")):
        A.e(f"s_load_dwordx2 s[{r}:{r+1}], s[0:1], {KA[n]}")
    A.e("v_lshrrev_b32 v2, 6, v0")
    A.e("v_and_b32 v1, 63, v0")
    A.e("s_and_b32 s3, s2, 7")
    A.e(f"v_readfirstlane_b32 s{s_w}, v2")
    A.e(f"s_lshr_b32 s{s_kq}, s3, 1")
    A.e("s_and_b32 s3, s3, 1")
    A.e("s_lshl_b32 s3, s3, 3")
    A.e(f"s_lshr_b32 s{s_m7}, s2, 5")
    A.e(f"s_add_u32 s{s_m}, s{s_m7}, s3")
    A.e(f"s_mul_i32 s{s_rho}, s{s_r}, 3")
    A.e(f"s_add_u32 s{s_rho}, s{s_rho}, s{s_m7}")
    mod_small(A, s_rho, s_rho, 9)
    rw_entries(A, 0, 2)
    A.e(f"s_mul_i32 s{s_t2}, s{s_kq}, 2304")
    A.e(f"s_mul_i32 s{s_t1}, s{s_r}, 768")
    A.e(f"s_add_u32 s{s_t2}, s{s_t2}, s{s_t1}")
    A.e(f"s_lshl_b32 s{s_wl}, s{s_w}, 11")
    A.e(f"s_mul_i32 s{s_pc}, s{s_w}, 20480")
    A.e(f"v_lshrrev_b32 v{T}, 3, v1")
    A.e(f"v_and_b32 v{T+1}, 7, v1")
    A.e(f"s_lshl_b32 s{s_t0}, s{s_m}, 7")
    A.e(f"s_lshl_b32 s{s_t1}, s{s_w}, 5")
    A.e(f"s_add_u32 s{s_t0}, s{s_t0}, s{s_t1}")
    A.e(f"v_add_u32 v{T+2}, s{s_t0}, v{T}")
    A.e(f"v_mul_u32_u24 v{T+2}, 1152, v{T+2}")
    A.e(f"v_lshrrev_b32 v{T+3}, 1, v{T}")
    A.e(f"v_xor_b32 v{T+3}, v{T+3}, v{T+1}")
    A.e(f"v_lshl_add_u32 v{vXD}, v{T+3}, 4, v{T+2}")
    A.e(f"v_xor_b32 v{vXD+1}, 64, v{vXD}")
    A.e(f"v_add_u32 v{vXD+1}, 8192, v{vXD+1}")
    A.e(f"s_lshl_b32 s{s_t0}, s{s_w}, 4")
    A.e(f"v_add_u32 v{T+2}, s{s_t0}, v{T}")
    A.e(f"v_mul_u32_u24 v{T+2}, 9216, v{T+2}")
    A.e(f"v_lshlrev_b32 v{T+3}, 1, v{T}")
    A.e(f"v_and_b32 v{T+3}, 4, v{T+3}")
    A.e(f"v_xor_b32 v{T+3}, v{T+3}, v{T+1}")
    A.e(f"v_lshl_add_u32 v{vWD}, v{T+3}, 4, v{T+2}")
    A.e(f"v_add_u32 v{vWD+1}, {8*9216 - 1024}, v{vWD}")
    A.e(f"v_lshlrev_b32 v{MT+2}, 1, v0")
    for r, n in ((sX, L_*D_*2), (sW1, 575*9216 + 256), (sT0, F_*2)):
        A.e(f"s_mov_b32 s{r+2}, {hex(n)}"); A.e(f"s_mov_b32 s{r+3}, 0x00020000")
    A.e("s_waitcnt lgkmcnt(0)")
    A.e(f"s_add_u32 s{sW1}, s{sW1}, s{s_t2}")
    A.e(f"s_addc_u32 s{sW1+1}, s{sW1+1}, 0")

def setupA(A):
    T = MT + 4
    A.e(f"s_mov_b32 s{s_log2e}, {fhex(LOG2E)}")
    A.e(f"v_and_b32 v{T}, 31, v1")
    A.e(f"v_lshrrev_b32 v{T+1}, 5, v1")
    A.e(f"v_lshrrev_b32 v{T+2}, 1, v{T}")
    A.e(f"v_and_b32 v{T+2}, 7, v{T+2}")
    A.e(f"v_xor_b32 v{T+2}, v{T+2}, v{T+1}")
    A.e(f"s_lshr_b32 s{s_t0}, s{s_w}, 1")
    A.e(f"s_mul_i32 s{s_t0}, s{s_t0}, 40960")
    A.e(f"s_add_u32 s{s_t0}, s{s_t0}, {XRING}")
    A.e(f"v_lshlrev_b32 v{T+3}, 7, v{T}")
    A.e(f"v_add_u32 v{T+3}, s{s_t0}, v{T+3}")
    for ks in range(4):
        A.e(f"v_xor_b32 v{T+4}, {2*ks}, v{T+2}")
        A.e(f"v_lshl_add_u32 v{vXR+ks}, v{T+4}, 4, v{T+3}")
    A.e(f"s_and_b32 s{s_t1}, s{s_w}, 1")
    A.e(f"s_lshl_b32 s{s_t0}, s{s_t1}, 7")
    A.e(f"s_add_u32 s{s_t0}, s{s_t0}, {M_BIAS}")
    A.e(f"v_lshlrev_b32 v{vBI}, 4, v{T+1}")
    A.e(f"v_add_u32 v{vBI}, s{s_t0}, v{vBI}")
    A.e(f"v_lshrrev_b32 v{T}, 2, v1")
    A.e(f"v_and_b32 v{T}, 3, v{T}")
    A.e(f"v_lshl_add_u32 v{T+2}, v{T+1}, 3, v{T}")
    A.e(f"v_lshlrev_b32 v{T+2}, 7, v{T+2}")
    A.e(f"v_lshrrev_b32 v{T+3}, 1, v{T}")
    A.e(f"v_xor_b32 v{T+3}, s{s_t1}, v{T+3}")
    A.e(f"v_lshl_add_u32 v{T+2}, v{T+3}, 6, v{T+2}")
    A.e(f"v_lshrrev_b32 v{T+3}, 4, v1")
    A.e(f"v_and_b32 v{T+3}, 1, v{T+3}")
    A.e(f"v_lshl_add_u32 v{T+2}, v{T+3}, 5, v{T+2}")
    A.e(f"v_and_b32 v{T+4}, 3, v1")
    A.e(f"v_lshl_add_u32 v{vAR}, v{T+4}, 3, v{T+2}")
    for j in (1, 2): A.e(f"v_add_u32 v{vAR+j}, {j*2*SLOT}, v{vAR}")

def setupB(A):
    T = MT + 4
    for r, n in ((sWS, WS_BYTES), (sW2, D_*F_*2), (sDBG, 256), (sT1, L_*D_*2)):
        A.e(f"s_mov_b32 s{r+2}, {hex(n)}"); A.e(f"s_mov_b32 s{r+3}, 0x00020000")
    A.e(f"v_lshlrev_b32 v{vL16}, 4, v1")
    A.e(f"s_lshl_b32 s{s_t0}, s{s_m}, 2")
    A.e(f"s_add_u32 s{s_t0}, s{s_t0}, s{s_kq}")
    A.e(f"s_lshl_b32 s{s_hb}, s{s_t0}, 2")
    A.e(f"s_lshl_b32 s{s_fi}, s{s_t0}, 3")
    A.e(f"s_add_u32 s{s_fi}, s{s_fi}, s{s_r}")
    A.e(f"s_lshl_b32 s{s_fi}, s{s_fi}, 2")
    A.e(f"s_add_u32 s{s_fi}, s{s_fi}, s{s_w}")
    A.e(f"s_lshl_b32 s{s_fi}, s{s_fi}, 2")
    A.e(f"s_add_u32 s{s_fi}, s{s_fi}, {WS_F}")
    A.e(f"s_add_u32 s{s_hb}, s{s_hb}, s{s_w}")
    A.e(f"s_mul_i32 s{s_hb}, s{s_hb}, 73728")
    A.e(f"s_mul_i32 s{s_t0}, s{s_r}, 24576")
    A.e(f"s_add_u32 s{s_hb}, s{s_hb}, s{s_t0}")
    A.e(f"s_add_u32 s{s_t0}, s{s_wl}, {EX}")
    A.e(f"v_add_u32 v{vEW}, s{s_t0}, v{vL16}")
    A.e(f"v_xor_b32 v{vER}, 2048, v{vEW}")
    A.e(f"v_lshrrev_b32 v{T+1}, 5, v1")
    A.e(f"v_lshrrev_b32 v{T}, 2, v1")
    A.e(f"v_and_b32 v{T}, 3, v{T}")
    A.e(f"v_lshrrev_b32 v{T+3}, 4, v1")
    A.e(f"v_and_b32 v{T+3}, 1, v{T+3}")
    A.e(f"v_and_b32 v{T+4}, 3, v1")
    A.e(f"v_lshl_add_u32 v{T+1}, v{T+1}, 2, v{T}")
    A.e(f"v_mul_u32_u24 v{T+1}, 384, v{T+1}")
    A.e(f"v_lshl_add_u32 v{T+1}, v{T+3}, 5, v{T+1}")
    A.e(f"v_lshl_add_u32 v{T+1}, v{T+4}, 3, v{T+1}")
    A.e(f"v_lshrrev_b32 v{T}, 1, v{T}")
    A.e(f"v_lshlrev_b32 v{T}, 6, v{T}")
    A.e(f"v_add_u32 v{vA2}, v{T+1}, v{T}")
    A.e(f"v_sub_u32 v{vA2+1}, v{T+1}, v{T}")
    for j in (1, 2):
        A.e(f"v_add_u32 v{vA2+2*j}, {j*2*SLOT}, v{vA2}")
        A.e(f"v_add_u32 v{vA2+2*j+1}, {j*2*SLOT}, v{vA2+1}")
    A.e(f"s_mul_i32 s{s_w2l}, s{s_w}, 6144")
    A.e(f"s_mul_i32 s{s_t0}, s{s_r}, 24576")
    A.e(f"s_sub_u32 s{s_t0}, s{s_hb}, s{s_t0}")
    A.e(f"s_mul_i32 s{s_t1}, s{s_kq}, {1152*1152}")
    A.e(f"s_mul_i32 s{s_t2}, s{s_r}, 384")
    A.e(f"s_add_u32 s{s_t1}, s{s_t1}, s{s_t2}")
    for idx in range(3):
        A.e(f"s_add_u32 s{s_t2}, s{s_r}, {idx}")
        mod_small(A, s_t2, s_t2, 3)
        if idx: A.e(f"s_mov_b32 s{s_rr+idx-1}, s{s_t2}")
        A.e(f"s_mul_i32 s{s_t3}, s{s_t2}, {384*1152}")
        A.e(f"s_add_u32 s{s_sl+idx}, s{s_t1}, s{s_t3}")
        A.e(f"s_mul_i32 s{s_t3}, s{s_t2}, 24576")
        A.e(f"s_add_u32 s{s_hs+idx}, s{s_t0}, s{s_t3}")
    A.e(f"s_mul_i32 s{s_t0}, s{s_w}, {16*1152}")
    A.e(f"s_add_u32 s{s_t1}, s{s_kq}, 1")
    A.e(f"s_and_b32 s{s_t1}, s{s_t1}, 3")
    A.e(f"s_mul_i32 s{s_t1}, s{s_t1}, 6")
    for i3 in range(3):
        A.e(f"v_add_u32 v{T}, {64*i3}, v1")
        A.e(f"v_mul_u32_u24 v{T+1}, 2731, v{T}")
        A.e(f"v_lshrrev_b32 v{T+1}, 16, v{T+1}")
        A.e(f"v_mul_u32_u24 v{T+2}, 24, v{T+1}")
        A.e(f"v_sub_u32 v{T+2}, v{T}, v{T+2}")
        A.e(f"v_lshlrev_b32 v{T+3}, 1, v{T+1}")
        A.e(f"v_and_b32 v{T+3}, 4, v{T+3}")
        A.e(f"v_xor_b32 v{T+2}, v{T+2}, v{T+3}")
        A.e(f"v_add_u32 v{T+2}, s{s_t1}, v{T+2}")
        A.e(f"v_subrev_u32 v{T+3}, 24, v{T+2}")
        A.e(f"v_min_u32 v{T+2}, v{T+2}, v{T+3}")
        A.e(f"v_mul_u32_u24 v{T+1}, 1152, v{T+1}")
        A.e(f"v_lshl_add_u32 v{T+1}, v{T+2}, 4, v{T+1}")
        A.e(f"v_add_u32 v{T+1}, s{s_t0}, v{T+1}")
        for g in range(2):
            i = 3*g + i3
            A.e(f"v_add_u32 v{vW2D+i}, {hex((g*8*1152 - (i&3)*1024) & 0xffffffff)}, v{T+1}")
    A.e(f"s_mul_i32 s{s_fp}, s{s_m}, 3")
    A.e(f"s_add_u32 s{s_fp}, s{s_fp}, s{s_r}")
    A.e(f"s_lshl_b32 s{s_pb}, s{s_fp}, 2")
    A.e(f"s_lshl_b32 s{s_fp}, s{s_fp}, 11")
    A.e(f"s_add_u32 s{s_fp}, s{s_fp}, {F_P2}")

def x_dma_ops(kl):
    m = Op(f"s_add_u32 m0, s{s_pc}, {XRING + (kl % 5)*4096}", kind="salu")
    s1 = Op(f"s_mul_hi_u32 s{s_so}, s{s_rw+kl}, {-(-(1 << 32)//4608)}", kind="salu")
    o = [m, s1]
    for i in range(4):
        if i == 2: o.append(Op(f"s_add_u32 s{s_so}, s{s_so}, 16384", kind="salu"))
        o.append(Op(f"buffer_load_dwordx4 v{vXD+(i&1)}, s[{sX}:{sX+3}], s{s_so} offen offset:{i*1024} lds", kind="vmem", tag=f"x{kl}", deps=[(m, 2)]))
    return o
def x_read(A, kl):
    for rb in range(2):
        for ks in range(4):
            A.ds(f"ds_read_b128 {xreg(rb, 4*kl+ks)}, v{vXR+ks} offset:{rb*20480 + (kl % 5)*4096}", f"xr{kl}")
def w1_line_ops(st, j, slot):
    kl = 3*(st % 3) + j
    m = Op(f"s_add_u32 m0, s{s_wl}, {slot*SLOT + j*8192}", kind="salu")
    return [m] + [Op(f"buffer_load_dwordx4 v{vWD+i}, s[{sW1}:{sW1+3}], s{s_rw+kl} offen offset:{i*1024} lds", kind="vmem", tag=(f"W{kl}" if st < 3 else f"st{st}"), deps=[(m, 2)]) for i in range(2)]
def w1_dma_ops(st, slot):
    o = []
    if st % 3 == 0: o.append(Op(f"s_add_u32 s{sW1}, s{sW1}, {256 if (st == 6 and 'single0' not in EXP) else 128}\n    s_addc_u32 s{sW1+1}, s{sW1+1}, 0", kind="salu", cost=8))
    for j in range(3): o += w1_line_ops(st, j, slot)
    return o
FIRST = ("x0", "W0", "x1", "W1", "x2", "W2", "x3", "W3", "x4", "W4")
def first_ops(k):
    n = int(k[1])
    return x_dma_ops(n) if k[0] == "x" else w1_line_ops(n // 3, n % 3, n // 3)

def mish_ops(pi, done_pos, TMP=TMP, prev=None):
    ops = []; G = []
    for grp in range(16):
        rb = grp // 8
        es = [2*grp, 2*grp + 1]
        tb = MT + (grp % 3)*4
        m = [Op(f"v_mul_f32 v{tb+2*i}, s{s_log2e}, v{TMP+e}", deps=[(done_pos[rb], 13)]) for i, e in enumerate(es)]
        x = [Op(f"v_exp_f32 v{tb+2*i}, v{tb+2*i}", cost=8, trans=True, deps=[(m[i], 1)]) for i in range(2)]
        p = [Op(f"v_fma_f32 v{tb+2*i+1}, v{tb+2*i}, -0.5, -1.0", deps=[(x[i], 2)]) for i in range(2)]
        d = [Op(f"v_fma_f32 v{tb+2*i+1}, v{tb+2*i}, v{tb+2*i+1}, -1.0", deps=[(p[i], 1)]) for i in range(2)]
        r = [Op(f"v_rcp_f32 v{tb+2*i+1}, v{tb+2*i+1}", cost=8, trans=True, deps=[(d[i], 1)]) for i in range(2)]
        y = [Op(f"v_fmac_f32 v{TMP+e}, v{TMP+e}, v{tb+2*i+1}", deps=[(r[i], 2)]) for i, e in enumerate(es)]
        c = Op(f"v_cvt_pk_bf16_f32 v{hs(pi)+grp}, v{TMP+es[0]}, v{TMP+es[1]}", deps=[(y[0], 1), (y[1], 1)])
        Gp = G[grp-3] if grp >= 3 else (prev[13 + (grp + 2) % 3] if prev else None)
        if Gp:
            for i in range(2):
                m[i].deps.append((Gp[0][i], 1)); p[i].deps.append((Gp[1][i], 1))
        G.append((d, y))
        ops += m + x + p + d + r + y + [c]
    mish_ops.G = G
    return ops
def ex_block(A, pi, send, ks=(0, 1)):
    l1, l2 = A.newlabel("L_ex"), A.newlabel("L_exe")
    A.e(f"s_bitcmp1_b32 s{s_w}, 0")
    A.e(f"s_cbranch_scc1 {l1}")
    for par in range(2):
        b = hs(pi) + (8 if par == 0 else 0)
        for k in ks:
            t = (f"ds_write_b128 v{vEW}, v[{b+4*k}:{b+4*k+3}] offset:{1024*k}" if send else f"ds_read_b128 v[{b+4*k}:{b+4*k+3}], v{vER} offset:{1024*k}")
            if par == 0: A.ds(t, f"ex{'s' if send else 'r'}{pi}")
            else: A.e(t)
        if par == 0:
            A.e(f"s_branch {l2}"); A.label(l1)
    A.label(l2)
def h_store_ops(pi):
    o = [Op(f"buffer_store_dwordx4 v[{hs(pi)+4*q}:{hs(pi)+4*q+3}], v{vL16}, s[{sWS}:{sWS+3}], s{s_hb} offen offset:{q*1024}{'' if 'plainH' in EXP else SC}", kind="vmem", tag=f"h{pi}") for q in range(4)]
    o.append(Op(f"s_add_u32 s{s_hb}, s{s_hb}, 4096", kind="salu"))
    return o
def reread_ops(pi, n):
    if 'rr' not in EXP: return []
    v = f"v_lshlrev_b32 v{TMP2}, 7, v1" if n == 2 else f"v_lshlrev_b32 v{TMP2}, 5, v{vFL}"
    return [Op(f"{v}\n    s_add_u32 s{s_t1}, s{s_hs}, {pi*4096}\n    buffer_load_dword v{TMP2+1}, v{TMP2}, s[{sWS}:{sWS+3}], s{s_t1} offen{SC}", kind="vmem", tag="rr", cost=12)]
def flag_ops(ev):
    return [Op(f"v_mov_b32 v{vS}, {ev+1}\n    s_add_u32 s{s_t1}, s{s_fi}, {ev*8192}\n    buffer_store_dword v{vS}, off, s[{sWS}:{sWS+3}], s{s_t1}{SC}", kind="vmem", tag="flag", cost=12)]
def bias_read(A, pi, BIAS=BIAS):
    for g in range(4):
        A.ds(f"ds_read_b128 v[{BIAS+4*g}:{BIAS+4*g+3}], v{vBI} offset:{256*pi + 32*g}", f"bias{pi}")
def a_reads(A, gs, ring):
    st, ks = gs // 12, gs % 12
    slot = ring.slot[st]; buf = ARING[(gs - AOFF) % 5]
    for rd in range(2):
        A.ds(f"ds_read_b64_tr_b16 v[{buf+2*rd}:{buf+2*rd+1}], v{vAR+slot//2} offset:{(slot%2)*SLOT + (16*ks+4*rd)*128}", f"a{gs}")

def pump(q, bud, maxv):
    u = nv = 0
    while q.q and q.ready(q.q[0]):
        o = q.q[0]
        if o.kind == "vmem":
            if nv >= maxv: break
            nv += 1
        if u and u + o.cost > bud: break
        if u == 0 and bud <= 0: break
        q.q.pop(0); q.emit(o); u += o.cost
    return u

ACCB, BIASB = HS + 32, HS + 16
BRING = [TMP + 4*i for i in range(5)]
def wimg_ops(n):
    kl, b = n // 2, n % 2
    m = Op(f"s_add_u32 m0, s{s_wl}, {(n % 9)*8192}" + (f"\n    s_add_u32 s{s_so}, s{s_rw+kl}, 128" if b else ""), kind="salu")
    return [m] + [Op(f"buffer_load_dwordx4 v{vWD+i}, s[{sW1}:{sW1+3}], s{s_so if b else s_rw+kl} offen offset:{i*1024} lds", kind="vmem", tag=f"W{kl}", deps=[(m, 2)]) for i in range(2)]
def a0_reads(A, gs):
    kl, ks = gs // 4, gs % 4
    for b in range(2):
        o = ((2*kl + b) % 9)*8192 + 16*ks*128
        base = vAR if o < 49152 else vAR + 1
        if o >= 49152: o -= 49152
        buf = (ARING if b == 0 else BRING)[gs % 5]
        for rd in range(2):
            A.ds(f"ds_read_b64_tr_b16 v[{buf+2*rd}:{buf+2*rd+1}], v{base} offset:{o + 512*rd}", f"a{gs}")
def flush_tags(A, memq, tg):
    while any(o.tag in tg for o in memq.q):
        o = memq.q.pop(0)
        while not memq.ready(o): A.e("s_nop 0")
        memq.emit(o)

def phase0(A):
    ring = Ring(); ring.slot = {}; ring.next = 6
    xo, wo = x_dma_ops(0), wimg_ops(0)
    emit_now(A, xo[:3]); emit_now(A, wo[:2])
    A.vmem(f"buffer_load_ushort v{MT}, v{MT+2}, s[{sT0}:{sT0+3}], s{s_t2} offen", "b1")
    A.e(f"s_mov_b32 s{s_line}, s{s_t2}")
    setup2(A)
    emit_now(A, wo[2:])
    xo2 = x_dma_ops(0); emit_now(A, xo2[:1] + xo2[3:])
    emit_now(A, wimg_ops(1))
    A.vmem(f"buffer_load_ushort v{MT+1}, v{MT+2}, s[{sT0}:{sT0+3}], s{s_line} offen offset:512", "b1")
    rest = []
    for kl in range(1, 5):
        rest.append(x_dma_ops(kl)); rest.append(wimg_ops(2*kl))
        if kl < 4: rest.append(wimg_ops(2*kl + 1))
    for g in rest[:N0]: emit_now(A, g)
    A.wait_vm("b1")
    A.e(f"v_lshlrev_b32 v{MT}, 16, v{MT}")
    A.e(f"v_lshlrev_b32 v{MT+1}, 16, v{MT+1}")
    A.e(f"v_lshlrev_b32 v{MT+2}, 2, v0")
    A.e(f"v_add_u32 v{MT+2}, {M_BIAS}, v{MT+2}")
    A.ds(f"ds_write_b32 v{MT+2}, v{MT}", "bw")
    A.ds(f"ds_write_b32 v{MT+2}, v{MT+1} offset:1024", "bw")
    A.slow = []
    A.wait_lg("bw")
    A.e("s_barrier")
    stamp(A, 2)
    memq = Filler(A)
    for g in rest[N0:]: memq.add(g)
    bias_read(A, 0); bias_read(A, 1, BIASB); a0_reads(A, 0); x_read(A, 0)
    for gs in range(1, 4): a0_reads(A, gs)
    xrd = {0: [1], 4: [2], 8: [3], 12: [4], 16: [5, 6], 20: [7, 8]}
    done = {}
    for gs in range(36):
        order = [(0, 0), (0, 1), (1, 0), (1, 1)] if gs < 35 else [(1, 0), (1, 1), (0, 0), (0, 1)]
        for q, (b, rb) in enumerate(order):
            if gs == 0 and q == 0: A.wait_lg(["bias1", "a0", "xr0"])
            acc = (ACC if b == 0 else ACCB) + 16*rb
            cin = (BIAS if b == 0 else BIASB) if gs == 0 else acc
            dst = TMP + 16*rb if (gs == 35 and b == 0) else acc
            buf = (ARING if b == 0 else BRING)[gs % 5]
            A.e(f"v_mfma_f32_32x32x16_bf16 v[{dst}:{dst+15}], v[{buf}:{buf+3}], {xreg(rb, gs)}, v[{cin}:{cin+15}]")
            if gs == 35: done[(b, rb)] = A.n - 1
            if q == 0:
                if gs % 4 == 0:
                    j = gs // 4
                    tg = ([f"W{j+1}"] if j < 8 else ["st6"]) + [f"x{k}" for k in xrd.get(gs, [])]
                    flush_tags(A, memq, tg)
                    A.wait_vm(tg)
                    if gs == 24: A.wait_lg("xr8")
                    A.e("s_barrier")
                    if j + 5 <= 8: memq.add(x_dma_ops(j + 5))
                    for n in (2*j + 7, 2*j + 8):
                        if 9 <= n <= 17: memq.add(wimg_ops(n))
                    if gs == 24: ring.free += [3, 4, 5]
                    if gs == 28: ring.free += [0]
                    for k in ring.alloc(G0 + 18): memq.add(w1_dma_ops(k, ring.slot[k]))
                if gs % 2 == 0:
                    A.wait_lg([f"a{gs+1}", f"a{gs+2}", f"xr{(gs+1)//4}", f"xr{(gs+2)//4}"] if gs < 34 else ["a35", "a72"])
                if gs + 4 < 36: a0_reads(A, gs + 4)
                else: a_reads(A, 72 + gs - 32, ring)
            if q == 1:
                for k in xrd.get(gs, []): x_read(A, k)
                if gs == 22: bias_read(A, 2)
            nv = sum(o.kind == "vmem" for o in memq.q)
            if q in (1, 3) or (q == 2 and nv > PB0): pump(memq, 40, 1)
    return ring, memq, done

def p1(A):
    if 'single0' not in EXP: return p1_rest(A, *phase0(A))
    return p1_old(A)
def p1_old(A):
    nsteps = 216
    ring = Ring()
    for k in FIRST[:2]: emit_now(A, first_ops(k))
    A.vmem(f"buffer_load_ushort v{MT}, v{MT+2}, s[{sT0}:{sT0+3}], s{s_t2} offen", "b1")
    A.vmem(f"buffer_load_ushort v{MT+1}, v{MT+2}, s[{sT0}:{sT0+3}], s{s_t2} offen offset:512", "b1")
    for k in FIRST[2:4]: emit_now(A, first_ops(k))
    rw_entries(A, 2, 9)
    setupA(A)
    for k in FIRST[4:N2]: emit_now(A, first_ops(k))
    class Cap:
        def __init__(s): s.l = []
        def e(s, t): s.l.append(t)
    cap = Cap(); setupB(cap); A.late = cap.l
    if 'rst' in EXP: stamp(A, 5)
    A.wait_vm("b1")
    if 'rst' in EXP: stamp(A, 6)
    A.e(f"v_lshlrev_b32 v{MT}, 16, v{MT}")
    A.e(f"v_lshlrev_b32 v{MT+1}, 16, v{MT+1}")
    A.e(f"v_lshlrev_b32 v{MT+2}, 2, v0")
    A.e(f"v_add_u32 v{MT+2}, {M_BIAS}, v{MT+2}")
    A.ds(f"ds_write_b32 v{MT+2}, v{MT}", "bw")
    A.ds(f"ds_write_b32 v{MT+2}, v{MT+1} offset:1024", "bw")
    A.slow = []
    A.e(f"s_lshl_b32 s{s_t0}, s{s_w}, 2")
    A.e(f"s_add_u32 s{s_t0}, s{s_t0}, {SBAR}")
    A.e(f"v_mov_b32 v{vSA}, s{s_t0}")
    A.e(f"v_mov_b32 v{vS}, 0")
    A.e(f"v_and_b32 v{vSR}, 3, v1")
    A.e(f"v_lshlrev_b32 v{vSR}, 2, v{vSR}")
    A.e(f"v_add_u32 v{vSR}, {SBAR}, v{vSR}")
    A.ds(f"ds_write_b32 v{vSA}, v{vS}", "bw")
    A.wait_vm(["x0", "W0"]); A.wait_lg("bw")
    if 'rst' in EXP:
        stamp(A, 7); A.e("s_barrier"); stamp(A, 2); stamp_flush(A); A.e("s_endpgm")
    A.e("s_barrier")
    if 'p2st' not in EXP: stamp(A, 2)
    bias_read(A, 0); a_reads(A, 0, ring); x_read(A, 0)
    for gs in range(1, 4): a_reads(A, gs, ring)
    memq = Filler(A); valq = Filler(A); stq = Filler(A)
    done = {}
    xsched = {0: ([1], [1]), 4: ([2], [2]), 8: ([3], [3]), 12: ([4], [4]), 16: ([5], [5]), 20: ([6], [6]), 24: ([7, 8], [7, 8]), 28: ([], [])}
    xdma = {0: ["x5", "W5"], 4: ["x6", "W6"], 8: ["x7", "W7"], 12: ["x8", "W8"]}
    for k in FIRST[N2:]: memq.add(first_ops(k))
    return p1_loop(A, 0, ring, memq, valq, stq, done, xsched, xdma)
def p1_rest(A, ring, memq, done):
    return p1_loop(A, 72, ring, memq, Filler(A), Filler(A), done, {}, {})
def p1_loop(A, gs0, ring, memq, valq, stq, done, xsched, xdma):
    nsteps = 216
    dbl = gs0 == 72
    sent0 = False
    xq = []
    for gs in range(gs0, nsteps):
        pair, s = gs // 36, gs % 36
        st, ks = gs // 12, gs % 12
        if gs == 72 and not (EXP & {'p1st', 'p2st'}): stamp(A, 3)
        if 'p1st' in EXP and gs % 36 == 0 and gs: stamp(A, 1 + gs//36)
        if s == 0 and pair > 0:
            pp = pair - 1
            if pair == 3: valq.add(pre_p2_ops())
            if dbl and pair == 2:
                m0 = mish_ops(0, [lambda: done[(0, 0)], lambda: done[(0, 1)]]); valq.add(m0)
                valq.add(mish_ops(1, [lambda: done[(1, 0)], lambda: done[(1, 1)]], TMP=ACCB, prev=mish_ops.G))
            if 'nomish' not in EXP and not (dbl and pair == 2): valq.add(mish_ops(pp, [lambda p=pp: done.get((p, 0)), lambda p=pp: done.get((p, 1))]))
        if gs == 150: memq.add([Op(f"buffer_load_dword v{vCN}, off, s[{sDBG}:{sDBG+3}], 0{SC}", kind="vmem", tag="cnt")])
        for rb in range(2):
            if s == 0 and rb == 0: A.wait_lg([f"bias{pair}", f"a{gs}", "xr0"])
            acc = ACC + 16*rb
            cin = BIAS if s == 0 else acc
            dst = (TMP + 16*rb) if s == 35 else acc
            if s == 35: assert not valq.q
            buf = ARING[(gs - AOFF) % 5]
            A.e(f"v_mfma_f32_32x32x16_bf16 v[{dst}:{dst+15}], v[{buf}:{buf+3}], {xreg(rb, s)}, v[{cin}:{cin+15}]")
            if s == 35: done[(pair, rb)] = A.n - 1
            n0 = A.n
            if rb == 0:
                bar = False
                if gs in xdma:
                    for k in xdma[gs]: memq.add(first_ops(k))
                if gs in xsched:
                    xs, ws = xsched[gs]
                    tg = [f"x{k}" for k in xs] + [f"W{k}" for k in ws]
                    while any(o.tag in tg for o in memq.q) or (memq.q and gs < FLUSH):
                        o = memq.q.pop(0)
                        while not memq.ready(o): A.e("s_nop 0")
                        memq.emit(o)
                    A.wait_vm(tg)
                    if gs == 28: A.wait_lg("xr8")
                    A.e("s_barrier"); bar = True
                elif SOFT and ks == SD1 and gs > 28:
                    tags = [f"st{st+1}"]
                    if gs + 8 - SD1 == 212: tags += ["cnt"]
                    A.wait_vm(tags)
                    if s + 8 - SD1 == 8 and pair >= 2: A.wait_lg(f"exs{pair-2}")
                    if s + 8 - SD1 == 20 and pair >= 2: A.wait_lg(f"exr{pair-2}")
                    sb_arrive(A)
                elif SOFT and ks == 8:
                    sb_check(A); bar = True
                    if gs == 212: check_counter(A)
                elif ks == 8:
                    tags = [f"st{st+1}"]
                    if gs == 188: tags += ["cnt", "h2"]
                    A.wait_vm(tags)
                    if s == 8 and pair >= 2: A.wait_lg(f"exs{pair-2}")
                    if s == 20 and pair >= 2: A.wait_lg([f"exr{pair-2}", "exs0"])
                    if s == 32: A.wait_lg("exr0")
                    if dbl and gs == 80: ring.free += [1, 2]
                    if dbl and gs == 92: assert sent0
                    A.e("s_nop 0" if 'nobar' in EXP else "s_barrier"); bar = True
                    if gs == 188:
                        check_counter(A); stq.q = flag_ops(0) + stq.q
                    if gs == 212: memq.add(flagcopy_ops(0))
                if bar:
                    for k in range(st + 1):
                        if 12*k + 11 < gs: ring.release(k)
                    if gs == 28: ring.free += [3, 4, 5]
                    for k in ring.alloc(G0 + 18):
                        if not ('now1' in EXP and k >= 6): memq.add(w1_dma_ops(k, ring.slot[k]) if k < 18 else w2_dma_ops(k, ring.slot[k]))
                if gs % 2 == 0:
                    A.wait_lg([f"a{gs+1}", f"a{gs+2}"] + ([f"xr{(gs+1)//4}", f"xr{(gs+2)//4}"] if pair == 0 else []) + ([f"exr{pair-2}"] if s == 10 else []) + (["exr0"] if gs == 94 else []))
                if s == (22 if (dbl and pair == 2) else 10) and pair >= 2: hst = h_store_ops(pair - 2)
                if pair >= 2 and s in ((22, 25, 28, 31) if (dbl and pair == 2) else HSITES):
                    if 'nost' not in EXP: stq.add([hst.pop(0)])
                    if len(hst) == 1: stq.add([hst.pop(0)])
                if gs + 4 < nsteps: a_reads(A, gs + 4, ring)
                else:
                    for j in (2*(gs - 212), 2*(gs - 212) + 1):
                        if j < LEAD: a2_read(A, j, ring)
                if gs in xsched:
                    class CQ:
                        def ds(s_, t, tag): xq.append((t, tag))
                    for k in xsched[gs][0]: x_read(CQ() if XRN else A, k)
                for _ in range(XRN if len(xq) <= 8 else 2*XRN):
                    if xq: A.ds(*xq.pop(0))
                if SOFT and ks == 7 and gs > 28: sb_read(A)
                if s == (20 if (dbl and pair == 2) else 8) and pair >= 2: ex_block(A, pair - 2, False)
                if s == 22 and pair + 1 < 6: bias_read(A, pair + 1)
                bud = 24 - 4*(A.n - n0)
                if pair == 0:
                    u = pump(memq, 40, P0V)
                elif 'oldpace' in EXP:
                    u = pump(stq, bud, 1)
                    if u == 0: u += pump(memq, max(bud - u, 4 if len(memq.q) > 12 else 0), 1)
                else:
                    nv = sum(o.kind == "vmem" for o in memq.q)
                    left = (7 - ks) % 12
                    u = pump(memq, bud, 1 if (gs % 2 == 1 or nv > left//2 + BK1) else 0) if bud > 0 else 0
                valq.fill(max(0, bud - u), allow_trans=False, window=30)
            else:
                u = 0
                for _ in range(XRN if len(xq) <= 6 else 2*XRN):
                    if xq: A.ds(*xq.pop(0))
                if gs % 4 == 1 and gs < 24: assert not xq
                if gs == 26: assert not xq
                if pair == 0:
                    if sum(o.kind == "vmem" for o in memq.q) > PB1: u = pump(memq, 40, P0V)
                elif 'oldpace' in EXP:
                    if len(memq.q) > 10: u = pump(memq, 8, 1)
                else:
                    u = pump(stq, 12, 1)
                    if u == 0 and sum(o.kind == "vmem" for o in memq.q) > BK2: u = pump(memq, 8, 1)
                if pair == 0 and gs >= 1:
                    n = 0
                    while A.late and (n < 4 or A.late[0].startswith(("s_cselect", "s_addc"))):
                        A.e(A.late.pop(0)); n += 1
                if gs == 35: assert not A.late
                rem = 33 - s
                work = valq.total()
                bud = 24 - u
                while work - bud > max(rem, 0)*PCAP and bud < (64 if (dbl and pair == 2) else 40): bud += 4
                if dbl and pair == 2:
                    left0 = sum(o.cost for o in m0 if o.pos is None)
                    while left0 - bud > max(17 - s, 0)*PCAP and bud < 64 and s <= 18: bud += 4
                    if s == 18 and left0: bud = left0 + 64
                fill_odd(valq, bud, window=30)
                if dbl and pair == 2 and not sent0 and all(o.pos is not None for o in m0):
                    ex_block(A, 0, True); sent0 = True
                if s == 34:
                    valq.drain()
                if s == 35 and pair >= 1: ex_block(A, pair - 1, True, (0,) if SPLITW else (0, 1))
                if SPLITW and s == 1 and pair >= 2: ex_block(A, pair - 2, True, (1,))
    valq.add(mish_ops(5, [lambda: done.get((5, 0)), lambda: done.get((5, 1))]))
    return ring, memq, valq, stq
HSITES = eval(os.environ.get('HSITES', '(10, 16, 24, 30)'))
SPLITW = int(os.environ.get('SPLITW', 0))
PSL = int(os.environ.get('PSL', 0))
LPOLL = int(os.environ.get('LPOLL', 0))
TWO = int(os.environ.get('TWO', 1))
EFJ = int(os.environ.get('EFJ', 428))
XRN = int(os.environ.get('XRN', 2))
P2M = int(os.environ.get('P2M', 0))
P2L = int(os.environ.get('P2L', 0))
BK1 = int(os.environ.get('BK1', 8))
BK2 = int(os.environ.get('BK2', 16))
SD1 = int(os.environ.get('SD1', 5))
SD2 = int(os.environ.get('SD2', 7))
PCAP = int(os.environ.get('PCAP', 32))

SEQ = [(0, 1), (0, 2), (0, 3), (0, 4), (0, 0), (0, 5), (1, 0), (1, 1), (1, 2), (2, 0), (2, 1), (2, 2), (1, 3), (2, 3), (1, 4), (2, 4), (1, 5), (2, 5)]
IMP = [k for k, (i, p) in enumerate(SEQ) if not (i == 0 and p > 0)]
aR = 208
LEAD = 7
def acc2(t): return [32, 48, 96, 112, 224, 240][t]
def hreg(step):
    k, j = step // 4, step % 4
    if k in IMP:
        b = 16*IMP.index(k) + 4*j
        return f"a[{b}:{b+3}]"
    b = hs(SEQ[k][1]) + 4*j
    return f"v[{b}:{b+3}]"
def w2_dma_ops(gst, slot):
    idx, pi = SEQ[gst - G0]
    tag = f"st{gst}"
    m0a = Op(f"s_add_u32 m0, s{s_w2l}, {slot*SLOT}", kind="salu")
    so = Op(f"s_add_u32 s{s_so}, s{s_sl+idx}, {pi*64*1152}", kind="salu")
    o = [m0a, so]
    for i in range(4):
        o.append(Op(f"buffer_load_dwordx4 v{vW2D+i}, s[{sW2}:{sW2+3}], s{s_so} offen offset:{i*1024} lds", kind="vmem", tag=tag, deps=[(m0a, 2)]))
    m0b = Op(f"s_add_u32 m0, s{s_w2l}, {slot*SLOT + 4096}", kind="salu")
    o.append(m0b)
    for i in range(4, 6):
        o.append(Op(f"buffer_load_dwordx4 v{vW2D+i}, s[{sW2}:{sW2+3}], s{s_so} offen offset:{(i&3)*1024} lds", kind="vmem", tag=tag, deps=[(m0b, 2)]))
    return o
def h_load_ops(k):
    idx, pi = SEQ[k]
    return [Op(f"s_add_u32 s{s_t2}, s{s_hs+idx}, {pi*4096}", kind="salu")] + \
           [Op(f"buffer_load_dwordx4 {hreg(4*k+j)}, v{vL16}, s[{sWS}:{sWS+3}], s{s_t2} offen offset:{j*1024}{SC}", kind="vmem", tag=f"st{G0+k}") for j in range(4)]
def flagcopy_ops(ev):
    return [Op(f"s_lshl_b32 s{s_val}, s{s_w}, 8\n    s_add_u32 m0, s{s_val}, {M_FL}\n    s_and_b32 s{s_val}, s{s_fi}, 0xffffff80\n    s_add_u32 s{s_val}, s{s_val}, {ev*8192}\n"
               f"    buffer_load_dword v{vFL}, s[{sWS}:{sWS+3}], s{s_val} offen sc1 lds", kind="vmem", tag="fc", cost=20)]
def pre_p2_ops():
    o = [Op(f"v_and_b32 v{vFL}, 31, v1\n    v_lshlrev_b32 v{vFL}, 2, v{vFL}", cost=8),
         Op(f"v_and_b32 v{vFA}, 3, v1\n    v_lshlrev_b32 v{vFA}, 4, v{vFA}\n    s_mul_i32 s{s_val}, s{s_w}, 260\n    s_add_u32 s{s_val}, s{s_val}, {M_FL}\n    v_add_u32 v{vFA}, s{s_val}, v{vFA}", cost=20),
         Op(f"v_mov_b32 v{vFC}, 0\n    s_lshl_b32 s{s_val}, s{s_w}, 8\n    s_add_u32 s{s_val}, s{s_val}, {M_FL}\n    v_lshl_add_u32 v{vFC+1}, v1, 2, s{s_val}\n    ds_write_b32 v{vFC+1}, v{vFC}", cost=20, kind="ds", tag="fz")]
    return o
def check(A, lane_sgpr, ev):
    lab = A.newlabel("L_chk")
    A.e(f"v_readlane_b32 s{s_val}, v{vFC}, s{lane_sgpr}")
    A.e(f"s_movk_i32 s{s_need}, {ev*8192}")
    A.e(f"s_mov_b32 s{s_lane}, s{lane_sgpr}")
    A.e(f"s_cmp_eq_u32 s{s_val}, {ev+1}")
    A.e(f"s_cbranch_scc1 {lab}")
    A.e(f"s_call_b64 s[{s_ret}:{s_ret+1}], L_poll")
    A.label(lab)
def check_counter(A):
    lab = A.newlabel("L_chk")
    A.e(f"v_readfirstlane_b32 s{s_val}, v{vCN}")
    A.e("s_nop 0")
    A.e(f"s_cmp_ge_u32 s{s_val}, 64")
    A.e(f"s_cbranch_scc1 {lab}")
    A.e(f"s_call_b64 s[{s_ret}:{s_ret+1}], L_pollc")
    A.label(lab)
def poll_sub(A):
    A.label("L_poll")
    A.e(f"s_mov_b32 s{s_t0}, 0x20000")
    A.e(f"v_and_b32 v{TMP2}, 3, v1")
    A.e(f"v_lshlrev_b32 v{TMP2}, 4, v{TMP2}")
    A.label("L_poll_loop")
    A.e("s_sleep 2")
    A.e(f"s_and_b32 s{s_val}, s{s_fi}, 0xffffffcf")
    A.e(f"s_add_u32 s{s_val}, s{s_val}, s{s_need}")
    A.e(f"buffer_load_dword v{TMP2+1}, v{TMP2}, s[{sWS}:{sWS+3}], s{s_val} offen{SC}")
    A.e("s_waitcnt vmcnt(0)")
    A.e(f"v_readlane_b32 s{s_val}, v{TMP2+1}, s{s_lane}")
    A.e(f"s_sub_u32 s{s_t0}, s{s_t0}, 1")
    A.e("s_cbranch_scc1 L_poll_out")
    A.e(f"s_cmp_eq_u32 s{s_val}, 0")
    A.e("s_cbranch_scc1 L_poll_loop")
    A.label("L_poll_out")
    A.e(f"s_setpc_b64 s[{s_ret}:{s_ret+1}]")
    A.label("L_pollc")
    A.e(f"s_mov_b32 s{s_t0}, 0x20000")
    A.label("L_pollc_loop")
    A.e("s_sleep 2")
    A.e(f"buffer_load_dword v{TMP2+1}, off, s[{sDBG}:{sDBG+3}], 0{SC}")
    A.e("s_waitcnt vmcnt(0)")
    A.e(f"v_readfirstlane_b32 s{s_val}, v{TMP2+1}")
    A.e(f"s_sub_u32 s{s_t0}, s{s_t0}, 1")
    A.e("s_cbranch_scc1 L_pollc_out")
    A.e(f"s_cmp_lt_u32 s{s_val}, 64")
    A.e("s_cbranch_scc1 L_pollc_loop")
    A.label("L_pollc_out")
    A.e(f"s_setpc_b64 s[{s_ret}:{s_ret+1}]")
TM0 = 360
def jmap(j):
    if j < TM0: return j // 6, j % 6
    return 60 + (j - TM0) % 12, (j - TM0) // 12
def a2_read(A, j, ring):
    step, t = jmap(j)
    k, ks = step // 4, step % 4
    slot = ring.slot[G0 + k]; buf = aR + 4*(j % 12)
    for rd in range(2):
        A.ds(f"ds_read_b64_tr_b16 a[{buf+2*rd}:{buf+2*rd+1}], v{vA2+2*(slot//2)+(t&1)} offset:{(slot%2)*SLOT + (16*ks+8*rd)*384 + t*64}", f"f{j}")
PKR = [HS + 4*i for i in range(12)]
vOW = TMP + 12
def export_ops(t, done):
    ops = []
    for kk in range(2):
        p = 2*t + kk
        if p >= 9: continue
        a = acc2(t) + 8*kk; Q = PKR[p]
        c = [Op(f"v_cvt_pk_bf16_f32 v{Q+d}, v{a+2*d}, v{a+2*d+1}", deps=[(done, 13)]) for d in range(4)]
        sw = Op(f"v_permlane32_swap_b32 v{Q}, v{Q+2}\n    v_permlane32_swap_b32 v{Q+1}, v{Q+3}", cost=8, deps=[(x, 3) for x in c])
        st = Op(f"buffer_store_dwordx4 v[{Q}:{Q+3}], v{vL16}, s[{sWS}:{sWS+3}], s{s_sl + p//3} offen offset:{(p%3)*1024}{SC}", kind="vmem", tag=("xp" if p >= 6 else "xe"), deps=[(sw, 1)])
        ops += c + [sw, st]
        if p == 8:
            ops += [Op(f"v_permlane32_swap_b32 v{acc2(4)+8+e}, v{acc2(4)+12+e}", deps=[(done, 13)]) for e in range(4)]
    return ops

vYA, vYF, vYD, vGT, vRow = TMP, TMP + 4, TMP + 1, TMP + 8, TMP + 10
def y_prep_ops():
    t = [f"s_mul_i32 s{s_line}, s{s_r}, 192", f"s_mul_i32 s{s_val}, s{s_kq}, 48", f"s_add_u32 s{s_line}, s{s_line}, s{s_val}",
         f"s_mul_i32 s{s_val}, s{s_line}, 7282", f"s_lshr_b32 s{s_val}, s{s_val}, 16", f"v_add_u32 v{vYA}, s{s_val}, v1", f"v_min_u32 v{vYA}, 63, v{vYA}",
         f"s_lshl_b32 s{s_val}, s{s_m}, 2", f"s_add_u32 s{s_val}, s{s_val}, s{s_w}", f"v_mov_b32 v{vYD}, s{s_val}", "v_cmp_lt_u32 vcc, 6, v1",
         f"s_lshl_b32 s{s_upos}, s{s_val}, 5", f"s_mov_b32 s{s_yd}, 0", f"v_cndmask_b32 v{vYA}, v{vYA}, v{vYD}, vcc", f"v_lshlrev_b32 v{vYA}, 4, v{vYA}"]
    a = Op("\n    ".join(t), cost=60)
    t = [f"v_lshrrev_b32 v{vYD}, 2, v1", f"v_lshlrev_b32 v{vYD}, 12, v{vYD}", f"v_and_b32 v{vRow}, 3, v1", f"v_lshl_add_u32 v{vYD}, v{vRow}, 4, v{vYD}",
         f"v_and_b32 v{vRow}, 31, v1", f"v_lshlrev_b32 v{vRow+1}, 2, v{vRow}"]
    b = Op("\n    ".join(t), cost=24)
    t = [f"v_mov_b32 v{vYF+k}, 0" for k in range(4)] + [f"ds_write_b128 v{vEW}, v[{vYF}:{vYF+3}]"]
    c = Op("\n    ".join(t), cost=24, kind="ds", tag="yz")
    return [a, b, c]
vFW, vFR = TMP + 12, TMP + 13
def exp_prep_op():
    t = [f"s_mul_i32 s{s_need}, s{s_w}, 3072", f"s_add_u32 s{s_need}, s{s_need}, {WS_P}"]
    for q in range(3):
        t += [f"s_add_u32 s{s_val}, s{s_kq}, {q+1}", f"s_and_b32 s{s_val}, s{s_val}, 3",
              f"s_add_u32 s{s_lane}, s{s_pb}, s{s_val}", f"s_lshl_b32 s{s_lane}, s{s_lane}, 2", f"s_add_u32 s{s_lane}, s{s_lane}, s{s_kq}",
              f"s_mul_i32 s{s_lane}, s{s_lane}, 12288", f"s_add_u32 s{s_sl+q}, s{s_lane}, s{s_need}",
              f"s_add_u32 s{s_lane}, s{s_pb}, s{s_kq}", f"s_lshl_b32 s{s_lane}, s{s_lane}, 2", f"s_add_u32 s{s_lane}, s{s_lane}, s{s_val}",
              f"s_mul_i32 s{s_lane}, s{s_lane}, 12288", f"s_add_u32 s{s_hs+q}, s{s_lane}, s{s_need}"]
    t += [f"v_min_u32 v{vFR}, 2, v1", f"s_add_u32 s{s_val}, s{s_kq}, 1", f"v_add_u32 v{vFR}, s{s_val}, v{vFR}", f"v_and_b32 v{vFR}, 3, v{vFR}",
          f"s_lshl_b32 s{s_val}, s{s_kq}, 2", f"s_lshl_b32 s{s_lane}, s{s_w}, 7", f"s_add_u32 s{s_val}, s{s_val}, s{s_lane}",
          f"v_lshlrev_b32 v{vFW}, 9, v{vFR}", f"v_add_u32 v{vFW}, s{s_val}, v{vFW}",
          f"s_lshl_b32 s{s_val}, s{s_kq}, 9", f"s_add_u32 s{s_val}, s{s_val}, s{s_lane}", f"v_lshlrev_b32 v{vFR}, 2, v{vFR}", f"v_add_u32 v{vFR}, s{s_val}, v{vFR}"]
    h = len(t)//3
    return [Op("\n    ".join(t[:2+12]), cost=56), Op("\n    ".join(t[14:38]), cost=96), Op("\n    ".join(t[38:]), cost=52)]
def y_loads(A, YT):
    A.e(f"s_lshl_b32 s{s_t1}, s{s_line}, 12")
    A.e(f"s_lshl_b32 s{s_t0}, s{s_upos}, 1")
    A.e(f"s_add_u32 s{s_t1}, s{s_t1}, s{s_t0}")
    A.e(f"s_add_u32 s{s_t1}, s{s_t1}, {WS_Y}")
    A.e(f"s_mul_i32 s{s_val}, s{s_w}, 3072")
    for i in range(3):
        A.e(f"s_add_u32 m0, s{s_val}, {YT + 1024*i}")
        if i: A.e(f"s_add_u32 s{s_t1}, s{s_t1}, 65536")
        else: A.e(f"s_lshl_b32 s{s_t0}, s{s_upos}, 2")
        A.e(f"buffer_load_dwordx4 v{vYD}, s[{sWS}:{sWS+3}], s{s_t1} offen sc1 lds")
    A.e(f"s_add_u32 s{s_t0}, s{s_t0}, {WS_GT}")
    A.e(f"buffer_load_dword v{vGT}, v{vRow+1}, s[{sWS}:{sWS+3}], s{s_t0} offen{SC}")
def y_test(A):
    A.e(f"v_and_b32 v{vYF}, v{vYF}, v{vYF+1}")
    A.e(f"v_and_b32 v{vYF+2}, v{vYF+2}, v{vYF+3}")
    A.e(f"v_and_b32 v{vYF}, v{vYF}, v{vYF+2}")
    A.e(f"v_cmp_ne_u32 vcc, 1, v{vYF}")

def p2(A, ring, memq, valq, stq):
    N = 432
    hl = {1: [4], 41: [6], 65: [7], 89: [8], 113: [9], 137: [10], 161: [11], 209: [12, 13], 233: [14], 257: [15], 281: [16, 17]}
    checks = {41: 0, 209: 1, 281: 2}
    flags = {113: ("h4", 1), 209: ("h5", 2)}
    hsites = {21: 4, 33: 4, 45: 4, 57: 4, 117: 5, 129: 5, 141: 5, 153: 5}
    hst = {4: h_store_ops(4), 5: h_store_ops(5)}
    tdone = {}
    sent5 = False
    A.wait_lg(["f0", "f1"])
    for j in range(N):
        if 'p2st' in EXP:
            if j % 72 == 0: stamp(A, 1 + j//72)
        else:
            if j == 0: stamp(A, 7 if 'p1st' in EXP else 4)
            if j == 120 and 'p1st' not in EXP: stamp(A, 5)
        step, t = jmap(j)
        k = step // 4
        acc = acc2(t); buf = aR + 4*(j % 12)
        A.e(f"v_mfma_f32_32x32x16_bf16 v[{acc}:{acc+15}], a[{buf}:{buf+3}], {hreg(step)}, {'0' if step == 0 else f'v[{acc}:{acc+15}]'}")
        if step == 71:
            tdone[t] = A.n - 1
            valq.add(export_ops(t, lambda t=t: tdone[t]))
        n0 = A.n
        isbar = (j + LEAD) % 24 == 0 and j < TM0
        if SOFT and (j + SD2 + LEAD) % 24 == 0 and j + SD2 < TM0:
            jb = j + SD2
            tags = [f"st{G0+k+1}"]
            if jb in flags: tags.append(flags[jb][0])
            if jb == 353: tags += [f"st{G0+16}", f"st{G0+17}"]
            A.wait_vm(tags)
            if jb == 17: A.wait_lg("exs4")
            if jb == 41: A.wait_lg("exr4")
            if jb == 113:
                assert sent5; A.wait_lg("exs5")
            if jb == 137: A.wait_lg("exr5")
            sb_arrive(A)
        if isbar and SOFT: sb_check(A)
        if isbar and not SOFT:
            tags = [f"st{G0+k+1}"]
            if j in flags: tags.append(flags[j][0])
            if j == 353: tags += [f"st{G0+16}", f"st{G0+17}"]
            A.wait_vm(tags)
            if j == 17: A.wait_lg("exs4")
            if j == 41: A.wait_lg("exr4")
            if j == 113:
                assert sent5; A.wait_lg("exs5")
            if j == 137: A.wait_lg("exr5")
            A.e("s_nop 0" if 'nobar' in EXP else "s_barrier")
        if isbar:
            if j in flags: stq.q = flag_ops(flags[j][1]) + stq.q
            ring.release(G0 + k - 1)
            if j in checks:
                assert not any(o.tag == "fc" for o in memq.q)
                A.wait_lg("fcr")

                if 'nochk' not in EXP: check(A, s_rr, checks[j]); check(A, s_rr + 1, checks[j])
            if j + 48 in checks: memq.add(flagcopy_ops(checks[j + 48]))
            for g in ring.alloc(G0 + 18):
                if 'now2' not in EXP: memq.add(w2_dma_ops(g, ring.slot[g]))
            if j == 161: valq.add(y_prep_ops())
            if j == 329:
                assert not memq.q
                valq.add(exp_prep_op())
        if j == YC:
            memq.add([Op(f"s_add_u32 m0, s{s_wl}, {EX}\n    s_mov_b32 s{s_val}, {F_Y}\n    buffer_load_dwordx4 v{vYA}, s[{sWS}:{sWS+3}], s{s_val} offen sc1 lds", kind="vmem", tag="yc", cost=12)])
        if j == YR + 4:
            assert not memq.q
            A.wait_lg("yr")
            y_test(A)
            A.e("s_nop 0")
            A.e("s_cbranch_vccnz L_ynot")
            y_loads(A, ring.slot[G0 + 12]*SLOT)
            A.e(f"s_mov_b32 s{s_yd}, 1")
            A.label("L_ynot")
        for x in ([] if 'noh' in EXP else hl.get(j, [])): memq.add(h_load_ops(x))
        if j % 3 == 0:
            A.wait_lg([f"f{j+1}", f"f{j+2}", f"f{j+3}"] + (["exr4"] if j == 21 else []) + (["exr5"] if j == 117 else []))
        if j in hsites:
            h = hst[hsites[j]]
            stq.add([h.pop(0)])
            if len(h) == 1: stq.add([h.pop(0)])
        if j < PR:
            if j % 2 == 1:
                a2_read(A, j + LEAD, ring); a2_read(A, j + LEAD + 1, ring)
            elif j == 0: a2_read(A, LEAD, ring)
        elif j + LEAD < N and not (PR and j == PR): a2_read(A, j + LEAD, ring)
        if SOFT and (j + 3 + LEAD) % 24 == 0 and j + 3 < TM0: sb_read(A)
        if SPLITW and j == 3: ex_block(A, 4, True, (1,))
        if j == 17: ex_block(A, 4, False)
        if j == 113: ex_block(A, 5, False)
        if TWO and j == EFJ:
            assert not any(o.tag == "xe" for o in valq.q)
            A.e(f"v_mov_b32 v{vS}, 1")
            A.wait_vm("xe")
            A.e("s_mov_b64 exec, 3")
            A.vmem(f"buffer_store_dword v{vS}, v{vFW}, s[{sWS}:{sWS+3}], s{s_fp} offen{SC}", "fl")
            A.e("s_mov_b64 exec, -1")
        if j + 4 in checks: A.ds(f"ds_read_b32 v{vFC}, v{vFA}", "fcr")
        if j == YR: A.ds(f"ds_read_b128 v[{vYF}:{vYF+3}], v{vEW}", "yr")
        if not valq.q and not sent5 and j > 41:
            ex_block(A, 5, True, (0,) if SPLITW else (0, 1)); sent5 = j
        if SPLITW and sent5 and j == sent5 + 2: ex_block(A, 5, True, (1,))
        bud = max(0, 24 - 4*(A.n - n0))
        u = pump(stq, bud, 1)
        left = 22 - ((j + LEAD) % 24)
        slot_ok = {0: j % 2 == 0, 1: j % 2 == 1, 2: j % 6 in (1, 4) or j % 12 == 8, 3: j % 3 == 1 or j % 12 == 11, 4: j % 3 == 2 or j % 12 == 4}[P2M]
        if u == 0: u = pump(memq, bud, 1 if (slot_ok or 2*sum(x.kind == "vmem" for x in memq.q) > left + P2L) else 0)
        if valq.q and j < PR and j % 2 == 1:
            valq.fill(max(0, bud - u), allow_trans=False, window=30)
        elif valq.q:
            b2 = max(0, bud - u)
            if j < 110 and valq.total() > MC*(MEND - j): b2 += 4
            if MEND <= j < 161: b2 = 1000
            if j > 161 and u == 0 and valq.q[0].cost > b2 and valq.ready(valq.q[0]): b2 = valq.q[0].cost
            fill_odd(valq, b2, window=(30 if j < 161 else 6))
    assert not memq.q and not stq.q
    if 'p1st' not in EXP: stamp(A, 7 if 'p2st' in EXP else 6)
    valq.drain()
PR = int(os.environ.get('PR', 0))
MEND = 98
MC = int(os.environ.get('MC', 11))
YC = int(os.environ.get('YC', 340))
YR = int(os.environ.get('YR', 366))

def tail(A, ring):
    YT = ring.slot[G0 + 12]*SLOT
    V = 32
    OWNR = [acc2(4) + 8, acc2(5), acc2(5) + 8]
    A.e(f"v_mov_b32 v{vS}, 1")
    A.wait_vm("xp")
    if TWO: A.e("s_mov_b64 exec, 4")
    A.vmem(f"buffer_store_dword v{vS}, v{vFW}, s[{sWS}:{sWS+3}], s{s_fp} offen{SC}", "fl")
    if TWO: A.e("s_mov_b64 exec, -1")
    if 'tst' in EXP: stamp(A, 2)
    A.e(f"s_cmp_lg_u32 s{s_yd}, 0")
    A.e("s_cbranch_scc1 L_py_out")
    A.e(f"s_mov_b32 s{s_t0}, 0x20000")
    A.e(f"s_mov_b32 s{s_t1}, {F_Y}")
    A.label("L_py")
    A.e(f"buffer_load_dwordx4 v[{vYF}:{vYF+3}], v{vYA}, s[{sWS}:{sWS+3}], s{s_t1} offen{SC}")
    A.e("s_waitcnt vmcnt(0)")
    y_test(A)
    A.e(f"s_sub_u32 s{s_t0}, s{s_t0}, 1")
    A.e("s_cbranch_scc1 L_py_go")
    A.e("s_sleep 1")
    A.e("s_cbranch_vccnz L_py")
    A.label("L_py_go")
    y_loads(A, YT)
    A.e("s_waitcnt vmcnt(0)")
    A.label("L_py_out")
    if 'tst' in EXP: stamp(A, 3)
    if LPOLL:
        A.e(f"s_lshl_b32 s{s_val}, s{s_w}, 8")
        A.e(f"s_add_u32 m0, s{s_val}, {M_FL}")
        A.e(f"v_lshl_add_u32 v{V+2}, v1, 2, m0")
        A.e(f"buffer_load_dword v{vFR}, s[{sWS}:{sWS+3}], s{s_fp} offen sc1 lds")
    else: A.e(f"buffer_load_dword v{V+4}, v{vFR}, s[{sWS}:{sWS+3}], s{s_fp} offen{SC}")
    YA, BS = 112, 192
    A.e(f"s_mul_i32 s{s_t2}, s{s_w}, 3072")
    A.e(f"v_lshrrev_b32 v{V+3}, 2, v1")
    A.e(f"v_and_b32 v{V+3}, 3, v{V+3}")
    A.e(f"v_lshrrev_b32 v{V+6}, 5, v1")
    A.e(f"v_lshl_add_u32 v{V+3}, v{V+6}, 3, v{V+3}")
    A.e(f"v_lshlrev_b32 v{V+3}, 6, v{V+3}")
    A.e(f"v_and_b32 v{V+5}, 16, v1")
    A.e(f"v_lshl_add_u32 v{V+3}, v{V+5}, 1, v{V+3}")
    A.e(f"v_and_b32 v{V+5}, 3, v1")
    A.e(f"v_lshl_add_u32 v{V+3}, v{V+5}, 3, v{V+3}")
    A.e(f"s_add_u32 s{s_t0}, s{s_t2}, {YT}")
    A.e(f"v_add_u32 v{V+3}, s{s_t0}, v{V+3}")
    for i in range(3):
        for rd in range(2):
            A.e(f"ds_read_b64_tr_b16 v[{YA+4*i+2*rd}:{YA+4*i+2*rd+1}], v{V+3} offset:{1024*i + 256*rd}")
    for b in OWNR[1:]:
        for e in range(4): A.e(f"v_permlane32_swap_b32 v{b+e}, v{b+4+e}")
    A.e(f"v_mul_u32_u24 v{V+8}, 1152, v{vRow}")
    A.e(f"v_lshl_add_u32 v{V+8}, v{V+6}, 4, v{V+8}")
    A.e(f"s_mul_i32 s{s_t1}, s{s_upos}, 1152")
    A.e(f"s_lshl_b32 s{s_t0}, s{s_line}, 1")
    A.e(f"s_add_u32 s{s_lane}, s{s_t1}, s{s_t0}")
    A.e(f"v_sub_f32 v{vGT+1}, 1.0, v{vGT}")
    A.e(f"v_mov_b32 v{V+14}, 0x3f80")
    A.e(f"v_mov_b32 v{V+15}, 0x3f800000")
    A.e("s_waitcnt lgkmcnt(0)")
    for q in range(12):
        lo = BS + 2*q; ow = OWNR[q//4] + 2*(q % 4)
        A.e(f"v_lshlrev_b32 v{lo}, 16, v{YA+q}")
        A.e(f"v_and_b32 v{lo+1}, 0xffff0000, v{YA+q}")
        A.e(f"v_pk_mul_f32 v[{ow}:{ow+1}], v[{ow}:{ow+1}], v[{vGT}:{vGT+1}] op_sel:[0,1] op_sel_hi:[1,1]")
        A.e(f"v_pk_fma_f32 v[{lo}:{lo+1}], v[{lo}:{lo+1}], v[{vGT}:{vGT+1}], v[{ow}:{ow+1}] op_sel_hi:[1,0,1]")
    A.e(f"s_mov_b32 s{s_t0}, 0x20000")
    PB, S, OW = 144, 48, 96
    def poll(name, mask):
        A.label(name)
        A.e("s_waitcnt vmcnt(0)")
        A.e(f"v_cmp_ne_u32 vcc, 1, v{V+4}")
        A.e(f"s_sub_u32 s{s_t0}, s{s_t0}, 1")
        A.e(f"s_cbranch_scc1 {name}_out")
        A.e(f"s_and_b32 vcc_lo, vcc_lo, {mask}")
        A.e(f"s_cbranch_scc0 {name}_out")
        A.e(f"buffer_load_dword v{V+4}, v{vFR}, s[{sWS}:{sWS+3}], s{s_fp} offen{SC}")
        A.e(f"s_branch {name}")
        A.label(name + "_out")
        A.vm = []; A.lg = []
    def imp(qs):
        for i in range(3):
            for q in qs:
                A.vmem(f"buffer_load_dwordx4 v[{PB+12*i+4*q}:{PB+12*i+4*q+3}], v{vL16}, s[{sWS}:{sWS+3}], s{s_hs+q} offen offset:{1024*i}{SC}", f"imp{i}")
    def comb(i, qs, last):
        for d in range(4):
            A.e(f"v_lshlrev_b32 v{S+2*d}, 16, v{PB+12*i+4*qs[0]+d}")
            A.e(f"v_and_b32 v{S+2*d+1}, 0xffff0000, v{PB+12*i+4*qs[0]+d}")
        for q in qs[1:]:
            for d in range(4):
                A.e(f"v_dot2c_f32_bf16 v{S+2*d}, v{PB+12*i+4*q+d}, v{V+14}")
                A.e(f"v_dot2c_f32_bf16 v{S+2*d+1}, v{PB+12*i+4*q+d}, v{V+15}")
        if len(qs) > 1: A.nop(2)
        for d in range(4):
            lo = BS + 8*i + 2*d
            A.e(f"v_pk_fma_f32 v[{lo}:{lo+1}], v[{S+2*d}:{S+2*d+1}], v[{vGT}:{vGT+1}], v[{lo}:{lo+1}] op_sel:[0,1,0] op_sel_hi:[1,1,1]")
        if last:
            for d in range(4):
                lo = BS + 8*i + 2*d
                A.e(f"v_cvt_pk_bf16_f32 v{OW+4*i+d}, v{lo}, v{lo+1}")
            A.vmem(f"buffer_store_dwordx4 v[{OW+4*i}:{OW+4*i+3}], v{V+8}, s[{sT1}:{sT1+3}], s{s_lane} offen offset:{32*i}", "o")
    if TWO:
        poll("L_pe", 6)
        A.e(f"v_cmp_ne_u32 vcc, 1, v{V+4}")
        A.e("s_nop 0")
        A.e("s_and_b32 vcc_lo, vcc_lo, 1")
        A.e("s_cbranch_scc0 L_all")
        imp([1, 2])
        A.vmem(f"buffer_load_dword v{V+4}, v{vFR}, s[{sWS}:{sWS+3}], s{s_fp} offen{SC}", "pl")
        for i in range(3):
            A.wait_vm(f"imp{i}"); comb(i, [1, 2], False)
        poll("L_pl", 1)
        imp([0])
        for i in range(3):
            A.wait_vm(f"imp{i}"); comb(i, [0], True)
        A.e("s_branch L_fin")
        A.label("L_all")
        A.vm = []
    else:
        poll("L_pe", 7)
    if 'tst' in EXP: stamp(A, 4)
    imp([0, 1, 2])
    for i in range(3):
        A.wait_vm(f"imp{i}")
        if i == 0 and 'tst' in EXP: stamp(A, 5)
        if TWO: comb(i, [1, 2], False); comb(i, [0], True)
        else: comb(i, [0, 1, 2], True)
    A.label("L_fin")
```

```python
from common import *
import math, p1f
L2E_HI = struct.unpack('<f', struct.pack('<f', LOG2E))[0]
L2E_LO = LOG2E - L2E_HI
LN2 = math.log(2.0)
XPF = int(os.environ.get('XPF', 0))
W2T = int(os.environ.get('W2T', 0))
TLBS = int(os.environ.get('TLBS', 0))
WREG = 40960
SU, SR = 4640, 4480
RA_OFF, RB_OFF, U_OFF = 0, 8960, 17920
SCR = 8960
T_OFF = 17920
TS_ENT = 2304
ZIDX = 2300
WS_R9 = WS_G
s_ch0, s_lb, s_dt, s_dsk, s_cA, s_cB, s_cC, s_ci, s_rdst, s_yo, s_rnd, s_dl = 56, 57, 58, 59, 60, 61, 62, 63, 64, 65, 66, 67
sP0, sP1, sU, sPF = 68, 72, 68, 72
sP2, sP3 = sT0, sT1
s_pf = 76
s_uok = 66
vW, vRD, vSc, vGa = 32, 48, 52, 64
vDt, vDk, vPF, vRW, vZW, vPL = 4, 5, 6, 7, 8, 20
vPar = 100
vCur = 112
vZ = 116
POOL = (124, 180)
vCV = 236
vD = 10
def a_table():
    t = []
    for row in range(16): t.append((row & 7) + 128*(row >> 3))
    for row in range(16):
        t.append(256 + 128*(row >> 2) + 2*(row & 3) if row < 8 else 512 + 128*((row-8) >> 1) + 4*(row & 1))
    for row in range(16): t.append(1024 + 128*row if row <= 8 else 2100)
    return t

def exp_bf16_multi(A, items):
    for d, x, a, b in items: A.e(f"v_mul_f32 v{a}, s{s_cA}, v{x}")
    for d, x, a, b in items: A.e(f"v_fma_f32 v{b}, v{x}, s{s_cA}, -v{a}")
    for d, x, a, b in items: A.e(f"v_exp_f32 v{a}, v{a}")
    for d, x, a, b in items: A.e(f"v_fma_f32 v{b}, v{x}, s{s_cB}, v{b}")
    for d, x, a, b in items: A.e(f"v_mul_f32 v{b}, s{s_cC}, v{b}")
    for d, x, a, b in items: A.e(f"v_fma_f32 v{a}, v{a}, v{b}, v{a}")
    for d, x, a, b in items: A.e(f"v_cvt_pk_bf16_f32 v{a}, v{a}, v{a}")
    for d, x, a, b in items: A.e(f"v_lshlrev_b32 v{d}, 16, v{a}")

def pf_hook(A, k):
    if 'nopf' not in EXP:
        A.e(f"buffer_load_dword a{200+k}, v{vPF}, s[{sPF}:{sPF+3}], s{s_pf+k} offen{NTP}")

class Ch:
    def __init__(self, A):
        self.A = A; self.reg = {}; self.free = list(range(0, 56, 2)); self.cvn = 0; self.pend = []
    def alloc(self, name):
        self.reg[name] = self.free.pop(0); return self.reg[name]
    def rel(self, *names):
        for n in names: self.free.append(self.reg.pop(n))
    def r(self, name, m): return POOL[m] + self.reg[name]
    def muls(self, lst):
        for d, x, y in lst: self.alloc(d)
        for d, x, y in lst:
            for m in range(2):
                D, X, M = self.r(d, m), self.r(x, m), self.r(y, m)
                self.A.e(f"v_pk_mul_f32 v[{D}:{D+1}], v[{X}:{X+1}], v[{M}:{M+1}] op_sel_hi:[1,0]")
        for d, x, y in lst:
            for m in range(2):
                D, X, M = self.r(d, m), self.r(x, m), self.r(y, m)
                self.A.e(f"v_pk_fma_f32 v[{D}:{D+1}], v[{X}:{X+1}], v[{M}:{M+1}], v[{D}:{D+1}] op_sel:[1,1,0] op_sel_hi:[0,1,1] neg_lo:[1,0,0]")
    def put(self, items):
        A = self.A; slot = 0; w = []
        for i, oa, na, ob, nb in items:
            regs = []
            for o, n in ((oa, na), (ob, nb)):
                if n is None: continue
                c = vCV + 2*slot; slot += 1
                assert slot <= 10
                for m in range(2):
                    if n == "one": A.e(f"v_mov_b32 v{c+m}, 0x3f80")
                    else:
                        X = self.r(n, m)
                        A.e(f"v_cvt_pk_bf16_f32 v{c+m}, v{X}, {'-' if o == 41 else ''}v{X+1}")
                regs.append((o, c))
            w.append((i, regs))
        for i, regs in w:
            if len(regs) == 2:
                A.e(f"ds_write2st64_b64 v{vW+i}, v[{regs[0][1]}:{regs[0][1]+1}], v[{regs[1][1]}:{regs[1][1]+1}] offset0:{regs[0][0]} offset1:{regs[1][0]}")
            else:
                A.e(f"ds_write_b64 v{vW+i}, v[{regs[0][1]}:{regs[0][1]+1}] offset:{regs[0][0]*512}")

def kchan_sub(A):
    A.label("L_kchan")
    C = Ch(A)
    A.e(f"v_readlane_b32 s{s_dt}, v{vDt}, s{s_ci}")
    A.e(f"v_readlane_b32 s{s_dsk}, v{vDk}, s{s_ci}")
    T = vCV
    A.e(f"v_lshlrev_b32 v{T}, 16, v{vCur}")
    A.e(f"v_and_b32 v{T+1}, 0xffff0000, v{vCur}")
    A.e(f"v_lshlrev_b32 v{vZ+1}, 16, v{vCur+1}")
    A.e(f"v_and_b32 v{vZ+5}, 0xffff0000, v{vCur+1}")
    exp_bf16_multi(A, [(vZ, T, T+2, T+3), (vZ+4, T+1, T+4, T+5)])
    A.e(f"v_lshlrev_b32 v{vZ+2}, 16, v{vCur+2}")
    A.e(f"v_and_b32 v{vZ+6}, 0xffff0000, v{vCur+2}")
    A.e(f"v_lshlrev_b32 v{vZ+3}, 16, v{vCur+3}")
    A.e(f"v_and_b32 v{vZ+7}, 0xffff0000, v{vCur+3}")
    for k in range(8): A.e(f"v_mul_f32 v{vZ+k}, s{s_dt}, v{vZ+k}")
    for m in range(2):
        A.e(f"v_mul_f32 v{vZ+4*m}, {fhex(-LOG2E)}, v{vZ+4*m}")
        A.e(f"v_mul_f32 v{vZ+4*m+1}, 0.15915494, v{vZ+4*m+1}")
    Ps = [1, 8, 128, 512, 1024]
    for P in Ps: C.alloc(f"E{P}")
    C.alloc("B0")
    for m in range(2):
        b = C.r("B0", m)
        A.e(f"v_add_f32 v{b}, v{vZ+4*m+2}, v{vZ+4*m+2}")
        A.e(f"v_add_f32 v{b+1}, v{vZ+4*m+3}, v{vZ+4*m+3}")
    tt = lambda k, m: T + 4*k + 2*m
    for k, P in enumerate(Ps):
        for m in range(2):
            if P == 1:
                A.e(f"v_mov_b32 v{tt(k,m)}, v{vZ+4*m}"); A.e(f"v_fract_f32 v{tt(k,m)+1}, v{vZ+4*m+1}")
            else:
                A.e(f"v_mul_f32 v{tt(k,m)}, {fhex(float(P))}, v{vZ+4*m}")
                A.e(f"v_mul_f32 v{tt(k,m)+1}, {fhex(float(P))}, v{vZ+4*m+1}")
    for k, P in enumerate(Ps):
        if P == 1: continue
        for m in range(2): A.e(f"v_fract_f32 v{tt(k,m)+1}, v{tt(k,m)+1}")
    for k, P in enumerate(Ps):
        for m in range(2):
            d = C.r(f"E{P}", m)
            A.e(f"v_exp_f32 v{tt(k,m)}, v{tt(k,m)}")
            A.e(f"v_cos_f32 v{d}, v{tt(k,m)+1}")
            A.e(f"v_sin_f32 v{d+1}, v{tt(k,m)+1}")
    A.e("s_nop 0")
    for k, P in enumerate(Ps):
        for m in range(2):
            d = C.r(f"E{P}", m)
            A.e(f"v_pk_mul_f32 v[{d}:{d+1}], v[{d}:{d+1}], v[{tt(k,m)}:{tt(k,m)+1}] op_sel_hi:[1,0]")
    C.muls([("E2", "E1", "E1"), ("E256", "E128", "E128"), ("E640", "E512", "E128"), ("E129", "E128", "E1"), ("E16", "E8", "E8"), ("B1", "B0", "E8"), ("T1", "E1024", "E128")])
    C.put([(0, 0, "one", 16, "E256"), (8, 0, "E128", 16, "E512"), (0, 32, "E1024", 41, "B0"), (1, 32, "T1", 41, "B1")])
    C.rel("E8")
    C.muls([("E3", "E2", "E1"), ("E4", "E2", "E2"), ("E384", "E256", "E128"), ("E768", "E512", "E256"), ("E130", "E128", "E2"), ("E258", "E256", "E2"),
            ("B2", "B0", "E16"), ("B3", "B1", "E16"), ("T2", "E1024", "E256"), ("T3", "T1", "E256")])
    C.rel("B0", "B1", "T1", "E1024")
    C.put([(10, 0, "E130", 16, "E640"), (1, 0, "E1", 16, "E258"), (4, 0, "E4", 16, "E384"), (2, 32, "T2", 41, "B2"), (3, 32, "T3", 41, "B3")])
    C.rel("E130", "E258")
    C.muls([("E260", "E256", "E4"), ("E516", "E512", "E4"), ("E132", "E128", "E4"), ("E131", "E128", "E3"), ("E644", "E640", "E4"),
            ("B4", "B2", "E16"), ("B5", "B3", "E16"), ("T4", "T2", "E256"), ("T5", "T3", "E256")])
    C.rel("B2", "B3", "T2", "T3", "E640")
    C.put([(2, 0, "E2", 16, "E260"), (9, 0, "E129", 16, "E516"), (12, 0, "E132", 16, "E768"), (11, 0, "E131", 16, "E644"), (4, 32, "T4", 41, "B4")])
    C.rel("E260", "E129", "E516", "E132", "E131", "E644")
    C.muls([("E5", "E4", "E1"), ("E6", "E4", "E2"), ("E7", "E4", "E3"), ("E896", "E512", "E384"), ("E386", "E384", "E2"), ("E388", "E384", "E4"), ("E772", "E768", "E4"),
            ("B6", "B4", "E16"), ("B7", "B5", "E16"), ("T6", "T4", "E256"), ("T7", "T5", "E256")])
    C.put([(5, 32, "T5", 41, "B5"), (5, 0, "E5", 16, "E386"), (6, 0, "E6", 16, "E388"), (6, 32, "T6", 41, "B6"), (7, 32, "T7", 41, "B7")])
    C.rel("B4", "B5", "T4", "T5", "E386", "E388", "E1", "E2", "E512", "E768", "T7")
    C.muls([("E262", "E256", "E6"), ("E390", "E384", "E6"), ("E133", "E128", "E5"), ("E134", "E128", "E6"), ("E135", "E128", "E7"), ("E900", "E896", "E4"),
            ("B8", "B6", "E16"), ("B9", "B7", "E16"), ("T8", "T6", "E256")])
    C.put([(3, 0, "E3", 16, "E262"), (7, 0, "E7", 16, "E390"), (13, 0, "E133", 16, "E772"), (14, 0, "E134", 16, "E896"), (15, 0, "E135", 16, "E900")])
    C.rel("B6", "B7", "T6", "E262", "E390", "E133", "E134", "E135", "E900")
    C.muls([("B10", "B8", "E16"), ("B11", "B9", "E16")])
    C.put([(8, 32, "T8", 41, "B8"), (9, 41, "B9", 0, None)])
    C.muls([("B12", "B10", "E16"), ("B13", "B11", "E16")])
    C.put([(10, 41, "B10", 0, None), (11, 41, "B11", 0, None)])
    C.muls([("B14", "B12", "E16"), ("B15", "B13", "E16")])
    C.put([(12, 41, "B12", 0, None), (13, 41, "B13", 0, None), (14, 41, "B14", 0, None), (15, 41, "B15", 0, None)])
    A.e(f"s_mov_b32 s{s_t0}, {F_U}")
    A.e(f"s_cmp_eq_u32 s{s_uok}, 2")
    A.e("s_cbranch_scc0 L_kc_npoll")
    A.e(f"s_waitcnt vmcnt(0)")
    A.e(f"buffer_load_dwordx4 v[{vPL}:{vPL+3}], v{vPL+5}, s[{sWS}:{sWS+3}], s{s_t0} offen{SC}")
    A.label("L_kc_npoll")
    A.lg = []
    D = POOL[0]
    for ks in range(8):
        A.ds(f"ds_read_b128 a[{4*ks}:{4*ks+3}], v{vRD+(ks&3)} offset:{41*512 + (ks>>2)*256}", f"kb{ks}")
        for t in range(3):
            A.ds(f"ds_read_b128 a[{32+32*t+4*ks}:{35+32*t+4*ks}], v{vRD+(ks&3)} offset:{t*8192 + (ks>>2)*256}", f"ka{ks}{t}")
        if ks >= 2:
            for t in range(3):
                k2 = ks - 2
                A.wait_lg([f"ka{k2}{t}"])
                A.e(f"v_mfma_f32_16x16x32_bf16 v[{D+4*t}:{D+4*t+3}], a[{32+32*t+4*k2}:{35+32*t+4*k2}], a[{4*k2}:{4*k2+3}], {'0' if k2 == 0 else f'v[{D+4*t}:{D+4*t+3}]'}")
    for k2 in (6, 7):
        for t in range(3):
            A.wait_lg([f"ka{k2}{t}"])
            A.e(f"v_mfma_f32_16x16x32_bf16 v[{D+4*t}:{D+4*t+3}], a[{32+32*t+4*k2}:{35+32*t+4*k2}], a[{4*k2}:{4*k2+3}], v[{D+4*t}:{D+4*t+3}]")
    A.e(f"s_cmp_eq_u32 s{s_uok}, 2")
    A.e("s_cbranch_scc0 L_kc_nchk")
    A.e("s_waitcnt vmcnt(0)")
    A.e(f"v_min_u32 v{vPL}, v{vPL}, v{vPL+1}")
    A.e(f"v_min3_u32 v{vPL}, v{vPL}, v{vPL+2}, v{vPL+3}")
    A.e(f"v_cmp_gt_u32 vcc, 1, v{vPL}")
    A.e(f"v_cmp_gt_u32 s[76:77], v{vPL+6}, v{vPL+4}")
    A.e("s_or_b64 vcc, vcc, s[76:77]")
    A.e("s_cbranch_scc1 L_kc_nchk")
    A.e(f"s_mov_b32 s{s_uok}, 1")
    A.e(f"s_add_u32 s{s_t0}, s{s_ch0}, s{s_w}")
    A.e(f"s_mul_i32 s{s_t0}, s{s_t0}, {UT_PITCH}")
    A.e(f"s_add_u32 s{s_t0}, s{s_t0}, {WS_UT}")
    A.e(f"v_min_u32 v{vPL}, 32, v1")
    A.e(f"v_lshlrev_b32 v{vPL}, 7, v{vPL}")
    A.e(f"buffer_load_dword a197, v{vPL}, s[{sWS}:{sWS+3}], s{s_t0} offen{SC}")
    A.label("L_kc_nchk")
    A.e(f"v_mov_b32 v{T}, 0")
    A.e(f"v_writelane_b32 v{T}, s{s_dsk}, 0")
    for k in range(4): A.e(f"v_mov_b32 v{T+4+k}, 0")
    A.e(f"v_add_u32 v{T+2}, s{s_rdst}, v{vRW}")
    A.e(f"v_add_u32 v{T+3}, s{s_rdst}, v{vZW}")
    A.e(f"v_add_f32 v{D}, v{D}, v{T}")
    for k in range(12): A.e(f"ds_write_b32 v{vSc+k}, v{D+k}")
    A.e(f"ds_write_b32 v{9}, v{T+4}")
    A.e(f"ds_write_b128 v{T+3}, v[{T+4}:{T+7}]")
    G = POOL[0] + 12
    for k in range(4):
        for e in range(9): A.ds(f"ds_read_b32 v{G+9*k+e}, v{vGa+9*k+e}", f"g{k}")
    O = POOL[1]
    for k in range(4):
        A.wait_lg(f"g{k}")
        g = G + 9*k
        for e in range(4): A.e(f"v_cvt_pk_bf16_f32 v{O+8*k+e}, v{g+2*e+1}, v{g+2*e+2}")
        for e in range(4): A.e(f"v_cvt_pk_bf16_f32 v{O+8*k+4+e}, v{g+2*e}, v{g+2*e+1}")
    for k in range(4):
        A.e(f"ds_write_b128 v{T+2}, v[{O+8*k}:{O+8*k+3}] offset:{1024*k}")
        A.e(f"ds_write_b128 v{T+2}, v[{O+8*k+4}:{O+8*k+7}] offset:{SR + 1024*k}")
    A.lg = []
    A.e(f"s_setpc_b64 s[{s_ret}:{s_ret+1}]")

vGX, vGG = POOL[0], POOL[1]
def kc_setup(A):
    A.c("======== conv role setup")
    for r, n in ((sP0, 'loga'), (sP1, 'aim'), (sP2, 'cre'), (sP3, 'cim'), (76, 'logdt'), (80, 'dskip'), (84, 'gw')):
        A.e(f"s_load_dwordx2 s[{r}:{r+1}], s[0:1], {KA[n]}")
    A.e(f"s_lshl_b32 s{s_ch0}, s{s_m}, 2")
    A.e(f"s_add_u32 s{s_ch0}, s{s_ch0}, s{s_kq}")
    A.e(f"s_mul_i32 s{s_ch0}, s{s_ch0}, 9")
    A.e(f"s_mul_i32 s{s_lb}, s{s_w}, {WREG}")
    for r, n in ((sP0, D_*256), (sP1, D_*256), (sP2, D_*256), (sP3, D_*256), (76, D_*2), (80, D_*2)):
        A.e(f"s_mov_b32 s{r+2}, {n}"); A.e(f"s_mov_b32 s{r+3}, 0x00020000")
    T = vCV
    A.e(f"v_lshlrev_b32 v{T}, 2, v1")
    A.e(f"v_min_u32 v{T+1}, 8, v1")
    A.e(f"v_add_u32 v{T+1}, s{s_ch0}, v{T+1}")
    A.e(f"v_lshlrev_b32 v{T+1}, 1, v{T+1}")
    A.e(f"s_add_u32 s{s_t0}, s{s_ch0}, s{s_w}")
    A.e(f"s_lshl_b32 s{s_t0}, s{s_t0}, 8")
    A.e(f"s_add_u32 s{s_t1}, s{s_ch0}, 8")
    A.e(f"s_lshl_b32 s{s_t1}, s{s_t1}, 8")
    A.e(f"s_lshl_b32 s{s_upos}, s{s_m}, 7")
    A.e(f"s_lshl_b32 s{s_t2}, s{s_kq}, 5")
    A.e(f"s_add_u32 s{s_upos}, s{s_upos}, s{s_t2}")
    A.e(f"v_lshrrev_b32 v{T+4}, 3, v1")
    A.e(f"v_and_b32 v{T+5}, 7, v1")
    A.e(f"v_add_u32 v{T+6}, s{s_upos}, v{T+4}")
    A.e(f"v_mul_u32_u24 v{T+6}, 1152, v{T+6}")
    A.e(f"v_lshrrev_b32 v{T+7}, 1, v{T+4}")
    A.e(f"v_xor_b32 v{T+7}, v{T+7}, v{T+5}")
    A.e(f"v_lshl_add_u32 v{vXD}, v{T+7}, 4, v{T+6}")
    A.e(f"v_xor_b32 v{vXD+1}, 64, v{vXD}")
    A.e(f"v_add_u32 v{vXD+1}, 8192, v{vXD+1}")
    A.e(f"s_lshl_b32 s{s_upos}, s{s_upos}, 1")
    A.e("s_waitcnt lgkmcnt(0)")
    for slot, (so, off) in enumerate(((s_t1, 0), (s_t0, 0), (s_t0, 1024))):
        for k, srd in enumerate((sP0, sP1, sP2, sP3)):
            A.vmem(f"buffer_load_dword v{vPar+4*slot+k}, v{T}, s[{srd}:{srd+3}], s{so} offen offset:{off}", "kp")
    A.vmem(f"buffer_load_ushort v{vDt}, v{T+1}, s[76:79], 0 offen", "kp")
    A.vmem(f"buffer_load_ushort v{vDk}, v{T+1}, s[80:83], 0 offen", "kp")
    A.e(f"s_getpc_b64 s[{s_ret}:{s_ret+1}]")
    A.label("L_kg_pc")
    A.e(f"s_add_u32 s{s_ret}, s{s_ret}, L_atab-L_kg_pc")
    A.e(f"s_addc_u32 s{s_ret+1}, s{s_ret+1}, 0")
    A.e(f"v_and_b32 v{T+2}, 48, v1")
    for t in range(3):
        A.vmem(f"global_load_dwordx4 v[{vSc+4*t}:{vSc+4*t+3}], v{T+2}, s[{s_ret}:{s_ret+1}] offset:{64*t}", "kp")
    if XPF:
        A.e(f"s_mul_i32 s{s_t2}, s{s_w}, 3")
        A.e(f"s_add_u32 s{s_t2}, s{s_t2}, s{s_m7}")
        A.e(f"s_add_u32 s{s_t2}, s{s_t2}, {XPF}")
        mod_small(A, s_t2, s_t2, 9); mod_small(A, s_t2, s_t2, 9)
        A.e(f"s_lshl_b32 s{s_t2}, s{s_t2}, 7")
        A.e(f"s_mul_i32 s{s_so}, s{s_m}, {128*1152}")
        A.e(f"s_add_u32 s{s_t2}, s{s_t2}, s{s_so}")
        A.e(f"s_cmp_lt_u32 s{s_w}, 3")
        A.e(f"s_cselect_b32 s{s_t2}, s{s_t2}, 0x40000000")
        A.e(f"v_mul_u32_u24 v{T+8}, 1152, v1")
        A.e(f"buffer_load_dword a194, v{T+8}, s[{sX}:{sX+3}], s{s_t2} offen")
        A.e(f"s_add_u32 s{s_t2}, s{s_t2}, {64*1152}")
        A.e(f"buffer_load_dword a193, v{T+8}, s[{sX}:{sX+3}], s{s_t2} offen")
    A.e(f"s_cmp_eq_u32 s{s_w}, 0")
    A.e("s_cbranch_scc1 L_xp_skip")
    A.e(f"s_mov_b32 s80, s84"); A.e("s_mov_b32 s81, s85")
    A.e(f"s_mul_i32 s{s_line}, s{s_w}, 3")
    A.e(f"s_sub_u32 s{s_line}, s{s_line}, 3")
    for q in range(3):
        A.e(f"s_add_u32 m0, s{s_lb}, {SCR + 4096*q}")
        A.e(f"s_add_u32 s{s_so}, s{s_line}, {q}")
        A.e(f"s_lshl_b32 s{s_so}, s{s_so}, 7")
        for i in range(4):
            if i == 2: A.e(f"s_add_u32 s{s_so}, s{s_so}, 16384")
            A.e(f"buffer_load_dwordx4 v{vXD+(i&1)}, s[{sX}:{sX+3}], s{s_so} offen offset:{i*1024} lds")
    A.e(f"v_and_b32 v{T+3}, 1, v1")
    A.e(f"v_lshlrev_b32 v{T+3}, 6, v{T+3}")
    A.e(f"s_lshl_b32 s{s_so}, s{s_line}, 7")
    for q in range(3):
        for c in range(4):
            A.e(f"buffer_load_dwordx4 v[{vGG+16*q+4*c}:{vGG+16*q+4*c+3}], v{T+3}, s[80:83], s{s_so} offen offset:{128*q+16*c}")
    A.label("L_xp_skip")
    if 'notlb' not in EXP:
        A.e(f"s_load_dwordx2 s[{sW1}:{sW1+1}], s[0:1], {KA['out']}")
        A.e(f"s_lshl_b32 s{s_t3}, s{s_m7}, 2")
        A.e(f"s_add_u32 s{s_t3}, s{s_t3}, s{s_w}")
        A.e(f"s_lshl_b32 s{s_t0}, s{s_t3}, {22 + TLBS}")
        A.e(f"s_cmp_lt_u32 s{s_t0}, 0x2A00000")
        A.e(f"s_cselect_b32 s{s_t0}, s{s_t0}, 0x40000000")
        A.e(f"v_lshlrev_b32 v{vPF}, {16 + TLBS}, v1")
        A.e(f"s_mov_b32 s{sW1+2}, {L_*D_*2}")
        A.e(f"s_mov_b32 s{sW1+3}, 0x00020000")
        A.e(f"buffer_load_dword a196, v{vPF}, s[{sWS}:{sWS+3}], s{s_t0} offen{SC}")
        A.e(f"s_cmp_eq_u32 s{s_t3}, 30")
        A.e(f"s_cselect_b32 s{s_t0}, 0, 0x40000000")
        A.e("s_waitcnt lgkmcnt(0)")
        A.e(f"buffer_load_dword a195, v{vPF}, s[{sW1}:{sW1+3}], s{s_t0} offen{SC}")
    if 'now1pf' not in EXP and 'nopf' not in EXP:
        A.e(f"s_mul_i32 s{s_t0}, s{s_kq}, 2304")
        A.e(f"s_add_u32 s{sW1}, s{p_w1}, s{s_t0}")
        A.e(f"s_addc_u32 s{sW1+1}, s{p_w1+1}, 0")
        A.e(f"s_mov_b32 s{sW1+2}, {575*9216 + 2304}")
        A.e(f"s_mov_b32 s{sW1+3}, 0x00020000")
        A.e(f"v_mul_u32_u24 v{vPF}, 9216, v1")
        A.e(f"s_lshl_b32 s{s_t3}, s{s_m7}, 2")
        A.e(f"s_add_u32 s{s_t3}, s{s_t3}, s{s_w}")
        A.e(f"s_mul_i32 s{s_t0}, s{s_t3}, 57")
        A.e(f"s_lshr_b32 s{s_t0}, s{s_t0}, 9")
        A.e(f"s_mul_i32 s{s_t1}, s{s_t0}, 9")
        A.e(f"s_sub_u32 s{s_t1}, s{s_t3}, s{s_t1}")
        A.e(f"s_mul_i32 s{s_t1}, s{s_t1}, {64*9216}")
        A.e(f"s_mul_i32 s{s_t0}, s{s_t0}, 768")
        A.e(f"s_add_u32 s{s_t1}, s{s_t1}, s{s_t0}")
        A.e(f"s_add_u32 s{s_t1}, s{s_t1}, 128")
        A.e(f"s_cmp_lt_u32 s{s_t3}, 27")
        A.e(f"s_cselect_b32 s{s_t1}, s{s_t1}, 0x40000000")
        A.e(f"buffer_load_dword a199, v{vPF}, s[{sW1}:{sW1+3}], s{s_t1} offen")
        if 'w1pf2' in EXP:
            A.e(f"buffer_load_dword a198, v{vPF}, s[{sW1}:{sW1+3}], s{s_t1} offen offset:128")
    A.e(f"s_mul_i32 s{s_t0}, s{s_kq}, {1152*1152}")
    A.e(f"s_add_u32 s{sPF}, s{sW2}, s{s_t0}")
    A.e(f"s_addc_u32 s{sPF+1}, s{sW2+1}, 0")
    A.e(f"s_mov_b32 s{sPF+2}, {1152*1152}")
    A.e(f"s_mov_b32 s{sPF+3}, 0x00020000")
    A.e(f"v_lshlrev_b32 v{vPF}, 7, v1")
    A.e(f"s_lshl_b32 s{s_t3}, s{s_m7}, 2")
    A.e(f"s_add_u32 s{s_t3}, s{s_t3}, s{s_w}")
    if 'w2sym' in EXP:
        A.e(f"s_lshr_b32 s{s_t0}, s{s_m}, 3")
        A.e(f"s_lshl_b32 s{s_t3}, s{s_t3}, 1")
        A.e(f"s_add_u32 s{s_t3}, s{s_t3}, s{s_t0}")
        for q in range(3):
            u = s_pf + q
            A.e(f"s_add_u32 s{s_t2}, s{s_t3}, {64*q}")
            A.e(f"s_mul_i32 s{s_t0}, s{s_t2}, 2428")
            A.e(f"s_lshr_b32 s{s_t0}, s{s_t0}, 16")
            A.e(f"s_mul_i32 s{s_t1}, s{s_t0}, 27")
            A.e(f"s_sub_u32 s{s_t1}, s{s_t2}, s{s_t1}")
            A.e(f"s_add_u32 s{s_t0}, s{s_t0}, 1")
            A.e(f"s_cmp_eq_u32 s{s_t0}, 6")
            A.e(f"s_cselect_b32 s{s_t0}, 0, s{s_t0}")
            A.e(f"s_mul_i32 s{u}, s{s_t0}, {64*1152}")
            A.e(f"s_mul_i32 s{s_t0}, s{s_t1}, 57")
            A.e(f"s_lshr_b32 s{s_t0}, s{s_t0}, 9")
            A.e(f"s_mul_i32 s{s_t0}, s{s_t0}, {384*1152 - 9*8192}")
            A.e(f"s_add_u32 s{u}, s{u}, s{s_t0}")
            A.e(f"s_lshl_b32 s{s_t1}, s{s_t1}, 13")
            A.e(f"s_add_u32 s{u}, s{u}, s{s_t1}")
            if q == 2:
                A.e(f"s_cmp_lt_u32 s{s_t2}, 162")
                A.e(f"s_cselect_b32 s{u}, s{u}, 0x40000000")
    else:
        A.e(f"s_mul_i32 s{s_t0}, s{s_t3}, 57")
        A.e(f"s_lshr_b32 s{s_t0}, s{s_t0}, 9")
        A.e(f"s_mul_i32 s{s_t0}, s{s_t0}, {384*1152 - 9*8192}")
        A.e(f"s_lshl_b32 s{s_t1}, s{s_t3}, 13")
        A.e(f"s_add_u32 s{s_pf+5}, s{s_t0}, s{s_t1}")
        A.e(f"s_lshr_b32 s{s_t0}, s{s_m}, 3")
        A.e(f"s_mul_i32 s{s_t1}, s{s_t0}, {64*1152}")
        A.e(f"s_add_u32 s{s_t1}, s{s_t1}, s{s_pf+5}")
        A.e(f"s_add_u32 s{s_pf}, s{s_t1}, {1*64*1152}")
        A.e(f"s_add_u32 s{s_pf+1}, s{s_t1}, {3*64*1152}")
        A.e(f"s_add_u32 s{s_pf+2}, s{s_pf+5}, {5*64*1152}")
        A.e(f"s_cmp_eq_u32 s{s_t0}, 0")
        A.e(f"s_cselect_b32 s{s_pf+2}, s{s_pf+2}, s{s_pf+5}")
    if 'now2c' in EXP:
        for q in range(3): A.e(f"s_mov_b32 s{s_pf+q}, 0x40000000")
    if W2T == 0: pf_hook(A, 0); pf_hook(A, 1)
    A.e(f"s_mov_b32 s{s_cA}, {fhex(L2E_HI)}")
    A.e(f"s_mov_b32 s{s_cB}, {fhex(L2E_LO)}")
    A.e(f"s_mov_b32 s{s_cC}, {fhex(LN2)}")
    A.e(f"s_add_u32 s{s_t0}, s{s_lb}, {SCR}")
    A.e(f"v_lshrrev_b32 v{T+4}, 1, v1")
    A.e(f"v_and_b32 v{T+5}, 1, v1")
    A.e(f"v_lshlrev_b32 v{T+5}, 3, v{T+5}")
    A.e(f"v_add_u32 v{T+5}, s{s_t0}, v{T+5}")
    for i in range(16):
        A.e(f"v_xor_b32 v{vW+i}, {33*i}, v{T+4}")
        A.e(f"v_lshl_add_u32 v{vW+i}, v{vW+i}, 4, v{T+5}")
    A.e(f"v_and_b32 v{T+6}, 15, v1")
    A.e(f"v_lshrrev_b32 v{T+7}, 4, v1")
    A.e(f"v_xor_b32 v{T+7}, v{T+7}, v{T+6}")
    A.e(f"v_lshlrev_b32 v{T+8}, 9, v{T+6}")
    A.e(f"v_add_u32 v{T+8}, s{s_t0}, v{T+8}")
    for k in range(4):
        A.e(f"v_xor_b32 v{vRD+k}, {4*k}, v{T+7}")
        A.e(f"v_lshl_add_u32 v{vRD+k}, v{vRD+k}, 4, v{T+8}")
    A.e(f"s_add_u32 s{s_t1}, s{s_lb}, {T_OFF}")
    A.e(f"v_lshlrev_b32 v{T+9}, 3, v1")
    A.e(f"v_sub_u32 v{T+9}, 2047, v{T+9}")
    for k in range(4):
        for e in range(9):
            g = vGa + 9*k + e
            A.e(f"v_subrev_u32 v{g}, {512*k + e}, v{T+9}")
        if k == 3: A.e(f"v_max_i32 v{vGa+35}, 0, v{vGa+35}")
        for e in range(9): A.e(f"v_cvt_f32_u32 v{vGa+9*k+e}, v{vGa+9*k+e}")
    for g in range(vGa, vGa + 36, 2):
        A.e(f"v_cvt_pk_bf16_f32 v{g+1}, v{g}, v{g+1}")
    for g in range(vGa, vGa + 36, 2):
        A.e(f"v_lshlrev_b32 v{g}, 16, v{g+1}")
        A.e(f"v_and_b32 v{g+1}, 0xffff0000, v{g+1}")
    for g in range(vGa, vGa + 36): A.e(f"v_cvt_u32_f32 v{g}, v{g}")
    for g in range(vGa, vGa + 36):
        A.e(f"v_lshrrev_b32 v{T+10+(g&1)}, 5, v{g}")
        A.e(f"v_add_lshl_u32 v{g}, v{g}, v{T+10+(g&1)}, 2")
    for g in range(vGa, vGa + 36): A.e(f"v_add_u32 v{g}, s{s_t1}, v{g}")
    if W2T == 0: pf_hook(A, 2)
    if W2T == 2: pf_hook(A, 0)
    A.e(f"s_add_u32 s{s_t2}, s{s_t1}, {4*2296}")
    A.e(f"v_mov_b32 v9, s{s_t2}")
    A.e("v_cmp_eq_u32 vcc, 63, v1")
    A.e(f"v_add_u32 v{vRW}, 16, v{vL16}")
    A.e(f"v_mov_b32 v{vPL+6}, 64")
    A.e(f"v_cndmask_b32 v{vGa+35}, v{vGa+35}, v9, vcc")
    A.e(f"v_add_u32 v{T+10}, 256, v{T+6}")
    A.e(f"v_cmp_eq_u32 vcc, 0, v{T+6}")
    A.e(f"v_mov_b32 v{vPL+5}, v{vL16}")
    A.e(f"v_and_b32 v{T+11}, 16, v1")
    A.e(f"v_cndmask_b32 v{T+10}, v{T+10}, v{T+6}, vcc")
    A.e(f"v_lshlrev_b32 v{T+10}, 4, v{T+10}")
    A.e(f"v_mul_u32_u24 v{T+11}, {SR//16}, v{T+11}")
    A.e(f"v_add_u32 v{vZW}, v{T+10}, v{T+11}")
    A.e(f"s_waitcnt vmcnt({0 if 'nopf' in EXP else (3 if 'now1pf' in EXP else (5 if 'w1pf2' in EXP else 4)) + (0 if 'notlb' in EXP else 2) - (0, 3, 2, 3)[W2T]})"); A.vm = []
    A.e(f"v_lshlrev_b32 v{T+6}, 3, v{T+6}")
    for k in range(12): A.e(f"v_add_u32 v{vSc+k}, v{vSc+k}, v{T+6}")
    for k in range(12):
        A.e(f"v_lshrrev_b32 v{T+10+(k&1)}, 5, v{vSc+k}")
        A.e(f"v_add_lshl_u32 v{vSc+k}, v{vSc+k}, v{T+10+(k&1)}, 2")
    for k in range(12): A.e(f"v_add_u32 v{vSc+k}, s{s_t1}, v{vSc+k}")
    A.e(f"v_lshlrev_b32 v{vDt}, 16, v{vDt}")
    A.e(f"v_lshlrev_b32 v{vDk}, 16, v{vDk}")
    exp_bf16_multi(A, [(vDt, vDt, T+12, T+13)])

def call_kchan(A, slot, ci_expr, rdst_off):
    for k in range(4): A.e(f"v_mov_b32 v{vCur+k}, v{vPar+4*slot+k}")
    A.e(ci_expr)
    A.e(f"s_add_u32 s{s_rdst}, s{s_lb}, {rdst_off}")
    if 'nokc' not in EXP: A.e(f"s_call_b64 s[{s_ret}:{s_ret+1}], L_kchan")

GSUM = 3*WREG + WREG - 512
def kgen_all(A):
    kc_setup(A)
    p1f.counter_arrive(A)
    stamp(A, 1)
    A.e(f"s_mov_b32 s{s_uok}, 0")
    if W2T == 1: pf_hook(A, 0); pf_hook(A, 1)
    if W2T == 2: pf_hook(A, 1)
    if W2T == 3: pf_hook(A, 0)
    A.e(f"s_cmp_lg_u32 s{s_w}, 0")
    A.e("s_cbranch_scc1 L_xw")
    A.c("-- wave 0: 9th channel, image exported")
    call_kchan(A, 0, f"s_mov_b32 s{s_ci}, 8", RB_OFF)
    A.e(f"s_add_u32 s{s_t0}, s{s_lb}, {RB_OFF}")
    A.e(f"v_add_u32 v{vCV}, s{s_t0}, v{vL16}")
    for k in range(9): A.e(f"ds_read_b128 v[{POOL[0]+4*k}:{POOL[0]+4*k+3}], v{vCV} offset:{1024*k}")
    A.e(f"s_mul_i32 s{s_t0}, s{s_ch0}, 1024")
    A.e(f"s_add_u32 s{s_t0}, s{s_t0}, {WS_R9}")
    A.e("s_waitcnt lgkmcnt(0)")
    for k in range(9):
        if k % 4 == 0 and k: A.e(f"s_add_u32 s{s_t0}, s{s_t0}, 4096")
        A.e(f"buffer_store_dwordx4 v[{POOL[0]+4*k}:{POOL[0]+4*k+3}], v{vL16}, s[{sWS}:{sWS+3}], s{s_t0} offen offset:{1024*(k%4)}")
    A.e("s_branch L_xw_done")
    A.label("L_xw")
    A.c("-- waves 1..3: u^T export and partial gate logits")
    T = vCV
    A.e(f"v_lshrrev_b32 v{T}, 1, v1")
    A.e(f"v_lshrrev_b32 v{T+1}, 1, v{T}")
    A.e(f"v_and_b32 v{T+1}, 7, v{T+1}")
    A.e(f"v_and_b32 v{T+2}, 1, v1")
    A.e(f"v_lshlrev_b32 v{T+2}, 2, v{T+2}")
    A.e(f"v_xor_b32 v{T+1}, v{T+1}, v{T+2}")
    A.e(f"s_add_u32 s{s_t3}, s{s_lb}, {SCR}")
    A.e(f"v_lshlrev_b32 v{T+3}, 7, v{T}")
    A.e(f"v_add_u32 v{T+3}, s{s_t3}, v{T+3}")
    for c in range(4):
        A.e(f"v_xor_b32 v{T+4}, {c}, v{T+1}")
        A.e(f"v_lshl_add_u32 v{T+4}, v{T+4}, 4, v{T+3}")
        for q in range(3): A.e(f"ds_read_b128 v[{vGX+16*q+4*c}:{vGX+16*q+4*c+3}], v{T+4} offset:{4096*q}")
    A.e("s_waitcnt lgkmcnt(0)")
    A.e(f"v_mov_b32 v{T+4}, 0"); A.e(f"v_mov_b32 v{T+5}, 0")
    for k in range(48): A.e(f"v_dot2c_f32_bf16 v{T+4+(k&1)}, v{vGX+k}, v{vGG+k}")
    A.e(f"s_lshl_b32 s{s_t0}, s{s_w}, 7")
    A.e(f"s_add_u32 s{s_t0}, s{s_t0}, {GSUM - 128}")
    A.e(f"v_lshlrev_b32 v{T}, 2, v{T}")
    A.e(f"v_add_f32 v{T+4}, v{T+4}, v{T+5}")
    A.e(f"v_add_u32 v{T}, s{s_t0}, v{T}")
    A.e("s_nop 0")
    A.e(f"v_add_f32_dpp v{T+4}, v{T+4}, v{T+4} quad_perm:[1,0,3,2] row_mask:0xf bank_mask:0xf")
    A.e(f"ds_write_b32 v{T}, v{T+4}")
    for q in range(0 if 'nout' in EXP else 3):
        A.e(f"s_call_b64 s[{s_ret}:{s_ret+1}], L_utsub")
        if q < 2:
            A.e(f"s_add_u32 s{s_line}, s{s_line}, 1")
            A.e(f"s_add_u32 s{s_t3}, s{s_t3}, 4096")
    A.label("L_xw_done")
    if W2T in (1, 2): pf_hook(A, 2)
    if W2T == 3: pf_hook(A, 1); pf_hook(A, 2)
    stamp(A, 2)
    call_kchan(A, 1, f"s_mov_b32 s{s_ci}, s{s_w}", RA_OFF)
    A.c("-- gate finish (wave 1), flag 1, W2 warm-up tables, counter poll")
    A.e("s_barrier")
    A.e(f"v_mov_b32 v{vS}, 1")
    A.e(f"s_waitcnt vmcnt({0 if 'nopf' in EXP else (0, 1, 1, 2)[W2T]})")
    A.e(f"buffer_store_dword v{vS}, off, s[{sWS}:{sWS+3}], s{s_fi}{SC}")
    A.e(f"s_cmp_lg_u32 s{s_w}, 1")
    A.e("s_cbranch_scc1 L_gt_skip")
    A.e(f"v_and_b32 v{T}, 31, v1")
    A.e(f"v_lshlrev_b32 v{T}, 2, v{T}")
    A.e(f"v_add_u32 v{T+1}, {GSUM}, v{T}")
    A.e(f"ds_read2_b32 v[{T+2}:{T+3}], v{T+1} offset0:0 offset1:32")
    A.e(f"ds_read_b32 v{T+4}, v{T+1} offset:256")
    A.e(f"s_lshl_b32 s{s_t0}, s{s_upos}, 1")
    A.e(f"s_add_u32 s{s_t0}, s{s_t0}, {WS_GT}")
    A.e("s_waitcnt lgkmcnt(0)")
    A.e(f"v_add_f32 v{T+2}, v{T+2}, v{T+3}")
    A.e(f"v_add_f32 v{T+2}, v{T+2}, v{T+4}")
    A.e(f"v_mul_f32 v{T+2}, {fhex(-LOG2E)}, v{T+2}")
    A.e(f"v_exp_f32 v{T+2}, v{T+2}")
    A.e("s_nop 0")
    A.e(f"v_add_f32 v{T+2}, 1.0, v{T+2}")
    A.e(f"v_rcp_f32 v{T+2}, v{T+2}")
    A.e("s_nop 0")
    A.e(f"buffer_store_dword v{T+2}, v{T}, s[{sWS}:{sWS+3}], s{s_t0} offen{SC}")
    A.label("L_gt_skip")
    A.e(f"buffer_load_dword v{vPL+4}, off, s[{sDBG}:{sDBG+3}], 0{SC}")
    if 'w2full' in EXP:
        A.e(f"s_lshr_b32 s{s_t0}, s{s_m}, 3")
        A.e(f"s_cmp_eq_u32 s{s_t0}, 0")
        A.e(f"s_cselect_b32 s{s_t0}, 1, -1")
        A.e(f"s_mul_i32 s{s_t0}, s{s_t0}, {64*1152}")
        A.e(f"s_add_u32 s{s_pf}, s{s_pf}, s{s_t0}")
        A.e(f"s_add_u32 s{s_pf+1}, s{s_pf+1}, s{s_t0}")
        A.e(f"s_mul_i32 s{s_t0}, s{s_t0}, 5")
        A.e(f"s_sub_u32 s{s_pf+2}, s{s_pf+2}, s{s_t0}")
        pf_hook(A, 0); pf_hook(A, 1); pf_hook(A, 2)
    A.e(f"s_mov_b32 s{s_uok}, 2")
    call_kchan(A, 2, f"s_add_u32 s{s_ci}, s{s_w}, 4", RB_OFF)
    stamp(A, 3)

def utchk(A):
    A.e(f"s_cmp_eq_u32 s{s_uok}, 1")
    A.e("s_cbranch_scc1 L_uc3")
    A.e(f"s_mov_b32 s{s_t0}, 0x20000")
    A.e(f"s_mov_b32 s{s_t1}, {F_U}")
    A.e(f"v_mov_b32 v{vPL}, 0")
    A.label("L_uc1")
    A.e(f"v_min_u32 v{vPL}, v{vPL}, v{vPL+1}")
    A.e(f"v_min3_u32 v{vPL}, v{vPL}, v{vPL+2}, v{vPL+3}")
    A.e(f"v_cmp_gt_u32 vcc, 1, v{vPL}")
    A.e(f"v_cmp_gt_u32 s[76:77], v{vPL+6}, v{vPL+4}")
    A.e("s_or_b64 vcc, vcc, s[76:77]")
    A.e("s_cbranch_scc0 L_uc3")
    A.e(f"s_sub_u32 s{s_t0}, s{s_t0}, 1")
    A.e("s_cbranch_scc1 L_uc3")
    A.e(f"buffer_load_dword v{vPL+4}, off, s[{sDBG}:{sDBG+3}], 0{SC}")
    A.e("s_waitcnt vmcnt(0)")
    A.e(f"buffer_load_dwordx4 v[{vPL}:{vPL+3}], v{vPL+5}, s[{sWS}:{sWS+3}], s{s_t1} offen{SC}")
    A.e("s_waitcnt vmcnt(0)")
    A.e("s_branch L_uc1")
    A.label("L_uc3")

def tables(A):
    A.raw(".p2align 4")
    A.label("L_atab")
    A.raw(".long " + ", ".join(str(x) for x in a_table()))
```
